```python
import torch

def _softmax(x, axis=-1):
    return torch.softmax(x, dim=axis)

def _gelu(x):
    return torch.nn.functional.gelu(x, approximate='tanh')

def _silu(x):
    return torch.nn.functional.silu(x)

def _sigmoid(x):
    return torch.sigmoid(x)

def _layernorm(x, axis=-1, eps=1e-05):
    m = x.mean(dim=axis, keepdim=True)
    v = x.var(dim=axis, keepdim=True, unbiased=False)
    return (x - m) / torch.sqrt(v + eps)

def _scatter_add(tgt, idx, src, axis=0):
    return tgt.clone().index_add_(axis, idx, src)

def _segment_sum(src, seg, n):
    out = torch.zeros((n,) + src.shape[1:], dtype=src.dtype)
    return out.index_add_(0, seg, src)

def _pad(x, pw):
    flat = tuple((v for pair in reversed(pw) for v in pair))
    return torch.nn.functional.pad(x, flat)
kernel_name = 'adaLN_cond__grouped_kv_mqa__mixer_gmlp__prompt'

def setup_inputs():

    _w = lambda a: (lambda t: t.to(torch.bfloat16) if t.is_floating_point() else t)(torch.as_tensor(a))

    def _A_setup():
        B, S, D, H = (1, 2048, 512, 32)
        Dh = D // H
        return {'x': _w((lambda *s: torch.randn(*s, dtype=torch.bfloat16) * 0.05)(B, S, D)), 'wq': _w((lambda *s: torch.randn(*s, dtype=torch.bfloat16) * 0.05)(D, H * Dh)), 'wk': _w((lambda *s: torch.randn(*s, dtype=torch.bfloat16) * 0.05)(D, Dh)), 'wv': _w((lambda *s: torch.randn(*s, dtype=torch.bfloat16) * 0.05)(D, Dh)), 'wo': _w((lambda *s: torch.randn(*s, dtype=torch.bfloat16) * 0.05)(H * Dh, D))}
    _A_in = _A_setup()

    def _B_setup():
        B, S, D, F = (1, 2048, 512, 1792)
        Fh = F // 2
        return {'x': _w((lambda *s: torch.randn(*s, dtype=torch.bfloat16) * 0.05)(B, S, D)), 'w_in': _w((lambda *s: torch.randn(*s, dtype=torch.bfloat16) * 0.2)(D, 2 * Fh)), 'w_sp': _w(0.01 * (lambda *s: torch.randn(*s, dtype=torch.bfloat16) * 0.2)(S, S)), 'b_sp': _w(1.0 + 0.01 * (lambda *s: torch.randn(*s, dtype=torch.bfloat16) * 0.05)(S)), 'w_out': _w((lambda *s: torch.randn(*s, dtype=torch.bfloat16) * 0.05)(Fh, D))}
    _B_in = _B_setup()
    return {'A_x': _A_in['x'], 'A_wq': _A_in['wq'], 'A_wk': _A_in['wk'], 'A_wv': _A_in['wv'], 'A_wo': _A_in['wo'], 'B_x': _B_in['x'], 'B_w_in': _B_in['w_in'], 'B_w_sp': _B_in['w_sp'], 'B_b_sp': _B_in['b_sp'], 'B_w_out': _B_in['w_out'], 'c': _w((lambda *s: torch.randn(*s, dtype=torch.bfloat16) * 0.1)(1, 512) * 8.0), 'w_mod': _w((lambda *s: torch.randn(*s, dtype=torch.bfloat16) * 0.1)(512, 6 * 512) * 512 ** (-0.5) * 8.0)}

def reference(A_x, A_wq, A_wk, A_wv, A_wo, B_x, B_w_in, B_w_sp, B_b_sp, B_w_out, c, w_mod):

    def _A_ref(x, wq, wk, wv, wo):
        B, S, D = x.shape
        H = 32
        Dh = D // H
        q = (lambda x, *d: x.permute(*d))((x @ wq).reshape(B, S, H, Dh), 0, 2, 1, 3)
        k = x @ wk
        v = x @ wv
        scores = torch.einsum('bhqd,bkd->bhqk', q, k) * Dh ** (-0.5)
        p = _softmax(scores, axis=-1)
        o = torch.einsum('bhqk,bkd->bhqd', p, v)
        return (lambda x, *d: x.permute(*d))(o, 0, 2, 1, 3).reshape(B, S, H * Dh) @ wo

    def _B_ref(x, w_in, w_sp, b_sp, w_out):
        B, S, D = x.shape
        F = w_in.shape[-1]
        Fh = F // 2
        z = _gelu(torch.einsum('bsd,df->bsf', x, w_in))
        z1 = z[..., :Fh].clone()
        z2 = _layernorm(z[..., Fh:], axis=-1)
        g = torch.einsum('ts,bsf->btf', w_sp, z2) + b_sp[None, :, None]
        return torch.einsum('bsf,fd->bsd', z1 * g, w_out)
    x = A_x
    mod = (_silu(c) @ w_mod).reshape(c.shape[0], 6, 1, -1)
    sa, ca, ga, sb, cb, gb = (mod[:, 0].clone(), mod[:, 1].clone(), mod[:, 2].clone(), mod[:, 3].clone(), mod[:, 4].clone(), mod[:, 5].clone())
    h = _layernorm(x, axis=-1) * (1 + ca) + sa
    x = x + ga * _A_ref(h, A_wq, A_wk, A_wv, A_wo)
    h = _layernorm(x, axis=-1) * (1 + cb) + sb
    x = x + gb * _B_ref(h, B_w_in, B_w_sp, B_b_sp, B_w_out)
    return x
```

```python
import re

TRANS = ("v_exp_f32", "v_rcp_f32", "v_rsq_f32", "v_log_f32", "v_sqrt_f32", "v_sin_f32", "v_cos_f32")
_reg = re.compile(r"(?<![\w.])([vas])(?:(\d+)|\[(\d+):(\d+)\])(?![\w])")

def regs_of(op):
    out = []
    for m in _reg.finditer(op):
        k = m.group(1)
        if m.group(2) is not None:
            out.append((k, int(m.group(2))))
        else:
            out += [(k, i) for i in range(int(m.group(3)), int(m.group(4)) + 1)]
    if re.search(r"\bvcc\b", op): out.append(("s", "vcc"))
    if re.search(r"\bm0\b", op): out.append(("s", "m0"))
    if re.search(r"\bexec\b", op): out.append(("s", "exec"))
    return out

class Ins:
    def __init__(self, text):
        self.text = text
        t = text.split(";")[0].strip()
        p = t.split(None, 1)
        self.op = p[0]
        rest = p[1] if len(p) > 1 else ""
        ops = [x.strip() for x in rest.split(",")] if rest else []
        self.ops = ops
        op = self.op
        self.kind = ("mfma" if op.startswith(("v_mfma", "v_smfmac")) else "valu" if op.startswith("v_") else
                     "vmem" if op.startswith(("buffer_", "global_")) else "ds" if op.startswith("ds_") else "salu")
        R = [regs_of(o) for o in ops]
        allr = lambda L: [r for x in L for r in x]
        self.w, self.r, self.srcc = [], [], []
        self.dpp = "row_" in t or "quad_perm" in t or "_dpp" in op
        self.states = 1
        if op == "s_nop": self.states = int(ops[0], 0) + 1
        if self.kind == "mfma":
            self.passes = 8 if "32x32" in op else 4
            self.w = R[0]
            if op.startswith("v_smfmac"):
                self.srcc = R[0]; self.ab = R[1] + R[2] + R[3]
            else:
                self.srcc = R[3]; self.ab = R[1] + R[2]
            self.r = self.ab + self.srcc
        elif self.kind == "valu":
            if "permlane" in op and "swap" in op or op.startswith("v_swap"):
                self.w = R[0] + R[1]; self.r = R[0] + R[1]
            elif op.startswith(("v_add_co", "v_addc_co", "v_sub_co")):
                self.w = R[0] + R[1]; self.r = allr(R[2:])
            else:
                self.w = R[0]; self.r = allr(R[1:])
                if op.startswith(("v_fmac", "v_dot2c", "v_pk_fmac")) or self.dpp: self.r = self.r + R[0]
                if op.startswith("v_cndmask") and len(ops) == 3: self.r.append(("s", "vcc"))
        elif self.kind == "vmem":
            if "_store" in op or ("atomic" in op and "sc0" not in t):
                self.r = allr(R)
            elif op.startswith("buffer_load") and re.search(r"\blds\b", t):
                self.r = allr(R) + [("s", "m0")]
            elif "atomic" in op:
                self.r = allr(R); self.w = R[0]
            else:
                self.w = R[0]; self.r = allr(R[1:])
            self.widestore = ("_store_dwordx4" in op or "_store_dwordx3" in op)
            if self.widestore:
                self.data = R[0] if op.startswith("buffer") else R[1]
        elif self.kind == "ds":
            if op.startswith("ds_write"): self.r = allr(R)
            else: self.w = R[0]; self.r = allr(R[1:])
        else:
            if op.startswith(("s_cmp", "s_cbranch", "s_branch", "s_waitcnt", "s_barrier", "s_nop", "s_endpgm", "s_sleep", "s_setprio")):
                self.r = allr(R)
            else:
                self.w = R[0] if R else []; self.r = allr(R[1:])
        self.ws, self.rs = set(self.w), set(self.r)

def need(p, c):
    n = 0
    vec = lambda S: {x for x in S if x[0] in "va"}
    sca = lambda S: {x for x in S if x[0] == "s"}
    if p.kind == "valu":
        pv = vec(p.ws); ps = sca(p.ws)
        if c.kind == "mfma" and pv & c.rs: n = max(n, 2)
        if c.kind == "valu":
            if pv & c.rs:
                if p.op.startswith(TRANS) and not c.op.startswith(TRANS): n = max(n, 1)
                if "permlane" in c.op or c.dpp: n = max(n, 2)
                if c.op.startswith(("v_readlane", "v_readfirstlane")): n = max(n, 1)
            if ps & c.rs: n = max(n, 4 if c.op.startswith(("v_readlane", "v_writelane")) else 2)
        if p.op.startswith(TRANS) and c.kind in ("vmem", "ds") and pv & c.rs: n = max(n, 1)
        if c.kind == "vmem" and ps & c.rs: n = max(n, 5)
        if c.kind == "salu" and ps & c.rs and not c.op.startswith("s_cbranch"): n = max(n, 1)
    if p.kind == "mfma":
        big = 12 if p.passes == 8 else 8
        D = p.ws
        if c.kind == "mfma":
            if D & set(c.ab): n = max(n, big)
            if D & set(c.srcc):
                if not (c.srcc == p.w and c.passes == p.passes): n = max(n, big - 2)
        elif c.kind == "valu":
            if D & (c.rs | c.ws): n = max(n, big)
            if set(p.srcc) & c.ws: n = max(n, 7 if p.passes == 8 else 3)
        elif c.kind in ("vmem", "ds"):
            if D & (c.rs | c.ws): n = max(n, big)
    if p.kind == "vmem" and getattr(p, "widestore", False):
        if set(p.data) & c.ws: n = max(n, 2 if c.kind in ("valu", "mfma") else 1)
    if p.kind == "salu" and ("s", "m0") in p.ws and c.kind == "vmem" and ("s", "m0") in c.rs: n = max(n, 1)
    return n

class Asm:
    WIN = 14
    def __init__(self):
        self.items = []
        self.uid = 0
    def __call__(self, text):
        for line in text.split("\n"):
            s = line.strip()
            if not s or s.startswith(";"): continue
            if s.endswith(":") and " " not in s: self.items.append(("label", s[:-1]))
            elif s.startswith("."): self.items.append(("raw", s))
            else: self.items.append(("ins", Ins(s)))
    def note(self, text):
        for line in text.strip().split("\n"): self.items.append(("raw", "; " + line.strip()))
    def label(self, base):
        self.uid += 1
        return f"L{base}_{self.uid}"
    def finish(self):
        out = []
        hist = [[]]
        snaps = {}
        pos = {n: i for i, (k, n) in enumerate(self.items) if k == "label"}
        nops = 0
        def required(c, hists):
            best = 0
            for h in hists:
                d = 0
                for p in reversed(h):
                    r = need(p, c) - d
                    if r > best: best = r
                    d += p.states
                    if d >= self.WIN: break
            return best
        def push(ins, hists):
            res = []
            for h in hists:
                h = (h + [ins])[-self.WIN:]
                if all(h != x for x in res): res.append(h)
            return res
        for i, (k, x) in enumerate(self.items):
            if k == "label":
                hist = hist + snaps.get(x, [])
                if not hist: hist = [[]]
                out.append(x + ":")
            elif k == "raw":
                out.append(x)
            else:
                r = required(x, hist)
                isbr = x.op.startswith(("s_cbranch", "s_branch"))
                if isbr and pos.get(x.ops[0], 1 << 30) < i:
                    d = 1; j = pos[x.ops[0]]
                    while d < self.WIN and j < len(self.items):
                        kk, y = self.items[j]
                        if kk == "ins":
                            r = max(r, required(y, hist) - d); d += y.states
                        j += 1
                while r > 0:
                    n = min(r, 16)
                    nop = Ins(f"s_nop {n-1}"); out.append("    " + nop.text); hist = push(nop, hist); r -= n; nops += 1
                out.append("    " + x.text)
                hist = push(x, hist)
                if isbr:
                    snaps.setdefault(x.ops[0], []).extend(hist)
                    if x.op == "s_branch": hist = []
                if x.op == "s_endpgm": hist = []
                if not hist and False: hist = [[]]
        self.nops = nops
        return "\n".join(out) + "\n"
```

```python
import sys, struct, math
from asmlib import Asm

NAME = "adaLN_cond__grouped_kv_mqa__mixer_gmlp__prompt"
STAMPS = "--stamps" in sys.argv
FORCE_SLOW = "--slow" in sys.argv
FORCE_FB = "--fallback" in sys.argv

def fbits(x): return "0x%08x" % struct.unpack("<I", struct.pack("<f", x))[0]

F_HOP, F_B, F_A3, F_E = 0, 16384, 20480, 32768
WS_MOD, WS_C12, WS_KV = 0x10000, 0x14000, 0x20000
WS_ST1, WS_ST2 = 0x50000, 0x70000
WS_O, WS_Y, WS_Z2, WS_U, WS_STAMP, WS_SIZE = 0x100000, 0x300000, 0x500000, 0x900000, 0xD00000, 0x1000000
REC = 2112
L_G1, L_OP2 = 0, 16384
L_KV = 28672
L_WQ, L_WKV, L_G0, L_SILU, L_PAR = 28672, 94208, 110592, 126976, 128000
L_WO = 0
SLOT = 7168
def slotA(i): return 65536 + SLOT * i
def slotB(i): return SLOT * i
def slot_z2(T): return slotA(T) if T < 13 else slotB(T - 13)
def slot_z1(T): return slotB(3 + T) if T < 4 else slotA(T - 4)
L_WOUT, L_RED = 0, 77824
LDS_BYTES = 163840
R0, WS, R1, R2, R3 = "s[4:7]", "s[8:11]", "s[12:15]", "s[56:59]", "s[60:63]"
P_X, P_WQ, P_WK, P_WV, P_WO, P_WIN, P_WSP, P_BSP, P_WOUT, P_C, P_WMOD, P_OUT, P_DBG, P_WS = 16, 18, 20, 22, 24, 28, 30, 32, 34, 36, 38, 40, 42, 44
sRB, sCB, sW, sXCC, sFAST, sIDX, sXCD, sKVW, sGRP = "s46", "s47", "s48", "s49", "s50", "s51", "s52", "s53", "s54"
SPIN = 1 << 17

a = Asm()
def vr(b, n): return f"v[{b}:{b+n-1}]"
def ar(b, n): return f"a[{b}:{b+n-1}]"

class VM:
    def __init__(s): s.n = 0; s.tags = {}
    def op(s, text, tag=None):
        a(text); s.n += 1
        if tag: s.tags[tag] = s.n
    def tag(s, t): s.tags[t] = s.n
    def wait(s, t):
        k = s.n - s.tags[t]
        if k < 63: a(f"s_waitcnt vmcnt({k})")
    def drain(s): a("s_waitcnt vmcnt(0)")
vm = VM()

def srd(q, ptr, size, off=None):
    b = int(q[2:q.index(":")])
    if off is None:
        a(f"s_mov_b32 s{b}, s{ptr}\ns_mov_b32 s{b+1}, s{ptr+1}\ns_mov_b32 s{b+2}, {size}")
    else:
        a(f"s_add_u32 s{b}, s{ptr}, {off}\ns_addc_u32 s{b+1}, s{ptr+1}, 0\ns_sub_u32 s{b+2}, {size}, {off}")
    a(f"s_mov_b32 s{b+3}, 0x20000")

nstamp = [0]
stamp_names = []
def stamp(name):
    if not STAMPS: return
    i = nstamp[0]; nstamp[0] += 1; stamp_names.append(name)
    assert i < 42
    a("s_memrealtime s[78:79]\ns_waitcnt lgkmcnt(0)")
    if i == 0: a("s_mov_b32 s80, s78")
    elif i & 1: a(f"s_sub_u32 s{81 + i//2}, s78, s80")
    else: a(f"s_sub_u32 s78, s78, s80\ns_pack_ll_b32_b16 s{80 + i//2}, s{80 + i//2}, s78")

def poll(load, cond, mask):
    L, X = a.label("poll"), a.label("pollx")
    a(f"s_mov_b64 exec, {mask}\ns_mov_b32 s3, 0\n{L}:\ns_add_u32 s3, s3, 1\ns_cmp_gt_u32 s3, {SPIN}\ns_cbranch_scc1 {X}")
    a(load); a("s_waitcnt vmcnt(0)"); a(cond)
    a(f"s_cbranch_vccnz {L}\n{X}:\ns_mov_b64 exec, -1")

def both(fn):
    S, E = a.label("slow"), a.label("pub")
    n0 = vm.n
    a(f"s_cmp_eq_u32 {sFAST}, 0\ns_cbranch_scc1 {S}")
    fn(""); n1 = vm.n
    a(f"s_branch {E}\n{S}:"); vm.n = n0
    fn(" sc1"); assert vm.n == n1
    a(f"{E}:")

def hop_signal(phase):
    def f(sc):
        a("s_waitcnt vmcnt(0)")
        a(f"v_mov_b32 v4, {phase}\ns_lshl_b32 s3, {sCB}, 2\ns_add_u32 s3, s3, {sGRP}\nv_mov_b32 v5, s3\ns_mov_b64 exec, 1")
        vm.op(f"buffer_store_dword v4, v5, {WS}, 0 offen{sc}")
        a("s_mov_b64 exec, -1")
    return f

def hop_wait(phase):
    a("v_lshlrev_b32 v5, 2, v0")
    poll(f"buffer_load_dword v4, v5, {WS}, {sGRP} offen sc1", f"v_cmp_gt_u32 vcc, {phase}, v4", "0xff")

def xgroup_sum(v, t):
    a(f"v_mov_b32 v{t}, v{v}\nv_permlane32_swap_b32 v{v}, v{t}\nv_add_f32 v{v}, v{v}, v{t}")
    a(f"v_mov_b32 v{t}, v{v}\nv_permlane16_swap_b32 v{v}, v{t}\nv_add_f32 v{v}, v{v}, v{t}")

def pipeline(nsteps, reads, compute, nreads, pre=1):
    for T in range(min(pre, nsteps)): reads(T)
    for T in range(nsteps):
        if T + pre < nsteps: reads(T + pre)
        left = min(pre, nsteps - 1 - T) * nreads
        a(f"s_waitcnt lgkmcnt({min(left, 15)})")
        compute(T)

a(f"""
s_cmp_ge_u32 s2, 256
s_cbranch_scc1 L_end
s_load_dwordx16 s[16:31], s[0:1], 0
s_load_dwordx8 s[32:39], s[0:1], 64
s_load_dwordx4 s[40:43], s[0:1], 96
s_load_dwordx2 s[44:45], s[0:1], 112
v_lshrrev_b32 v4, 6, v0
v_and_b32 v0, 63, v0
v_readfirstlane_b32 {sW}, v4
v_and_b32 v1, 15, v0
v_lshrrev_b32 v2, 4, v0
v_lshlrev_b32 v3, 4, v0
s_and_b32 {sXCD}, s2, 7
s_lshr_b32 {sIDX}, s2, 3
s_and_b32 {sCB}, {sIDX}, 7
s_lshr_b32 s3, {sIDX}, 3
s_lshl_b32 {sRB}, {sXCD}, 2
s_add_u32 {sRB}, {sRB}, s3
s_lshr_b32 {sKVW}, {sCB}, 1
s_getreg_b32 {sXCC}, hwreg(HW_REG_XCC_ID, 0, 4)
s_and_b32 {sXCC}, {sXCC}, 7
s_lshl_b32 {sGRP}, {sRB}, 2
s_add_u32 {sGRP}, {sGRP}, {sW}
s_lshl_b32 s55, {sGRP}, 14
s_lshl_b32 {sGRP}, {sGRP}, 7
""")
Lnp = a.label("nopf")
a(f"""
s_cmp_eq_u32 {sW}, 3
s_cbranch_scc0 {Lnp}
s_getpc_b64 s[64:65]
L_pc:
s_lshl_b32 s3, {sIDX}, 4
v_add_u32 v4, s3, v1
v_lshlrev_b32 v4, 7, v4
v_min_u32 v4, L_end-L_pc-4, v4
v_mov_b32 v5, s65
v_add_co_u32 v4, vcc, s64, v4
v_addc_co_u32 v5, vcc, 0, v5, vcc
s_mov_b64 exec, 0xffff
global_load_dword v6, v[4:5], off
s_mov_b64 exec, -1
{Lnp}:
""")
a(f"""
v_lshrrev_b32 v4, 1, v0
v_and_b32 v5, 19, v4
v_bfe_u32 v6, v4, 2, 1
v_lshl_or_b32 v5, v6, 3, v5
v_bfe_u32 v6, v4, 3, 1
v_lshl_or_b32 v16, v6, 2, v5
v_lshrrev_b32 v4, 2, v1
v_and_b32 v5, 1, v2
v_lshl_add_u32 v4, v5, 2, v4
v_lshrrev_b32 v5, 1, v2
v_lshl_add_u32 v4, v5, 4, v4
v_lshlrev_b32 v4, 5, v4
v_and_b32 v5, 3, v1
v_lshl_add_u32 v17, v5, 3, v4
v_and_b32 v18, 1, v0
v_lshlrev_b32 v18, 4, v18
s_waitcnt lgkmcnt(0)
""")
stamp("start")
srd(WS, P_WS, hex(WS_SIZE))

def gemv_chain(lbase, opaddr, acc):
    a(f"v_add_u32 v19, {lbase}, v17")
    def rd(T):
        b = 128 + (T % 4) * 8
        a(f"ds_read_b64_tr_b16 {vr(b,2)}, v19 offset:{T*1024}\nds_read_b64_tr_b16 {vr(b+2,2)}, v19 offset:{T*1024+256}")
        a(f"ds_read_b128 {vr(b+4,4)}, v{opaddr} offset:{T*64}")
    def cp(T):
        b = 128 + (T % 4) * 8
        a(f"v_mfma_f32_16x16x32_bf16 {vr(acc,4)}, {vr(b,4)}, {vr(b+4,4)}, {'0' if T == 0 else vr(acc,4)}")
    pipeline(16, rd, cp, 3, pre=3)

def round_bf16(regs):
    for i in range(0, len(regs), 2):
        x, y = regs[i], regs[i+1]
        a(f"v_cvt_pk_bf16_f32 v{y}, v{x}, v{y}\nv_lshlrev_b32 v{x}, 16, v{y}\nv_and_b32 v{y}, 0xffff0000, v{y}")

Lg0 = a.label("nog0")
a(f"""
s_cmp_eq_u32 {sW}, 0
s_cbranch_scc0 {Lg0}
s_cmp_lt_u32 {sIDX}, 24
s_cbranch_scc0 {Lg0}
""")
a(f"""
s_lshl_b32 s64, {sXCD}, 3
s_add_u32 s64, s64, {sIDX}
s_add_u32 s65, s64, 88
s_cmp_lt_u32 {sIDX}, 8
s_cselect_b32 s64, s64, s65
s_lshl_b32 s65, {sXCD}, 2
s_add_u32 s65, s65, {sIDX}
s_add_u32 s66, s65, 48
s_add_u32 s65, s65, 140
s_cmp_lt_u32 {sIDX}, 20
s_cselect_b32 s65, s66, s65
s_cmp_lt_u32 {sIDX}, 16
s_cselect_b32 s64, s64, s65
s_lshl_b32 s65, s64, 5
""")
srd(R0, P_WMOD, 512 * 6144, "s65")
srd(R1, P_C, 1024)
a(f"buffer_load_dwordx4 v[32:35], v3, {R1}, 0 offen")
a("s_movk_i32 s3, 6144\nv_mad_u32_u24 v19, v16, s3, v18\ns_mov_b32 s66, 0")
for n in range(16):
    a(f"s_mov_b32 m0, {L_G0 + n*1024}\nbuffer_load_dwordx4 v19, {R0}, s66 offen lds")
    if n < 15: a("s_add_u32 s66, s66, 196608")
Lnz = a.label("noz")
a(f"""
s_cmp_lt_u32 {sIDX}, 8
s_cbranch_scc0 {Lnz}
v_mov_b32 v36, 0
v_mov_b32 v37, 0
v_mov_b32 v38, 0
v_mov_b32 v39, 0
s_lshl_b32 s3, s64, 10
buffer_store_dwordx4 v[36:39], v3, {WS}, s3 offen sc1
{Lnz}:
s_waitcnt vmcnt(16)
""")
for i in range(4):
    a(f"v_lshlrev_b32 v{40+2*i}, 16, v{32+i}\nv_and_b32 v{41+2*i}, 0xffff0000, v{32+i}")
for i in range(8): a(f"v_mul_f32 v{48+i}, {fbits(-math.log2(math.e))}, v{40+i}")
for i in range(8): a(f"v_exp_f32 v{48+i}, v{48+i}")
for i in range(8): a(f"v_add_f32 v{48+i}, 1.0, v{48+i}")
for i in range(8): a(f"v_rcp_f32 v{48+i}, v{48+i}")
for i in range(8): a(f"v_mul_f32 v{40+i}, v{40+i}, v{48+i}")
for i in range(4): a(f"v_cvt_pk_bf16_f32 v{32+i}, v{40+2*i}, v{41+2*i}")
a(f"v_add_u32 v20, {L_SILU}, v3\nds_write_b128 v20, v[32:35]")
a(f"v_lshlrev_b32 v20, 4, v2\nv_add_u32 v20, {L_SILU}, v20\ns_waitcnt vmcnt(0) lgkmcnt(0)")
gemv_chain(L_G0, 20, 32)
round_bf16([32, 33, 34, 35])
Lno1 = a.label("no1"); Ly1 = a.label("yes1")
a(f"s_lshr_b32 s3, s64, 5\ns_cmp_eq_u32 s3, 1\ns_cbranch_scc1 {Ly1}\ns_cmp_eq_u32 s3, 4\ns_cbranch_scc0 {Lno1}\n{Ly1}:")
for i in range(4): a(f"v_add_f32 v{32+i}, 1.0, v{32+i}")
round_bf16([32, 33, 34, 35])
a(f"""
{Lno1}:
s_lshl_b32 s3, s64, 6
s_add_u32 s3, s3, {WS_MOD}
v_lshlrev_b32 v20, 4, v2
s_mov_b32 exec_lo, 0x00010001
s_mov_b32 exec_hi, 0x00010001
buffer_store_dwordx4 v[32:35], v20, {WS}, s3 offen sc1
s_mov_b64 exec, -1
s_waitcnt vmcnt(0)
s_cmp_lt_u32 {sIDX}, 16
s_cbranch_scc0 {Lg0}
""")
srd(R1, P_DBG, 256)
a(f"""
s_lshr_b32 s3, {sIDX}, 3
s_lshl_b32 s3, s3, 7
v_mov_b32 v4, 1
v_mov_b32 v5, s3
s_mov_b64 exec, 1
buffer_atomic_add v4, v5, {R1}, 0 offen sc1
s_mov_b64 exec, -1
{Lg0}:
""")
stamp("mod")
srd(R1, P_X, 2048 * 1024, "s55")
a("v_lshlrev_b32 v4, 10, v1\nv_lshl_add_u32 v19, v2, 4, v4")
for T in range(16): a(f"buffer_load_dwordx4 {vr(64+4*T,4)}, v19, {R1}, 0 offen offset:{T*64}")
a(f"v_lshl_add_u32 v20, v2, 3, v4\ns_lshl_b32 s3, {sCB}, 7")
for j in range(4): a(f"buffer_load_dwordx2 {vr(8+2*j,2)}, v20, {R1}, s3 offen offset:{j*32}")
Lw1, Lw23, Lxw = a.label("w1"), a.label("w23"), a.label("xw")
a(f"""
s_cmp_ge_u32 {sW}, 2
s_cbranch_scc1 {Lw23}
s_cmp_eq_u32 {sW}, 1
s_cbranch_scc0 {Lw1}
s_cmp_lt_u32 {sIDX}, 14
s_cbranch_scc0 {Lw1}
s_mul_i32 s64, {sXCD}, 14
s_add_u32 s64, s64, {sIDX}
s_lshl_b32 s64, s64, 5
""")
srd(R0, P_WIN, 512 * 3584, "s64")
a("s_movk_i32 s3, 3584\nv_mad_u32_u24 v19, v16, s3, v18\ns_mov_b32 s66, 0")
for n in range(16):
    a(f"s_mov_b32 m0, {L_G1 + n*1024}\nbuffer_load_dwordx4 v19, {R0}, s66 offen lds")
    if n < 15: a("s_add_u32 s66, s66, 114688")
a(f"s_waitcnt vmcnt(20)\ns_branch {Lxw}\n{Lw1}:\ns_waitcnt vmcnt(4)\ns_branch {Lxw}\n{Lw23}:")
a(f"s_and_b32 s3, {sCB}, 1\ns_cselect_b32 s64, s{P_WV}, s{P_WK}\ns_cselect_b32 s65, s{P_WV+1}, s{P_WK+1}")
srd(R0, 64, 16384)
a(f"s_lshl_b32 s66, {sCB}, 7")
srd(R2, P_WQ, 512 * 1024, "s66")
a(f"""
v_lshl_add_u32 v19, v16, 5, v18
s_sub_u32 s67, {sW}, 2
s_lshl_b32 s66, s67, 13
s_add_u32 s68, s66, {L_WKV}
""")
for n in range(8):
    a(f"s_mov_b32 m0, s68\nbuffer_load_dwordx4 v19, {R0}, s66 offen lds")
    if n < 7: a("s_add_u32 s66, s66, 1024\ns_add_u32 s68, s68, 1024")
def img128_voff(dst, fmask):
    a(f"""
v_lshrrev_b32 v4, 3, v0
v_bfe_u32 v5, v0, 1, 2
v_bfe_u32 v6, v4, 1, {fmask}
v_xor_b32 v5, v5, v6
v_lshlrev_b32 v5, 5, v5
v_lshl_add_u32 v5, v4, 10, v5
v_add_u32 v{dst}, v5, v18
""")
img128_voff(21, 1)
a(f"v_xor_b32 v22, 64, v21\ns_lshl_b32 s66, s67, 18\ns_lshl_b32 s68, s67, 15\ns_add_u32 s68, s68, {L_WQ}")
for n in range(32):
    a(f"s_mov_b32 m0, s68\nbuffer_load_dwordx4 v{21 + (n & 1)}, {R2}, s66 offen lds")
    if n < 31: a("s_add_u32 s66, s66, 8192\ns_add_u32 s68, s68, 1024")
a(f"s_waitcnt vmcnt(44)\n{Lxw}:")
stamp("xin")
for i in range(64):
    a(f"v_lshlrev_b32 v{128+2*i}, 16, v{64+i}\nv_and_b32 v{129+2*i}, 0xffff0000, v{64+i}")
for k in range(4): a(f"v_pk_add_f32 {vr(32+2*k,2)}, {vr(128+4*k,2)}, {vr(130+4*k,2)}")
for i in range(8, 64): a(f"v_pk_add_f32 {vr(32+2*(i%4),2)}, {vr(32+2*(i%4),2)}, {vr(128+2*i,2)}")
a("v_pk_add_f32 v[32:33], v[32:33], v[34:35]\nv_pk_add_f32 v[36:37], v[36:37], v[38:39]\nv_pk_add_f32 v[32:33], v[32:33], v[36:37]\nv_add_f32 v32, v32, v33")
xgroup_sum(32, 33)
a(f"v_mul_f32 v32, {fbits(-1.0/512)}, v32")
for i in range(64): a(f"v_pk_add_f32 {vr(128+2*i,2)}, {vr(128+2*i,2)}, v[32:33] op_sel_hi:[1,0]")
for k in range(4): a(f"v_pk_mul_f32 {vr(34+2*k,2)}, {vr(128+2*k,2)}, {vr(128+2*k,2)}")
for i in range(4, 64): a(f"v_pk_fma_f32 {vr(34+2*(i%4),2)}, {vr(128+2*i,2)}, {vr(128+2*i,2)}, {vr(34+2*(i%4),2)}")
a("v_pk_add_f32 v[34:35], v[34:35], v[36:37]\nv_pk_add_f32 v[38:39], v[38:39], v[40:41]\nv_pk_add_f32 v[34:35], v[34:35], v[38:39]\nv_add_f32 v34, v34, v35")
xgroup_sum(34, 35)
a(f"v_mov_b32 v35, {fbits(1e-5)}\nv_fmac_f32 v35, {fbits(1.0/512)}, v34\nv_rsq_f32 v34, v35")
for i in range(64): a(f"v_pk_mul_f32 {vr(128+2*i,2)}, {vr(128+2*i,2)}, v[34:35] op_sel_hi:[1,0]")
stamp("ln1")
Lna = a.label("noA")
a(f"s_cmp_eq_u32 {sW}, 2\ns_cbranch_scc0 {Lna}")
srd(R1, P_DBG, 256)
a("v_lshlrev_b32 v5, 7, v0")
poll(f"buffer_load_dword v4, v5, {R1}, 0 offen sc1", "v_cmp_gt_u32 vcc, 64, v4", "3")
for n in range(8):
    a(f"s_mov_b32 m0, {L_PAR + n*1024}\ns_mov_b32 s3, {WS_MOD + (n if n < 4 else n + 2)*1024}\nbuffer_load_dwordx4 v3, {WS}, s3 offen sc1 lds")
a(f"{Lna}:\ns_waitcnt vmcnt(0)\ns_barrier")
stamp("barP")
a(f"v_lshlrev_b32 v19, 5, v2\nv_add_u32 v19, {L_PAR}, v19")
def rd(T):
    b = 32 + (T & 1) * 16
    for k, off in enumerate((2048, 2064, 0, 16)): a(f"ds_read_b128 {vr(b+4*k,4)}, v19 offset:{off + T*128}")
def cp(T):
    b = 32 + (T & 1) * 16
    for k in range(4): a(f"v_pk_fma_f32 {vr(128+8*T+2*k,2)}, {vr(128+8*T+2*k,2)}, {vr(b+2*k,2)}, {vr(b+8+2*k,2)}")
    for k in range(4): a(f"v_cvt_pk_bf16_f32 v{64+4*T+k}, v{128+8*T+2*k}, v{129+8*T+2*k}")
pipeline(16, rd, cp, 4)
stamp("h")
Lnkv, LV, Lst = a.label("nokv"), a.label("isV"), a.label("kvst")
a(f"s_cmp_eq_u32 {sW}, {sKVW}\ns_cbranch_scc0 {Lnkv}")
a(f"""
v_add_u32 v19, {L_WKV}, v17
s_lshl_b32 s64, {sRB}, 1
s_lshr_b32 s3, {sW}, 1
s_add_u32 s64, s64, s3
s_mul_i32 s64, s64, {REC}
s_add_u32 s64, s64, {WS_KV}
s_and_b32 s65, {sW}, 1
v_lshrrev_b32 v20, 5, v0
s_bitcmp1_b32 {sCB}, 0
s_cbranch_scc1 {LV}
""")
def kvchain(isV):
    def rd(T):
        b = 128 + (T % 4) * 4
        a(f"ds_read_b64_tr_b16 {vr(b,2)}, v19 offset:{T*1024}\nds_read_b64_tr_b16 {vr(b+2,2)}, v19 offset:{T*1024+256}")
    def cp(T):
        b = 128 + (T % 4) * 4
        A, B = (vr(64+4*T,4), vr(b,4)) if isV else (vr(b,4), vr(64+4*T,4))
        a(f"v_mfma_f32_16x16x32_bf16 v[32:35], {A}, {B}, {'0' if T == 0 else 'v[32:35]'}")
    pipeline(16, rd, cp, 2, pre=3)
    a("""
v_cvt_pk_bf16_f32 v36, v32, v33
v_cvt_pk_bf16_f32 v37, v34, v35
v_mov_b32 v38, v36
v_mov_b32 v39, v37
v_permlane16_swap_b32 v36, v38
v_permlane16_swap_b32 v37, v39
""")
kvchain(False)
a(f"""
v_lshlrev_b32 v20, 9, v20
v_lshl_add_u32 v20, v1, 4, v20
s_lshl_b32 s65, s65, 8
s_add_u32 s64, s64, s65
s_add_u32 s64, s64, 1088
s_mov_b32 exec_lo, 0x0000ffff
s_mov_b32 exec_hi, 0x0000ffff
s_branch {Lst}
{LV}:
""")
kvchain(True)
a(f"""
v_mul_u32_u24 v20, 272, v20
v_and_b32 v4, 31, v0
v_lshl_add_u32 v20, v4, 4, v20
s_mul_i32 s65, s65, 544
s_add_u32 s64, s64, s65
s_mov_b32 exec_lo, 0xffff0000
s_mov_b32 exec_hi, 0xffff0000
v_mov_b32 v36, 0x3f803f80
v_mov_b32 v37, 0x3f803f80
v_mov_b32 v38, 0x3f803f80
v_mov_b32 v39, 0x3f803f80
s_mov_b32 exec_lo, 0x0001ffff
s_mov_b32 exec_hi, 0x0001ffff
{Lst}:
buffer_store_dwordx4 v[36:39], v20, {WS}, s64 offen sc1
s_mov_b64 exec, 1
s_lshl_b32 s3, {sXCC}, 2
s_lshl_b32 s3, 1, s3
v_mov_b32 v4, s3
s_lshl_b32 s3, {sRB}, 7
s_add_u32 s3, s3, {F_B}
v_mov_b32 v5, s3
s_waitcnt vmcnt(0)
buffer_atomic_add v4, v5, {WS}, 0 offen sc1
s_mov_b64 exec, -1
{Lnkv}:
""")
stamp("kv")
def trbase128(dst, rowexpr_v, fexpr_v, lbase):
    a(f"v_and_b32 v6, 3, v1\nv_lshlrev_b32 v6, 3, v6\nv_lshl_add_u32 v6, v{rowexpr_v}, 7, v6\nv_lshl_add_u32 v6, v{fexpr_v}, 5, v6\nv_add_u32 v{dst}, {lbase}, v6")
    for j in range(1, 4): a(f"v_xor_b32 v{dst+j}, {j*32}, v{dst}")
a("v_lshrrev_b32 v4, 2, v1\nv_bfe_u32 v5, v1, 3, 1\nv_and_b32 v7, 1, v2\nv_lshl_or_b32 v5, v7, 1, v5\nv_lshl_add_u32 v4, v2, 3, v4")
trbase128(24, 4, 5, L_WQ)
def rd(T):
    b = 32 + (T & 1) * 16
    for j in range(4):
        a(f"ds_read_b64_tr_b16 {vr(b+4*j,2)}, v{24+j} offset:{T*4096}\nds_read_b64_tr_b16 {vr(b+4*j+2,2)}, v{24+j} offset:{T*4096+512}")
def cp(T):
    b = 32 + (T & 1) * 16
    for j in range(4): a(f"v_mfma_f32_16x16x32_bf16 {vr(128+4*j,4)}, {vr(b+4*j,4)}, {vr(64+4*T,4)}, {'0' if T == 0 else vr(128+4*j,4)}")
pipeline(16, rd, cp, 8)
for i in range(16): a(f"v_mul_f32 v{128+i}, {fbits(0.25*math.log2(math.e))}, v{128+i}")
for i in range(8): a(f"v_cvt_pk_bf16_f32 v{16+i}, v{128+2*i}, v{129+2*i}")
for e in range(2): a(f"v_permlane16_swap_b32 v{16+4*e}, v{18+4*e}\nv_permlane16_swap_b32 v{17+4*e}, v{19+4*e}")
stamp("q")
Lnc = a.label("noc12")
a(f"""
s_add_u32 s3, {sKVW}, 2
s_and_b32 s3, s3, 3
s_cmp_eq_u32 {sW}, s3
s_cbranch_scc0 {Lnc}
s_cmp_lt_u32 {sIDX}, 14
s_cbranch_scc0 {Lnc}
v_lshlrev_b32 v4, 5, v0
v_add_u32 v4, {L_PAR + 4096}, v4
ds_read_b128 v[32:35], v4 offset:2048
ds_read_b128 v[36:39], v4 offset:2064
ds_read_b128 v[40:43], v4
ds_read_b128 v[44:47], v4 offset:16
v_lshrrev_b32 v4, 2, v1
v_and_b32 v5, 1, v2
v_lshl_add_u32 v4, v5, 2, v4
v_lshrrev_b32 v5, 1, v2
v_lshl_add_u32 v4, v5, 4, v4
v_lshlrev_b32 v4, 5, v4
v_and_b32 v5, 3, v1
v_lshl_add_u32 v28, v5, 3, v4
s_waitcnt lgkmcnt(0)
""")
for i in range(8): a(f"v_cvt_pk_bf16_f32 v{48+i}, v{32+2*i}, v{33+2*i}")
a(f"""
v_add_u32 v4, {L_OP2}, v3
ds_write_b128 v4, v[48:51]
ds_write_b128 v4, v[52:55] offset:1024
v_and_b32 v4, 1, v0
v_lshlrev_b32 v4, 10, v4
v_lshl_add_u32 v29, v2, 4, v4
v_add_u32 v29, {L_OP2}, v29
s_waitcnt lgkmcnt(0)
""")
def rd(T):
    b = 128 + (T % 4) * 8
    a(f"ds_read_b64_tr_b16 {vr(b,2)}, v28 offset:{L_G1 + T*1024}\nds_read_b64_tr_b16 {vr(b+2,2)}, v28 offset:{L_G1 + T*1024+256}")
    a(f"ds_read_b128 {vr(b+4,4)}, v29 offset:{T*64}")
def cp(T):
    b = 128 + (T % 4) * 8
    a(f"v_mfma_f32_16x16x32_bf16 v[32:35], {vr(b,4)}, {vr(b+4,4)}, {'0' if T == 0 else 'v[32:35]'}")
pipeline(16, rd, cp, 3, pre=3)
a(f"""
s_mul_i32 s64, {sXCD}, 14
s_add_u32 s64, s64, {sIDX}
s_lshl_b32 s64, s64, 6
s_add_u32 s64, s64, {WS_C12}
v_mul_u32_u24 v4, 7168, v1
v_lshl_add_u32 v4, v2, 4, v4
s_mov_b32 exec_lo, 0x00030003
s_mov_b32 exec_hi, 0x00030003
buffer_store_dwordx4 v[32:35], v4, {WS}, s64 offen sc1
s_mov_b64 exec, 1
s_lshl_b32 s3, {sXCD}, 7
s_add_u32 s3, s3, {F_A3}
v_mov_b32 v4, 1
v_mov_b32 v5, s3
s_waitcnt vmcnt(0)
buffer_atomic_add v4, v5, {WS}, 0 offen sc1
s_mov_b64 exec, -1
{Lnc}:
""")
Lnb = a.label("noB")
a(f"s_cmp_eq_u32 {sW}, {sKVW}\ns_cbranch_scc0 {Lnb}\nv_lshlrev_b32 v5, 7, v0\ns_mov_b32 s64, {F_B}")
poll(f"buffer_load_dword v4, v5, {WS}, s64 offen sc1",
     "v_lshrrev_b32 v6, 4, v4\nv_and_b32 v6, 0x0f0f0f0f, v6\nv_and_b32 v4, 0x0f0f0f0f, v4\nv_add_u32 v4, v4, v6\nv_sad_u8 v4, v4, 0, 0\nv_cmp_gt_u32 vcc, 8, v4",
     "0xffffffff")
a(f"{Lnb}:\ns_waitcnt vmcnt(0) lgkmcnt(0)\ns_barrier")
stamp("barB")
vm.n = 0
a(f"s_lshl_b32 s3, {sRB}, 7\ns_add_u32 s3, s3, {F_B}\nv_mov_b32 v5, s3")
vm.op(f"buffer_load_dword v254, v5, {WS}, 0 offen sc1")
a(f"s_lshl_b32 s64, {sW}, 10\ns_add_u32 s65, s64, {L_KV}\ns_add_u32 s64, s64, {WS_KV}")
for n in range(33):
    a("s_mov_b32 m0, s65")
    vm.op(f"buffer_load_dwordx4 v3, {WS}, s64 offen sc1 lds", f"kv{n+1}")
    if n < 32: a("s_add_u32 s64, s64, 4096\ns_add_u32 s65, s65, 4096")
a(f"""
v_add_u32 v24, {L_KV + 1088}, v3
v_add_u32 v25, {31*REC}, v24
v_add_u32 v26, {31*REC}, v25
v_lshrrev_b32 v4, 5, v0
v_mul_u32_u24 v4, 272, v4
v_and_b32 v5, 31, v0
v_lshl_add_u32 v4, v5, 4, v4
v_add_u32 v27, {L_KV}, v4
v_add_u32 v28, {31*REC}, v27
v_add_u32 v29, {31*REC}, v28
v_mov_b32 v30, 0xdddd
v_lshlrev_b32 v31, 12, v1
v_lshl_add_u32 v31, v2, 4, v31
""")
a("v_and_b32 v7, 1, v0\nv_lshlrev_b32 v7, 4, v7")
def img128_voff2(dst, fmask):
    a(f"""
v_lshrrev_b32 v4, 3, v0
v_bfe_u32 v5, v0, 1, 2
v_bfe_u32 v6, v4, 1, {fmask}
v_xor_b32 v5, v5, v6
v_lshlrev_b32 v5, 5, v5
v_lshl_add_u32 v5, v4, 10, v5
v_add_u32 v{dst}, v5, v7
""")
img128_voff2(247, 1)
a(f"s_and_b32 s3, {sW}, 2\ns_lshl_b32 s3, s3, 5\nv_xor_b32 v247, s3, v247")
a("s_movk_i32 s3, 4682\ns_movk_i32 s66, 3584")
for i in range(7):
    a(f"""
v_add_u32 v4, {64*i}, v0
v_mul_u32_u24 v5, s3, v4
v_lshrrev_b32 v5, 16, v5
v_mul_u32_u24 v6, 14, v5
v_sub_u32 v4, v4, v6
v_lshlrev_b32 v4, 4, v4
v_mad_u32_u24 v{240+i}, v5, s66, v4
""")
for i in range(32): a(f"v_mov_b32 v{80+i}, 0")
a(f"s_lshl_b32 s64, {sRB}, 18\ns_lshl_b32 s3, {sW}, 10\ns_add_u32 s64, s64, s3")
srd(R0, P_WSP, 2048 * 4096, "s64")
a(f"s_lshl_b32 s64, {sCB}, 7")
srd(R1, P_WO, 512 * 1024, "s64")
srd(R3, P_WOUT, 896 * 1024, "s64")
a(f"s_mul_i32 s64, {sCB}, 224")
srd(R2, P_WIN, 512 * 3584, "s64")
for s in range(4): a(f"s_add_u32 s3, {sW}, {s}\ns_and_b32 s3, s3, 3\ns_lshl_b32 s{70+s}, s3, 16")

def win_dma(i, half, grp, m0expr):
    out = []
    if i == 0:
        out.append(f"s_mul_i32 s74, {sW}, 114688\ns_add_u32 s74, s74, {grp*4*114688 + half*1792}\n{m0expr}")
    out.append(f"s_add_u32 m0, s75, {i*1024}")
    return out, f"buffer_load_dwordx4 v{240+i}, {R2}, s74 offen lds"
def lin_slot(base): return f"s_mul_i32 s75, {sW}, {SLOT}\ns_add_u32 s75, s75, {base}"

def kaddr(t): return f"v{24 + t//31} offset:{(t % 31)*REC}"
def vaddr(t, m): return f"v{27 + t//31} offset:{(t % 31)*REC + m*544}"
Kb = lambda t: vr(144 + 4*(t & 1), 4)
Vb = lambda t, m: vr(152 + 8*(t & 1) + 4*m, 4)
Sb = lambda u: 32 + 16*(u % 3)
Q = lambda e: vr(16 + 4*e, 4)
O = lambda e: 80 + 16*e
C = lambda e: 112 + 16*e
vm.wait("kv2"); a("s_barrier")
stamp("kv0")
a(f"ds_read_b128 {Kb(0)}, {kaddr(0)}\nds_read_b128 {Kb(1)}, {kaddr(1)}\ns_waitcnt lgkmcnt(1)")
for e in range(2): a(f"v_mfma_f32_32x32x16_bf16 {vr(32+16*e,16)}, {Kb(0)}, {Q(e)}, 0")
def rowmax(S, dst, first):
    for i in range(0, 16, 2):
        if first and i == 0: a(f"v_max_f32 v{dst}, v{S}, v{S+1}")
        else: a(f"v_max3_f32 v{dst}, v{S+i}, v{S+i+1}, v{dst}")
def negbcast(src, e):
    a(f"v_mov_b32 v6, v{src}\nv_permlane32_swap_b32 v{src}, v6\nv_max_f32 v{src}, v{src}, v6\nv_sub_f32 v{C(e)}, 0, v{src}")
    for i in range(1, 16): a(f"v_mov_b32 v{C(e)+i}, v{C(e)}")
for e in range(2): rowmax(32 + 16*e, 4 + e, True)
for e in range(2): negbcast(4 + e, e)
a(f"v_mfma_f32_32x32x16_bf16 {vr(Sb(0),16)}, {Kb(0)}, {Q(0)}, {vr(C(0),16)}")

extra = {t: [] for t in range(64)}
wsp = [(T, s) for T in range(16) for s in range(4)]
k = 0
for t in range(19, 64):
    n = 2 if (t >= 35 and t < 46) or (t >= 53 and t < 60) else 1
    if t in (60, 61, 62, 63): n = 0
    for _ in range(n):
        if k < 64:
            T, s = wsp[k]; k += 1
            extra[t].append(([], f"buffer_load_dwordx4 {ar((T*4+s)*4,4)}, v31, {R0}, s{70+s} offen offset:{T*64}", None))
rest_wsp = wsp[k:]
for n in range(16):
    pre = [f"s_lshl_b32 s76, {sW}, 13\ns_lshl_b32 s77, {sW}, 10"] if n == 0 else ["s_add_u32 s76, s76, 32768\ns_add_u32 s77, s77, 4096"]
    extra[19 + n*14//16].append((pre + ["s_mov_b32 m0, s77"], f"buffer_load_dwordx4 v247, {R1}, s76 offen lds", "wo"))
for grp, t0 in ((0, 33), (1, 46), (2, 60)):
    for i in range(7):
        pre, ins = win_dma(i, 1, grp, lin_slot(slotA(4*grp)))
        extra[t0 + (i if grp < 2 else i//2)].append((pre, ins, f"z2g{grp}"))
assert len(rest_wsp) <= 8, len(rest_wsp)
for n, (T, s) in enumerate(rest_wsp):
    extra[3 + n].append(([], f"buffer_load_dwordx4 {ar((T*4+s)*4,4)}, v31, {R0}, s{70+s} offen offset:{T*64}", None))
syncs = {3: "kv10", 19: "kv33", 33: "wo", 46: "z2g0", 60: "z2g1"}
def emit_extra(x):
    for p in x[0]: a(p)
    vm.op(x[1], x[2])
for u in range(128):
    t, e = u >> 1, u & 1
    S = Sb(u)
    ex = [f"v_exp_f32 v{S+i}, v{S+i}" for i in range(16)]
    xs = dict(zip(["e0", "q1", "p1"][3 - len(extra[t]):], extra[t]))
    if u + 1 < 128:
        t1, e1 = (u + 1) >> 1, (u + 1) & 1
        a(f"v_mfma_f32_32x32x16_bf16 {vr(Sb(u+1),16)}, {Kb(t1)}, {Q(e1)}, {vr(C(e1),16)}")
    a("s_waitcnt lgkmcnt(0)")
    if e == 1 and t + 2 in syncs:
        vm.wait(syncs[t + 2]); a("s_barrier")
    if e == 0 and "e0" in xs: emit_extra(xs["e0"])
    if e == 1 and "q1" in xs: emit_extra(xs["q1"])
    for x in ex[0:3]: a(x)
    Sp, tp, ep = Sb(u - 1), (u - 1) >> 1, (u - 1) & 1
    if u > 0: a(f"v_smfmac_f32_32x32x32_bf16 {vr(O(ep),16)}, {Vb(tp,0)}, {vr(Sp,8)}, v30")
    if e == 0: a(f"ds_read_b128 {Vb(t,0)}, {vaddr(t,0)}")
    elif "p1" in xs: emit_extra(xs["p1"])
    for x in ex[3:7]: a(x)
    if u > 0: a(f"v_smfmac_f32_32x32x32_bf16 {vr(O(ep),16)}, {Vb(tp,1)}, {vr(Sp+8,8)}, v30")
    if e == 0: a(f"ds_read_b128 {Vb(t,1)}, {vaddr(t,1)}")
    elif t + 2 < 64: a(f"ds_read_b128 {Kb(t+2)}, {kaddr(t+2)}")
    assert len(extra[t]) <= 3
    for x in ex[7:16]: a(x)
for m in range(2): a(f"v_smfmac_f32_32x32x32_bf16 {vr(O(1),16)}, {Vb(63,m)}, {vr(Sb(127)+8*m,8)}, v30")
stamp("attn")
a(f"s_lshl_b32 s3, {sXCC}, 2\ns_lshl_b32 s3, 8, s3\nv_readfirstlane_b32 s64, v254\ns_cmp_eq_u32 s64, s3\ns_cselect_b32 {sFAST}, {0 if FORCE_SLOW else 1}, 0")
Lfb, Lok = a.label("fb"), a.label("ok")
def getl():
    for e in range(2):
        a(f"v_mov_b32 v{4+e}, v{O(e)+8}\nv_mov_b32 v6, v{O(e)+8}\nv_permlane32_swap_b32 v{4+e}, v6")
getl()
a(f"v_add_f32 v7, v4, v5\nv_mov_b32 v6, {fbits(2.0**40 if not FORCE_FB else -1.0)}\nv_cmp_nlt_f32 vcc, v7, v6\ns_cbranch_vccnz {Lfb}\n{Lok}:")
for e in range(2): a(f"v_rcp_f32 v{4+e}, v{4+e}")
for e in range(2):
    for i in range(8): a(f"v_mul_f32 v{O(e)+i}, v{O(e)+i}, v{4+e}")
    for i in range(4): a(f"v_cvt_pk_bf16_f32 v{32+4*e+i}, v{O(e)+2*i}, v{O(e)+2*i+1}")
a(f"s_lshl_b32 s64, {sCB}, 11\ns_add_u32 s64, s64, s55\ns_add_u32 s65, s64, {WS_O}")
def pubo(sc):
    for e in range(2): vm.op(f"buffer_store_dwordx4 {vr(32+4*e,4)}, v3, {WS}, s65 offen offset:{e*1024}{sc}")
    hop_signal(1)(sc)
both(pubo)
stamp("opub")
a("v_lshrrev_b32 v4, 2, v1\nv_bfe_u32 v5, v1, 3, 1\nv_and_b32 v7, 1, v2\nv_lshl_or_b32 v5, v7, 1, v5\nv_lshl_add_u32 v4, v7, 4, v4\nv_lshrrev_b32 v7, 1, v2\nv_lshl_add_u32 v4, v7, 2, v4")
trbase128(24, 4, 5, L_WO)
a("v_lshlrev_b32 v31, 4, v2")
def rd3(T):
    b = 144 + (T & 1) * 16
    for j in range(4):
        a(f"ds_read_b64_tr_b16 {vr(b+4*j,2)}, v{24+j} offset:{T*4096}\nds_read_b64_tr_b16 {vr(b+4*j+2,2)}, v{24+j} offset:{T*4096+1024}")
a(f"""
v_lshlrev_b32 v5, 2, v0
v_add_u32 v5, {sGRP}, v5
v_mov_b32 v7, 1
s_mov_b64 exec, 0xff00
v_lshlrev_b32 v5, 7, v0
v_add_u32 v5, {F_A3 - 8*128}, v5
v_mov_b32 v7, 14
""")
poll(f"buffer_load_dword v4, v5, {WS}, 0 offen sc1", "v_cmp_gt_u32 vcc, v7, v4", "0xffff")
stamp("C")
def load_frags(base, n, dst, tag):
    a(f"s_add_u32 s64, {base[0]}, {base[1]}")
    for T in range(n):
        vm.op(f"buffer_load_dwordx4 {vr(dst+4*T,4)}, v3, {WS}, s64 offen offset:{(T & 3)*1024} sc1", f"{tag}{T}")
        if T & 3 == 3 and T < n - 1: a("s_add_u32 s64, s64, 4096")
load_frags(("s55", WS_O), 16, 64, "o")
a(f"s_lshl_b32 s64, {sCB}, 8\ns_add_u32 s64, s64, {WS_MOD + 2*2048}\ns_add_u32 s65, s64, {2*2048}")
for j in range(4): vm.op(f"buffer_load_dwordx4 {vr(32+4*j,4)}, v31, {WS}, s64 offen offset:{j*64} sc1")
for j in range(4): vm.op(f"buffer_load_dwordx4 {vr(48+4*j,4)}, v31, {WS}, s65 offen offset:{j*64} sc1", "par3")
a(f"s_mul_i32 s64, {sCB}, 448\ns_add_u32 s64, s64, {WS_C12}\ns_add_u32 s65, s64, 7168\ns_add_u32 s66, s64, 3584\ns_add_u32 s67, s65, 3584\nv_lshlrev_b32 v6, 2, v1")
CP = [232, 234, 236, 238, 248, 250, 252]
for j in range(7):
    vm.op(f"buffer_load_dword v{CP[j]}, v6, {WS}, s66 offen offset:{j*64} sc1")
    vm.op(f"buffer_load_dword v{CP[j]+1}, v6, {WS}, s67 offen offset:{j*64} sc1")
for j in range(7):
    vm.op(f"buffer_load_dwordx4 {vr(176+4*j,4)}, v31, {WS}, s64 offen offset:{j*64} sc1")
    vm.op(f"buffer_load_dwordx4 {vr(204+4*j,4)}, v31, {WS}, s65 offen offset:{j*64} sc1", "c12")
def cp3(T):
    b = 144 + (T & 1) * 16
    vm.wait(f"o{T}")
    for j in range(4): a(f"v_mfma_f32_16x16x32_bf16 {vr(128+4*j,4)}, {vr(b+4*j,4)}, {vr(64+4*T,4)}, {'0' if T == 0 else vr(128+4*j,4)}")
pipeline(16, rd3, cp3, 8)
a("s_barrier")
vm.wait("par3")
for i in range(8): a(f"v_lshlrev_b32 v{64+2*i}, 16, v{8+i}\nv_and_b32 v{65+2*i}, 0xffff0000, v{8+i}")
for i in range(8): a(f"v_pk_fma_f32 {vr(64+2*i,2)}, {vr(128+2*i,2)}, {vr(32+2*i,2)}, {vr(64+2*i,2)}")
for i in range(8): a(f"v_cvt_pk_bf16_f32 v{8+i}, v{64+2*i}, v{65+2*i}")
for i in range(8): a(f"v_lshlrev_b32 v{64+2*i}, 16, v{8+i}\nv_and_b32 v{65+2*i}, 0xffff0000, v{8+i}")
for i in range(8): a(f"v_pk_mul_f32 {vr(48+2*i,2)}, {vr(48+2*i,2)}, {vr(64+2*i,2)}")
for i in range(8): a(f"v_cvt_pk_bf16_f32 v{80+i}, v{48+2*i}, v{49+2*i}")
a("v_pk_mul_f32 v[88:89], v[64:65], v[64:65]\nv_pk_add_f32 v[90:91], v[64:65], v[66:67]")
for i in range(1, 8): a(f"v_pk_fma_f32 v[88:89], {vr(64+2*i,2)}, {vr(64+2*i,2)}, v[88:89]")
for i in range(2, 8): a(f"v_pk_add_f32 v[90:91], v[90:91], {vr(64+2*i,2)}")
a("v_add_f32 v93, v88, v89\nv_add_f32 v92, v90, v91")
xgroup_sum(92, 94); xgroup_sum(93, 95)
a(f"""
s_lshl_b32 s64, {sCB}, 11
s_add_u32 s64, s64, s55
s_add_u32 s65, s64, {WS_Y}
s_lshl_b32 s68, {sGRP}, 3
s_lshl_b32 s3, {sCB}, 7
s_add_u32 s69, s68, s3
s_add_u32 s67, s69, {WS_ST1}
v_lshlrev_b32 v6, 3, v1
""")
def puby(sc):
    for p in range(2): vm.op(f"buffer_store_dwordx4 {vr(80+4*p,4)}, v3, {WS}, s65 offen offset:{p*1024}{sc}")
    a("s_mov_b64 exec, 0xffff")
    vm.op(f"buffer_store_dwordx2 v[92:93], v6, {WS}, s67 offen{sc}")
    a("s_mov_b64 exec, -1")
    hop_signal(2)(sc)
both(puby)
stamp("ypub")
a("v_lshrrev_b32 v4, 2, v1\nv_lshl_add_u32 v4, v2, 2, v4\nv_mul_u32_u24 v4, 224, v4\nv_and_b32 v5, 3, v1\nv_lshl_add_u32 v24, v5, 3, v4\nv_add_u32 v25, 0xe000, v24\nv_add_u32 v26, 0xe000, v25")
WB = (32, 204)
def rd4(slot, b):
    w_, off = divmod(slot, 0xe000)
    for j in range(7):
        a(f"ds_read_b64_tr_b16 {vr(b+4*j,2)}, v{24+w_} offset:{off + j*32}\nds_read_b64_tr_b16 {vr(b+4*j+2,2)}, v{24+w_} offset:{off + j*32 + 3584}")
a("""
v_and_b32 v4, 7, v1
v_lshlrev_b32 v4, 7, v4
v_lshl_add_u32 v30, v2, 5, v4
v_lshlrev_b32 v4, 8, v2
v_lshl_add_u32 v27, v1, 3, v4
""")
hop_wait(2)
stamp("D")
a(f"s_add_u32 s66, s68, {WS_ST1}")
vm.op(f"buffer_load_dwordx4 v[164:167], v30, {WS}, s66 offen sc1")
vm.op(f"buffer_load_dwordx4 v[168:171], v30, {WS}, s66 offen offset:16 sc1")
vm.op(f"buffer_load_dwordx2 v[172:173], v27, {WS}, s66 offen sc1")
vm.op(f"buffer_load_dwordx2 v[174:175], v27, {WS}, s66 offen offset:128 sc1", "st1")
load_frags(("s55", WS_Y), 16, 64, "y")
def dma_group(half, grp, m0expr, tag):
    for i in range(7):
        pre, ins = win_dma(i, half, grp, m0expr)
        for p in pre: a(p)
        vm.op(ins, tag)
dma_group(1, 3, f"s_mul_i32 s75, {sW}, {SLOT}\ns_sub_u32 s75, s75, {SLOT}\ns_cmp_eq_u32 {sW}, 0\ns_cselect_b32 s75, {slotA(12)}, s75", "z2g3")
dma_group(0, 0, lin_slot(slotB(3)), "z1g0")
rd4(slot_z2(0), WB[0])
vm.wait("st1")
def dppsum(regs, steps):
    for s in steps:
        for r in regs: a(f"v_add_f32_dpp v{r}, v{r}, v{r} row_ror:{s} row_mask:0xf bank_mask:0xf")
def finish_stats(rows, n):
    for s1, s2, mu, r, sd in rows: a(f"v_mul_f32 v{mu}, {fbits(-1.0/n)}, v{s1}\nv_mul_f32 v{s2}, {fbits(1.0/n)}, v{s2}")
    for s1, s2, mu, r, sd in rows: a(f"v_fma_f32 v{s2}, -v{mu}, v{mu}, v{s2}")
    for s1, s2, mu, r, sd in rows: a(f"v_max_f32 v{s2}, 0, v{s2}")
    for s1, s2, mu, r, sd in rows: a(f"v_add_f32 v{s2}, {fbits(1e-5)}, v{s2}")
    for s1, s2, mu, r, sd in rows: a(f"v_rsq_f32 v{r}, v{s2}")
    for s1, s2, mu, r, sd in rows:
        if sd is not None: a(f"v_mul_f32 v{sd}, v{s2}, v{r}")
dppsum(range(164, 172), (4, 2, 1))
a("v_pk_add_f32 v[172:173], v[172:173], v[174:175]")
xgroup_sum(172, 174); xgroup_sum(173, 175)
finish_stats([(164+2*i, 165+2*i, 16+i, 20+i, 156+i) for i in range(4)] + [(172, 173, 160, 28, 162)], 512)
for j in range(7):
    for h in range(2):
        d = 128 + 4*j + 2*h
        a(f"v_pk_mul_f32 {vr(d,2)}, {vr(16+2*h,2)}, {vr(CP[j],2)} op_sel_hi:[1,0]")
        a(f"v_pk_fma_f32 {vr(d,2)}, {vr(156+2*h,2)}, {vr(CP[j],2)}, {vr(d,2)} op_sel:[0,1,0] op_sel_hi:[1,1,1]")
for i in range(14):
    a(f"v_pk_mul_f32 {vr(176+2*i,2)}, {vr(176+2*i,2)}, v[160:161] op_sel_hi:[1,0]")
    a(f"v_pk_fma_f32 {vr(176+2*i,2)}, {vr(204+2*i,2)}, v[162:163], {vr(176+2*i,2)} op_sel_hi:[1,0,1]")
for T in range(16):
    if T == 11:
        vm.wait("z2g3"); a("s_waitcnt lgkmcnt(0)\ns_barrier")
    if T < 15: rd4(slot_z2(T + 1), WB[(T + 1) & 1])
    a(f"s_waitcnt lgkmcnt({14 if T < 15 else 0})")
    vm.wait(f"y{T}")
    b = WB[T & 1]
    for j in range(7):
        a(f"v_mfma_f32_16x16x32_bf16 {vr(128+4*j,4)}, {vr(64+4*T,4)}, {vr(b+4*j,4)}, {vr(128+4*j,4)}")
        if 11 <= T <= 13:
            pre, ins = win_dma(j, 0, T - 10, lin_slot(slotA(4*(T - 11))))
            for p in pre: a(p)
            vm.op(ins, "z1g")
stamp("z2mm")
a(f"s_mov_b32 s64, {fbits(-2*math.log2(math.e)*math.sqrt(2/math.pi)*0.044715)}\ns_mov_b32 s65, s64\ns_mov_b32 s66, 1.0\ns_mov_b32 s67, 1.0")
a(f"v_mov_b32 v60, {fbits(-2*math.log2(math.e)*math.sqrt(2/math.pi))}\nv_mov_b32 v61, v60")
def gelu(acc, scale, tmp):
    P = range(14)
    for i in P: a(f"v_pk_mul_f32 {vr(acc+2*i,2)}, {vr(acc+2*i,2)}, {scale(i)}")
    for i in P: a(f"v_pk_mul_f32 {vr(tmp+2*i,2)}, {vr(acc+2*i,2)}, {vr(acc+2*i,2)}")
    for i in P: a(f"v_pk_fma_f32 {vr(tmp+2*i,2)}, {vr(tmp+2*i,2)}, s[64:65], v[60:61]")
    for i in P: a(f"v_pk_mul_f32 {vr(tmp+2*i,2)}, {vr(tmp+2*i,2)}, {vr(acc+2*i,2)}")
    for i in range(28): a(f"v_exp_f32 v{tmp+i}, v{tmp+i}")
    for i in P: a(f"v_pk_add_f32 {vr(tmp+2*i,2)}, {vr(tmp+2*i,2)}, s[66:67]")
    for i in range(28): a(f"v_rcp_f32 v{tmp+i}, v{tmp+i}")
    for i in P: a(f"v_pk_mul_f32 {vr(acc+2*i,2)}, {vr(acc+2*i,2)}, {vr(tmp+2*i,2)}")
gelu(128, lambda i: vr(20 + 2*(i & 1), 2), 32)
for h in range(2):
    a(f"v_pk_add_f32 {vr(156+2*h,2)}, {vr(128+2*h,2)}, {vr(132+2*h,2)}\nv_pk_mul_f32 {vr(160+2*h,2)}, {vr(128+2*h,2)}, {vr(128+2*h,2)}")
for j in range(1, 7):
    for h in range(2):
        if j > 1: a(f"v_pk_add_f32 {vr(156+2*h,2)}, {vr(156+2*h,2)}, {vr(128+4*j+2*h,2)}")
        a(f"v_pk_fma_f32 {vr(160+2*h,2)}, {vr(128+4*j+2*h,2)}, {vr(128+4*j+2*h,2)}, {vr(160+2*h,2)}")
dppsum(range(156, 164), (8, 4, 2, 1))
a(f"s_add_u32 s3, s69, {WS_ST2}\ns_mov_b32 s74, s3\nv_lshlrev_b32 v6, 5, v2")
def pubs(sc):
    a("s_mov_b32 exec_lo, 0x00010001\ns_mov_b32 exec_hi, 0x00010001")
    vm.op(f"buffer_store_dwordx4 v[156:159], v6, {WS}, s74 offen{sc}")
    vm.op(f"buffer_store_dwordx4 v[160:163], v6, {WS}, s74 offen offset:16{sc}")
    a("s_mov_b64 exec, -1")
    hop_signal(3)(sc)
both(pubs)
a("s_barrier")
stamp("spub")
pipeline(16, lambda T: rd4(slot_z1(T), WB[T & 1]),
         lambda T: [a(f"v_mfma_f32_16x16x32_bf16 {vr(176+4*j,4)}, {vr(WB[T & 1]+4*j,4)}, {vr(64+4*T,4)}, {vr(176+4*j,4)}") for j in range(7)], 14)
a("s_barrier")
stamp("z1mm")
a("v_and_b32 v7, 1, v0\nv_lshlrev_b32 v7, 4, v7")
img128_voff2(247, 2)
def wout_dma(n0, n1, tag):
    a(f"s_lshl_b32 s76, {sW}, 13\ns_add_u32 s76, s76, {n0*32768}\ns_lshl_b32 s77, {sW}, 10\ns_add_u32 s77, s77, {L_WOUT + n0*4096}")
    for n in range(n0, n1):
        a("s_mov_b32 m0, s77")
        vm.op(f"buffer_load_dwordx4 v247, {R3}, s76 offen lds", tag)
        if n < n1 - 1: a("s_add_u32 s76, s76, 32768\ns_add_u32 s77, s77, 4096")
gelu(176, lambda i: "v[28:29] op_sel_hi:[1,0]", 32)
for i in range(14): a(f"v_cvt_pk_bf16_f32 v{240+i if i < 7 else 241+i}, v{176+2*i}, v{177+2*i}")
Z1P = [240+i if i < 7 else 241+i for i in range(14)]
hop_wait(3)
stamp("S")
a(f"s_add_u32 s66, s68, {WS_ST2}")
vm.op(f"buffer_load_dwordx4 v[164:167], v30, {WS}, s66 offen sc1")
vm.op(f"buffer_load_dwordx4 v[168:171], v30, {WS}, s66 offen offset:16 sc1", "st2")
srd(R1, P_BSP, 4096)
a(f"s_lshr_b32 s3, s55, 9\nv_lshlrev_b32 v4, 1, v1")
vm.op(f"buffer_load_ushort v16, v4, {R1}, s3 offen", "bsp")
vm.wait("st2")
dppsum(range(164, 172), (4, 2, 1))
finish_stats([(164+i, 168+i, 156+i, 160+i, None) for i in range(4)], 896)
for h in range(2): a(f"v_pk_mul_f32 {vr(156+2*h,2)}, {vr(156+2*h,2)}, {vr(160+2*h,2)}")
for i in range(14): a(f"v_pk_fma_f32 {vr(128+2*i,2)}, {vr(128+2*i,2)}, {vr(160+2*(i & 1),2)}, {vr(156+2*(i & 1),2)}")
for i in range(14): a(f"v_cvt_pk_bf16_f32 v{32+i}, v{128+2*i}, v{129+2*i}")
a("v_mov_b32 v46, v44\nv_mov_b32 v47, v45")
for p in range(4): a(f"v_permlane16_swap_b32 v{32+4*p}, v{34+4*p}\nv_permlane16_swap_b32 v{33+4*p}, v{35+4*p}")
a(f"""
s_lshl_b32 s64, {sCB}, 6
s_lshl_b32 s3, {sRB}, 1
s_add_u32 s64, s64, s3
s_lshr_b32 s3, {sW}, 1
s_add_u32 s64, s64, s3
s_mul_i32 s64, s64, 7168
s_and_b32 s3, {sW}, 1
s_lshl_b32 s3, s3, 9
s_add_u32 s64, s64, s3
s_add_u32 s64, s64, {WS_Z2}
s_add_u32 s65, s64, 4096
v_and_b32 v4, 1, v2
v_lshlrev_b32 v4, 10, v4
v_lshrrev_b32 v5, 1, v2
v_lshl_add_u32 v4, v5, 8, v4
v_lshl_add_u32 v6, v1, 4, v4
""")
vm.op(f"buffer_store_dwordx4 v[32:35], v6, {WS}, s64 offen sc1")
vm.op(f"buffer_store_dwordx4 v[36:39], v6, {WS}, s64 offen offset:2048 sc1")
vm.op(f"buffer_store_dwordx4 v[40:43], v6, {WS}, s65 offen sc1")
a("s_mov_b32 exec_lo, 0x0000ffff\ns_mov_b32 exec_hi, 0x0000ffff")
vm.op(f"buffer_store_dwordx4 v[44:47], v6, {WS}, s65 offen offset:2048 sc1")
a(f"""
s_mov_b64 exec, 1
s_lshl_b32 s64, {sRB}, 3
s_add_u32 s64, s64, {sCB}
s_lshl_b32 s64, s64, 7
s_lshl_b32 s3, {sW}, 2
s_add_u32 s64, s64, s3
s_add_u32 s64, s64, {F_E}
v_mov_b32 v4, 1
v_mov_b32 v5, s64
s_waitcnt vmcnt(0)
""")
vm.op(f"buffer_store_dword v4, v5, {WS}, 0 offen sc1")
a("s_mov_b64 exec, -1")
stamp("zpub")
a(f"s_lshl_b32 s64, {sW}, 13\ns_lshl_b32 s3, {sCB}, 7\ns_add_u32 s64, s64, s3\ns_add_u32 s64, s64, {F_E}\nv_lshlrev_b32 v6, 10, v0")
poll(f"buffer_load_dwordx4 v[32:35], v6, {WS}, s64 offen sc1", "v_min_u32 v32, v32, v33\nv_min3_u32 v32, v32, v34, v35\nv_cmp_gt_u32 vcc, 1, v32", "0xff")
stamp("E")
a(f"s_lshl_b32 s64, {sCB}, 2\ns_add_u32 s64, s64, {sW}\ns_mul_i32 s64, s64, {16*7168}\ns_add_u32 s64, s64, {WS_Z2}\ns_add_u32 s65, s64, 4096")
ZB = lambda T: 32 + 28*(T % 3)
def ldz(T):
    for j in range(7):
        vm.op(f"buffer_load_dwordx4 {vr(ZB(T)+4*j,4)}, v3, {WS}, s{64 + (j >> 2)} offen offset:{(j & 3)*1024} sc1", f"z{T}_{j}")
    if T < 15: a("s_add_u32 s64, s64, 7168\ns_add_u32 s65, s65, 7168")
ldz(0); ldz(1)
nwo = 0
for T in range(16):
    if T + 2 < 16: ldz(T + 2)
    for j in range(7):
        vm.wait(f"z{T}_{j}")
        for s in range(4):
            d = vr(128 + (s*7 + j)*4, 4)
            a(f"v_mfma_f32_16x16x32_bf16 {d}, {vr(ZB(T)+4*j,4)}, {ar((T*4+s)*4,4)}, {'0' if T == 0 else d}")
    if T == 13: wout_dma(0, 19, "wout0")
stamp("p5mm")
for s in range(1, 4):
    a(f"s_add_u32 s3, {sW}, {s}\ns_and_b32 s3, s3, 3\ns_mul_i32 s3, s3, {21*1024}\ns_add_u32 s3, s3, {L_RED + (s-1)*7168}\nv_add_u32 v{16+s}, s3, v3")
a(f"s_mul_i32 s3, {sW}, {21*1024}\ns_add_u32 s3, s3, {L_RED}\nv_add_u32 v20, s3, v3")
for s in range(1, 4):
    for j in range(7): a(f"ds_write_b128 v{16+s}, {vr(128+(s*7+j)*4,4)} offset:{j*1024}")
a("v_lshlrev_b32 v16, 16, v16\ns_waitcnt lgkmcnt(0)\ns_barrier")
for k in range(21):
    a(f"ds_read_b128 {vr(32+4*k,4)}, v20 offset:{k*1024}")
    if k == 13: a("s_waitcnt lgkmcnt(7)\n" + "\n".join(f"v_pk_add_f32 {vr(128+2*i,2)}, {vr(128+2*i,2)}, {vr(32+2*i,2)}" for i in range(14)))
a("s_waitcnt lgkmcnt(7)")
for i in range(14): a(f"v_pk_add_f32 {vr(128+2*i,2)}, {vr(128+2*i,2)}, {vr(60+2*i,2)}")
a("s_waitcnt lgkmcnt(0)\ns_barrier")
for i in range(14): a(f"v_pk_add_f32 {vr(128+2*i,2)}, {vr(128+2*i,2)}, {vr(88+2*i,2)}")
for i in range(14): a(f"v_pk_add_f32 {vr(128+2*i,2)}, {vr(128+2*i,2)}, v[16:17] op_sel_hi:[1,0]")
for i in range(14): a(f"v_lshlrev_b32 v{32+2*i}, 16, v{Z1P[i]}\nv_and_b32 v{33+2*i}, 0xffff0000, v{Z1P[i]}")
for i in range(14): a(f"v_pk_mul_f32 {vr(128+2*i,2)}, {vr(128+2*i,2)}, {vr(32+2*i,2)}")
for i in range(14): a(f"v_cvt_pk_bf16_f32 v{32+i}, v{128+2*i}, v{129+2*i}")
a("v_mov_b32 v46, v44\nv_mov_b32 v47, v45\nv_permlane16_swap_b32 v44, v46\nv_permlane16_swap_b32 v45, v47")
a(f"""
s_lshr_b32 s68, s55, 14
s_mul_i32 s68, s68, {28*1024}
s_mul_i32 s64, {sCB}, 3072
s_add_u32 s64, s64, s68
s_add_u32 s64, s64, {WS_U}
s_lshr_b32 s65, {sCB}, 1
s_lshl_b32 s65, s65, 10
s_and_b32 s3, {sCB}, 1
s_lshl_b32 s3, s3, 9
s_add_u32 s65, s65, s3
s_add_u32 s65, s65, s68
s_add_u32 s65, s65, {WS_U + 24*1024}
v_lshrrev_b32 v6, 5, v0
v_lshlrev_b32 v6, 8, v6
v_lshl_add_u32 v6, v1, 4, v6
""")
def pubu(sc):
    for p in range(3): vm.op(f"buffer_store_dwordx4 {vr(32+4*p,4)}, v3, {WS}, s64 offen offset:{p*1024}{sc}")
    a("s_mov_b32 exec_lo, 0x0000ffff\ns_mov_b32 exec_hi, 0x0000ffff")
    vm.op(f"buffer_store_dwordx4 v[44:47], v6, {WS}, s65 offen{sc}")
    a("s_mov_b64 exec, -1")
    hop_signal(4)(sc)
both(pubu)
stamp("upub")
a("v_lshrrev_b32 v4, 2, v1\nv_lshl_add_u32 v4, v2, 2, v4\nv_bfe_u32 v5, v4, 1, 2")
trbase128(192, 4, 5, L_WOUT)
for j in range(4): a(f"v_add_u32 v{196+j}, 0xe000, v{192+j}")
for u_ in range(2):
    a(f"v_lshrrev_b32 v4, 1, v2\nv_mul_u32_u24 v4, 112, v4\nv_and_b32 v5, 1, v2\nv_lshl_add_u32 v4, v5, 3, v4\nv_lshrrev_b32 v5, 2, v1\nv_add_u32 v4, v4, v5\nv_lshrrev_b32 v5, 1, v5\nv_add_u32 v5, {2*u_}, v5")
    trbase128(200 + 8*u_, 4, 5, L_WOUT)
    for j in range(4): a(f"v_add_u32 v{204+8*u_+j}, 0xe000, v{200+8*u_+j}")
hop_wait(4)
stamp("F")
steps = []
for cbp in range(8):
    for p in range(3): steps.append((cbp*3 + p, 112*cbp + 32*p, False))
    if cbp & 1: steps.append((24 + (cbp >> 1), 224*(cbp >> 1) + 96, True))
a(f"s_add_u32 s64, s68, {WS_U}")
for n in range(1, 7): a(f"s_add_u32 s{64+n if n < 4 else 66+n}, s64, {4096*n}")
US = ["s64", "s65", "s66", "s67", "s70", "s71", "s72"]
for n, (st, row, mixed) in enumerate(steps):
    vm.op(f"buffer_load_dwordx4 {vr(32+4*n,4)}, v3, {WS}, {US[st >> 2]} offen offset:{(st & 3)*1024} sc1", f"u{n}")
wout_dma(19, 28, "wout1")
a(f"s_lshl_b32 s64, {sCB}, 8\ns_add_u32 s64, s64, {WS_MOD + 5*2048}")
for j in range(4): vm.op(f"buffer_load_dwordx4 {vr(216+4*j,4)}, v31, {WS}, s64 offen offset:{j*64} sc1", "gb")
def rd6(n):
    st, row, mixed = steps[n]
    b = 160 + (n & 1) * 16
    for j in range(4):
        for u_ in range(2):
            off = (row + (4*u_ if mixed else 16*u_)) * 128
            w_, off = divmod(off, 0xe000)
            base = (200 + 8*u_ if mixed else 192) + 4*w_ + j
            a(f"ds_read_b64_tr_b16 {vr(b+4*j+2*u_,2)}, v{base} offset:{off}")
first_late = min(n for n, (st, row, mixed) in enumerate(steps) if row + (128 if mixed else 32) > 608)
a("s_barrier")
rd6(0)
for n in range(28):
    if n + 1 == first_late:
        vm.wait("wout1"); a("s_barrier")
    if n < 27: rd6(n + 1)
    a(f"s_waitcnt lgkmcnt({8 if n < 27 else 0})")
    vm.wait(f"u{n}")
    b = 160 + (n & 1) * 16
    for j in range(4): a(f"v_mfma_f32_16x16x32_bf16 {vr(144+4*j,4)}, {vr(b+4*j,4)}, {vr(32+4*n,4)}, {'0' if n == 0 else vr(144+4*j,4)}")
vm.wait("gb")
for i in range(8): a(f"v_lshlrev_b32 v{32+2*i}, 16, v{8+i}\nv_and_b32 v{33+2*i}, 0xffff0000, v{8+i}")
for i in range(8): a(f"v_pk_fma_f32 {vr(32+2*i,2)}, {vr(144+2*i,2)}, {vr(216+2*i,2)}, {vr(32+2*i,2)}")
for i in range(8): a(f"v_cvt_pk_bf16_f32 v{48+i}, v{32+2*i}, v{33+2*i}")
for p in range(2): a(f"v_permlane16_swap_b32 v{48+4*p}, v{50+4*p}\nv_permlane16_swap_b32 v{49+4*p}, v{51+4*p}")
srd(R1, P_OUT, 2048 * 1024, "s55")
a(f"v_lshlrev_b32 v4, 10, v1\nv_and_b32 v5, 1, v2\nv_lshl_add_u32 v4, v5, 5, v4\nv_lshrrev_b32 v5, 1, v2\nv_lshl_add_u32 v4, v5, 4, v4\ns_lshl_b32 s3, {sCB}, 7")
for p in range(2): a(f"buffer_store_dwordx4 {vr(48+4*p,4)}, v4, {R1}, s3 offen offset:{p*64}")
if STAMPS:
    a("s_waitcnt vmcnt(0)")
    stamp("end")
    for i in range(22): a(f"v_writelane_b32 v32, s{80+i}, {i}")
    a(f"s_lshl_b32 s3, s2, 2\ns_add_u32 s3, s3, {sW}\ns_lshl_b32 s3, s3, 7\ns_add_u32 s3, s3, {WS_STAMP}\nv_lshlrev_b32 v4, 2, v0\ns_mov_b64 exec, 0xffffffff\nbuffer_store_dword v32, v4, {WS}, s3 offen")
a("s_endpgm")
a(f"{Lfb}:")
a(f"""
v_lshrrev_b32 v4, 5, v0
v_mul_u32_u24 v4, 272, v4
v_and_b32 v5, 31, v0
v_lshl_add_u32 v27, v5, 4, v4
v_mov_b32 v4, 0xff800000
v_mov_b32 v5, 0xff800000
s_mov_b32 s64, {WS_KV}
L_fb1:
buffer_load_dwordx4 {Kb(0)}, v3, {WS}, s64 offen offset:1088 sc1
s_waitcnt vmcnt(0)
""")
for e in range(2): a(f"v_mfma_f32_32x32x16_bf16 {vr(32+16*e,16)}, {Kb(0)}, {Q(e)}, 0")
for e in range(2): rowmax(32 + 16*e, 4 + e, False)
a(f"s_add_u32 s64, s64, {REC}\ns_cmp_lt_u32 s64, {WS_KV + 64*REC}\ns_cbranch_scc1 L_fb1")
for e in range(2): negbcast(4 + e, e)
for i in range(32): a(f"v_mov_b32 v{80+i}, 0")
a(f"""
s_mov_b32 s64, {WS_KV}
L_fb2:
buffer_load_dwordx4 {Kb(0)}, v3, {WS}, s64 offen offset:1088 sc1
buffer_load_dwordx4 {Vb(0,0)}, v27, {WS}, s64 offen sc1
buffer_load_dwordx4 {Vb(0,1)}, v27, {WS}, s64 offen offset:544 sc1
s_waitcnt vmcnt(0)
""")
for e in range(2): a(f"v_mfma_f32_32x32x16_bf16 {vr(32+16*e,16)}, {Kb(0)}, {Q(e)}, {vr(C(e),16)}")
for i in range(32): a(f"v_exp_f32 v{32+i}, v{32+i}")
for e in range(2):
    for m in range(2): a(f"v_smfmac_f32_32x32x32_bf16 {vr(O(e),16)}, {Vb(0,m)}, {vr(32+16*e+8*m,8)}, v30")
a(f"s_add_u32 s64, s64, {REC}\ns_cmp_lt_u32 s64, {WS_KV + 64*REC}\ns_cbranch_scc1 L_fb2")
getl()
a(f"s_branch {Lok}\nL_end:\ns_endpgm")

body = a.finish()
head = open("cdna_kernels/" + NAME + ".s.ref").read().split("; Override launch")[0]
src = head + f"""; One persistent launch: 256 workgroups (32 row blocks x 8 column blocks), 4 waves each; generated by gen/gen.py.
; @launch grid=(256,1,1) block=(256,1,1) lds={LDS_BYTES}
.amdgcn_target "amdgcn-amd-amdhsa--gfx950"
.text
.globl {NAME}_kernel
.p2align 8
.type {NAME}_kernel,@function
{NAME}_kernel:
{body}.section .rodata,"a"
.p2align 6
.amdhsa_kernel {NAME}_kernel
  .amdhsa_next_free_vgpr 512
  .amdhsa_next_free_sgpr 102
  .amdhsa_accum_offset 256
  .amdhsa_group_segment_fixed_size 0
  .amdhsa_kernarg_size 120
  .amdhsa_user_sgpr_count 2
  .amdhsa_user_sgpr_kernarg_segment_ptr 1
  .amdhsa_system_sgpr_workgroup_id_x 1
.end_amdhsa_kernel
"""
out = [x for x in sys.argv[1:] if not x.startswith("--")]
open(out[0] if out else "cdna_kernels/" + NAME + ".s", "w").write(src)
if STAMPS: open("stamps.txt", "w").write("\n".join(stamp_names))
print("instructions:", sum(1 for k, _ in a.items if k == "ins"), "hazard nops:", a.nops, file=sys.stderr)
```

```python
import sys, struct, math
from asmlib import Asm

NAME = "adaLN_cond__grouped_kv_mqa__mixer_gmlp__prompt"
STAMPS = "--stamps" in sys.argv or "--cyc" in sys.argv
CYC = "--cyc" in sys.argv
FORCE_SLOW = "--slow" in sys.argv
PADZERO = "--nopadzero" not in sys.argv
XP = [x[5:] for x in sys.argv if x.startswith("--xp=")]
FORCE_FB = "--fallback" in sys.argv

def fbits(x): return "0x%08x" % struct.unpack("<I", struct.pack("<f", x))[0]

F_HOP, F_B, F_A3, F_P, F_E = 0, 16384, 20480, 24576, 32768
WS_MOD, WS_MODT, WS_C12, WS_EPOCH, WS_KV = 0x30000, 0x33000, 0x36000, 0x3A000, 0x40000
WS_ST1, WS_ST2 = 0x70000, 0x90000
WS_O, WS_Y, WS_Z2, WS_U, WS_STAMP, WS_SIZE = 0x100000, 0x300000, 0x500000, 0x900000, 0xD00000, 0x1200000
WS_WOF, WS_WOUTF, WS_DUMMY, WS_WINF = 0xD80000, 0xE00000, 0xF00000, 0x1000000
REC = 2112
L_G1, L_OP2 = 0, 16384
L_KV = 28672
L_WQ, L_WKV, L_G0, L_SILU, L_PAR = 28672, 94208, 110592, 126976, 128000
L_RING, L_SM = 0, 158720
L_WO = 0
SLOT = 7168
def slotA(i): return 65536 + SLOT * i
def slotB(i): return SLOT * i
def slot_z2(T): return slotA(T) if T < 13 else slotB(T - 13)
def slot_z1(T): return slotB(3 + T) if T < 4 else slotA(T - 4)
L_WOUT, L_RED = 0, 77824
LDS_BYTES = 163840
R0, WS, R1, R2, R3 = "s[4:7]", "s[8:11]", "s[12:15]", "s[56:59]", "s[60:63]"
P_X, P_WQ, P_WK, P_WV, P_WO, P_WIN, P_WSP, P_BSP, P_WOUT, P_C, P_WMOD, P_OUT, P_DBG, P_WS = 16, 18, 20, 22, 24, 28, 30, 32, 34, 36, 38, 40, 42, 44
sRB, sCB, sW, sXCC, sFAST, sIDX, sXCD, sKVW, sGRP = "s46", "s47", "s48", "s49", "s50", "s51", "s52", "s53", "s54"
sEP, sTAG = "s42", "s43"
SPIN = 1 << 17
OOB = 0x7fff0000

a = Asm()
def vr(b, n): return f"v[{b}:{b+n-1}]"
def ar(b, n): return f"a[{b}:{b+n-1}]"

class VM:
    def __init__(s): s.n = 0; s.tags = {}
    def op(s, text, tag=None):
        a(text); s.n += 1
        if tag: s.tags[tag] = s.n
    def tag(s, t): s.tags[t] = s.n
    def wait(s, t):
        k = s.n - s.tags[t]
        if k < 63: a(f"s_waitcnt vmcnt({k})")
    def drain(s): a("s_waitcnt vmcnt(0)")
vm = VM()

def srd(q, ptr, size, off=None):
    b = int(q[2:q.index(":")])
    if off is None:
        a(f"s_mov_b32 s{b}, s{ptr}\ns_mov_b32 s{b+1}, s{ptr+1}\ns_mov_b32 s{b+2}, {size}")
    else:
        a(f"s_add_u32 s{b}, s{ptr}, {off}\ns_addc_u32 s{b+1}, s{ptr+1}, 0\ns_sub_u32 s{b+2}, {size}, {off}")
    a(f"s_mov_b32 s{b+3}, 0x20000")

nstamp = [0]
stamp_names = []
def stamp(name):
    if not STAMPS: return
    if "tst" in XP and name in ("xin", "ln1", "h", "kv", "q", "p3mm", "p3ep", "y_iss", "st1", "init", "u_iss", "S", "opub", "ypub", "spub"): return
    i = nstamp[0]; nstamp[0] += 1; stamp_names.append(name)
    if "clk" in XP and i >= 30: return
    assert i < 43
    a("s_memrealtime s[78:79]\ns_waitcnt lgkmcnt(0)" if not CYC else "s_memtime s[78:79]\ns_waitcnt lgkmcnt(0)\ns_lshr_b32 s78, s78, 2")
    if i == 0: a("s_mov_b32 s80, s78")
    elif i & 1: a(f"s_sub_u32 s{81 + i//2}, s78, s80")
    else: a(f"s_sub_u32 s78, s78, s80\ns_pack_ll_b32_b16 s{80 + i//2}, s{80 + i//2}, s78")

def poll(load, cond, mask):
    L, X = a.label("poll"), a.label("pollx")
    a(f"s_mov_b64 exec, {mask}\ns_mov_b32 s3, 0\n{L}:\ns_add_u32 s3, s3, 1\ns_cmp_gt_u32 s3, {SPIN}\ns_cbranch_scc1 {X}")
    a(load); a("s_waitcnt vmcnt(0)"); a(cond)
    a(f"s_cbranch_vccnz {L}\n{X}:\ns_mov_b64 exec, -1")

def both(fn):
    S, E = a.label("slow"), a.label("pub")
    n0 = vm.n
    a(f"s_cmp_eq_u32 {sFAST}, 0\ns_cbranch_scc1 {S}")
    fn(""); n1 = vm.n
    a(f"s_branch {E}\n{S}:"); vm.n = n0
    fn(" sc1"); assert vm.n == n1
    a(f"{E}:")

def hop_signal(phase, tag=None):
    a(f"v_mov_b32 v4, {phase}\ns_lshl_b32 s3, {sCB}, 2\ns_add_u32 s3, s3, {sGRP}\nv_mov_b32 v5, s3")
    if tag: vm.wait(tag)
    else: a("s_waitcnt vmcnt(0)")
    a("s_mov_b64 exec, 1")
    both(lambda sc: vm.op(f"buffer_store_dword v4, v5, {WS}, 0 offen{sc}"))
    a("s_mov_b64 exec, -1")

def hop_wait(phase):
    a("v_lshlrev_b32 v5, 2, v0")
    poll(f"buffer_load_dword v4, v5, {WS}, {sGRP} offen sc1", f"v_cmp_gt_u32 vcc, {phase}, v4", "0xff")

def xgroup_sum(v, t):
    a(f"v_mov_b32 v{t}, v{v}\nv_permlane32_swap_b32 v{v}, v{t}\nv_add_f32 v{v}, v{v}, v{t}")
    a(f"v_mov_b32 v{t}, v{v}\nv_permlane16_swap_b32 v{v}, v{t}\nv_add_f32 v{v}, v{v}, v{t}")

def pipeline(nsteps, reads, compute, nreads, pre=1):
    for T in range(min(pre, nsteps)): reads(T)
    for T in range(nsteps):
        if T + pre < nsteps: reads(T + pre)
        left = min(pre, nsteps - 1 - T) * nreads
        a(f"s_waitcnt lgkmcnt({min(left, 15)})")
        compute(T)

def fragloop(nsteps, nf, read, mfma, before=None, after=None, nper=1, preissued=False):
    if not preissued:
        for j in range(nf): read(0, j)
    for T in range(nsteps):
        if before: before(T)
        for j in range(nf):
            left = (nf - 1 if T + 1 < nsteps else nf - 1 - j) * nper
            a(f"s_waitcnt lgkmcnt({min(left, 15)})")
            mfma(T, j)
            if T + 1 < nsteps: read(T + 1, j)
            if after: after(T, j)

def dppsum(regs, steps):
    for s in steps:
        for r in regs: a(f"v_add_f32_dpp v{r}, v{r}, v{r} row_ror:{s} row_mask:0xf bank_mask:0xf")
def finish_stats(rows, n):
    for s1, s2, mu, r, sd in rows: a(f"v_mul_f32 v{mu}, {fbits(-1.0/n)}, v{s1}\nv_mul_f32 v{s2}, {fbits(1.0/n)}, v{s2}")
    for s1, s2, mu, r, sd in rows: a(f"v_fma_f32 v{s2}, -v{mu}, v{mu}, v{s2}")
    for s1, s2, mu, r, sd in rows: a(f"v_max_f32 v{s2}, 0, v{s2}")
    for s1, s2, mu, r, sd in rows: a(f"v_add_f32 v{s2}, {fbits(1e-5)}, v{s2}")
    for s1, s2, mu, r, sd in rows: a(f"v_rsq_f32 v{r}, v{s2}")
    for s1, s2, mu, r, sd in rows:
        if sd is not None: a(f"v_mul_f32 v{sd}, v{s2}, v{r}")

a(f"""
s_cmp_ge_u32 s2, 256
s_cbranch_scc1 L_end
s_load_dwordx16 s[16:31], s[0:1], 0
s_load_dwordx8 s[32:39], s[0:1], 64
s_load_dwordx4 s[40:43], s[0:1], 96
s_load_dwordx2 s[44:45], s[0:1], 112
v_lshrrev_b32 v4, 6, v0
v_and_b32 v0, 63, v0
v_readfirstlane_b32 {sW}, v4
v_and_b32 v1, 15, v0
v_lshrrev_b32 v2, 4, v0
v_lshlrev_b32 v3, 4, v0
s_and_b32 {sXCD}, s2, 7
s_lshr_b32 {sIDX}, s2, 3
s_and_b32 {sCB}, {sIDX}, 7
s_lshr_b32 s3, {sIDX}, 3
s_lshl_b32 {sRB}, {sXCD}, 2
s_add_u32 {sRB}, {sRB}, s3
s_lshr_b32 {sKVW}, {sCB}, 1
s_getreg_b32 {sXCC}, hwreg(HW_REG_XCC_ID, 0, 4)
s_and_b32 {sXCC}, {sXCC}, 7
s_lshl_b32 {sGRP}, {sRB}, 2
s_add_u32 {sGRP}, {sGRP}, {sW}
s_lshl_b32 s55, {sGRP}, 14
s_lshl_b32 {sGRP}, {sGRP}, 7
""")
a(f"""
v_lshrrev_b32 v4, 1, v0
v_and_b32 v5, 19, v4
v_bfe_u32 v6, v4, 2, 1
v_lshl_or_b32 v5, v6, 3, v5
v_bfe_u32 v6, v4, 3, 1
v_lshl_or_b32 v16, v6, 2, v5
v_lshrrev_b32 v4, 2, v1
v_and_b32 v5, 1, v2
v_lshl_add_u32 v4, v5, 2, v4
v_lshrrev_b32 v5, 1, v2
v_lshl_add_u32 v4, v5, 4, v4
v_lshlrev_b32 v4, 5, v4
v_and_b32 v5, 3, v1
v_lshl_add_u32 v17, v5, 3, v4
v_and_b32 v18, 1, v0
v_lshlrev_b32 v18, 4, v18
s_waitcnt lgkmcnt(0)
""")
stamp("start")
srd(WS, P_WS, hex(WS_SIZE))
a(f"s_load_dword {sEP}, s[{P_WS}:{P_WS+1}], {WS_EPOCH}")

def gemv_chain(lbase, trb, opaddr):
    a(f"v_add_u32 v7, {lbase}, v{trb}")
    def rd(T):
        b = 128 + (T % 4) * 8
        a(f"ds_read_b64_tr_b16 {vr(b,2)}, v7 offset:{T*1024}\nds_read_b64_tr_b16 {vr(b+2,2)}, v7 offset:{T*1024+256}")
        a(f"ds_read_b128 {vr(b+4,4)}, v{opaddr} offset:{T*64}")
    def cp(T):
        b = 128 + (T % 4) * 8
        a(f"v_mfma_f32_16x16x32_bf16 v[32:35], {vr(b,4)}, {vr(b+4,4)}, {'0' if T == 0 else 'v[32:35]'}")
    pipeline(16, rd, cp, 3, pre=3)

def round_bf16(regs):
    for i in range(0, len(regs), 2):
        x, y = regs[i], regs[i+1]
        a(f"v_cvt_pk_bf16_f32 v{y}, v{x}, v{y}\nv_lshlrev_b32 v{x}, 16, v{y}\nv_and_b32 v{y}, 0xffff0000, v{y}")

def mod_issue(creg):
    srd(R0, P_C, 1024)
    a(f"buffer_load_dwordx4 {vr(creg,4)}, v3, {R0}, 0 offen\ns_lshl_b32 s66, s68, 5\ns_movk_i32 s3, 6144\nv_mad_u32_u24 v6, v16, s3, v18")
    for n in range(16):
        a(f"s_mov_b32 m0, {L_G0 + n*1024}\nbuffer_load_dwordx4 v6, {R2}, s66 offen lds")
        if n < 15: a("s_add_u32 s66, s66, 196608")
def mod_silu(creg):
    for i in range(4): a(f"v_lshlrev_b32 v{40+2*i}, 16, v{creg+i}\nv_and_b32 v{41+2*i}, 0xffff0000, v{creg+i}")
    for i in range(8): a(f"v_mul_f32 v{48+i}, {fbits(-math.log2(math.e))}, v{40+i}")
    for i in range(8): a(f"v_exp_f32 v{48+i}, v{48+i}")
    for i in range(8): a(f"v_add_f32 v{48+i}, 1.0, v{48+i}")
    for i in range(8): a(f"v_rcp_f32 v{48+i}, v{48+i}")
    for i in range(8): a(f"v_mul_f32 v{40+i}, v{40+i}, v{48+i}")
    for i in range(4): a(f"v_cvt_pk_bf16_f32 v{32+i}, v{40+2*i}, v{41+2*i}")
    a(f"v_add_u32 v6, {L_SILU}, v3\nds_write_b128 v6, v[32:35]\nv_lshlrev_b32 v5, 4, v2\nv_add_u32 v6, {L_SILU}, v5")

Lw1, Lw2, Lw3, Lxi, Lxw, Lnz = (a.label(x) for x in ("w1", "w2", "w3", "xi", "xw", "noz"))
srd(R1, P_X, 2048 * 1024, "s55")
srd(R2, P_WMOD, 512 * 6144)
a(f"s_and_b32 s3, {sCB}, 1\ns_cselect_b32 s64, s{P_WV}, s{P_WK}\ns_cselect_b32 s65, s{P_WV+1}, s{P_WK+1}")
srd(R3, 64, 16384)
a(f"""
v_lshrrev_b32 v4, 3, v0
v_and_b32 v5, 7, v0
v_xor_b32 v5, v5, v2
v_lshlrev_b32 v5, 4, v5
v_lshl_add_u32 v22, v4, 10, v5
v_xor_b32 v23, 64, v22
v_add_u32 v23, {8192 - 1024}, v23
s_lshl_b32 s67, {sW}, 14
s_add_u32 s67, s67, {L_WQ}
v_lshrrev_b32 v4, 2, v0
v_and_b32 v5, 3, v0
s_cmp_eq_u32 {sW}, 1
s_cbranch_scc1 {Lw1}
s_cmp_eq_u32 {sW}, 2
s_cbranch_scc1 {Lw2}
s_cmp_eq_u32 {sW}, 3
s_cbranch_scc1 {Lw3}
""")
def xstage():
    for T2 in range(8):
        a(f"s_add_u32 m0, s67, {T2*2048}\ns_movk_i32 s3, {T2*128}\nbuffer_load_dwordx4 v22, {R1}, s3 offen lds\nbuffer_load_dwordx4 v23, {R1}, s3 offen offset:1024 lds")
a(f"""
v_and_b32 v6, 1, v5
v_lshlrev_b32 v6, 7, v6
v_lshrrev_b32 v5, 1, v5
v_mul_u32_u24 v5, 3072, v5
s_movk_i32 s3, 6144
v_mad_u32_u24 v4, v4, s3, v6
v_add_u32 v4, v4, v5
s_mul_i32 s64, {sIDX}, {16*6144}
s_lshl_b32 s3, {sXCD}, 8
s_add_u32 s64, s64, s3
buffer_load_dword v24, v4, {R2}, s64 offen
s_cmp_lt_u32 {sIDX}, 16
s_cbranch_scc0 {Lxi}
s_lshl_b32 s68, {sXCD}, 3
s_add_u32 s68, s68, {sIDX}
s_add_u32 s65, s68, 88
s_cmp_lt_u32 {sIDX}, 8
s_cselect_b32 s68, s68, s65
""")
mod_issue(32)
a(f"""
s_cmp_lt_u32 {sIDX}, 8
s_cbranch_scc0 {Lnz}
v_mov_b32 v36, 0
v_mov_b32 v37, 0
v_mov_b32 v38, 0
v_mov_b32 v39, 0
s_mul_i32 s3, s68, 3072
buffer_store_dwordx4 v[36:39], v3, {WS}, s3 offen sc1
buffer_store_dwordx4 v[36:39], v3, {WS}, s3 offen offset:1024 sc1
buffer_store_dwordx4 v[36:39], v3, {WS}, s3 offen offset:2048 sc1
{Lnz}:
""")
xstage()
a("s_waitcnt vmcnt(32)")
mod_silu(32)
a("s_waitcnt vmcnt(16) lgkmcnt(0)")
gemv_chain(L_G0, 17, 6)
round_bf16([32, 33, 34, 35])
Lno1 = a.label("no1")
a(f"s_lshr_b32 s65, s68, 5\ns_bitcmp1_b32 0x12, s65\ns_cbranch_scc0 {Lno1}")
for i in range(4): a(f"v_add_f32 v{32+i}, 1.0, v{32+i}")
round_bf16([32, 33, 34, 35])
a(f"""
{Lno1}:
s_lshl_b32 s3, s68, 6
s_add_u32 s3, s3, {WS_MOD}
s_mov_b32 exec_lo, 0x00010001
s_mov_b32 exec_hi, 0x00010001
s_add_u32 s65, {sEP}, 1
s_and_b32 s65, s65, 0xffff
v_or_b32 v36, s65, v32
v_or_b32 v37, s65, v33
v_or_b32 v38, s65, v34
v_or_b32 v39, s65, v35
s_add_u32 s65, s3, {WS_MODT - WS_MOD}
buffer_store_dwordx4 v[36:39], v5, {WS}, s65 offen sc1
buffer_store_dwordx4 v[32:35], v5, {WS}, s3 offen sc1
s_mov_b64 exec, -1
s_waitcnt vmcnt(2)
s_branch {Lxw}
{Lw1}:
""")
a(f"s_lshl_b32 s64, {sRB}, 16\ns_lshl_b32 s3, {sCB}, 13\ns_add_u32 s64, s64, s3")
srd(R0, P_X, 2048 * 1024)
a(f"v_lshlrev_b32 v4, 7, v0\nbuffer_load_dword v24, v4, {R0}, s64 offen\ns_branch {Lxi}\n{Lw2}:")
a(f"s_lshr_b32 s3, {sIDX}, 1\ns_lshl_b32 s3, s3, 10\nv_and_b32 v4, 7, v0\nv_lshlrev_b32 v4, 7, v4\nbuffer_load_dword v24, v4, {R3}, s3 offen\ns_branch {Lxi}\n{Lw3}:")
a(f"""
s_getpc_b64 s[64:65]
L_pc:
s_lshl_b32 s3, {sIDX}, 4
v_add_u32 v6, s3, v1
v_lshlrev_b32 v6, 7, v6
v_min_u32 v6, L_end-L_pc-4, v6
v_mov_b32 v7, s65
v_add_co_u32 v6, vcc, s64, v6
v_addc_co_u32 v7, vcc, 0, v7, vcc
s_mov_b64 exec, 0xffff
global_load_dword v24, v[6:7], off
s_mov_b64 exec, -1
{Lxi}:
""")
xstage()
a(f"s_waitcnt vmcnt(0)\n{Lxw}:")
stamp("xin")
a(f"""
v_lshrrev_b32 v4, 1, v1
v_xor_b32 v4, v4, v2
v_lshlrev_b32 v4, 4, v4
v_lshl_add_u32 v4, v1, 7, v4
v_add_u32 v4, s67, v4
v_xor_b32 v5, 64, v4
s_waitcnt lgkmcnt(0)
s_add_u32 {sEP}, {sEP}, 1
s_and_b32 {sTAG}, {sEP}, 0xffff
""")
for T in range(16): a(f"ds_read_b128 {vr(64+4*T,4)}, v{4 + (T & 1)} offset:{(T >> 1)*2048}")
a(f"s_lshl_b32 s66, {sCB}, 7")
srd(R0, P_WQ, 512 * 1024, "s66")
srd(R1, P_WIN, 512 * 3584)
a(f"""
v_lshrrev_b32 v4, 3, v0
v_bfe_u32 v5, v0, 1, 2
v_bfe_u32 v6, v4, 1, 1
v_xor_b32 v5, v5, v6
v_lshlrev_b32 v5, 5, v5
v_lshl_add_u32 v5, v4, 10, v5
v_add_u32 v19, v5, v18
v_xor_b32 v20, 64, v19
v_lshl_add_u32 v21, v16, 5, v18
s_lshl_b32 s66, {sW}, 17
""")
def stage(k):
    if k >= 4:
        for n in range(4):
            a(f"s_mov_b32 m0, s67\ns_add_u32 s67, s67, 1024\nbuffer_load_dwordx4 v{19 + (n & 1)}, {R0}, s66 offen lds\ns_add_u32 s66, s66, 8192")
        return
    L1, L2, Le = a.label("st1"), a.label("st2"), a.label("ste")
    a(f"s_cmp_eq_u32 {sW}, 1\ns_cbranch_scc0 {L1 if k == 0 else Le}")
    for n in range(4*k, 4*k + 4): a(f"s_mov_b32 m0, {L_WKV + n*1024}\ns_mov_b32 s3, {n*1024}\nbuffer_load_dwordx4 v21, {R3}, s3 offen lds")
    if k == 0:
        a(f"""
s_branch {Le}
{L1}:
s_cmp_eq_u32 {sW}, 2
s_cbranch_scc0 {L2}
s_and_b32 s3, {sRB}, 3
s_lshl_b32 s3, s3, 17
v_lshlrev_b32 v4, 10, v0
buffer_load_dword v25, v4, {R0}, s3 offen
s_add_u32 s3, s3, 65536
buffer_load_dword v26, v4, {R0}, s3 offen
s_branch {Le}
{L2}:
s_cmp_eq_u32 {sW}, 3
s_cbranch_scc0 {Le}
v_lshrrev_b32 v4, 2, v0
v_and_b32 v5, 3, v0
v_lshlrev_b32 v6, 7, v5
s_movk_i32 s3, 3584
v_mad_u32_u24 v6, v4, s3, v6
s_mul_i32 s64, {sXCD}, 448
s_andn2_b32 s64, s64, 127
s_mul_i32 s3, {sIDX}, {16*3584}
s_add_u32 s64, s64, s3
buffer_load_dword v26, v6, {R1}, s64 offen
v_lshrrev_b32 v6, 1, v5
v_mul_u32_u24 v6, 3072, v6
s_movk_i32 s3, 6144
v_mad_u32_u24 v6, v4, s3, v6
s_mul_i32 s64, {sIDX}, {16*6144}
s_lshl_b32 s3, {sXCD}, 7
s_add_u32 s64, s64, s3
s_add_u32 s64, s64, 2048
buffer_load_dword v25, v6, {R2}, s64 offen
""")
    a(f"{Le}:")
for i in range(64):
    if i % 4 == 0: a(f"s_waitcnt lgkmcnt({15 - i // 4})")
    a(f"v_lshlrev_b32 v{128+2*i}, 16, v{64+i}\nv_and_b32 v{129+2*i}, 0xffff0000, v{64+i}")
    if i % 16 == 15: stage(i // 16)
for k in range(4): a(f"v_pk_add_f32 {vr(32+2*k,2)}, {vr(128+4*k,2)}, {vr(130+4*k,2)}")
for k in range(4): a(f"v_pk_mul_f32 {vr(40+2*k,2)}, {vr(128+2*k,2)}, {vr(128+2*k,2)}")
for i in range(4, 64):
    if i >= 8: a(f"v_pk_add_f32 {vr(32+2*(i%4),2)}, {vr(32+2*(i%4),2)}, {vr(128+2*i,2)}")
    a(f"v_pk_fma_f32 {vr(40+2*(i%4),2)}, {vr(128+2*i,2)}, {vr(128+2*i,2)}, {vr(40+2*(i%4),2)}")
    if i % 16 == 15: stage(4 + i // 16)
for b in (32, 40):
    a(f"v_pk_add_f32 {vr(b,2)}, {vr(b,2)}, {vr(b+2,2)}\nv_pk_add_f32 {vr(b+4,2)}, {vr(b+4,2)}, {vr(b+6,2)}\nv_pk_add_f32 {vr(b,2)}, {vr(b,2)}, {vr(b+4,2)}\nv_add_f32 v{b}, v{b}, v{b+1}")
xgroup_sum(32, 33); xgroup_sum(40, 41)
finish_stats([(32, 40, 34, 36, None)], 512)
a("v_mul_f32 v34, v34, v36")
for i in range(64): a(f"v_pk_fma_f32 {vr(128+2*i,2)}, {vr(128+2*i,2)}, v[36:37], v[34:35] op_sel_hi:[1,0,0]")
stamp("ln1")
def tagcheck(regs):
    out = [f"v_xor_b32 v{r}, {sTAG}, v{r}" for r in regs]
    out.append(f"v_or3_b32 v4, v{regs[0]}, v{regs[1]}, v{regs[2]}")
    for i in range(3, len(regs) - 1, 2): out.append(f"v_or3_b32 v4, v4, v{regs[i]}, v{regs[i+1]}")
    out.append(f"v_or_b32 v4, v4, v{regs[-1]}\nv_and_b32 v4, 0xffff, v4\nv_cmp_ne_u32 vcc, 0, v4")
    return "\n".join(out)
a(f"s_lshl_b32 s64, {sW}, 10\ns_add_u32 s65, s64, {L_PAR}\ns_add_u32 s64, s64, {WS_MODT}\nv_add_u32 v5, s65, v3")
poll(f"buffer_load_dwordx4 v[32:35], v3, {WS}, s64 offen sc1", tagcheck([32, 33, 34, 35]), "-1")
a("ds_write_b128 v5, v[32:35]\ns_waitcnt lgkmcnt(0)\ns_barrier")
stamp("barP")
LnM, LnC = a.label("nM"), a.label("nC")
a(f"""
s_sub_u32 s69, {sW}, {sKVW}
s_and_b32 s69, s69, 3
s_and_b32 s3, {sIDX}, 24
s_cmp_eq_u32 s3, 16
s_cselect_b32 s70, 1, 9
s_cmp_lt_u32 {sIDX}, 14
s_cselect_b32 s71, 2, 9
s_cmp_eq_u32 s69, s70
s_cbranch_scc0 {LnM}
s_lshl_b32 s68, {sXCD}, 2
s_add_u32 s68, s68, {sIDX}
s_add_u32 s65, s68, 140
s_add_u32 s68, s68, 48
s_cmp_lt_u32 {sIDX}, 20
s_cselect_b32 s68, s68, s65
""")
mod_issue(8)
a(f"{LnM}:\ns_cmp_eq_u32 s69, s71\ns_cbranch_scc0 {LnC}\ns_mul_i32 s66, {sXCD}, 14\ns_add_u32 s66, s66, {sIDX}\ns_lshl_b32 s66, s66, 5\ns_movk_i32 s3, 3584\nv_mad_u32_u24 v6, v16, s3, v18")
for n in range(16):
    a(f"s_mov_b32 m0, {L_G1 + n*1024}\nbuffer_load_dwordx4 v6, {R1}, s66 offen lds")
    if n < 15: a("s_add_u32 s66, s66, 114688")
a(f"{LnC}:\nv_mov_b32 v28, v17")
a(f"v_lshlrev_b32 v19, 5, v2\nv_add_u32 v19, {L_PAR}, v19")
def rd(T):
    b = 32 + (T & 1) * 16
    for k, off in enumerate((2048, 2064, 0, 16)): a(f"ds_read_b128 {vr(b+4*k,4)}, v19 offset:{off + T*128}")
def cp(T):
    b = 32 + (T & 1) * 16
    for k in range(4): a(f"v_pk_fma_f32 {vr(128+8*T+2*k,2)}, {vr(128+8*T+2*k,2)}, {vr(b+2*k,2)}, {vr(b+8+2*k,2)}")
    for k in range(4): a(f"v_cvt_pk_bf16_f32 v{64+4*T+k}, v{128+8*T+2*k}, v{129+8*T+2*k}")
pipeline(16, rd, cp, 4)
stamp("h")
Lnkv, LV, Lst, Lkve = a.label("nokv"), a.label("isV"), a.label("kvst"), a.label("kve")
a(f"s_cmp_eq_u32 {sW}, {sKVW}\ns_cbranch_scc0 {Lnkv}")
a(f"""
v_add_u32 v19, {L_WKV}, v17
s_lshl_b32 s64, {sRB}, 1
s_lshr_b32 s3, {sW}, 1
s_add_u32 s64, s64, s3
s_mul_i32 s64, s64, {REC}
s_add_u32 s64, s64, {WS_KV}
s_and_b32 s65, {sW}, 1
v_lshrrev_b32 v20, 5, v0
s_bitcmp1_b32 {sCB}, 0
s_cbranch_scc1 {LV}
""")
def kvchain(isV):
    def rd(T):
        b = 128 + (T % 4) * 4
        a(f"ds_read_b64_tr_b16 {vr(b,2)}, v19 offset:{T*1024}\nds_read_b64_tr_b16 {vr(b+2,2)}, v19 offset:{T*1024+256}")
    def cp(T):
        b = 128 + (T % 4) * 4
        A, B = (vr(64+4*T,4), vr(b,4)) if isV else (vr(b,4), vr(64+4*T,4))
        a(f"v_mfma_f32_16x16x32_bf16 v[32:35], {A}, {B}, {'0' if T == 0 else 'v[32:35]'}")
    pipeline(16, rd, cp, 2, pre=3)
    a("""
v_cvt_pk_bf16_f32 v36, v32, v33
v_cvt_pk_bf16_f32 v37, v34, v35
v_mov_b32 v38, v36
v_mov_b32 v39, v37
v_permlane16_swap_b32 v36, v38
v_permlane16_swap_b32 v37, v39
""")
kvchain(False)
a(f"""
v_lshlrev_b32 v20, 9, v20
v_lshl_add_u32 v20, v1, 4, v20
s_lshl_b32 s65, s65, 8
s_add_u32 s64, s64, s65
s_add_u32 s64, s64, 1088
s_mov_b32 exec_lo, 0x0000ffff
s_mov_b32 exec_hi, 0x0000ffff
s_branch {Lst}
{LV}:
""")
kvchain(True)
a(f"""
v_mul_u32_u24 v20, 272, v20
v_and_b32 v4, 31, v0
v_lshl_add_u32 v20, v4, 4, v20
s_mul_i32 s65, s65, 544
s_add_u32 s64, s64, s65
s_mov_b32 exec_lo, 0xffff0000
s_mov_b32 exec_hi, 0xffff0000
v_mov_b32 v36, 0x3f803f80
v_mov_b32 v37, 0x3f803f80
v_mov_b32 v38, 0x3f803f80
v_mov_b32 v39, 0x3f803f80
s_mov_b32 exec_lo, 0x0001ffff
s_mov_b32 exec_hi, 0x0001ffff
{Lst}:
buffer_store_dwordx4 v[36:39], v20, {WS}, s64 offen sc1
s_mov_b64 exec, 1
s_lshl_b32 s3, {sXCC}, 2
s_lshl_b32 s3, 1, s3
v_mov_b32 v4, s3
s_lshl_b32 s3, {sRB}, 7
s_add_u32 s3, s3, {F_B}
v_mov_b32 v5, s3
s_waitcnt vmcnt(0)
buffer_atomic_add v4, v5, {WS}, 0 offen sc1
s_mov_b64 exec, -1
s_branch {Lkve}
{Lnkv}:
""")
a(f"{Lkve}:")
stamp("kv")
def trbase128(dst, rowexpr_v, fexpr_v, lbase):
    a(f"v_and_b32 v6, 3, v1\nv_lshlrev_b32 v6, 3, v6\nv_lshl_add_u32 v6, v{rowexpr_v}, 7, v6\nv_lshl_add_u32 v6, v{fexpr_v}, 5, v6\nv_add_u32 v{dst}, {lbase}, v6")
    for j in range(1, 4): a(f"v_xor_b32 v{dst+j}, {j*32}, v{dst}")
a("v_lshrrev_b32 v4, 2, v1\nv_bfe_u32 v5, v1, 3, 1\nv_and_b32 v7, 1, v2\nv_lshl_or_b32 v5, v7, 1, v5\nv_lshl_add_u32 v4, v2, 3, v4")
trbase128(24, 4, 5, L_WQ)
fragloop(16, 4,
         lambda T, j: a(f"ds_read_b64_tr_b16 {vr(32+(T&1)*16+4*j,2)}, v{24+j} offset:{T*4096}\nds_read_b64_tr_b16 {vr(34+(T&1)*16+4*j,2)}, v{24+j} offset:{T*4096+512}"),
         lambda T, j: a(f"v_mfma_f32_16x16x32_bf16 {vr(128+4*j,4)}, {vr(32+(T&1)*16+4*j,4)}, {vr(64+4*T,4)}, {'0' if T == 0 else vr(128+4*j,4)}"), nper=2)
for i in range(16): a(f"v_mul_f32 v{128+i}, {fbits(0.25*math.log2(math.e))}, v{128+i}")
for i in range(8): a(f"v_cvt_pk_bf16_f32 v{16+i}, v{128+2*i}, v{129+2*i}")
for e in range(2): a(f"v_permlane16_swap_b32 v{16+4*e}, v{18+4*e}\nv_permlane16_swap_b32 v{17+4*e}, v{19+4*e}")
stamp("q")
LnM, Lnc, Lar = a.label("nM2"), a.label("noc12"), a.label("arr")
a(f"s_cmp_eq_u32 s69, s70\ns_cbranch_scc0 {LnM}\ns_waitcnt vmcnt(16)")
mod_silu(8)
a("s_waitcnt vmcnt(0) lgkmcnt(0)")
gemv_chain(L_G0, 28, 6)
round_bf16([32, 33, 34, 35])
a(f"""
s_lshl_b32 s64, s68, 6
s_add_u32 s64, s64, {WS_MOD}
v_mov_b32 v4, v5
s_mov_b32 exec_lo, 0x00010001
s_mov_b32 exec_hi, 0x00010001
s_branch {Lar}
{LnM}:
s_cmp_eq_u32 s69, s71
s_cbranch_scc0 {Lnc}
v_lshlrev_b32 v6, 5, v0
s_mov_b32 s64, {WS_MODT + 3*2048}
""")
poll(f"""buffer_load_dwordx4 v[32:35], v6, {WS}, s64 offen offset:2048 sc1
buffer_load_dwordx4 v[36:39], v6, {WS}, s64 offen offset:2064 sc1
buffer_load_dwordx4 v[40:43], v6, {WS}, s64 offen sc1
buffer_load_dwordx4 v[44:47], v6, {WS}, s64 offen offset:16 sc1""", tagcheck(list(range(32, 48))), "-1")
for i in range(8): a(f"v_cvt_pk_bf16_f32 v{48+i}, v{32+2*i}, v{33+2*i}")
a(f"""
v_add_u32 v4, {L_OP2}, v3
ds_write_b128 v4, v[48:51]
ds_write_b128 v4, v[52:55] offset:1024
v_and_b32 v4, 1, v0
v_lshlrev_b32 v4, 10, v4
v_lshl_add_u32 v6, v2, 4, v4
v_add_u32 v6, {L_OP2}, v6
s_waitcnt lgkmcnt(0)
""")
gemv_chain(L_G1, 28, 6)
a(f"""
s_mul_i32 s64, {sXCD}, 14
s_add_u32 s64, s64, {sIDX}
s_lshl_b32 s64, s64, 6
s_add_u32 s64, s64, {WS_C12}
v_mul_u32_u24 v4, 7168, v1
v_lshl_add_u32 v4, v2, 4, v4
s_mov_b32 exec_lo, 0x00030003
s_mov_b32 exec_hi, 0x00030003
{Lar}:
buffer_store_dwordx4 v[32:35], v4, {WS}, s64 offen sc1
s_mov_b64 exec, 1
s_lshl_b32 s3, {sXCD}, 7
s_add_u32 s3, s3, {F_A3}
v_mov_b32 v4, 1
v_mov_b32 v5, s3
s_waitcnt vmcnt(0)
buffer_atomic_add v4, v5, {WS}, 0 offen sc1
s_mov_b64 exec, -1
{Lnc}:
""")
a(f"""
v_add_u32 v24, {L_KV + 1088}, v3
v_add_u32 v25, {31*REC}, v24
v_add_u32 v26, {31*REC}, v25
v_lshrrev_b32 v4, 5, v0
v_mul_u32_u24 v4, 272, v4
v_and_b32 v5, 31, v0
v_lshl_add_u32 v4, v5, 4, v4
v_add_u32 v27, {L_KV}, v4
v_mov_b32 v4, 0x40000
v_cmp_lt_u32 vcc, {16 if PADZERO else 99}, v5
v_cndmask_b32 v27, v27, v4, vcc
v_add_u32 v28, {31*REC}, v27
v_add_u32 v29, {31*REC}, v28
v_mov_b32 v30, 0xdddd
v_lshrrev_b32 v7, 3, v0
v_and_b32 v6, 7, v0
v_xor_b32 v5, v6, v2
v_lshlrev_b32 v5, 4, v5
v_lshl_add_u32 v168, v7, 12, v5
v_xor_b32 v169, 64, v168
v_add_u32 v169, {0x8000 - 1024}, v169
v_lshrrev_b32 v4, 1, v1
v_xor_b32 v4, v4, v2
v_lshlrev_b32 v4, 4, v4
v_lshl_add_u32 v4, v1, 7, v4
s_mul_i32 s77, {sW}, 12288
v_add_u32 v170, s77, v4
v_xor_b32 v171, 64, v170
v_lshlrev_b32 v4, 10, v1
v_lshl_add_u32 v172, v2, 3, v4
v_mov_b32 v31, {OOB}
v_lshlrev_b32 v4, 7, v6
v_lshl_add_u32 v173, v7, 12, v4
v_lshlrev_b32 v4, 7, v0
v_cmp_gt_u32 vcc, 56, v0
v_cndmask_b32 v174, v31, v4, vcc
v_cmp_gt_u32 vcc, 14, v0
v_cndmask_b32 v175, v31, v4, vcc
v_cmp_gt_u32 vcc, 4, v0
v_cndmask_b32 v196, v31, v4, vcc
v_cmp_gt_u32 vcc, 33, v0
v_cndmask_b32 v197, v31, v4, vcc
v_cmp_eq_u32 vcc, 0, v0
v_cndmask_b32 v198, v31, v4, vcc
v_mov_b32 v199, 1
""")
for i in range(32): a(f"v_mov_b32 v{80+i}, 0")
Lr2, Lr3, Lre, Lrm, Lrr = (a.label(x) for x in ("r2", "r3", "re", "rm", "rr"))
a(f"""
v_lshlrev_b32 v6, 4, v6
v_lshrrev_b32 v4, 2, v1
v_and_b32 v5, 3, v1
v_lshlrev_b32 v5, 3, v5
s_lshl_b32 s68, {sW}, 12
v_add_u32 v5, s68, v5
s_cmp_eq_u32 {sW}, 2
s_cbranch_scc1 {Lr2}
s_cmp_eq_u32 {sW}, 3
s_cbranch_scc1 {Lr3}
s_and_b32 s64, {sRB}, 15
s_mul_i32 s64, s64, 114688
s_lshr_b32 s3, {sRB}, 4
s_mul_i32 s3, s3, 1792
s_add_u32 s64, s64, s3
s_mul_i32 s3, {sCB}, 224
s_add_u32 s64, s64, s3
s_lshl_b32 s3, {sW}, 7
s_add_u32 s64, s64, s3
""")
srd(R2, P_WIN, 512 * 3584, "s64")
a(f"""
s_movk_i32 s3, 3584
v_mad_u32_u24 v176, v7, s3, v6
s_movk_i32 s20, {8*3584}
s_mov_b32 s21, {16*3584}
s_mov_b32 s22, {24*3584}
v_lshl_add_u32 v4, v2, 2, v4
v_lshl_add_u32 v177, v4, 7, v5
v_add_u32 v178, 2048, v177
s_lshl_b32 s36, {sCB}, 5
s_add_u32 s36, s36, {sRB}
s_mul_i32 s36, s36, {SLOT}
s_lshl_b32 s3, {sW}, 12
s_add_u32 s36, s36, s3
s_add_u32 s36, s36, {WS_WINF}
s_mov_b32 s24, s36
s_cmp_eq_u32 {sW}, 0
s_cselect_b32 s37, s36, {WS_SIZE}
s_branch {Lre}
{Lr2}:
s_min_u32 s67, {sRB}, 27
s_mul_i32 s64, s67, 37
s_lshr_b32 s64, s64, 8
s_mul_i32 s3, s64, 7
s_sub_u32 s65, s67, s3
s_mul_i32 s64, s64, 224
s_lshl_b32 s3, s65, 5
s_add_u32 s66, s3, 16
s_cmp_lt_u32 s65, 3
s_cselect_b32 s3, s3, s66
s_cmp_eq_u32 s65, 6
s_cselect_b32 s3, 96, s3
s_cselect_b32 s21, 112, 16
s_lshl_b32 s21, s21, 10
s_add_u32 s22, s21, 8192
s_movk_i32 s20, 8192
s_add_u32 s64, s64, s3
s_lshl_b32 s64, s64, 10
s_lshl_b32 s3, {sCB}, 7
s_add_u32 s64, s64, s3
""")
srd(R2, P_WOUT, 896 * 1024, "s64")
a(f"""
v_lshl_add_u32 v176, v7, 10, v6
s_mul_i32 s36, {sCB}, 28
s_add_u32 s36, s36, s67
s_lshl_b32 s36, s36, 12
s_add_u32 s36, s36, {WS_WOUTF}
s_cmp_lt_u32 {sRB}, 28
s_cselect_b32 s36, s36, {WS_SIZE}
s_mov_b32 s37, s36
s_mov_b32 s24, s36
s_cmp_eq_u32 s65, 6
s_cbranch_scc1 {Lrm}
v_lshl_add_u32 v4, v2, 2, v4
v_lshl_add_u32 v177, v4, 7, v5
v_add_u32 v178, 2048, v177
s_branch {Lre}
{Lrm}:
v_lshl_add_u32 v4, v2, 3, v4
v_lshl_add_u32 v177, v4, 7, v5
v_add_u32 v178, 512, v177
s_branch {Lre}
{Lr3}:
s_lshr_b32 s67, {sRB}, 1
s_lshl_b32 s64, s67, 15
s_lshl_b32 s3, {sCB}, 7
s_add_u32 s64, s64, s3
""")
srd(R2, P_WO, 512 * 1024, "s64")
a(f"""
v_lshl_add_u32 v176, v7, 10, v6
s_movk_i32 s20, 8192
s_movk_i32 s21, 16384
s_movk_i32 s22, 24576
v_and_b32 v6, 1, v2
v_lshl_add_u32 v4, v6, 4, v4
v_lshrrev_b32 v6, 1, v2
v_lshl_add_u32 v4, v6, 2, v4
v_lshl_add_u32 v177, v4, 7, v5
v_add_u32 v178, 1024, v177
s_lshl_b32 s36, {sCB}, 4
s_add_u32 s36, s36, s67
s_lshl_b32 s36, s36, 12
s_add_u32 s36, s36, {WS_WOF}
s_bitcmp1_b32 {sRB}, 0
s_cselect_b32 s37, s36, {WS_SIZE}
s_cselect_b32 s36, {WS_SIZE}, s36
s_mov_b32 s24, s37
{Lre}:
""")
a(f"s_lshl_b32 s64, {sRB}, 18\ns_lshl_b32 s3, {sW}, 10\ns_add_u32 s64, s64, s3")
srd(R0, P_WSP, 2048 * 4096, "s64")
a(f"s_lshl_b32 s64, {sCB}, 7\ns_add_u32 s64, s64, s55")
srd(R1, P_X, 2048 * 1024, "s64")
for s_ in range(4): a(f"s_add_u32 s3, {sW}, {s_}\ns_and_b32 s3, s3, 3\ns_lshl_b32 s{70+s_}, s3, 16")
a(f"""
s_and_b32 s23, {sRB}, 3
s_mov_b32 s25, 0
s_lshl_b32 s18, s25, 8
s_lshl_b32 s19, {sCB}, 15
s_lshl_b32 s38, {sCB}, 9
s_add_u32 s38, s38, {F_P}
s_lshl_b32 s3, {sW}, 7
s_add_u32 s39, s38, s3
s_lshl_b32 s3, s23, 2
s_add_u32 s3, s3, {sW}
s_mul_i32 s26, s3, {SLOT}
s_mul_i32 s27, s3, {SLOT // 4}
s_mul_i32 s3, {sCB}, {32*SLOT}
s_add_u32 s27, s27, s3
s_add_u32 s27, s27, {WS_WINF + 28*SLOT}
s_add_u32 s0, s26, s3
s_add_u32 s0, s0, {WS_WINF}
s_mul_i32 s3, {sCB}, {28*4096}
s_add_u32 s26, s26, s3
s_add_u32 s26, s26, {WS_WOUTF}
s_lshl_b32 s69, {sCB}, 16
s_add_u32 s69, s69, {WS_WOF}
s_lshl_b32 s64, {sW}, 11
s_add_u32 s65, s64, {L_KV}
s_add_u32 s64, s64, {WS_KV}
s_mul_i32 s66, {sIDX}, {33*128}
s_add_u32 s66, s66, {WS_KV}
s_lshl_b32 s67, {sRB}, 7
s_add_u32 s67, s67, {F_B}
""")
Lnb = a.label("noB")
a(f"s_cmp_eq_u32 {sW}, {sKVW}\ns_cbranch_scc0 {Lnb}\nv_lshlrev_b32 v5, 7, v0\ns_mov_b32 s1, {F_B}")
poll(f"buffer_load_dword v4, v5, {WS}, s1 offen sc1",
     "v_lshrrev_b32 v6, 4, v4\nv_and_b32 v6, 0x0f0f0f0f, v6\nv_and_b32 v4, 0x0f0f0f0f, v4\nv_add_u32 v4, v4, v6\nv_sad_u8 v4, v4, 0, 0\nv_cmp_gt_u32 vcc, 8, v4",
     "0xffffffff")
a(f"buffer_load_dword v200, v197, {WS}, s66 offen sc1\ns_barrier\ns_branch L_Bdone\n{Lnb}:\ns_waitcnt vmcnt(0) lgkmcnt(0)\ns_barrier\nL_Bdone:")
stamp("barB")
Lne = a.label("noep")
a(f"s_or_b32 s3, s2, {sW}\ns_cbranch_scc1 {Lne}\nv_mov_b32 v4, {sEP}\ns_mov_b32 s3, {WS_EPOCH}\nbuffer_store_dword v4, v198, {WS}, s3 offen sc1\n{Lne}:")
vm.n = 0
def kv_group(i):
    if i < 16:
        return (["s_mov_b32 m0, s65"], [f"buffer_load_dwordx4 v3, {WS}, s64 offen sc1 lds", f"buffer_load_dwordx4 v3, {WS}, s64 offen offset:1024 sc1 lds"],
                f"kvg{i}", ["s_add_u32 s64, s64, 8192", "s_add_u32 s65, s65, 8192"])
    return ([f"s_lshl_b32 s3, {sW}, 10", "s_sub_u32 s64, s64, s3", "s_sub_u32 m0, s65, s3"], [f"buffer_load_dwordx4 v3, {WS}, s64 offen sc1 lds"], "kvg16", [])
def emit_item(x):
    pre, ins, tag, post = x
    for p in pre: a(p)
    for q_ in ins: vm.op(q_, tag)
    for p in post: a(p)
for i in range(3): emit_item(kv_group(i))

def win_items(half, grp, slot0, tag):
    ld = lambda i: f"buffer_load_dwordx4 v3, {WS}, s74 offen offset:{(i & 3)*1024} sc1 lds"
    first = [f"s_lshl_b32 s74, {sCB}, 5", f"s_add_u32 s74, s74, {sW}", f"s_mul_i32 s74, s74, {SLOT}", f"s_add_u32 s74, s74, {WS_WINF + (half*16 + grp*4)*SLOT}"] + slot0
    return [(first + ["s_mov_b32 m0, s75"], [ld(0), ld(1)], tag, []), (["s_mov_b32 m0, s75"], [ld(2), ld(3)], tag, ["s_add_u32 s74, s74, 4096", "s_add_u32 s75, s75, 4096"]),
            (["s_mov_b32 m0, s75"], [ld(4), ld(5)], tag, []), (["s_mov_b32 m0, s75"], [ld(6)], tag, [])]
def lin_slot(base): return [f"s_mul_i32 s75, {sW}, {SLOT}", f"s_add_u32 s75, s75, {base}"]

def kaddr(t): return f"v{24 + t//31} offset:{(t % 31)*REC}"
def vaddr(t, m): return f"v{27 + t//31} offset:{(t % 31)*REC + m*544}"
Kb = lambda t: vr(144 + 4*(t & 1), 4)
Vb = lambda t, m: vr(152 + 8*(t & 1) + 4*m, 4)
Sb = lambda u: 32 + 16*(u % 3)
Q = lambda e: vr(16 + 4*e, 4)
O = lambda e: 80 + 16*e
C = lambda e: 112 + 16*e
vm.wait("kvg0"); a("s_barrier")
stamp("kv0")
if "clk" in XP: a("s_memtime s[96:97]\ns_memrealtime s[98:99]\ns_waitcnt lgkmcnt(0)")
a(f"ds_read_b128 {Kb(0)}, {kaddr(0)}\nds_read_b128 {Kb(1)}, {kaddr(1)}\ns_waitcnt lgkmcnt(1)")
for e in range(2): a(f"v_mfma_f32_32x32x16_bf16 {vr(32+16*e,16)}, {Kb(0)}, {Q(e)}, 0")
def rowmax(S, dst, first):
    for i in range(0, 16, 2):
        if first and i == 0: a(f"v_max_f32 v{dst}, v{S}, v{S+1}")
        else: a(f"v_max3_f32 v{dst}, v{S+i}, v{S+i+1}, v{dst}")
def negbcast(src, e):
    a(f"v_mov_b32 v6, v{src}\nv_permlane32_swap_b32 v{src}, v6\nv_max_f32 v{src}, v{src}, v6\nv_sub_f32 v{C(e)}, 0, v{src}")
    for i in range(1, 16): a(f"v_mov_b32 v{C(e)+i}, v{C(e)}")
for e in range(2): rowmax(32 + 16*e, 4 + e, True)
for e in range(2): negbcast(4 + e, e)
a(f"v_mfma_f32_32x32x16_bf16 {vr(Sb(0),16)}, {Kb(0)}, {Q(0)}, {vr(C(0),16)}")

plan = {}
TP, TR = 17, 26
def put(t, slot, x): plan.setdefault((t, slot), []).append(x)
PREV = {"o0": ("e1", 0), "e1": ("e0", 0), "eq": ("o1", -1), "oq": ("e1", 0), "e0": ("o1", -1)}
assert True
def vitem(t, slot, x):
    pre, ins, tag, post = x
    ps, dt = PREV[slot]
    pre = [p + " " for p in pre]
    m0 = [p for p in pre if " m0," in p]; rest = [p for p in pre if " m0," not in p]
    if t + dt < 0 or len(pre) > 2:
        pp, dd = PREV[ps] if ps in PREV else ("o0", 0)
        if t + dt + dd < 0: put(t, slot, ("salu", pre))
        else: put(t + dt + dd, pp + "a", ("salu", rest)); put(t + dt, ps + "a", ("salu", m0))
    else: put(t + dt, ps + "a", ("salu", pre))
    put(t, slot, ("vm", ins, tag, m0[0] if m0 else None))
    if post: put(t, slot, ("salu", post))
for i in range(3, 16): vitem((i - 3) // 3, ("e1", "oq", "o0")[(i - 3) % 3], kv_group(i))
vitem(5, "e1", kv_group(16))
for n, so in enumerate(("0", "s20", "s21", "s22")):
    vitem(5 + ((n + 1) >> 1), ("o0", "e1")[n & 1], ([f"s_add_u32 m0, s68, {n*1024}"], [f"buffer_load_dwordx4 v176, {R2}, {so} offen lds"], "praw", []))
put(2, "eq", ("vm", [f"buffer_load_dword v254, v198, {WS}, s67 offen sc1"], None))
put(7, "o0", ("vm", [f"buffer_load_dword v200, v173, {R0}, s19 offen"], None))
put(3, "eq", ("vm", [f"buffer_load_dword v200, v198, {WS}, {sGRP} offen sc1"], None))
put(TP - 1, "o1b", ("wait", "praw"))
for j in range(4):
    put(TP + (j >> 1), ("eq", "oq")[j & 1], ("ds", [f"ds_read_b64_tr_b16 {vr(180+4*j,2)}, v177 offset:{j*32}", f"ds_read_b64_tr_b16 {vr(182+4*j,2)}, v178 offset:{j*32}"]))
put(TR - 2, "o0", ("vm", [f"buffer_store_dwordx4 {vr(180+4*j,4)}, v3, {WS}, s36 offen offset:{j*1024} sc1" for j in (0, 1)], None))
put(TR - 1, "e1", ("vm", [f"buffer_store_dwordx4 {vr(188,4)}, v3, {WS}, s24 offen offset:2048 sc1", f"buffer_store_dwordx4 {vr(192,4)}, v3, {WS}, s37 offen offset:3072 sc1"], "pst"))
put(TR + 2, "oq", ("vm", [f"buffer_atomic_add v199, v198, {WS}, s39 offen sc1"], None))
put(38, "oq", ("vm", [f"buffer_load_dword v201, v196, {WS}, s38 offen sc1"], "pchk"))
for k in range(36):
    t, hf = TR + (k >> 1), k & 1
    if k < 32:
        T2, s_ = k >> 2, k & 3
        if s_ == 0: put(t - 1, "o1a", ("salu", [f"s_add_u32 s76, s18, {T2*128}", "s_and_b32 s76, s76, 1023"]))
        vitem(t, ("e1", "o0")[hf], ([f"s_add_u32 s75, s{70+s_}, s76", f"s_add_u32 m0, s77, {(k % 6)*2048}"],
                                    [f"buffer_load_dwordx4 v168, {R0}, s75 offen lds", f"buffer_load_dwordx4 v169, {R0}, s75 offen offset:1024 lds"], f"ring{k}", []))
    if k >= 4:
        T2, s_ = (k - 4) >> 2, (k - 4) & 3
        if hf == 0: put(t - 1, "o1b", ("wait", f"ring{k-3}"))
        for e_ in range(2): put(t, (("eq", "e0"), ("oq", "o1x"))[hf][e_], ("ds", [f"ds_read_b128 {ar(((2*T2+e_)*4+s_)*4,4)}, v{170+e_} offset:{((k-4) % 6)*2048}"]))
for grp, t0 in ((0, 42), (1, 54), (2, 60)):
    for n, x in enumerate(win_items(1, grp, lin_slot(slotA(4*grp)), f"z2g{grp}")): vitem(t0 + n, "o0", x)
for n in range(8):
    pre = [f"s_lshl_b32 s76, {sW}, 12", "s_add_u32 s74, s76, s69"] if n == 0 else []
    post = ["s_add_u32 s74, s74, 16384", "s_add_u32 s76, s76, 16384"] if n & 1 else []
    vitem(46 + n, "o0", (pre + ["s_mov_b32 m0, s76"], [f"buffer_load_dwordx4 v3, {WS}, s74 offen offset:{(2*(n & 1) + i)*1024} sc1 lds" for i in range(2)], "wo", post))
for n in range(2): put(58 + n, "o0", ("vm", [f"buffer_load_dwordx2 {vr(8+2*j,2)}, v172, {R1}, 0 offen offset:{j*32}" for j in (2*n, 2*n + 1)], None))
for n, (vo, so) in enumerate((("v174", "s0"), ("v174", "s26"), ("v175", "s27"))):
    put(48 + 3*n, "e1", ("vm", [f"buffer_load_dword v200, {vo}, {WS}, {so} offen sc1"], None))
if "noextra" in XP: raise SystemExit("noextra unsupported")
syncs = {3: "kvg2", 11: "kvg8", 19: "kvg16", 24: None, 33: None, 46: None, 60: None}
last_m0 = [None]
def slot(t, k):
    for x in plan.pop((t, k), []):
        if x[0] == "salu":
            for p in x[1]:
                a(p)
                if " m0," in p: last_m0[0] = p
        elif x[0] == "vm":
            if len(x) > 3 and x[3] is not None and x[3] is not last_m0[0]:
                a(x[3]); last_m0[0] = x[3]
            for q_ in x[1]: vm.op(q_, x[2])
        elif x[0] == "ds":
            for q_ in x[1]: a(q_)
        else: vm.wait(x[1])
for u in range(128):
    t, e = u >> 1, u & 1
    S = Sb(u)
    ex = [f"v_exp_f32 v{S+i}, v{S+i}" for i in range(16)]
    pf = "eo"[e]
    if u + 1 < 128:
        t1, e1 = (u + 1) >> 1, (u + 1) & 1
        a(f"v_mfma_f32_32x32x16_bf16 {vr(Sb(u+1),16)}, {Kb(t1)}, {Q(e1)}, {vr(C(e1),16)}")
    a("s_waitcnt lgkmcnt(0)")
    if e == 1 and t + 2 in syncs:
        if syncs[t + 2]: vm.wait(syncs[t + 2])
        a("s_barrier")
    if "tst" in XP and e == 0 and t in (2, 4, 8, 11, 14, 17, 20, 23, 26, 28, 30, 34, 38, 42, 46, 50, 54, 58, 61): stamp(f"t{t}")
    if u == 82:
        vm.wait("pchk")
        a("v_cmp_gt_u32 vcc, 32, v201\ns_nop 1\ns_and_b32 vcc_lo, vcc_lo, 15\ns_cbranch_scc1 L_pwait\nL_pok:")
    slot(t, pf + "q")
    for x in ex[0:3]: a(x)
    Sp, tp, ep = Sb(u - 1), (u - 1) >> 1, (u - 1) & 1
    if u > 0: a(f"v_smfmac_f32_32x32x32_bf16 {vr(O(ep),16)}, {Vb(tp,0)}, {vr(Sp,8)}, v30")
    slot(t, pf + "0b")
    if e == 0:
        slot(t, "e0a"); a(f"ds_read_b128 {Vb(t,0)}, {vaddr(t,0)}"); slot(t, "e0")
    else:
        slot(t, "o0"); slot(t, "o0a")
    for x in ex[3:7]: a(x)
    if u > 0: a(f"v_smfmac_f32_32x32x32_bf16 {vr(O(ep),16)}, {Vb(tp,1)}, {vr(Sp+8,8)}, v30")
    slot(t, pf + "1b")
    if e == 0:
        slot(t, "e1"); slot(t, "e1a"); a(f"ds_read_b128 {Vb(t,1)}, {vaddr(t,1)}")
    else:
        slot(t, "o1a")
        if t + 2 < 64: a(f"ds_read_b128 {Kb(t+2)}, {kaddr(t+2)}")
        slot(t, "o1x")
    for x in ex[7:16]: a(x)
assert not plan, plan.keys()
for m in range(2): a(f"v_smfmac_f32_32x32x32_bf16 {vr(O(1),16)}, {Vb(63,m)}, {vr(Sb(127)+8*m,8)}, v30")
if "clk" in XP: a("s_memtime s[100:101]\ns_memrealtime s[78:79]\ns_waitcnt lgkmcnt(0)\ns_sub_u32 s100, s100, s96\ns_sub_u32 s101, s78, s98")
stamp("attn")
a(f"s_lshl_b32 s3, {sXCC}, 2\ns_lshl_b32 s3, 8, s3\nv_readfirstlane_b32 s64, v254\ns_cmp_eq_u32 s64, s3\ns_cselect_b32 {sFAST}, {0 if FORCE_SLOW else 1}, 0")
Lfb, Lok = a.label("fb"), a.label("ok")
def getl():
    for e in range(2):
        a(f"v_mov_b32 v{4+e}, v{O(e)+8}\nv_mov_b32 v6, v{O(e)+8}\nv_permlane32_swap_b32 v{4+e}, v6")
getl()
a(f"v_add_f32 v7, v4, v5\nv_mov_b32 v6, {fbits(2.0**40 if not FORCE_FB else -1.0)}\nv_cmp_nlt_f32 vcc, v7, v6\ns_cbranch_vccnz {Lfb}\n{Lok}:")
for e in range(2): a(f"v_rcp_f32 v{4+e}, v{4+e}")
for e in range(2):
    for i in range(8): a(f"v_mul_f32 v{O(e)+i}, v{O(e)+i}, v{4+e}")
    for i in range(4): a(f"v_cvt_pk_bf16_f32 v{32+4*e+i}, v{O(e)+2*i}, v{O(e)+2*i+1}")
a(f"s_lshl_b32 s64, {sCB}, 11\ns_add_u32 s64, s64, s55\ns_add_u32 s65, s64, {WS_O}")
def pubo(sc):
    for e in range(2): vm.op(f"buffer_store_dwordx4 {vr(32+4*e,4)}, v3, {WS}, s65 offen offset:{e*1024}{sc}")
pubo(' sc1')
hop_signal(1)
stamp("opub")
a("s_barrier")
rd3 = lambda T, j: a(f"ds_read_b128 {vr(144+(T&1)*16+4*j,4)}, v3 offset:{L_WO + T*4096 + j*1024}")
for j in range(4): rd3(0, j)
a(f"""
v_lshlrev_b32 v31, 4, v2
s_mul_i32 s64, {sCB}, 448
s_mul_i32 s3, {sW}, 3584
s_add_u32 s64, s64, s3
s_add_u32 s64, s64, {WS_C12}
s_lshl_b32 s65, {sCB}, 8
s_add_u32 s65, s65, {WS_MOD + 2*2048}
v_add_u32 v6, {7168 - 448}, v3
v_cmp_gt_u32 vcc, 28, v0
v_cndmask_b32 v28, v6, v3, vcc
v_and_b32 v6, 1, v2
v_lshlrev_b32 v6, 12, v6
v_lshl_add_u32 v6, v1, 4, v6
s_cmp_lt_u32 {sW}, 2
s_cselect_b32 s67, s64, s65
s_cselect_b64 vcc, -1, 0
v_cndmask_b32 v28, v6, v28, vcc
s_lshl_b32 s66, {sW}, 10
s_add_u32 s66, s66, {L_SM}
v_lshlrev_b32 v5, 2, v0
v_add_u32 v5, {sGRP}, v5
v_mov_b32 v7, 1
s_mov_b64 exec, 0xff00
v_lshlrev_b32 v5, 7, v0
v_add_u32 v5, {F_A3 - 8*128}, v5
v_mov_b32 v7, 22
""")
poll(f"buffer_load_dword v4, v5, {WS}, 0 offen sc1", "v_cmp_gt_u32 vcc, v7, v4", "0xffff")
stamp("C")
def frag_load(T, tag):
    vm.op(f"buffer_load_dwordx4 {vr(64+4*T,4)}, v3, {WS}, s64 offen offset:{(T & 3)*1024} sc1", f"{tag}{T}")
    if T & 3 == 3: a("s_add_u32 s64, s64, 4096")
AH = 6
a(f"s_add_u32 s64, s55, {WS_O}\ns_mov_b32 m0, s66")
for T in range(AH): frag_load(T, "o")
def aft3(T, j):
    if j == 0 and T + AH < 16: frag_load(T + AH, "o")
    if j == 0 and T + AH == 16: vm.op(f"buffer_load_dwordx4 v28, {WS}, s67 offen sc1 lds", "sm")
fragloop(16, 4, rd3,
         lambda T, j: a(f"v_mfma_f32_16x16x32_bf16 {vr(128+4*j,4)}, {vr(144+(T&1)*16+4*j,4)}, {vr(64+4*T,4)}, {'0' if T == 0 else vr(128+4*j,4)}"),
         before=lambda T: vm.wait(f"o{T}"), after=aft3, preissued=True)
stamp("p3mm")
vm.wait("sm")
a(f"s_barrier\nv_add_u32 v29, {L_SM}, v31\nv_lshlrev_b32 v28, 2, v1\nv_add_u32 v28, {L_SM + 1024}, v28")
for j in range(4): a(f"ds_read_b128 {vr(32+4*j,4)}, v29 offset:{2048 + j*64}")
for j in range(4): a(f"ds_read_b128 {vr(48+4*j,4)}, v29 offset:{2048 + 256 + j*64}")
CP = [232, 234, 236, 238, 240, 242, 244]
for i in range(8): a(f"v_lshlrev_b32 v{64+2*i}, 16, v{8+i}\nv_and_b32 v{65+2*i}, 0xffff0000, v{8+i}")
a("s_waitcnt lgkmcnt(4)")
for i in range(8): a(f"v_pk_fma_f32 {vr(64+2*i,2)}, {vr(128+2*i,2)}, {vr(32+2*i,2)}, {vr(64+2*i,2)}")
for i in range(8): a(f"v_cvt_pk_bf16_f32 v{8+i}, v{64+2*i}, v{65+2*i}")
for i in range(8): a(f"v_lshlrev_b32 v{64+2*i}, 16, v{8+i}\nv_and_b32 v{65+2*i}, 0xffff0000, v{8+i}")
a("s_waitcnt lgkmcnt(0)")
for i in range(8): a(f"v_pk_mul_f32 {vr(48+2*i,2)}, {vr(48+2*i,2)}, {vr(64+2*i,2)}")
for i in range(8): a(f"v_cvt_pk_bf16_f32 v{80+i}, v{48+2*i}, v{49+2*i}")
a("v_pk_mul_f32 v[88:89], v[64:65], v[64:65]\nv_pk_add_f32 v[90:91], v[64:65], v[66:67]")
for i in range(1, 8): a(f"v_pk_fma_f32 v[88:89], {vr(64+2*i,2)}, {vr(64+2*i,2)}, v[88:89]")
for i in range(2, 8): a(f"v_pk_add_f32 v[90:91], v[90:91], {vr(64+2*i,2)}")
a("v_add_f32 v93, v88, v89\nv_add_f32 v92, v90, v91")
xgroup_sum(92, 94); xgroup_sum(93, 95)
a(f"""
s_lshl_b32 s64, {sCB}, 11
s_add_u32 s64, s64, s55
s_add_u32 s65, s64, {WS_Y}
s_lshl_b32 s68, {sGRP}, 3
s_lshl_b32 s3, {sCB}, 7
s_add_u32 s69, s68, s3
s_add_u32 s67, s69, {WS_ST1}
v_lshlrev_b32 v6, 3, v1
""")
stamp("p3ep")
def puby(sc):
    for p in range(2): vm.op(f"buffer_store_dwordx4 {vr(80+4*p,4)}, v3, {WS}, s65 offen offset:{p*1024}{sc}")
    a("s_mov_b64 exec, 0xffff")
    vm.op(f"buffer_store_dwordx2 v[92:93], v6, {WS}, s67 offen{sc}")
    a("s_mov_b64 exec, -1")
puby(' sc1')
hop_signal(2)
stamp("ypub")
a("v_add_u32 v25, 0xe000, v3\nv_add_u32 v26, 0xe000, v25")
WB = (32, 204)
def rdl(dst, addr):
    w_, off = divmod(addr, 0xe000)
    a(f"ds_read_b128 {vr(dst,4)}, v{(3, 25, 26)[w_]} offset:{off}")
for j in range(7): a(f"ds_read_b128 {vr(176+4*j,4)}, v29 offset:{j*64}\nds_read_b128 {vr(204+4*j,4)}, v29 offset:{448 + j*64}")
for j in range(7): a(f"ds_read2_b32 {vr(CP[j],2)}, v28 offset0:{j*16} offset1:{j*16 + 112}")
for j in range(7): rdl(WB[0] + 4*j, slot_z2(0) + j*1024)
a("""
v_and_b32 v4, 7, v1
v_lshlrev_b32 v4, 7, v4
v_lshl_add_u32 v30, v2, 5, v4
v_lshlrev_b32 v4, 8, v2
v_lshl_add_u32 v27, v1, 3, v4
""")
for x in win_items(1, 3, [f"s_mul_i32 s75, {sW}, {SLOT}", f"s_sub_u32 s75, s75, {SLOT}", f"s_cmp_eq_u32 {sW}, 0", f"s_cselect_b32 s75, {slotA(12)}, s75"], "z2g3"): emit_item(x)
hop_wait(2)
stamp("D")
a(f"s_add_u32 s66, s68, {WS_ST1}")
vm.op(f"buffer_load_dwordx4 v[164:167], v30, {WS}, s66 offen sc1")
vm.op(f"buffer_load_dwordx4 v[168:171], v30, {WS}, s66 offen offset:16 sc1")
vm.op(f"buffer_load_dwordx2 v[172:173], v27, {WS}, s66 offen sc1")
vm.op(f"buffer_load_dwordx2 v[174:175], v27, {WS}, s66 offen offset:128 sc1", "st1")
a(f"s_add_u32 s64, s55, {WS_Y}")
for T in range(AH): frag_load(T, "y")
stamp("y_iss")
vm.wait("st1")
stamp("st1")
dppsum(range(164, 172), (4, 2, 1))
a("v_pk_add_f32 v[172:173], v[172:173], v[174:175]")
xgroup_sum(172, 174); xgroup_sum(173, 175)
finish_stats([(164+2*i, 165+2*i, 16+i, 20+i, 156+i) for i in range(4)] + [(172, 173, 160, 28, 162)], 512)
a("s_waitcnt lgkmcnt(7)")
for j in range(7):
    for h in range(2):
        d = 128 + 4*j + 2*h
        a(f"v_pk_mul_f32 {vr(d,2)}, {vr(16+2*h,2)}, {vr(CP[j],2)} op_sel_hi:[1,0]")
        a(f"v_pk_fma_f32 {vr(d,2)}, {vr(156+2*h,2)}, {vr(CP[j],2)}, {vr(d,2)} op_sel:[0,1,0] op_sel_hi:[1,1,1]")
for i in range(14):
    a(f"v_pk_mul_f32 {vr(176+2*i,2)}, {vr(176+2*i,2)}, v[160:161] op_sel_hi:[1,0]")
    a(f"v_pk_fma_f32 {vr(176+2*i,2)}, {vr(204+2*i,2)}, v[162:163], {vr(176+2*i,2)} op_sel_hi:[1,0,1]")
stamp("init")
z1items = {g_: win_items(0, g_, lin_slot(slotB(3) if g_ == 0 else slotA(4*(g_ - 1))), f"z1g{g_}") for g_ in range(4)}
def bef(T):
    if T == 11: a("s_waitcnt lgkmcnt(0)\ns_barrier")
    vm.wait(f"y{T}")
def aft(T, j):
    if j == 0 and T + AH < 16: frag_load(T + AH, "y")
    if j == 3 and 6 <= T < 10: emit_item(z1items[0][T - 6])
    if j == 3 and 11 <= T < 15: emit_item(z1items[1][T - 11])
fragloop(16, 7, lambda T, j: rdl(WB[T & 1] + 4*j, slot_z2(T) + j*1024),
         lambda T, j: a(f"v_mfma_f32_16x16x32_bf16 {vr(128+4*j,4)}, {vr(64+4*T,4)}, {vr(WB[T & 1]+4*j,4)}, {vr(128+4*j,4)}"),
         before=bef, after=aft, preissued=True)
stamp("z2mm")
a(f"s_mov_b32 s64, {fbits(-2*math.log2(math.e)*math.sqrt(2/math.pi)*0.044715)}\ns_mov_b32 s65, s64\ns_mov_b32 s66, 1.0\ns_mov_b32 s67, 1.0")
a(f"v_mov_b32 v60, {fbits(-2*math.log2(math.e)*math.sqrt(2/math.pi))}\nv_mov_b32 v61, v60")
def gelu(acc, scale, tmp, mid=None):
    P = range(14)
    for i in P: a(f"v_pk_mul_f32 {vr(acc+2*i,2)}, {vr(acc+2*i,2)}, {scale(i)}")
    for i in P: a(f"v_pk_mul_f32 {vr(tmp+2*i,2)}, {vr(acc+2*i,2)}, {vr(acc+2*i,2)}")
    for i in P: a(f"v_pk_fma_f32 {vr(tmp+2*i,2)}, {vr(tmp+2*i,2)}, s[64:65], v[60:61]")
    for i in P: a(f"v_pk_mul_f32 {vr(tmp+2*i,2)}, {vr(tmp+2*i,2)}, {vr(acc+2*i,2)}")
    for i in range(28): a(f"v_exp_f32 v{tmp+i}, v{tmp+i}")
    if mid: mid()
    for i in P: a(f"v_pk_add_f32 {vr(tmp+2*i,2)}, {vr(tmp+2*i,2)}, s[66:67]")
    for i in range(28): a(f"v_rcp_f32 v{tmp+i}, v{tmp+i}")
    for i in P: a(f"v_pk_mul_f32 {vr(acc+2*i,2)}, {vr(acc+2*i,2)}, {vr(tmp+2*i,2)}")
gelu(128, lambda i: vr(20 + 2*(i & 1), 2), 32)
for h in range(2):
    a(f"v_pk_add_f32 {vr(156+2*h,2)}, {vr(128+2*h,2)}, {vr(132+2*h,2)}\nv_pk_mul_f32 {vr(160+2*h,2)}, {vr(128+2*h,2)}, {vr(128+2*h,2)}")
for j in range(1, 7):
    for h in range(2):
        if j > 1: a(f"v_pk_add_f32 {vr(156+2*h,2)}, {vr(156+2*h,2)}, {vr(128+4*j+2*h,2)}")
        a(f"v_pk_fma_f32 {vr(160+2*h,2)}, {vr(128+4*j+2*h,2)}, {vr(128+4*j+2*h,2)}, {vr(160+2*h,2)}")
dppsum(range(156, 164), (8, 4, 2, 1))
a(f"s_add_u32 s3, s69, {WS_ST2}\ns_mov_b32 s74, s3\nv_lshlrev_b32 v6, 5, v2")
def pubs(sc):
    a("s_mov_b32 exec_lo, 0x00010001\ns_mov_b32 exec_hi, 0x00010001")
    vm.op(f"buffer_store_dwordx4 v[156:159], v6, {WS}, s74 offen{sc}")
    vm.op(f"buffer_store_dwordx4 v[160:163], v6, {WS}, s74 offen offset:16{sc}")
    a("s_mov_b64 exec, -1")
pubs(' sc1')
hop_signal(3)
a("s_barrier")
stamp("spub")
def z2_publish():
    hop_wait(3)
    stamp("S")
    a(f"s_add_u32 s3, s68, {WS_ST2}")
    vm.op(f"buffer_load_dwordx4 v[164:167], v30, {WS}, s3 offen sc1")
    vm.op(f"buffer_load_dwordx4 v[168:171], v30, {WS}, s3 offen offset:16 sc1", "st2")
    srd(R1, P_BSP, 4096)
    a("s_lshr_b32 s3, s55, 9\nv_lshlrev_b32 v4, 1, v1")
    vm.op(f"buffer_load_ushort v16, v4, {R1}, s3 offen", "bsp")
    a(f"""
s_lshl_b32 s70, {sCB}, 6
s_lshl_b32 s3, {sRB}, 1
s_add_u32 s70, s70, s3
s_lshr_b32 s3, {sW}, 1
s_add_u32 s70, s70, s3
s_mul_i32 s70, s70, 7168
s_and_b32 s3, {sW}, 1
s_lshl_b32 s3, s3, 9
s_add_u32 s70, s70, s3
s_add_u32 s70, s70, {WS_Z2}
s_add_u32 s71, s70, 4096
v_and_b32 v4, 1, v2
v_lshlrev_b32 v4, 10, v4
v_lshrrev_b32 v5, 1, v2
v_lshl_add_u32 v4, v5, 8, v4
v_lshl_add_u32 v6, v1, 4, v4
""")
    vm.wait("st2")
    dppsum(range(164, 172), (4, 2, 1))
    finish_stats([(164+i, 168+i, 156+i, 160+i, None) for i in range(4)], 896)
    for h in range(2): a(f"v_pk_mul_f32 {vr(156+2*h,2)}, {vr(156+2*h,2)}, {vr(160+2*h,2)}")
    for i in range(14): a(f"v_pk_fma_f32 {vr(128+2*i,2)}, {vr(128+2*i,2)}, {vr(160+2*(i & 1),2)}, {vr(156+2*(i & 1),2)}")
    for i in range(14): a(f"v_cvt_pk_bf16_f32 v{232+i}, v{128+2*i}, v{129+2*i}")
    a("v_mov_b32 v246, v244\nv_mov_b32 v247, v245")
    for p in range(4): a(f"v_permlane16_swap_b32 v{232+4*p}, v{234+4*p}\nv_permlane16_swap_b32 v{233+4*p}, v{235+4*p}")
    vm.op(f"buffer_store_dwordx4 v[232:235], v6, {WS}, s70 offen sc1")
    vm.op(f"buffer_store_dwordx4 v[236:239], v6, {WS}, s70 offen offset:2048 sc1")
    vm.op(f"buffer_store_dwordx4 v[240:243], v6, {WS}, s71 offen sc1")
    a("s_mov_b32 exec_lo, 0x0000ffff\ns_mov_b32 exec_hi, 0x0000ffff")
    vm.op(f"buffer_store_dwordx4 v[244:247], v6, {WS}, s71 offen offset:2048 sc1", "zst")
    a(f"""
s_mov_b64 exec, -1
s_lshl_b32 s70, {sRB}, 3
s_add_u32 s70, s70, {sCB}
s_lshl_b32 s70, s70, 9
s_lshl_b32 s3, {sW}, 7
s_add_u32 s70, s70, s3
s_add_u32 s70, s70, {F_E}
""")
    stamp("zst")
def bef(T):
    if T == TS: z2_publish()
    if T == TE:
        vm.wait("zst"); vm.op(f"buffer_store_dword v62, v63, {WS}, s70 offen sc1")
        stamp("zpub")
    if T == 7: a("s_barrier")
def aft(T, j):
    if T < 2 and j in (1, 4): emit_item(z1items[2][2*T + (j == 4)])
    if 2 <= T < 4 and j in (1, 4): emit_item(z1items[3][2*(T - 2) + (j == 4)])
TS, TE = 7, 12
a(f"v_mov_b32 v199, 1\nv_mov_b32 v198, {OOB}\nv_cmp_eq_u32 vcc, 0, v0\nv_cndmask_b32 v198, v198, v0, vcc".replace("v199", "v62").replace("v198", "v63"))
fragloop(16, 7, lambda T, j: rdl(WB[T & 1] + 4*j, slot_z1(T) + j*1024),
         lambda T, j: a(f"v_mfma_f32_16x16x32_bf16 {vr(176+4*j,4)}, {vr(WB[T & 1]+4*j,4)}, {vr(64+4*T,4)}, {vr(176+4*j,4)}"), before=bef, after=aft)
a("s_barrier")
stamp("z1mm")
a(f"s_lshl_b32 s70, {sW}, 15\ns_lshl_b32 s3, {sCB}, 9\ns_add_u32 s70, s70, s3\ns_add_u32 s70, s70, {F_E}\nv_lshrrev_b32 v6, 2, v0\nv_lshlrev_b32 v6, 12, v6\nv_and_b32 v5, 3, v0\nv_lshl_add_u32 v6, v5, 7, v6")
a(f"s_lshl_b32 s72, {sCB}, 2\ns_add_u32 s72, s72, {sW}\ns_mul_i32 s72, s72, {16*7168}\ns_add_u32 s72, s72, {WS_Z2}\ns_add_u32 s73, s72, 4096")
poll(f"buffer_load_dword v4, v6, {WS}, s70 offen sc1", "v_cmp_gt_u32 vcc, 1, v4", "0xffffffff")
stamp("E")
ZB = lambda T: (64, 92, 32)[T % 3]
def ldz(T, j):
    vm.op(f"buffer_load_dwordx4 {vr(ZB(T)+4*j,4)}, v3, {WS}, s{72 + (j >> 2)} offen offset:{(j & 3)*1024} sc1", f"z{T}_{j}")
    if j == 6: a("s_add_u32 s72, s72, 7168\ns_add_u32 s73, s73, 7168")
for j in range(7): ldz(0, j)
gelu(176, lambda i: "v[28:29] op_sel_hi:[1,0]", 32, mid=lambda: [ldz(1, j) for j in range(7)])
for i in range(14): a(f"v_cvt_pk_bf16_f32 v{240+i}, v{176+2*i}, v{177+2*i}")
Z1P = list(range(240, 254))
stamp("gelu1")
def wout_setup(n0):
    a(f"s_mul_i32 s3, {sCB}, {28*4096}\ns_add_u32 s75, s3, {WS_WOUTF + n0*4096}\ns_lshl_b32 s76, {sW}, 10\ns_add_u32 s74, s75, s76\ns_add_u32 s76, s76, {L_WOUT + n0*4096}")
def wout_one(tag):
    a("s_mov_b32 m0, s76\ns_add_u32 s76, s76, 4096")
    vm.op(f"buffer_load_dwordx4 v3, {WS}, s74 offen sc1 lds", tag)
    a("s_add_u32 s74, s74, 4096")
def wout_dma(n0, n1, tag):
    wout_setup(n0)
    for n in range(n0, n1): wout_one(tag)
wout_setup(0)
for T in range(16):
    for j in range(7):
        vm.wait(f"z{T}_{j}")
        for s in range(4):
            d = vr(128 + (s*7 + j)*4, 4)
            a(f"v_mfma_f32_16x16x32_bf16 {d}, {vr(ZB(T)+4*j,4)}, {ar((T*4+s)*4,4)}, {'0' if T == 0 else d}")
            if s == 0 and T + 2 < 16: ldz(T + 2, j)
            if s == 2 and (j == 3 or (j == 0 and T >= 13)): wout_one("wout0")
stamp("p5mm")
for s in range(1, 4):
    a(f"s_add_u32 s3, {sW}, {s}\ns_and_b32 s3, s3, 3\ns_mul_i32 s3, s3, {21*1024}\ns_add_u32 s3, s3, {L_RED + (s-1)*7168}\nv_add_u32 v{16+s}, s3, v3")
a(f"s_mul_i32 s3, {sW}, {21*1024}\ns_add_u32 s3, s3, {L_RED}\nv_add_u32 v20, s3, v3")
for s in range(1, 4):
    for j in range(7): a(f"ds_write_b128 v{16+s}, {vr(128+(s*7+j)*4,4)} offset:{j*1024}")
a("v_lshlrev_b32 v16, 16, v16\ns_waitcnt lgkmcnt(0)\ns_barrier")
for k in range(21):
    a(f"ds_read_b128 {vr(32+4*k,4)}, v20 offset:{k*1024}")
    if k == 13: a("s_waitcnt lgkmcnt(7)\n" + "\n".join(f"v_pk_add_f32 {vr(128+2*i,2)}, {vr(128+2*i,2)}, {vr(32+2*i,2)}" for i in range(14)))
a("s_waitcnt lgkmcnt(7)")
for i in range(14): a(f"v_pk_add_f32 {vr(128+2*i,2)}, {vr(128+2*i,2)}, {vr(60+2*i,2)}")
a("s_waitcnt lgkmcnt(0)\ns_barrier")
for i in range(14): a(f"v_pk_add_f32 {vr(128+2*i,2)}, {vr(128+2*i,2)}, {vr(88+2*i,2)}")
for i in range(14): a(f"v_pk_add_f32 {vr(128+2*i,2)}, {vr(128+2*i,2)}, v[16:17] op_sel_hi:[1,0]")
for i in range(14): a(f"v_lshlrev_b32 v{32+2*i}, 16, v{Z1P[i]}\nv_and_b32 v{33+2*i}, 0xffff0000, v{Z1P[i]}")
for i in range(14): a(f"v_pk_mul_f32 {vr(128+2*i,2)}, {vr(128+2*i,2)}, {vr(32+2*i,2)}")
for i in range(14): a(f"v_cvt_pk_bf16_f32 v{32+i}, v{128+2*i}, v{129+2*i}")
a("v_mov_b32 v46, v44\nv_mov_b32 v47, v45\nv_permlane16_swap_b32 v44, v46\nv_permlane16_swap_b32 v45, v47")
a(f"""
s_lshr_b32 s68, s55, 14
s_mul_i32 s68, s68, {28*1024}
s_mul_i32 s64, {sCB}, 3072
s_add_u32 s64, s64, s68
s_add_u32 s64, s64, {WS_U}
s_lshr_b32 s65, {sCB}, 1
s_lshl_b32 s65, s65, 10
s_and_b32 s3, {sCB}, 1
s_lshl_b32 s3, s3, 9
s_add_u32 s65, s65, s3
s_add_u32 s65, s65, s68
s_add_u32 s65, s65, {WS_U + 24*1024}
v_lshrrev_b32 v6, 5, v0
v_lshlrev_b32 v6, 8, v6
v_lshl_add_u32 v6, v1, 4, v6
""")
def pubu(sc):
    for p in range(3): vm.op(f"buffer_store_dwordx4 {vr(32+4*p,4)}, v3, {WS}, s64 offen offset:{p*1024}{sc}")
    a("s_mov_b32 exec_lo, 0x0000ffff\ns_mov_b32 exec_hi, 0x0000ffff")
    vm.op(f"buffer_store_dwordx4 v[44:47], v6, {WS}, s65 offen{sc}")
    a("s_mov_b64 exec, -1")
pubu(' sc1')
hop_signal(4)
stamp("upub")
a("s_barrier")
rd6 = lambda n, j: rdl(160 + (n & 1)*16 + 4*j, L_WOUT + n*4096 + j*1024)
for j in range(4): rd6(0, j)
wout_dma(19, 28, "wout1")
hop_wait(4)
stamp("F")
steps = []
for cbp in range(8):
    for p in range(3): steps.append((cbp*3 + p, 112*cbp + 32*p, False))
    if cbp & 1: steps.append((24 + (cbp >> 1), 224*(cbp >> 1) + 96, True))
a(f"s_add_u32 s64, s68, {WS_U}")
for n in range(1, 7): a(f"s_add_u32 s{64+n if n < 4 else 66+n}, s64, {4096*n}")
US = ["s64", "s65", "s66", "s67", "s70", "s71", "s72"]
def uload(n):
    st = steps[n][0]
    vm.op(f"buffer_load_dwordx4 {vr(32+4*n,4)}, v3, {WS}, {US[st >> 2]} offen offset:{(st & 3)*1024} sc1", f"u{n}")
for n in range(AH): uload(n)
a(f"s_lshl_b32 s74, {sCB}, 8\ns_add_u32 s74, s74, {WS_MOD + 5*2048}")
def aft6(n, j):
    if j == 0 and n + AH < 28: uload(n + AH)
    if j == 0 and 28 <= n + AH < 32: vm.op(f"buffer_load_dwordx4 {vr(216+4*(n+AH-28),4)}, v31, {WS}, s74 offen offset:{(n+AH-28)*64} sc1", "gb")
stamp("u_iss")
def bef(n):
    if n == 18: a("s_barrier")
    vm.wait(f"u{n}")
fragloop(28, 4, rd6,
         lambda n, j: a(f"v_mfma_f32_16x16x32_bf16 {vr(144+4*j,4)}, {vr(160+(n&1)*16+4*j,4)}, {vr(32+4*n,4)}, {'0' if n == 0 else vr(144+4*j,4)}"),
         before=bef, after=aft6, preissued=True)
stamp("p6mm")
vm.wait("gb")
for i in range(8): a(f"v_lshlrev_b32 v{32+2*i}, 16, v{8+i}\nv_and_b32 v{33+2*i}, 0xffff0000, v{8+i}")
for i in range(8): a(f"v_pk_fma_f32 {vr(32+2*i,2)}, {vr(144+2*i,2)}, {vr(216+2*i,2)}, {vr(32+2*i,2)}")
for i in range(8): a(f"v_cvt_pk_bf16_f32 v{48+i}, v{32+2*i}, v{33+2*i}")
for p in range(2): a(f"v_permlane16_swap_b32 v{48+4*p}, v{50+4*p}\nv_permlane16_swap_b32 v{49+4*p}, v{51+4*p}")
srd(R1, P_OUT, 2048 * 1024, "s55")
a(f"v_lshlrev_b32 v4, 10, v1\nv_and_b32 v5, 1, v2\nv_lshl_add_u32 v4, v5, 5, v4\nv_lshrrev_b32 v5, 1, v2\nv_lshl_add_u32 v4, v5, 4, v4\ns_lshl_b32 s3, {sCB}, 7")
for p in range(2): a(f"buffer_store_dwordx4 {vr(48+4*p,4)}, v4, {R1}, s3 offen offset:{p*64}")
if STAMPS:
    a("s_waitcnt vmcnt(0)")
    stamp("end")
    for i in range(22): a(f"v_writelane_b32 v32, s{80+i}, {i}")
    a(f"s_lshl_b32 s3, s2, 2\ns_add_u32 s3, s3, {sW}\ns_lshl_b32 s3, s3, 7\ns_add_u32 s3, s3, {WS_STAMP}\nv_lshlrev_b32 v4, 2, v0\ns_mov_b64 exec, 0xffffffff\nbuffer_store_dword v32, v4, {WS}, s3 offen")
a("s_endpgm")
a("L_pwait:")
poll(f"buffer_load_dword v201, v196, {WS}, s38 offen sc1", "v_cmp_gt_u32 vcc, 32, v201", "15")
a("s_branch L_pok")
a(f"{Lfb}:")
a(f"""
v_lshrrev_b32 v4, 5, v0
v_mul_u32_u24 v4, 272, v4
v_and_b32 v5, 31, v0
v_lshl_add_u32 v27, v5, 4, v4
v_mov_b32 v4, 0xff800000
v_mov_b32 v5, 0xff800000
s_mov_b32 s64, {WS_KV}
L_fb1:
buffer_load_dwordx4 {Kb(0)}, v3, {WS}, s64 offen offset:1088 sc1
s_waitcnt vmcnt(0)
""")
for e in range(2): a(f"v_mfma_f32_32x32x16_bf16 {vr(32+16*e,16)}, {Kb(0)}, {Q(e)}, 0")
for e in range(2): rowmax(32 + 16*e, 4 + e, False)
a(f"s_add_u32 s64, s64, {REC}\ns_cmp_lt_u32 s64, {WS_KV + 64*REC}\ns_cbranch_scc1 L_fb1")
for e in range(2): negbcast(4 + e, e)
for i in range(32): a(f"v_mov_b32 v{80+i}, 0")
a(f"""
s_mov_b32 s64, {WS_KV}
L_fb2:
buffer_load_dwordx4 {Kb(0)}, v3, {WS}, s64 offen offset:1088 sc1
buffer_load_dwordx4 {Vb(0,0)}, v27, {WS}, s64 offen sc1
buffer_load_dwordx4 {Vb(0,1)}, v27, {WS}, s64 offen offset:544 sc1
s_waitcnt vmcnt(0)
""")
for e in range(2): a(f"v_mfma_f32_32x32x16_bf16 {vr(32+16*e,16)}, {Kb(0)}, {Q(e)}, {vr(C(e),16)}")
for i in range(32): a(f"v_exp_f32 v{32+i}, v{32+i}")
for e in range(2):
    for m in range(2): a(f"v_smfmac_f32_32x32x32_bf16 {vr(O(e),16)}, {Vb(0,m)}, {vr(32+16*e+8*m,8)}, v30")
a(f"s_add_u32 s64, s64, {REC}\ns_cmp_lt_u32 s64, {WS_KV + 64*REC}\ns_cbranch_scc1 L_fb2")
getl()
a(f"s_branch {Lok}\nL_end:\ns_endpgm")

body = a.finish()
head = open("cdna_kernels/" + NAME + ".s.ref").read().split("; Override launch")[0]
src = head + f"""; One persistent launch: 256 workgroups (32 row blocks x 8 column blocks), 4 waves each; generated by gen/gen.py.
; @launch grid=(256,1,1) block=(256,1,1) lds={LDS_BYTES}
.amdgcn_target "amdgcn-amd-amdhsa--gfx950"
.text
.globl {NAME}_kernel
.p2align 8
.type {NAME}_kernel,@function
{NAME}_kernel:
{body}.section .rodata,"a"
.p2align 6
.amdhsa_kernel {NAME}_kernel
  .amdhsa_next_free_vgpr 512
  .amdhsa_next_free_sgpr 102
  .amdhsa_accum_offset 256
  .amdhsa_group_segment_fixed_size 0
  .amdhsa_kernarg_size 120
  .amdhsa_user_sgpr_count 2
  .amdhsa_user_sgpr_kernarg_segment_ptr 1
  .amdhsa_system_sgpr_workgroup_id_x 1
.end_amdhsa_kernel
"""
out = [x for x in sys.argv[1:] if not x.startswith("--")]
open(out[0] if out else "cdna_kernels/" + NAME + ".s", "w").write(src)
if STAMPS: open("stamps.txt", "w").write("\n".join(stamp_names))
print("instructions:", sum(1 for k, _ in a.items if k == "ins"), "hazard nops:", a.nops, file=sys.stderr)
```

```python
import sys, struct, math
from asmlib import Asm

NAME = "adaLN_cond__grouped_kv_mqa__mixer_gmlp__prompt"
STAMPS = "--stamps" in sys.argv or "--cyc" in sys.argv
CYC = "--cyc" in sys.argv
FORCE_SLOW = "--slow" in sys.argv
PADZERO = "--nopadzero" not in sys.argv
XP = [x[5:] for x in sys.argv if x.startswith("--xp=")]
FORCE_FB = "--fallback" in sys.argv

def fbits(x): return "0x%08x" % struct.unpack("<I", struct.pack("<f", x))[0]

F_HOP, F_B, F_A3, F_P, F_E = 0, 16384, 20480, 24576, 32768
WS_MOD, WS_MODT, WS_C12, WS_EPOCH, WS_KV = 0x30000, 0x33000, 0x36000, 0x3A000, 0x40000
WS_ST1, WS_ST2 = 0x70000, 0x90000
WS_O, WS_Y, WS_Z2, WS_U, WS_STAMP, WS_SIZE = 0x100000, 0x300000, 0x500000, 0x900000, 0xD00000, 0x1200000
WS_WOF, WS_WOUTF, WS_DUMMY, WS_WINF = 0xD80000, 0xE00000, 0xF00000, 0x1000000
REC = 2112
L_G1, L_OP2 = 0, 16384
L_KV = 28672
L_WQ, L_WKV, L_G0, L_SILU, L_PAR = 28672, 94208, 110592, 126976, 128000
L_RING, L_SM = 0, 158720
L_WO = 0
SLOT = 7168
def slotA(i): return 65536 + SLOT * i
def slotB(i): return SLOT * i
def slot_z2(T): return slotA(T) if T < 13 else slotB(T - 13)
def slot_z1(T): return slotB(3 + T) if T < 4 else slotA(T - 4)
L_WOUT, L_RED = 0, 77824
LDS_BYTES = 163840
R0, WS, R1, R2, R3 = "s[4:7]", "s[8:11]", "s[12:15]", "s[56:59]", "s[60:63]"
P_X, P_WQ, P_WK, P_WV, P_WO, P_WIN, P_WSP, P_BSP, P_WOUT, P_C, P_WMOD, P_OUT, P_DBG, P_WS = 16, 18, 20, 22, 24, 28, 30, 32, 34, 36, 38, 40, 42, 44
sRB, sCB, sW, sXCC, sFAST, sIDX, sXCD, sKVW, sGRP = "s46", "s47", "s48", "s49", "s50", "s51", "s52", "s53", "s54"
sEP, sTAG = "s42", "s43"
SPIN = 1 << 17
OOB = 0x7fff0000

a = Asm()
def vr(b, n): return f"v[{b}:{b+n-1}]"
def ar(b, n): return f"a[{b}:{b+n-1}]"

class VM:
    def __init__(s): s.n = 0; s.tags = {}
    def op(s, text, tag=None):
        a(text); s.n += 1
        if tag: s.tags[tag] = s.n
    def tag(s, t): s.tags[t] = s.n
    def wait(s, t):
        k = s.n - s.tags[t]
        if k < 63: a(f"s_waitcnt vmcnt({k})")
    def drain(s): a("s_waitcnt vmcnt(0)")
vm = VM()

def srd(q, ptr, size, off=None):
    b = int(q[2:q.index(":")])
    if off is None:
        a(f"s_mov_b32 s{b}, s{ptr}\ns_mov_b32 s{b+1}, s{ptr+1}\ns_mov_b32 s{b+2}, {size}")
    else:
        a(f"s_add_u32 s{b}, s{ptr}, {off}\ns_addc_u32 s{b+1}, s{ptr+1}, 0\ns_sub_u32 s{b+2}, {size}, {off}")
    a(f"s_mov_b32 s{b+3}, 0x20000")

nstamp = [0]
stamp_names = []
def stamp(name):
    if not STAMPS: return
    if "dbg" in XP and name not in ("start", "xin", "barP", "barB", "kv0", "attn", "C", "D", "z2mm", "zpub", "E", "p5mm", "upub", "F", "p6mm", "end"): return
    if "tst" in XP and name in ("xin", "ln1", "h", "kv", "q", "p3mm", "p3ep", "y_iss", "st1", "init", "u_iss", "S", "opub", "ypub", "spub"): return
    i = nstamp[0]; nstamp[0] += 1; stamp_names.append(name)
    if "clk" in XP and i >= 30: return
    assert i < 43
    a("s_memrealtime s[78:79]\ns_waitcnt lgkmcnt(0)" if not CYC else "s_memtime s[78:79]\ns_waitcnt lgkmcnt(0)\ns_lshr_b32 s78, s78, 2")
    if i == 0: a("s_mov_b32 s80, s78")
    elif i & 1: a(f"s_sub_u32 s{81 + i//2}, s78, s80")
    else: a(f"s_sub_u32 s78, s78, s80\ns_pack_ll_b32_b16 s{80 + i//2}, s{80 + i//2}, s78")

def poll(load, cond, mask):
    L, X = a.label("poll"), a.label("pollx")
    a(f"s_mov_b64 exec, {mask}\ns_mov_b32 s3, 0\n{L}:\ns_add_u32 s3, s3, 1\ns_cmp_gt_u32 s3, {SPIN}\ns_cbranch_scc1 {X}")
    a(load); a("s_waitcnt vmcnt(0)"); a(cond)
    a(f"s_cbranch_vccnz {L}\n{X}:\ns_mov_b64 exec, -1")

def both(fn):
    S, E = a.label("slow"), a.label("pub")
    n0 = vm.n
    a(f"s_cmp_eq_u32 {sFAST}, 0\ns_cbranch_scc1 {S}")
    fn(""); n1 = vm.n
    a(f"s_branch {E}\n{S}:"); vm.n = n0
    fn(" sc1"); assert vm.n == n1
    a(f"{E}:")

def hop_signal(phase, tag=None):
    a(f"v_mov_b32 v4, {phase}\ns_lshl_b32 s3, {sCB}, 2\ns_add_u32 s3, s3, {sGRP}\nv_mov_b32 v5, s3")
    if tag: vm.wait(tag)
    else: a("s_waitcnt vmcnt(0)")
    a("s_mov_b64 exec, 1")
    both(lambda sc: vm.op(f"buffer_store_dword v4, v5, {WS}, 0 offen{sc}"))
    a("s_mov_b64 exec, -1")

def hop_wait(phase):
    a("v_lshlrev_b32 v5, 2, v0")
    poll(f"buffer_load_dword v4, v5, {WS}, {sGRP} offen sc1", f"v_cmp_gt_u32 vcc, {phase}, v4", "0xff")

def xgroup_sum(v, t):
    a(f"v_mov_b32 v{t}, v{v}\nv_permlane32_swap_b32 v{v}, v{t}\nv_add_f32 v{v}, v{v}, v{t}")
    a(f"v_mov_b32 v{t}, v{v}\nv_permlane16_swap_b32 v{v}, v{t}\nv_add_f32 v{v}, v{v}, v{t}")

def pipeline(nsteps, reads, compute, nreads, pre=1):
    for T in range(min(pre, nsteps)): reads(T)
    for T in range(nsteps):
        if T + pre < nsteps: reads(T + pre)
        left = min(pre, nsteps - 1 - T) * nreads
        a(f"s_waitcnt lgkmcnt({min(left, 15)})")
        compute(T)

def fragloop(nsteps, nf, read, mfma, before=None, after=None, nper=1, preissued=False):
    if not preissued:
        for j in range(nf): read(0, j)
    for T in range(nsteps):
        if before: before(T)
        for j in range(nf):
            left = (nf - 1 if T + 1 < nsteps else nf - 1 - j) * nper
            a(f"s_waitcnt lgkmcnt({min(left, 15)})")
            mfma(T, j)
            if T + 1 < nsteps: read(T + 1, j)
            if after: after(T, j)

def dppsum(regs, steps):
    for s in steps:
        for r in regs: a(f"v_add_f32_dpp v{r}, v{r}, v{r} row_ror:{s} row_mask:0xf bank_mask:0xf")
def finish_stats(rows, n):
    for s1, s2, mu, r, sd in rows: a(f"v_mul_f32 v{mu}, {fbits(-1.0/n)}, v{s1}\nv_mul_f32 v{s2}, {fbits(1.0/n)}, v{s2}")
    for s1, s2, mu, r, sd in rows: a(f"v_fma_f32 v{s2}, -v{mu}, v{mu}, v{s2}")
    for s1, s2, mu, r, sd in rows: a(f"v_max_f32 v{s2}, 0, v{s2}")
    for s1, s2, mu, r, sd in rows: a(f"v_add_f32 v{s2}, {fbits(1e-5)}, v{s2}")
    for s1, s2, mu, r, sd in rows: a(f"v_rsq_f32 v{r}, v{s2}")
    for s1, s2, mu, r, sd in rows:
        if sd is not None: a(f"v_mul_f32 v{sd}, v{s2}, v{r}")

a(f"""
s_cmp_ge_u32 s2, 256
s_cbranch_scc1 L_end
s_load_dwordx16 s[16:31], s[0:1], 0
s_load_dwordx8 s[32:39], s[0:1], 64
s_load_dwordx4 s[40:43], s[0:1], 96
s_load_dwordx2 s[44:45], s[0:1], 112
v_lshrrev_b32 v4, 6, v0
v_and_b32 v0, 63, v0
v_readfirstlane_b32 {sW}, v4
v_and_b32 v1, 15, v0
v_lshrrev_b32 v2, 4, v0
v_lshlrev_b32 v3, 4, v0
s_and_b32 {sXCD}, s2, 7
s_lshr_b32 {sIDX}, s2, 3
s_and_b32 {sCB}, {sIDX}, 7
s_lshr_b32 s3, {sIDX}, 3
s_lshl_b32 {sRB}, {sXCD}, 2
s_add_u32 {sRB}, {sRB}, s3
s_lshr_b32 {sKVW}, {sCB}, 1
s_getreg_b32 {sXCC}, hwreg(HW_REG_XCC_ID, 0, 4)
s_and_b32 {sXCC}, {sXCC}, 7
s_lshl_b32 {sGRP}, {sRB}, 2
s_add_u32 {sGRP}, {sGRP}, {sW}
s_lshl_b32 s55, {sGRP}, 14
s_lshl_b32 {sGRP}, {sGRP}, 7
""")
a(f"""
v_lshrrev_b32 v4, 1, v0
v_and_b32 v5, 19, v4
v_bfe_u32 v6, v4, 2, 1
v_lshl_or_b32 v5, v6, 3, v5
v_bfe_u32 v6, v4, 3, 1
v_lshl_or_b32 v16, v6, 2, v5
v_lshrrev_b32 v4, 2, v1
v_and_b32 v5, 1, v2
v_lshl_add_u32 v4, v5, 2, v4
v_lshrrev_b32 v5, 1, v2
v_lshl_add_u32 v4, v5, 4, v4
v_lshlrev_b32 v4, 5, v4
v_and_b32 v5, 3, v1
v_lshl_add_u32 v17, v5, 3, v4
v_and_b32 v18, 1, v0
v_lshlrev_b32 v18, 4, v18
s_waitcnt lgkmcnt(0)
""")
if "dbg" in XP: a("s_mov_b64 s[96:97], s[0:1]")
stamp("start")
srd(WS, P_WS, hex(WS_SIZE))
a(f"s_load_dword {sEP}, s[{P_WS}:{P_WS+1}], {WS_EPOCH}")

def gemv_chain(lbase, trb, opaddr):
    a(f"v_add_u32 v7, {lbase}, v{trb}")
    def rd(T):
        b = 128 + (T % 4) * 8
        a(f"ds_read_b64_tr_b16 {vr(b,2)}, v7 offset:{T*1024}\nds_read_b64_tr_b16 {vr(b+2,2)}, v7 offset:{T*1024+256}")
        a(f"ds_read_b128 {vr(b+4,4)}, v{opaddr} offset:{T*64}")
    def cp(T):
        b = 128 + (T % 4) * 8
        a(f"v_mfma_f32_16x16x32_bf16 v[32:35], {vr(b,4)}, {vr(b+4,4)}, {'0' if T == 0 else 'v[32:35]'}")
    pipeline(16, rd, cp, 3, pre=3)

def round_bf16(regs):
    for i in range(0, len(regs), 2):
        x, y = regs[i], regs[i+1]
        a(f"v_cvt_pk_bf16_f32 v{y}, v{x}, v{y}\nv_lshlrev_b32 v{x}, 16, v{y}\nv_and_b32 v{y}, 0xffff0000, v{y}")

def mod_issue(creg):
    srd(R0, P_C, 1024)
    a(f"buffer_load_dwordx4 {vr(creg,4)}, v3, {R0}, 0 offen\ns_lshl_b32 s66, s68, 5\ns_movk_i32 s3, 6144\nv_mad_u32_u24 v6, v16, s3, v18")
    for n in range(16):
        a(f"s_mov_b32 m0, {L_G0 + n*1024}\nbuffer_load_dwordx4 v6, {R2}, s66 offen lds")
        if n < 15: a("s_add_u32 s66, s66, 196608")
def mod_silu(creg):
    for i in range(4): a(f"v_lshlrev_b32 v{40+2*i}, 16, v{creg+i}\nv_and_b32 v{41+2*i}, 0xffff0000, v{creg+i}")
    for i in range(8): a(f"v_mul_f32 v{48+i}, {fbits(-math.log2(math.e))}, v{40+i}")
    for i in range(8): a(f"v_exp_f32 v{48+i}, v{48+i}")
    for i in range(8): a(f"v_add_f32 v{48+i}, 1.0, v{48+i}")
    for i in range(8): a(f"v_rcp_f32 v{48+i}, v{48+i}")
    for i in range(8): a(f"v_mul_f32 v{40+i}, v{40+i}, v{48+i}")
    for i in range(4): a(f"v_cvt_pk_bf16_f32 v{32+i}, v{40+2*i}, v{41+2*i}")
    a(f"v_add_u32 v6, {L_SILU}, v3\nds_write_b128 v6, v[32:35]\nv_lshlrev_b32 v5, 4, v2\nv_add_u32 v6, {L_SILU}, v5")

Lw1, Lw2, Lw3, Lxi, Lxw, Lnz = (a.label(x) for x in ("w1", "w2", "w3", "xi", "xw", "noz"))
srd(R1, P_X, 2048 * 1024, "s55")
srd(R2, P_WMOD, 512 * 6144)
a(f"s_and_b32 s3, {sCB}, 1\ns_cselect_b32 s64, s{P_WV}, s{P_WK}\ns_cselect_b32 s65, s{P_WV+1}, s{P_WK+1}")
srd(R3, 64, 16384)
a(f"""
v_lshrrev_b32 v4, 3, v0
v_and_b32 v5, 7, v0
v_xor_b32 v5, v5, v2
v_lshlrev_b32 v5, 4, v5
v_lshl_add_u32 v22, v4, 10, v5
v_xor_b32 v23, 64, v22
v_add_u32 v23, {8192 - 1024}, v23
s_lshl_b32 s67, {sW}, 14
s_add_u32 s67, s67, {L_WQ}
v_lshrrev_b32 v4, 2, v0
v_and_b32 v5, 3, v0
s_cmp_eq_u32 {sW}, 1
s_cbranch_scc1 {Lw1}
s_cmp_eq_u32 {sW}, 2
s_cbranch_scc1 {Lw2}
s_cmp_eq_u32 {sW}, 3
s_cbranch_scc1 {Lw3}
""")
def xstage():
    for T2 in range(8):
        a(f"s_add_u32 m0, s67, {T2*2048}\ns_movk_i32 s3, {T2*128}\nbuffer_load_dwordx4 v22, {R1}, s3 offen lds\nbuffer_load_dwordx4 v23, {R1}, s3 offen offset:1024 lds")
a(f"""
v_and_b32 v6, 1, v5
v_lshlrev_b32 v6, 7, v6
v_lshrrev_b32 v5, 1, v5
v_mul_u32_u24 v5, 3072, v5
s_movk_i32 s3, 6144
v_mad_u32_u24 v4, v4, s3, v6
v_add_u32 v4, v4, v5
s_mul_i32 s64, {sIDX}, {16*6144}
s_lshl_b32 s3, {sXCD}, 8
s_add_u32 s64, s64, s3
buffer_load_dword v24, v4, {R2}, s64 offen
s_cmp_lt_u32 {sIDX}, 16
s_cbranch_scc0 {Lxi}
s_lshl_b32 s68, {sXCD}, 3
s_add_u32 s68, s68, {sIDX}
s_add_u32 s65, s68, 88
s_cmp_lt_u32 {sIDX}, 8
s_cselect_b32 s68, s68, s65
""")
mod_issue(32)
a(f"""
s_cmp_lt_u32 {sIDX}, 8
s_cbranch_scc0 {Lnz}
v_mov_b32 v36, 0
v_mov_b32 v37, 0
v_mov_b32 v38, 0
v_mov_b32 v39, 0
s_mul_i32 s3, s68, 3072
buffer_store_dwordx4 v[36:39], v3, {WS}, s3 offen sc1
buffer_store_dwordx4 v[36:39], v3, {WS}, s3 offen offset:1024 sc1
buffer_store_dwordx4 v[36:39], v3, {WS}, s3 offen offset:2048 sc1
{Lnz}:
""")
xstage()
a("s_waitcnt vmcnt(32)")
mod_silu(32)
a("s_waitcnt vmcnt(16) lgkmcnt(0)")
gemv_chain(L_G0, 17, 6)
round_bf16([32, 33, 34, 35])
Lno1 = a.label("no1")
a(f"s_lshr_b32 s65, s68, 5\ns_bitcmp1_b32 0x12, s65\ns_cbranch_scc0 {Lno1}")
for i in range(4): a(f"v_add_f32 v{32+i}, 1.0, v{32+i}")
round_bf16([32, 33, 34, 35])
a(f"""
{Lno1}:
s_lshl_b32 s3, s68, 6
s_add_u32 s3, s3, {WS_MOD}
s_mov_b32 exec_lo, 0x00010001
s_mov_b32 exec_hi, 0x00010001
s_add_u32 s65, {sEP}, 1
s_and_b32 s65, s65, 0xffff
v_or_b32 v36, s65, v32
v_or_b32 v37, s65, v33
v_or_b32 v38, s65, v34
v_or_b32 v39, s65, v35
s_add_u32 s65, s3, {WS_MODT - WS_MOD}
buffer_store_dwordx4 v[36:39], v5, {WS}, s65 offen sc1
buffer_store_dwordx4 v[32:35], v5, {WS}, s3 offen sc1
s_mov_b64 exec, -1
s_waitcnt vmcnt(2)
s_branch {Lxw}
{Lw1}:
""")
a(f"s_lshl_b32 s64, {sRB}, 16\ns_lshl_b32 s3, {sCB}, 13\ns_add_u32 s64, s64, s3")
srd(R0, P_X, 2048 * 1024)
a(f"v_lshlrev_b32 v4, 7, v0\nbuffer_load_dword v24, v4, {R0}, s64 offen\ns_branch {Lxi}\n{Lw2}:")
a(f"s_lshr_b32 s3, {sIDX}, 1\ns_lshl_b32 s3, s3, 10\nv_and_b32 v4, 7, v0\nv_lshlrev_b32 v4, 7, v4\nbuffer_load_dword v24, v4, {R3}, s3 offen\ns_branch {Lxi}\n{Lw3}:")
a(f"""
s_getpc_b64 s[64:65]
L_pc:
s_lshl_b32 s3, {sIDX}, 4
v_add_u32 v6, s3, v1
v_lshlrev_b32 v6, 7, v6
v_min_u32 v6, L_end-L_pc-4, v6
v_mov_b32 v7, s65
v_add_co_u32 v6, vcc, s64, v6
v_addc_co_u32 v7, vcc, 0, v7, vcc
s_mov_b64 exec, 0xffff
global_load_dword v24, v[6:7], off
s_mov_b64 exec, -1
{Lxi}:
""")
xstage()
a(f"s_waitcnt vmcnt(0)\n{Lxw}:")
stamp("xin")
a(f"""
v_lshrrev_b32 v4, 1, v1
v_xor_b32 v4, v4, v2
v_lshlrev_b32 v4, 4, v4
v_lshl_add_u32 v4, v1, 7, v4
v_add_u32 v4, s67, v4
v_xor_b32 v5, 64, v4
s_waitcnt lgkmcnt(0)
s_add_u32 {sEP}, {sEP}, 1
s_and_b32 {sTAG}, {sEP}, 0xffff
""")
for T in range(16): a(f"ds_read_b128 {vr(64+4*T,4)}, v{4 + (T & 1)} offset:{(T >> 1)*2048}")
a(f"s_lshl_b32 s66, {sCB}, 7")
srd(R0, P_WQ, 512 * 1024, "s66")
srd(R1, P_WIN, 512 * 3584)
a(f"""
v_lshrrev_b32 v4, 3, v0
v_bfe_u32 v5, v0, 1, 2
v_bfe_u32 v6, v4, 1, 1
v_xor_b32 v5, v5, v6
v_lshlrev_b32 v5, 5, v5
v_lshl_add_u32 v5, v4, 10, v5
v_add_u32 v19, v5, v18
v_xor_b32 v20, 64, v19
v_lshl_add_u32 v21, v16, 5, v18
s_lshl_b32 s66, {sW}, 17
""")
def stage(k):
    if k >= 4:
        for n in range(4):
            a(f"s_mov_b32 m0, s67\ns_add_u32 s67, s67, 1024\nbuffer_load_dwordx4 v{19 + (n & 1)}, {R0}, s66 offen lds\ns_add_u32 s66, s66, 8192")
        return
    L1, L2, Le = a.label("st1"), a.label("st2"), a.label("ste")
    a(f"s_cmp_eq_u32 {sW}, 1\ns_cbranch_scc0 {L1 if k == 0 else Le}")
    for n in range(4*k, 4*k + 4): a(f"s_mov_b32 m0, {L_WKV + n*1024}\ns_mov_b32 s3, {n*1024}\nbuffer_load_dwordx4 v21, {R3}, s3 offen lds")
    if k == 0:
        a(f"""
s_branch {Le}
{L1}:
s_cmp_eq_u32 {sW}, 2
s_cbranch_scc0 {L2}
s_and_b32 s3, {sRB}, 3
s_lshl_b32 s3, s3, 17
v_lshlrev_b32 v4, 10, v0
buffer_load_dword v25, v4, {R0}, s3 offen
s_add_u32 s3, s3, 65536
buffer_load_dword v26, v4, {R0}, s3 offen
s_branch {Le}
{L2}:
s_cmp_eq_u32 {sW}, 3
s_cbranch_scc0 {Le}
v_lshrrev_b32 v4, 2, v0
v_and_b32 v5, 3, v0
v_lshlrev_b32 v6, 7, v5
s_movk_i32 s3, 3584
v_mad_u32_u24 v6, v4, s3, v6
s_mul_i32 s64, {sXCD}, 448
s_andn2_b32 s64, s64, 127
s_mul_i32 s3, {sIDX}, {16*3584}
s_add_u32 s64, s64, s3
buffer_load_dword v26, v6, {R1}, s64 offen
v_lshrrev_b32 v6, 1, v5
v_mul_u32_u24 v6, 3072, v6
s_movk_i32 s3, 6144
v_mad_u32_u24 v6, v4, s3, v6
s_mul_i32 s64, {sIDX}, {16*6144}
s_lshl_b32 s3, {sXCD}, 7
s_add_u32 s64, s64, s3
s_add_u32 s64, s64, 2048
buffer_load_dword v25, v6, {R2}, s64 offen
""")
    a(f"{Le}:")
for i in range(64):
    if i % 4 == 0: a(f"s_waitcnt lgkmcnt({15 - i // 4})")
    a(f"v_lshlrev_b32 v{128+2*i}, 16, v{64+i}\nv_and_b32 v{129+2*i}, 0xffff0000, v{64+i}")
    if i % 16 == 15: stage(i // 16)
for k in range(4): a(f"v_pk_add_f32 {vr(32+2*k,2)}, {vr(128+4*k,2)}, {vr(130+4*k,2)}")
for k in range(4): a(f"v_pk_mul_f32 {vr(40+2*k,2)}, {vr(128+2*k,2)}, {vr(128+2*k,2)}")
for i in range(4, 64):
    if i >= 8: a(f"v_pk_add_f32 {vr(32+2*(i%4),2)}, {vr(32+2*(i%4),2)}, {vr(128+2*i,2)}")
    a(f"v_pk_fma_f32 {vr(40+2*(i%4),2)}, {vr(128+2*i,2)}, {vr(128+2*i,2)}, {vr(40+2*(i%4),2)}")
    if i % 16 == 15: stage(4 + i // 16)
for b in (32, 40):
    a(f"v_pk_add_f32 {vr(b,2)}, {vr(b,2)}, {vr(b+2,2)}\nv_pk_add_f32 {vr(b+4,2)}, {vr(b+4,2)}, {vr(b+6,2)}\nv_pk_add_f32 {vr(b,2)}, {vr(b,2)}, {vr(b+4,2)}\nv_add_f32 v{b}, v{b}, v{b+1}")
xgroup_sum(32, 33); xgroup_sum(40, 41)
finish_stats([(32, 40, 34, 36, None)], 512)
a("v_mul_f32 v34, v34, v36")
for i in range(64): a(f"v_pk_fma_f32 {vr(128+2*i,2)}, {vr(128+2*i,2)}, v[36:37], v[34:35] op_sel_hi:[1,0,0]")
stamp("ln1")
def tagcheck(regs):
    out = [f"v_xor_b32 v{r}, {sTAG}, v{r}" for r in regs]
    out.append(f"v_or3_b32 v4, v{regs[0]}, v{regs[1]}, v{regs[2]}")
    for i in range(3, len(regs) - 1, 2): out.append(f"v_or3_b32 v4, v4, v{regs[i]}, v{regs[i+1]}")
    out.append(f"v_or_b32 v4, v4, v{regs[-1]}\nv_and_b32 v4, 0xffff, v4\nv_cmp_ne_u32 vcc, 0, v4")
    return "\n".join(out)
a(f"s_lshl_b32 s64, {sW}, 10\ns_add_u32 s65, s64, {L_PAR}\ns_add_u32 s64, s64, {WS_MODT}\nv_add_u32 v5, s65, v3")
poll(f"buffer_load_dwordx4 v[32:35], v3, {WS}, s64 offen sc1", tagcheck([32, 33, 34, 35]), "-1")
a("ds_write_b128 v5, v[32:35]\ns_waitcnt lgkmcnt(0)\ns_barrier")
stamp("barP")
LnM, LnC = a.label("nM"), a.label("nC")
a(f"""
s_sub_u32 s69, {sW}, {sKVW}
s_and_b32 s69, s69, 3
s_and_b32 s3, {sIDX}, 24
s_cmp_eq_u32 s3, 16
s_cselect_b32 s70, 1, 9
s_cmp_lt_u32 {sIDX}, 14
s_cselect_b32 s71, 2, 9
s_cmp_eq_u32 s69, s70
s_cbranch_scc0 {LnM}
s_lshl_b32 s68, {sXCD}, 2
s_add_u32 s68, s68, {sIDX}
s_add_u32 s65, s68, 140
s_add_u32 s68, s68, 48
s_cmp_lt_u32 {sIDX}, 20
s_cselect_b32 s68, s68, s65
""")
mod_issue(8)
a(f"{LnM}:\ns_cmp_eq_u32 s69, s71\ns_cbranch_scc0 {LnC}\ns_mul_i32 s66, {sXCD}, 14\ns_add_u32 s66, s66, {sIDX}\ns_lshl_b32 s66, s66, 5\ns_movk_i32 s3, 3584\nv_mad_u32_u24 v6, v16, s3, v18")
for n in range(16):
    a(f"s_mov_b32 m0, {L_G1 + n*1024}\nbuffer_load_dwordx4 v6, {R1}, s66 offen lds")
    if n < 15: a("s_add_u32 s66, s66, 114688")
a(f"{LnC}:\nv_mov_b32 v28, v17")
a(f"v_lshlrev_b32 v19, 5, v2\nv_add_u32 v19, {L_PAR}, v19")
def rd(T):
    b = 32 + (T & 1) * 16
    for k, off in enumerate((2048, 2064, 0, 16)): a(f"ds_read_b128 {vr(b+4*k,4)}, v19 offset:{off + T*128}")
def cp(T):
    b = 32 + (T & 1) * 16
    for k in range(4): a(f"v_pk_fma_f32 {vr(128+8*T+2*k,2)}, {vr(128+8*T+2*k,2)}, {vr(b+2*k,2)}, {vr(b+8+2*k,2)}")
    for k in range(4): a(f"v_cvt_pk_bf16_f32 v{64+4*T+k}, v{128+8*T+2*k}, v{129+8*T+2*k}")
pipeline(16, rd, cp, 4)
stamp("h")
Lnkv, LV, Lst, Lkve = a.label("nokv"), a.label("isV"), a.label("kvst"), a.label("kve")
a(f"s_cmp_eq_u32 {sW}, {sKVW}\ns_cbranch_scc0 {Lnkv}")
a(f"""
v_add_u32 v19, {L_WKV}, v17
s_lshl_b32 s64, {sRB}, 1
s_lshr_b32 s3, {sW}, 1
s_add_u32 s64, s64, s3
s_mul_i32 s64, s64, {REC}
s_add_u32 s64, s64, {WS_KV}
s_and_b32 s65, {sW}, 1
v_lshrrev_b32 v20, 5, v0
s_bitcmp1_b32 {sCB}, 0
s_cbranch_scc1 {LV}
""")
def kvchain(isV):
    def rd(T):
        b = 128 + (T % 4) * 4
        a(f"ds_read_b64_tr_b16 {vr(b,2)}, v19 offset:{T*1024}\nds_read_b64_tr_b16 {vr(b+2,2)}, v19 offset:{T*1024+256}")
    def cp(T):
        b = 128 + (T % 4) * 4
        A, B = (vr(64+4*T,4), vr(b,4)) if isV else (vr(b,4), vr(64+4*T,4))
        a(f"v_mfma_f32_16x16x32_bf16 v[32:35], {A}, {B}, {'0' if T == 0 else 'v[32:35]'}")
    pipeline(16, rd, cp, 2, pre=3)
    a("""
v_cvt_pk_bf16_f32 v36, v32, v33
v_cvt_pk_bf16_f32 v37, v34, v35
v_mov_b32 v38, v36
v_mov_b32 v39, v37
v_permlane16_swap_b32 v36, v38
v_permlane16_swap_b32 v37, v39
""")
kvchain(False)
a(f"""
v_lshlrev_b32 v20, 9, v20
v_lshl_add_u32 v20, v1, 4, v20
s_lshl_b32 s65, s65, 8
s_add_u32 s64, s64, s65
s_add_u32 s64, s64, 1088
s_mov_b32 exec_lo, 0x0000ffff
s_mov_b32 exec_hi, 0x0000ffff
s_branch {Lst}
{LV}:
""")
kvchain(True)
a(f"""
v_mul_u32_u24 v20, 272, v20
v_and_b32 v4, 31, v0
v_lshl_add_u32 v20, v4, 4, v20
s_mul_i32 s65, s65, 544
s_add_u32 s64, s64, s65
s_mov_b32 exec_lo, 0xffff0000
s_mov_b32 exec_hi, 0xffff0000
v_mov_b32 v36, 0x3f803f80
v_mov_b32 v37, 0x3f803f80
v_mov_b32 v38, 0x3f803f80
v_mov_b32 v39, 0x3f803f80
s_mov_b32 exec_lo, 0x0001ffff
s_mov_b32 exec_hi, 0x0001ffff
{Lst}:
buffer_store_dwordx4 v[36:39], v20, {WS}, s64 offen sc1
s_mov_b64 exec, 1
s_lshl_b32 s3, {sXCC}, 2
s_lshl_b32 s3, 1, s3
v_mov_b32 v4, s3
s_lshl_b32 s3, {sRB}, 7
s_add_u32 s3, s3, {F_B}
v_mov_b32 v5, s3
s_waitcnt vmcnt(0)
buffer_atomic_add v4, v5, {WS}, 0 offen sc1
s_mov_b64 exec, -1
s_branch {Lkve}
{Lnkv}:
""")
a(f"{Lkve}:")
stamp("kv")
def trbase128(dst, rowexpr_v, fexpr_v, lbase):
    a(f"v_and_b32 v6, 3, v1\nv_lshlrev_b32 v6, 3, v6\nv_lshl_add_u32 v6, v{rowexpr_v}, 7, v6\nv_lshl_add_u32 v6, v{fexpr_v}, 5, v6\nv_add_u32 v{dst}, {lbase}, v6")
    for j in range(1, 4): a(f"v_xor_b32 v{dst+j}, {j*32}, v{dst}")
a("v_lshrrev_b32 v4, 2, v1\nv_bfe_u32 v5, v1, 3, 1\nv_and_b32 v7, 1, v2\nv_lshl_or_b32 v5, v7, 1, v5\nv_lshl_add_u32 v4, v2, 3, v4")
trbase128(24, 4, 5, L_WQ)
fragloop(16, 4,
         lambda T, j: a(f"ds_read_b64_tr_b16 {vr(32+(T&1)*16+4*j,2)}, v{24+j} offset:{T*4096}\nds_read_b64_tr_b16 {vr(34+(T&1)*16+4*j,2)}, v{24+j} offset:{T*4096+512}"),
         lambda T, j: a(f"v_mfma_f32_16x16x32_bf16 {vr(128+4*j,4)}, {vr(32+(T&1)*16+4*j,4)}, {vr(64+4*T,4)}, {'0' if T == 0 else vr(128+4*j,4)}"), nper=2)
for i in range(16): a(f"v_mul_f32 v{128+i}, {fbits(0.25*math.log2(math.e))}, v{128+i}")
for i in range(8): a(f"v_cvt_pk_bf16_f32 v{16+i}, v{128+2*i}, v{129+2*i}")
for e in range(2): a(f"v_permlane16_swap_b32 v{16+4*e}, v{18+4*e}\nv_permlane16_swap_b32 v{17+4*e}, v{19+4*e}")
stamp("q")
LnM, Lnc, Lar = a.label("nM2"), a.label("noc12"), a.label("arr")
a(f"s_cmp_eq_u32 s69, s70\ns_cbranch_scc0 {LnM}\ns_waitcnt vmcnt(16)")
mod_silu(8)
a("s_waitcnt vmcnt(0) lgkmcnt(0)")
gemv_chain(L_G0, 28, 6)
round_bf16([32, 33, 34, 35])
a(f"""
s_lshl_b32 s64, s68, 6
s_add_u32 s64, s64, {WS_MOD}
v_mov_b32 v4, v5
s_mov_b32 exec_lo, 0x00010001
s_mov_b32 exec_hi, 0x00010001
s_branch {Lar}
{LnM}:
s_cmp_eq_u32 s69, s71
s_cbranch_scc0 {Lnc}
v_lshlrev_b32 v6, 5, v0
s_mov_b32 s64, {WS_MODT + 3*2048}
""")
poll(f"""buffer_load_dwordx4 v[32:35], v6, {WS}, s64 offen offset:2048 sc1
buffer_load_dwordx4 v[36:39], v6, {WS}, s64 offen offset:2064 sc1
buffer_load_dwordx4 v[40:43], v6, {WS}, s64 offen sc1
buffer_load_dwordx4 v[44:47], v6, {WS}, s64 offen offset:16 sc1""", tagcheck(list(range(32, 48))), "-1")
for i in range(8): a(f"v_cvt_pk_bf16_f32 v{48+i}, v{32+2*i}, v{33+2*i}")
a(f"""
v_add_u32 v4, {L_OP2}, v3
ds_write_b128 v4, v[48:51]
ds_write_b128 v4, v[52:55] offset:1024
v_and_b32 v4, 1, v0
v_lshlrev_b32 v4, 10, v4
v_lshl_add_u32 v6, v2, 4, v4
v_add_u32 v6, {L_OP2}, v6
s_waitcnt lgkmcnt(0)
""")
gemv_chain(L_G1, 28, 6)
a(f"""
s_mul_i32 s64, {sXCD}, 14
s_add_u32 s64, s64, {sIDX}
s_lshl_b32 s64, s64, 6
s_add_u32 s64, s64, {WS_C12}
v_mul_u32_u24 v4, 7168, v1
v_lshl_add_u32 v4, v2, 4, v4
s_mov_b32 exec_lo, 0x00030003
s_mov_b32 exec_hi, 0x00030003
{Lar}:
buffer_store_dwordx4 v[32:35], v4, {WS}, s64 offen sc1
s_mov_b64 exec, 1
s_lshl_b32 s3, {sXCD}, 7
s_add_u32 s3, s3, {F_A3}
v_mov_b32 v4, 1
v_mov_b32 v5, s3
s_waitcnt vmcnt(0)
buffer_atomic_add v4, v5, {WS}, 0 offen sc1
s_mov_b64 exec, -1
{Lnc}:
""")
a(f"""
v_add_u32 v24, {L_KV + 1088}, v3
v_add_u32 v25, {31*REC}, v24
v_add_u32 v26, {31*REC}, v25
v_lshrrev_b32 v4, 5, v0
v_mul_u32_u24 v4, 272, v4
v_and_b32 v5, 31, v0
v_lshl_add_u32 v4, v5, 4, v4
v_add_u32 v27, {L_KV}, v4
v_mov_b32 v4, 0x40000
v_cmp_lt_u32 vcc, {16 if PADZERO else 99}, v5
v_cndmask_b32 v27, v27, v4, vcc
v_add_u32 v28, {31*REC}, v27
v_add_u32 v29, {31*REC}, v28
v_mov_b32 v30, 0xdddd
v_lshrrev_b32 v7, 3, v0
v_and_b32 v6, 7, v0
v_xor_b32 v5, v6, v2
v_lshlrev_b32 v5, 4, v5
v_lshl_add_u32 v168, v7, 12, v5
v_xor_b32 v169, 64, v168
v_add_u32 v169, {0x8000 - 1024}, v169
v_lshrrev_b32 v4, 1, v1
v_xor_b32 v4, v4, v2
v_lshlrev_b32 v4, 4, v4
v_lshl_add_u32 v4, v1, 7, v4
s_mul_i32 s77, {sW}, 12288
v_add_u32 v170, s77, v4
v_xor_b32 v171, 64, v170
v_lshlrev_b32 v4, 10, v1
v_lshl_add_u32 v172, v2, 3, v4
v_mov_b32 v31, {OOB}
v_lshlrev_b32 v4, 7, v6
v_lshl_add_u32 v173, v7, 12, v4
v_lshlrev_b32 v4, 7, v0
v_cmp_gt_u32 vcc, 56, v0
v_cndmask_b32 v174, v31, v4, vcc
v_cmp_gt_u32 vcc, 14, v0
v_cndmask_b32 v175, v31, v4, vcc
v_cmp_gt_u32 vcc, 4, v0
v_cndmask_b32 v196, v31, v4, vcc
v_cmp_gt_u32 vcc, 33, v0
v_cndmask_b32 v197, v31, v4, vcc
v_cmp_eq_u32 vcc, 0, v0
v_cndmask_b32 v198, v31, v4, vcc
v_mov_b32 v199, 1
""")
for i in range(32): a(f"v_mov_b32 v{80+i}, 0")
Lr2, Lr3, Lre, Lrm, Lrr = (a.label(x) for x in ("r2", "r3", "re", "rm", "rr"))
a(f"""
v_lshlrev_b32 v6, 4, v6
v_lshrrev_b32 v4, 2, v1
v_and_b32 v5, 3, v1
v_lshlrev_b32 v5, 3, v5
s_lshl_b32 s68, {sW}, 12
v_add_u32 v5, s68, v5
s_cmp_eq_u32 {sW}, 2
s_cbranch_scc1 {Lr2}
s_cmp_eq_u32 {sW}, 3
s_cbranch_scc1 {Lr3}
s_and_b32 s64, {sRB}, 15
s_mul_i32 s64, s64, 114688
s_lshr_b32 s3, {sRB}, 4
s_mul_i32 s3, s3, 1792
s_add_u32 s64, s64, s3
s_mul_i32 s3, {sCB}, 224
s_add_u32 s64, s64, s3
s_lshl_b32 s3, {sW}, 7
s_add_u32 s64, s64, s3
""")
srd(R2, P_WIN, 512 * 3584, "s64")
a(f"""
s_movk_i32 s3, 3584
v_mad_u32_u24 v176, v7, s3, v6
s_movk_i32 s20, {8*3584}
s_mov_b32 s21, {16*3584}
s_mov_b32 s22, {24*3584}
v_lshl_add_u32 v4, v2, 2, v4
v_lshl_add_u32 v177, v4, 7, v5
v_add_u32 v178, 2048, v177
s_lshl_b32 s36, {sCB}, 5
s_add_u32 s36, s36, {sRB}
s_mul_i32 s36, s36, {SLOT}
s_lshl_b32 s3, {sW}, 12
s_add_u32 s36, s36, s3
s_add_u32 s36, s36, {WS_WINF}
s_mov_b32 s24, s36
s_cmp_eq_u32 {sW}, 0
s_cselect_b32 s37, s36, {WS_SIZE}
s_branch {Lre}
{Lr2}:
s_min_u32 s67, {sRB}, 27
s_mul_i32 s64, s67, 37
s_lshr_b32 s64, s64, 8
s_mul_i32 s3, s64, 7
s_sub_u32 s65, s67, s3
s_mul_i32 s64, s64, 224
s_lshl_b32 s3, s65, 5
s_add_u32 s66, s3, 16
s_cmp_lt_u32 s65, 3
s_cselect_b32 s3, s3, s66
s_cmp_eq_u32 s65, 6
s_cselect_b32 s3, 96, s3
s_cselect_b32 s21, 112, 16
s_lshl_b32 s21, s21, 10
s_add_u32 s22, s21, 8192
s_movk_i32 s20, 8192
s_add_u32 s64, s64, s3
s_lshl_b32 s64, s64, 10
s_lshl_b32 s3, {sCB}, 7
s_add_u32 s64, s64, s3
""")
srd(R2, P_WOUT, 896 * 1024, "s64")
a(f"""
v_lshl_add_u32 v176, v7, 10, v6
s_mul_i32 s36, {sCB}, 28
s_add_u32 s36, s36, s67
s_lshl_b32 s36, s36, 12
s_add_u32 s36, s36, {WS_WOUTF}
s_cmp_lt_u32 {sRB}, 28
s_cselect_b32 s36, s36, {WS_SIZE}
s_mov_b32 s37, s36
s_mov_b32 s24, s36
s_cmp_eq_u32 s65, 6
s_cbranch_scc1 {Lrm}
v_lshl_add_u32 v4, v2, 2, v4
v_lshl_add_u32 v177, v4, 7, v5
v_add_u32 v178, 2048, v177
s_branch {Lre}
{Lrm}:
v_lshl_add_u32 v4, v2, 3, v4
v_lshl_add_u32 v177, v4, 7, v5
v_add_u32 v178, 512, v177
s_branch {Lre}
{Lr3}:
s_lshr_b32 s67, {sRB}, 1
s_lshl_b32 s64, s67, 15
s_lshl_b32 s3, {sCB}, 7
s_add_u32 s64, s64, s3
""")
srd(R2, P_WO, 512 * 1024, "s64")
a(f"""
v_lshl_add_u32 v176, v7, 10, v6
s_movk_i32 s20, 8192
s_movk_i32 s21, 16384
s_movk_i32 s22, 24576
v_and_b32 v6, 1, v2
v_lshl_add_u32 v4, v6, 4, v4
v_lshrrev_b32 v6, 1, v2
v_lshl_add_u32 v4, v6, 2, v4
v_lshl_add_u32 v177, v4, 7, v5
v_add_u32 v178, 1024, v177
s_lshl_b32 s36, {sCB}, 4
s_add_u32 s36, s36, s67
s_lshl_b32 s36, s36, 12
s_add_u32 s36, s36, {WS_WOF}
s_bitcmp1_b32 {sRB}, 0
s_cselect_b32 s37, s36, {WS_SIZE}
s_cselect_b32 s36, {WS_SIZE}, s36
s_mov_b32 s24, s37
{Lre}:
""")
a(f"s_lshl_b32 s64, {sRB}, 18\ns_lshl_b32 s3, {sW}, 10\ns_add_u32 s64, s64, s3")
srd(R0, P_WSP, 2048 * 4096, "s64")
a(f"s_lshl_b32 s64, {sCB}, 7\ns_add_u32 s64, s64, s55")
srd(R1, P_X, 2048 * 1024, "s64")
for s_ in range(4): a(f"s_add_u32 s3, {sW}, {s_}\ns_and_b32 s3, s3, 3\ns_lshl_b32 s{70+s_}, s3, 16")
a(f"""
s_and_b32 s23, {sRB}, 3
s_mov_b32 s25, 0
s_lshl_b32 s18, s25, 8
s_lshl_b32 s19, {sCB}, 15
s_lshl_b32 s38, {sCB}, 9
s_add_u32 s38, s38, {F_P}
s_lshl_b32 s3, {sW}, 7
s_add_u32 s39, s38, s3
s_lshl_b32 s3, s23, 2
s_add_u32 s3, s3, {sW}
s_mul_i32 s26, s3, {SLOT}
s_mul_i32 s27, s3, {SLOT // 4}
s_mul_i32 s3, {sCB}, {32*SLOT}
s_add_u32 s27, s27, s3
s_add_u32 s27, s27, {WS_WINF + 28*SLOT}
s_add_u32 s0, s26, s3
s_add_u32 s0, s0, {WS_WINF}
s_mul_i32 s3, {sCB}, {28*4096}
s_add_u32 s26, s26, s3
s_add_u32 s26, s26, {WS_WOUTF}
s_lshl_b32 s69, {sCB}, 16
s_add_u32 s69, s69, {WS_WOF}
s_lshl_b32 s64, {sW}, 11
s_add_u32 s65, s64, {L_KV}
s_add_u32 s64, s64, {WS_KV}
s_mul_i32 s66, {sIDX}, {33*128}
s_add_u32 s66, s66, {WS_KV}
s_lshl_b32 s67, {sRB}, 7
s_add_u32 s67, s67, {F_B}
""")
Lnb = a.label("noB")
a(f"s_cmp_eq_u32 {sW}, {sKVW}\ns_cbranch_scc0 {Lnb}\nv_lshlrev_b32 v5, 7, v0\ns_mov_b32 s1, {F_B}")
poll(f"buffer_load_dword v4, v5, {WS}, s1 offen sc1",
     "v_lshrrev_b32 v6, 4, v4\nv_and_b32 v6, 0x0f0f0f0f, v6\nv_and_b32 v4, 0x0f0f0f0f, v4\nv_add_u32 v4, v4, v6\nv_sad_u8 v4, v4, 0, 0\nv_cmp_gt_u32 vcc, 8, v4",
     "0xffffffff")
a(f"buffer_load_dword v200, v197, {WS}, s66 offen sc1\ns_barrier\ns_branch L_Bdone\n{Lnb}:\ns_waitcnt vmcnt(0) lgkmcnt(0)\ns_barrier\nL_Bdone:")
stamp("barB")
Lne = a.label("noep")
a(f"s_or_b32 s3, s2, {sW}\ns_cbranch_scc1 {Lne}\nv_mov_b32 v4, {sEP}\ns_mov_b32 s3, {WS_EPOCH}\nbuffer_store_dword v4, v198, {WS}, s3 offen sc1\n{Lne}:")
vm.n = 0
def kv_group(i):
    if i < 16:
        return (["s_mov_b32 m0, s65"], [f"buffer_load_dwordx4 v3, {WS}, s64 offen sc1 lds", f"buffer_load_dwordx4 v3, {WS}, s64 offen offset:1024 sc1 lds"],
                f"kvg{i}", ["s_add_u32 s64, s64, 8192", "s_add_u32 s65, s65, 8192"])
    return ([f"s_lshl_b32 s3, {sW}, 10", "s_sub_u32 s64, s64, s3", "s_sub_u32 m0, s65, s3"], [f"buffer_load_dwordx4 v3, {WS}, s64 offen sc1 lds"], "kvg16", [])
def emit_item(x):
    pre, ins, tag, post = x
    for p in pre: a(p)
    for q_ in ins: vm.op(q_, tag)
    for p in post: a(p)
for i in range(3): emit_item(kv_group(i))

def win_items(half, grp, slot0, tag):
    ld = lambda i: f"buffer_load_dwordx4 v3, {WS}, s74 offen offset:{(i & 3)*1024} sc1 lds"
    first = [f"s_lshl_b32 s74, {sCB}, 5", f"s_add_u32 s74, s74, {sW}", f"s_mul_i32 s74, s74, {SLOT}", f"s_add_u32 s74, s74, {WS_WINF + (half*16 + grp*4)*SLOT}"] + slot0
    return [(first + ["s_mov_b32 m0, s75"], [ld(0), ld(1)], tag, []), (["s_mov_b32 m0, s75"], [ld(2), ld(3)], tag, ["s_add_u32 s74, s74, 4096", "s_add_u32 s75, s75, 4096"]),
            (["s_mov_b32 m0, s75"], [ld(4), ld(5)], tag, []), (["s_mov_b32 m0, s75"], [ld(6)], tag, [])]
def lin_slot(base): return [f"s_mul_i32 s75, {sW}, {SLOT}", f"s_add_u32 s75, s75, {base}"]

def kaddr(t): return f"v{24 + t//31} offset:{(t % 31)*REC}"
def vaddr(t, m): return f"v{27 + t//31} offset:{(t % 31)*REC + m*544}"
Kb = lambda t: vr(144 + 4*(t & 1), 4)
Vb = lambda t, m: vr(152 + 8*(t & 1) + 4*m, 4)
Sb = lambda u: 32 + 16*(u % 3)
Q = lambda e: vr(16 + 4*e, 4)
O = lambda e: 80 + 16*e
C = lambda e: 112 + 16*e
vm.wait("kvg0"); a("s_barrier")
stamp("kv0")
if "clk" in XP: a("s_memtime s[96:97]\ns_memrealtime s[98:99]\ns_waitcnt lgkmcnt(0)")
a(f"ds_read_b128 {Kb(0)}, {kaddr(0)}\nds_read_b128 {Kb(1)}, {kaddr(1)}\ns_waitcnt lgkmcnt(1)")
for e in range(2): a(f"v_mfma_f32_32x32x16_bf16 {vr(32+16*e,16)}, {Kb(0)}, {Q(e)}, 0")
def rowmax(S, dst, first):
    for i in range(0, 16, 2):
        if first and i == 0: a(f"v_max_f32 v{dst}, v{S}, v{S+1}")
        else: a(f"v_max3_f32 v{dst}, v{S+i}, v{S+i+1}, v{dst}")
def negbcast(src, e):
    a(f"v_mov_b32 v6, v{src}\nv_permlane32_swap_b32 v{src}, v6\nv_max_f32 v{src}, v{src}, v6\nv_sub_f32 v{C(e)}, 0, v{src}")
    for i in range(1, 16): a(f"v_mov_b32 v{C(e)+i}, v{C(e)}")
for e in range(2): rowmax(32 + 16*e, 4 + e, True)
for e in range(2): negbcast(4 + e, e)
a(f"v_mfma_f32_32x32x16_bf16 {vr(Sb(0),16)}, {Kb(0)}, {Q(0)}, {vr(C(0),16)}")

plan = {}
TP, TR = 17, 26
def put(t, slot, x): plan.setdefault((t, slot), []).append(x)
PREV = {"o0": ("e1", 0), "e1": ("e0", 0), "eq": ("o1", -1), "oq": ("e1", 0), "e0": ("o1", -1)}
assert True
def vitem(t, slot, x):
    pre, ins, tag, post = x
    ps, dt = PREV[slot]
    pre = [p + " " for p in pre]
    m0 = [p for p in pre if " m0," in p]; rest = [p for p in pre if " m0," not in p]
    if t + dt < 0 or len(pre) > 2:
        pp, dd = PREV[ps] if ps in PREV else ("o0", 0)
        if t + dt + dd < 0: put(t, slot, ("salu", pre))
        else: put(t + dt + dd, pp + "a", ("salu", rest)); put(t + dt, ps + "a", ("salu", m0))
    else: put(t + dt, ps + "a", ("salu", pre))
    put(t, slot, ("vm", ins, tag, m0[0] if m0 else None))
    if post: put(t, slot, ("salu", post))
for i in range(3, 16): vitem((i - 3) // 3, ("e1", "oq", "o0")[(i - 3) % 3], kv_group(i))
vitem(5, "e1", kv_group(16))
for n, so in enumerate(("0", "s20", "s21", "s22")):
    vitem(5 + ((n + 1) >> 1), ("o0", "e1")[n & 1], ([f"s_add_u32 m0, s68, {n*1024}"], [f"buffer_load_dwordx4 v176, {R2}, {so} offen lds"], "praw", []))
put(2, "eq", ("vm", [f"buffer_load_dword v254, v198, {WS}, s67 offen sc1"], None))
put(7, "o0", ("vm", [f"buffer_load_dword v200, v173, {R0}, s19 offen"], None))
put(3, "eq", ("vm", [f"buffer_load_dword v200, v198, {WS}, {sGRP} offen sc1"], None))
put(TP - 1, "o1b", ("wait", "praw"))
for j in range(4):
    put(TP + (j >> 1), ("eq", "oq")[j & 1], ("ds", [f"ds_read_b64_tr_b16 {vr(180+4*j,2)}, v177 offset:{j*32}", f"ds_read_b64_tr_b16 {vr(182+4*j,2)}, v178 offset:{j*32}"]))
put(TR - 2, "o0", ("vm", [f"buffer_store_dwordx4 {vr(180+4*j,4)}, v3, {WS}, s36 offen offset:{j*1024} sc1" for j in (0, 1)], None))
put(TR - 1, "e1", ("vm", [f"buffer_store_dwordx4 {vr(188,4)}, v3, {WS}, s24 offen offset:2048 sc1", f"buffer_store_dwordx4 {vr(192,4)}, v3, {WS}, s37 offen offset:3072 sc1"], "pst"))
put(TR + 2, "oq", ("vm", [f"buffer_atomic_add v199, v198, {WS}, s39 offen sc1"], None))
put(38, "oq", ("vm", [f"buffer_load_dword v201, v196, {WS}, s38 offen sc1"], "pchk"))
for k in range(36):
    t, hf = TR + (k >> 1), k & 1
    if k < 32:
        T2, s_ = k >> 2, k & 3
        if s_ == 0: put(t - 1, "o1a", ("salu", [f"s_add_u32 s76, s18, {T2*128}", "s_and_b32 s76, s76, 1023"]))
        vitem(t, ("e1", "o0")[hf], ([f"s_add_u32 s75, s{70+s_}, s76", f"s_add_u32 m0, s77, {(k % 6)*2048}"],
                                    [f"buffer_load_dwordx4 v168, {R0}, s75 offen lds", f"buffer_load_dwordx4 v169, {R0}, s75 offen offset:1024 lds"], f"ring{k}", []))
    if k >= 4:
        T2, s_ = (k - 4) >> 2, (k - 4) & 3
        if hf == 0: put(t - 1, "o1b", ("wait", f"ring{k-3}"))
        for e_ in range(2): put(t, (("eq", "e0"), ("oq", "o1x"))[hf][e_], ("ds", [f"ds_read_b128 {ar(((2*T2+e_)*4+s_)*4,4)}, v{170+e_} offset:{((k-4) % 6)*2048}"]))
for grp, t0 in ((0, 42), (1, 54), (2, 60)):
    for n, x in enumerate(win_items(1, grp, lin_slot(slotA(4*grp)), f"z2g{grp}")): vitem(t0 + n, "o0", x)
for n in range(8):
    pre = [f"s_lshl_b32 s76, {sW}, 12", "s_add_u32 s74, s76, s69"] if n == 0 else []
    post = ["s_add_u32 s74, s74, 16384", "s_add_u32 s76, s76, 16384"] if n & 1 else []
    vitem(46 + n, "o0", (pre + ["s_mov_b32 m0, s76"], [f"buffer_load_dwordx4 v3, {WS}, s74 offen offset:{(2*(n & 1) + i)*1024} sc1 lds" for i in range(2)], "wo", post))
for n in range(2): put(58 + n, "o0", ("vm", [f"buffer_load_dwordx2 {vr(8+2*j,2)}, v172, {R1}, 0 offen offset:{j*32}" for j in (2*n, 2*n + 1)], None))
for n, (vo, so) in enumerate((("v174", "s0"), ("v174", "s26"), ("v175", "s27"))):
    put(48 + 3*n, "e1", ("vm", [f"buffer_load_dword v200, {vo}, {WS}, {so} offen sc1"], None))
if "noextra" in XP: raise SystemExit("noextra unsupported")
syncs = {3: "kvg2", 11: "kvg8", 19: "kvg16", 24: None, 33: None, 46: None, 60: None}
last_m0 = [None]
def slot(t, k):
    for x in plan.pop((t, k), []):
        if x[0] == "salu":
            for p in x[1]:
                a(p)
                if " m0," in p: last_m0[0] = p
        elif x[0] == "vm":
            if len(x) > 3 and x[3] is not None and x[3] is not last_m0[0]:
                a(x[3]); last_m0[0] = x[3]
            for q_ in x[1]: vm.op(q_, x[2])
        elif x[0] == "ds":
            for q_ in x[1]: a(q_)
        else: vm.wait(x[1])
for u in range(128):
    t, e = u >> 1, u & 1
    S = Sb(u)
    ex = [f"v_exp_f32 v{S+i}, v{S+i}" for i in range(16)]
    pf = "eo"[e]
    if u + 1 < 128:
        t1, e1 = (u + 1) >> 1, (u + 1) & 1
        a(f"v_mfma_f32_32x32x16_bf16 {vr(Sb(u+1),16)}, {Kb(t1)}, {Q(e1)}, {vr(C(e1),16)}")
    a("s_waitcnt lgkmcnt(0)")
    if e == 1 and t + 2 in syncs:
        if syncs[t + 2]: vm.wait(syncs[t + 2])
        a("s_barrier")
    if "tst" in XP and e == 0 and t in (2, 4, 8, 11, 14, 17, 20, 23, 26, 28, 30, 34, 38, 42, 46, 50, 54, 58, 61): stamp(f"t{t}")
    if u == 82:
        vm.wait("pchk")
        a("v_cmp_gt_u32 vcc, 32, v201\ns_nop 1\ns_and_b32 vcc_lo, vcc_lo, 15\ns_cbranch_scc1 L_pwait\nL_pok:")
    slot(t, pf + "q")
    for x in ex[0:3]: a(x)
    Sp, tp, ep = Sb(u - 1), (u - 1) >> 1, (u - 1) & 1
    if u > 0: a(f"v_smfmac_f32_32x32x32_bf16 {vr(O(ep),16)}, {Vb(tp,0)}, {vr(Sp,8)}, v30")
    slot(t, pf + "0b")
    if e == 0:
        slot(t, "e0a"); a(f"ds_read_b128 {Vb(t,0)}, {vaddr(t,0)}"); slot(t, "e0")
    else:
        slot(t, "o0"); slot(t, "o0a")
    for x in ex[3:7]: a(x)
    if u > 0: a(f"v_smfmac_f32_32x32x32_bf16 {vr(O(ep),16)}, {Vb(tp,1)}, {vr(Sp+8,8)}, v30")
    slot(t, pf + "1b")
    if e == 0:
        slot(t, "e1"); slot(t, "e1a"); a(f"ds_read_b128 {Vb(t,1)}, {vaddr(t,1)}")
    else:
        slot(t, "o1a")
        if t + 2 < 64: a(f"ds_read_b128 {Kb(t+2)}, {kaddr(t+2)}")
        slot(t, "o1x")
    for x in ex[7:16]: a(x)
assert not plan, plan.keys()
for m in range(2): a(f"v_smfmac_f32_32x32x32_bf16 {vr(O(1),16)}, {Vb(63,m)}, {vr(Sb(127)+8*m,8)}, v30")
if "clk" in XP: a("s_memtime s[100:101]\ns_memrealtime s[78:79]\ns_waitcnt lgkmcnt(0)\ns_sub_u32 s100, s100, s96\ns_sub_u32 s101, s78, s98")
stamp("attn")
a(f"s_lshl_b32 s3, {sXCC}, 2\ns_lshl_b32 s3, 8, s3\nv_readfirstlane_b32 s64, v254\ns_cmp_eq_u32 s64, s3\ns_cselect_b32 {sFAST}, {0 if FORCE_SLOW else 1}, 0")
Lfb, Lok = a.label("fb"), a.label("ok")
def getl():
    for e in range(2):
        a(f"v_mov_b32 v{4+e}, v{O(e)+8}\nv_mov_b32 v6, v{O(e)+8}\nv_permlane32_swap_b32 v{4+e}, v6")
getl()
a(f"v_add_f32 v7, v4, v5\nv_mov_b32 v6, {fbits(2.0**40 if not FORCE_FB else -1.0)}\nv_cmp_nlt_f32 vcc, v7, v6\ns_cbranch_vccnz {Lfb}\n{Lok}:")
for e in range(2): a(f"v_rcp_f32 v{4+e}, v{4+e}")
for e in range(2):
    for i in range(8): a(f"v_mul_f32 v{O(e)+i}, v{O(e)+i}, v{4+e}")
    for i in range(4): a(f"v_cvt_pk_bf16_f32 v{32+4*e+i}, v{O(e)+2*i}, v{O(e)+2*i+1}")
a(f"s_lshl_b32 s64, {sCB}, 11\ns_add_u32 s64, s64, s55\ns_add_u32 s65, s64, {WS_O}")
def pubo(sc):
    for e in range(2): vm.op(f"buffer_store_dwordx4 {vr(32+4*e,4)}, v3, {WS}, s65 offen offset:{e*1024}{sc}")
pubo(' sc1')
hop_signal(1)
stamp("opub")
a("s_barrier")
rd3 = lambda T, j: a(f"ds_read_b128 {vr(144+(T&1)*16+4*j,4)}, v3 offset:{L_WO + T*4096 + j*1024}")
for j in range(4): rd3(0, j)
a(f"""
v_lshlrev_b32 v31, 4, v2
s_mul_i32 s64, {sCB}, 448
s_mul_i32 s3, {sW}, 3584
s_add_u32 s64, s64, s3
s_add_u32 s64, s64, {WS_C12}
s_lshl_b32 s65, {sCB}, 8
s_add_u32 s65, s65, {WS_MOD + 2*2048}
v_add_u32 v6, {7168 - 448}, v3
v_cmp_gt_u32 vcc, 28, v0
v_cndmask_b32 v28, v6, v3, vcc
v_and_b32 v6, 1, v2
v_lshlrev_b32 v6, 12, v6
v_lshl_add_u32 v6, v1, 4, v6
s_cmp_lt_u32 {sW}, 2
s_cselect_b32 s67, s64, s65
s_cselect_b64 vcc, -1, 0
v_cndmask_b32 v28, v6, v28, vcc
s_lshl_b32 s66, {sW}, 10
s_add_u32 s66, s66, {L_SM}
v_lshlrev_b32 v5, 2, v0
v_add_u32 v5, {sGRP}, v5
v_mov_b32 v7, 1
s_mov_b64 exec, 0xff00
v_lshlrev_b32 v5, 7, v0
v_add_u32 v5, {F_A3 - 8*128}, v5
v_mov_b32 v7, 22
""")
poll(f"buffer_load_dword v4, v5, {WS}, 0 offen sc1", "v_cmp_gt_u32 vcc, v7, v4", "0xffff")
stamp("C")
def frag_load(T, tag):
    vm.op(f"buffer_load_dwordx4 {vr(64+4*T,4)}, v3, {WS}, s64 offen offset:{(T & 3)*1024} sc1", f"{tag}{T}")
    if T & 3 == 3: a("s_add_u32 s64, s64, 4096")
AH = 6
a(f"s_add_u32 s64, s55, {WS_O}\ns_mov_b32 m0, s66")
for T in range(AH): frag_load(T, "o")
def aft3(T, j):
    if j == 0 and T + AH < 16: frag_load(T + AH, "o")
    if j == 0 and T + AH == 16: vm.op(f"buffer_load_dwordx4 v28, {WS}, s67 offen sc1 lds", "sm")
fragloop(16, 4, rd3,
         lambda T, j: a(f"v_mfma_f32_16x16x32_bf16 {vr(128+4*j,4)}, {vr(144+(T&1)*16+4*j,4)}, {vr(64+4*T,4)}, {'0' if T == 0 else vr(128+4*j,4)}"),
         before=lambda T: vm.wait(f"o{T}"), after=aft3, preissued=True)
stamp("p3mm")
vm.wait("sm")
a(f"s_barrier\nv_add_u32 v29, {L_SM}, v31\nv_lshlrev_b32 v28, 2, v1\nv_add_u32 v28, {L_SM + 1024}, v28")
for j in range(4): a(f"ds_read_b128 {vr(32+4*j,4)}, v29 offset:{2048 + j*64}")
for j in range(4): a(f"ds_read_b128 {vr(48+4*j,4)}, v29 offset:{2048 + 256 + j*64}")
CP = [232, 234, 236, 238, 240, 242, 244]
for i in range(8): a(f"v_lshlrev_b32 v{64+2*i}, 16, v{8+i}\nv_and_b32 v{65+2*i}, 0xffff0000, v{8+i}")
a("s_waitcnt lgkmcnt(4)")
for i in range(8): a(f"v_pk_fma_f32 {vr(64+2*i,2)}, {vr(128+2*i,2)}, {vr(32+2*i,2)}, {vr(64+2*i,2)}")
for i in range(8): a(f"v_cvt_pk_bf16_f32 v{8+i}, v{64+2*i}, v{65+2*i}")
for i in range(8): a(f"v_lshlrev_b32 v{64+2*i}, 16, v{8+i}\nv_and_b32 v{65+2*i}, 0xffff0000, v{8+i}")
a("s_waitcnt lgkmcnt(0)")
for i in range(8): a(f"v_pk_mul_f32 {vr(48+2*i,2)}, {vr(48+2*i,2)}, {vr(64+2*i,2)}")
for i in range(8): a(f"v_cvt_pk_bf16_f32 v{80+i}, v{48+2*i}, v{49+2*i}")
a("v_pk_mul_f32 v[88:89], v[64:65], v[64:65]\nv_pk_add_f32 v[90:91], v[64:65], v[66:67]")
for i in range(1, 8): a(f"v_pk_fma_f32 v[88:89], {vr(64+2*i,2)}, {vr(64+2*i,2)}, v[88:89]")
for i in range(2, 8): a(f"v_pk_add_f32 v[90:91], v[90:91], {vr(64+2*i,2)}")
a("v_add_f32 v93, v88, v89\nv_add_f32 v92, v90, v91")
xgroup_sum(92, 94); xgroup_sum(93, 95)
a(f"""
s_lshl_b32 s64, {sCB}, 11
s_add_u32 s64, s64, s55
s_add_u32 s65, s64, {WS_Y}
s_lshl_b32 s68, {sGRP}, 3
s_lshl_b32 s3, {sCB}, 7
s_add_u32 s69, s68, s3
s_add_u32 s67, s69, {WS_ST1}
v_lshlrev_b32 v6, 3, v1
""")
stamp("p3ep")
def puby(sc):
    for p in range(2): vm.op(f"buffer_store_dwordx4 {vr(80+4*p,4)}, v3, {WS}, s65 offen offset:{p*1024}{sc}")
    a("s_mov_b64 exec, 0xffff")
    vm.op(f"buffer_store_dwordx2 v[92:93], v6, {WS}, s67 offen{sc}")
    a("s_mov_b64 exec, -1")
puby(' sc1')
hop_signal(2)
stamp("ypub")
a("v_add_u32 v25, 0xe000, v3\nv_add_u32 v26, 0xe000, v25")
WB = (32, 204)
def rdl(dst, addr):
    w_, off = divmod(addr, 0xe000)
    a(f"ds_read_b128 {vr(dst,4)}, v{(3, 25, 26)[w_]} offset:{off}")
for j in range(7): a(f"ds_read_b128 {vr(176+4*j,4)}, v29 offset:{j*64}\nds_read_b128 {vr(204+4*j,4)}, v29 offset:{448 + j*64}")
for j in range(7): a(f"ds_read2_b32 {vr(CP[j],2)}, v28 offset0:{j*16} offset1:{j*16 + 112}")
for j in range(7): rdl(WB[0] + 4*j, slot_z2(0) + j*1024)
a("""
v_and_b32 v4, 7, v1
v_lshlrev_b32 v4, 7, v4
v_lshl_add_u32 v30, v2, 5, v4
v_lshlrev_b32 v4, 8, v2
v_lshl_add_u32 v27, v1, 3, v4
""")
for x in win_items(1, 3, [f"s_mul_i32 s75, {sW}, {SLOT}", f"s_sub_u32 s75, s75, {SLOT}", f"s_cmp_eq_u32 {sW}, 0", f"s_cselect_b32 s75, {slotA(12)}, s75"], "z2g3"): emit_item(x)
hop_wait(2)
stamp("D")
a(f"s_add_u32 s66, s68, {WS_ST1}")
vm.op(f"buffer_load_dwordx4 v[164:167], v30, {WS}, s66 offen sc1")
vm.op(f"buffer_load_dwordx4 v[168:171], v30, {WS}, s66 offen offset:16 sc1")
vm.op(f"buffer_load_dwordx2 v[172:173], v27, {WS}, s66 offen sc1")
vm.op(f"buffer_load_dwordx2 v[174:175], v27, {WS}, s66 offen offset:128 sc1", "st1")
a(f"s_add_u32 s64, s55, {WS_Y}")
for T in range(AH): frag_load(T, "y")
stamp("y_iss")
vm.wait("st1")
stamp("st1")
dppsum(range(164, 172), (4, 2, 1))
a("v_pk_add_f32 v[172:173], v[172:173], v[174:175]")
xgroup_sum(172, 174); xgroup_sum(173, 175)
finish_stats([(164+2*i, 165+2*i, 16+i, 20+i, 156+i) for i in range(4)] + [(172, 173, 160, 28, 162)], 512)
a("s_waitcnt lgkmcnt(7)")
for j in range(7):
    for h in range(2):
        d = 128 + 4*j + 2*h
        a(f"v_pk_mul_f32 {vr(d,2)}, {vr(16+2*h,2)}, {vr(CP[j],2)} op_sel_hi:[1,0]")
        a(f"v_pk_fma_f32 {vr(d,2)}, {vr(156+2*h,2)}, {vr(CP[j],2)}, {vr(d,2)} op_sel:[0,1,0] op_sel_hi:[1,1,1]")
for i in range(14):
    a(f"v_pk_mul_f32 {vr(176+2*i,2)}, {vr(176+2*i,2)}, v[160:161] op_sel_hi:[1,0]")
    a(f"v_pk_fma_f32 {vr(176+2*i,2)}, {vr(204+2*i,2)}, v[162:163], {vr(176+2*i,2)} op_sel_hi:[1,0,1]")
stamp("init")
z1items = {g_: win_items(0, g_, lin_slot(slotB(3) if g_ == 0 else slotA(4*(g_ - 1))), f"z1g{g_}") for g_ in range(4)}
def bef(T):
    if T == 11: a("s_waitcnt lgkmcnt(0)\ns_barrier")
    vm.wait(f"y{T}")
def aft(T, j):
    if j == 0 and T + AH < 16: frag_load(T + AH, "y")
    if j == 3 and 6 <= T < 10: emit_item(z1items[0][T - 6])
    if j == 3 and 11 <= T < 15: emit_item(z1items[1][T - 11])
fragloop(16, 7, lambda T, j: rdl(WB[T & 1] + 4*j, slot_z2(T) + j*1024),
         lambda T, j: a(f"v_mfma_f32_16x16x32_bf16 {vr(128+4*j,4)}, {vr(64+4*T,4)}, {vr(WB[T & 1]+4*j,4)}, {vr(128+4*j,4)}"),
         before=bef, after=aft, preissued=True)
stamp("z2mm")
a(f"s_mov_b32 s64, {fbits(-2*math.log2(math.e)*math.sqrt(2/math.pi)*0.044715)}\ns_mov_b32 s65, s64\ns_mov_b32 s66, 1.0\ns_mov_b32 s67, 1.0")
a(f"v_mov_b32 v60, {fbits(-2*math.log2(math.e)*math.sqrt(2/math.pi))}\nv_mov_b32 v61, v60")
def gelu(acc, scale, tmp, mid=None):
    P = range(14)
    for i in P: a(f"v_pk_mul_f32 {vr(acc+2*i,2)}, {vr(acc+2*i,2)}, {scale(i)}")
    for i in P: a(f"v_pk_mul_f32 {vr(tmp+2*i,2)}, {vr(acc+2*i,2)}, {vr(acc+2*i,2)}")
    for i in P: a(f"v_pk_fma_f32 {vr(tmp+2*i,2)}, {vr(tmp+2*i,2)}, s[64:65], v[60:61]")
    for i in P: a(f"v_pk_mul_f32 {vr(tmp+2*i,2)}, {vr(tmp+2*i,2)}, {vr(acc+2*i,2)}")
    for i in range(28): a(f"v_exp_f32 v{tmp+i}, v{tmp+i}")
    if mid: mid()
    for i in P: a(f"v_pk_add_f32 {vr(tmp+2*i,2)}, {vr(tmp+2*i,2)}, s[66:67]")
    for i in range(28): a(f"v_rcp_f32 v{tmp+i}, v{tmp+i}")
    for i in P: a(f"v_pk_mul_f32 {vr(acc+2*i,2)}, {vr(acc+2*i,2)}, {vr(tmp+2*i,2)}")
gelu(128, lambda i: vr(20 + 2*(i & 1), 2), 32)
for h in range(2):
    a(f"v_pk_add_f32 {vr(156+2*h,2)}, {vr(128+2*h,2)}, {vr(132+2*h,2)}\nv_pk_mul_f32 {vr(160+2*h,2)}, {vr(128+2*h,2)}, {vr(128+2*h,2)}")
for j in range(1, 7):
    for h in range(2):
        if j > 1: a(f"v_pk_add_f32 {vr(156+2*h,2)}, {vr(156+2*h,2)}, {vr(128+4*j+2*h,2)}")
        a(f"v_pk_fma_f32 {vr(160+2*h,2)}, {vr(128+4*j+2*h,2)}, {vr(128+4*j+2*h,2)}, {vr(160+2*h,2)}")
dppsum(range(156, 164), (8, 4, 2, 1))
a(f"s_add_u32 s3, s69, {WS_ST2}\ns_mov_b32 s74, s3\nv_lshlrev_b32 v6, 5, v2")
def pubs(sc):
    a("s_mov_b32 exec_lo, 0x00010001\ns_mov_b32 exec_hi, 0x00010001")
    vm.op(f"buffer_store_dwordx4 v[156:159], v6, {WS}, s74 offen{sc}")
    vm.op(f"buffer_store_dwordx4 v[160:163], v6, {WS}, s74 offen offset:16{sc}")
    a("s_mov_b64 exec, -1")
pubs(' sc1')
hop_signal(3)
a("s_barrier")
stamp("spub")
def z2_publish():
    hop_wait(3)
    stamp("S")
    a(f"s_add_u32 s3, s68, {WS_ST2}")
    vm.op(f"buffer_load_dwordx4 v[164:167], v30, {WS}, s3 offen sc1")
    vm.op(f"buffer_load_dwordx4 v[168:171], v30, {WS}, s3 offen offset:16 sc1", "st2")
    srd(R1, P_BSP, 4096)
    a("s_lshr_b32 s3, s55, 9\nv_lshlrev_b32 v4, 1, v1")
    vm.op(f"buffer_load_ushort v16, v4, {R1}, s3 offen", "bsp")
    a(f"""
s_lshl_b32 s70, {sCB}, 6
s_lshl_b32 s3, {sRB}, 1
s_add_u32 s70, s70, s3
s_lshr_b32 s3, {sW}, 1
s_add_u32 s70, s70, s3
s_mul_i32 s70, s70, 7168
s_and_b32 s3, {sW}, 1
s_lshl_b32 s3, s3, 9
s_add_u32 s70, s70, s3
s_add_u32 s70, s70, {WS_Z2}
s_add_u32 s71, s70, 4096
v_and_b32 v4, 1, v2
v_lshlrev_b32 v4, 10, v4
v_lshrrev_b32 v5, 1, v2
v_lshl_add_u32 v4, v5, 8, v4
v_lshl_add_u32 v6, v1, 4, v4
""")
    vm.wait("st2")
    dppsum(range(164, 172), (4, 2, 1))
    finish_stats([(164+i, 168+i, 156+i, 160+i, None) for i in range(4)], 896)
    for h in range(2): a(f"v_pk_mul_f32 {vr(156+2*h,2)}, {vr(156+2*h,2)}, {vr(160+2*h,2)}")
    for i in range(14): a(f"v_pk_fma_f32 {vr(128+2*i,2)}, {vr(128+2*i,2)}, {vr(160+2*(i & 1),2)}, {vr(156+2*(i & 1),2)}")
    for i in range(14): a(f"v_cvt_pk_bf16_f32 v{232+i}, v{128+2*i}, v{129+2*i}")
    a("v_mov_b32 v246, v244\nv_mov_b32 v247, v245")
    for p in range(4): a(f"v_permlane16_swap_b32 v{232+4*p}, v{234+4*p}\nv_permlane16_swap_b32 v{233+4*p}, v{235+4*p}")
    vm.op(f"buffer_store_dwordx4 v[232:235], v6, {WS}, s70 offen sc1")
    vm.op(f"buffer_store_dwordx4 v[236:239], v6, {WS}, s70 offen offset:2048 sc1")
    vm.op(f"buffer_store_dwordx4 v[240:243], v6, {WS}, s71 offen sc1")
    a("s_mov_b32 exec_lo, 0x0000ffff\ns_mov_b32 exec_hi, 0x0000ffff")
    vm.op(f"buffer_store_dwordx4 v[244:247], v6, {WS}, s71 offen offset:2048 sc1", "zst")
    a(f"""
s_mov_b64 exec, -1
s_lshl_b32 s70, {sRB}, 3
s_add_u32 s70, s70, {sCB}
s_lshl_b32 s70, s70, 9
s_lshl_b32 s3, {sW}, 7
s_add_u32 s70, s70, s3
s_add_u32 s70, s70, {F_E}
""")
    stamp("zst")
def bef(T):
    if T == TS: z2_publish()
    if T == TE:
        vm.wait("zst"); vm.op(f"buffer_store_dword v62, v63, {WS}, s70 offen sc1")
        stamp("zpub")
    if T == 7: a("s_barrier")
def aft(T, j):
    if T < 2 and j in (1, 4): emit_item(z1items[2][2*T + (j == 4)])
    if 2 <= T < 4 and j in (1, 4): emit_item(z1items[3][2*(T - 2) + (j == 4)])
TS, TE = 7, 12
a(f"v_mov_b32 v199, 1\nv_mov_b32 v198, {OOB}\nv_cmp_eq_u32 vcc, 0, v0\nv_cndmask_b32 v198, v198, v0, vcc".replace("v199", "v62").replace("v198", "v63"))
fragloop(16, 7, lambda T, j: rdl(WB[T & 1] + 4*j, slot_z1(T) + j*1024),
         lambda T, j: a(f"v_mfma_f32_16x16x32_bf16 {vr(176+4*j,4)}, {vr(WB[T & 1]+4*j,4)}, {vr(64+4*T,4)}, {vr(176+4*j,4)}"), before=bef, after=aft)
a("s_barrier")
stamp("z1mm")
a(f"s_lshl_b32 s70, {sW}, 15\ns_lshl_b32 s3, {sCB}, 9\ns_add_u32 s70, s70, s3\ns_add_u32 s70, s70, {F_E}\nv_lshrrev_b32 v6, 2, v0\nv_lshlrev_b32 v6, 12, v6\nv_and_b32 v5, 3, v0\nv_lshl_add_u32 v6, v5, 7, v6")
a(f"s_lshl_b32 s72, {sCB}, 2\ns_add_u32 s72, s72, {sW}\ns_mul_i32 s72, s72, {16*7168}\ns_add_u32 s72, s72, {WS_Z2}\ns_add_u32 s73, s72, 4096")
poll(f"buffer_load_dword v4, v6, {WS}, s70 offen sc1", "v_cmp_gt_u32 vcc, 1, v4", "0xffffffff")
stamp("E")
ZB = lambda T: (64, 92, 32)[T % 3]
def ldz(T, j):
    vm.op(f"buffer_load_dwordx4 {vr(ZB(T)+4*j,4)}, v3, {WS}, s{72 + (j >> 2)} offen offset:{(j & 3)*1024} sc1", f"z{T}_{j}")
    if j == 6: a("s_add_u32 s72, s72, 7168\ns_add_u32 s73, s73, 7168")
for j in range(7): ldz(0, j)
gelu(176, lambda i: "v[28:29] op_sel_hi:[1,0]", 32, mid=lambda: [ldz(1, j) for j in range(7)])
for i in range(14): a(f"v_cvt_pk_bf16_f32 v{240+i}, v{176+2*i}, v{177+2*i}")
Z1P = list(range(240, 254))
stamp("gelu1")
def wout_setup(n0):
    a(f"s_mul_i32 s3, {sCB}, {28*4096}\ns_add_u32 s75, s3, {WS_WOUTF + n0*4096}\ns_lshl_b32 s76, {sW}, 10\ns_add_u32 s74, s75, s76\ns_add_u32 s76, s76, {L_WOUT + n0*4096}")
def wout_one(tag):
    a("s_mov_b32 m0, s76\ns_add_u32 s76, s76, 4096")
    vm.op(f"buffer_load_dwordx4 v3, {WS}, s74 offen sc1 lds", tag)
    a("s_add_u32 s74, s74, 4096")
def wout_dma(n0, n1, tag):
    wout_setup(n0)
    for n in range(n0, n1): wout_one(tag)
wout_setup(0)
for T in range(16):
    for j in range(7):
        vm.wait(f"z{T}_{j}")
        for s in range(4):
            d = vr(128 + (s*7 + j)*4, 4)
            a(f"v_mfma_f32_16x16x32_bf16 {d}, {vr(ZB(T)+4*j,4)}, {ar((T*4+s)*4,4)}, {'0' if T == 0 else d}")
            if s == 0 and T + 2 < 16: ldz(T + 2, j)
            if s == 2 and (j == 3 or (j == 0 and T >= 13)): wout_one("wout0")
stamp("p5mm")
for s in range(1, 4):
    a(f"s_add_u32 s3, {sW}, {s}\ns_and_b32 s3, s3, 3\ns_mul_i32 s3, s3, {21*1024}\ns_add_u32 s3, s3, {L_RED + (s-1)*7168}\nv_add_u32 v{16+s}, s3, v3")
a(f"s_mul_i32 s3, {sW}, {21*1024}\ns_add_u32 s3, s3, {L_RED}\nv_add_u32 v20, s3, v3")
for s in range(1, 4):
    for j in range(7): a(f"ds_write_b128 v{16+s}, {vr(128+(s*7+j)*4,4)} offset:{j*1024}")
a("v_lshlrev_b32 v16, 16, v16\ns_waitcnt lgkmcnt(0)\ns_barrier")
for k in range(21):
    a(f"ds_read_b128 {vr(32+4*k,4)}, v20 offset:{k*1024}")
    if k == 13: a("s_waitcnt lgkmcnt(7)\n" + "\n".join(f"v_pk_add_f32 {vr(128+2*i,2)}, {vr(128+2*i,2)}, {vr(32+2*i,2)}" for i in range(14)))
a("s_waitcnt lgkmcnt(7)")
for i in range(14): a(f"v_pk_add_f32 {vr(128+2*i,2)}, {vr(128+2*i,2)}, {vr(60+2*i,2)}")
a("s_waitcnt lgkmcnt(0)\ns_barrier")
for i in range(14): a(f"v_pk_add_f32 {vr(128+2*i,2)}, {vr(128+2*i,2)}, {vr(88+2*i,2)}")
for i in range(14): a(f"v_pk_add_f32 {vr(128+2*i,2)}, {vr(128+2*i,2)}, v[16:17] op_sel_hi:[1,0]")
for i in range(14): a(f"v_lshlrev_b32 v{32+2*i}, 16, v{Z1P[i]}\nv_and_b32 v{33+2*i}, 0xffff0000, v{Z1P[i]}")
for i in range(14): a(f"v_pk_mul_f32 {vr(128+2*i,2)}, {vr(128+2*i,2)}, {vr(32+2*i,2)}")
for i in range(14): a(f"v_cvt_pk_bf16_f32 v{32+i}, v{128+2*i}, v{129+2*i}")
a("v_mov_b32 v46, v44\nv_mov_b32 v47, v45\nv_permlane16_swap_b32 v44, v46\nv_permlane16_swap_b32 v45, v47")
a(f"""
s_lshr_b32 s68, s55, 14
s_mul_i32 s68, s68, {28*1024}
s_mul_i32 s64, {sCB}, 3072
s_add_u32 s64, s64, s68
s_add_u32 s64, s64, {WS_U}
s_lshr_b32 s65, {sCB}, 1
s_lshl_b32 s65, s65, 10
s_and_b32 s3, {sCB}, 1
s_lshl_b32 s3, s3, 9
s_add_u32 s65, s65, s3
s_add_u32 s65, s65, s68
s_add_u32 s65, s65, {WS_U + 24*1024}
v_lshrrev_b32 v6, 5, v0
v_lshlrev_b32 v6, 8, v6
v_lshl_add_u32 v6, v1, 4, v6
""")
def pubu(sc):
    for p in range(3): vm.op(f"buffer_store_dwordx4 {vr(32+4*p,4)}, v3, {WS}, s64 offen offset:{p*1024}{sc}")
    a("s_mov_b32 exec_lo, 0x0000ffff\ns_mov_b32 exec_hi, 0x0000ffff")
    vm.op(f"buffer_store_dwordx4 v[44:47], v6, {WS}, s65 offen{sc}")
    a("s_mov_b64 exec, -1")
pubu(' sc1')
hop_signal(4)
stamp("upub")
a("s_barrier")
rd6 = lambda n, j: rdl(160 + (n & 1)*16 + 4*j, L_WOUT + n*4096 + j*1024)
for j in range(4): rd6(0, j)
wout_dma(19, 28, "wout1")
hop_wait(4)
stamp("F")
steps = []
for cbp in range(8):
    for p in range(3): steps.append((cbp*3 + p, 112*cbp + 32*p, False))
    if cbp & 1: steps.append((24 + (cbp >> 1), 224*(cbp >> 1) + 96, True))
a(f"s_add_u32 s64, s68, {WS_U}")
for n in range(1, 7): a(f"s_add_u32 s{64+n if n < 4 else 66+n}, s64, {4096*n}")
US = ["s64", "s65", "s66", "s67", "s70", "s71", "s72"]
def uload(n):
    st = steps[n][0]
    vm.op(f"buffer_load_dwordx4 {vr(32+4*n,4)}, v3, {WS}, {US[st >> 2]} offen offset:{(st & 3)*1024} sc1", f"u{n}")
for n in range(AH): uload(n)
a(f"s_lshl_b32 s74, {sCB}, 8\ns_add_u32 s74, s74, {WS_MOD + 5*2048}")
def aft6(n, j):
    if j == 0 and n + AH < 28: uload(n + AH)
    if j == 0 and 28 <= n + AH < 32: vm.op(f"buffer_load_dwordx4 {vr(216+4*(n+AH-28),4)}, v31, {WS}, s74 offen offset:{(n+AH-28)*64} sc1", "gb")
stamp("u_iss")
def bef(n):
    if n == 18: a("s_barrier")
    vm.wait(f"u{n}")
fragloop(28, 4, rd6,
         lambda n, j: a(f"v_mfma_f32_16x16x32_bf16 {vr(144+4*j,4)}, {vr(160+(n&1)*16+4*j,4)}, {vr(32+4*n,4)}, {'0' if n == 0 else vr(144+4*j,4)}"),
         before=bef, after=aft6, preissued=True)
stamp("p6mm")
vm.wait("gb")
for i in range(8): a(f"v_lshlrev_b32 v{32+2*i}, 16, v{8+i}\nv_and_b32 v{33+2*i}, 0xffff0000, v{8+i}")
for i in range(8): a(f"v_pk_fma_f32 {vr(32+2*i,2)}, {vr(144+2*i,2)}, {vr(216+2*i,2)}, {vr(32+2*i,2)}")
for i in range(8): a(f"v_cvt_pk_bf16_f32 v{48+i}, v{32+2*i}, v{33+2*i}")
for p in range(2): a(f"v_permlane16_swap_b32 v{48+4*p}, v{50+4*p}\nv_permlane16_swap_b32 v{49+4*p}, v{51+4*p}")
srd(R1, P_OUT, 2048 * 1024, "s55")
a(f"v_lshlrev_b32 v4, 10, v1\nv_and_b32 v5, 1, v2\nv_lshl_add_u32 v4, v5, 5, v4\nv_lshrrev_b32 v5, 1, v2\nv_lshl_add_u32 v4, v5, 4, v4\ns_lshl_b32 s3, {sCB}, 7")
for p in range(2): a(f"buffer_store_dwordx4 {vr(48+4*p,4)}, v4, {R1}, s3 offen offset:{p*64}")
if "dbg" in XP:
    a("s_waitcnt vmcnt(0)")
    stamp("end")
    sel = ["xin", "barP", "barB", "kv0", "attn", "C", "D", "z2mm", "zpub", "E", "p5mm", "upub", "F", "p6mm", "end"]
    a("s_not_b32 s3, s80\nv_mov_b32 v32, s3")
    for n, nm in enumerate(sel):
        i = stamp_names.index(nm)
        a(f"s_bfe_u32 s3, s{81 + (i-1)//2}, {hex((16 << 16) | (16*((i-1) & 1)))}\ns_add_u32 s3, s3, s80\nv_writelane_b32 v32, s3, {n+1}")
    a("s_load_dwordx2 s[64:65], s[96:97], 104\ns_waitcnt lgkmcnt(0)")
    srd(R1, 64, 256)
    a(f"v_lshlrev_b32 v4, 2, v0\ns_mov_b64 exec, 0xffff\nbuffer_atomic_umax v32, v4, {R1}, 0 offen sc1\ns_waitcnt vmcnt(0)")
elif STAMPS:
    a("s_waitcnt vmcnt(0)")
    stamp("end")
    for i in range(22): a(f"v_writelane_b32 v32, s{80+i}, {i}")
    a(f"s_lshl_b32 s3, s2, 2\ns_add_u32 s3, s3, {sW}\ns_lshl_b32 s3, s3, 7\ns_add_u32 s3, s3, {WS_STAMP}\nv_lshlrev_b32 v4, 2, v0\ns_mov_b64 exec, 0xffffffff\nbuffer_store_dword v32, v4, {WS}, s3 offen")
a("s_endpgm")
a("L_pwait:")
poll(f"buffer_load_dword v201, v196, {WS}, s38 offen sc1", "v_cmp_gt_u32 vcc, 32, v201", "15")
a("s_branch L_pok")
a(f"{Lfb}:")
a(f"""
v_lshrrev_b32 v4, 5, v0
v_mul_u32_u24 v4, 272, v4
v_and_b32 v5, 31, v0
v_lshl_add_u32 v27, v5, 4, v4
v_mov_b32 v4, 0xff800000
v_mov_b32 v5, 0xff800000
s_mov_b32 s64, {WS_KV}
L_fb1:
buffer_load_dwordx4 {Kb(0)}, v3, {WS}, s64 offen offset:1088 sc1
s_waitcnt vmcnt(0)
""")
for e in range(2): a(f"v_mfma_f32_32x32x16_bf16 {vr(32+16*e,16)}, {Kb(0)}, {Q(e)}, 0")
for e in range(2): rowmax(32 + 16*e, 4 + e, False)
a(f"s_add_u32 s64, s64, {REC}\ns_cmp_lt_u32 s64, {WS_KV + 64*REC}\ns_cbranch_scc1 L_fb1")
for e in range(2): negbcast(4 + e, e)
for i in range(32): a(f"v_mov_b32 v{80+i}, 0")
a(f"""
s_mov_b32 s64, {WS_KV}
L_fb2:
buffer_load_dwordx4 {Kb(0)}, v3, {WS}, s64 offen offset:1088 sc1
buffer_load_dwordx4 {Vb(0,0)}, v27, {WS}, s64 offen sc1
buffer_load_dwordx4 {Vb(0,1)}, v27, {WS}, s64 offen offset:544 sc1
s_waitcnt vmcnt(0)
""")
for e in range(2): a(f"v_mfma_f32_32x32x16_bf16 {vr(32+16*e,16)}, {Kb(0)}, {Q(e)}, {vr(C(e),16)}")
for i in range(32): a(f"v_exp_f32 v{32+i}, v{32+i}")
for e in range(2):
    for m in range(2): a(f"v_smfmac_f32_32x32x32_bf16 {vr(O(e),16)}, {Vb(0,m)}, {vr(32+16*e+8*m,8)}, v30")
a(f"s_add_u32 s64, s64, {REC}\ns_cmp_lt_u32 s64, {WS_KV + 64*REC}\ns_cbranch_scc1 L_fb2")
getl()
a(f"s_branch {Lok}\nL_end:\ns_endpgm")

body = a.finish()
head = open("cdna_kernels/" + NAME + ".s.ref").read().split("; Override launch")[0]
src = head + f"""; One persistent launch: 256 workgroups (32 row blocks x 8 column blocks), 4 waves each; generated by gen/gen.py.
; @launch grid=(256,1,1) block=(256,1,1) lds={LDS_BYTES}
.amdgcn_target "amdgcn-amd-amdhsa--gfx950"
.text
.globl {NAME}_kernel
.p2align 8
.type {NAME}_kernel,@function
{NAME}_kernel:
{body}.section .rodata,"a"
.p2align 6
.amdhsa_kernel {NAME}_kernel
  .amdhsa_next_free_vgpr 512
  .amdhsa_next_free_sgpr 102
  .amdhsa_accum_offset 256
  .amdhsa_group_segment_fixed_size 0
  .amdhsa_kernarg_size 120
  .amdhsa_user_sgpr_count 2
  .amdhsa_user_sgpr_kernarg_segment_ptr 1
  .amdhsa_system_sgpr_workgroup_id_x 1
.end_amdhsa_kernel
"""
out = [x for x in sys.argv[1:] if not x.startswith("--")]
open(out[0] if out else "cdna_kernels/" + NAME + ".s", "w").write(src)
if STAMPS: open("stamps.txt", "w").write("\n".join(stamp_names))
print("instructions:", sum(1 for k, _ in a.items if k == "ins"), "hazard nops:", a.nops, file=sys.stderr)
```

```python
import sys, struct, math
from asmlib import Asm

NAME = "adaLN_cond__grouped_kv_mqa__mixer_gmlp__prompt"
STAMPS = "--stamps" in sys.argv or "--cyc" in sys.argv
CYC = "--cyc" in sys.argv
FORCE_SLOW = "--slow" in sys.argv
PADZERO = "--nopadzero" not in sys.argv
XP = [x[5:] for x in sys.argv if x.startswith("--xp=")]
FORCE_FB = "--fallback" in sys.argv

def fbits(x): return "0x%08x" % struct.unpack("<I", struct.pack("<f", x))[0]

F_B, F_HOP, F_P, WS_G2, F_E, WS_C12 = 0, 8192, 24576, 28672, 32768, 163840
WS_MOD, WS_MODT, WS_EPOCH, WS_KV = 0x32000, 0x35000, 0x3C000, 0x40000
WS_ST1, WS_ST2 = 0x70000, 0x90000
WS_X, WS_Z2, WS_STAMP, WS_SIZE = 0x100000, 0x500000, 0xD00000, 0x1200000
WS_WOF, WS_WOUTF, WS_DUMMY, WS_WINF = 0xD80000, 0xE00000, 0xF00000, 0x1000000
REC = 2112
L_G2 = 16384
L_KV = 28672
L_WQ, L_WKV, L_G0, L_SILU, L_PAR = 28672, 94208, 110592, 126976, 128000
L_RING, L_SM = 0, 158720
L_WO = 0
SLOT = 7168
def slotA(i): return 65536 + SLOT * i
def slotB(i): return SLOT * i
def slot_z2(T): return slotA(T) if T < 13 else slotB(T - 13)
def slot_z1(T): return slotB(3 + T) if T < 4 else slotA(T - 4)
L_WOUT, L_RED = 0, 77824
LDS_BYTES = 163840
R0, WS, R1, R2, R3 = "s[4:7]", "s[8:11]", "s[12:15]", "s[56:59]", "s[60:63]"
P_X, P_WQ, P_WK, P_WV, P_WO, P_WIN, P_WSP, P_BSP, P_WOUT, P_C, P_WMOD, P_OUT, P_DBG, P_WS = 16, 18, 20, 22, 24, 28, 30, 32, 34, 36, 38, 40, 42, 44
sRB, sCB, sW, sXCC, sFAST, sIDX, sXCD, sKVW, sGRP = "s46", "s47", "s48", "s49", "s50", "s51", "s52", "s53", "s54"
sEP, sTAG = "s42", "s43"
SPIN = 1 << 17
OOB = 0x7fff0000

a = Asm()
def vr(b, n): return f"v[{b}:{b+n-1}]"
def ar(b, n): return f"a[{b}:{b+n-1}]"

class VM:
    def __init__(s): s.n = 0; s.tags = {}
    def op(s, text, tag=None):
        a(text); s.n += 1
        if tag: s.tags[tag] = s.n
    def tag(s, t): s.tags[t] = s.n
    def wait(s, t):
        k = s.n - s.tags[t]
        if k < 63: a(f"s_waitcnt vmcnt({k})")
    def drain(s): a("s_waitcnt vmcnt(0)")
vm = VM()

def srd(q, ptr, size, off=None):
    b = int(q[2:q.index(":")])
    if off is None:
        a(f"s_mov_b32 s{b}, s{ptr}\ns_mov_b32 s{b+1}, s{ptr+1}\ns_mov_b32 s{b+2}, {size}")
    else:
        a(f"s_add_u32 s{b}, s{ptr}, {off}\ns_addc_u32 s{b+1}, s{ptr+1}, 0\ns_sub_u32 s{b+2}, {size}, {off}")
    a(f"s_mov_b32 s{b+3}, 0x20000")

nstamp = [0]
stamp_names = []
def stamp(name):
    if not STAMPS: return
    if "dbg" in XP and name not in ("start", "xin", "barP", "barB", "kv0", "attn", "C", "D", "z2mm", "zpub", "E", "p5mm", "upub", "F", "p6mm", "end"): return
    if "tst" in XP and name in ("xin", "ln1", "h", "kv", "q", "p3mm", "p3ep", "y_iss", "st1", "init", "u_iss", "S", "opub", "ypub", "spub"): return
    i = nstamp[0]; nstamp[0] += 1; stamp_names.append(name)
    if "clk" in XP and i >= 30: return
    assert i < 43
    a("s_memrealtime s[78:79]\ns_waitcnt lgkmcnt(0)" if not CYC else "s_memtime s[78:79]\ns_waitcnt lgkmcnt(0)\ns_lshr_b32 s78, s78, 2")
    if i == 0: a("s_mov_b32 s80, s78")
    elif i & 1: a(f"s_sub_u32 s{81 + i//2}, s78, s80")
    else: a(f"s_sub_u32 s78, s78, s80\ns_pack_ll_b32_b16 s{80 + i//2}, s{80 + i//2}, s78")

def poll(load, cond, mask):
    L, X = a.label("poll"), a.label("pollx")
    a(f"s_mov_b64 exec, {mask}\ns_mov_b32 s3, 0\n{L}:\ns_add_u32 s3, s3, 1\ns_cmp_gt_u32 s3, {SPIN}\ns_cbranch_scc1 {X}")
    a(load); a("s_waitcnt vmcnt(0)"); a(cond)
    a(f"s_cbranch_vccnz {L}\n{X}:\ns_mov_b64 exec, -1")

def both(fn):
    S, E = a.label("slow"), a.label("pub")
    n0 = vm.n
    a(f"s_cmp_eq_u32 {sFAST}, 0\ns_cbranch_scc1 {S}")
    fn(""); n1 = vm.n
    a(f"s_branch {E}\n{S}:"); vm.n = n0
    fn(" sc1"); assert vm.n == n1
    a(f"{E}:")

def hop_signal(phase, tag=None):
    a(f"v_mov_b32 v4, {phase}")
    if tag: vm.wait(tag)
    else: a("s_waitcnt vmcnt(0)")
    both(lambda sc: vm.op(f"buffer_store_dword v4, v254, {WS}, {sGRP} offen{sc}"))

def hop_wait(phase):
    poll(f"buffer_load_dword v4, v255, {WS}, {sGRP} offen sc1", f"v_cmp_gt_u32 vcc, {phase}, v4", "0xff")

def xgroup_sum(v, t):
    a(f"v_mov_b32 v{t}, v{v}\nv_permlane32_swap_b32 v{v}, v{t}\nv_add_f32 v{v}, v{v}, v{t}")
    a(f"v_mov_b32 v{t}, v{v}\nv_permlane16_swap_b32 v{v}, v{t}\nv_add_f32 v{v}, v{v}, v{t}")

def xgroup_sum2(v, t, v2, t2):
    for op in ("v_permlane32_swap_b32", "v_permlane16_swap_b32"):
        a(f"v_mov_b32 v{t}, v{v}\nv_mov_b32 v{t2}, v{v2}\n{op} v{v}, v{t}\n{op} v{v2}, v{t2}\nv_add_f32 v{v}, v{v}, v{t}\nv_add_f32 v{v2}, v{v2}, v{t2}")

def capture(fn):
    n = len(a.items); fn(); out = a.items[n:]; del a.items[n:]
    return out

def pipeline(nsteps, reads, compute, nreads, pre=1):
    for T in range(min(pre, nsteps)): reads(T)
    for T in range(nsteps):
        if T + pre < nsteps: reads(T + pre)
        left = min(pre, nsteps - 1 - T) * nreads
        a(f"s_waitcnt lgkmcnt({min(left, 15)})")
        compute(T)

def fragloop(nsteps, nf, read, mfma, before=None, after=None, nper=1, preissued=False):
    if not preissued:
        for j in range(nf): read(0, j)
    for T in range(nsteps):
        if before: before(T)
        for j in range(nf):
            left = (nf - 1 if T + 1 < nsteps else nf - 1 - j) * nper
            a(f"s_waitcnt lgkmcnt({min(left, 15)})")
            mfma(T, j)
            if T + 1 < nsteps: read(T + 1, j)
            if after: after(T, j)

def dppsum(regs, steps):
    for s in steps:
        for r in regs: a(f"v_add_f32_dpp v{r}, v{r}, v{r} row_ror:{s} row_mask:0xf bank_mask:0xf")
def finish_stats(rows, n):
    for s1, s2, mu, r, sd in rows: a(f"v_mul_f32 v{mu}, {fbits(-1.0/n)}, v{s1}\nv_mul_f32 v{s2}, {fbits(1.0/n)}, v{s2}")
    for s1, s2, mu, r, sd in rows: a(f"v_fma_f32 v{s2}, -v{mu}, v{mu}, v{s2}")
    for s1, s2, mu, r, sd in rows: a(f"v_max_f32 v{s2}, 0, v{s2}")
    for s1, s2, mu, r, sd in rows: a(f"v_add_f32 v{s2}, {fbits(1e-5)}, v{s2}")
    for s1, s2, mu, r, sd in rows: a(f"v_rsq_f32 v{r}, v{s2}")
    for s1, s2, mu, r, sd in rows:
        if sd is not None: a(f"v_mul_f32 v{sd}, v{s2}, v{r}")

a(f"""
s_cmp_ge_u32 s2, 256
s_cbranch_scc1 L_end
s_load_dwordx16 s[16:31], s[0:1], 0
s_load_dwordx8 s[32:39], s[0:1], 64
s_load_dwordx4 s[40:43], s[0:1], 96
s_load_dwordx2 s[44:45], s[0:1], 112
v_lshrrev_b32 v4, 6, v0
v_and_b32 v0, 63, v0
v_readfirstlane_b32 {sW}, v4
v_and_b32 v1, 15, v0
v_lshrrev_b32 v2, 4, v0
v_lshlrev_b32 v3, 4, v0
s_and_b32 {sXCD}, s2, 7
s_lshr_b32 {sIDX}, s2, 3
s_and_b32 {sCB}, {sIDX}, 7
s_lshr_b32 s3, {sIDX}, 3
s_lshl_b32 {sRB}, {sXCD}, 2
s_add_u32 {sRB}, {sRB}, s3
s_lshr_b32 {sKVW}, {sCB}, 1
s_getreg_b32 {sXCC}, hwreg(HW_REG_XCC_ID, 0, 4)
s_and_b32 {sXCC}, {sXCC}, 7
s_lshl_b32 {sGRP}, {sRB}, 2
s_add_u32 {sGRP}, {sGRP}, {sW}
s_lshl_b32 s55, {sGRP}, 14
s_lshl_b32 {sGRP}, {sGRP}, 7
s_add_u32 {sGRP}, {sGRP}, {F_HOP}
""")
a(f"""
s_cmp_eq_u32 {sW}, 3
s_cbranch_scc0 L_nopf
s_getpc_b64 s[64:65]
L_pc:
s_lshl_b32 s3, {sIDX}, 4
v_add_u32 v6, s3, v1
v_lshlrev_b32 v6, 7, v6
v_min_u32 v6, L_end-L_pc-4, v6
v_mov_b32 v7, s65
v_add_co_u32 v6, vcc, s64, v6
v_addc_co_u32 v7, vcc, 0, v7, vcc
s_mov_b64 exec, 0xffff
global_load_dword v24, v[6:7], off
s_mov_b64 exec, -1
L_nopf:
""")
def img32_regs(row, trb):
    a(f"""
v_lshrrev_b32 v4, 1, v0
v_and_b32 v5, 19, v4
v_bfe_u32 v6, v4, 2, 1
v_lshl_or_b32 v5, v6, 3, v5
v_bfe_u32 v6, v4, 3, 1
v_lshl_or_b32 v{row}, v6, 2, v5
v_lshrrev_b32 v4, 2, v1
v_and_b32 v5, 1, v2
v_lshl_add_u32 v4, v5, 2, v4
v_lshrrev_b32 v5, 1, v2
v_lshl_add_u32 v4, v5, 4, v4
v_lshlrev_b32 v4, 5, v4
v_and_b32 v5, 3, v1
v_lshl_add_u32 v{trb}, v5, 3, v4
""")
img32_regs(16, 17)
a(f"""
v_and_b32 v18, 1, v0
v_lshlrev_b32 v18, 4, v18
s_waitcnt lgkmcnt(0)
""")
if "dbg" in XP: a("s_mov_b64 s[96:97], s[0:1]")
stamp("start")
srd(WS, P_WS, hex(WS_SIZE))
a(f"s_load_dword {sEP}, s[{P_WS}:{P_WS+1}], {WS_EPOCH}")

def gemv_chain(lbase, trb, opaddr):
    a(f"v_add_u32 v7, {lbase}, v{trb}")
    def rd(T):
        b = 128 + (T % 4) * 8
        a(f"ds_read_b64_tr_b16 {vr(b,2)}, v7 offset:{T*1024}\nds_read_b64_tr_b16 {vr(b+2,2)}, v7 offset:{T*1024+256}")
        a(f"ds_read_b128 {vr(b+4,4)}, v{opaddr} offset:{T*64}")
    def cp(T):
        b = 128 + (T % 4) * 8
        a(f"v_mfma_f32_16x16x32_bf16 v[32:35], {vr(b,4)}, {vr(b+4,4)}, {'0' if T == 0 else 'v[32:35]'}")
    pipeline(16, rd, cp, 3, pre=3)

def round_bf16(regs):
    for i in range(0, len(regs), 2):
        x, y = regs[i], regs[i+1]
        a(f"v_cvt_pk_bf16_f32 v{y}, v{x}, v{y}\nv_lshlrev_b32 v{x}, 16, v{y}\nv_and_b32 v{y}, 0xffff0000, v{y}")

def silu8(src, dst):
    for i in range(4): a(f"v_lshlrev_b32 v{40+2*i}, 16, v{src+i}\nv_and_b32 v{41+2*i}, 0xffff0000, v{src+i}")
    for i in range(8): a(f"v_mul_f32 v{48+i}, {fbits(-math.log2(math.e))}, v{40+i}")
    for i in range(8): a(f"v_exp_f32 v{48+i}, v{48+i}")
    for i in range(8): a(f"v_add_f32 v{48+i}, 1.0, v{48+i}")
    for i in range(8): a(f"v_rcp_f32 v{48+i}, v{48+i}")
    for i in range(8): a(f"v_mul_f32 v{40+i}, v{40+i}, v{48+i}")
    for i in range(4): a(f"v_cvt_pk_bf16_f32 v{dst+i}, v{40+2*i}, v{41+2*i}")

Lw1, Lw2, Lw3, Lxi, Lxw, Lnz, Lsl, Lx2 = (a.label(x) for x in ("w1", "w2", "w3", "xi", "xw", "noz", "sl", "x2"))
a(f"s_lshl_b32 s64, {sRB}, 16")
srd(R1, P_X, 2048 * 1024, "s64")
srd(R2, P_WMOD, 512 * 6144)
a(f"s_and_b32 s3, {sCB}, 1\ns_cselect_b32 s64, s{P_WV}, s{P_WK}\ns_cselect_b32 s65, s{P_WV+1}, s{P_WK+1}")
srd(R3, 64, 16384)
srd(R0, P_C, 1024)
a(f"""
v_mov_b32 v36, 0
v_mov_b32 v37, 0
v_mov_b32 v38, 0
v_mov_b32 v39, 0
s_and_b32 s69, s2, 15
s_lshl_b32 s69, s69, 6
v_lshlrev_b32 v25, 4, v2
buffer_load_dwordx4 v[8:11], v25, {R0}, s69 offen
s_cmp_eq_u32 {sW}, 0
s_cbranch_scc0 {Lw1}
""")
a(f"""
v_lshrrev_b32 v4, 2, v0
v_and_b32 v5, 3, v0
v_and_b32 v6, 1, v5
v_lshlrev_b32 v6, 7, v6
v_lshrrev_b32 v5, 1, v5
v_mul_u32_u24 v5, 3072, v5
s_movk_i32 s3, 6144
v_mad_u32_u24 v4, v4, s3, v6
v_add_u32 v4, v4, v5
s_mul_i32 s64, {sIDX}, {16*6144}
s_lshl_b32 s3, {sXCD}, 8
s_add_u32 s64, s64, s3
buffer_load_dword v24, v4, {R2}, s64 offen
s_cmp_lt_u32 {sIDX}, 16
s_cbranch_scc0 {Lsl}
s_lshl_b32 s68, {sXCD}, 3
s_add_u32 s68, s68, {sIDX}
s_add_u32 s65, s68, 88
s_cmp_lt_u32 {sIDX}, 8
s_cselect_b32 s68, s68, s65
s_cbranch_scc0 {Lnz}
s_lshl_b32 s3, s68, 7
s_mov_b64 exec, 0xff
buffer_store_dwordx4 v[36:39], v3, {WS}, s3 offen sc1
s_mov_b64 exec, -1
{Lnz}:
""")
a(f"buffer_load_dwordx4 v[32:35], v3, {R0}, 0 offen\ns_lshl_b32 s66, s68, 5\ns_movk_i32 s3, 6144\nv_mad_u32_u24 v6, v16, s3, v18")
for n in range(16):
    a(f"s_mov_b32 m0, {L_G0 + n*1024}\nbuffer_load_dwordx4 v6, {R2}, s66 offen lds")
    if n < 15: a("s_add_u32 s66, s66, 196608")
a("s_waitcnt vmcnt(16)")
if "ms" in XP: stamp("m_c")
silu8(32, 32)
a(f"v_add_u32 v6, {L_SILU}, v3\nds_write_b128 v6, v[32:35]\nv_lshlrev_b32 v5, 4, v2\nv_add_u32 v6, {L_SILU}, v5")
a("s_waitcnt vmcnt(0) lgkmcnt(0)")
if "ms" in XP: stamp("m_dma")
gemv_chain(L_G0, 17, 6)
round_bf16([32, 33, 34, 35])
Lno1 = a.label("no1")
a(f"s_lshr_b32 s65, s68, 5\ns_bitcmp1_b32 0x12, s65\ns_cbranch_scc0 {Lno1}")
for i in range(4): a(f"v_add_f32 v{32+i}, 1.0, v{32+i}")
round_bf16([32, 33, 34, 35])
a(f"""
{Lno1}:
s_lshl_b32 s3, s68, 6
s_add_u32 s3, s3, {WS_MOD}
s_mov_b32 exec_lo, 0x00010001
s_mov_b32 exec_hi, 0x00010001
s_add_u32 s65, {sEP}, 1
s_and_b32 s65, s65, 0xffff
v_or_b32 v36, s65, v32
v_or_b32 v37, s65, v33
v_or_b32 v38, s65, v34
v_or_b32 v39, s65, v35
s_add_u32 s65, s3, {WS_MODT - WS_MOD}
buffer_store_dwordx4 v[36:39], v5, {WS}, s65 offen sc1
buffer_store_dwordx4 v[32:35], v5, {WS}, s3 offen sc1
s_mov_b64 exec, -1
""")
if "ms" in XP: stamp("m_pub")
a(f"""
v_add_u32 v6, s69, v6
ds_read_b128 v[8:11], v6
s_branch {Lxw}
{Lw1}:
s_lshl_b32 s66, {sCB}, 7
""")
srd(R0, P_WQ, 512 * 1024, "s66")
a(f"""
v_lshlrev_b32 v4, 7, v0
s_cmp_eq_u32 {sW}, 2
s_cbranch_scc1 {Lw2}
s_cmp_eq_u32 {sW}, 3
s_cbranch_scc1 {Lxi}
s_lshl_b32 s3, {sCB}, 13
buffer_load_dword v24, v4, {R1}, s3 offen
s_branch {Lxi}
{Lw2}:
s_lshr_b32 s3, {sIDX}, 1
s_lshl_b32 s3, s3, 10
v_and_b32 v4, 0x380, v4
buffer_load_dword v24, v4, {R3}, s3 offen
{Lxi}:
v_lshrrev_b32 v4, 3, v0
v_and_b32 v5, 7, v0
v_xor_b32 v5, v5, v2
v_lshlrev_b32 v5, 4, v5
v_lshl_add_u32 v22, v4, 10, v5
v_xor_b32 v23, 64, v22
v_add_u32 v23, {8192 - 1024}, v23
s_sub_u32 s64, {sW}, 1
s_mul_i32 s64, s64, 11
s_min_u32 s64, s64, 21
s_lshl_b32 s67, s64, 11
s_add_u32 s67, s67, {L_WQ}
""")
for i in range(11):
    a(f"s_lshr_b32 s65, s64, 3\ns_lshl_b32 s65, s65, 14\ns_and_b32 s3, s64, 7\ns_lshl_b32 s3, s3, 7\ns_add_u32 s65, s65, s3\ns_mov_b32 m0, s67\ns_add_u32 s64, s64, 1\ns_add_u32 s67, s67, 2048")
    a(f"buffer_load_dwordx4 v22, {R1}, s65 offen lds\nbuffer_load_dwordx4 v23, {R1}, s65 offen offset:1024 lds")
a(f"v_lshl_add_u32 v21, v16, 5, v18\ns_sub_u32 s64, {sW}, 1\ns_mul_i32 s64, s64, 5120\ns_add_u32 s67, s64, {L_WKV}")
for i in range(6): a(f"s_mov_b32 m0, s67\ns_add_u32 s67, s67, 1024\nbuffer_load_dwordx4 v21, {R3}, s64 offen lds\ns_add_u32 s64, s64, 1024")
a(f"""
s_cmp_eq_u32 {sW}, 3
s_cbranch_scc1 {Lw3}
s_and_b32 s3, {sRB}, 3
s_lshl_b32 s3, s3, 1
s_add_u32 s3, s3, {sW}
s_sub_u32 s3, s3, 1
s_lshl_b32 s3, s3, 16
v_lshlrev_b32 v4, 10, v0
buffer_load_dword v26, v4, {R0}, s3 offen
s_branch {Lx2}
{Lw3}:
s_mul_i32 s3, s2, 768
s_add_u32 s3, s3, {F_HOP}
s_mov_b32 exec_hi, 0xffff
buffer_store_dwordx4 v[36:39], v3, {WS}, s3 offen sc1
s_mov_b64 exec, -1
{Lx2}:
s_waitcnt vmcnt(29)
{Lsl}:
s_waitcnt vmcnt(31)
""")
a("s_cmp_eq_u32 s48, 0\ns_cbranch_scc0 L_cin\ns_waitcnt vmcnt(1)\nL_cin:")
silu8(8, 8)
a(f"""
s_waitcnt vmcnt(1)
{Lxw}:
s_lshl_b32 s67, {sW}, 14
s_add_u32 s67, s67, {L_WQ}
s_barrier
""")
stamp("xin")
a(f"""
v_lshrrev_b32 v4, 1, v1
v_xor_b32 v4, v4, v2
v_lshlrev_b32 v4, 4, v4
v_lshl_add_u32 v4, v1, 7, v4
v_add_u32 v4, s67, v4
v_xor_b32 v5, 64, v4
s_waitcnt lgkmcnt(0)
s_add_u32 {sEP}, {sEP}, 1
s_and_b32 {sTAG}, {sEP}, 0xffff
""")
for T in range(16): a(f"ds_read_b128 {vr(64+4*T,4)}, v{4 + (T & 1)} offset:{(T >> 1)*2048}")
a(f"s_lshl_b32 s66, {sCB}, 7")
srd(R0, P_WQ, 512 * 1024, "s66")
a(f"""
v_lshrrev_b32 v4, 3, v0
v_bfe_u32 v5, v0, 1, 2
v_bfe_u32 v6, v4, 1, 1
v_xor_b32 v5, v5, v6
v_lshlrev_b32 v5, 5, v5
v_lshl_add_u32 v5, v4, 10, v5
v_add_u32 v19, v5, v18
v_xor_b32 v20, 64, v19
""")
a(f"s_lshl_b32 s66, {sW}, 17")
def stage(k):
    for n in range(4): a(f"s_mov_b32 m0, s67\ns_add_u32 s67, s67, 1024\nbuffer_load_dwordx4 v{19 + (n & 1)}, {R0}, s66 offen lds\ns_add_u32 s66, s66, 8192")
for i in range(64):
    if i % 4 == 0: a(f"s_waitcnt lgkmcnt({15 - i // 4})")
    a(f"v_lshlrev_b32 v{128+2*i}, 16, v{64+i}\nv_and_b32 v{129+2*i}, 0xffff0000, v{64+i}")
for k in range(4): a(f"v_pk_add_f32 {vr(32+2*k,2)}, {vr(128+4*k,2)}, {vr(130+4*k,2)}")
for k in range(4): a(f"v_pk_mul_f32 {vr(40+2*k,2)}, {vr(128+2*k,2)}, {vr(128+2*k,2)}")
for i in range(4, 64):
    if i >= 8: a(f"v_pk_add_f32 {vr(32+2*(i%4),2)}, {vr(32+2*(i%4),2)}, {vr(128+2*i,2)}")
    a(f"v_pk_fma_f32 {vr(40+2*(i%4),2)}, {vr(128+2*i,2)}, {vr(128+2*i,2)}, {vr(40+2*(i%4),2)}")
    if i % 16 == 7: stage(i // 16)
for b in (32, 40):
    a(f"v_pk_add_f32 {vr(b,2)}, {vr(b,2)}, {vr(b+2,2)}\nv_pk_add_f32 {vr(b+4,2)}, {vr(b+4,2)}, {vr(b+6,2)}\nv_pk_add_f32 {vr(b,2)}, {vr(b,2)}, {vr(b+4,2)}\nv_add_f32 v{b}, v{b}, v{b+1}")
xgroup_sum2(32, 33, 40, 41)
finish_stats([(32, 40, 34, 36, None)], 512)
a("v_mul_f32 v34, v34, v36")
for i in range(64): a(f"v_pk_fma_f32 {vr(128+2*i,2)}, {vr(128+2*i,2)}, v[36:37], v[34:35] op_sel_hi:[1,0,0]")
Lna = a.label("nkvf")
a(f"s_cmp_eq_u32 {sW}, {sKVW}\ns_cbranch_scc0 {Lna}\nv_add_u32 v7, {L_WKV}, v17")
for T in range(16): a(f"ds_read_b64_tr_b16 {ar(4*T,2)}, v7 offset:{T*1024}\nds_read_b64_tr_b16 {ar(4*T+2,2)}, v7 offset:{T*1024+256}")
a(f"{Lna}:")
stamp("ln1")
def tagcheck(regs):
    out = [f"v_xor_b32 v{r}, {sTAG}, v{r}" for r in regs]
    out.append(f"v_or3_b32 v4, v{regs[0]}, v{regs[1]}, v{regs[2]}")
    for i in range(3, len(regs) - 1, 2): out.append(f"v_or3_b32 v4, v4, v{regs[i]}, v{regs[i+1]}")
    out.append(f"v_or_b32 v4, v4, v{regs[-1]}\nv_and_b32 v4, 0xffff, v4\nv_cmp_ne_u32 vcc, 0, v4")
    return "\n".join(out)
a(f"s_lshl_b32 s64, {sW}, 10\ns_add_u32 s65, s64, {L_PAR}\ns_add_u32 s64, s64, {WS_MODT}\nv_add_u32 v5, s65, v3")
poll(f"buffer_load_dwordx4 v[32:35], v3, {WS}, s64 offen sc1", tagcheck([32, 33, 34, 35]), "-1")
a("ds_write_b128 v5, v[32:35]\ns_waitcnt lgkmcnt(0)\ns_barrier")
stamp("barP")
a(f"s_sub_u32 s69, {sW}, {sKVW}")
LV, Lh, Lnkv, LV2, Lst, Lkve = (a.label(x) for x in ("isV", "hdone", "nokv", "isV2", "kvst", "kve"))
a(f"v_lshlrev_b32 v19, 5, v2\nv_add_u32 v19, {L_PAR}, v19\ns_bitcmp1_b32 {sCB}, 0\ns_cbranch_scc1 {LV}")
def hpass(isV):
    def rd(T):
        b = 32 + (T & 1) * 16
        for k, off in enumerate((2048, 2064, 0, 16)): a(f"ds_read_b128 {vr(b+4*k,4)}, v19 offset:{off + T*128}")
    def kv(T):
        A, B = (vr(64+4*T,4), ar(4*T,4)) if isV else (ar(4*T,4), vr(64+4*T,4))
        a(f"v_mfma_f32_16x16x32_bf16 v[12:15], {A}, {B}, {'0' if T == 0 else 'v[12:15]'}")
    def cp(T):
        b = 32 + (T & 1) * 16
        for k in range(4): a(f"v_pk_fma_f32 {vr(128+8*T+2*k,2)}, {vr(128+8*T+2*k,2)}, {vr(b+2*k,2)}, {vr(b+8+2*k,2)}")
        if T: kv(T - 1)
        for k in range(4): a(f"v_cvt_pk_bf16_f32 v{64+4*T+k}, v{128+8*T+2*k}, v{129+8*T+2*k}")
    pipeline(16, rd, cp, 4)
    kv(15)
hpass(False)
a(f"s_branch {Lh}\n{LV}:")
hpass(True)
a(f"{Lh}:")
if "ms" in XP: stamp("h")
a(f"""
s_cmp_eq_u32 s69, 0
s_cbranch_scc0 {Lnkv}
s_lshl_b32 s64, {sRB}, 1
s_lshr_b32 s3, {sW}, 1
s_add_u32 s64, s64, s3
s_mul_i32 s64, s64, {REC}
s_add_u32 s64, s64, {WS_KV}
s_and_b32 s65, {sW}, 1
v_lshrrev_b32 v20, 5, v0
v_cvt_pk_bf16_f32 v36, v12, v13
v_cvt_pk_bf16_f32 v37, v14, v15
v_mov_b32 v38, v36
v_mov_b32 v39, v37
v_permlane16_swap_b32 v36, v38
v_permlane16_swap_b32 v37, v39
s_bitcmp1_b32 {sCB}, 0
s_cbranch_scc1 {LV2}
v_lshlrev_b32 v20, 9, v20
v_lshl_add_u32 v20, v1, 4, v20
s_lshl_b32 s65, s65, 8
s_add_u32 s64, s64, s65
s_add_u32 s64, s64, 1088
s_mov_b32 exec_lo, 0x0000ffff
s_mov_b32 exec_hi, 0x0000ffff
s_branch {Lst}
{LV2}:
v_mul_u32_u24 v20, 272, v20
v_and_b32 v4, 31, v0
v_lshl_add_u32 v20, v4, 4, v20
s_mul_i32 s65, s65, 544
s_add_u32 s64, s64, s65
s_mov_b32 exec_lo, 0xffff0000
s_mov_b32 exec_hi, 0xffff0000
v_mov_b32 v36, 0x3f803f80
v_mov_b32 v37, 0x3f803f80
v_mov_b32 v38, 0x3f803f80
v_mov_b32 v39, 0x3f803f80
s_mov_b32 exec_lo, 0x0001ffff
s_mov_b32 exec_hi, 0x0001ffff
{Lst}:
buffer_store_dwordx4 v[36:39], v20, {WS}, s64 offen sc1
s_mov_b64 exec, -1
{Lnkv}:
s_lshl_b32 s3, {sXCC}, 2
s_lshl_b32 s3, 1, s3
v_mov_b32 v20, s3
s_lshl_b32 s64, {sRB}, 7
v_mov_b32 v21, {OOB}
v_cmp_eq_u32 vcc, 0, v0
v_cndmask_b32 v21, v21, v0, vcc
s_cmp_eq_u32 s69, 0
s_cselect_b64 vcc, -1, 0
""")
def arrive(T, j):
    if (T, j) != (4, 0): return
    L = a.label("arr")
    a(f"s_cbranch_vccz {L}\ns_waitcnt vmcnt(0)\nbuffer_atomic_add v20, v21, {WS}, s64 offen sc1\n{L}:")
    if "ms" in XP: stamp("arr")
def trbase128(dst, rowexpr_v, fexpr_v, lbase):
    a(f"v_and_b32 v6, 3, v1\nv_lshlrev_b32 v6, 3, v6\nv_lshl_add_u32 v6, v{rowexpr_v}, 7, v6\nv_lshl_add_u32 v6, v{fexpr_v}, 5, v6\nv_add_u32 v{dst}, {lbase}, v6")
    for j in range(1, 4): a(f"v_xor_b32 v{dst+j}, {j*32}, v{dst}")
a("v_lshrrev_b32 v4, 2, v1\nv_bfe_u32 v5, v1, 3, 1\nv_and_b32 v7, 1, v2\nv_lshl_or_b32 v5, v7, 1, v5\nv_lshl_add_u32 v4, v2, 3, v4")
trbase128(24, 4, 5, L_WQ)
fragloop(16, 4,
         lambda T, j: a(f"ds_read_b64_tr_b16 {vr(32+(T&1)*16+4*j,2)}, v{24+j} offset:{T*4096}\nds_read_b64_tr_b16 {vr(34+(T&1)*16+4*j,2)}, v{24+j} offset:{T*4096+512}"),
         lambda T, j: a(f"v_mfma_f32_16x16x32_bf16 {vr(128+4*j,4)}, {vr(32+(T&1)*16+4*j,4)}, {vr(64+4*T,4)}, {'0' if T == 0 else vr(128+4*j,4)}"), nper=2, after=arrive)
for i in range(16): a(f"v_mul_f32 v{128+i}, {fbits(0.25*math.log2(math.e))}, v{128+i}")
for i in range(8): a(f"v_cvt_pk_bf16_f32 v{16+i}, v{128+2*i}, v{129+2*i}")
for e in range(2): a(f"v_permlane16_swap_b32 v{16+4*e}, v{18+4*e}\nv_permlane16_swap_b32 v{17+4*e}, v{19+4*e}")
stamp("q")
a(f"""
v_add_u32 v24, {L_KV + 1088}, v3
v_add_u32 v25, {31*REC}, v24
v_add_u32 v26, {31*REC}, v25
v_lshrrev_b32 v4, 5, v0
v_mul_u32_u24 v4, 272, v4
v_and_b32 v5, 31, v0
v_lshl_add_u32 v4, v5, 4, v4
v_add_u32 v27, {L_KV}, v4
v_mov_b32 v4, 0x40000
v_cmp_lt_u32 vcc, {16 if PADZERO else 99}, v5
v_cndmask_b32 v27, v27, v4, vcc
v_add_u32 v28, {31*REC}, v27
v_add_u32 v29, {31*REC}, v28
v_mov_b32 v30, 0xdddd
v_lshrrev_b32 v7, 3, v0
v_and_b32 v6, 7, v0
v_xor_b32 v5, v6, v2
v_lshlrev_b32 v5, 4, v5
v_lshl_add_u32 v168, v7, 12, v5
v_xor_b32 v169, 64, v168
v_add_u32 v169, {0x8000 - 1024}, v169
v_lshrrev_b32 v4, 1, v1
v_xor_b32 v4, v4, v2
v_lshlrev_b32 v4, 4, v4
v_lshl_add_u32 v4, v1, 7, v4
s_mul_i32 s77, {sW}, 12288
v_add_u32 v170, s77, v4
v_xor_b32 v171, 64, v170
v_lshlrev_b32 v4, 10, v1
v_lshl_add_u32 v172, v2, 3, v4
v_mov_b32 v31, {OOB}
v_lshlrev_b32 v4, 7, v6
v_lshl_add_u32 v173, v7, 12, v4
v_lshlrev_b32 v4, 7, v0
v_cmp_gt_u32 vcc, 56, v0
v_cndmask_b32 v174, v31, v4, vcc
v_cmp_gt_u32 vcc, 14, v0
v_cndmask_b32 v175, v31, v4, vcc
v_cmp_gt_u32 vcc, 32, v0
v_cndmask_b32 v196, v31, v4, vcc
v_cmp_gt_u32 vcc, 33, v0
v_cndmask_b32 v197, v31, v4, vcc
v_cmp_eq_u32 vcc, 0, v0
v_cndmask_b32 v198, v31, v4, vcc
v_mov_b32 v199, 1
""")
for i in range(32): a(f"v_mov_b32 v{80+i}, 0")
Lr2, Lr3, Lre, Lrm, Lrr = (a.label(x) for x in ("r2", "r3", "re", "rm", "rr"))
a(f"""
v_lshlrev_b32 v6, 4, v6
v_lshrrev_b32 v4, 2, v1
v_and_b32 v5, 3, v1
v_lshlrev_b32 v5, 3, v5
s_lshl_b32 s68, {sW}, 12
v_add_u32 v5, s68, v5
s_cmp_eq_u32 {sW}, 2
s_cbranch_scc1 {Lr2}
s_cmp_eq_u32 {sW}, 3
s_cbranch_scc1 {Lr3}
s_and_b32 s64, {sRB}, 15
s_mul_i32 s64, s64, 114688
s_lshr_b32 s3, {sRB}, 4
s_mul_i32 s3, s3, 1792
s_add_u32 s64, s64, s3
s_mul_i32 s3, {sCB}, 224
s_add_u32 s64, s64, s3
s_lshl_b32 s3, {sW}, 7
s_add_u32 s64, s64, s3
""")
srd(R2, P_WIN, 512 * 3584, "s64")
a(f"""
s_movk_i32 s3, 3584
v_mad_u32_u24 v176, v7, s3, v6
s_movk_i32 s20, {8*3584}
s_mov_b32 s21, {16*3584}
s_mov_b32 s22, {24*3584}
v_lshl_add_u32 v4, v2, 2, v4
v_lshl_add_u32 v177, v4, 7, v5
v_add_u32 v178, 2048, v177
s_lshl_b32 s36, {sCB}, 5
s_add_u32 s36, s36, {sRB}
s_mul_i32 s36, s36, {SLOT}
s_lshl_b32 s3, {sW}, 12
s_add_u32 s36, s36, s3
s_add_u32 s36, s36, {WS_WINF}
s_mov_b32 s24, s36
s_cmp_eq_u32 {sW}, 0
s_cselect_b32 s37, s36, {WS_SIZE}
s_branch {Lre}
{Lr2}:
s_min_u32 s67, {sRB}, 27
s_mul_i32 s64, s67, 37
s_lshr_b32 s64, s64, 8
s_mul_i32 s3, s64, 7
s_sub_u32 s65, s67, s3
s_mul_i32 s64, s64, 224
s_lshl_b32 s3, s65, 5
s_add_u32 s66, s3, 16
s_cmp_lt_u32 s65, 3
s_cselect_b32 s3, s3, s66
s_cmp_eq_u32 s65, 6
s_cselect_b32 s3, 96, s3
s_cselect_b32 s21, 112, 16
s_lshl_b32 s21, s21, 10
s_add_u32 s22, s21, 8192
s_movk_i32 s20, 8192
s_add_u32 s64, s64, s3
s_lshl_b32 s64, s64, 10
s_lshl_b32 s3, {sCB}, 7
s_add_u32 s64, s64, s3
""")
srd(R2, P_WOUT, 896 * 1024, "s64")
a(f"""
v_lshl_add_u32 v176, v7, 10, v6
s_mul_i32 s36, {sCB}, 28
s_add_u32 s36, s36, s67
s_lshl_b32 s36, s36, 12
s_add_u32 s36, s36, {WS_WOUTF}
s_cmp_lt_u32 {sRB}, 28
s_cselect_b32 s36, s36, {WS_SIZE}
s_mov_b32 s37, s36
s_mov_b32 s24, s36
s_cmp_eq_u32 s65, 6
s_cbranch_scc1 {Lrm}
v_lshl_add_u32 v4, v2, 2, v4
v_lshl_add_u32 v177, v4, 7, v5
v_add_u32 v178, 2048, v177
s_branch {Lre}
{Lrm}:
v_lshl_add_u32 v4, v2, 3, v4
v_lshl_add_u32 v177, v4, 7, v5
v_add_u32 v178, 512, v177
s_branch {Lre}
{Lr3}:
s_lshr_b32 s67, {sRB}, 1
s_lshl_b32 s64, s67, 15
s_lshl_b32 s3, {sCB}, 7
s_add_u32 s64, s64, s3
""")
srd(R2, P_WO, 512 * 1024, "s64")
a(f"""
v_lshl_add_u32 v176, v7, 10, v6
s_movk_i32 s20, 8192
s_movk_i32 s21, 16384
s_movk_i32 s22, 24576
v_and_b32 v6, 1, v2
v_lshl_add_u32 v4, v6, 4, v4
v_lshrrev_b32 v6, 1, v2
v_lshl_add_u32 v4, v6, 2, v4
v_lshl_add_u32 v177, v4, 7, v5
v_add_u32 v178, 1024, v177
s_lshl_b32 s36, {sCB}, 4
s_add_u32 s36, s36, s67
s_lshl_b32 s36, s36, 12
s_add_u32 s36, s36, {WS_WOF}
s_bitcmp1_b32 {sRB}, 0
s_cselect_b32 s37, s36, {WS_SIZE}
s_cselect_b32 s36, {WS_SIZE}, s36
s_mov_b32 s24, s37
{Lre}:
""")
a(f"""
s_and_b32 s64, s2, 15
s_mul_i32 s64, s64, {32*6144}
s_lshr_b32 s65, s2, 4
s_lshl_b32 s3, s65, 7
s_add_u32 s64, s64, s3
s_lshl_b32 s3, {sW}, 5
s_add_u32 s64, s64, s3
s_cmp_lt_u32 s65, 8
s_cselect_b32 s3, 0, 2048
s_add_u32 s64, s64, s3
s_add_u32 s64, s64, 2048
""")
srd(R3, P_WMOD, 512 * 6144, "s64")
img32_regs(212, 213)
a(f"""
s_lshl_b32 s34, s65, 8
s_lshl_b32 s3, {sW}, 6
s_add_u32 s34, s34, s3
s_add_u32 s34, s34, {WS_G2}
v_and_b32 v4, 1, v0
v_lshlrev_b32 v4, 4, v4
s_movk_i32 s3, 6144
v_mad_u32_u24 v212, v212, s3, v4
s_lshl_b32 s35, {sW}, 10
s_add_u32 s35, s35, {L_G2}
v_add_u32 v213, s35, v213
v_lshlrev_b32 v4, 2, v0
v_cmp_gt_u32 vcc, 16, v0
v_cndmask_b32 v214, v31, v4, vcc
v_cmp_gt_u32 vcc, 48, v0
v_cndmask_b32 v215, v31, v4, vcc
s_cmp_eq_u32 {sW}, 0
s_cselect_b64 vcc, -1, 0
v_cndmask_b32 v215, v215, v4, vcc
s_lshr_b32 s3, {sRB}, 4
s_mul_i32 s3, s3, 3584
s_mul_i32 s28, {sCB}, 448
s_add_u32 s28, s28, s3
s_lshl_b32 s3, {sW}, 8
s_add_u32 s28, s28, s3
s_add_u32 s28, s28, {WS_C12}
s_cmp_lt_u32 {sW}, 2
s_cselect_b32 s28, s28, {WS_SIZE}
s_add_u32 s29, s28, 7168
v_and_b32 v4, 1, v0
v_lshlrev_b32 v4, 11, v4
v_sub_u32 v4, 2048, v4
v_lshl_add_u32 v4, v2, 4, v4
v_and_b32 v5, 2, v0
v_cmp_eq_u32 vcc, 0, v5
v_cndmask_b32 v216, v31, v4, vcc
s_and_b32 s25, {sRB}, 15
s_lshl_b32 s25, s25, 7
s_add_u32 s25, s25, {WS_MOD + 3*2048}
""")
a(f"s_lshl_b32 s64, {sRB}, 18\ns_lshl_b32 s3, {sW}, 10\ns_add_u32 s64, s64, s3")
srd(R0, P_WSP, 2048 * 4096, "s64")
a(f"s_lshl_b32 s64, {sCB}, 7\ns_add_u32 s64, s64, s55")
srd(R1, P_X, 2048 * 1024, "s64")
for s_ in range(4): a(f"s_add_u32 s3, {sW}, {s_}\ns_and_b32 s3, s3, 3\ns_lshl_b32 s{70+s_}, s3, 16")
a(f"""
s_and_b32 s23, {sRB}, 3
s_lshl_b32 s19, {sCB}, 15
s_lshl_b32 s39, {sCB}, 9
s_mov_b32 s38, {F_P}
s_add_u32 s39, s39, s38
s_lshl_b32 s3, {sW}, 7
s_add_u32 s39, s39, s3
s_lshl_b32 s3, s23, 2
s_add_u32 s3, s3, {sW}
s_mul_i32 s26, s3, {SLOT}
s_mul_i32 s27, s3, {SLOT // 4}
s_mul_i32 s3, {sCB}, {32*SLOT}
s_add_u32 s27, s27, s3
s_add_u32 s27, s27, {WS_WINF + 28*SLOT}
s_add_u32 s0, s26, s3
s_add_u32 s0, s0, {WS_WINF}
s_mul_i32 s3, {sCB}, {28*4096}
s_add_u32 s26, s26, s3
s_add_u32 s26, s26, {WS_WOUTF}
s_lshl_b32 s69, {sCB}, 16
s_add_u32 s69, s69, {WS_WOF}
s_lshl_b32 s64, {sW}, 11
s_add_u32 s65, s64, {L_KV}
s_add_u32 s64, s64, {WS_KV}
s_mul_i32 s66, {sIDX}, {33*128}
s_add_u32 s66, s66, {WS_KV}
s_lshl_b32 s67, {sRB}, 7
s_add_u32 s67, s67, {F_B}
""")
if "ms" in XP: stamp("setup")
a(f"""
s_lshl_b32 s12x, s55, 1
s_lshl_b32 s3, {sCB}, 11
s_add_u32 s16, s12x, s3
s_add_u32 s16, s16, {WS_X}
s_add_u32 s17, s16, 16384
v_lshlrev_b32 v4, 7, v1
v_lshl_add_u32 v4, v2, 14, v4
v_add_u32 v202, s16, v4
s_lshr_b32 s74, s55, 4
s_lshl_b32 s3, {sCB}, 7
s_add_u32 s74, s74, s3
s_add_u32 s74, s74, {WS_ST1}
v_and_b32 v5, 1, v0
v_mul_u32_u24 v5, {WS_ST2 - WS_ST1}, v5
v_add_u32 v5, s74, v5
v_cmp_lt_u32 vcc, 31, v0
v_cndmask_b32 v202, v202, v5, vcc
v_cmp_gt_u32 vcc, 2, v0
v_cndmask_b32 v217, v31, v5, vcc
v_lshlrev_b32 v218, 4, v2
s_lshl_b32 s3, {sCB}, 8
s_add_u32 s18, s3, {WS_G2}
s_add_u32 s2x, s3, {WS_MOD + 4*2048}
""".replace("s12x", "s75").replace("s2x", "s30"))
Lnb = a.label("noB")
a(f"s_cmp_eq_u32 {sW}, {sKVW}\ns_cbranch_scc0 {Lnb}\nv_lshlrev_b32 v5, 7, v0\ns_mov_b32 s1, {F_B}")
poll(f"buffer_load_dword v4, v5, {WS}, s1 offen sc1",
     "v_lshrrev_b32 v6, 4, v4\nv_and_b32 v6, 0x0f0f0f0f, v6\nv_and_b32 v4, 0x0f0f0f0f, v4\nv_add_u32 v4, v4, v6\nv_sad_u8 v4, v4, 0, 0\nv_cmp_gt_u32 vcc, 8, v4",
     "0xffffffff")
a(f"buffer_load_dword v200, v197, {WS}, s66 offen sc1\ns_barrier\ns_branch L_Bdone\n{Lnb}:\ns_waitcnt vmcnt(0) lgkmcnt(0)\ns_barrier\nL_Bdone:")
stamp("barB")
Lne = a.label("noep")
a(f"s_or_b32 s3, s2, {sW}\ns_cbranch_scc1 {Lne}\nv_mov_b32 v4, {sEP}\ns_mov_b32 s3, {WS_EPOCH}\nbuffer_store_dword v4, v198, {WS}, s3 offen sc1\n{Lne}:")
vm.n = 0
def kv_group(i):
    if i < 16:
        return (["s_mov_b32 m0, s65"], [f"buffer_load_dwordx4 v3, {WS}, s64 offen sc1 lds", f"buffer_load_dwordx4 v3, {WS}, s64 offen offset:1024 sc1 lds"],
                f"kvg{i}", ["s_add_u32 s64, s64, 8192", "s_add_u32 s65, s65, 8192"])
    return ([f"s_lshl_b32 s3, {sW}, 10", "s_sub_u32 s64, s64, s3", "s_sub_u32 m0, s65, s3"], [f"buffer_load_dwordx4 v3, {WS}, s64 offen sc1 lds"], "kvg16", [])
def emit_item(x):
    pre, ins, tag, post = x
    for p in pre: a(p)
    for q_ in ins: vm.op(q_, tag)
    for p in post: a(p)
for i in range(2): emit_item(kv_group(i))

def win_items(half, grp, slot0, tag):
    ld = lambda i: f"buffer_load_dwordx4 v3, {WS}, s74 offen offset:{(i & 3)*1024} sc1 lds"
    first = [f"s_lshl_b32 s74, {sCB}, 5", f"s_add_u32 s74, s74, {sW}", f"s_mul_i32 s74, s74, {SLOT}", f"s_add_u32 s74, s74, {WS_WINF + (half*16 + grp*4)*SLOT}"] + slot0
    return [(first + ["s_mov_b32 m0, s75"], [ld(0), ld(1)], tag, []), (["s_mov_b32 m0, s75"], [ld(2), ld(3)], tag, ["s_add_u32 s74, s74, 4096", "s_add_u32 s75, s75, 4096"]),
            (["s_mov_b32 m0, s75"], [ld(4), ld(5)], tag, []), (["s_mov_b32 m0, s75"], [ld(6)], tag, [])]
def lin_slot(base): return [f"s_mul_i32 s75, {sW}, {SLOT}", f"s_add_u32 s75, s75, {base}"]

def kaddr(t): return f"v{24 + t//31} offset:{(t % 31)*REC}"
def vaddr(t, m): return f"v{27 + t//31} offset:{(t % 31)*REC + m*544}"
Kb = lambda t: vr(144 + 4*(t & 1), 4)
Vb = lambda t, m: vr(152 + 8*(t & 1) + 4*m, 4)
Sb = lambda u: 32 + 16*(u % 3)
Q = lambda e: vr(16 + 4*e, 4)
O = lambda e: 80 + 16*e
C = lambda e: 112 + 16*e
vm.wait("kvg0"); a("s_barrier")
stamp("kv0")
if "clk" in XP: a("s_memtime s[96:97]\ns_memrealtime s[98:99]\ns_waitcnt lgkmcnt(0)")
a(f"ds_read_b128 {Kb(0)}, {kaddr(0)}\nds_read_b128 {Kb(1)}, {kaddr(1)}\ns_waitcnt lgkmcnt(1)")
for e in range(2): a(f"v_mfma_f32_32x32x16_bf16 {vr(32+16*e,16)}, {Kb(0)}, {Q(e)}, 0")
def rowmax(S, dst, first):
    for i in range(0, 16, 2):
        if first and i == 0: a(f"v_max_f32 v{dst}, v{S}, v{S+1}")
        else: a(f"v_max3_f32 v{dst}, v{S+i}, v{S+i+1}, v{dst}")
def negbcast(src, e):
    a(f"v_mov_b32 v6, v{src}\nv_permlane32_swap_b32 v{src}, v6\nv_max_f32 v{src}, v{src}, v6\nv_sub_f32 v{C(e)}, 0, v{src}")
    for i in range(1, 16): a(f"v_mov_b32 v{C(e)+i}, v{C(e)}")
for e in range(2): rowmax(32 + 16*e, 4 + e, True)
for e in range(2): negbcast(4 + e, e)
a(f"v_mfma_f32_32x32x16_bf16 {vr(Sb(0),16)}, {Kb(0)}, {Q(0)}, {vr(C(0),16)}")

plan = {}
TP, TR = 19, 28
def put(t, slot, x): plan.setdefault((t, slot), []).append(x)
PREV = {"e1x": ("e0", 0), "o0": ("e1", 0), "e1": ("e0", 0), "eq": ("o1", -1), "oq": ("e1", 0), "e0": ("o1", -1)}
assert True
def vitem(t, slot, x):
    pre, ins, tag, post = x
    ps, dt = PREV[slot]
    pre = [p + " " for p in pre]
    m0 = [p for p in pre if " m0," in p]; rest = [p for p in pre if " m0," not in p]
    if t + dt < 0 or len(pre) > 2:
        pp, dd = PREV[ps] if ps in PREV else ("o0", 0)
        if t + dt + dd < 0: put(t, slot, ("salu", pre))
        else: put(t + dt + dd, pp + "a", ("salu", rest)); put(t + dt, ps + "a", ("salu", m0))
    else: put(t + dt, ps + "a", ("salu", pre))
    put(t, slot, ("vm", ins, tag, m0[0] if m0 else None))
    if post: put(t, slot, ("salu", post))
for i in range(2, 8): vitem((i - 2) // 2, ("e1", "o0")[i & 1], kv_group(i))
for i in range(8, 16): vitem(21 + (i - 8) // 2, ("e1", "o0")[i & 1], kv_group(i))
vitem(25, "e1", kv_group(16))
for n, so in enumerate(("0", "s20", "s21", "s22")):
    vitem(3 + (n >> 1), ("e1", "o0")[n & 1], ([f"s_add_u32 m0, s68, {n*1024}"], [f"buffer_load_dwordx4 v176, {R2}, {so} offen lds"], "praw", []))
put(1, "eq", ("vm", [f"buffer_load_dword v253, v198, {WS}, s67 offen sc1"], None))
for n in range(2):
    put(1 + n, "oq", ("vm", [f"buffer_store_dwordx4 v[16:19], v3, {WS}, s{16+n} offen offset:{i*1024} sc1" for i in range(2)], None))
put(0, "eq", ("vm", [f"buffer_store_dword v16, v217, {WS}, 0 offen sc1"], None))
put(46, "e1", ("vm", [f"buffer_load_dword v200, v202, {WS}, 0 offen"], None))
for j in range(8): put(49 + j, "oq", ("vm", [f"buffer_load_dwordx4 {vr(220+4*j,4)}, v218, {WS}, s{18 if j < 4 else 30} offen offset:{(j & 3)*64} sc1"], None))
put(5, "o0", ("vm", [f"buffer_load_dword v200, v173, {R0}, s19 offen"], None))
put(3, "eq", ("vm", [f"buffer_load_dword v200, v198, {WS}, {sGRP} offen sc1"], None))
vitem(5, "e1x", (["s_mov_b32 m0, s35"], [f"buffer_load_dwordx4 v212, {R3}, 0 offen lds"], "praw", []))
put(2, "eq", ("vm", [f"buffer_load_dwordx4 v[204:207], v216, {WS}, s25 offen sc1"], None))
put(0, "oq", ("vm", [f"buffer_load_dwordx4 v[208:211], v216, {WS}, s25 offen offset:64 sc1"], None))
put(TP - 1, "o1b", ("wait", "praw"))
put(TP - 1, "o1x", ("ds", ["ds_read_b64_tr_b16 v[220:221], v213", "ds_read_b64_tr_b16 v[222:223], v213 offset:256"]))
put(TP, "e0", ("salu", [f"v_cvt_pk_bf16_f32 v{204+i}, v{204+2*i}, v{205+2*i}" for i in range(4)]))
put(TP, "o0", ("salu", ["v_mfma_f32_16x16x32_bf16 v[224:227], v[8:11], v[220:223], 0"]))
put(TP + 2, "e0", ("salu", [f"v_mfma_f32_16x16x32_bf16 {vr(228+4*j,4)}, v[204:207], {vr(180+4*j,4)}, 0" for j in range(4)]))
put(TP + 3, "e0", ("salu", ["s_mov_b32 exec_lo, 0xffff0000", "s_mov_b32 exec_hi, 0", "v_mov_b32 v228, v232", "v_mov_b32 v229, v233",
                            "s_mov_b32 exec_lo, 0", "s_mov_b32 exec_hi, 0x0000ffff", "v_mov_b32 v228, v236", "v_mov_b32 v229, v237",
                            "s_mov_b32 exec_hi, 0xffff0000", "v_mov_b32 v228, v240", "v_mov_b32 v229, v241", "s_mov_b64 exec, -1"]))
put(25, "o0", ("vm", [f"buffer_atomic_add_f32 v228, v215, {WS}, s28 offen", f"buffer_atomic_add_f32 v229, v215, {WS}, s29 offen"], None))
put(25, "oq", ("vm", [f"buffer_atomic_add_f32 v224, v214, {WS}, s34 offen"], None))
for j in range(4):
    put(TP + (j >> 1), ("eq", "oq")[j & 1], ("ds", [f"ds_read_b64_tr_b16 {vr(180+4*j,2)}, v177 offset:{j*32}", f"ds_read_b64_tr_b16 {vr(182+4*j,2)}, v178 offset:{j*32}"]))
put(26, "e1", ("vm", [f"buffer_store_dwordx4 {vr(180+4*j,4)}, v3, {WS}, s36 offen offset:{j*1024} sc1" for j in (0, 1)], None))
put(26, "o0", ("vm", [f"buffer_store_dwordx4 {vr(188,4)}, v3, {WS}, s24 offen offset:2048 sc1", f"buffer_store_dwordx4 {vr(192,4)}, v3, {WS}, s37 offen offset:3072 sc1"], "pst"))
put(TR + 2, "oq", ("vm", [f"buffer_atomic_add v199, v198, {WS}, s39 offen sc1"], None))
put(40, "oq", ("vm", [f"buffer_load_dword v201, v196, {WS}, s38 offen sc1"], "pchk"))
for k in range(36):
    t, hf = TR + (k >> 1), k & 1
    if k < 32:
        T2, s_ = k >> 2, k & 3
        if s_ == 0: pass
        vitem(t, ("e1", "o0")[hf], ([f"s_add_u32 s75, s{70+s_}, {T2*128}", f"s_add_u32 m0, s77, {(k % 6)*2048}"],
                                    [f"buffer_load_dwordx4 v168, {R0}, s75 offen lds", f"buffer_load_dwordx4 v169, {R0}, s75 offen offset:1024 lds"], f"ring{k}", []))
    if k >= 4:
        T2, s_ = (k - 4) >> 2, (k - 4) & 3
        if hf == 0: put(t - 1, "o1b", ("wait", f"ring{k-3}"))
        for e_ in range(2): put(t, (("eq", "e0"), ("oq", "o1x"))[hf][e_], ("ds", [f"ds_read_b128 {ar(((2*T2+e_)*4+s_)*4,4)}, v{170+e_} offset:{((k-4) % 6)*2048}"]))
for grp, t0 in ((0, 44), (1, 56), (2, 60)):
    for n, x in enumerate(win_items(1, grp, lin_slot(slotA(4*grp)), f"z2g{grp}")): vitem(t0 + n, "o0", x)
for n in range(8):
    pre = [f"s_lshl_b32 s76, {sW}, 12", "s_add_u32 s74, s76, s69"] if n == 0 else []
    post = ["s_add_u32 s74, s74, 16384", "s_add_u32 s76, s76, 16384"] if n & 1 else []
    vitem(48 + n, "o0", (pre + ["s_mov_b32 m0, s76"], [f"buffer_load_dwordx4 v3, {WS}, s74 offen offset:{(2*(n & 1) + i)*1024} sc1 lds" for i in range(2)], "wo", post))
for n in range(2): put(58 + n, "eq", ("vm", [f"buffer_load_dwordx2 {vr(8+2*j,2)}, v172, {R1}, 0 offen offset:{j*32}" for j in (2*n, 2*n + 1)], None))
if "noextra" in XP: raise SystemExit("noextra unsupported")
syncs = {3: "kvg1", 7: "kvg7", 29: "kvg16", 35: None, 48: None, 60: "wo"}
last_m0 = [None]
def slot(t, k):
    for x in plan.pop((t, k), []):
        if x[0] == "salu":
            for p in x[1]:
                a(p)
                if " m0," in p: last_m0[0] = p
        elif x[0] == "vm":
            if len(x) > 3 and x[3] is not None and x[3] is not last_m0[0]:
                a(x[3]); last_m0[0] = x[3]
            for q_ in x[1]: vm.op(q_, x[2])
        elif x[0] == "ds":
            for q_ in x[1]: a(q_)
        else: vm.wait(x[1])
for u in range(128):
    t, e = u >> 1, u & 1
    S = Sb(u)
    ex = [f"v_exp_f32 v{S+i}, v{S+i}" for i in range(16)]
    pf = "eo"[e]
    if u + 1 < 128:
        t1, e1 = (u + 1) >> 1, (u + 1) & 1
        a(f"v_mfma_f32_32x32x16_bf16 {vr(Sb(u+1),16)}, {Kb(t1)}, {Q(e1)}, {vr(C(e1),16)}")
    a("s_waitcnt lgkmcnt(0)")
    if e == 1 and t + 2 in syncs:
        if syncs[t + 2]: vm.wait(syncs[t + 2])
        a("s_barrier")
    if "tst" in XP and e == 0 and t in (2, 4, 8, 11, 14, 17, 20, 23, 26, 28, 30, 34, 38, 42, 46, 50, 54, 58, 61): stamp(f"t{t}")
    if u == 86:
        vm.wait("pchk")
        a("v_cmp_gt_u32 vcc, 32, v201\ns_nop 1\ns_cmp_lg_u32 vcc_lo, 0\ns_cbranch_scc1 L_pwait\nL_pok:")
    slot(t, pf + "q")
    for x in ex[0:3]: a(x)
    Sp, tp, ep = Sb(u - 1), (u - 1) >> 1, (u - 1) & 1
    if u > 0: a(f"v_smfmac_f32_32x32x32_bf16 {vr(O(ep),16)}, {Vb(tp,0)}, {vr(Sp,8)}, v30")
    slot(t, pf + "0b")
    if e == 0:
        slot(t, "e0a"); a(f"ds_read_b128 {Vb(t,0)}, {vaddr(t,0)}"); slot(t, "e0")
    else:
        slot(t, "o0"); slot(t, "o0a")
    for x in ex[3:7]: a(x)
    if u > 0: a(f"v_smfmac_f32_32x32x32_bf16 {vr(O(ep),16)}, {Vb(tp,1)}, {vr(Sp+8,8)}, v30")
    slot(t, pf + "1b")
    if e == 0:
        slot(t, "e1"); slot(t, "e1x"); slot(t, "e1a"); a(f"ds_read_b128 {Vb(t,1)}, {vaddr(t,1)}")
    else:
        slot(t, "o1a")
        if t + 2 < 64: a(f"ds_read_b128 {Kb(t+2)}, {kaddr(t+2)}")
        slot(t, "o1x")
    for x in ex[7:16]: a(x)
assert not plan, plan.keys()
for m in range(2): a(f"v_smfmac_f32_32x32x32_bf16 {vr(O(1),16)}, {Vb(63,m)}, {vr(Sb(127)+8*m,8)}, v30")
if "clk" in XP: a("s_memtime s[100:101]\ns_memrealtime s[78:79]\ns_waitcnt lgkmcnt(0)\ns_sub_u32 s100, s100, s96\ns_sub_u32 s101, s78, s98")
stamp("attn")
Lfb, Lok = a.label("fb"), a.label("ok")
def getl():
    for e in range(2): a(f"v_mov_b32 v{4+2*e}, v{O(e)+8}\nv_mov_b32 v{5+2*e}, v{O(e)+8}")
    for e in range(2): a(f"v_permlane32_swap_b32 v{4+2*e}, v{5+2*e}")
a(f"""
s_lshl_b32 s3, {sXCC}, 2
s_lshl_b32 s3, 8, s3
v_readfirstlane_b32 s64, v253
s_lshl_b32 s65, {sCB}, 2
v_add_u32 v254, s65, v198
v_lshlrev_b32 v255, 2, v0
s_cmp_eq_u32 s64, s3
s_cselect_b32 {sFAST}, {0 if FORCE_SLOW else 1}, 0
v_mov_b32 v32, {fbits(2.0**40 if not FORCE_FB else -1.0)}
""")
if "probe" in XP:
    a(f"s_cmp_eq_u32 {sFAST}, 0\ns_cbranch_scc0 L_pr\ns_mov_b32 s3, 12\nL_pr0:\ns_sleep 127\ns_sub_u32 s3, s3, 1\ns_cmp_lg_u32 s3, 0\ns_cbranch_scc1 L_pr0\nL_pr:")
getl()
a(f"v_add_f32 v5, v4, v6\nv_cmp_nlt_f32 vcc, v5, v32\ns_cbranch_vccnz {Lfb}\n{Lok}:")
for e in range(2): a(f"v_rcp_f32 v{4+2*e}, v{4+2*e}")
for e in range(2):
    for i in range(4): a(f"v_pk_mul_f32 {vr(O(e)+2*i,2)}, {vr(O(e)+2*i,2)}, {vr(4+2*e,2)} op_sel_hi:[1,0]")
for e in range(2):
    for i in range(4): a(f"v_cvt_pk_bf16_f32 v{32+4*e+i}, v{O(e)+2*i}, v{O(e)+2*i+1}")
both(lambda sc: [vm.op(f"buffer_store_dwordx4 {vr(32+4*e,4)}, v3, {WS}, s16 offen offset:{e*1024}{sc}") for e in range(2)])
rd3 = lambda T, j: a(f"ds_read_b128 {vr(144+(T&1)*16+4*j,4)}, v3 offset:{L_WO + T*4096 + j*1024}")
for j in range(4): rd3(0, j)
hop_signal(1)
stamp("opub")
round_bf16(list(range(220, 236)))
for i in range(8): a(f"v_lshlrev_b32 v{32+2*i}, 16, v{8+i}\nv_and_b32 v{33+2*i}, 0xffff0000, v{8+i}")
a(f"""
v_mov_b32 v31, v218
s_lshl_b32 s64, s55, 1
s_add_u32 s64, s64, {WS_X}
s_lshr_b32 s68, s55, 4
s_lshl_b32 s3, {sCB}, 7
s_add_u32 s69, s68, s3
s_add_u32 s67, s69, {WS_ST1}
v_lshlrev_b32 v6, 3, v1
""")
hop_wait(1)
stamp("C")
def frag_load(T, tag):
    vm.op(f"buffer_load_dwordx4 {vr(64+4*T,4)}, v3, {WS}, s64 offen offset:{(T & 3)*1024} sc1", f"{tag}{T}")
    if T & 3 == 3: a("s_add_u32 s64, s64, 4096")
AH = 8
for T in range(AH): frag_load(T, "o")
fragloop(16, 4, rd3,
         lambda T, j: a(f"v_mfma_f32_16x16x32_bf16 {vr(128+4*j,4)}, {vr(144+(T&1)*16+4*j,4)}, {vr(64+4*T,4)}, {'0' if T == 0 else vr(128+4*j,4)}"),
         before=lambda T: vm.wait(f"o{T}"), after=lambda T, j: frag_load(T + AH, "o") if j == 0 and T + AH < 16 else None, preissued=True)
stamp("p3mm")
for i in range(8): a(f"v_pk_fma_f32 {vr(32+2*i,2)}, {vr(128+2*i,2)}, {vr(220+2*i,2)}, {vr(32+2*i,2)}")
for i in range(8): a(f"v_cvt_pk_bf16_f32 v{8+i}, v{32+2*i}, v{33+2*i}")
for i in range(8): a(f"v_lshlrev_b32 v{32+2*i}, 16, v{8+i}\nv_and_b32 v{33+2*i}, 0xffff0000, v{8+i}")
for i in range(8): a(f"v_pk_mul_f32 {vr(236+2*i,2)}, {vr(236+2*i,2)}, {vr(32+2*i,2)}")
for i in range(8): a(f"v_cvt_pk_bf16_f32 v{80+i}, v{236+2*i}, v{237+2*i}")
both(lambda sc: [vm.op(f"buffer_store_dwordx4 {vr(80+4*p,4)}, v3, {WS}, s17 offen offset:{p*1024}{sc}") for p in range(2)])
a("v_pk_mul_f32 v[88:89], v[32:33], v[32:33]\nv_pk_add_f32 v[90:91], v[32:33], v[34:35]\nv_pk_mul_f32 v[94:95], v[34:35], v[34:35]\nv_pk_add_f32 v[96:97], v[36:37], v[38:39]")
for i in range(2, 8): a(f"v_pk_fma_f32 {vr(88 + 6*(i & 1),2)}, {vr(32+2*i,2)}, {vr(32+2*i,2)}, {vr(88 + 6*(i & 1),2)}")
for i in range(4, 8): a(f"v_pk_add_f32 {vr(90 + 6*(i & 1),2)}, {vr(90 + 6*(i & 1),2)}, {vr(32+2*i,2)}")
a("v_pk_add_f32 v[88:89], v[88:89], v[94:95]\nv_pk_add_f32 v[90:91], v[90:91], v[96:97]\nv_add_f32 v93, v88, v89\nv_add_f32 v92, v90, v91")
xgroup_sum2(92, 94, 93, 95)
a("s_mov_b64 exec, 0xffff")
both(lambda sc: vm.op(f"buffer_store_dwordx2 v[92:93], v6, {WS}, s67 offen{sc}"))
a(f"""
s_mov_b64 exec, -1
v_add_u32 v25, 0xe000, v3
v_add_u32 v26, 0xe000, v25
v_and_b32 v4, 7, v1
v_lshlrev_b32 v4, 7, v4
v_lshl_add_u32 v30, v2, 5, v4
v_lshlrev_b32 v4, 8, v2
v_lshl_add_u32 v27, v1, 3, v4
""")
stamp("p3ep")
hop_signal(2)
stamp("ypub")
WB = (32, 204)
def rdl(dst, addr):
    w_, off = divmod(addr, 0xe000)
    a(f"ds_read_b128 {vr(dst,4)}, v{(3, 25, 26)[w_]} offset:{off}")
a(f"""
s_barrier
s_and_b32 s3, {sW}, 1
s_mul_i32 s66, s3, 3584
s_lshl_b32 s3, s3, 10
s_add_u32 m0, s3, {L_SM}
s_mul_i32 s3, {sCB}, 448
s_add_u32 s66, s66, s3
s_add_u32 s66, s66, {WS_C12}
v_add_u32 v6, {7168 - 448}, v3
v_cmp_gt_u32 vcc, 28, v0
v_cndmask_b32 v6, v6, v3, vcc
""")
vm.op(f"buffer_load_dwordx4 v6, {WS}, s66 offen sc1 lds")
for x in win_items(1, 3, [f"s_mul_i32 s75, {sW}, {SLOT}", f"s_sub_u32 s75, s75, {SLOT}", f"s_cmp_eq_u32 {sW}, 0", f"s_cselect_b32 s75, {slotA(12)}, s75"], "z2g3"): emit_item(x)
for j in range(7): rdl(WB[0] + 4*j, slot_z2(0) + j*1024)
a(f"v_add_u32 v29, {L_SM}, v31\nv_lshlrev_b32 v24, 2, v1\nv_add_u32 v24, {L_SM + 1024}, v24\ns_add_u32 s66, s68, {WS_ST1}")
hop_wait(2)
stamp("D")
vm.op(f"buffer_load_dwordx2 v[172:173], v27, {WS}, s66 offen sc1")
vm.op(f"buffer_load_dwordx2 v[174:175], v27, {WS}, s66 offen offset:128 sc1", "st1")
for T in range(AH): frag_load(T, "y")
a(f"v_lshlrev_b32 v4, 7, v0\nv_mov_b32 v27, {OOB}\nv_cmp_gt_u32 vcc, 14, v0\nv_cndmask_b32 v27, v27, v4, vcc")
vm.wait("st1")
a("v_pk_add_f32 v[172:173], v[172:173], v[174:175]")
xgroup_sum2(172, 174, 173, 175)
finish_stats([(172, 173, 62, 28, None)], 512)
a(f"v_mul_f32 v62, v62, v28\nv_mov_b32 v60, {fbits(-2*math.log2(math.e)*math.sqrt(2/math.pi))}\nv_mov_b32 v61, v60")
for i in range(4): a(f"ds_bpermute_b32 v{20+i}, v31, v28 offset:{4*i}\nds_bpermute_b32 v{16+i}, v31, v62 offset:{4*i}")
CP = [232, 234, 236, 238, 240, 242, 244]
z1items = {g_: win_items(0, g_, lin_slot(slotB(3) if g_ == 0 else slotA(4*(g_ - 1))), f"z1g{g_}") for g_ in range(4)}
def bef(T):
    if T == 11: a("s_waitcnt lgkmcnt(0)\ns_barrier")
    vm.wait(f"y{T}")
def aft(T, j):
    if j == 0 and T + AH < 16: frag_load(T + AH, "y")
    if j == 5 and T in (9, 11, 13, 15):
        vm.op(f"buffer_load_dword v252, v27, {WS}, s26 offen sc1"); a("s_add_u32 s26, s26, 1792")
    if j == 3 and 6 <= T < 10: emit_item(z1items[0][T - 6])
    if j == 3 and 11 <= T < 15: emit_item(z1items[1][T - 11])
fragloop(16, 7, lambda T, j: rdl(WB[T & 1] + 4*j, slot_z2(T) + j*1024),
         lambda T, j: a(f"v_mfma_f32_16x16x32_bf16 {vr(128+4*j,4)}, {vr(64+4*T,4)}, {vr(WB[T & 1]+4*j,4)}, {'0' if T == 0 else vr(128+4*j,4)}"),
         before=bef, after=aft, preissued=True)
for j in range(7): a(f"ds_read2_b32 {vr(CP[j],2)}, v24 offset0:{j*16} offset1:{j*16 + 112}")
stamp("z2mm")
a(f"s_mov_b32 s64, {fbits(-2*math.log2(math.e)*math.sqrt(2/math.pi)*0.044715)}\ns_mov_b32 s65, s64\ns_mov_b32 s66, 1.0\ns_mov_b32 s67, 1.0\ns_waitcnt lgkmcnt(0)")
def gelu(acc, tmp, mid=None):
    P = range(14)
    for i in P: a(f"v_pk_mul_f32 {vr(tmp+2*i,2)}, {vr(acc+2*i,2)}, {vr(acc+2*i,2)}")
    for i in P: a(f"v_pk_fma_f32 {vr(tmp+2*i,2)}, {vr(tmp+2*i,2)}, s[64:65], v[60:61]")
    for i in P: a(f"v_pk_mul_f32 {vr(tmp+2*i,2)}, {vr(tmp+2*i,2)}, {vr(acc+2*i,2)}")
    for i in range(28): a(f"v_exp_f32 v{tmp+i}, v{tmp+i}")
    if mid: mid()
    for i in P: a(f"v_pk_add_f32 {vr(tmp+2*i,2)}, {vr(tmp+2*i,2)}, s[66:67]")
    for i in range(28): a(f"v_rcp_f32 v{tmp+i}, v{tmp+i}")
    for i in P: a(f"v_pk_mul_f32 {vr(acc+2*i,2)}, {vr(acc+2*i,2)}, {vr(tmp+2*i,2)}")
for i in range(14): a(f"v_pk_fma_f32 {vr(32+2*i,2)}, {vr(16+2*(i & 1),2)}, {vr(CP[i >> 1],2)}, {vr(CP[i >> 1],2)} op_sel:[0,0,1] op_sel_hi:[1,0,1]")
for i in range(14): a(f"v_pk_fma_f32 {vr(128+2*i,2)}, {vr(128+2*i,2)}, {vr(20+2*(i & 1),2)}, {vr(32+2*i,2)}")
gelu(128, 32)
for j in range(7): rdl(WB[0] + 4*j, slot_z1(0) + j*1024) if False else None
for h in range(2):
    a(f"v_pk_add_f32 {vr(156+2*h,2)}, {vr(128+2*h,2)}, {vr(132+2*h,2)}\nv_pk_mul_f32 {vr(160+2*h,2)}, {vr(128+2*h,2)}, {vr(128+2*h,2)}")
for j in range(1, 7):
    for h in range(2):
        if j > 1: a(f"v_pk_add_f32 {vr(156+2*h,2)}, {vr(156+2*h,2)}, {vr(128+4*j+2*h,2)}")
        a(f"v_pk_fma_f32 {vr(160+2*h,2)}, {vr(128+4*j+2*h,2)}, {vr(128+4*j+2*h,2)}, {vr(160+2*h,2)}")
dppsum(range(156, 164), (8, 4, 2, 1))
a(f"s_add_u32 s70, s69, {WS_ST2}\nv_lshlrev_b32 v6, 5, v2\ns_mov_b32 exec_lo, 0x00010001\ns_mov_b32 exec_hi, 0x00010001")
both(lambda sc: (vm.op(f"buffer_store_dwordx4 v[156:159], v6, {WS}, s70 offen{sc}"), vm.op(f"buffer_store_dwordx4 v[160:163], v6, {WS}, s70 offen offset:16{sc}", "sst")))
a("s_mov_b64 exec, -1")
vm.wait("z1g1")
a("s_barrier")
stamp("spub")
def z2_publish():
    hop_wait(3)
    stamp("S")
    a(f"s_add_u32 s3, s68, {WS_ST2}")
    vm.op(f"buffer_load_dwordx4 v[164:167], v30, {WS}, s3 offen sc1")
    vm.op(f"buffer_load_dwordx4 v[168:171], v30, {WS}, s3 offen offset:16 sc1", "st2")
    srd(R1, P_BSP, 4096)
    a("s_lshr_b32 s3, s55, 9\nv_lshlrev_b32 v4, 1, v1")
    vm.op(f"buffer_load_ushort v16, v4, {R1}, s3 offen", "bsp")
    a(f"""
s_lshl_b32 s70, {sCB}, 6
s_lshl_b32 s3, {sRB}, 1
s_add_u32 s70, s70, s3
s_lshr_b32 s3, {sW}, 1
s_add_u32 s70, s70, s3
s_mul_i32 s70, s70, 7168
s_and_b32 s3, {sW}, 1
s_lshl_b32 s3, s3, 9
s_add_u32 s70, s70, s3
s_add_u32 s70, s70, {WS_Z2}
s_add_u32 s71, s70, 4096
v_and_b32 v4, 1, v2
v_lshlrev_b32 v4, 10, v4
v_lshrrev_b32 v5, 1, v2
v_lshl_add_u32 v4, v5, 8, v4
v_lshl_add_u32 v6, v1, 4, v4
""")
    vm.wait("st2")
    dppsum(range(164, 172), (4, 2, 1))
    finish_stats([(164+i, 168+i, 156+i, 160+i, None) for i in range(4)], 896)
    for h in range(2): a(f"v_pk_mul_f32 {vr(156+2*h,2)}, {vr(156+2*h,2)}, {vr(160+2*h,2)}")
    for i in range(14): a(f"v_pk_fma_f32 {vr(128+2*i,2)}, {vr(128+2*i,2)}, {vr(160+2*(i & 1),2)}, {vr(156+2*(i & 1),2)}")
    for i in range(14): a(f"v_cvt_pk_bf16_f32 v{232+i}, v{128+2*i}, v{129+2*i}")
    a("v_mov_b32 v246, v244\nv_mov_b32 v247, v245")
    for p in range(4): a(f"v_permlane16_swap_b32 v{232+4*p}, v{234+4*p}\nv_permlane16_swap_b32 v{233+4*p}, v{235+4*p}")
    vm.op(f"buffer_store_dwordx4 v[232:235], v6, {WS}, s70 offen sc1")
    vm.op(f"buffer_store_dwordx4 v[236:239], v6, {WS}, s70 offen offset:2048 sc1")
    vm.op(f"buffer_store_dwordx4 v[240:243], v6, {WS}, s71 offen sc1")
    a("s_mov_b32 exec_lo, 0x0000ffff\ns_mov_b32 exec_hi, 0x0000ffff")
    vm.op(f"buffer_store_dwordx4 v[244:247], v6, {WS}, s71 offen offset:2048 sc1", "zst")
    a(f"""
s_mov_b64 exec, -1
s_lshl_b32 s70, {sRB}, 3
s_add_u32 s70, s70, {sCB}
s_lshl_b32 s70, s70, 9
s_lshl_b32 s3, {sW}, 7
s_add_u32 s70, s70, s3
s_add_u32 s70, s70, {F_E}
""")
    stamp("zst")
def bef(T):
    if T == 2: hop_signal(3, "sst")
    if T == TS: z2_publish()
    if T == TE:
        vm.wait("zst"); vm.op(f"buffer_store_dword v17, v63, {WS}, s70 offen sc1")
        stamp("zpub")
    if T == 7: a("s_barrier")
def aft(T, j):
    if T < 2 and j in (1, 4): emit_item(z1items[2][2*T + (j == 4)])
    if 2 <= T < 4 and j in (1, 4): emit_item(z1items[3][2*(T - 2) + (j == 4)])
TS, TE = 7, 12
a(f"v_mov_b32 v17, 1\nv_mov_b32 v63, {OOB}\nv_cmp_eq_u32 vcc, 0, v0\nv_cndmask_b32 v63, v63, v0, vcc")
fragloop(16, 7, lambda T, j: rdl(WB[T & 1] + 4*j, slot_z1(T) + j*1024),
         lambda T, j: a(f"v_mfma_f32_16x16x32_bf16 {vr(176+4*j,4)}, {vr(WB[T & 1]+4*j,4)}, {vr(64+4*T,4)}, {'0' if T == 0 else vr(176+4*j,4)}"), before=bef, after=aft)
for j in range(7): a(f"ds_read_b128 {vr(204+4*j,4)}, v29 offset:{j*64}\nds_read_b128 {vr(128+4*j,4)}, v29 offset:{448 + j*64}")
a("s_barrier")
stamp("z1mm")
a(f"s_lshl_b32 s70, {sW}, 15\ns_lshl_b32 s3, {sCB}, 9\ns_add_u32 s70, s70, s3\ns_add_u32 s70, s70, {F_E}\nv_lshrrev_b32 v6, 2, v0\nv_lshlrev_b32 v6, 12, v6\nv_and_b32 v5, 3, v0\nv_lshl_add_u32 v6, v5, 7, v6")
a(f"s_lshl_b32 s72, {sCB}, 2\ns_add_u32 s72, s72, {sW}\ns_mul_i32 s72, s72, {16*7168}\ns_add_u32 s72, s72, {WS_Z2}\ns_add_u32 s73, s72, 4096")
poll(f"buffer_load_dword v4, v6, {WS}, s70 offen sc1", "v_cmp_gt_u32 vcc, 1, v4", "0xffffffff")
stamp("E")
ZB = lambda T: (64, 92, 32)[T % 3]
def ldz(T, j):
    vm.op(f"buffer_load_dwordx4 {vr(ZB(T)+4*j,4)}, v3, {WS}, s{72 + (j >> 2)} offen offset:{(j & 3)*1024} sc1", f"z{T}_{j}")
    if j == 6: a("s_add_u32 s72, s72, 7168\ns_add_u32 s73, s73, 7168")
for j in range(7): ldz(0, j)
a("s_waitcnt lgkmcnt(0)")
for i in range(14): a(f"v_pk_fma_f32 {vr(128+2*i,2)}, {vr(204+2*i,2)}, v[62:63], {vr(128+2*i,2)} op_sel_hi:[1,0,1]")
for i in range(14): a(f"v_pk_fma_f32 {vr(176+2*i,2)}, {vr(176+2*i,2)}, v[28:29], {vr(128+2*i,2)} op_sel_hi:[1,0,1]")
gelu(176, 32, mid=lambda: [ldz(1, j) for j in range(7)])
for i in range(14): a(f"v_cvt_pk_bf16_f32 v{240+i}, v{176+2*i}, v{177+2*i}")
Z1P = list(range(240, 254))
stamp("gelu1")
def wout_setup(n0):
    a(f"s_mul_i32 s3, {sCB}, {28*4096}\ns_add_u32 s75, s3, {WS_WOUTF + n0*4096}\ns_lshl_b32 s76, {sW}, 10\ns_add_u32 s74, s75, s76\ns_add_u32 s76, s76, {L_WOUT + n0*4096}")
def wout_one(tag):
    a("s_mov_b32 m0, s76\ns_add_u32 s76, s76, 4096")
    vm.op(f"buffer_load_dwordx4 v3, {WS}, s74 offen sc1 lds", tag)
    a("s_add_u32 s74, s74, 4096")
def wout_dma(n0, n1, tag):
    wout_setup(n0)
    for n in range(n0, n1): wout_one(tag)
wout_setup(0)
for s_ in range(1, 4):
    a(f"s_add_u32 s3, {sW}, {s_}\ns_and_b32 s3, s3, 3\ns_mul_i32 s3, s3, {21*1024}\ns_add_u32 s3, s3, {L_RED + (s_-1)*7168}\nv_add_u32 v{16+s_}, s3, v3")
a(f"s_mul_i32 s3, {sW}, {21*1024}\ns_add_u32 s3, s3, {L_RED}\nv_add_u32 v20, s3, v3\nv_lshlrev_b32 v16, 16, v16")
def p5(T, j, s_):
    d = vr(128 + (s_*7 + j)*4, 4)
    a(f"v_mfma_f32_16x16x32_bf16 {d}, {vr(ZB(T)+4*j,4)}, {ar((T*4+s_)*4,4)}, {'0' if T == 0 else d}")
for T in range(16):
    for j in range(7):
        vm.wait(f"z{T}_{j}")
        for s_ in ((0, 1, 2, 3) if T < 13 else (1, 2, 3)):
            p5(T, j, s_)
            if s_ == 0 and T + 2 < 16 or s_ == 1 and T == 13: ldz(T + 2, j)
            if s_ == 2 and (j == 3 or (j == 0 and T >= 13)): wout_one("wout0")
stamp("p5mm")
for n in range(21):
    a(f"ds_write_b128 v{17 + n // 7}, {vr(128 + (7 + n)*4, 4)} offset:{(n % 7)*1024}")
    p5(13 + n // 7, n % 7, 0)
for i in range(14): a(f"v_lshlrev_b32 v{156+2*i}, 16, v{Z1P[i]}\nv_and_b32 v{157+2*i}, 0xffff0000, v{Z1P[i]}")
for i in range(14): a(f"v_pk_add_f32 {vr(128+2*i,2)}, {vr(128+2*i,2)}, v[16:17] op_sel_hi:[1,0]")
a(f"""
s_lshl_b32 s68, s55, 1
s_add_u32 s68, s68, {WS_X}
s_mul_i32 s64, {sCB}, 3072
s_add_u32 s64, s64, s68
s_lshl_b32 s65, {sCB}, 9
s_add_u32 s65, s65, s68
s_add_u32 s65, s65, {24*1024}
v_lshrrev_b32 v6, 5, v0
v_lshlrev_b32 v6, 8, v6
v_lshl_add_u32 v6, v1, 4, v6
s_waitcnt lgkmcnt(0)
s_barrier
""")
stamp("red")
order = [(k, j) for j in range(7) for k in range(3)]
for k, j in order[:15]: a(f"ds_read_b128 {vr(32+(k*7+j)*4,4)}, v20 offset:{(k*7+j)*1024}")
for j in range(7):
    for k, jj in order[15 + 3*j:18 + 3*j]: a(f"ds_read_b128 {vr(32+(k*7+jj)*4,4)}, v20 offset:{(k*7+jj)*1024}")
    a(f"s_waitcnt lgkmcnt({min(15, 18 - 3*j)})")
    for h in range(2):
        a(f"v_pk_add_f32 {vr(32+4*j+2*h,2)}, {vr(32+4*j+2*h,2)}, {vr(60+4*j+2*h,2)}\nv_pk_add_f32 {vr(128+4*j+2*h,2)}, {vr(128+4*j+2*h,2)}, {vr(88+4*j+2*h,2)}")
    for h in range(2): a(f"v_pk_add_f32 {vr(128+4*j+2*h,2)}, {vr(128+4*j+2*h,2)}, {vr(32+4*j+2*h,2)}")
    for h in range(2): a(f"v_pk_mul_f32 {vr(128+4*j+2*h,2)}, {vr(128+4*j+2*h,2)}, {vr(156+4*j+2*h,2)}")
    for h in range(2): a(f"v_cvt_pk_bf16_f32 v{184+2*j+h}, v{128+4*j+2*h}, v{129+4*j+2*h}")
a("v_mov_b32 v198, v196\nv_mov_b32 v199, v197\nv_permlane16_swap_b32 v196, v198\nv_permlane16_swap_b32 v197, v199")
def pubu(sc):
    for p in range(3): vm.op(f"buffer_store_dwordx4 {vr(184+4*p,4)}, v3, {WS}, s64 offen offset:{p*1024}{sc}")
    a("s_mov_b32 exec_lo, 0x0000ffff\ns_mov_b32 exec_hi, 0x0000ffff")
    vm.op(f"buffer_store_dwordx4 v[196:199], v6, {WS}, s65 offen{sc}")
    a("s_mov_b64 exec, -1")
both(pubu)
hop_signal(4)
stamp("upub")
a("s_barrier")
rd6 = lambda n, j: rdl(160 + (n & 1)*16 + 4*j, L_WOUT + n*4096 + j*1024)
for j in range(4): rd6(0, j)
wout_dma(19, 28, "wout1")
hop_wait(4)
stamp("F")
steps = []
for cbp in range(8):
    for p in range(3): steps.append((cbp*3 + p, 112*cbp + 32*p, False))
    if cbp & 1: steps.append((24 + (cbp >> 1), 224*(cbp >> 1) + 96, True))
a("s_mov_b32 s64, s68")
for n in range(1, 7): a(f"s_add_u32 s{64+n if n < 4 else 66+n}, s64, {4096*n}")
US = ["s64", "s65", "s66", "s67", "s70", "s71", "s72"]
def uload(n):
    st = steps[n][0]
    vm.op(f"buffer_load_dwordx4 {vr(32+4*n,4)}, v3, {WS}, {US[st >> 2]} offen offset:{(st & 3)*1024} sc1", f"u{n}")
for n in range(AH): uload(n)
a(f"s_lshl_b32 s74, {sCB}, 8\ns_add_u32 s74, s74, {WS_G2 + 2048}")
def aft6(n, j):
    if j == 0 and n + AH < 28: uload(n + AH)
    if j == 0 and 28 <= n + AH < 32: vm.op(f"buffer_load_dwordx4 {vr(216+4*(n+AH-28),4)}, v31, {WS}, s74 offen offset:{(n+AH-28)*64} sc1", "gb")
stamp("u_iss")
def bef(n):
    if n == 18: a("s_barrier")
    vm.wait(f"u{n}")
fragloop(28, 4, rd6,
         lambda n, j: a(f"v_mfma_f32_16x16x32_bf16 {vr(144+4*j,4)}, {vr(160+(n&1)*16+4*j,4)}, {vr(32+4*n,4)}, {'0' if n == 0 else vr(144+4*j,4)}"),
         before=bef, after=aft6, preissued=True)
stamp("p6mm")
vm.wait("gb")
for i in range(8): a(f"v_lshlrev_b32 v{32+2*i}, 16, v{8+i}\nv_and_b32 v{33+2*i}, 0xffff0000, v{8+i}")
for i in range(8): a(f"v_pk_fma_f32 {vr(32+2*i,2)}, {vr(144+2*i,2)}, {vr(216+2*i,2)}, {vr(32+2*i,2)}")
for i in range(8): a(f"v_cvt_pk_bf16_f32 v{48+i}, v{32+2*i}, v{33+2*i}")
for p in range(2): a(f"v_permlane16_swap_b32 v{48+4*p}, v{50+4*p}\nv_permlane16_swap_b32 v{49+4*p}, v{51+4*p}")
srd(R1, P_OUT, 2048 * 1024, "s55")
a(f"v_lshlrev_b32 v4, 10, v1\nv_and_b32 v5, 1, v2\nv_lshl_add_u32 v4, v5, 5, v4\nv_lshrrev_b32 v5, 1, v2\nv_lshl_add_u32 v4, v5, 4, v4\ns_lshl_b32 s3, {sCB}, 7")
for p in range(2): a(f"buffer_store_dwordx4 {vr(48+4*p,4)}, v4, {R1}, s3 offen offset:{p*64}{' sc1' if 'outsc1' in XP else ' nt' if 'outnt' in XP else ''}")
if "dbg" in XP:
    a("s_waitcnt vmcnt(0)")
    stamp("end")
    sel = ["xin", "barP", "barB", "kv0", "attn", "C", "D", "z2mm", "zpub", "E", "p5mm", "upub", "F", "p6mm", "end"]
    a("s_not_b32 s3, s80\nv_mov_b32 v32, s3")
    for n, nm in enumerate(sel):
        i = stamp_names.index(nm)
        a(f"s_bfe_u32 s3, s{81 + (i-1)//2}, {hex((16 << 16) | (16*((i-1) & 1)))}\ns_add_u32 s3, s3, s80\nv_writelane_b32 v32, s3, {n+1}")
    a("s_load_dwordx2 s[64:65], s[96:97], 104\ns_waitcnt lgkmcnt(0)")
    srd(R1, 64, 256)
    a(f"v_lshlrev_b32 v4, 2, v0\ns_mov_b64 exec, 0xffff\nbuffer_atomic_umax v32, v4, {R1}, 0 offen sc1\ns_waitcnt vmcnt(0)")
elif STAMPS:
    a("s_waitcnt vmcnt(0)")
    stamp("end")
    for i in range(22): a(f"v_writelane_b32 v32, s{80+i}, {i}")
    a(f"s_lshl_b32 s3, s2, 2\ns_add_u32 s3, s3, {sW}\ns_lshl_b32 s3, s3, 7\ns_add_u32 s3, s3, {WS_STAMP}\nv_lshlrev_b32 v4, 2, v0\ns_mov_b64 exec, 0xffffffff\nbuffer_store_dword v32, v4, {WS}, s3 offen")
a("s_endpgm")
a("L_pwait:")
poll(f"buffer_load_dword v201, v196, {WS}, s38 offen sc1", "v_cmp_gt_u32 vcc, 32, v201", "0xffffffff")
a("s_branch L_pok")
a(f"{Lfb}:")
a(f"""
v_lshrrev_b32 v4, 5, v0
v_mul_u32_u24 v4, 272, v4
v_and_b32 v5, 31, v0
v_lshl_add_u32 v27, v5, 4, v4
v_mov_b32 v4, 0xff800000
v_mov_b32 v5, 0xff800000
s_mov_b32 s64, {WS_KV}
L_fb1:
buffer_load_dwordx4 {Kb(0)}, v3, {WS}, s64 offen offset:1088 sc1
s_waitcnt vmcnt(0)
""")
for e in range(2): a(f"v_mfma_f32_32x32x16_bf16 {vr(32+16*e,16)}, {Kb(0)}, {Q(e)}, 0")
for e in range(2): rowmax(32 + 16*e, 4 + e, False)
a(f"s_add_u32 s64, s64, {REC}\ns_cmp_lt_u32 s64, {WS_KV + 64*REC}\ns_cbranch_scc1 L_fb1")
for e in range(2): negbcast(4 + e, e)
for i in range(32): a(f"v_mov_b32 v{80+i}, 0")
a(f"""
s_mov_b32 s64, {WS_KV}
L_fb2:
buffer_load_dwordx4 {Kb(0)}, v3, {WS}, s64 offen offset:1088 sc1
buffer_load_dwordx4 {Vb(0,0)}, v27, {WS}, s64 offen sc1
buffer_load_dwordx4 {Vb(0,1)}, v27, {WS}, s64 offen offset:544 sc1
s_waitcnt vmcnt(0)
""")
for e in range(2): a(f"v_mfma_f32_32x32x16_bf16 {vr(32+16*e,16)}, {Kb(0)}, {Q(e)}, {vr(C(e),16)}")
for i in range(32): a(f"v_exp_f32 v{32+i}, v{32+i}")
for e in range(2):
    for m in range(2): a(f"v_smfmac_f32_32x32x32_bf16 {vr(O(e),16)}, {Vb(0,m)}, {vr(32+16*e+8*m,8)}, v30")
a(f"s_add_u32 s64, s64, {REC}\ns_cmp_lt_u32 s64, {WS_KV + 64*REC}\ns_cbranch_scc1 L_fb2")
getl()
a(f"s_branch {Lok}\nL_end:\ns_endpgm")

body = a.finish()
head = open("cdna_kernels/" + NAME + ".s.ref").read().split("; Override launch")[0]
src = head + f"""; One persistent launch: 256 workgroups (32 row blocks x 8 column blocks), 4 waves each; generated by gen/gen.py.
; @launch grid=(256,1,1) block=(256,1,1) lds={LDS_BYTES}
.amdgcn_target "amdgcn-amd-amdhsa--gfx950"
.text
.globl {NAME}_kernel
.p2align 8
.type {NAME}_kernel,@function
{NAME}_kernel:
{body}.section .rodata,"a"
.p2align 6
.amdhsa_kernel {NAME}_kernel
  .amdhsa_next_free_vgpr 512
  .amdhsa_next_free_sgpr 102
  .amdhsa_accum_offset 256
  .amdhsa_group_segment_fixed_size 0
  .amdhsa_kernarg_size 120
  .amdhsa_user_sgpr_count 2
  .amdhsa_user_sgpr_kernarg_segment_ptr 1
  .amdhsa_system_sgpr_workgroup_id_x 1
.end_amdhsa_kernel
"""
out = [x for x in sys.argv[1:] if not x.startswith("--")]
open(out[0] if out else "cdna_kernels/" + NAME + ".s", "w").write(src)
if STAMPS: open("stamps.txt", "w").write("\n".join(stamp_names))
print("instructions:", sum(1 for k, _ in a.items if k == "ins"), "hazard nops:", a.nops, file=sys.stderr)
```

```python
import sys, struct, math
from asmlib import Asm

NAME = "adaLN_cond__grouped_kv_mqa__mixer_gmlp__prompt"
STAMPS = "--stamps" in sys.argv or "--cyc" in sys.argv
CYC = "--cyc" in sys.argv
FORCE_SLOW = "--slow" in sys.argv
PADZERO = "--nopadzero" not in sys.argv
XP = [x[5:] for x in sys.argv if x.startswith("--xp=")]
FORCE_FB = "--fallback" in sys.argv

def fbits(x): return "0x%08x" % struct.unpack("<I", struct.pack("<f", x))[0]

F_B, F_HOP, F_P, WS_G2, F_E, WS_C12 = 0, 8192, 24576, 28672, 32768, 163840
WS_MOD, WS_MODT, WS_EPOCH, WS_KV = 0x32000, 0x35000, 0x3C000, 0x40000
WS_ST1, WS_ST2 = 0x70000, 0x90000
WS_X, WS_Z2, WS_STAMP, WS_SIZE = 0x100000, 0x500000, 0xD00000, 0x1200000
WS_WOF, WS_WOUTF, WS_DUMMY, WS_WINF = 0xD80000, 0xE00000, 0xF00000, 0x1000000
REC = 2112
L_G2 = 16384
L_KV = 28672
L_WQ, L_WKV, L_G0, L_SILU, L_PAR = 28672, 94208, 110592, 126976, 128000
L_RING, L_SM = 0, 158720
L_WO = 0
SLOT = 7168
def slotA(i): return 65536 + SLOT * i
def slotB(i): return SLOT * i
def slot_z2(T): return slotA(T) if T < 13 else slotB(T - 13)
def slot_z1(T): return slotB(3 + T) if T < 4 else slotA(T - 4)
L_WOUT, L_RED = 0, 77824
LDS_BYTES = 163840
R0, WS, R1, R2, R3 = "s[4:7]", "s[8:11]", "s[12:15]", "s[56:59]", "s[60:63]"
P_X, P_WQ, P_WK, P_WV, P_WO, P_WIN, P_WSP, P_BSP, P_WOUT, P_C, P_WMOD, P_OUT, P_DBG, P_WS = 16, 18, 20, 22, 24, 28, 30, 32, 34, 36, 38, 40, 42, 44
sRB, sCB, sW, sXCC, sFAST, sIDX, sXCD, sKVW, sGRP = "s46", "s47", "s48", "s49", "s50", "s51", "s52", "s53", "s54"
sEP, sTAG = "s42", "s43"
SPIN = 1 << 17
OOB = 0x7fff0000

a = Asm()
def vr(b, n): return f"v[{b}:{b+n-1}]"
def ar(b, n): return f"a[{b}:{b+n-1}]"

class VM:
    def __init__(s): s.n = 0; s.tags = {}
    def op(s, text, tag=None):
        a(text); s.n += 1
        if tag: s.tags[tag] = s.n
    def tag(s, t): s.tags[t] = s.n
    def wait(s, t):
        k = s.n - s.tags[t]
        if k < 63: a(f"s_waitcnt vmcnt({k})")
    def drain(s): a("s_waitcnt vmcnt(0)")
vm = VM()

def srd(q, ptr, size, off=None):
    b = int(q[2:q.index(":")])
    if off is None:
        a(f"s_mov_b32 s{b}, s{ptr}\ns_mov_b32 s{b+1}, s{ptr+1}\ns_mov_b32 s{b+2}, {size}")
    else:
        a(f"s_add_u32 s{b}, s{ptr}, {off}\ns_addc_u32 s{b+1}, s{ptr+1}, 0\ns_sub_u32 s{b+2}, {size}, {off}")
    a(f"s_mov_b32 s{b+3}, 0x20000")

nstamp = [0]
stamp_names = []
AMP = [x[4:] for x in XP if x.startswith("amp:")]
def stamp(name):
    if AMP and name in ("start", AMP[0]): a(f"s_memrealtime s[78:79]\ns_waitcnt lgkmcnt(0)\ns_mov_b32 s{90 if name == 'start' else 91}, s78")
    if not STAMPS: return
    if "dbg" in XP and name not in ("start", "xin", "barP", "barB", "kv0", "attn", "C", "D", "z2mm", "zpub", "E", "p5mm", "upub", "F", "p6mm", "end"): return
    if "tst" in XP and name in ("xin", "ln1", "h", "kv", "q", "p3mm", "p3ep", "y_iss", "st1", "init", "u_iss", "S", "opub", "ypub", "spub"): return
    i = nstamp[0]; nstamp[0] += 1; stamp_names.append(name)
    if "clk" in XP and i >= 30: return
    assert i < 43
    a("s_memrealtime s[78:79]\ns_waitcnt lgkmcnt(0)" if not CYC else "s_memtime s[78:79]\ns_waitcnt lgkmcnt(0)\ns_lshr_b32 s78, s78, 2")
    if i == 0: a("s_mov_b32 s80, s78")
    elif i & 1: a(f"s_sub_u32 s{81 + i//2}, s78, s80")
    else: a(f"s_sub_u32 s78, s78, s80\ns_pack_ll_b32_b16 s{80 + i//2}, s{80 + i//2}, s78")

def poll(load, cond, mask):
    L, X = a.label("poll"), a.label("pollx")
    a(f"s_mov_b64 exec, {mask}\ns_mov_b32 s3, 0\n{L}:\ns_add_u32 s3, s3, 1\ns_cmp_gt_u32 s3, {SPIN}\ns_cbranch_scc1 {X}")
    a(load); a("s_waitcnt vmcnt(0)"); a(cond)
    a(f"s_cbranch_vccnz {L}\n{X}:\ns_mov_b64 exec, -1")

def both(fn):
    S, E = a.label("slow"), a.label("pub")
    n0 = vm.n
    a(f"s_cmp_eq_u32 {sFAST}, 0\ns_cbranch_scc1 {S}")
    fn(""); n1 = vm.n
    a(f"s_branch {E}\n{S}:"); vm.n = n0
    fn(" sc1"); assert vm.n == n1
    a(f"{E}:")

def hop_signal(phase, tag=None):
    a(f"v_mov_b32 v4, {phase}")
    if tag: vm.wait(tag)
    else: a("s_waitcnt vmcnt(0)")
    both(lambda sc: vm.op(f"buffer_store_dword v4, v254, {WS}, {sGRP} offen{sc}"))

def hop_wait(phase):
    poll(f"buffer_load_dword v4, v255, {WS}, {sGRP} offen sc1", f"v_cmp_gt_u32 vcc, {phase}, v4", "0xff")

def xgroup_sum(v, t):
    a(f"v_mov_b32 v{t}, v{v}\nv_permlane32_swap_b32 v{v}, v{t}\nv_add_f32 v{v}, v{v}, v{t}")
    a(f"v_mov_b32 v{t}, v{v}\nv_permlane16_swap_b32 v{v}, v{t}\nv_add_f32 v{v}, v{v}, v{t}")

def xgroup_sum2(v, t, v2, t2):
    for op in ("v_permlane32_swap_b32", "v_permlane16_swap_b32"):
        a(f"v_mov_b32 v{t}, v{v}\nv_mov_b32 v{t2}, v{v2}\n{op} v{v}, v{t}\n{op} v{v2}, v{t2}\nv_add_f32 v{v}, v{v}, v{t}\nv_add_f32 v{v2}, v{v2}, v{t2}")

def capture(fn):
    n = len(a.items); fn(); out = a.items[n:]; del a.items[n:]
    return out

def pipeline(nsteps, reads, compute, nreads, pre=1):
    for T in range(min(pre, nsteps)): reads(T)
    for T in range(nsteps):
        if T + pre < nsteps: reads(T + pre)
        left = min(pre, nsteps - 1 - T) * nreads
        a(f"s_waitcnt lgkmcnt({min(left, 15)})")
        compute(T)

def fragloop(nsteps, nf, read, mfma, before=None, after=None, nper=1, preissued=False):
    if not preissued:
        for j in range(nf): read(0, j)
    for T in range(nsteps):
        if before: before(T)
        for j in range(nf):
            left = (nf - 1 if T + 1 < nsteps else nf - 1 - j) * nper
            a(f"s_waitcnt lgkmcnt({min(left, 15)})")
            mfma(T, j)
            if T + 1 < nsteps: read(T + 1, j)
            if after: after(T, j)

def dppsum(regs, steps):
    for s in steps:
        for r in regs: a(f"v_add_f32_dpp v{r}, v{r}, v{r} row_ror:{s} row_mask:0xf bank_mask:0xf")
def finish_stats(rows, n):
    for s1, s2, mu, r, sd in rows: a(f"v_mul_f32 v{mu}, {fbits(-1.0/n)}, v{s1}\nv_mul_f32 v{s2}, {fbits(1.0/n)}, v{s2}")
    for s1, s2, mu, r, sd in rows: a(f"v_fma_f32 v{s2}, -v{mu}, v{mu}, v{s2}")
    for s1, s2, mu, r, sd in rows: a(f"v_max_f32 v{s2}, 0, v{s2}")
    for s1, s2, mu, r, sd in rows: a(f"v_add_f32 v{s2}, {fbits(1e-5)}, v{s2}")
    for s1, s2, mu, r, sd in rows: a(f"v_rsq_f32 v{r}, v{s2}")
    for s1, s2, mu, r, sd in rows:
        if sd is not None: a(f"v_mul_f32 v{sd}, v{s2}, v{r}")

a(f"""
s_cmp_ge_u32 s2, 256
s_cbranch_scc1 L_end
s_load_dwordx16 s[16:31], s[0:1], 0
s_load_dwordx8 s[32:39], s[0:1], 64
s_load_dwordx4 s[40:43], s[0:1], 96
s_load_dwordx2 s[44:45], s[0:1], 112
v_lshrrev_b32 v4, 6, v0
v_and_b32 v0, 63, v0
v_readfirstlane_b32 {sW}, v4
v_and_b32 v1, 15, v0
v_lshrrev_b32 v2, 4, v0
v_lshlrev_b32 v3, 4, v0
s_and_b32 {sXCD}, s2, 7
s_lshr_b32 {sIDX}, s2, 3
s_and_b32 {sCB}, {sIDX}, 7
s_lshr_b32 s3, {sIDX}, 3
s_lshl_b32 {sRB}, {sXCD}, 2
s_add_u32 {sRB}, {sRB}, s3
s_lshr_b32 {sKVW}, {sCB}, 1
s_getreg_b32 {sXCC}, hwreg(HW_REG_XCC_ID, 0, 4)
s_and_b32 {sXCC}, {sXCC}, 7
s_lshl_b32 {sGRP}, {sRB}, 2
s_add_u32 {sGRP}, {sGRP}, {sW}
s_lshl_b32 s55, {sGRP}, 14
s_lshl_b32 {sGRP}, {sGRP}, 7
s_add_u32 {sGRP}, {sGRP}, {F_HOP}
""")
a(f"""
s_cmp_eq_u32 {sW}, 3
s_cbranch_scc0 L_nopf
s_getpc_b64 s[64:65]
L_pc:
s_lshl_b32 s3, {sIDX}, 4
v_add_u32 v6, s3, v1
v_lshlrev_b32 v6, 7, v6
v_min_u32 v6, L_end-L_pc-4, v6
v_mov_b32 v7, s65
v_add_co_u32 v6, vcc, s64, v6
v_addc_co_u32 v7, vcc, 0, v7, vcc
s_mov_b64 exec, 0xffff
global_load_dword v24, v[6:7], off
s_mov_b64 exec, -1
L_nopf:
""")
def img32_regs(row, trb):
    a(f"""
v_lshrrev_b32 v4, 1, v0
v_and_b32 v5, 19, v4
v_bfe_u32 v6, v4, 2, 1
v_lshl_or_b32 v5, v6, 3, v5
v_bfe_u32 v6, v4, 3, 1
v_lshl_or_b32 v{row}, v6, 2, v5
v_lshrrev_b32 v4, 2, v1
v_and_b32 v5, 1, v2
v_lshl_add_u32 v4, v5, 2, v4
v_lshrrev_b32 v5, 1, v2
v_lshl_add_u32 v4, v5, 4, v4
v_lshlrev_b32 v4, 5, v4
v_and_b32 v5, 3, v1
v_lshl_add_u32 v{trb}, v5, 3, v4
""")
img32_regs(16, 17)
a(f"""
v_and_b32 v18, 1, v0
v_lshlrev_b32 v18, 4, v18
s_waitcnt lgkmcnt(0)
""")
if "dbg" in XP: a("s_mov_b64 s[96:97], s[0:1]")
stamp("start")
srd(WS, P_WS, hex(WS_SIZE))
a(f"s_load_dword {sEP}, s[{P_WS}:{P_WS+1}], {WS_EPOCH}")

def gemv_chain(lbase, trb, opaddr):
    a(f"v_add_u32 v7, {lbase}, v{trb}")
    def rd(T):
        b = 128 + (T % 4) * 8
        a(f"ds_read_b64_tr_b16 {vr(b,2)}, v7 offset:{T*1024}\nds_read_b64_tr_b16 {vr(b+2,2)}, v7 offset:{T*1024+256}")
        a(f"ds_read_b128 {vr(b+4,4)}, v{opaddr} offset:{T*64}")
    def cp(T):
        b = 128 + (T % 4) * 8
        a(f"v_mfma_f32_16x16x32_bf16 v[32:35], {vr(b,4)}, {vr(b+4,4)}, {'0' if T == 0 else 'v[32:35]'}")
    pipeline(16, rd, cp, 3, pre=3)

def round_bf16(regs):
    for i in range(0, len(regs), 2):
        x, y = regs[i], regs[i+1]
        a(f"v_cvt_pk_bf16_f32 v{y}, v{x}, v{y}\nv_lshlrev_b32 v{x}, 16, v{y}\nv_and_b32 v{y}, 0xffff0000, v{y}")

def silu8(src, dst):
    for i in range(4): a(f"v_lshlrev_b32 v{40+2*i}, 16, v{src+i}\nv_and_b32 v{41+2*i}, 0xffff0000, v{src+i}")
    for i in range(8): a(f"v_mul_f32 v{48+i}, {fbits(-math.log2(math.e))}, v{40+i}")
    for i in range(8): a(f"v_exp_f32 v{48+i}, v{48+i}")
    for i in range(8): a(f"v_add_f32 v{48+i}, 1.0, v{48+i}")
    for i in range(8): a(f"v_rcp_f32 v{48+i}, v{48+i}")
    for i in range(8): a(f"v_mul_f32 v{40+i}, v{40+i}, v{48+i}")
    for i in range(4): a(f"v_cvt_pk_bf16_f32 v{dst+i}, v{40+2*i}, v{41+2*i}")

Lw1, Lw2, Lw3, Lxi, Lxw, Lnz, Lsl, Lx2 = (a.label(x) for x in ("w1", "w2", "w3", "xi", "xw", "noz", "sl", "x2"))
a(f"s_lshl_b32 s64, {sRB}, 16")
srd(R1, P_X, 2048 * 1024, "s64")
srd(R2, P_WMOD, 512 * 6144)
a(f"s_and_b32 s3, {sCB}, 1\ns_cselect_b32 s64, s{P_WV}, s{P_WK}\ns_cselect_b32 s65, s{P_WV+1}, s{P_WK+1}")
srd(R3, 64, 16384)
srd(R0, P_C, 1024)
a(f"""
v_mov_b32 v36, 0
v_mov_b32 v37, 0
v_mov_b32 v38, 0
v_mov_b32 v39, 0
s_and_b32 s69, s2, 15
s_lshl_b32 s69, s69, 6
v_lshlrev_b32 v25, 4, v2
buffer_load_dwordx4 v[8:11], v25, {R0}, s69 offen
s_cmp_eq_u32 {sW}, 0
s_cbranch_scc0 {Lw1}
""")
a(f"""
v_lshrrev_b32 v4, 2, v0
v_and_b32 v5, 3, v0
v_and_b32 v6, 1, v5
v_lshlrev_b32 v6, 7, v6
v_lshrrev_b32 v5, 1, v5
v_mul_u32_u24 v5, 3072, v5
s_movk_i32 s3, 6144
v_mad_u32_u24 v4, v4, s3, v6
v_add_u32 v4, v4, v5
s_mul_i32 s64, {sIDX}, {16*6144}
s_lshl_b32 s3, {sXCD}, 8
s_add_u32 s64, s64, s3
buffer_load_dword v24, v4, {R2}, s64 offen
s_cmp_lt_u32 {sIDX}, 16
s_cbranch_scc0 {Lsl}
s_lshl_b32 s68, {sXCD}, 3
s_add_u32 s68, s68, {sIDX}
s_add_u32 s65, s68, 88
s_cmp_lt_u32 {sIDX}, 8
s_cselect_b32 s68, s68, s65
s_cbranch_scc0 {Lnz}
s_lshl_b32 s3, s68, 7
s_mov_b64 exec, 0xff
buffer_store_dwordx4 v[36:39], v3, {WS}, s3 offen sc1
s_mov_b64 exec, -1
{Lnz}:
""")
a(f"buffer_load_dwordx4 v[32:35], v3, {R0}, 0 offen\ns_lshl_b32 s66, s68, 5\ns_movk_i32 s3, 6144\nv_mad_u32_u24 v6, v16, s3, v18")
for n in range(16):
    a(f"s_mov_b32 m0, {L_G0 + n*1024}\nbuffer_load_dwordx4 v6, {R2}, s66 offen lds")
    if n < 15: a("s_add_u32 s66, s66, 196608")
a("s_waitcnt vmcnt(16)")
if "ms" in XP: stamp("m_c")
silu8(32, 32)
a(f"v_add_u32 v6, {L_SILU}, v3\nds_write_b128 v6, v[32:35]\nv_lshlrev_b32 v5, 4, v2\nv_add_u32 v6, {L_SILU}, v5")
a("s_waitcnt vmcnt(0) lgkmcnt(0)")
if "ms" in XP: stamp("m_dma")
gemv_chain(L_G0, 17, 6)
round_bf16([32, 33, 34, 35])
Lno1 = a.label("no1")
a(f"s_lshr_b32 s65, s68, 5\ns_bitcmp1_b32 0x12, s65\ns_cbranch_scc0 {Lno1}")
for i in range(4): a(f"v_add_f32 v{32+i}, 1.0, v{32+i}")
round_bf16([32, 33, 34, 35])
a(f"""
{Lno1}:
s_lshl_b32 s3, s68, 6
s_add_u32 s3, s3, {WS_MOD}
s_mov_b32 exec_lo, 0x00010001
s_mov_b32 exec_hi, 0x00010001
s_add_u32 s65, {sEP}, 1
s_and_b32 s65, s65, 0xffff
v_or_b32 v36, s65, v32
v_or_b32 v37, s65, v33
v_or_b32 v38, s65, v34
v_or_b32 v39, s65, v35
s_add_u32 s65, s3, {WS_MODT - WS_MOD}
buffer_store_dwordx4 v[36:39], v5, {WS}, s65 offen sc1
buffer_store_dwordx4 v[32:35], v5, {WS}, s3 offen sc1
s_mov_b64 exec, -1
""")
if "ms" in XP: stamp("m_pub")
a(f"""
v_add_u32 v6, s69, v6
ds_read_b128 v[8:11], v6
s_branch {Lxw}
{Lw1}:
s_lshl_b32 s66, {sCB}, 7
""")
srd(R0, P_WQ, 512 * 1024, "s66")
a(f"""
v_lshlrev_b32 v4, 7, v0
s_cmp_eq_u32 {sW}, 2
s_cbranch_scc1 {Lw2}
s_cmp_eq_u32 {sW}, 3
s_cbranch_scc1 {Lxi}
s_lshl_b32 s3, {sCB}, 13
buffer_load_dword v24, v4, {R1}, s3 offen
s_branch {Lxi}
{Lw2}:
s_lshr_b32 s3, {sIDX}, 1
s_lshl_b32 s3, s3, 10
v_and_b32 v4, 0x380, v4
buffer_load_dword v24, v4, {R3}, s3 offen
{Lxi}:
v_lshrrev_b32 v4, 3, v0
v_and_b32 v5, 7, v0
v_xor_b32 v5, v5, v2
v_lshlrev_b32 v5, 4, v5
v_lshl_add_u32 v22, v4, 10, v5
v_xor_b32 v23, 64, v22
v_add_u32 v23, {8192 - 1024}, v23
s_sub_u32 s64, {sW}, 1
s_mul_i32 s64, s64, 11
s_min_u32 s64, s64, 21
s_lshl_b32 s67, s64, 11
s_add_u32 s67, s67, {L_WQ}
""")
for i in range(11):
    a(f"s_lshr_b32 s65, s64, 3\ns_lshl_b32 s65, s65, 14\ns_and_b32 s3, s64, 7\ns_lshl_b32 s3, s3, 7\ns_add_u32 s65, s65, s3\ns_mov_b32 m0, s67\ns_add_u32 s64, s64, 1\ns_add_u32 s67, s67, 2048")
    a(f"buffer_load_dwordx4 v22, {R1}, s65 offen lds\nbuffer_load_dwordx4 v23, {R1}, s65 offen offset:1024 lds")
a(f"v_lshl_add_u32 v21, v16, 5, v18\ns_sub_u32 s64, {sW}, 1\ns_mul_i32 s64, s64, 5120\ns_add_u32 s67, s64, {L_WKV}")
for i in range(6): a(f"s_mov_b32 m0, s67\ns_add_u32 s67, s67, 1024\nbuffer_load_dwordx4 v21, {R3}, s64 offen lds\ns_add_u32 s64, s64, 1024")
a(f"""
s_cmp_eq_u32 {sW}, 3
s_cbranch_scc1 {Lw3}
s_and_b32 s3, {sRB}, 3
s_lshl_b32 s3, s3, 1
s_add_u32 s3, s3, {sW}
s_sub_u32 s3, s3, 1
s_lshl_b32 s3, s3, 16
v_lshlrev_b32 v4, 10, v0
buffer_load_dword v26, v4, {R0}, s3 offen
s_branch {Lx2}
{Lw3}:
s_mul_i32 s3, s2, 768
s_add_u32 s3, s3, {F_HOP}
s_mov_b32 exec_hi, 0xffff
buffer_store_dwordx4 v[36:39], v3, {WS}, s3 offen sc1
s_mov_b64 exec, -1
{Lx2}:
s_waitcnt vmcnt(29)
{Lsl}:
s_waitcnt vmcnt(31)
""")
a("s_cmp_eq_u32 s48, 0\ns_cbranch_scc0 L_cin\ns_waitcnt vmcnt(1)\nL_cin:")
silu8(8, 8)
a(f"""
s_waitcnt vmcnt(1)
{Lxw}:
s_lshl_b32 s67, {sW}, 14
s_add_u32 s67, s67, {L_WQ}
s_barrier
""")
stamp("xin")
a(f"""
v_lshrrev_b32 v4, 1, v1
v_xor_b32 v4, v4, v2
v_lshlrev_b32 v4, 4, v4
v_lshl_add_u32 v4, v1, 7, v4
v_add_u32 v4, s67, v4
v_xor_b32 v5, 64, v4
s_waitcnt lgkmcnt(0)
s_add_u32 {sEP}, {sEP}, 1
s_and_b32 {sTAG}, {sEP}, 0xffff
""")
for T in range(16): a(f"ds_read_b128 {vr(64+4*T,4)}, v{4 + (T & 1)} offset:{(T >> 1)*2048}")
a(f"s_lshl_b32 s66, {sCB}, 7")
srd(R0, P_WQ, 512 * 1024, "s66")
a(f"""
v_lshrrev_b32 v4, 3, v0
v_bfe_u32 v5, v0, 1, 2
v_bfe_u32 v6, v4, 1, 1
v_xor_b32 v5, v5, v6
v_lshlrev_b32 v5, 5, v5
v_lshl_add_u32 v5, v4, 10, v5
v_add_u32 v19, v5, v18
v_xor_b32 v20, 64, v19
""")
a(f"s_lshl_b32 s66, {sW}, 17")
def stage(k):
    for n in range(4): a(f"s_mov_b32 m0, s67\ns_add_u32 s67, s67, 1024\nbuffer_load_dwordx4 v{19 + (n & 1)}, {R0}, s66 offen lds\ns_add_u32 s66, s66, 8192")
for i in range(64):
    if i % 4 == 0: a(f"s_waitcnt lgkmcnt({15 - i // 4})")
    a(f"v_lshlrev_b32 v{128+2*i}, 16, v{64+i}\nv_and_b32 v{129+2*i}, 0xffff0000, v{64+i}")
for k in range(4): a(f"v_pk_add_f32 {vr(32+2*k,2)}, {vr(128+4*k,2)}, {vr(130+4*k,2)}")
for k in range(4): a(f"v_pk_mul_f32 {vr(40+2*k,2)}, {vr(128+2*k,2)}, {vr(128+2*k,2)}")
for i in range(4, 64):
    if i >= 8: a(f"v_pk_add_f32 {vr(32+2*(i%4),2)}, {vr(32+2*(i%4),2)}, {vr(128+2*i,2)}")
    a(f"v_pk_fma_f32 {vr(40+2*(i%4),2)}, {vr(128+2*i,2)}, {vr(128+2*i,2)}, {vr(40+2*(i%4),2)}")
    if i % 16 == 7: stage(i // 16)
for b in (32, 40):
    a(f"v_pk_add_f32 {vr(b,2)}, {vr(b,2)}, {vr(b+2,2)}\nv_pk_add_f32 {vr(b+4,2)}, {vr(b+4,2)}, {vr(b+6,2)}\nv_pk_add_f32 {vr(b,2)}, {vr(b,2)}, {vr(b+4,2)}\nv_add_f32 v{b}, v{b}, v{b+1}")
xgroup_sum2(32, 33, 40, 41)
finish_stats([(32, 40, 34, 36, None)], 512)
a("v_mul_f32 v34, v34, v36")
for i in range(64): a(f"v_pk_fma_f32 {vr(128+2*i,2)}, {vr(128+2*i,2)}, v[36:37], v[34:35] op_sel_hi:[1,0,0]")
Lna = a.label("nkvf")
a(f"s_cmp_eq_u32 {sW}, {sKVW}\ns_cbranch_scc0 {Lna}\nv_add_u32 v7, {L_WKV}, v17")
for T in range(16): a(f"ds_read_b64_tr_b16 {ar(4*T,2)}, v7 offset:{T*1024}\nds_read_b64_tr_b16 {ar(4*T+2,2)}, v7 offset:{T*1024+256}")
a(f"{Lna}:")
stamp("ln1")
def tagcheck(regs):
    out = [f"v_xor_b32 v{r}, {sTAG}, v{r}" for r in regs]
    out.append(f"v_or3_b32 v4, v{regs[0]}, v{regs[1]}, v{regs[2]}")
    for i in range(3, len(regs) - 1, 2): out.append(f"v_or3_b32 v4, v4, v{regs[i]}, v{regs[i+1]}")
    out.append(f"v_or_b32 v4, v4, v{regs[-1]}\nv_and_b32 v4, 0xffff, v4\nv_cmp_ne_u32 vcc, 0, v4")
    return "\n".join(out)
a(f"s_lshl_b32 s64, {sW}, 10\ns_add_u32 s65, s64, {L_PAR}\ns_add_u32 s64, s64, {WS_MODT}\nv_add_u32 v5, s65, v3")
poll(f"buffer_load_dwordx4 v[32:35], v3, {WS}, s64 offen sc1", tagcheck([32, 33, 34, 35]), "-1")
a("ds_write_b128 v5, v[32:35]\ns_waitcnt lgkmcnt(0)\ns_barrier")
stamp("barP")
a(f"s_sub_u32 s69, {sW}, {sKVW}")
LV, Lh, Lnkv, LV2, Lst, Lkve = (a.label(x) for x in ("isV", "hdone", "nokv", "isV2", "kvst", "kve"))
a(f"v_lshlrev_b32 v19, 5, v2\nv_add_u32 v19, {L_PAR}, v19\ns_bitcmp1_b32 {sCB}, 0\ns_cbranch_scc1 {LV}")
def hpass(isV):
    def rd(T):
        b = 32 + (T & 1) * 16
        for k, off in enumerate((2048, 2064, 0, 16)): a(f"ds_read_b128 {vr(b+4*k,4)}, v19 offset:{off + T*128}")
    def kv(T):
        A, B = (vr(64+4*T,4), ar(4*T,4)) if isV else (ar(4*T,4), vr(64+4*T,4))
        a(f"v_mfma_f32_16x16x32_bf16 v[12:15], {A}, {B}, {'0' if T == 0 else 'v[12:15]'}")
    def cp(T):
        b = 32 + (T & 1) * 16
        for k in range(4): a(f"v_pk_fma_f32 {vr(128+8*T+2*k,2)}, {vr(128+8*T+2*k,2)}, {vr(b+2*k,2)}, {vr(b+8+2*k,2)}")
        if T: kv(T - 1)
        for k in range(4): a(f"v_cvt_pk_bf16_f32 v{64+4*T+k}, v{128+8*T+2*k}, v{129+8*T+2*k}")
    pipeline(16, rd, cp, 4)
    kv(15)
hpass(False)
a(f"s_branch {Lh}\n{LV}:")
hpass(True)
a(f"{Lh}:")
if "ms" in XP: stamp("h")
a(f"""
s_cmp_eq_u32 s69, 0
s_cbranch_scc0 {Lnkv}
s_lshl_b32 s64, {sRB}, 1
s_lshr_b32 s3, {sW}, 1
s_add_u32 s64, s64, s3
s_mul_i32 s64, s64, {REC}
s_add_u32 s64, s64, {WS_KV}
s_and_b32 s65, {sW}, 1
v_lshrrev_b32 v20, 5, v0
v_cvt_pk_bf16_f32 v36, v12, v13
v_cvt_pk_bf16_f32 v37, v14, v15
v_mov_b32 v38, v36
v_mov_b32 v39, v37
v_permlane16_swap_b32 v36, v38
v_permlane16_swap_b32 v37, v39
s_bitcmp1_b32 {sCB}, 0
s_cbranch_scc1 {LV2}
v_lshlrev_b32 v20, 9, v20
v_lshl_add_u32 v20, v1, 4, v20
s_lshl_b32 s65, s65, 8
s_add_u32 s64, s64, s65
s_add_u32 s64, s64, 1088
s_mov_b32 exec_lo, 0x0000ffff
s_mov_b32 exec_hi, 0x0000ffff
s_branch {Lst}
{LV2}:
v_mul_u32_u24 v20, 272, v20
v_and_b32 v4, 31, v0
v_lshl_add_u32 v20, v4, 4, v20
s_mul_i32 s65, s65, 544
s_add_u32 s64, s64, s65
s_mov_b32 exec_lo, 0xffff0000
s_mov_b32 exec_hi, 0xffff0000
v_mov_b32 v36, 0x3f803f80
v_mov_b32 v37, 0x3f803f80
v_mov_b32 v38, 0x3f803f80
v_mov_b32 v39, 0x3f803f80
s_mov_b32 exec_lo, 0x0001ffff
s_mov_b32 exec_hi, 0x0001ffff
{Lst}:
buffer_store_dwordx4 v[36:39], v20, {WS}, s64 offen sc1
s_mov_b64 exec, -1
{Lnkv}:
s_lshl_b32 s3, {sXCC}, 2
s_lshl_b32 s3, 1, s3
v_mov_b32 v20, s3
s_lshl_b32 s64, {sRB}, 7
v_mov_b32 v21, {OOB}
v_cmp_eq_u32 vcc, 0, v0
v_cndmask_b32 v21, v21, v0, vcc
s_cmp_eq_u32 s69, 0
s_cselect_b64 vcc, -1, 0
""")
def arrive(T, j):
    if (T, j) != (4, 0): return
    L = a.label("arr")
    a(f"s_cbranch_vccz {L}\ns_waitcnt vmcnt(0)\nbuffer_atomic_add v20, v21, {WS}, s64 offen sc1\n{L}:")
    if "ms" in XP: stamp("arr")
def trbase128(dst, rowexpr_v, fexpr_v, lbase):
    a(f"v_and_b32 v6, 3, v1\nv_lshlrev_b32 v6, 3, v6\nv_lshl_add_u32 v6, v{rowexpr_v}, 7, v6\nv_lshl_add_u32 v6, v{fexpr_v}, 5, v6\nv_add_u32 v{dst}, {lbase}, v6")
    for j in range(1, 4): a(f"v_xor_b32 v{dst+j}, {j*32}, v{dst}")
a("v_lshrrev_b32 v4, 2, v1\nv_bfe_u32 v5, v1, 3, 1\nv_and_b32 v7, 1, v2\nv_lshl_or_b32 v5, v7, 1, v5\nv_lshl_add_u32 v4, v2, 3, v4")
trbase128(24, 4, 5, L_WQ)
fragloop(16, 4,
         lambda T, j: a(f"ds_read_b64_tr_b16 {vr(32+(T&1)*16+4*j,2)}, v{24+j} offset:{T*4096}\nds_read_b64_tr_b16 {vr(34+(T&1)*16+4*j,2)}, v{24+j} offset:{T*4096+512}"),
         lambda T, j: a(f"v_mfma_f32_16x16x32_bf16 {vr(128+4*j,4)}, {vr(32+(T&1)*16+4*j,4)}, {vr(64+4*T,4)}, {'0' if T == 0 else vr(128+4*j,4)}"), nper=2, after=arrive)
for i in range(16): a(f"v_mul_f32 v{128+i}, {fbits(0.25*math.log2(math.e))}, v{128+i}")
for i in range(8): a(f"v_cvt_pk_bf16_f32 v{16+i}, v{128+2*i}, v{129+2*i}")
for e in range(2): a(f"v_permlane16_swap_b32 v{16+4*e}, v{18+4*e}\nv_permlane16_swap_b32 v{17+4*e}, v{19+4*e}")
stamp("q")
a(f"""
v_add_u32 v24, {L_KV + 1088}, v3
v_add_u32 v25, {31*REC}, v24
v_add_u32 v26, {31*REC}, v25
v_lshrrev_b32 v4, 5, v0
v_mul_u32_u24 v4, 272, v4
v_and_b32 v5, 31, v0
v_lshl_add_u32 v4, v5, 4, v4
v_add_u32 v27, {L_KV}, v4
v_mov_b32 v4, 0x40000
v_cmp_lt_u32 vcc, {16 if PADZERO else 99}, v5
v_cndmask_b32 v27, v27, v4, vcc
v_add_u32 v28, {31*REC}, v27
v_add_u32 v29, {31*REC}, v28
v_mov_b32 v30, 0xdddd
v_lshrrev_b32 v7, 3, v0
v_and_b32 v6, 7, v0
v_xor_b32 v5, v6, v2
v_lshlrev_b32 v5, 4, v5
v_lshl_add_u32 v168, v7, 12, v5
v_xor_b32 v169, 64, v168
v_add_u32 v169, {0x8000 - 1024}, v169
v_lshrrev_b32 v4, 1, v1
v_xor_b32 v4, v4, v2
v_lshlrev_b32 v4, 4, v4
v_lshl_add_u32 v4, v1, 7, v4
s_mul_i32 s77, {sW}, 12288
v_add_u32 v170, s77, v4
v_xor_b32 v171, 64, v170
v_lshlrev_b32 v4, 10, v1
v_lshl_add_u32 v172, v2, 3, v4
v_mov_b32 v31, {OOB}
v_lshlrev_b32 v4, 7, v6
v_lshl_add_u32 v173, v7, 12, v4
v_lshlrev_b32 v4, 7, v0
v_cmp_gt_u32 vcc, 56, v0
v_cndmask_b32 v174, v31, v4, vcc
v_cmp_gt_u32 vcc, 14, v0
v_cndmask_b32 v175, v31, v4, vcc
v_cmp_gt_u32 vcc, 32, v0
v_cndmask_b32 v196, v31, v4, vcc
v_cmp_gt_u32 vcc, 33, v0
v_cndmask_b32 v197, v31, v4, vcc
v_cmp_eq_u32 vcc, 0, v0
v_cndmask_b32 v198, v31, v4, vcc
v_mov_b32 v199, 1
""")
for i in range(32): a(f"v_mov_b32 v{80+i}, 0")
Lr2, Lr3, Lre, Lrm, Lrr = (a.label(x) for x in ("r2", "r3", "re", "rm", "rr"))
a(f"""
v_lshlrev_b32 v6, 4, v6
v_lshrrev_b32 v4, 2, v1
v_and_b32 v5, 3, v1
v_lshlrev_b32 v5, 3, v5
s_lshl_b32 s68, {sW}, 12
v_add_u32 v5, s68, v5
s_cmp_eq_u32 {sW}, 2
s_cbranch_scc1 {Lr2}
s_cmp_eq_u32 {sW}, 3
s_cbranch_scc1 {Lr3}
s_and_b32 s64, {sRB}, 15
s_mul_i32 s64, s64, 114688
s_lshr_b32 s3, {sRB}, 4
s_mul_i32 s3, s3, 1792
s_add_u32 s64, s64, s3
s_mul_i32 s3, {sCB}, 224
s_add_u32 s64, s64, s3
s_lshl_b32 s3, {sW}, 7
s_add_u32 s64, s64, s3
""")
srd(R2, P_WIN, 512 * 3584, "s64")
a(f"""
s_movk_i32 s3, 3584
v_mad_u32_u24 v176, v7, s3, v6
s_movk_i32 s20, {8*3584}
s_mov_b32 s21, {16*3584}
s_mov_b32 s22, {24*3584}
v_lshl_add_u32 v4, v2, 2, v4
v_lshl_add_u32 v177, v4, 7, v5
v_add_u32 v178, 2048, v177
s_lshl_b32 s36, {sCB}, 5
s_add_u32 s36, s36, {sRB}
s_mul_i32 s36, s36, {SLOT}
s_lshl_b32 s3, {sW}, 12
s_add_u32 s36, s36, s3
s_add_u32 s36, s36, {WS_WINF}
s_mov_b32 s24, s36
s_cmp_eq_u32 {sW}, 0
s_cselect_b32 s37, s36, {WS_SIZE}
s_branch {Lre}
{Lr2}:
s_min_u32 s67, {sRB}, 27
s_mul_i32 s64, s67, 37
s_lshr_b32 s64, s64, 8
s_mul_i32 s3, s64, 7
s_sub_u32 s65, s67, s3
s_mul_i32 s64, s64, 224
s_lshl_b32 s3, s65, 5
s_add_u32 s66, s3, 16
s_cmp_lt_u32 s65, 3
s_cselect_b32 s3, s3, s66
s_cmp_eq_u32 s65, 6
s_cselect_b32 s3, 96, s3
s_cselect_b32 s21, 112, 16
s_lshl_b32 s21, s21, 10
s_add_u32 s22, s21, 8192
s_movk_i32 s20, 8192
s_add_u32 s64, s64, s3
s_lshl_b32 s64, s64, 10
s_lshl_b32 s3, {sCB}, 7
s_add_u32 s64, s64, s3
""")
srd(R2, P_WOUT, 896 * 1024, "s64")
a(f"""
v_lshl_add_u32 v176, v7, 10, v6
s_mul_i32 s36, {sCB}, 28
s_add_u32 s36, s36, s67
s_lshl_b32 s36, s36, 12
s_add_u32 s36, s36, {WS_WOUTF}
s_cmp_lt_u32 {sRB}, 28
s_cselect_b32 s36, s36, {WS_SIZE}
s_mov_b32 s37, s36
s_mov_b32 s24, s36
s_cmp_eq_u32 s65, 6
s_cbranch_scc1 {Lrm}
v_lshl_add_u32 v4, v2, 2, v4
v_lshl_add_u32 v177, v4, 7, v5
v_add_u32 v178, 2048, v177
s_branch {Lre}
{Lrm}:
v_lshl_add_u32 v4, v2, 3, v4
v_lshl_add_u32 v177, v4, 7, v5
v_add_u32 v178, 512, v177
s_branch {Lre}
{Lr3}:
s_lshr_b32 s67, {sRB}, 1
s_lshl_b32 s64, s67, 15
s_lshl_b32 s3, {sCB}, 7
s_add_u32 s64, s64, s3
""")
srd(R2, P_WO, 512 * 1024, "s64")
a(f"""
v_lshl_add_u32 v176, v7, 10, v6
s_movk_i32 s20, 8192
s_movk_i32 s21, 16384
s_movk_i32 s22, 24576
v_and_b32 v6, 1, v2
v_lshl_add_u32 v4, v6, 4, v4
v_lshrrev_b32 v6, 1, v2
v_lshl_add_u32 v4, v6, 2, v4
v_lshl_add_u32 v177, v4, 7, v5
v_add_u32 v178, 1024, v177
s_lshl_b32 s36, {sCB}, 4
s_add_u32 s36, s36, s67
s_lshl_b32 s36, s36, 12
s_add_u32 s36, s36, {WS_WOF}
s_bitcmp1_b32 {sRB}, 0
s_cselect_b32 s37, s36, {WS_SIZE}
s_cselect_b32 s36, {WS_SIZE}, s36
s_mov_b32 s24, s37
{Lre}:
""")
a(f"""
s_and_b32 s64, s2, 15
s_mul_i32 s64, s64, {32*6144}
s_lshr_b32 s65, s2, 4
s_lshl_b32 s3, s65, 7
s_add_u32 s64, s64, s3
s_lshl_b32 s3, {sW}, 5
s_add_u32 s64, s64, s3
s_cmp_lt_u32 s65, 8
s_cselect_b32 s3, 0, 2048
s_add_u32 s64, s64, s3
s_add_u32 s64, s64, 2048
""")
srd(R3, P_WMOD, 512 * 6144, "s64")
img32_regs(212, 213)
a(f"""
s_lshl_b32 s34, s65, 8
s_lshl_b32 s3, {sW}, 6
s_add_u32 s34, s34, s3
s_add_u32 s34, s34, {WS_G2}
v_and_b32 v4, 1, v0
v_lshlrev_b32 v4, 4, v4
s_movk_i32 s3, 6144
v_mad_u32_u24 v212, v212, s3, v4
s_lshl_b32 s35, {sW}, 10
s_add_u32 s35, s35, {L_G2}
v_add_u32 v213, s35, v213
v_lshlrev_b32 v4, 2, v0
v_cmp_gt_u32 vcc, 16, v0
v_cndmask_b32 v214, v31, v4, vcc
v_cmp_gt_u32 vcc, 48, v0
v_cndmask_b32 v215, v31, v4, vcc
s_cmp_eq_u32 {sW}, 0
s_cselect_b64 vcc, -1, 0
v_cndmask_b32 v215, v215, v4, vcc
s_lshr_b32 s3, {sRB}, 4
s_mul_i32 s3, s3, 3584
s_mul_i32 s28, {sCB}, 448
s_add_u32 s28, s28, s3
s_lshl_b32 s3, {sW}, 8
s_add_u32 s28, s28, s3
s_add_u32 s28, s28, {WS_C12}
s_cmp_lt_u32 {sW}, 2
s_cselect_b32 s28, s28, {WS_SIZE}
s_add_u32 s29, s28, 7168
v_and_b32 v4, 1, v0
v_lshlrev_b32 v4, 11, v4
v_sub_u32 v4, 2048, v4
v_lshl_add_u32 v4, v2, 4, v4
v_and_b32 v5, 2, v0
v_cmp_eq_u32 vcc, 0, v5
v_cndmask_b32 v216, v31, v4, vcc
s_and_b32 s25, {sRB}, 15
s_lshl_b32 s25, s25, 7
s_add_u32 s25, s25, {WS_MOD + 3*2048}
""")
a(f"s_lshl_b32 s64, {sRB}, 18\ns_lshl_b32 s3, {sW}, 10\ns_add_u32 s64, s64, s3")
srd(R0, P_WSP, 2048 * 4096, "s64")
a(f"s_lshl_b32 s64, {sCB}, 7\ns_add_u32 s64, s64, s55")
srd(R1, P_X, 2048 * 1024, "s64")
for s_ in range(4): a(f"s_add_u32 s3, {sW}, {s_}\ns_and_b32 s3, s3, 3\ns_lshl_b32 s{70+s_}, s3, 16")
a(f"""
s_and_b32 s23, {sRB}, 3
s_lshl_b32 s19, {sCB}, 15
s_lshl_b32 s39, {sCB}, 9
s_mov_b32 s38, {F_P}
s_add_u32 s39, s39, s38
s_lshl_b32 s3, {sW}, 7
s_add_u32 s39, s39, s3
s_lshl_b32 s3, s23, 2
s_add_u32 s3, s3, {sW}
s_mul_i32 s26, s3, {SLOT}
s_mul_i32 s27, s3, {SLOT // 4}
s_mul_i32 s3, {sCB}, {32*SLOT}
s_add_u32 s27, s27, s3
s_add_u32 s27, s27, {WS_WINF + 28*SLOT}
s_add_u32 s0, s26, s3
s_add_u32 s0, s0, {WS_WINF}
s_mul_i32 s3, {sCB}, {28*4096}
s_add_u32 s26, s26, s3
s_add_u32 s26, s26, {WS_WOUTF}
s_lshl_b32 s69, {sCB}, 16
s_add_u32 s69, s69, {WS_WOF}
s_lshl_b32 s64, {sW}, 11
s_add_u32 s65, s64, {L_KV}
s_add_u32 s64, s64, {WS_KV}
s_mul_i32 s66, {sIDX}, {33*128}
s_add_u32 s66, s66, {WS_KV}
s_lshl_b32 s67, {sRB}, 7
s_add_u32 s67, s67, {F_B}
""")
if "ms" in XP: stamp("setup")
a(f"""
s_lshl_b32 s12x, s55, 1
s_lshl_b32 s3, {sCB}, 11
s_add_u32 s16, s12x, s3
s_add_u32 s16, s16, {WS_X}
s_add_u32 s17, s16, 16384
v_lshlrev_b32 v4, 7, v1
v_lshl_add_u32 v4, v2, 14, v4
v_add_u32 v202, s16, v4
s_lshr_b32 s74, s55, 4
s_lshl_b32 s3, {sCB}, 7
s_add_u32 s74, s74, s3
s_add_u32 s74, s74, {WS_ST1}
v_and_b32 v5, 1, v0
v_mul_u32_u24 v5, {WS_ST2 - WS_ST1}, v5
v_add_u32 v5, s74, v5
v_cmp_lt_u32 vcc, 31, v0
v_cndmask_b32 v202, v202, v5, vcc
v_cmp_gt_u32 vcc, 2, v0
v_cndmask_b32 v217, v31, v5, vcc
v_lshlrev_b32 v218, 4, v2
s_lshl_b32 s3, {sCB}, 8
s_add_u32 s18, s3, {WS_G2}
s_add_u32 s2x, s3, {WS_MOD + 4*2048}
""".replace("s12x", "s75").replace("s2x", "s30"))
Lnb = a.label("noB")
a(f"s_cmp_eq_u32 {sW}, {sKVW}\ns_cbranch_scc0 {Lnb}\nv_lshlrev_b32 v5, 7, v0\ns_mov_b32 s1, {F_B}")
poll(f"buffer_load_dword v4, v5, {WS}, s1 offen sc1",
     "v_lshrrev_b32 v6, 4, v4\nv_and_b32 v6, 0x0f0f0f0f, v6\nv_and_b32 v4, 0x0f0f0f0f, v4\nv_add_u32 v4, v4, v6\nv_sad_u8 v4, v4, 0, 0\nv_cmp_gt_u32 vcc, 8, v4",
     "0xffffffff")
a(f"buffer_load_dword v200, v197, {WS}, s66 offen sc1\ns_barrier\ns_branch L_Bdone\n{Lnb}:\ns_waitcnt vmcnt(0) lgkmcnt(0)\ns_barrier\nL_Bdone:")
stamp("barB")
Lne = a.label("noep")
a(f"s_or_b32 s3, s2, {sW}\ns_cbranch_scc1 {Lne}\nv_mov_b32 v4, {sEP}\ns_mov_b32 s3, {WS_EPOCH}\nbuffer_store_dword v4, v198, {WS}, s3 offen sc1\n{Lne}:")
vm.n = 0
def kv_group(i):
    if i < 16:
        return (["s_mov_b32 m0, s65"], [f"buffer_load_dwordx4 v3, {WS}, s64 offen sc1 lds", f"buffer_load_dwordx4 v3, {WS}, s64 offen offset:1024 sc1 lds"],
                f"kvg{i}", ["s_add_u32 s64, s64, 8192", "s_add_u32 s65, s65, 8192"])
    return ([f"s_lshl_b32 s3, {sW}, 10", "s_sub_u32 s64, s64, s3", "s_sub_u32 m0, s65, s3"], [f"buffer_load_dwordx4 v3, {WS}, s64 offen sc1 lds"], "kvg16", [])
def emit_item(x):
    pre, ins, tag, post = x
    for p in pre: a(p)
    for q_ in ins: vm.op(q_, tag)
    for p in post: a(p)
for i in range(2): emit_item(kv_group(i))

def win_items(half, grp, slot0, tag):
    ld = lambda i: f"buffer_load_dwordx4 v3, {WS}, s74 offen offset:{(i & 3)*1024} sc1 lds"
    first = [f"s_lshl_b32 s74, {sCB}, 5", f"s_add_u32 s74, s74, {sW}", f"s_mul_i32 s74, s74, {SLOT}", f"s_add_u32 s74, s74, {WS_WINF + (half*16 + grp*4)*SLOT}"] + slot0
    return [(first + ["s_mov_b32 m0, s75"], [ld(0), ld(1)], tag, []), (["s_mov_b32 m0, s75"], [ld(2), ld(3)], tag, ["s_add_u32 s74, s74, 4096", "s_add_u32 s75, s75, 4096"]),
            (["s_mov_b32 m0, s75"], [ld(4), ld(5)], tag, []), (["s_mov_b32 m0, s75"], [ld(6)], tag, [])]
def lin_slot(base): return [f"s_mul_i32 s75, {sW}, {SLOT}", f"s_add_u32 s75, s75, {base}"]

def kaddr(t): return f"v{24 + t//31} offset:{(t % 31)*REC}"
def vaddr(t, m): return f"v{27 + t//31} offset:{(t % 31)*REC + m*544}"
Kb = lambda t: vr(144 + 4*(t & 1), 4)
Vb = lambda t, m: vr(152 + 8*(t & 1) + 4*m, 4)
Sb = lambda u: 32 + 16*(u % 3)
Q = lambda e: vr(16 + 4*e, 4)
O = lambda e: 80 + 16*e
C = lambda e: 112 + 16*e
vm.wait("kvg0"); a("s_barrier")
stamp("kv0")
if "clk" in XP: a("s_memtime s[96:97]\ns_memrealtime s[98:99]\ns_waitcnt lgkmcnt(0)")
a(f"ds_read_b128 {Kb(0)}, {kaddr(0)}\nds_read_b128 {Kb(1)}, {kaddr(1)}\ns_waitcnt lgkmcnt(1)")
for e in range(2): a(f"v_mfma_f32_32x32x16_bf16 {vr(32+16*e,16)}, {Kb(0)}, {Q(e)}, 0")
def rowmax(S, dst, first):
    for i in range(0, 16, 2):
        if first and i == 0: a(f"v_max_f32 v{dst}, v{S}, v{S+1}")
        else: a(f"v_max3_f32 v{dst}, v{S+i}, v{S+i+1}, v{dst}")
def negbcast(src, e):
    a(f"v_mov_b32 v6, v{src}\nv_permlane32_swap_b32 v{src}, v6\nv_max_f32 v{src}, v{src}, v6\nv_sub_f32 v{C(e)}, 0, v{src}")
    for i in range(1, 16): a(f"v_mov_b32 v{C(e)+i}, v{C(e)}")
for e in range(2): rowmax(32 + 16*e, 4 + e, True)
for e in range(2): negbcast(4 + e, e)
a(f"v_mfma_f32_32x32x16_bf16 {vr(Sb(0),16)}, {Kb(0)}, {Q(0)}, {vr(C(0),16)}")

plan = {}
TP, TR = 19, 28
def put(t, slot, x): plan.setdefault((t, slot), []).append(x)
PREV = {"e1x": ("e0", 0), "o0": ("e1", 0), "e1": ("e0", 0), "eq": ("o1", -1), "oq": ("e1", 0), "e0": ("o1", -1)}
assert True
def vitem(t, slot, x):
    pre, ins, tag, post = x
    ps, dt = PREV[slot]
    pre = [p + " " for p in pre]
    m0 = [p for p in pre if " m0," in p]; rest = [p for p in pre if " m0," not in p]
    if t + dt < 0 or len(pre) > 2:
        pp, dd = PREV[ps] if ps in PREV else ("o0", 0)
        if t + dt + dd < 0: put(t, slot, ("salu", pre))
        else: put(t + dt + dd, pp + "a", ("salu", rest)); put(t + dt, ps + "a", ("salu", m0))
    else: put(t + dt, ps + "a", ("salu", pre))
    put(t, slot, ("vm", ins, tag, m0[0] if m0 else None))
    if post: put(t, slot, ("salu", post))
for i in range(2, 8): vitem((i - 2) // 2, ("e1", "o0")[i & 1], kv_group(i))
for i in range(8, 16): vitem(21 + (i - 8) // 2, ("e1", "o0")[i & 1], kv_group(i))
vitem(25, "e1", kv_group(16))
for n, so in enumerate(("0", "s20", "s21", "s22")):
    vitem(3 + (n >> 1), ("e1", "o0")[n & 1], ([f"s_add_u32 m0, s68, {n*1024}"], [f"buffer_load_dwordx4 v176, {R2}, {so} offen lds"], "praw", []))
put(1, "eq", ("vm", [f"buffer_load_dword v253, v198, {WS}, s67 offen sc1"], None))
for n in range(2):
    put(1 + n, "oq", ("vm", [f"buffer_store_dwordx4 v[16:19], v3, {WS}, s{16+n} offen offset:{i*1024} sc1" for i in range(2)], None))
put(0, "eq", ("vm", [f"buffer_store_dword v16, v217, {WS}, 0 offen sc1"], None))
put(46, "e1", ("vm", [f"buffer_load_dword v200, v202, {WS}, 0 offen"], None))
for j in range(8): put(49 + j, "oq", ("vm", [f"buffer_load_dwordx4 {vr(220+4*j,4)}, v218, {WS}, s{18 if j < 4 else 30} offen offset:{(j & 3)*64} sc1"], None))
put(5, "o0", ("vm", [f"buffer_load_dword v200, v173, {R0}, s19 offen"], None))
put(3, "eq", ("vm", [f"buffer_load_dword v200, v198, {WS}, {sGRP} offen sc1"], None))
vitem(5, "e1x", (["s_mov_b32 m0, s35"], [f"buffer_load_dwordx4 v212, {R3}, 0 offen lds"], "praw", []))
put(2, "eq", ("vm", [f"buffer_load_dwordx4 v[204:207], v216, {WS}, s25 offen sc1"], None))
put(0, "oq", ("vm", [f"buffer_load_dwordx4 v[208:211], v216, {WS}, s25 offen offset:64 sc1"], None))
put(TP - 1, "o1b", ("wait", "praw"))
put(TP - 1, "o1x", ("ds", ["ds_read_b64_tr_b16 v[220:221], v213", "ds_read_b64_tr_b16 v[222:223], v213 offset:256"]))
put(TP, "e0", ("salu", [f"v_cvt_pk_bf16_f32 v{204+i}, v{204+2*i}, v{205+2*i}" for i in range(4)]))
put(TP, "o0", ("salu", ["v_mfma_f32_16x16x32_bf16 v[224:227], v[8:11], v[220:223], 0"]))
put(TP + 2, "e0", ("salu", [f"v_mfma_f32_16x16x32_bf16 {vr(228+4*j,4)}, v[204:207], {vr(180+4*j,4)}, 0" for j in range(4)]))
put(TP + 3, "e0", ("salu", ["s_mov_b32 exec_lo, 0xffff0000", "s_mov_b32 exec_hi, 0", "v_mov_b32 v228, v232", "v_mov_b32 v229, v233",
                            "s_mov_b32 exec_lo, 0", "s_mov_b32 exec_hi, 0x0000ffff", "v_mov_b32 v228, v236", "v_mov_b32 v229, v237",
                            "s_mov_b32 exec_hi, 0xffff0000", "v_mov_b32 v228, v240", "v_mov_b32 v229, v241", "s_mov_b64 exec, -1"]))
put(25, "o0", ("vm", [f"buffer_atomic_add_f32 v228, v215, {WS}, s28 offen", f"buffer_atomic_add_f32 v229, v215, {WS}, s29 offen"], None))
put(25, "oq", ("vm", [f"buffer_atomic_add_f32 v224, v214, {WS}, s34 offen"], None))
for j in range(4):
    put(TP + (j >> 1), ("eq", "oq")[j & 1], ("ds", [f"ds_read_b64_tr_b16 {vr(180+4*j,2)}, v177 offset:{j*32}", f"ds_read_b64_tr_b16 {vr(182+4*j,2)}, v178 offset:{j*32}"]))
put(26, "e1", ("vm", [f"buffer_store_dwordx4 {vr(180+4*j,4)}, v3, {WS}, s36 offen offset:{j*1024} sc1" for j in (0, 1)], None))
put(26, "o0", ("vm", [f"buffer_store_dwordx4 {vr(188,4)}, v3, {WS}, s24 offen offset:2048 sc1", f"buffer_store_dwordx4 {vr(192,4)}, v3, {WS}, s37 offen offset:3072 sc1"], "pst"))
put(TR + 2, "oq", ("vm", [f"buffer_atomic_add v199, v198, {WS}, s39 offen sc1"], None))
put(40, "oq", ("vm", [f"buffer_load_dword v201, v196, {WS}, s38 offen sc1"], "pchk"))
for k in range(36):
    t, hf = TR + (k >> 1), k & 1
    if k < 32:
        T2, s_ = k >> 2, k & 3
        if s_ == 0: pass
        vitem(t, ("e1", "o0")[hf], ([f"s_add_u32 s75, s{70+s_}, {T2*128}", f"s_add_u32 m0, s77, {(k % 6)*2048}"],
                                    [f"buffer_load_dwordx4 v168, {R0}, s75 offen lds", f"buffer_load_dwordx4 v169, {R0}, s75 offen offset:1024 lds"], f"ring{k}", []))
    if k >= 4:
        T2, s_ = (k - 4) >> 2, (k - 4) & 3
        if hf == 0: put(t - 1, "o1b", ("wait", f"ring{k-3}"))
        for e_ in range(2): put(t, (("eq", "e0"), ("oq", "o1x"))[hf][e_], ("ds", [f"ds_read_b128 {ar(((2*T2+e_)*4+s_)*4,4)}, v{170+e_} offset:{((k-4) % 6)*2048}"]))
for grp, t0 in ((0, 44), (1, 56), (2, 60)):
    for n, x in enumerate(win_items(1, grp, lin_slot(slotA(4*grp)), f"z2g{grp}")): vitem(t0 + n, "o0", x)
for n in range(8):
    pre = [f"s_lshl_b32 s76, {sW}, 12", "s_add_u32 s74, s76, s69"] if n == 0 else []
    post = ["s_add_u32 s74, s74, 16384", "s_add_u32 s76, s76, 16384"] if n & 1 else []
    vitem(48 + n, "o0", (pre + ["s_mov_b32 m0, s76"], [f"buffer_load_dwordx4 v3, {WS}, s74 offen offset:{(2*(n & 1) + i)*1024} sc1 lds" for i in range(2)], "wo", post))
for n in range(2): put(58 + n, "eq", ("vm", [f"buffer_load_dwordx2 {vr(8+2*j,2)}, v172, {R1}, 0 offen offset:{j*32}" for j in (2*n, 2*n + 1)], None))
if "noextra" in XP: raise SystemExit("noextra unsupported")
syncs = {3: "kvg1", 7: "kvg7", 29: "kvg16", 35: None, 48: None, 60: "wo"}
last_m0 = [None]
def slot(t, k):
    for x in plan.pop((t, k), []):
        if x[0] == "salu":
            for p in x[1]:
                a(p)
                if " m0," in p: last_m0[0] = p
        elif x[0] == "vm":
            if len(x) > 3 and x[3] is not None and x[3] is not last_m0[0]:
                a(x[3]); last_m0[0] = x[3]
            for q_ in x[1]: vm.op(q_, x[2])
        elif x[0] == "ds":
            for q_ in x[1]: a(q_)
        else: vm.wait(x[1])
for u in range(128):
    t, e = u >> 1, u & 1
    S = Sb(u)
    ex = [f"v_exp_f32 v{S+i}, v{S+i}" for i in range(16)]
    pf = "eo"[e]
    if u + 1 < 128:
        t1, e1 = (u + 1) >> 1, (u + 1) & 1
        a(f"v_mfma_f32_32x32x16_bf16 {vr(Sb(u+1),16)}, {Kb(t1)}, {Q(e1)}, {vr(C(e1),16)}")
    a("s_waitcnt lgkmcnt(0)")
    if e == 1 and t + 2 in syncs:
        if syncs[t + 2]: vm.wait(syncs[t + 2])
        a("s_barrier")
    if "tst" in XP and e == 0 and t in (2, 4, 8, 11, 14, 17, 20, 23, 26, 28, 30, 34, 38, 42, 46, 50, 54, 58, 61): stamp(f"t{t}")
    if u == 86:
        vm.wait("pchk")
        a("v_cmp_gt_u32 vcc, 32, v201\ns_nop 1\ns_cmp_lg_u32 vcc_lo, 0\ns_cbranch_scc1 L_pwait\nL_pok:")
    slot(t, pf + "q")
    for x in ex[0:3]: a(x)
    Sp, tp, ep = Sb(u - 1), (u - 1) >> 1, (u - 1) & 1
    if u > 0: a(f"v_smfmac_f32_32x32x32_bf16 {vr(O(ep),16)}, {Vb(tp,0)}, {vr(Sp,8)}, v30")
    slot(t, pf + "0b")
    if e == 0:
        slot(t, "e0a"); a(f"ds_read_b128 {Vb(t,0)}, {vaddr(t,0)}"); slot(t, "e0")
    else:
        slot(t, "o0"); slot(t, "o0a")
    for x in ex[3:7]: a(x)
    if u > 0: a(f"v_smfmac_f32_32x32x32_bf16 {vr(O(ep),16)}, {Vb(tp,1)}, {vr(Sp+8,8)}, v30")
    slot(t, pf + "1b")
    if e == 0:
        slot(t, "e1"); slot(t, "e1x"); slot(t, "e1a"); a(f"ds_read_b128 {Vb(t,1)}, {vaddr(t,1)}")
    else:
        slot(t, "o1a")
        if t + 2 < 64: a(f"ds_read_b128 {Kb(t+2)}, {kaddr(t+2)}")
        slot(t, "o1x")
    for x in ex[7:16]: a(x)
assert not plan, plan.keys()
for m in range(2): a(f"v_smfmac_f32_32x32x32_bf16 {vr(O(1),16)}, {Vb(63,m)}, {vr(Sb(127)+8*m,8)}, v30")
if "clk" in XP: a("s_memtime s[100:101]\ns_memrealtime s[78:79]\ns_waitcnt lgkmcnt(0)\ns_sub_u32 s100, s100, s96\ns_sub_u32 s101, s78, s98")
stamp("attn")
Lfb, Lok = a.label("fb"), a.label("ok")
def getl():
    for e in range(2): a(f"v_mov_b32 v{4+2*e}, v{O(e)+8}\nv_mov_b32 v{5+2*e}, v{O(e)+8}")
    for e in range(2): a(f"v_permlane32_swap_b32 v{4+2*e}, v{5+2*e}")
a(f"""
s_lshl_b32 s3, {sXCC}, 2
s_lshl_b32 s3, 8, s3
v_readfirstlane_b32 s64, v253
s_lshl_b32 s65, {sCB}, 2
v_add_u32 v254, s65, v198
v_lshlrev_b32 v255, 2, v0
s_cmp_eq_u32 s64, s3
s_cselect_b32 {sFAST}, {0 if FORCE_SLOW else 1}, 0
v_mov_b32 v32, {fbits(2.0**40 if not FORCE_FB else -1.0)}
""")
if "probe" in XP:
    a(f"s_cmp_eq_u32 {sFAST}, 0\ns_cbranch_scc0 L_pr\ns_mov_b32 s3, 12\nL_pr0:\ns_sleep 127\ns_sub_u32 s3, s3, 1\ns_cmp_lg_u32 s3, 0\ns_cbranch_scc1 L_pr0\nL_pr:")
getl()
a(f"v_add_f32 v5, v4, v6\nv_cmp_nlt_f32 vcc, v5, v32\ns_cbranch_vccnz {Lfb}\n{Lok}:")
for e in range(2): a(f"v_rcp_f32 v{4+2*e}, v{4+2*e}")
for e in range(2):
    for i in range(4): a(f"v_pk_mul_f32 {vr(O(e)+2*i,2)}, {vr(O(e)+2*i,2)}, {vr(4+2*e,2)} op_sel_hi:[1,0]")
for e in range(2):
    for i in range(4): a(f"v_cvt_pk_bf16_f32 v{32+4*e+i}, v{O(e)+2*i}, v{O(e)+2*i+1}")
both(lambda sc: [vm.op(f"buffer_store_dwordx4 {vr(32+4*e,4)}, v3, {WS}, s16 offen offset:{e*1024}{sc}") for e in range(2)])
rd3 = lambda T, j: a(f"ds_read_b128 {vr(144+(T&1)*16+4*j,4)}, v3 offset:{L_WO + T*4096 + j*1024}")
for j in range(4): rd3(0, j)
hop_signal(1)
stamp("opub")
round_bf16(list(range(220, 236)))
for i in range(8): a(f"v_lshlrev_b32 v{32+2*i}, 16, v{8+i}\nv_and_b32 v{33+2*i}, 0xffff0000, v{8+i}")
a(f"""
v_mov_b32 v31, v218
s_lshl_b32 s64, s55, 1
s_add_u32 s64, s64, {WS_X}
s_lshr_b32 s68, s55, 4
s_lshl_b32 s3, {sCB}, 7
s_add_u32 s69, s68, s3
s_add_u32 s67, s69, {WS_ST1}
v_lshlrev_b32 v6, 3, v1
""")
hop_wait(1)
stamp("C")
def frag_load(T, tag):
    vm.op(f"buffer_load_dwordx4 {vr(64+4*T,4)}, v3, {WS}, s64 offen offset:{(T & 3)*1024} sc1", f"{tag}{T}")
    if T & 3 == 3: a("s_add_u32 s64, s64, 4096")
AH = 8
for T in range(AH): frag_load(T, "o")
fragloop(16, 4, rd3,
         lambda T, j: a(f"v_mfma_f32_16x16x32_bf16 {vr(128+4*j,4)}, {vr(144+(T&1)*16+4*j,4)}, {vr(64+4*T,4)}, {'0' if T == 0 else vr(128+4*j,4)}"),
         before=lambda T: vm.wait(f"o{T}"), after=lambda T, j: frag_load(T + AH, "o") if j == 0 and T + AH < 16 else None, preissued=True)
stamp("p3mm")
for i in range(8): a(f"v_pk_fma_f32 {vr(32+2*i,2)}, {vr(128+2*i,2)}, {vr(220+2*i,2)}, {vr(32+2*i,2)}")
for i in range(8): a(f"v_cvt_pk_bf16_f32 v{8+i}, v{32+2*i}, v{33+2*i}")
for i in range(8): a(f"v_lshlrev_b32 v{32+2*i}, 16, v{8+i}\nv_and_b32 v{33+2*i}, 0xffff0000, v{8+i}")
for i in range(8): a(f"v_pk_mul_f32 {vr(236+2*i,2)}, {vr(236+2*i,2)}, {vr(32+2*i,2)}")
for i in range(8): a(f"v_cvt_pk_bf16_f32 v{80+i}, v{236+2*i}, v{237+2*i}")
both(lambda sc: [vm.op(f"buffer_store_dwordx4 {vr(80+4*p,4)}, v3, {WS}, s17 offen offset:{p*1024}{sc}") for p in range(2)])
a("v_pk_mul_f32 v[88:89], v[32:33], v[32:33]\nv_pk_add_f32 v[90:91], v[32:33], v[34:35]\nv_pk_mul_f32 v[94:95], v[34:35], v[34:35]\nv_pk_add_f32 v[96:97], v[36:37], v[38:39]")
for i in range(2, 8): a(f"v_pk_fma_f32 {vr(88 + 6*(i & 1),2)}, {vr(32+2*i,2)}, {vr(32+2*i,2)}, {vr(88 + 6*(i & 1),2)}")
for i in range(4, 8): a(f"v_pk_add_f32 {vr(90 + 6*(i & 1),2)}, {vr(90 + 6*(i & 1),2)}, {vr(32+2*i,2)}")
a("v_pk_add_f32 v[88:89], v[88:89], v[94:95]\nv_pk_add_f32 v[90:91], v[90:91], v[96:97]\nv_add_f32 v93, v88, v89\nv_add_f32 v92, v90, v91")
xgroup_sum2(92, 94, 93, 95)
a("s_mov_b64 exec, 0xffff")
both(lambda sc: vm.op(f"buffer_store_dwordx2 v[92:93], v6, {WS}, s67 offen{sc}"))
a(f"""
s_mov_b64 exec, -1
v_add_u32 v25, 0xe000, v3
v_add_u32 v26, 0xe000, v25
v_and_b32 v4, 7, v1
v_lshlrev_b32 v4, 7, v4
v_lshl_add_u32 v30, v2, 5, v4
v_lshlrev_b32 v4, 8, v2
v_lshl_add_u32 v27, v1, 3, v4
""")
stamp("p3ep")
hop_signal(2)
stamp("ypub")
WB = (32, 204)
def rdl(dst, addr):
    w_, off = divmod(addr, 0xe000)
    a(f"ds_read_b128 {vr(dst,4)}, v{(3, 25, 26)[w_]} offset:{off}")
a(f"""
s_barrier
s_and_b32 s3, {sW}, 1
s_mul_i32 s66, s3, 3584
s_lshl_b32 s3, s3, 10
s_add_u32 m0, s3, {L_SM}
s_mul_i32 s3, {sCB}, 448
s_add_u32 s66, s66, s3
s_add_u32 s66, s66, {WS_C12}
v_add_u32 v6, {7168 - 448}, v3
v_cmp_gt_u32 vcc, 28, v0
v_cndmask_b32 v6, v6, v3, vcc
""")
vm.op(f"buffer_load_dwordx4 v6, {WS}, s66 offen sc1 lds")
for x in win_items(1, 3, [f"s_mul_i32 s75, {sW}, {SLOT}", f"s_sub_u32 s75, s75, {SLOT}", f"s_cmp_eq_u32 {sW}, 0", f"s_cselect_b32 s75, {slotA(12)}, s75"], "z2g3"): emit_item(x)
for j in range(7): rdl(WB[0] + 4*j, slot_z2(0) + j*1024)
a(f"v_add_u32 v29, {L_SM}, v31\nv_lshlrev_b32 v24, 2, v1\nv_add_u32 v24, {L_SM + 1024}, v24\ns_add_u32 s66, s68, {WS_ST1}")
hop_wait(2)
stamp("D")
vm.op(f"buffer_load_dwordx2 v[172:173], v27, {WS}, s66 offen sc1")
vm.op(f"buffer_load_dwordx2 v[174:175], v27, {WS}, s66 offen offset:128 sc1", "st1")
for T in range(AH): frag_load(T, "y")
a(f"v_lshlrev_b32 v4, 7, v0\nv_mov_b32 v27, {OOB}\nv_cmp_gt_u32 vcc, 14, v0\nv_cndmask_b32 v27, v27, v4, vcc")
vm.wait("st1")
a("v_pk_add_f32 v[172:173], v[172:173], v[174:175]")
xgroup_sum2(172, 174, 173, 175)
finish_stats([(172, 173, 62, 28, None)], 512)
a(f"v_mul_f32 v62, v62, v28\nv_mov_b32 v60, {fbits(-2*math.log2(math.e)*math.sqrt(2/math.pi))}\nv_mov_b32 v61, v60")
for i in range(4): a(f"ds_bpermute_b32 v{20+i}, v31, v28 offset:{4*i}\nds_bpermute_b32 v{16+i}, v31, v62 offset:{4*i}")
CP = [232, 234, 236, 238, 240, 242, 244]
z1items = {g_: win_items(0, g_, lin_slot(slotB(3) if g_ == 0 else slotA(4*(g_ - 1))), f"z1g{g_}") for g_ in range(4)}
def bef(T):
    if T == 11: a("s_waitcnt lgkmcnt(0)\ns_barrier")
    vm.wait(f"y{T}")
def aft(T, j):
    if j == 0 and T + AH < 16: frag_load(T + AH, "y")
    if j == 5 and T in (9, 11, 13, 15):
        vm.op(f"buffer_load_dword v252, v27, {WS}, s26 offen sc1"); a("s_add_u32 s26, s26, 1792")
    if j == 3 and 6 <= T < 10: emit_item(z1items[0][T - 6])
    if j == 3 and 11 <= T < 15: emit_item(z1items[1][T - 11])
fragloop(16, 7, lambda T, j: rdl(WB[T & 1] + 4*j, slot_z2(T) + j*1024),
         lambda T, j: a(f"v_mfma_f32_16x16x32_bf16 {vr(128+4*j,4)}, {vr(64+4*T,4)}, {vr(WB[T & 1]+4*j,4)}, {'0' if T == 0 else vr(128+4*j,4)}"),
         before=bef, after=aft, preissued=True)
for j in range(7): a(f"ds_read2_b32 {vr(CP[j],2)}, v24 offset0:{j*16} offset1:{j*16 + 112}")
stamp("z2mm")
a(f"s_mov_b32 s64, {fbits(-2*math.log2(math.e)*math.sqrt(2/math.pi)*0.044715)}\ns_mov_b32 s65, s64\ns_mov_b32 s66, 1.0\ns_mov_b32 s67, 1.0\ns_waitcnt lgkmcnt(0)")
def gelu(acc, tmp, mid=None):
    P = range(14)
    for i in P: a(f"v_pk_mul_f32 {vr(tmp+2*i,2)}, {vr(acc+2*i,2)}, {vr(acc+2*i,2)}")
    for i in P: a(f"v_pk_fma_f32 {vr(tmp+2*i,2)}, {vr(tmp+2*i,2)}, s[64:65], v[60:61]")
    for i in P: a(f"v_pk_mul_f32 {vr(tmp+2*i,2)}, {vr(tmp+2*i,2)}, {vr(acc+2*i,2)}")
    for i in range(28): a(f"v_exp_f32 v{tmp+i}, v{tmp+i}")
    if mid: mid()
    for i in P: a(f"v_pk_add_f32 {vr(tmp+2*i,2)}, {vr(tmp+2*i,2)}, s[66:67]")
    for i in range(28): a(f"v_rcp_f32 v{tmp+i}, v{tmp+i}")
    for i in P: a(f"v_pk_mul_f32 {vr(acc+2*i,2)}, {vr(acc+2*i,2)}, {vr(tmp+2*i,2)}")
for i in range(14): a(f"v_pk_fma_f32 {vr(32+2*i,2)}, {vr(16+2*(i & 1),2)}, {vr(CP[i >> 1],2)}, {vr(CP[i >> 1],2)} op_sel:[0,0,1] op_sel_hi:[1,0,1]")
for i in range(14): a(f"v_pk_fma_f32 {vr(128+2*i,2)}, {vr(128+2*i,2)}, {vr(20+2*(i & 1),2)}, {vr(32+2*i,2)}")
gelu(128, 32)
for j in range(7): rdl(WB[0] + 4*j, slot_z1(0) + j*1024) if False else None
for h in range(2):
    a(f"v_pk_add_f32 {vr(156+2*h,2)}, {vr(128+2*h,2)}, {vr(132+2*h,2)}\nv_pk_mul_f32 {vr(160+2*h,2)}, {vr(128+2*h,2)}, {vr(128+2*h,2)}")
for j in range(1, 7):
    for h in range(2):
        if j > 1: a(f"v_pk_add_f32 {vr(156+2*h,2)}, {vr(156+2*h,2)}, {vr(128+4*j+2*h,2)}")
        a(f"v_pk_fma_f32 {vr(160+2*h,2)}, {vr(128+4*j+2*h,2)}, {vr(128+4*j+2*h,2)}, {vr(160+2*h,2)}")
dppsum(range(156, 164), (8, 4, 2, 1))
a(f"s_add_u32 s70, s69, {WS_ST2}\nv_lshlrev_b32 v6, 5, v2\ns_mov_b32 exec_lo, 0x00010001\ns_mov_b32 exec_hi, 0x00010001")
both(lambda sc: (vm.op(f"buffer_store_dwordx4 v[156:159], v6, {WS}, s70 offen{sc}"), vm.op(f"buffer_store_dwordx4 v[160:163], v6, {WS}, s70 offen offset:16{sc}", "sst")))
a("s_mov_b64 exec, -1")
vm.wait("z1g1")
a("s_barrier")
stamp("spub")
def z2_publish():
    hop_wait(3)
    stamp("S")
    a(f"s_add_u32 s3, s68, {WS_ST2}")
    vm.op(f"buffer_load_dwordx4 v[164:167], v30, {WS}, s3 offen sc1")
    vm.op(f"buffer_load_dwordx4 v[168:171], v30, {WS}, s3 offen offset:16 sc1", "st2")
    srd(R1, P_BSP, 4096)
    a("s_lshr_b32 s3, s55, 9\nv_lshlrev_b32 v4, 1, v1")
    vm.op(f"buffer_load_ushort v16, v4, {R1}, s3 offen", "bsp")
    a(f"""
s_lshl_b32 s70, {sCB}, 6
s_lshl_b32 s3, {sRB}, 1
s_add_u32 s70, s70, s3
s_lshr_b32 s3, {sW}, 1
s_add_u32 s70, s70, s3
s_mul_i32 s70, s70, 7168
s_and_b32 s3, {sW}, 1
s_lshl_b32 s3, s3, 9
s_add_u32 s70, s70, s3
s_add_u32 s70, s70, {WS_Z2}
s_add_u32 s71, s70, 4096
v_and_b32 v4, 1, v2
v_lshlrev_b32 v4, 10, v4
v_lshrrev_b32 v5, 1, v2
v_lshl_add_u32 v4, v5, 8, v4
v_lshl_add_u32 v6, v1, 4, v4
""")
    vm.wait("st2")
    dppsum(range(164, 172), (4, 2, 1))
    finish_stats([(164+i, 168+i, 156+i, 160+i, None) for i in range(4)], 896)
    for h in range(2): a(f"v_pk_mul_f32 {vr(156+2*h,2)}, {vr(156+2*h,2)}, {vr(160+2*h,2)}")
    for i in range(14): a(f"v_pk_fma_f32 {vr(128+2*i,2)}, {vr(128+2*i,2)}, {vr(160+2*(i & 1),2)}, {vr(156+2*(i & 1),2)}")
    for i in range(14): a(f"v_cvt_pk_bf16_f32 v{232+i}, v{128+2*i}, v{129+2*i}")
    a("v_mov_b32 v246, v244\nv_mov_b32 v247, v245")
    for p in range(4): a(f"v_permlane16_swap_b32 v{232+4*p}, v{234+4*p}\nv_permlane16_swap_b32 v{233+4*p}, v{235+4*p}")
    vm.op(f"buffer_store_dwordx4 v[232:235], v6, {WS}, s70 offen sc1")
    vm.op(f"buffer_store_dwordx4 v[236:239], v6, {WS}, s70 offen offset:2048 sc1")
    vm.op(f"buffer_store_dwordx4 v[240:243], v6, {WS}, s71 offen sc1")
    a("s_mov_b32 exec_lo, 0x0000ffff\ns_mov_b32 exec_hi, 0x0000ffff")
    vm.op(f"buffer_store_dwordx4 v[244:247], v6, {WS}, s71 offen offset:2048 sc1", "zst")
    a(f"""
s_mov_b64 exec, -1
s_lshl_b32 s70, {sRB}, 3
s_add_u32 s70, s70, {sCB}
s_lshl_b32 s70, s70, 9
s_lshl_b32 s3, {sW}, 7
s_add_u32 s70, s70, s3
s_add_u32 s70, s70, {F_E}
""")
    stamp("zst")
def bef(T):
    if T == 2: hop_signal(3, "sst")
    if T == TS: z2_publish()
    if T == TE:
        vm.wait("zst"); vm.op(f"buffer_store_dword v17, v63, {WS}, s70 offen sc1")
        stamp("zpub")
    if T == 7: a("s_barrier")
def aft(T, j):
    if T < 2 and j in (1, 4): emit_item(z1items[2][2*T + (j == 4)])
    if 2 <= T < 4 and j in (1, 4): emit_item(z1items[3][2*(T - 2) + (j == 4)])
TS, TE = 7, 12
a(f"v_mov_b32 v17, 1\nv_mov_b32 v63, {OOB}\nv_cmp_eq_u32 vcc, 0, v0\nv_cndmask_b32 v63, v63, v0, vcc")
fragloop(16, 7, lambda T, j: rdl(WB[T & 1] + 4*j, slot_z1(T) + j*1024),
         lambda T, j: a(f"v_mfma_f32_16x16x32_bf16 {vr(176+4*j,4)}, {vr(WB[T & 1]+4*j,4)}, {vr(64+4*T,4)}, {'0' if T == 0 else vr(176+4*j,4)}"), before=bef, after=aft)
for j in range(7): a(f"ds_read_b128 {vr(204+4*j,4)}, v29 offset:{j*64}\nds_read_b128 {vr(128+4*j,4)}, v29 offset:{448 + j*64}")
a("s_barrier")
stamp("z1mm")
a(f"s_lshl_b32 s70, {sW}, 15\ns_lshl_b32 s3, {sCB}, 9\ns_add_u32 s70, s70, s3\ns_add_u32 s70, s70, {F_E}\nv_lshrrev_b32 v6, 2, v0\nv_lshlrev_b32 v6, 12, v6\nv_and_b32 v5, 3, v0\nv_lshl_add_u32 v6, v5, 7, v6")
a(f"s_lshl_b32 s72, {sCB}, 2\ns_add_u32 s72, s72, {sW}\ns_mul_i32 s72, s72, {16*7168}\ns_add_u32 s72, s72, {WS_Z2}\ns_add_u32 s73, s72, 4096")
poll(f"buffer_load_dword v4, v6, {WS}, s70 offen sc1", "v_cmp_gt_u32 vcc, 1, v4", "0xffffffff")
stamp("E")
ZB = lambda T: (64, 92, 32)[T % 3]
def ldz(T, j):
    vm.op(f"buffer_load_dwordx4 {vr(ZB(T)+4*j,4)}, v3, {WS}, s{72 + (j >> 2)} offen offset:{(j & 3)*1024} sc1", f"z{T}_{j}")
    if j == 6: a("s_add_u32 s72, s72, 7168\ns_add_u32 s73, s73, 7168")
for j in range(7): ldz(0, j)
a("s_waitcnt lgkmcnt(0)")
for i in range(14): a(f"v_pk_fma_f32 {vr(128+2*i,2)}, {vr(204+2*i,2)}, v[62:63], {vr(128+2*i,2)} op_sel_hi:[1,0,1]")
for i in range(14): a(f"v_pk_fma_f32 {vr(176+2*i,2)}, {vr(176+2*i,2)}, v[28:29], {vr(128+2*i,2)} op_sel_hi:[1,0,1]")
gelu(176, 32, mid=lambda: [ldz(1, j) for j in range(7)])
for i in range(14): a(f"v_cvt_pk_bf16_f32 v{240+i}, v{176+2*i}, v{177+2*i}")
Z1P = list(range(240, 254))
stamp("gelu1")
def wout_setup(n0):
    a(f"s_mul_i32 s3, {sCB}, {28*4096}\ns_add_u32 s75, s3, {WS_WOUTF + n0*4096}\ns_lshl_b32 s76, {sW}, 10\ns_add_u32 s74, s75, s76\ns_add_u32 s76, s76, {L_WOUT + n0*4096}")
def wout_one(tag):
    a("s_mov_b32 m0, s76\ns_add_u32 s76, s76, 4096")
    vm.op(f"buffer_load_dwordx4 v3, {WS}, s74 offen sc1 lds", tag)
    a("s_add_u32 s74, s74, 4096")
def wout_dma(n0, n1, tag):
    wout_setup(n0)
    for n in range(n0, n1): wout_one(tag)
wout_setup(0)
for s_ in range(1, 4):
    a(f"s_add_u32 s3, {sW}, {s_}\ns_and_b32 s3, s3, 3\ns_mul_i32 s3, s3, {21*1024}\ns_add_u32 s3, s3, {L_RED + (s_-1)*7168}\nv_add_u32 v{16+s_}, s3, v3")
a(f"s_mul_i32 s3, {sW}, {21*1024}\ns_add_u32 s3, s3, {L_RED}\nv_add_u32 v20, s3, v3\nv_lshlrev_b32 v16, 16, v16")
def p5(T, j, s_):
    d = vr(128 + (s_*7 + j)*4, 4)
    a(f"v_mfma_f32_16x16x32_bf16 {d}, {vr(ZB(T)+4*j,4)}, {ar((T*4+s_)*4,4)}, {'0' if T == 0 else d}")
for T in range(16):
    for j in range(7):
        vm.wait(f"z{T}_{j}")
        for s_ in ((0, 1, 2, 3) if T < 13 else (1, 2, 3)):
            p5(T, j, s_)
            if s_ == 0 and T + 2 < 16 or s_ == 1 and T == 13: ldz(T + 2, j)
            if s_ == 2 and (j == 3 or (j == 0 and T >= 13)): wout_one("wout0")
stamp("p5mm")
for n in range(21):
    a(f"ds_write_b128 v{17 + n // 7}, {vr(128 + (7 + n)*4, 4)} offset:{(n % 7)*1024}")
    p5(13 + n // 7, n % 7, 0)
for i in range(14): a(f"v_lshlrev_b32 v{156+2*i}, 16, v{Z1P[i]}\nv_and_b32 v{157+2*i}, 0xffff0000, v{Z1P[i]}")
for i in range(14): a(f"v_pk_add_f32 {vr(128+2*i,2)}, {vr(128+2*i,2)}, v[16:17] op_sel_hi:[1,0]")
a(f"""
s_lshl_b32 s68, s55, 1
s_add_u32 s68, s68, {WS_X}
s_mul_i32 s64, {sCB}, 3072
s_add_u32 s64, s64, s68
s_lshl_b32 s65, {sCB}, 9
s_add_u32 s65, s65, s68
s_add_u32 s65, s65, {24*1024}
v_lshrrev_b32 v6, 5, v0
v_lshlrev_b32 v6, 8, v6
v_lshl_add_u32 v6, v1, 4, v6
s_waitcnt lgkmcnt(0)
s_barrier
""")
stamp("red")
order = [(k, j) for j in range(7) for k in range(3)]
for k, j in order[:15]: a(f"ds_read_b128 {vr(32+(k*7+j)*4,4)}, v20 offset:{(k*7+j)*1024}")
for j in range(7):
    for k, jj in order[15 + 3*j:18 + 3*j]: a(f"ds_read_b128 {vr(32+(k*7+jj)*4,4)}, v20 offset:{(k*7+jj)*1024}")
    a(f"s_waitcnt lgkmcnt({min(15, 18 - 3*j)})")
    for h in range(2):
        a(f"v_pk_add_f32 {vr(32+4*j+2*h,2)}, {vr(32+4*j+2*h,2)}, {vr(60+4*j+2*h,2)}\nv_pk_add_f32 {vr(128+4*j+2*h,2)}, {vr(128+4*j+2*h,2)}, {vr(88+4*j+2*h,2)}")
    for h in range(2): a(f"v_pk_add_f32 {vr(128+4*j+2*h,2)}, {vr(128+4*j+2*h,2)}, {vr(32+4*j+2*h,2)}")
    for h in range(2): a(f"v_pk_mul_f32 {vr(128+4*j+2*h,2)}, {vr(128+4*j+2*h,2)}, {vr(156+4*j+2*h,2)}")
    for h in range(2): a(f"v_cvt_pk_bf16_f32 v{184+2*j+h}, v{128+4*j+2*h}, v{129+4*j+2*h}")
a("v_mov_b32 v198, v196\nv_mov_b32 v199, v197\nv_permlane16_swap_b32 v196, v198\nv_permlane16_swap_b32 v197, v199")
def pubu(sc):
    for p in range(3): vm.op(f"buffer_store_dwordx4 {vr(184+4*p,4)}, v3, {WS}, s64 offen offset:{p*1024}{sc}")
    a("s_mov_b32 exec_lo, 0x0000ffff\ns_mov_b32 exec_hi, 0x0000ffff")
    vm.op(f"buffer_store_dwordx4 v[196:199], v6, {WS}, s65 offen{sc}")
    a("s_mov_b64 exec, -1")
both(pubu)
hop_signal(4)
stamp("upub")
a("s_barrier")
rd6 = lambda n, j: rdl(160 + (n & 1)*16 + 4*j, L_WOUT + n*4096 + j*1024)
for j in range(4): rd6(0, j)
wout_dma(19, 28, "wout1")
hop_wait(4)
stamp("F")
steps = []
for cbp in range(8):
    for p in range(3): steps.append((cbp*3 + p, 112*cbp + 32*p, False))
    if cbp & 1: steps.append((24 + (cbp >> 1), 224*(cbp >> 1) + 96, True))
a("s_mov_b32 s64, s68")
for n in range(1, 7): a(f"s_add_u32 s{64+n if n < 4 else 66+n}, s64, {4096*n}")
US = ["s64", "s65", "s66", "s67", "s70", "s71", "s72"]
def uload(n):
    st = steps[n][0]
    vm.op(f"buffer_load_dwordx4 {vr(32+4*n,4)}, v3, {WS}, {US[st >> 2]} offen offset:{(st & 3)*1024} sc1", f"u{n}")
for n in range(AH): uload(n)
a(f"s_lshl_b32 s74, {sCB}, 8\ns_add_u32 s74, s74, {WS_G2 + 2048}")
def aft6(n, j):
    if j == 0 and n + AH < 28: uload(n + AH)
    if j == 0 and 28 <= n + AH < 32: vm.op(f"buffer_load_dwordx4 {vr(216+4*(n+AH-28),4)}, v31, {WS}, s74 offen offset:{(n+AH-28)*64} sc1", "gb")
stamp("u_iss")
def bef(n):
    if n == 18: a("s_barrier")
    vm.wait(f"u{n}")
fragloop(28, 4, rd6,
         lambda n, j: a(f"v_mfma_f32_16x16x32_bf16 {vr(144+4*j,4)}, {vr(160+(n&1)*16+4*j,4)}, {vr(32+4*n,4)}, {'0' if n == 0 else vr(144+4*j,4)}"),
         before=bef, after=aft6, preissued=True)
stamp("p6mm")
vm.wait("gb")
for i in range(8): a(f"v_lshlrev_b32 v{32+2*i}, 16, v{8+i}\nv_and_b32 v{33+2*i}, 0xffff0000, v{8+i}")
for i in range(8): a(f"v_pk_fma_f32 {vr(32+2*i,2)}, {vr(144+2*i,2)}, {vr(216+2*i,2)}, {vr(32+2*i,2)}")
for i in range(8): a(f"v_cvt_pk_bf16_f32 v{48+i}, v{32+2*i}, v{33+2*i}")
for p in range(2): a(f"v_permlane16_swap_b32 v{48+4*p}, v{50+4*p}\nv_permlane16_swap_b32 v{49+4*p}, v{51+4*p}")
srd(R1, P_OUT, 2048 * 1024, "s55")
a(f"v_lshlrev_b32 v4, 10, v1\nv_and_b32 v5, 1, v2\nv_lshl_add_u32 v4, v5, 5, v4\nv_lshrrev_b32 v5, 1, v2\nv_lshl_add_u32 v4, v5, 4, v4\ns_lshl_b32 s3, {sCB}, 7")
for p in range(2): a(f"buffer_store_dwordx4 {vr(48+4*p,4)}, v4, {R1}, s3 offen offset:{p*64}{' sc1' if 'outsc1' in XP else ' nt' if 'outnt' in XP else ''}")
if AMP:
    a("s_waitcnt vmcnt(0)")
    stamp("end")
    assert AMP[0] != "start"
    a("s_sub_u32 s91, s91, s90\ns_min_u32 s91, s91, 10000\ns_memrealtime s[78:79]\ns_waitcnt lgkmcnt(0)\ns_mov_b32 s92, s78\nL_amp:\ns_sleep 1\ns_memrealtime s[78:79]\ns_waitcnt lgkmcnt(0)\ns_sub_u32 s78, s78, s92\ns_cmp_lt_u32 s78, s91\ns_cbranch_scc1 L_amp")
elif "dbg" in XP:
    a("s_waitcnt vmcnt(0)")
    stamp("end")
    sel = ["xin", "barP", "barB", "kv0", "attn", "C", "D", "z2mm", "zpub", "E", "p5mm", "upub", "F", "p6mm", "end"]
    a("s_not_b32 s3, s80\nv_mov_b32 v32, s3")
    for n, nm in enumerate(sel):
        i = stamp_names.index(nm)
        a(f"s_bfe_u32 s3, s{81 + (i-1)//2}, {hex((16 << 16) | (16*((i-1) & 1)))}\ns_add_u32 s3, s3, s80\nv_writelane_b32 v32, s3, {n+1}")
    a("s_load_dwordx2 s[64:65], s[96:97], 104\ns_waitcnt lgkmcnt(0)")
    srd(R1, 64, 256)
    a(f"v_lshlrev_b32 v4, 2, v0\ns_mov_b64 exec, 0xffff\nbuffer_atomic_umax v32, v4, {R1}, 0 offen sc1\ns_waitcnt vmcnt(0)")
elif STAMPS:
    a("s_waitcnt vmcnt(0)")
    stamp("end")
    for i in range(22): a(f"v_writelane_b32 v32, s{80+i}, {i}")
    a(f"s_lshl_b32 s3, s2, 2\ns_add_u32 s3, s3, {sW}\ns_lshl_b32 s3, s3, 7\ns_add_u32 s3, s3, {WS_STAMP}\nv_lshlrev_b32 v4, 2, v0\ns_mov_b64 exec, 0xffffffff\nbuffer_store_dword v32, v4, {WS}, s3 offen")
a("s_endpgm")
a("L_pwait:")
poll(f"buffer_load_dword v201, v196, {WS}, s38 offen sc1", "v_cmp_gt_u32 vcc, 32, v201", "0xffffffff")
a("s_branch L_pok")
a(f"{Lfb}:")
a(f"""
v_lshrrev_b32 v4, 5, v0
v_mul_u32_u24 v4, 272, v4
v_and_b32 v5, 31, v0
v_lshl_add_u32 v27, v5, 4, v4
v_mov_b32 v4, 0xff800000
v_mov_b32 v5, 0xff800000
s_mov_b32 s64, {WS_KV}
L_fb1:
buffer_load_dwordx4 {Kb(0)}, v3, {WS}, s64 offen offset:1088 sc1
s_waitcnt vmcnt(0)
""")
for e in range(2): a(f"v_mfma_f32_32x32x16_bf16 {vr(32+16*e,16)}, {Kb(0)}, {Q(e)}, 0")
for e in range(2): rowmax(32 + 16*e, 4 + e, False)
a(f"s_add_u32 s64, s64, {REC}\ns_cmp_lt_u32 s64, {WS_KV + 64*REC}\ns_cbranch_scc1 L_fb1")
for e in range(2): negbcast(4 + e, e)
for i in range(32): a(f"v_mov_b32 v{80+i}, 0")
a(f"""
s_mov_b32 s64, {WS_KV}
L_fb2:
buffer_load_dwordx4 {Kb(0)}, v3, {WS}, s64 offen offset:1088 sc1
buffer_load_dwordx4 {Vb(0,0)}, v27, {WS}, s64 offen sc1
buffer_load_dwordx4 {Vb(0,1)}, v27, {WS}, s64 offen offset:544 sc1
s_waitcnt vmcnt(0)
""")
for e in range(2): a(f"v_mfma_f32_32x32x16_bf16 {vr(32+16*e,16)}, {Kb(0)}, {Q(e)}, {vr(C(e),16)}")
for i in range(32): a(f"v_exp_f32 v{32+i}, v{32+i}")
for e in range(2):
    for m in range(2): a(f"v_smfmac_f32_32x32x32_bf16 {vr(O(e),16)}, {Vb(0,m)}, {vr(32+16*e+8*m,8)}, v30")
a(f"s_add_u32 s64, s64, {REC}\ns_cmp_lt_u32 s64, {WS_KV + 64*REC}\ns_cbranch_scc1 L_fb2")
getl()
a(f"s_branch {Lok}\nL_end:\ns_endpgm")

body = a.finish()
head = open("cdna_kernels/" + NAME + ".s.ref").read().split("; Override launch")[0]
src = head + f"""; One persistent launch: 256 workgroups (32 row blocks x 8 column blocks), 4 waves each; generated by gen/gen.py.
; @launch grid=(256,1,1) block=(256,1,1) lds={LDS_BYTES}
.amdgcn_target "amdgcn-amd-amdhsa--gfx950"
.text
.globl {NAME}_kernel
.p2align 8
.type {NAME}_kernel,@function
{NAME}_kernel:
{body}.section .rodata,"a"
.p2align 6
.amdhsa_kernel {NAME}_kernel
  .amdhsa_next_free_vgpr 512
  .amdhsa_next_free_sgpr 102
  .amdhsa_accum_offset 256
  .amdhsa_group_segment_fixed_size 0
  .amdhsa_kernarg_size 120
  .amdhsa_user_sgpr_count 2
  .amdhsa_user_sgpr_kernarg_segment_ptr 1
  .amdhsa_system_sgpr_workgroup_id_x 1
.end_amdhsa_kernel
"""
out = [x for x in sys.argv[1:] if not x.startswith("--")]
open(out[0] if out else "cdna_kernels/" + NAME + ".s", "w").write(src)
if STAMPS: open("stamps.txt", "w").write("\n".join(stamp_names))
print("instructions:", sum(1 for k, _ in a.items if k == "ins"), "hazard nops:", a.nops, file=sys.stderr)
```

```python
import sys, struct, math
from asmlib import Asm

NAME = "adaLN_cond__grouped_kv_mqa__mixer_gmlp__prompt"
STAMPS = "--stamps" in sys.argv or "--cyc" in sys.argv
CYC = "--cyc" in sys.argv
FORCE_SLOW = "--slow" in sys.argv
PADZERO = "--nopadzero" not in sys.argv
XP = [x[5:] for x in sys.argv if x.startswith("--xp=")]
FORCE_FB = "--fallback" in sys.argv

def fbits(x): return "0x%08x" % struct.unpack("<I", struct.pack("<f", x))[0]

F_B, F_HOP, F_P, WS_G2, F_E, WS_C12 = 0, 8192, 24576, 28672, 32768, 163840
WS_MOD, WS_MODT, WS_EPOCH, WS_KV = 0x32000, 0x35000, 0x3C000, 0x40000
WS_ST1, WS_ST2 = 0x70000, 0x90000
WS_X, WS_Z2, WS_STAMP, WS_SIZE = 0x100000, 0x500000, 0xD00000, 0x1200000
WS_WOF, WS_WOUTF, WS_DUMMY, WS_WINF = 0xD80000, 0xE00000, 0xF00000, 0x1000000
REC = 2112
L_G2 = 16384
L_KV = 28672
L_WQ, L_WKV, L_G0, L_SILU, L_PAR = 28672, 94208, 110592, 126976, 128000
L_RING, L_SM = 0, 158720
L_WO = 0
SLOT = 7168
def slotA(i): return 65536 + SLOT * i
def slotB(i): return SLOT * i
def slot_z2(T): return slotA(T) if T < 13 else slotB(T - 13)
def slot_z1(T): return slotB(3 + T) if T < 4 else slotA(T - 4)
L_WOUT, L_RED = 0, 77824
LDS_BYTES = 163840
R0, WS, R1, R2, R3 = "s[4:7]", "s[8:11]", "s[12:15]", "s[56:59]", "s[60:63]"
P_X, P_WQ, P_WK, P_WV, P_WO, P_WIN, P_WSP, P_BSP, P_WOUT, P_C, P_WMOD, P_OUT, P_DBG, P_WS = 16, 18, 20, 22, 24, 28, 30, 32, 34, 36, 38, 40, 42, 44
sRB, sCB, sW, sXCC, sFAST, sIDX, sXCD, sKVW, sGRP = "s46", "s47", "s48", "s49", "s50", "s51", "s52", "s53", "s54"
sEP, sTAG = "s42", "s43"
SPIN = 1 << 17
OOB = 0x7fff0000

a = Asm()
def vr(b, n): return f"v[{b}:{b+n-1}]"
def ar(b, n): return f"a[{b}:{b+n-1}]"

class VM:
    def __init__(s): s.n = 0; s.tags = {}
    def op(s, text, tag=None):
        a(text); s.n += 1
        if tag: s.tags[tag] = s.n
    def tag(s, t): s.tags[t] = s.n
    def wait(s, t):
        k = s.n - s.tags[t]
        if k < 63: a(f"s_waitcnt vmcnt({k})")
    def drain(s): a("s_waitcnt vmcnt(0)")
vm = VM()

def srd(q, ptr, size, off=None):
    b = int(q[2:q.index(":")])
    if off is None:
        a(f"s_mov_b32 s{b}, s{ptr}\ns_mov_b32 s{b+1}, s{ptr+1}\ns_mov_b32 s{b+2}, {size}")
    else:
        a(f"s_add_u32 s{b}, s{ptr}, {off}\ns_addc_u32 s{b+1}, s{ptr+1}, 0\ns_sub_u32 s{b+2}, {size}, {off}")
    a(f"s_mov_b32 s{b+3}, 0x20000")

nstamp = [0]
stamp_names = []
AMP = [x[4:] for x in XP if x.startswith("amp:")]
def stamp(name):
    if AMP and name in ("start", AMP[0]): a(f"s_memrealtime s[78:79]\ns_waitcnt lgkmcnt(0)\ns_mov_b32 s{90 if name == 'start' else 91}, s78")
    if not STAMPS: return
    if "dbg" in XP and name not in ("start", "xin", "barP", "barB", "kv0", "attn", "C", "D", "z2mm", "zpub", "E", "p5mm", "upub", "F", "p6mm", "end"): return
    if "tst" in XP and name in ("xin", "ln1", "h", "kv", "q", "p3mm", "p3ep", "y_iss", "st1", "init", "u_iss", "S", "opub", "ypub", "spub"): return
    i = nstamp[0]; nstamp[0] += 1; stamp_names.append(name)
    if "clk" in XP and i >= 30: return
    assert i < 43
    a("s_memrealtime s[78:79]\ns_waitcnt lgkmcnt(0)" if not CYC else "s_memtime s[78:79]\ns_waitcnt lgkmcnt(0)\ns_lshr_b32 s78, s78, 2")
    if i == 0: a("s_mov_b32 s80, s78")
    elif i & 1: a(f"s_sub_u32 s{81 + i//2}, s78, s80")
    else: a(f"s_sub_u32 s78, s78, s80\ns_pack_ll_b32_b16 s{80 + i//2}, s{80 + i//2}, s78")

def poll(load, cond, mask):
    L, X = a.label("poll"), a.label("pollx")
    a(f"s_mov_b64 exec, {mask}\ns_mov_b32 s3, 0\n{L}:\ns_add_u32 s3, s3, 1\ns_cmp_gt_u32 s3, {SPIN}\ns_cbranch_scc1 {X}")
    a(load); a("s_waitcnt vmcnt(0)"); a(cond)
    a(f"s_cbranch_vccnz {L}\n{X}:\ns_mov_b64 exec, -1")

def both_data(fn):
    if "allsc1" in XP: fn(" sc1")
    else: both(fn)
def both(fn):
    S, E = a.label("slow"), a.label("pub")
    n0 = vm.n
    a(f"s_cmp_eq_u32 {sFAST}, 0\ns_cbranch_scc1 {S}")
    fn(""); n1 = vm.n
    a(f"s_branch {E}\n{S}:"); vm.n = n0
    fn(" sc1"); assert vm.n == n1
    a(f"{E}:")

def hop_signal(phase, tag=None):
    a(f"v_mov_b32 v4, {phase}")
    if tag: vm.wait(tag)
    else: a("s_waitcnt vmcnt(0)")
    both(lambda sc: vm.op(f"buffer_store_dword v4, v254, {WS}, {sGRP} offen{sc}"))

def hop_wait(phase):
    poll(f"buffer_load_dword v4, v255, {WS}, {sGRP} offen sc1", f"v_cmp_gt_u32 vcc, {phase}, v4", "0xff")

def xgroup_sum(v, t):
    a(f"v_mov_b32 v{t}, v{v}\nv_permlane32_swap_b32 v{v}, v{t}\nv_add_f32 v{v}, v{v}, v{t}")
    a(f"v_mov_b32 v{t}, v{v}\nv_permlane16_swap_b32 v{v}, v{t}\nv_add_f32 v{v}, v{v}, v{t}")

def xgroup_sum2(v, t, v2, t2):
    for op in ("v_permlane32_swap_b32", "v_permlane16_swap_b32"):
        a(f"v_mov_b32 v{t}, v{v}\nv_mov_b32 v{t2}, v{v2}\n{op} v{v}, v{t}\n{op} v{v2}, v{t2}\nv_add_f32 v{v}, v{v}, v{t}\nv_add_f32 v{v2}, v{v2}, v{t2}")

def capture(fn):
    n = len(a.items); fn(); out = a.items[n:]; del a.items[n:]
    return out

def pipeline(nsteps, reads, compute, nreads, pre=1):
    for T in range(min(pre, nsteps)): reads(T)
    for T in range(nsteps):
        if T + pre < nsteps: reads(T + pre)
        left = min(pre, nsteps - 1 - T) * nreads
        a(f"s_waitcnt lgkmcnt({min(left, 15)})")
        compute(T)

def fragloop(nsteps, nf, read, mfma, before=None, after=None, nper=1, preissued=False):
    if not preissued:
        for j in range(nf): read(0, j)
    for T in range(nsteps):
        if before: before(T)
        for j in range(nf):
            left = (nf - 1 if T + 1 < nsteps else nf - 1 - j) * nper
            a(f"s_waitcnt lgkmcnt({min(left, 15)})")
            mfma(T, j)
            if T + 1 < nsteps: read(T + 1, j)
            if after: after(T, j)

def dppsum(regs, steps):
    for s in steps:
        for r in regs: a(f"v_add_f32_dpp v{r}, v{r}, v{r} row_ror:{s} row_mask:0xf bank_mask:0xf")
def finish_stats(rows, n):
    for s1, s2, mu, r, sd in rows: a(f"v_mul_f32 v{mu}, {fbits(-1.0/n)}, v{s1}\nv_mul_f32 v{s2}, {fbits(1.0/n)}, v{s2}")
    for s1, s2, mu, r, sd in rows: a(f"v_fma_f32 v{s2}, -v{mu}, v{mu}, v{s2}")
    for s1, s2, mu, r, sd in rows: a(f"v_max_f32 v{s2}, 0, v{s2}")
    for s1, s2, mu, r, sd in rows: a(f"v_add_f32 v{s2}, {fbits(1e-5)}, v{s2}")
    for s1, s2, mu, r, sd in rows: a(f"v_rsq_f32 v{r}, v{s2}")
    for s1, s2, mu, r, sd in rows:
        if sd is not None: a(f"v_mul_f32 v{sd}, v{s2}, v{r}")

a(f"""
s_cmp_ge_u32 s2, 256
s_cbranch_scc1 L_end
s_load_dwordx16 s[16:31], s[0:1], 0
s_load_dwordx8 s[32:39], s[0:1], 64
s_load_dwordx4 s[40:43], s[0:1], 96
s_load_dwordx2 s[44:45], s[0:1], 112
v_lshrrev_b32 v4, 6, v0
v_and_b32 v0, 63, v0
v_readfirstlane_b32 {sW}, v4
v_and_b32 v1, 15, v0
v_lshrrev_b32 v2, 4, v0
v_lshlrev_b32 v3, 4, v0
s_and_b32 {sXCD}, s2, 7
s_lshr_b32 {sIDX}, s2, 3
s_and_b32 {sCB}, {sIDX}, 7
s_lshr_b32 s3, {sIDX}, 3
s_lshl_b32 {sRB}, {sXCD}, 2
s_add_u32 {sRB}, {sRB}, s3
s_lshr_b32 {sKVW}, {sCB}, 1
s_getreg_b32 {sXCC}, hwreg(HW_REG_XCC_ID, 0, 4)
s_and_b32 {sXCC}, {sXCC}, 7
s_lshl_b32 {sGRP}, {sRB}, 2
s_add_u32 {sGRP}, {sGRP}, {sW}
s_lshl_b32 s55, {sGRP}, 14
s_lshl_b32 {sGRP}, {sGRP}, 7
s_add_u32 {sGRP}, {sGRP}, {F_HOP}
""")
a(f"""
s_cmp_eq_u32 {sW}, 3
s_cbranch_scc0 L_nopf
s_getpc_b64 s[64:65]
L_pc:
s_lshl_b32 s3, {sIDX}, 4
v_add_u32 v6, s3, v1
v_lshlrev_b32 v6, 7, v6
v_min_u32 v6, L_end-L_pc-4, v6
v_mov_b32 v7, s65
v_add_co_u32 v6, vcc, s64, v6
v_addc_co_u32 v7, vcc, 0, v7, vcc
s_mov_b64 exec, 0xffff
global_load_dword v24, v[6:7], off
s_mov_b64 exec, -1
L_nopf:
""")
def img32_regs(row, trb):
    a(f"""
v_lshrrev_b32 v4, 1, v0
v_and_b32 v5, 19, v4
v_bfe_u32 v6, v4, 2, 1
v_lshl_or_b32 v5, v6, 3, v5
v_bfe_u32 v6, v4, 3, 1
v_lshl_or_b32 v{row}, v6, 2, v5
v_lshrrev_b32 v4, 2, v1
v_and_b32 v5, 1, v2
v_lshl_add_u32 v4, v5, 2, v4
v_lshrrev_b32 v5, 1, v2
v_lshl_add_u32 v4, v5, 4, v4
v_lshlrev_b32 v4, 5, v4
v_and_b32 v5, 3, v1
v_lshl_add_u32 v{trb}, v5, 3, v4
""")
img32_regs(16, 17)
a(f"""
v_and_b32 v18, 1, v0
v_lshlrev_b32 v18, 4, v18
s_waitcnt lgkmcnt(0)
""")
if "dbg" in XP: a("s_mov_b64 s[96:97], s[0:1]")
stamp("start")
srd(WS, P_WS, hex(WS_SIZE))
a(f"s_load_dword {sEP}, s[{P_WS}:{P_WS+1}], {WS_EPOCH}")

def gemv_chain(lbase, trb, opaddr):
    a(f"v_add_u32 v7, {lbase}, v{trb}")
    def rd(T):
        b = 128 + (T % 4) * 8
        a(f"ds_read_b64_tr_b16 {vr(b,2)}, v7 offset:{T*1024}\nds_read_b64_tr_b16 {vr(b+2,2)}, v7 offset:{T*1024+256}")
        a(f"ds_read_b128 {vr(b+4,4)}, v{opaddr} offset:{T*64}")
    def cp(T):
        b = 128 + (T % 4) * 8
        a(f"v_mfma_f32_16x16x32_bf16 v[32:35], {vr(b,4)}, {vr(b+4,4)}, {'0' if T == 0 else 'v[32:35]'}")
    pipeline(16, rd, cp, 3, pre=3)

def round_bf16(regs):
    for i in range(0, len(regs), 2):
        x, y = regs[i], regs[i+1]
        a(f"v_cvt_pk_bf16_f32 v{y}, v{x}, v{y}\nv_lshlrev_b32 v{x}, 16, v{y}\nv_and_b32 v{y}, 0xffff0000, v{y}")

def silu8(src, dst):
    for i in range(4): a(f"v_lshlrev_b32 v{40+2*i}, 16, v{src+i}\nv_and_b32 v{41+2*i}, 0xffff0000, v{src+i}")
    for i in range(8): a(f"v_mul_f32 v{48+i}, {fbits(-math.log2(math.e))}, v{40+i}")
    for i in range(8): a(f"v_exp_f32 v{48+i}, v{48+i}")
    for i in range(8): a(f"v_add_f32 v{48+i}, 1.0, v{48+i}")
    for i in range(8): a(f"v_rcp_f32 v{48+i}, v{48+i}")
    for i in range(8): a(f"v_mul_f32 v{40+i}, v{40+i}, v{48+i}")
    for i in range(4): a(f"v_cvt_pk_bf16_f32 v{dst+i}, v{40+2*i}, v{41+2*i}")

Lw1, Lw2, Lw3, Lxi, Lxw, Lnz, Lsl, Lx2 = (a.label(x) for x in ("w1", "w2", "w3", "xi", "xw", "noz", "sl", "x2"))
a(f"s_lshl_b32 s64, {sRB}, 16")
srd(R1, P_X, 2048 * 1024, "s64")
srd(R2, P_WMOD, 512 * 6144)
a(f"s_and_b32 s3, {sCB}, 1\ns_cselect_b32 s64, s{P_WV}, s{P_WK}\ns_cselect_b32 s65, s{P_WV+1}, s{P_WK+1}")
srd(R3, 64, 16384)
srd(R0, P_C, 1024)
a(f"""
v_mov_b32 v36, 0
v_mov_b32 v37, 0
v_mov_b32 v38, 0
v_mov_b32 v39, 0
s_and_b32 s69, s2, 15
s_lshl_b32 s69, s69, 6
v_lshlrev_b32 v25, 4, v2
buffer_load_dwordx4 v[8:11], v25, {R0}, s69 offen
s_cmp_eq_u32 {sW}, 0
s_cbranch_scc0 {Lw1}
""")
a(f"""
v_lshrrev_b32 v4, 2, v0
v_and_b32 v5, 3, v0
v_and_b32 v6, 1, v5
v_lshlrev_b32 v6, 7, v6
v_lshrrev_b32 v5, 1, v5
v_mul_u32_u24 v5, 3072, v5
s_movk_i32 s3, 6144
v_mad_u32_u24 v4, v4, s3, v6
v_add_u32 v4, v4, v5
s_mul_i32 s64, {sIDX}, {16*6144}
s_lshl_b32 s3, {sXCD}, 8
s_add_u32 s64, s64, s3
buffer_load_dword v24, v4, {R2}, s64 offen
s_cmp_lt_u32 {sIDX}, 16
s_cbranch_scc0 {Lsl}
s_lshl_b32 s68, {sXCD}, 3
s_add_u32 s68, s68, {sIDX}
s_add_u32 s65, s68, 88
s_cmp_lt_u32 {sIDX}, 8
s_cselect_b32 s68, s68, s65
s_cbranch_scc0 {Lnz}
s_lshl_b32 s3, s68, 7
s_mov_b64 exec, 0xff
buffer_store_dwordx4 v[36:39], v3, {WS}, s3 offen sc1
s_mov_b64 exec, -1
{Lnz}:
""")
a(f"buffer_load_dwordx4 v[32:35], v3, {R0}, 0 offen\ns_lshl_b32 s66, s68, 5\ns_movk_i32 s3, 6144\nv_mad_u32_u24 v6, v16, s3, v18")
for n in range(16):
    a(f"s_mov_b32 m0, {L_G0 + n*1024}\nbuffer_load_dwordx4 v6, {R2}, s66 offen lds")
    if n < 15: a("s_add_u32 s66, s66, 196608")
a("s_waitcnt vmcnt(16)")
if "ms" in XP: stamp("m_c")
silu8(32, 32)
a(f"v_add_u32 v6, {L_SILU}, v3\nds_write_b128 v6, v[32:35]\nv_lshlrev_b32 v5, 4, v2\nv_add_u32 v6, {L_SILU}, v5")
a("s_waitcnt vmcnt(0) lgkmcnt(0)")
if "ms" in XP: stamp("m_dma")
gemv_chain(L_G0, 17, 6)
round_bf16([32, 33, 34, 35])
Lno1 = a.label("no1")
a(f"s_lshr_b32 s65, s68, 5\ns_bitcmp1_b32 0x12, s65\ns_cbranch_scc0 {Lno1}")
for i in range(4): a(f"v_add_f32 v{32+i}, 1.0, v{32+i}")
round_bf16([32, 33, 34, 35])
a(f"""
{Lno1}:
s_lshl_b32 s3, s68, 6
s_add_u32 s3, s3, {WS_MOD}
s_mov_b32 exec_lo, 0x00010001
s_mov_b32 exec_hi, 0x00010001
s_add_u32 s65, {sEP}, 1
s_and_b32 s65, s65, 0xffff
v_or_b32 v36, s65, v32
v_or_b32 v37, s65, v33
v_or_b32 v38, s65, v34
v_or_b32 v39, s65, v35
s_add_u32 s65, s3, {WS_MODT - WS_MOD}
buffer_store_dwordx4 v[36:39], v5, {WS}, s65 offen sc1
buffer_store_dwordx4 v[32:35], v5, {WS}, s3 offen sc1
s_mov_b64 exec, -1
""")
if "ms" in XP: stamp("m_pub")
a(f"""
v_add_u32 v6, s69, v6
ds_read_b128 v[8:11], v6
s_branch {Lxw}
{Lw1}:
s_lshl_b32 s66, {sCB}, 7
""")
srd(R0, P_WQ, 512 * 1024, "s66")
a(f"""
v_lshlrev_b32 v4, 7, v0
s_cmp_eq_u32 {sW}, 2
s_cbranch_scc1 {Lw2}
s_cmp_eq_u32 {sW}, 3
s_cbranch_scc1 {Lxi}
s_lshl_b32 s3, {sCB}, 13
buffer_load_dword v24, v4, {R1}, s3 offen
s_branch {Lxi}
{Lw2}:
s_lshr_b32 s3, {sIDX}, 1
s_lshl_b32 s3, s3, 10
v_and_b32 v4, 0x380, v4
buffer_load_dword v24, v4, {R3}, s3 offen
{Lxi}:
v_lshrrev_b32 v4, 3, v0
v_and_b32 v5, 7, v0
v_xor_b32 v5, v5, v2
v_lshlrev_b32 v5, 4, v5
v_lshl_add_u32 v22, v4, 10, v5
v_xor_b32 v23, 64, v22
v_add_u32 v23, {8192 - 1024}, v23
s_sub_u32 s64, {sW}, 1
s_mul_i32 s64, s64, 11
s_min_u32 s64, s64, 21
s_lshl_b32 s67, s64, 11
s_add_u32 s67, s67, {L_WQ}
""")
for i in range(11):
    a(f"s_lshr_b32 s65, s64, 3\ns_lshl_b32 s65, s65, 14\ns_and_b32 s3, s64, 7\ns_lshl_b32 s3, s3, 7\ns_add_u32 s65, s65, s3\ns_mov_b32 m0, s67\ns_add_u32 s64, s64, 1\ns_add_u32 s67, s67, 2048")
    a(f"buffer_load_dwordx4 v22, {R1}, s65 offen lds\nbuffer_load_dwordx4 v23, {R1}, s65 offen offset:1024 lds")
a(f"v_lshl_add_u32 v21, v16, 5, v18\ns_sub_u32 s64, {sW}, 1\ns_mul_i32 s64, s64, 5120\ns_add_u32 s67, s64, {L_WKV}")
for i in range(6): a(f"s_mov_b32 m0, s67\ns_add_u32 s67, s67, 1024\nbuffer_load_dwordx4 v21, {R3}, s64 offen lds\ns_add_u32 s64, s64, 1024")
a(f"""
s_cmp_eq_u32 {sW}, 3
s_cbranch_scc1 {Lw3}
s_and_b32 s3, {sRB}, 3
s_lshl_b32 s3, s3, 1
s_add_u32 s3, s3, {sW}
s_sub_u32 s3, s3, 1
s_lshl_b32 s3, s3, 16
v_lshlrev_b32 v4, 10, v0
buffer_load_dword v26, v4, {R0}, s3 offen
s_branch {Lx2}
{Lw3}:
s_mul_i32 s3, s2, 768
s_add_u32 s3, s3, {F_HOP}
s_mov_b32 exec_hi, 0xffff
buffer_store_dwordx4 v[36:39], v3, {WS}, s3 offen sc1
s_mov_b64 exec, -1
{Lx2}:
s_waitcnt vmcnt(29)
{Lsl}:
s_waitcnt vmcnt(31)
""")
a("s_cmp_eq_u32 s48, 0\ns_cbranch_scc0 L_cin\ns_waitcnt vmcnt(1)\nL_cin:")
silu8(8, 8)
a(f"""
s_waitcnt vmcnt(1)
{Lxw}:
s_lshl_b32 s67, {sW}, 14
s_add_u32 s67, s67, {L_WQ}
s_barrier
""")
stamp("xin")
a(f"""
v_lshrrev_b32 v4, 1, v1
v_xor_b32 v4, v4, v2
v_lshlrev_b32 v4, 4, v4
v_lshl_add_u32 v4, v1, 7, v4
v_add_u32 v4, s67, v4
v_xor_b32 v5, 64, v4
s_waitcnt lgkmcnt(0)
s_add_u32 {sEP}, {sEP}, 1
s_and_b32 {sTAG}, {sEP}, 0xffff
""")
for T in range(16): a(f"ds_read_b128 {vr(64+4*T,4)}, v{4 + (T & 1)} offset:{(T >> 1)*2048}")
a(f"s_lshl_b32 s66, {sCB}, 7")
srd(R0, P_WQ, 512 * 1024, "s66")
a(f"""
v_lshrrev_b32 v4, 3, v0
v_bfe_u32 v5, v0, 1, 2
v_bfe_u32 v6, v4, 1, 1
v_xor_b32 v5, v5, v6
v_lshlrev_b32 v5, 5, v5
v_lshl_add_u32 v5, v4, 10, v5
v_add_u32 v19, v5, v18
v_xor_b32 v20, 64, v19
""")
a(f"s_lshl_b32 s66, {sW}, 17")
def stage(k):
    for n in range(4): a(f"s_mov_b32 m0, s67\ns_add_u32 s67, s67, 1024\nbuffer_load_dwordx4 v{19 + (n & 1)}, {R0}, s66 offen lds\ns_add_u32 s66, s66, 8192")
for i in range(64):
    if i % 4 == 0: a(f"s_waitcnt lgkmcnt({15 - i // 4})")
    a(f"v_lshlrev_b32 v{128+2*i}, 16, v{64+i}\nv_and_b32 v{129+2*i}, 0xffff0000, v{64+i}")
for k in range(4): a(f"v_pk_add_f32 {vr(32+2*k,2)}, {vr(128+4*k,2)}, {vr(130+4*k,2)}")
for k in range(4): a(f"v_pk_mul_f32 {vr(40+2*k,2)}, {vr(128+2*k,2)}, {vr(128+2*k,2)}")
for i in range(4, 64):
    if i >= 8: a(f"v_pk_add_f32 {vr(32+2*(i%4),2)}, {vr(32+2*(i%4),2)}, {vr(128+2*i,2)}")
    a(f"v_pk_fma_f32 {vr(40+2*(i%4),2)}, {vr(128+2*i,2)}, {vr(128+2*i,2)}, {vr(40+2*(i%4),2)}")
    if i % 16 == 7: stage(i // 16)
for b in (32, 40):
    a(f"v_pk_add_f32 {vr(b,2)}, {vr(b,2)}, {vr(b+2,2)}\nv_pk_add_f32 {vr(b+4,2)}, {vr(b+4,2)}, {vr(b+6,2)}\nv_pk_add_f32 {vr(b,2)}, {vr(b,2)}, {vr(b+4,2)}\nv_add_f32 v{b}, v{b}, v{b+1}")
xgroup_sum2(32, 33, 40, 41)
finish_stats([(32, 40, 34, 36, None)], 512)
a("v_mul_f32 v34, v34, v36")
for i in range(64): a(f"v_pk_fma_f32 {vr(128+2*i,2)}, {vr(128+2*i,2)}, v[36:37], v[34:35] op_sel_hi:[1,0,0]")
Lna = a.label("nkvf")
a(f"s_cmp_eq_u32 {sW}, {sKVW}\ns_cbranch_scc0 {Lna}\nv_add_u32 v7, {L_WKV}, v17")
for T in range(16): a(f"ds_read_b64_tr_b16 {ar(4*T,2)}, v7 offset:{T*1024}\nds_read_b64_tr_b16 {ar(4*T+2,2)}, v7 offset:{T*1024+256}")
a(f"{Lna}:")
stamp("ln1")
def tagcheck(regs):
    out = [f"v_xor_b32 v{r}, {sTAG}, v{r}" for r in regs]
    out.append(f"v_or3_b32 v4, v{regs[0]}, v{regs[1]}, v{regs[2]}")
    for i in range(3, len(regs) - 1, 2): out.append(f"v_or3_b32 v4, v4, v{regs[i]}, v{regs[i+1]}")
    out.append(f"v_or_b32 v4, v4, v{regs[-1]}\nv_and_b32 v4, 0xffff, v4\nv_cmp_ne_u32 vcc, 0, v4")
    return "\n".join(out)
a(f"s_lshl_b32 s64, {sW}, 10\ns_add_u32 s65, s64, {L_PAR}\ns_add_u32 s64, s64, {WS_MODT}\nv_add_u32 v5, s65, v3")
poll(f"buffer_load_dwordx4 v[32:35], v3, {WS}, s64 offen sc1", tagcheck([32, 33, 34, 35]), "-1")
a("ds_write_b128 v5, v[32:35]\ns_waitcnt lgkmcnt(0)\ns_barrier")
stamp("barP")
a(f"s_sub_u32 s69, {sW}, {sKVW}")
LV, Lh, Lnkv, LV2, Lst, Lkve = (a.label(x) for x in ("isV", "hdone", "nokv", "isV2", "kvst", "kve"))
a(f"v_lshlrev_b32 v19, 5, v2\nv_add_u32 v19, {L_PAR}, v19\ns_bitcmp1_b32 {sCB}, 0\ns_cbranch_scc1 {LV}")
def hpass(isV):
    def rd(T):
        b = 32 + (T & 1) * 16
        for k, off in enumerate((2048, 2064, 0, 16)): a(f"ds_read_b128 {vr(b+4*k,4)}, v19 offset:{off + T*128}")
    def kv(T):
        A, B = (vr(64+4*T,4), ar(4*T,4)) if isV else (ar(4*T,4), vr(64+4*T,4))
        a(f"v_mfma_f32_16x16x32_bf16 v[12:15], {A}, {B}, {'0' if T == 0 else 'v[12:15]'}")
    def cp(T):
        b = 32 + (T & 1) * 16
        for k in range(4): a(f"v_pk_fma_f32 {vr(128+8*T+2*k,2)}, {vr(128+8*T+2*k,2)}, {vr(b+2*k,2)}, {vr(b+8+2*k,2)}")
        if T: kv(T - 1)
        for k in range(4): a(f"v_cvt_pk_bf16_f32 v{64+4*T+k}, v{128+8*T+2*k}, v{129+8*T+2*k}")
    pipeline(16, rd, cp, 4)
    kv(15)
hpass(False)
a(f"s_branch {Lh}\n{LV}:")
hpass(True)
a(f"{Lh}:")
if "ms" in XP: stamp("h")
a(f"""
s_cmp_eq_u32 s69, 0
s_cbranch_scc0 {Lnkv}
s_lshl_b32 s64, {sRB}, 1
s_lshr_b32 s3, {sW}, 1
s_add_u32 s64, s64, s3
s_mul_i32 s64, s64, {REC}
s_add_u32 s64, s64, {WS_KV}
s_and_b32 s65, {sW}, 1
v_lshrrev_b32 v20, 5, v0
v_cvt_pk_bf16_f32 v36, v12, v13
v_cvt_pk_bf16_f32 v37, v14, v15
v_mov_b32 v38, v36
v_mov_b32 v39, v37
v_permlane16_swap_b32 v36, v38
v_permlane16_swap_b32 v37, v39
s_bitcmp1_b32 {sCB}, 0
s_cbranch_scc1 {LV2}
v_lshlrev_b32 v20, 9, v20
v_lshl_add_u32 v20, v1, 4, v20
s_lshl_b32 s65, s65, 8
s_add_u32 s64, s64, s65
s_add_u32 s64, s64, 1088
s_mov_b32 exec_lo, 0x0000ffff
s_mov_b32 exec_hi, 0x0000ffff
s_branch {Lst}
{LV2}:
v_mul_u32_u24 v20, 272, v20
v_and_b32 v4, 31, v0
v_lshl_add_u32 v20, v4, 4, v20
s_mul_i32 s65, s65, 544
s_add_u32 s64, s64, s65
s_mov_b32 exec_lo, 0xffff0000
s_mov_b32 exec_hi, 0xffff0000
v_mov_b32 v36, 0x3f803f80
v_mov_b32 v37, 0x3f803f80
v_mov_b32 v38, 0x3f803f80
v_mov_b32 v39, 0x3f803f80
s_mov_b32 exec_lo, 0x0001ffff
s_mov_b32 exec_hi, 0x0001ffff
{Lst}:
buffer_store_dwordx4 v[36:39], v20, {WS}, s64 offen sc1
s_mov_b64 exec, -1
{Lnkv}:
s_lshl_b32 s3, {sXCC}, 2
s_lshl_b32 s3, 1, s3
v_mov_b32 v20, s3
s_lshl_b32 s64, {sRB}, 7
v_mov_b32 v21, {OOB}
v_cmp_eq_u32 vcc, 0, v0
v_cndmask_b32 v21, v21, v0, vcc
s_cmp_eq_u32 s69, 0
s_cselect_b64 vcc, -1, 0
""")
def arrive(T, j):
    if (T, j) != (4, 0): return
    L = a.label("arr")
    a(f"s_cbranch_vccz {L}\ns_waitcnt vmcnt(0)\nbuffer_atomic_add v20, v21, {WS}, s64 offen sc1\n{L}:")
    if "ms" in XP: stamp("arr")
def trbase128(dst, rowexpr_v, fexpr_v, lbase):
    a(f"v_and_b32 v6, 3, v1\nv_lshlrev_b32 v6, 3, v6\nv_lshl_add_u32 v6, v{rowexpr_v}, 7, v6\nv_lshl_add_u32 v6, v{fexpr_v}, 5, v6\nv_add_u32 v{dst}, {lbase}, v6")
    for j in range(1, 4): a(f"v_xor_b32 v{dst+j}, {j*32}, v{dst}")
a("v_lshrrev_b32 v4, 2, v1\nv_bfe_u32 v5, v1, 3, 1\nv_and_b32 v7, 1, v2\nv_lshl_or_b32 v5, v7, 1, v5\nv_lshl_add_u32 v4, v2, 3, v4")
trbase128(24, 4, 5, L_WQ)
fragloop(16, 4,
         lambda T, j: a(f"ds_read_b64_tr_b16 {vr(32+(T&1)*16+4*j,2)}, v{24+j} offset:{T*4096}\nds_read_b64_tr_b16 {vr(34+(T&1)*16+4*j,2)}, v{24+j} offset:{T*4096+512}"),
         lambda T, j: a(f"v_mfma_f32_16x16x32_bf16 {vr(128+4*j,4)}, {vr(32+(T&1)*16+4*j,4)}, {vr(64+4*T,4)}, {'0' if T == 0 else vr(128+4*j,4)}"), nper=2, after=arrive)
for i in range(16): a(f"v_mul_f32 v{128+i}, {fbits(0.25*math.log2(math.e))}, v{128+i}")
for i in range(8): a(f"v_cvt_pk_bf16_f32 v{16+i}, v{128+2*i}, v{129+2*i}")
for e in range(2): a(f"v_permlane16_swap_b32 v{16+4*e}, v{18+4*e}\nv_permlane16_swap_b32 v{17+4*e}, v{19+4*e}")
stamp("q")
a(f"""
v_add_u32 v24, {L_KV + 1088}, v3
v_add_u32 v25, {31*REC}, v24
v_add_u32 v26, {31*REC}, v25
v_lshrrev_b32 v4, 5, v0
v_mul_u32_u24 v4, 272, v4
v_and_b32 v5, 31, v0
v_lshl_add_u32 v4, v5, 4, v4
v_add_u32 v27, {L_KV}, v4
v_mov_b32 v4, 0x40000
v_cmp_lt_u32 vcc, {16 if PADZERO else 99}, v5
v_cndmask_b32 v27, v27, v4, vcc
v_add_u32 v28, {31*REC}, v27
v_add_u32 v29, {31*REC}, v28
v_mov_b32 v30, 0xdddd
v_lshrrev_b32 v7, 3, v0
v_and_b32 v6, 7, v0
v_xor_b32 v5, v6, v2
v_lshlrev_b32 v5, 4, v5
v_lshl_add_u32 v168, v7, 12, v5
v_xor_b32 v169, 64, v168
v_add_u32 v169, {0x8000 - 1024}, v169
v_lshrrev_b32 v4, 1, v1
v_xor_b32 v4, v4, v2
v_lshlrev_b32 v4, 4, v4
v_lshl_add_u32 v4, v1, 7, v4
s_mul_i32 s77, {sW}, 12288
v_add_u32 v170, s77, v4
v_xor_b32 v171, 64, v170
v_lshlrev_b32 v4, 10, v1
v_lshl_add_u32 v172, v2, 3, v4
v_mov_b32 v31, {OOB}
v_lshlrev_b32 v4, 7, v6
v_lshl_add_u32 v173, v7, 12, v4
v_lshlrev_b32 v4, 7, v0
v_cmp_gt_u32 vcc, 56, v0
v_cndmask_b32 v174, v31, v4, vcc
v_cmp_gt_u32 vcc, 14, v0
v_cndmask_b32 v175, v31, v4, vcc
v_cmp_gt_u32 vcc, 32, v0
v_cndmask_b32 v196, v31, v4, vcc
v_cmp_gt_u32 vcc, 33, v0
v_cndmask_b32 v197, v31, v4, vcc
v_cmp_eq_u32 vcc, 0, v0
v_cndmask_b32 v198, v31, v4, vcc
v_mov_b32 v199, 1
""")
for i in range(32): a(f"v_mov_b32 v{80+i}, 0")
Lr2, Lr3, Lre, Lrm, Lrr = (a.label(x) for x in ("r2", "r3", "re", "rm", "rr"))
a(f"""
v_lshlrev_b32 v6, 4, v6
v_lshrrev_b32 v4, 2, v1
v_and_b32 v5, 3, v1
v_lshlrev_b32 v5, 3, v5
s_lshl_b32 s68, {sW}, 12
v_add_u32 v5, s68, v5
s_cmp_eq_u32 {sW}, 2
s_cbranch_scc1 {Lr2}
s_cmp_eq_u32 {sW}, 3
s_cbranch_scc1 {Lr3}
s_and_b32 s64, {sRB}, 15
s_mul_i32 s64, s64, 114688
s_lshr_b32 s3, {sRB}, 4
s_mul_i32 s3, s3, 1792
s_add_u32 s64, s64, s3
s_mul_i32 s3, {sCB}, 224
s_add_u32 s64, s64, s3
s_lshl_b32 s3, {sW}, 7
s_add_u32 s64, s64, s3
""")
srd(R2, P_WIN, 512 * 3584, "s64")
a(f"""
s_movk_i32 s3, 3584
v_mad_u32_u24 v176, v7, s3, v6
s_movk_i32 s20, {8*3584}
s_mov_b32 s21, {16*3584}
s_mov_b32 s22, {24*3584}
v_lshl_add_u32 v4, v2, 2, v4
v_lshl_add_u32 v177, v4, 7, v5
v_add_u32 v178, 2048, v177
s_lshl_b32 s36, {sCB}, 5
s_add_u32 s36, s36, {sRB}
s_mul_i32 s36, s36, {SLOT}
s_lshl_b32 s3, {sW}, 12
s_add_u32 s36, s36, s3
s_add_u32 s36, s36, {WS_WINF}
s_mov_b32 s24, s36
s_cmp_eq_u32 {sW}, 0
s_cselect_b32 s37, s36, {WS_SIZE}
s_branch {Lre}
{Lr2}:
s_min_u32 s67, {sRB}, 27
s_mul_i32 s64, s67, 37
s_lshr_b32 s64, s64, 8
s_mul_i32 s3, s64, 7
s_sub_u32 s65, s67, s3
s_mul_i32 s64, s64, 224
s_lshl_b32 s3, s65, 5
s_add_u32 s66, s3, 16
s_cmp_lt_u32 s65, 3
s_cselect_b32 s3, s3, s66
s_cmp_eq_u32 s65, 6
s_cselect_b32 s3, 96, s3
s_cselect_b32 s21, 112, 16
s_lshl_b32 s21, s21, 10
s_add_u32 s22, s21, 8192
s_movk_i32 s20, 8192
s_add_u32 s64, s64, s3
s_lshl_b32 s64, s64, 10
s_lshl_b32 s3, {sCB}, 7
s_add_u32 s64, s64, s3
""")
srd(R2, P_WOUT, 896 * 1024, "s64")
a(f"""
v_lshl_add_u32 v176, v7, 10, v6
s_mul_i32 s36, {sCB}, 28
s_add_u32 s36, s36, s67
s_lshl_b32 s36, s36, 12
s_add_u32 s36, s36, {WS_WOUTF}
s_cmp_lt_u32 {sRB}, 28
s_cselect_b32 s36, s36, {WS_SIZE}
s_mov_b32 s37, s36
s_mov_b32 s24, s36
s_cmp_eq_u32 s65, 6
s_cbranch_scc1 {Lrm}
v_lshl_add_u32 v4, v2, 2, v4
v_lshl_add_u32 v177, v4, 7, v5
v_add_u32 v178, 2048, v177
s_branch {Lre}
{Lrm}:
v_lshl_add_u32 v4, v2, 3, v4
v_lshl_add_u32 v177, v4, 7, v5
v_add_u32 v178, 512, v177
s_branch {Lre}
{Lr3}:
s_lshr_b32 s67, {sRB}, 1
s_lshl_b32 s64, s67, 15
s_lshl_b32 s3, {sCB}, 7
s_add_u32 s64, s64, s3
""")
srd(R2, P_WO, 512 * 1024, "s64")
a(f"""
v_lshl_add_u32 v176, v7, 10, v6
s_movk_i32 s20, 8192
s_movk_i32 s21, 16384
s_movk_i32 s22, 24576
v_and_b32 v6, 1, v2
v_lshl_add_u32 v4, v6, 4, v4
v_lshrrev_b32 v6, 1, v2
v_lshl_add_u32 v4, v6, 2, v4
v_lshl_add_u32 v177, v4, 7, v5
v_add_u32 v178, 1024, v177
s_lshl_b32 s36, {sCB}, 4
s_add_u32 s36, s36, s67
s_lshl_b32 s36, s36, 12
s_add_u32 s36, s36, {WS_WOF}
s_bitcmp1_b32 {sRB}, 0
s_cselect_b32 s37, s36, {WS_SIZE}
s_cselect_b32 s36, {WS_SIZE}, s36
s_mov_b32 s24, s37
{Lre}:
""")
a(f"""
s_and_b32 s64, s2, 15
s_mul_i32 s64, s64, {32*6144}
s_lshr_b32 s65, s2, 4
s_lshl_b32 s3, s65, 7
s_add_u32 s64, s64, s3
s_lshl_b32 s3, {sW}, 5
s_add_u32 s64, s64, s3
s_cmp_lt_u32 s65, 8
s_cselect_b32 s3, 0, 2048
s_add_u32 s64, s64, s3
s_add_u32 s64, s64, 2048
""")
srd(R3, P_WMOD, 512 * 6144, "s64")
img32_regs(212, 213)
a(f"""
s_lshl_b32 s34, s65, 8
s_lshl_b32 s3, {sW}, 6
s_add_u32 s34, s34, s3
s_add_u32 s34, s34, {WS_G2}
v_and_b32 v4, 1, v0
v_lshlrev_b32 v4, 4, v4
s_movk_i32 s3, 6144
v_mad_u32_u24 v212, v212, s3, v4
s_lshl_b32 s35, {sW}, 10
s_add_u32 s35, s35, {L_G2}
v_add_u32 v213, s35, v213
v_lshlrev_b32 v4, 2, v0
v_cmp_gt_u32 vcc, 16, v0
v_cndmask_b32 v214, v31, v4, vcc
v_cmp_gt_u32 vcc, 48, v0
v_cndmask_b32 v215, v31, v4, vcc
s_cmp_eq_u32 {sW}, 0
s_cselect_b64 vcc, -1, 0
v_cndmask_b32 v215, v215, v4, vcc
s_lshr_b32 s3, {sRB}, 4
s_mul_i32 s3, s3, 3584
s_mul_i32 s28, {sCB}, 448
s_add_u32 s28, s28, s3
s_lshl_b32 s3, {sW}, 8
s_add_u32 s28, s28, s3
s_add_u32 s28, s28, {WS_C12}
s_cmp_lt_u32 {sW}, 2
s_cselect_b32 s28, s28, {WS_SIZE}
s_add_u32 s29, s28, 7168
v_and_b32 v4, 1, v0
v_lshlrev_b32 v4, 11, v4
v_sub_u32 v4, 2048, v4
v_lshl_add_u32 v4, v2, 4, v4
v_and_b32 v5, 2, v0
v_cmp_eq_u32 vcc, 0, v5
v_cndmask_b32 v216, v31, v4, vcc
s_and_b32 s25, {sRB}, 15
s_lshl_b32 s25, s25, 7
s_add_u32 s25, s25, {WS_MOD + 3*2048}
""")
a(f"s_lshl_b32 s64, {sRB}, 18\ns_lshl_b32 s3, {sW}, 10\ns_add_u32 s64, s64, s3")
srd(R0, P_WSP, 2048 * 4096, "s64")
a(f"s_lshl_b32 s64, {sCB}, 7\ns_add_u32 s64, s64, s55")
srd(R1, P_X, 2048 * 1024, "s64")
for s_ in range(4): a(f"s_add_u32 s3, {sW}, {s_}\ns_and_b32 s3, s3, 3\ns_lshl_b32 s{70+s_}, s3, 16")
a(f"""
s_and_b32 s23, {sRB}, 3
s_lshl_b32 s19, {sCB}, 15
s_lshl_b32 s39, {sCB}, 9
s_mov_b32 s38, {F_P}
s_add_u32 s39, s39, s38
s_lshl_b32 s3, {sW}, 7
s_add_u32 s39, s39, s3
s_lshl_b32 s3, s23, 2
s_add_u32 s3, s3, {sW}
s_mul_i32 s26, s3, {SLOT}
s_mul_i32 s27, s3, {SLOT // 4}
s_mul_i32 s3, {sCB}, {32*SLOT}
s_add_u32 s27, s27, s3
s_add_u32 s27, s27, {WS_WINF + 28*SLOT}
s_add_u32 s0, s26, s3
s_add_u32 s0, s0, {WS_WINF}
s_mul_i32 s3, {sCB}, {28*4096}
s_add_u32 s26, s26, s3
s_add_u32 s26, s26, {WS_WOUTF}
s_lshl_b32 s69, {sCB}, 16
s_add_u32 s69, s69, {WS_WOF}
s_lshl_b32 s64, {sW}, 11
s_add_u32 s65, s64, {L_KV}
s_add_u32 s64, s64, {WS_KV}
s_mul_i32 s66, {sIDX}, {33*128}
s_add_u32 s66, s66, {WS_KV}
s_lshl_b32 s67, {sRB}, 7
s_add_u32 s67, s67, {F_B}
""")
if "ms" in XP: stamp("setup")
a(f"""
s_lshl_b32 s12x, s55, 1
s_lshl_b32 s3, {sCB}, 11
s_add_u32 s16, s12x, s3
s_add_u32 s16, s16, {WS_X}
s_add_u32 s17, s16, 16384
v_lshlrev_b32 v4, 7, v1
v_lshl_add_u32 v4, v2, 14, v4
v_add_u32 v202, s16, v4
s_lshr_b32 s74, s55, 4
s_lshl_b32 s3, {sCB}, 7
s_add_u32 s74, s74, s3
s_add_u32 s74, s74, {WS_ST1}
v_and_b32 v5, 1, v0
v_mul_u32_u24 v5, {WS_ST2 - WS_ST1}, v5
v_add_u32 v5, s74, v5
v_cmp_lt_u32 vcc, 31, v0
v_cndmask_b32 v202, v202, v5, vcc
v_cmp_gt_u32 vcc, 2, v0
v_cndmask_b32 v217, v31, v5, vcc
v_lshlrev_b32 v218, 4, v2
s_lshl_b32 s3, {sCB}, 8
s_add_u32 s18, s3, {WS_G2}
s_add_u32 s2x, s3, {WS_MOD + 4*2048}
""".replace("s12x", "s75").replace("s2x", "s30"))
Lnb = a.label("noB")
a(f"s_cmp_eq_u32 {sW}, {sKVW}\ns_cbranch_scc0 {Lnb}\nv_lshlrev_b32 v5, 7, v0\ns_mov_b32 s1, {F_B}")
poll(f"buffer_load_dword v4, v5, {WS}, s1 offen sc1",
     "v_lshrrev_b32 v6, 4, v4\nv_and_b32 v6, 0x0f0f0f0f, v6\nv_and_b32 v4, 0x0f0f0f0f, v4\nv_add_u32 v4, v4, v6\nv_sad_u8 v4, v4, 0, 0\nv_cmp_gt_u32 vcc, 8, v4",
     "0xffffffff")
a(f"buffer_load_dword v200, v197, {WS}, s66 offen sc1\ns_barrier\ns_branch L_Bdone\n{Lnb}:\ns_waitcnt vmcnt(0) lgkmcnt(0)\ns_barrier\nL_Bdone:")
stamp("barB")
Lne = a.label("noep")
a(f"s_or_b32 s3, s2, {sW}\ns_cbranch_scc1 {Lne}\nv_mov_b32 v4, {sEP}\ns_mov_b32 s3, {WS_EPOCH}\nbuffer_store_dword v4, v198, {WS}, s3 offen sc1\n{Lne}:")
vm.n = 0
def kv_group(i):
    if i < 16:
        return (["s_mov_b32 m0, s65"], [f"buffer_load_dwordx4 v3, {WS}, s64 offen sc1 lds", f"buffer_load_dwordx4 v3, {WS}, s64 offen offset:1024 sc1 lds"],
                f"kvg{i}", ["s_add_u32 s64, s64, 8192", "s_add_u32 s65, s65, 8192"])
    return ([f"s_lshl_b32 s3, {sW}, 10", "s_sub_u32 s64, s64, s3", "s_sub_u32 m0, s65, s3"], [f"buffer_load_dwordx4 v3, {WS}, s64 offen sc1 lds"], "kvg16", [])
def emit_item(x):
    pre, ins, tag, post = x
    for p in pre: a(p)
    for q_ in ins: vm.op(q_, tag)
    for p in post: a(p)
for i in range(2): emit_item(kv_group(i))

def win_items(half, grp, slot0, tag):
    ld = lambda i: f"buffer_load_dwordx4 v3, {WS}, s74 offen offset:{(i & 3)*1024} sc1 lds"
    first = [f"s_lshl_b32 s74, {sCB}, 5", f"s_add_u32 s74, s74, {sW}", f"s_mul_i32 s74, s74, {SLOT}", f"s_add_u32 s74, s74, {WS_WINF + (half*16 + grp*4)*SLOT}"] + slot0
    return [(first + ["s_mov_b32 m0, s75"], [ld(0), ld(1)], tag, []), (["s_mov_b32 m0, s75"], [ld(2), ld(3)], tag, ["s_add_u32 s74, s74, 4096", "s_add_u32 s75, s75, 4096"]),
            (["s_mov_b32 m0, s75"], [ld(4), ld(5)], tag, []), (["s_mov_b32 m0, s75"], [ld(6)], tag, [])]
def lin_slot(base): return [f"s_mul_i32 s75, {sW}, {SLOT}", f"s_add_u32 s75, s75, {base}"]

def kaddr(t): return f"v{24 + t//31} offset:{(t % 31)*REC}"
def vaddr(t, m): return f"v{27 + t//31} offset:{(t % 31)*REC + m*544}"
Kb = lambda t: vr(144 + 4*(t & 1), 4)
Vb = lambda t, m: vr(152 + 8*(t & 1) + 4*m, 4)
Sb = lambda u: 32 + 16*(u % 3)
Q = lambda e: vr(16 + 4*e, 4)
O = lambda e: 80 + 16*e
C = lambda e: 112 + 16*e
vm.wait("kvg0"); a("s_barrier")
stamp("kv0")
if "clk" in XP: a("s_memtime s[96:97]\ns_memrealtime s[98:99]\ns_waitcnt lgkmcnt(0)")
a(f"ds_read_b128 {Kb(0)}, {kaddr(0)}\nds_read_b128 {Kb(1)}, {kaddr(1)}\ns_waitcnt lgkmcnt(1)")
for e in range(2): a(f"v_mfma_f32_32x32x16_bf16 {vr(32+16*e,16)}, {Kb(0)}, {Q(e)}, 0")
def rowmax(S, dst, first):
    for i in range(0, 16, 2):
        if first and i == 0: a(f"v_max_f32 v{dst}, v{S}, v{S+1}")
        else: a(f"v_max3_f32 v{dst}, v{S+i}, v{S+i+1}, v{dst}")
def negbcast(src, e):
    a(f"v_mov_b32 v6, v{src}\nv_permlane32_swap_b32 v{src}, v6\nv_max_f32 v{src}, v{src}, v6\nv_sub_f32 v{C(e)}, 0, v{src}")
    for i in range(1, 16): a(f"v_mov_b32 v{C(e)+i}, v{C(e)}")
for e in range(2): rowmax(32 + 16*e, 4 + e, True)
for e in range(2): negbcast(4 + e, e)
a(f"v_mfma_f32_32x32x16_bf16 {vr(Sb(0),16)}, {Kb(0)}, {Q(0)}, {vr(C(0),16)}")

plan = {}
TP, TR = 19, 28
def put(t, slot, x): plan.setdefault((t, slot), []).append(x)
PREV = {"e1x": ("e0", 0), "o0": ("e1", 0), "e1": ("e0", 0), "eq": ("o1", -1), "oq": ("e1", 0), "e0": ("o1", -1)}
assert True
def vitem(t, slot, x):
    pre, ins, tag, post = x
    ps, dt = PREV[slot]
    pre = [p + " " for p in pre]
    m0 = [p for p in pre if " m0," in p]; rest = [p for p in pre if " m0," not in p]
    if t + dt < 0 or len(pre) > 2:
        pp, dd = PREV[ps] if ps in PREV else ("o0", 0)
        if t + dt + dd < 0: put(t, slot, ("salu", pre))
        else: put(t + dt + dd, pp + "a", ("salu", rest)); put(t + dt, ps + "a", ("salu", m0))
    else: put(t + dt, ps + "a", ("salu", pre))
    put(t, slot, ("vm", ins, tag, m0[0] if m0 else None))
    if post: put(t, slot, ("salu", post))
for i in range(2, 8): vitem((i - 2) // 2, ("e1", "o0")[i & 1], kv_group(i))
for i in range(8, 16): vitem(21 + (i - 8) // 2, ("e1", "o0")[i & 1], kv_group(i))
vitem(25, "e1", kv_group(16))
for n, so in enumerate(("0", "s20", "s21", "s22")):
    vitem(3 + (n >> 1), ("e1", "o0")[n & 1], ([f"s_add_u32 m0, s68, {n*1024}"], [f"buffer_load_dwordx4 v176, {R2}, {so} offen lds"], "praw", []))
put(1, "eq", ("vm", [f"buffer_load_dword v253, v198, {WS}, s67 offen sc1"], None))
for n in range(2):
    put(1 + n, "oq", ("vm", [f"buffer_store_dwordx4 v[16:19], v3, {WS}, s{16+n} offen offset:{i*1024} sc1" for i in range(2)], None))
put(0, "eq", ("vm", [f"buffer_store_dword v16, v217, {WS}, 0 offen sc1"], None))
put(46, "e1", ("vm", [f"buffer_load_dword v200, v202, {WS}, 0 offen"], None))
for j in range(8): put(49 + j, "oq", ("vm", [f"buffer_load_dwordx4 {vr(220+4*j,4)}, v218, {WS}, s{18 if j < 4 else 30} offen offset:{(j & 3)*64} sc1"], None))
put(5, "o0", ("vm", [f"buffer_load_dword v200, v173, {R0}, s19 offen"], None))
put(3, "eq", ("vm", [f"buffer_load_dword v200, v198, {WS}, {sGRP} offen sc1"], None))
vitem(5, "e1x", (["s_mov_b32 m0, s35"], [f"buffer_load_dwordx4 v212, {R3}, 0 offen lds"], "praw", []))
put(2, "eq", ("vm", [f"buffer_load_dwordx4 v[204:207], v216, {WS}, s25 offen sc1"], None))
put(0, "oq", ("vm", [f"buffer_load_dwordx4 v[208:211], v216, {WS}, s25 offen offset:64 sc1"], None))
put(TP - 1, "o1b", ("wait", "praw"))
put(TP - 1, "o1x", ("ds", ["ds_read_b64_tr_b16 v[220:221], v213", "ds_read_b64_tr_b16 v[222:223], v213 offset:256"]))
put(TP, "e0", ("salu", [f"v_cvt_pk_bf16_f32 v{204+i}, v{204+2*i}, v{205+2*i}" for i in range(4)]))
put(TP, "o0", ("salu", ["v_mfma_f32_16x16x32_bf16 v[224:227], v[8:11], v[220:223], 0"]))
put(TP + 2, "e0", ("salu", [f"v_mfma_f32_16x16x32_bf16 {vr(228+4*j,4)}, v[204:207], {vr(180+4*j,4)}, 0" for j in range(4)]))
put(TP + 3, "e0", ("salu", ["s_mov_b32 exec_lo, 0xffff0000", "s_mov_b32 exec_hi, 0", "v_mov_b32 v228, v232", "v_mov_b32 v229, v233",
                            "s_mov_b32 exec_lo, 0", "s_mov_b32 exec_hi, 0x0000ffff", "v_mov_b32 v228, v236", "v_mov_b32 v229, v237",
                            "s_mov_b32 exec_hi, 0xffff0000", "v_mov_b32 v228, v240", "v_mov_b32 v229, v241", "s_mov_b64 exec, -1"]))
put(25, "o0", ("vm", [f"buffer_atomic_add_f32 v228, v215, {WS}, s28 offen", f"buffer_atomic_add_f32 v229, v215, {WS}, s29 offen"], None))
put(25, "oq", ("vm", [f"buffer_atomic_add_f32 v224, v214, {WS}, s34 offen"], None))
for j in range(4):
    put(TP + (j >> 1), ("eq", "oq")[j & 1], ("ds", [f"ds_read_b64_tr_b16 {vr(180+4*j,2)}, v177 offset:{j*32}", f"ds_read_b64_tr_b16 {vr(182+4*j,2)}, v178 offset:{j*32}"]))
put(26, "e1", ("vm", [f"buffer_store_dwordx4 {vr(180+4*j,4)}, v3, {WS}, s36 offen offset:{j*1024} sc1" for j in (0, 1)], None))
put(26, "o0", ("vm", [f"buffer_store_dwordx4 {vr(188,4)}, v3, {WS}, s24 offen offset:2048 sc1", f"buffer_store_dwordx4 {vr(192,4)}, v3, {WS}, s37 offen offset:3072 sc1"], "pst"))
put(TR + 2, "oq", ("vm", [f"buffer_atomic_add v199, v198, {WS}, s39 offen sc1"], None))
put(40, "oq", ("vm", [f"buffer_load_dword v201, v196, {WS}, s38 offen sc1"], "pchk"))
for k in range(36):
    t, hf = TR + (k >> 1), k & 1
    if k < 32:
        T2, s_ = k >> 2, k & 3
        if s_ == 0: pass
        vitem(t, ("e1", "o0")[hf], ([f"s_add_u32 s75, s{70+s_}, {T2*128}", f"s_add_u32 m0, s77, {(k % 6)*2048}"],
                                    [f"buffer_load_dwordx4 v168, {R0}, s75 offen lds", f"buffer_load_dwordx4 v169, {R0}, s75 offen offset:1024 lds"], f"ring{k}", []))
    if k >= 4:
        T2, s_ = (k - 4) >> 2, (k - 4) & 3
        if hf == 0: put(t - 1, "o1b", ("wait", f"ring{k-3}"))
        for e_ in range(2): put(t, (("eq", "e0"), ("oq", "o1x"))[hf][e_], ("ds", [f"ds_read_b128 {ar(((2*T2+e_)*4+s_)*4,4)}, v{170+e_} offset:{((k-4) % 6)*2048}"]))
for grp, t0 in ((0, 44), (1, 56), (2, 60)):
    for n, x in enumerate(win_items(1, grp, lin_slot(slotA(4*grp)), f"z2g{grp}")): vitem(t0 + n, "o0", x)
for n in range(8):
    pre = [f"s_lshl_b32 s76, {sW}, 12", "s_add_u32 s74, s76, s69"] if n == 0 else []
    post = ["s_add_u32 s74, s74, 16384", "s_add_u32 s76, s76, 16384"] if n & 1 else []
    vitem(48 + n, "o0", (pre + ["s_mov_b32 m0, s76"], [f"buffer_load_dwordx4 v3, {WS}, s74 offen offset:{(2*(n & 1) + i)*1024} sc1 lds" for i in range(2)], "wo", post))
for n in range(2): put(58 + n, "eq", ("vm", [f"buffer_load_dwordx2 {vr(8+2*j,2)}, v172, {R1}, 0 offen offset:{j*32}" for j in (2*n, 2*n + 1)], None))
if "noextra" in XP: raise SystemExit("noextra unsupported")
syncs = {3: "kvg1", 7: "kvg7", 29: "kvg16", 35: None, 48: None, 60: "wo"}
last_m0 = [None]
def slot(t, k):
    for x in plan.pop((t, k), []):
        if x[0] == "salu":
            for p in x[1]:
                a(p)
                if " m0," in p: last_m0[0] = p
        elif x[0] == "vm":
            if len(x) > 3 and x[3] is not None and x[3] is not last_m0[0]:
                a(x[3]); last_m0[0] = x[3]
            for q_ in x[1]: vm.op(q_, x[2])
        elif x[0] == "ds":
            for q_ in x[1]: a(q_)
        else: vm.wait(x[1])
for u in range(128):
    t, e = u >> 1, u & 1
    S = Sb(u)
    ex = [f"v_exp_f32 v{S+i}, v{S+i}" for i in range(16)]
    pf = "eo"[e]
    if u + 1 < 128:
        t1, e1 = (u + 1) >> 1, (u + 1) & 1
        a(f"v_mfma_f32_32x32x16_bf16 {vr(Sb(u+1),16)}, {Kb(t1)}, {Q(e1)}, {vr(C(e1),16)}")
    a("s_waitcnt lgkmcnt(0)")
    if e == 1 and t + 2 in syncs:
        if syncs[t + 2]: vm.wait(syncs[t + 2])
        a("s_barrier")
    if "tst" in XP and e == 0 and t in (2, 4, 8, 11, 14, 17, 20, 23, 26, 28, 30, 34, 38, 42, 46, 50, 54, 58, 61): stamp(f"t{t}")
    if u == 86:
        vm.wait("pchk")
        a("v_cmp_gt_u32 vcc, 32, v201\ns_nop 1\ns_cmp_lg_u32 vcc_lo, 0\ns_cbranch_scc1 L_pwait\nL_pok:")
    slot(t, pf + "q")
    for x in ex[0:3]: a(x)
    Sp, tp, ep = Sb(u - 1), (u - 1) >> 1, (u - 1) & 1
    if u > 0: a(f"v_smfmac_f32_32x32x32_bf16 {vr(O(ep),16)}, {Vb(tp,0)}, {vr(Sp,8)}, v30")
    slot(t, pf + "0b")
    if e == 0:
        slot(t, "e0a"); a(f"ds_read_b128 {Vb(t,0)}, {vaddr(t,0)}"); slot(t, "e0")
    else:
        slot(t, "o0"); slot(t, "o0a")
    for x in ex[3:7]: a(x)
    if u > 0: a(f"v_smfmac_f32_32x32x32_bf16 {vr(O(ep),16)}, {Vb(tp,1)}, {vr(Sp+8,8)}, v30")
    slot(t, pf + "1b")
    if e == 0:
        slot(t, "e1"); slot(t, "e1x"); slot(t, "e1a"); a(f"ds_read_b128 {Vb(t,1)}, {vaddr(t,1)}")
    else:
        slot(t, "o1a")
        if t + 2 < 64: a(f"ds_read_b128 {Kb(t+2)}, {kaddr(t+2)}")
        slot(t, "o1x")
    for x in ex[7:16]: a(x)
assert not plan, plan.keys()
for m in range(2): a(f"v_smfmac_f32_32x32x32_bf16 {vr(O(1),16)}, {Vb(63,m)}, {vr(Sb(127)+8*m,8)}, v30")
if "clk" in XP: a("s_memtime s[100:101]\ns_memrealtime s[78:79]\ns_waitcnt lgkmcnt(0)\ns_sub_u32 s100, s100, s96\ns_sub_u32 s101, s78, s98")
stamp("attn")
Lfb, Lok = a.label("fb"), a.label("ok")
def getl():
    for e in range(2): a(f"v_mov_b32 v{4+2*e}, v{O(e)+8}\nv_mov_b32 v{5+2*e}, v{O(e)+8}")
    for e in range(2): a(f"v_permlane32_swap_b32 v{4+2*e}, v{5+2*e}")
a(f"""
s_lshl_b32 s3, {sXCC}, 2
s_lshl_b32 s3, 8, s3
v_readfirstlane_b32 s64, v253
s_lshl_b32 s65, {sCB}, 2
v_add_u32 v254, s65, v198
v_lshlrev_b32 v255, 2, v0
s_cmp_eq_u32 s64, s3
s_cselect_b32 {sFAST}, {0 if FORCE_SLOW else 1}, 0
v_mov_b32 v32, {fbits(2.0**40 if not FORCE_FB else -1.0)}
""")
if "probe" in XP:
    a(f"s_cmp_eq_u32 {sFAST}, 0\ns_cbranch_scc0 L_pr\ns_mov_b32 s3, 12\nL_pr0:\ns_sleep 127\ns_sub_u32 s3, s3, 1\ns_cmp_lg_u32 s3, 0\ns_cbranch_scc1 L_pr0\nL_pr:")
getl()
a(f"v_add_f32 v5, v4, v6\nv_cmp_nlt_f32 vcc, v5, v32\ns_cbranch_vccnz {Lfb}\n{Lok}:")
for e in range(2): a(f"v_rcp_f32 v{4+2*e}, v{4+2*e}")
for e in range(2):
    for i in range(4): a(f"v_pk_mul_f32 {vr(O(e)+2*i,2)}, {vr(O(e)+2*i,2)}, {vr(4+2*e,2)} op_sel_hi:[1,0]")
for e in range(2):
    for i in range(4): a(f"v_cvt_pk_bf16_f32 v{32+4*e+i}, v{O(e)+2*i}, v{O(e)+2*i+1}")
both_data(lambda sc: [vm.op(f"buffer_store_dwordx4 {vr(32+4*e,4)}, v3, {WS}, s16 offen offset:{e*1024}{sc}") for e in range(2)])
rd3 = lambda T, j: a(f"ds_read_b128 {vr(144+(T&1)*16+4*j,4)}, v3 offset:{L_WO + T*4096 + j*1024}")
for j in range(4): rd3(0, j)
hop_signal(1)
stamp("opub")
round_bf16(list(range(220, 236)))
for i in range(8): a(f"v_lshlrev_b32 v{32+2*i}, 16, v{8+i}\nv_and_b32 v{33+2*i}, 0xffff0000, v{8+i}")
a(f"""
v_mov_b32 v31, v218
s_lshl_b32 s64, s55, 1
s_add_u32 s64, s64, {WS_X}
s_lshr_b32 s68, s55, 4
s_lshl_b32 s3, {sCB}, 7
s_add_u32 s69, s68, s3
s_add_u32 s67, s69, {WS_ST1}
v_lshlrev_b32 v6, 3, v1
""")
hop_wait(1)
stamp("C")
def frag_load(T, tag):
    vm.op(f"buffer_load_dwordx4 {vr(64+4*T,4)}, v3, {WS}, s64 offen offset:{(T & 3)*1024} sc1", f"{tag}{T}")
    if T & 3 == 3: a("s_add_u32 s64, s64, 4096")
AH = 8
for T in range(AH): frag_load(T, "o")
fragloop(16, 4, rd3,
         lambda T, j: a(f"v_mfma_f32_16x16x32_bf16 {vr(128+4*j,4)}, {vr(144+(T&1)*16+4*j,4)}, {vr(64+4*T,4)}, {'0' if T == 0 else vr(128+4*j,4)}"),
         before=lambda T: vm.wait(f"o{T}"), after=lambda T, j: frag_load(T + AH, "o") if j == 0 and T + AH < 16 else None, preissued=True)
stamp("p3mm")
for i in range(8): a(f"v_pk_fma_f32 {vr(32+2*i,2)}, {vr(128+2*i,2)}, {vr(220+2*i,2)}, {vr(32+2*i,2)}")
for i in range(8): a(f"v_cvt_pk_bf16_f32 v{8+i}, v{32+2*i}, v{33+2*i}")
for i in range(8): a(f"v_lshlrev_b32 v{32+2*i}, 16, v{8+i}\nv_and_b32 v{33+2*i}, 0xffff0000, v{8+i}")
for i in range(8): a(f"v_pk_mul_f32 {vr(236+2*i,2)}, {vr(236+2*i,2)}, {vr(32+2*i,2)}")
for i in range(8): a(f"v_cvt_pk_bf16_f32 v{80+i}, v{236+2*i}, v{237+2*i}")
both_data(lambda sc: [vm.op(f"buffer_store_dwordx4 {vr(80+4*p,4)}, v3, {WS}, s17 offen offset:{p*1024}{sc}") for p in range(2)])
a("v_pk_mul_f32 v[88:89], v[32:33], v[32:33]\nv_pk_add_f32 v[90:91], v[32:33], v[34:35]\nv_pk_mul_f32 v[94:95], v[34:35], v[34:35]\nv_pk_add_f32 v[96:97], v[36:37], v[38:39]")
for i in range(2, 8): a(f"v_pk_fma_f32 {vr(88 + 6*(i & 1),2)}, {vr(32+2*i,2)}, {vr(32+2*i,2)}, {vr(88 + 6*(i & 1),2)}")
for i in range(4, 8): a(f"v_pk_add_f32 {vr(90 + 6*(i & 1),2)}, {vr(90 + 6*(i & 1),2)}, {vr(32+2*i,2)}")
a("v_pk_add_f32 v[88:89], v[88:89], v[94:95]\nv_pk_add_f32 v[90:91], v[90:91], v[96:97]\nv_add_f32 v93, v88, v89\nv_add_f32 v92, v90, v91")
xgroup_sum2(92, 94, 93, 95)
a("s_mov_b64 exec, 0xffff")
both_data(lambda sc: vm.op(f"buffer_store_dwordx2 v[92:93], v6, {WS}, s67 offen{sc}"))
a(f"""
s_mov_b64 exec, -1
v_add_u32 v25, 0xe000, v3
v_add_u32 v26, 0xe000, v25
v_and_b32 v4, 7, v1
v_lshlrev_b32 v4, 7, v4
v_lshl_add_u32 v30, v2, 5, v4
v_lshlrev_b32 v4, 8, v2
v_lshl_add_u32 v27, v1, 3, v4
""")
stamp("p3ep")
hop_signal(2)
stamp("ypub")
WB = (32, 204)
def rdl(dst, addr):
    w_, off = divmod(addr, 0xe000)
    a(f"ds_read_b128 {vr(dst,4)}, v{(3, 25, 26)[w_]} offset:{off}")
a(f"""
s_barrier
s_and_b32 s3, {sW}, 1
s_mul_i32 s66, s3, 3584
s_lshl_b32 s3, s3, 10
s_add_u32 m0, s3, {L_SM}
s_mul_i32 s3, {sCB}, 448
s_add_u32 s66, s66, s3
s_add_u32 s66, s66, {WS_C12}
v_add_u32 v6, {7168 - 448}, v3
v_cmp_gt_u32 vcc, 28, v0
v_cndmask_b32 v6, v6, v3, vcc
""")
vm.op(f"buffer_load_dwordx4 v6, {WS}, s66 offen sc1 lds")
for x in win_items(1, 3, [f"s_mul_i32 s75, {sW}, {SLOT}", f"s_sub_u32 s75, s75, {SLOT}", f"s_cmp_eq_u32 {sW}, 0", f"s_cselect_b32 s75, {slotA(12)}, s75"], "z2g3"): emit_item(x)
for j in range(7): rdl(WB[0] + 4*j, slot_z2(0) + j*1024)
a(f"v_add_u32 v29, {L_SM}, v31\nv_lshlrev_b32 v24, 2, v1\nv_add_u32 v24, {L_SM + 1024}, v24\ns_add_u32 s66, s68, {WS_ST1}")
hop_wait(2)
stamp("D")
vm.op(f"buffer_load_dwordx2 v[172:173], v27, {WS}, s66 offen sc1")
vm.op(f"buffer_load_dwordx2 v[174:175], v27, {WS}, s66 offen offset:128 sc1", "st1")
for T in range(AH): frag_load(T, "y")
a(f"v_lshlrev_b32 v4, 7, v0\nv_mov_b32 v27, {OOB}\nv_cmp_gt_u32 vcc, 14, v0\nv_cndmask_b32 v27, v27, v4, vcc")
vm.wait("st1")
a("v_pk_add_f32 v[172:173], v[172:173], v[174:175]")
xgroup_sum2(172, 174, 173, 175)
finish_stats([(172, 173, 62, 28, None)], 512)
a(f"v_mul_f32 v62, v62, v28\nv_mov_b32 v60, {fbits(-2*math.log2(math.e)*math.sqrt(2/math.pi))}\nv_mov_b32 v61, v60")
for i in range(4): a(f"ds_bpermute_b32 v{20+i}, v31, v28 offset:{4*i}\nds_bpermute_b32 v{16+i}, v31, v62 offset:{4*i}")
CP = [232, 234, 236, 238, 240, 242, 244]
z1items = {g_: win_items(0, g_, lin_slot(slotB(3) if g_ == 0 else slotA(4*(g_ - 1))), f"z1g{g_}") for g_ in range(4)}
def bef(T):
    if T == 11: a("s_waitcnt lgkmcnt(0)\ns_barrier")
    vm.wait(f"y{T}")
def aft(T, j):
    if j == 0 and T + AH < 16: frag_load(T + AH, "y")
    if j == 5 and T in (9, 11, 13, 15):
        vm.op(f"buffer_load_dword v252, v27, {WS}, s26 offen sc1"); a("s_add_u32 s26, s26, 1792")
    if j == 3 and 6 <= T < 10: emit_item(z1items[0][T - 6])
    if j == 3 and 11 <= T < 15: emit_item(z1items[1][T - 11])
fragloop(16, 7, lambda T, j: rdl(WB[T & 1] + 4*j, slot_z2(T) + j*1024),
         lambda T, j: a(f"v_mfma_f32_16x16x32_bf16 {vr(128+4*j,4)}, {vr(64+4*T,4)}, {vr(WB[T & 1]+4*j,4)}, {'0' if T == 0 else vr(128+4*j,4)}"),
         before=bef, after=aft, preissued=True)
for j in range(7): a(f"ds_read2_b32 {vr(CP[j],2)}, v24 offset0:{j*16} offset1:{j*16 + 112}")
stamp("z2mm")
a(f"s_mov_b32 s64, {fbits(-2*math.log2(math.e)*math.sqrt(2/math.pi)*0.044715)}\ns_mov_b32 s65, s64\ns_mov_b32 s66, 1.0\ns_mov_b32 s67, 1.0\ns_waitcnt lgkmcnt(0)")
def gelu(acc, tmp, mid=None):
    P = range(14)
    for i in P: a(f"v_pk_mul_f32 {vr(tmp+2*i,2)}, {vr(acc+2*i,2)}, {vr(acc+2*i,2)}")
    for i in P: a(f"v_pk_fma_f32 {vr(tmp+2*i,2)}, {vr(tmp+2*i,2)}, s[64:65], v[60:61]")
    for i in P: a(f"v_pk_mul_f32 {vr(tmp+2*i,2)}, {vr(tmp+2*i,2)}, {vr(acc+2*i,2)}")
    for i in range(28): a(f"v_exp_f32 v{tmp+i}, v{tmp+i}")
    if mid: mid()
    for i in P: a(f"v_pk_add_f32 {vr(tmp+2*i,2)}, {vr(tmp+2*i,2)}, s[66:67]")
    for i in range(28): a(f"v_rcp_f32 v{tmp+i}, v{tmp+i}")
    for i in P: a(f"v_pk_mul_f32 {vr(acc+2*i,2)}, {vr(acc+2*i,2)}, {vr(tmp+2*i,2)}")
for i in range(14): a(f"v_pk_fma_f32 {vr(32+2*i,2)}, {vr(16+2*(i & 1),2)}, {vr(CP[i >> 1],2)}, {vr(CP[i >> 1],2)} op_sel:[0,0,1] op_sel_hi:[1,0,1]")
for i in range(14): a(f"v_pk_fma_f32 {vr(128+2*i,2)}, {vr(128+2*i,2)}, {vr(20+2*(i & 1),2)}, {vr(32+2*i,2)}")
gelu(128, 32)
for j in range(7): rdl(WB[0] + 4*j, slot_z1(0) + j*1024) if False else None
for h in range(2):
    a(f"v_pk_add_f32 {vr(156+2*h,2)}, {vr(128+2*h,2)}, {vr(132+2*h,2)}\nv_pk_mul_f32 {vr(160+2*h,2)}, {vr(128+2*h,2)}, {vr(128+2*h,2)}")
for j in range(1, 7):
    for h in range(2):
        if j > 1: a(f"v_pk_add_f32 {vr(156+2*h,2)}, {vr(156+2*h,2)}, {vr(128+4*j+2*h,2)}")
        a(f"v_pk_fma_f32 {vr(160+2*h,2)}, {vr(128+4*j+2*h,2)}, {vr(128+4*j+2*h,2)}, {vr(160+2*h,2)}")
dppsum(range(156, 164), (8, 4, 2, 1))
a(f"s_add_u32 s70, s69, {WS_ST2}\nv_lshlrev_b32 v6, 5, v2\ns_mov_b32 exec_lo, 0x00010001\ns_mov_b32 exec_hi, 0x00010001")
both_data(lambda sc: (vm.op(f"buffer_store_dwordx4 v[156:159], v6, {WS}, s70 offen{sc}"), vm.op(f"buffer_store_dwordx4 v[160:163], v6, {WS}, s70 offen offset:16{sc}", "sst")))
a("s_mov_b64 exec, -1")
vm.wait("z1g1")
a("s_barrier")
stamp("spub")
def z2_publish():
    hop_wait(3)
    stamp("S")
    a(f"s_add_u32 s3, s68, {WS_ST2}")
    vm.op(f"buffer_load_dwordx4 v[164:167], v30, {WS}, s3 offen sc1")
    vm.op(f"buffer_load_dwordx4 v[168:171], v30, {WS}, s3 offen offset:16 sc1", "st2")
    srd(R1, P_BSP, 4096)
    a("s_lshr_b32 s3, s55, 9\nv_lshlrev_b32 v4, 1, v1")
    vm.op(f"buffer_load_ushort v16, v4, {R1}, s3 offen", "bsp")
    a(f"""
s_lshl_b32 s70, {sCB}, 6
s_lshl_b32 s3, {sRB}, 1
s_add_u32 s70, s70, s3
s_lshr_b32 s3, {sW}, 1
s_add_u32 s70, s70, s3
s_mul_i32 s70, s70, 7168
s_and_b32 s3, {sW}, 1
s_lshl_b32 s3, s3, 9
s_add_u32 s70, s70, s3
s_add_u32 s70, s70, {WS_Z2}
s_add_u32 s71, s70, 4096
v_and_b32 v4, 1, v2
v_lshlrev_b32 v4, 10, v4
v_lshrrev_b32 v5, 1, v2
v_lshl_add_u32 v4, v5, 8, v4
v_lshl_add_u32 v6, v1, 4, v4
""")
    vm.wait("st2")
    dppsum(range(164, 172), (4, 2, 1))
    finish_stats([(164+i, 168+i, 156+i, 160+i, None) for i in range(4)], 896)
    for h in range(2): a(f"v_pk_mul_f32 {vr(156+2*h,2)}, {vr(156+2*h,2)}, {vr(160+2*h,2)}")
    for i in range(14): a(f"v_pk_fma_f32 {vr(128+2*i,2)}, {vr(128+2*i,2)}, {vr(160+2*(i & 1),2)}, {vr(156+2*(i & 1),2)}")
    for i in range(14): a(f"v_cvt_pk_bf16_f32 v{232+i}, v{128+2*i}, v{129+2*i}")
    a("v_mov_b32 v246, v244\nv_mov_b32 v247, v245")
    for p in range(4): a(f"v_permlane16_swap_b32 v{232+4*p}, v{234+4*p}\nv_permlane16_swap_b32 v{233+4*p}, v{235+4*p}")
    vm.op(f"buffer_store_dwordx4 v[232:235], v6, {WS}, s70 offen sc1")
    vm.op(f"buffer_store_dwordx4 v[236:239], v6, {WS}, s70 offen offset:2048 sc1")
    vm.op(f"buffer_store_dwordx4 v[240:243], v6, {WS}, s71 offen sc1")
    a("s_mov_b32 exec_lo, 0x0000ffff\ns_mov_b32 exec_hi, 0x0000ffff")
    vm.op(f"buffer_store_dwordx4 v[244:247], v6, {WS}, s71 offen offset:2048 sc1", "zst")
    a(f"""
s_mov_b64 exec, -1
s_lshl_b32 s70, {sRB}, 3
s_add_u32 s70, s70, {sCB}
s_lshl_b32 s70, s70, 9
s_lshl_b32 s3, {sW}, 7
s_add_u32 s70, s70, s3
s_add_u32 s70, s70, {F_E}
""")
    stamp("zst")
def bef(T):
    if T == 2: hop_signal(3, "sst")
    if T == TS: z2_publish()
    if T == TE:
        vm.wait("zst"); vm.op(f"buffer_store_dword v17, v63, {WS}, s70 offen sc1")
        stamp("zpub")
    if T == 7: a("s_barrier")
def aft(T, j):
    if T < 2 and j in (1, 4): emit_item(z1items[2][2*T + (j == 4)])
    if 2 <= T < 4 and j in (1, 4): emit_item(z1items[3][2*(T - 2) + (j == 4)])
TS, TE = 7, 12
a(f"v_mov_b32 v17, 1\nv_mov_b32 v63, {OOB}\nv_cmp_eq_u32 vcc, 0, v0\nv_cndmask_b32 v63, v63, v0, vcc")
fragloop(16, 7, lambda T, j: rdl(WB[T & 1] + 4*j, slot_z1(T) + j*1024),
         lambda T, j: a(f"v_mfma_f32_16x16x32_bf16 {vr(176+4*j,4)}, {vr(WB[T & 1]+4*j,4)}, {vr(64+4*T,4)}, {'0' if T == 0 else vr(176+4*j,4)}"), before=bef, after=aft)
for j in range(7): a(f"ds_read_b128 {vr(204+4*j,4)}, v29 offset:{j*64}\nds_read_b128 {vr(128+4*j,4)}, v29 offset:{448 + j*64}")
a("s_barrier")
stamp("z1mm")
a(f"s_lshl_b32 s70, {sW}, 15\ns_lshl_b32 s3, {sCB}, 9\ns_add_u32 s70, s70, s3\ns_add_u32 s70, s70, {F_E}\nv_lshrrev_b32 v6, 2, v0\nv_lshlrev_b32 v6, 12, v6\nv_and_b32 v5, 3, v0\nv_lshl_add_u32 v6, v5, 7, v6")
a(f"s_lshl_b32 s72, {sCB}, 2\ns_add_u32 s72, s72, {sW}\ns_mul_i32 s72, s72, {16*7168}\ns_add_u32 s72, s72, {WS_Z2}\ns_add_u32 s73, s72, 4096")
poll(f"buffer_load_dword v4, v6, {WS}, s70 offen sc1", "v_cmp_gt_u32 vcc, 1, v4", "0xffffffff")
stamp("E")
ZB = lambda T: (64, 92, 32)[T % 3]
def ldz(T, j):
    vm.op(f"buffer_load_dwordx4 {vr(ZB(T)+4*j,4)}, v3, {WS}, s{72 + (j >> 2)} offen offset:{(j & 3)*1024} sc1", f"z{T}_{j}")
    if j == 6: a("s_add_u32 s72, s72, 7168\ns_add_u32 s73, s73, 7168")
for j in range(7): ldz(0, j)
a("s_waitcnt lgkmcnt(0)")
for i in range(14): a(f"v_pk_fma_f32 {vr(128+2*i,2)}, {vr(204+2*i,2)}, v[62:63], {vr(128+2*i,2)} op_sel_hi:[1,0,1]")
for i in range(14): a(f"v_pk_fma_f32 {vr(176+2*i,2)}, {vr(176+2*i,2)}, v[28:29], {vr(128+2*i,2)} op_sel_hi:[1,0,1]")
gelu(176, 32, mid=lambda: [ldz(1, j) for j in range(7)])
for i in range(14): a(f"v_cvt_pk_bf16_f32 v{240+i}, v{176+2*i}, v{177+2*i}")
Z1P = list(range(240, 254))
stamp("gelu1")
def wout_setup(n0):
    a(f"s_mul_i32 s3, {sCB}, {28*4096}\ns_add_u32 s75, s3, {WS_WOUTF + n0*4096}\ns_lshl_b32 s76, {sW}, 10\ns_add_u32 s74, s75, s76\ns_add_u32 s76, s76, {L_WOUT + n0*4096}")
def wout_one(tag):
    a("s_mov_b32 m0, s76\ns_add_u32 s76, s76, 4096")
    vm.op(f"buffer_load_dwordx4 v3, {WS}, s74 offen sc1 lds", tag)
    a("s_add_u32 s74, s74, 4096")
def wout_dma(n0, n1, tag):
    wout_setup(n0)
    for n in range(n0, n1): wout_one(tag)
wout_setup(0)
for s_ in range(1, 4):
    a(f"s_add_u32 s3, {sW}, {s_}\ns_and_b32 s3, s3, 3\ns_mul_i32 s3, s3, {21*1024}\ns_add_u32 s3, s3, {L_RED + (s_-1)*7168}\nv_add_u32 v{16+s_}, s3, v3")
a(f"s_mul_i32 s3, {sW}, {21*1024}\ns_add_u32 s3, s3, {L_RED}\nv_add_u32 v20, s3, v3\nv_lshlrev_b32 v16, 16, v16")
def p5(T, j, s_):
    d = vr(128 + (s_*7 + j)*4, 4)
    a(f"v_mfma_f32_16x16x32_bf16 {d}, {vr(ZB(T)+4*j,4)}, {ar((T*4+s_)*4,4)}, {'0' if T == 0 else d}")
for T in range(16):
    for j in range(7):
        vm.wait(f"z{T}_{j}")
        for s_ in ((0, 1, 2, 3) if T < 13 else (1, 2, 3)):
            p5(T, j, s_)
            if s_ == 0 and T + 2 < 16 or s_ == 1 and T == 13: ldz(T + 2, j)
            if s_ == 2 and (j == 3 or (j == 0 and T >= 13)): wout_one("wout0")
stamp("p5mm")
for n in range(21):
    a(f"ds_write_b128 v{17 + n // 7}, {vr(128 + (7 + n)*4, 4)} offset:{(n % 7)*1024}")
    p5(13 + n // 7, n % 7, 0)
for i in range(14): a(f"v_lshlrev_b32 v{156+2*i}, 16, v{Z1P[i]}\nv_and_b32 v{157+2*i}, 0xffff0000, v{Z1P[i]}")
for i in range(14): a(f"v_pk_add_f32 {vr(128+2*i,2)}, {vr(128+2*i,2)}, v[16:17] op_sel_hi:[1,0]")
a(f"""
s_lshl_b32 s68, s55, 1
s_add_u32 s68, s68, {WS_X}
s_mul_i32 s64, {sCB}, 3072
s_add_u32 s64, s64, s68
s_lshl_b32 s65, {sCB}, 9
s_add_u32 s65, s65, s68
s_add_u32 s65, s65, {24*1024}
v_lshrrev_b32 v6, 5, v0
v_lshlrev_b32 v6, 8, v6
v_lshl_add_u32 v6, v1, 4, v6
s_waitcnt lgkmcnt(0)
s_barrier
""")
stamp("red")
order = [(k, j) for j in range(7) for k in range(3)]
for k, j in order[:15]: a(f"ds_read_b128 {vr(32+(k*7+j)*4,4)}, v20 offset:{(k*7+j)*1024}")
for j in range(7):
    for k, jj in order[15 + 3*j:18 + 3*j]: a(f"ds_read_b128 {vr(32+(k*7+jj)*4,4)}, v20 offset:{(k*7+jj)*1024}")
    a(f"s_waitcnt lgkmcnt({min(15, 18 - 3*j)})")
    for h in range(2):
        a(f"v_pk_add_f32 {vr(32+4*j+2*h,2)}, {vr(32+4*j+2*h,2)}, {vr(60+4*j+2*h,2)}\nv_pk_add_f32 {vr(128+4*j+2*h,2)}, {vr(128+4*j+2*h,2)}, {vr(88+4*j+2*h,2)}")
    for h in range(2): a(f"v_pk_add_f32 {vr(128+4*j+2*h,2)}, {vr(128+4*j+2*h,2)}, {vr(32+4*j+2*h,2)}")
    for h in range(2): a(f"v_pk_mul_f32 {vr(128+4*j+2*h,2)}, {vr(128+4*j+2*h,2)}, {vr(156+4*j+2*h,2)}")
    for h in range(2): a(f"v_cvt_pk_bf16_f32 v{184+2*j+h}, v{128+4*j+2*h}, v{129+4*j+2*h}")
a("v_mov_b32 v198, v196\nv_mov_b32 v199, v197\nv_permlane16_swap_b32 v196, v198\nv_permlane16_swap_b32 v197, v199")
def pubu(sc):
    for p in range(3): vm.op(f"buffer_store_dwordx4 {vr(184+4*p,4)}, v3, {WS}, s64 offen offset:{p*1024}{sc}")
    a("s_mov_b32 exec_lo, 0x0000ffff\ns_mov_b32 exec_hi, 0x0000ffff")
    vm.op(f"buffer_store_dwordx4 v[196:199], v6, {WS}, s65 offen{sc}")
    a("s_mov_b64 exec, -1")
pubu(' sc1') if 'usc1' in XP or 'allsc1' in XP else both(pubu)
hop_signal(4)
stamp("upub")
a("s_barrier")
rd6 = lambda n, j: rdl(160 + (n & 1)*16 + 4*j, L_WOUT + n*4096 + j*1024)
for j in range(4): rd6(0, j)
wout_dma(19, 28, "wout1")
hop_wait(4)
stamp("F")
steps = []
for cbp in range(8):
    for p in range(3): steps.append((cbp*3 + p, 112*cbp + 32*p, False))
    if cbp & 1: steps.append((24 + (cbp >> 1), 224*(cbp >> 1) + 96, True))
a("s_mov_b32 s64, s68")
for n in range(1, 7): a(f"s_add_u32 s{64+n if n < 4 else 66+n}, s64, {4096*n}")
US = ["s64", "s65", "s66", "s67", "s70", "s71", "s72"]
def uload(n):
    st = steps[n][0]
    vm.op(f"buffer_load_dwordx4 {vr(32+4*n,4)}, v3, {WS}, {US[st >> 2]} offen offset:{(st & 3)*1024} sc1", f"u{n}")
for n in range(AH): uload(n)
a(f"s_lshl_b32 s74, {sCB}, 8\ns_add_u32 s74, s74, {WS_G2 + 2048}")
def aft6(n, j):
    if j == 0 and n + AH < 28: uload(n + AH)
    if j == 0 and 28 <= n + AH < 32: vm.op(f"buffer_load_dwordx4 {vr(216+4*(n+AH-28),4)}, v31, {WS}, s74 offen offset:{(n+AH-28)*64} sc1", "gb")
stamp("u_iss")
def bef(n):
    if n == 18: a("s_barrier")
    vm.wait(f"u{n}")
fragloop(28, 4, rd6,
         lambda n, j: a(f"v_mfma_f32_16x16x32_bf16 {vr(144+4*j,4)}, {vr(160+(n&1)*16+4*j,4)}, {vr(32+4*n,4)}, {'0' if n == 0 else vr(144+4*j,4)}"),
         before=bef, after=aft6, preissued=True)
stamp("p6mm")
vm.wait("gb")
for i in range(8): a(f"v_lshlrev_b32 v{32+2*i}, 16, v{8+i}\nv_and_b32 v{33+2*i}, 0xffff0000, v{8+i}")
for i in range(8): a(f"v_pk_fma_f32 {vr(32+2*i,2)}, {vr(144+2*i,2)}, {vr(216+2*i,2)}, {vr(32+2*i,2)}")
for i in range(8): a(f"v_cvt_pk_bf16_f32 v{48+i}, v{32+2*i}, v{33+2*i}")
for p in range(2): a(f"v_permlane16_swap_b32 v{48+4*p}, v{50+4*p}\nv_permlane16_swap_b32 v{49+4*p}, v{51+4*p}")
srd(R1, P_OUT, 2048 * 1024, "s55")
a(f"v_lshlrev_b32 v4, 10, v1\nv_and_b32 v5, 1, v2\nv_lshl_add_u32 v4, v5, 5, v4\nv_lshrrev_b32 v5, 1, v2\nv_lshl_add_u32 v4, v5, 4, v4\ns_lshl_b32 s3, {sCB}, 7")
for p in range(2): a(f"buffer_store_dwordx4 {vr(48+4*p,4)}, v4, {R1}, s3 offen offset:{p*64}{' sc1' if 'outsc1' in XP else ' nt' if 'outnt' in XP else ''}")
if AMP:
    a("s_waitcnt vmcnt(0)")
    stamp("end")
    assert AMP[0] != "start"
    a("s_sub_u32 s91, s91, s90\ns_min_u32 s91, s91, 10000\ns_memrealtime s[78:79]\ns_waitcnt lgkmcnt(0)\ns_mov_b32 s92, s78\nL_amp:\ns_sleep 1\ns_memrealtime s[78:79]\ns_waitcnt lgkmcnt(0)\ns_sub_u32 s78, s78, s92\ns_cmp_lt_u32 s78, s91\ns_cbranch_scc1 L_amp")
elif "dbg" in XP:
    a("s_waitcnt vmcnt(0)")
    stamp("end")
    sel = ["xin", "barP", "barB", "kv0", "attn", "C", "D", "z2mm", "zpub", "E", "p5mm", "upub", "F", "p6mm", "end"]
    a("s_not_b32 s3, s80\nv_mov_b32 v32, s3")
    for n, nm in enumerate(sel):
        i = stamp_names.index(nm)
        a(f"s_bfe_u32 s3, s{81 + (i-1)//2}, {hex((16 << 16) | (16*((i-1) & 1)))}\ns_add_u32 s3, s3, s80\nv_writelane_b32 v32, s3, {n+1}")
    a("s_load_dwordx2 s[64:65], s[96:97], 104\ns_waitcnt lgkmcnt(0)")
    srd(R1, 64, 256)
    a(f"v_lshlrev_b32 v4, 2, v0\ns_mov_b64 exec, 0xffff\nbuffer_atomic_umax v32, v4, {R1}, 0 offen sc1\ns_waitcnt vmcnt(0)")
elif STAMPS:
    a("s_waitcnt vmcnt(0)")
    stamp("end")
    for i in range(22): a(f"v_writelane_b32 v32, s{80+i}, {i}")
    a(f"s_lshl_b32 s3, s2, 2\ns_add_u32 s3, s3, {sW}\ns_lshl_b32 s3, s3, 7\ns_add_u32 s3, s3, {WS_STAMP}\nv_lshlrev_b32 v4, 2, v0\ns_mov_b64 exec, 0xffffffff\nbuffer_store_dword v32, v4, {WS}, s3 offen")
a("s_endpgm")
a("L_pwait:")
poll(f"buffer_load_dword v201, v196, {WS}, s38 offen sc1", "v_cmp_gt_u32 vcc, 32, v201", "0xffffffff")
a("s_branch L_pok")
a(f"{Lfb}:")
a(f"""
v_lshrrev_b32 v4, 5, v0
v_mul_u32_u24 v4, 272, v4
v_and_b32 v5, 31, v0
v_lshl_add_u32 v27, v5, 4, v4
v_mov_b32 v4, 0xff800000
v_mov_b32 v5, 0xff800000
s_mov_b32 s64, {WS_KV}
L_fb1:
buffer_load_dwordx4 {Kb(0)}, v3, {WS}, s64 offen offset:1088 sc1
s_waitcnt vmcnt(0)
""")
for e in range(2): a(f"v_mfma_f32_32x32x16_bf16 {vr(32+16*e,16)}, {Kb(0)}, {Q(e)}, 0")
for e in range(2): rowmax(32 + 16*e, 4 + e, False)
a(f"s_add_u32 s64, s64, {REC}\ns_cmp_lt_u32 s64, {WS_KV + 64*REC}\ns_cbranch_scc1 L_fb1")
for e in range(2): negbcast(4 + e, e)
for i in range(32): a(f"v_mov_b32 v{80+i}, 0")
a(f"""
s_mov_b32 s64, {WS_KV}
L_fb2:
buffer_load_dwordx4 {Kb(0)}, v3, {WS}, s64 offen offset:1088 sc1
buffer_load_dwordx4 {Vb(0,0)}, v27, {WS}, s64 offen sc1
buffer_load_dwordx4 {Vb(0,1)}, v27, {WS}, s64 offen offset:544 sc1
s_waitcnt vmcnt(0)
""")
for e in range(2): a(f"v_mfma_f32_32x32x16_bf16 {vr(32+16*e,16)}, {Kb(0)}, {Q(e)}, {vr(C(e),16)}")
for i in range(32): a(f"v_exp_f32 v{32+i}, v{32+i}")
for e in range(2):
    for m in range(2): a(f"v_smfmac_f32_32x32x32_bf16 {vr(O(e),16)}, {Vb(0,m)}, {vr(32+16*e+8*m,8)}, v30")
a(f"s_add_u32 s64, s64, {REC}\ns_cmp_lt_u32 s64, {WS_KV + 64*REC}\ns_cbranch_scc1 L_fb2")
getl()
a(f"s_branch {Lok}\nL_end:\ns_endpgm")

body = a.finish()
head = open("cdna_kernels/" + NAME + ".s.ref").read().split("; Override launch")[0]
src = head + f"""; One persistent launch: 256 workgroups (32 row blocks x 8 column blocks), 4 waves each; generated by gen/gen.py.
; @launch grid=(256,1,1) block=(256,1,1) lds={LDS_BYTES}
.amdgcn_target "amdgcn-amd-amdhsa--gfx950"
.text
.globl {NAME}_kernel
.p2align 8
.type {NAME}_kernel,@function
{NAME}_kernel:
{body}.section .rodata,"a"
.p2align 6
.amdhsa_kernel {NAME}_kernel
  .amdhsa_next_free_vgpr 512
  .amdhsa_next_free_sgpr 102
  .amdhsa_accum_offset 256
  .amdhsa_group_segment_fixed_size 0
  .amdhsa_kernarg_size 120
  .amdhsa_user_sgpr_count 2
  .amdhsa_user_sgpr_kernarg_segment_ptr 1
  .amdhsa_system_sgpr_workgroup_id_x 1
.end_amdhsa_kernel
"""
out = [x for x in sys.argv[1:] if not x.startswith("--")]
open(out[0] if out else "cdna_kernels/" + NAME + ".s", "w").write(src)
if STAMPS: open("stamps.txt", "w").write("\n".join(stamp_names))
print("instructions:", sum(1 for k, _ in a.items if k == "ins"), "hazard nops:", a.nops, file=sys.stderr)
```

```python
import sys, struct, math
from asmlib import Asm

NAME = "adaLN_cond__grouped_kv_mqa__mixer_gmlp__prompt"
STAMPS = "--stamps" in sys.argv or "--cyc" in sys.argv
CYC = "--cyc" in sys.argv
FORCE_SLOW = "--slow" in sys.argv
PADZERO = "--nopadzero" not in sys.argv
XP = [x[5:] for x in sys.argv if x.startswith("--xp=")]
FORCE_FB = "--fallback" in sys.argv

def fbits(x): return "0x%08x" % struct.unpack("<I", struct.pack("<f", x))[0]

F_B, F_HOP, F_P, WS_G2, F_E, WS_C12 = 0, 8192, 24576, 28672, 32768, 163840
WS_MOD, WS_MODT, WS_EPOCH, WS_KV = 0x32000, 0x35000, 0x3C000, 0x40000
WS_ST1, WS_ST2 = 0x70000, 0x90000
WS_X, WS_Z2, WS_STAMP, WS_SIZE = 0x100000, 0x500000, 0xD00000, 0x1200000
WS_WOF, WS_WOUTF, WS_DUMMY, WS_WINF = 0xD80000, 0xE00000, 0xF00000, 0x1000000
REC = 2112
L_G2 = 16384
L_KV = 28672
L_WQ, L_WKV, L_G0, L_SILU, L_PAR = 28672, 94208, 110592, 126976, 128000
L_RING, L_SM = 0, 158720
L_WO = 0
SLOT = 7168
def slotA(i): return 65536 + SLOT * i
def slotB(i): return SLOT * i
def slot_z2(T): return slotA(T) if T < 13 else slotB(T - 13)
def slot_z1(T): return slotB(3 + T) if T < 4 else slotA(T - 4)
L_WOUT, L_RED = 0, 77824
LDS_BYTES = 163840
R0, WS, R1, R2, R3 = "s[4:7]", "s[8:11]", "s[12:15]", "s[56:59]", "s[60:63]"
P_X, P_WQ, P_WK, P_WV, P_WO, P_WIN, P_WSP, P_BSP, P_WOUT, P_C, P_WMOD, P_OUT, P_DBG, P_WS = 16, 18, 20, 22, 24, 28, 30, 32, 34, 36, 38, 40, 42, 44
sRB, sCB, sW, sXCC, sFAST, sIDX, sXCD, sKVW, sGRP = "s46", "s47", "s48", "s49", "s50", "s51", "s52", "s53", "s54"
sEP, sTAG = "s42", "s43"
SPIN = 1 << 17
OOB = 0x7fff0000

a = Asm()
def vr(b, n): return f"v[{b}:{b+n-1}]"
def ar(b, n): return f"a[{b}:{b+n-1}]"

class VM:
    def __init__(s): s.n = 0; s.tags = {}
    def op(s, text, tag=None):
        a(text); s.n += 1
        if tag: s.tags[tag] = s.n
    def tag(s, t): s.tags[t] = s.n
    def wait(s, t):
        k = s.n - s.tags[t]
        if k < 63: a(f"s_waitcnt vmcnt({k})")
    def drain(s): a("s_waitcnt vmcnt(0)")
vm = VM()

def srd(q, ptr, size, off=None):
    b = int(q[2:q.index(":")])
    if off is None:
        a(f"s_mov_b32 s{b}, s{ptr}\ns_mov_b32 s{b+1}, s{ptr+1}\ns_mov_b32 s{b+2}, {size}")
    else:
        a(f"s_add_u32 s{b}, s{ptr}, {off}\ns_addc_u32 s{b+1}, s{ptr+1}, 0\ns_sub_u32 s{b+2}, {size}, {off}")
    a(f"s_mov_b32 s{b+3}, 0x20000")

nstamp = [0]
stamp_names = []
AMP = [x[4:] for x in XP if x.startswith("amp:")]
def stamp(name):
    if AMP and name in ("start", AMP[0]): a(f"s_memrealtime s[78:79]\ns_waitcnt lgkmcnt(0)\ns_mov_b32 s{90 if name == 'start' else 91}, s78")
    if not STAMPS: return
    if "dbg" in XP and name not in ("start", "xin", "barP", "barB", "kv0", "attn", "C", "D", "z2mm", "zpub", "E", "p5mm", "upub", "F", "p6mm", "end"): return
    if "tst" in XP and name in ("xin", "ln1", "h", "kv", "q", "p3mm", "p3ep", "y_iss", "st1", "init", "u_iss", "S", "opub", "ypub", "spub"): return
    i = nstamp[0]; nstamp[0] += 1; stamp_names.append(name)
    if "clk" in XP and i >= 30: return
    assert i < 43
    a("s_memrealtime s[78:79]\ns_waitcnt lgkmcnt(0)" if not CYC else "s_memtime s[78:79]\ns_waitcnt lgkmcnt(0)\ns_lshr_b32 s78, s78, 2")
    if i == 0: a("s_mov_b32 s80, s78")
    elif i & 1: a(f"s_sub_u32 s{81 + i//2}, s78, s80")
    else: a(f"s_sub_u32 s78, s78, s80\ns_pack_ll_b32_b16 s{80 + i//2}, s{80 + i//2}, s78")

def poll(load, cond, mask, backoff=0):
    L, X = a.label("poll"), a.label("pollx")
    a(f"s_mov_b64 exec, {mask}\ns_mov_b32 s3, 0\n{L}:\ns_add_u32 s3, s3, 1\ns_cmp_gt_u32 s3, {SPIN}\ns_cbranch_scc1 {X}")
    if backoff: a(f"s_sleep {backoff}")
    a(load); a("s_waitcnt vmcnt(0)"); a(cond)
    a(f"s_cbranch_vccnz {L}\n{X}:\ns_mov_b64 exec, -1")

def both_data(fn):
    if "allsc1" in XP: fn(" sc1")
    else: both(fn)
def both(fn):
    S, E = a.label("slow"), a.label("pub")
    n0 = vm.n
    a(f"s_cmp_eq_u32 {sFAST}, 0\ns_cbranch_scc1 {S}")
    fn(""); n1 = vm.n
    a(f"s_branch {E}\n{S}:"); vm.n = n0
    fn(" sc1"); assert vm.n == n1
    a(f"{E}:")

def hop_signal(phase, tag=None):
    a(f"v_mov_b32 v4, {phase}")
    if tag: vm.wait(tag)
    else: a("s_waitcnt vmcnt(0)")
    both(lambda sc: vm.op(f"buffer_store_dword v4, v254, {WS}, {sGRP} offen{sc}"))

def hop_wait(phase):
    poll(f"buffer_load_dword v4, v255, {WS}, {sGRP} offen sc1", f"v_cmp_gt_u32 vcc, {phase}, v4", "0xff")

def xgroup_sum(v, t):
    a(f"v_mov_b32 v{t}, v{v}\nv_permlane32_swap_b32 v{v}, v{t}\nv_add_f32 v{v}, v{v}, v{t}")
    a(f"v_mov_b32 v{t}, v{v}\nv_permlane16_swap_b32 v{v}, v{t}\nv_add_f32 v{v}, v{v}, v{t}")

def xgroup_sum2(v, t, v2, t2):
    for op in ("v_permlane32_swap_b32", "v_permlane16_swap_b32"):
        a(f"v_mov_b32 v{t}, v{v}\nv_mov_b32 v{t2}, v{v2}\n{op} v{v}, v{t}\n{op} v{v2}, v{t2}\nv_add_f32 v{v}, v{v}, v{t}\nv_add_f32 v{v2}, v{v2}, v{t2}")

def capture(fn):
    n = len(a.items); fn(); out = a.items[n:]; del a.items[n:]
    return out

def pipeline(nsteps, reads, compute, nreads, pre=1):
    for T in range(min(pre, nsteps)): reads(T)
    for T in range(nsteps):
        if T + pre < nsteps: reads(T + pre)
        left = min(pre, nsteps - 1 - T) * nreads
        a(f"s_waitcnt lgkmcnt({min(left, 15)})")
        compute(T)

def fragloop(nsteps, nf, read, mfma, before=None, after=None, nper=1, preissued=False):
    if not preissued:
        for j in range(nf): read(0, j)
    for T in range(nsteps):
        if before: before(T)
        for j in range(nf):
            left = (nf - 1 if T + 1 < nsteps else nf - 1 - j) * nper
            a(f"s_waitcnt lgkmcnt({min(left, 15)})")
            mfma(T, j)
            if T + 1 < nsteps: read(T + 1, j)
            if after: after(T, j)

def dppsum(regs, steps):
    for s in steps:
        for r in regs: a(f"v_add_f32_dpp v{r}, v{r}, v{r} row_ror:{s} row_mask:0xf bank_mask:0xf")
def finish_stats(rows, n):
    for s1, s2, mu, r, sd in rows: a(f"v_mul_f32 v{mu}, {fbits(-1.0/n)}, v{s1}\nv_mul_f32 v{s2}, {fbits(1.0/n)}, v{s2}")
    for s1, s2, mu, r, sd in rows: a(f"v_fma_f32 v{s2}, -v{mu}, v{mu}, v{s2}")
    for s1, s2, mu, r, sd in rows: a(f"v_max_f32 v{s2}, 0, v{s2}")
    for s1, s2, mu, r, sd in rows: a(f"v_add_f32 v{s2}, {fbits(1e-5)}, v{s2}")
    for s1, s2, mu, r, sd in rows: a(f"v_rsq_f32 v{r}, v{s2}")
    for s1, s2, mu, r, sd in rows:
        if sd is not None: a(f"v_mul_f32 v{sd}, v{s2}, v{r}")

a(f"""
s_cmp_ge_u32 s2, 256
s_cbranch_scc1 L_end
s_load_dwordx16 s[16:31], s[0:1], 0
s_load_dwordx8 s[32:39], s[0:1], 64
s_load_dwordx4 s[40:43], s[0:1], 96
s_load_dwordx2 s[44:45], s[0:1], 112
v_lshrrev_b32 v4, 6, v0
v_and_b32 v0, 63, v0
v_readfirstlane_b32 {sW}, v4
v_and_b32 v1, 15, v0
v_lshrrev_b32 v2, 4, v0
v_lshlrev_b32 v3, 4, v0
s_and_b32 {sXCD}, s2, 7
s_lshr_b32 {sIDX}, s2, 3
s_and_b32 {sCB}, {sIDX}, 7
s_lshr_b32 s3, {sIDX}, 3
s_lshl_b32 {sRB}, {sXCD}, 2
s_add_u32 {sRB}, {sRB}, s3
s_lshr_b32 {sKVW}, {sCB}, 1
s_getreg_b32 {sXCC}, hwreg(HW_REG_XCC_ID, 0, 4)
s_and_b32 {sXCC}, {sXCC}, 7
s_lshl_b32 {sGRP}, {sRB}, 2
s_add_u32 {sGRP}, {sGRP}, {sW}
s_lshl_b32 s55, {sGRP}, 14
s_lshl_b32 {sGRP}, {sGRP}, 7
s_add_u32 {sGRP}, {sGRP}, {F_HOP}
""")
a(f"""
s_cmp_eq_u32 {sW}, 3
s_cbranch_scc0 L_nopf
s_getpc_b64 s[64:65]
L_pc:
s_lshl_b32 s3, {sIDX}, 4
v_add_u32 v6, s3, v1
v_lshlrev_b32 v6, 7, v6
v_min_u32 v6, L_end-L_pc-4, v6
v_mov_b32 v7, s65
v_add_co_u32 v6, vcc, s64, v6
v_addc_co_u32 v7, vcc, 0, v7, vcc
s_mov_b64 exec, 0xffff
global_load_dword v24, v[6:7], off
s_mov_b64 exec, -1
L_nopf:
""")
def img32_regs(row, trb):
    a(f"""
v_lshrrev_b32 v4, 1, v0
v_and_b32 v5, 19, v4
v_bfe_u32 v6, v4, 2, 1
v_lshl_or_b32 v5, v6, 3, v5
v_bfe_u32 v6, v4, 3, 1
v_lshl_or_b32 v{row}, v6, 2, v5
v_lshrrev_b32 v4, 2, v1
v_and_b32 v5, 1, v2
v_lshl_add_u32 v4, v5, 2, v4
v_lshrrev_b32 v5, 1, v2
v_lshl_add_u32 v4, v5, 4, v4
v_lshlrev_b32 v4, 5, v4
v_and_b32 v5, 3, v1
v_lshl_add_u32 v{trb}, v5, 3, v4
""")
img32_regs(16, 17)
a(f"""
v_and_b32 v18, 1, v0
v_lshlrev_b32 v18, 4, v18
s_waitcnt lgkmcnt(0)
""")
if "dbg" in XP: a("s_mov_b64 s[96:97], s[0:1]")
stamp("start")
srd(WS, P_WS, hex(WS_SIZE))
a(f"s_load_dword {sEP}, s[{P_WS}:{P_WS+1}], {WS_EPOCH}")

def gemv_chain(lbase, trb, opaddr):
    a(f"v_add_u32 v7, {lbase}, v{trb}")
    def rd(T):
        b = 128 + (T % 4) * 8
        a(f"ds_read_b64_tr_b16 {vr(b,2)}, v7 offset:{T*1024}\nds_read_b64_tr_b16 {vr(b+2,2)}, v7 offset:{T*1024+256}")
        a(f"ds_read_b128 {vr(b+4,4)}, v{opaddr} offset:{T*64}")
    def cp(T):
        b = 128 + (T % 4) * 8
        a(f"v_mfma_f32_16x16x32_bf16 v[32:35], {vr(b,4)}, {vr(b+4,4)}, {'0' if T == 0 else 'v[32:35]'}")
    pipeline(16, rd, cp, 3, pre=3)

def round_bf16(regs):
    for i in range(0, len(regs), 2):
        x, y = regs[i], regs[i+1]
        a(f"v_cvt_pk_bf16_f32 v{y}, v{x}, v{y}\nv_lshlrev_b32 v{x}, 16, v{y}\nv_and_b32 v{y}, 0xffff0000, v{y}")

def silu8(src, dst):
    for i in range(4): a(f"v_lshlrev_b32 v{40+2*i}, 16, v{src+i}\nv_and_b32 v{41+2*i}, 0xffff0000, v{src+i}")
    for i in range(8): a(f"v_mul_f32 v{48+i}, {fbits(-math.log2(math.e))}, v{40+i}")
    for i in range(8): a(f"v_exp_f32 v{48+i}, v{48+i}")
    for i in range(8): a(f"v_add_f32 v{48+i}, 1.0, v{48+i}")
    for i in range(8): a(f"v_rcp_f32 v{48+i}, v{48+i}")
    for i in range(8): a(f"v_mul_f32 v{40+i}, v{40+i}, v{48+i}")
    for i in range(4): a(f"v_cvt_pk_bf16_f32 v{dst+i}, v{40+2*i}, v{41+2*i}")

Lw1, Lw2, Lw3, Lxi, Lxw, Lnz, Lsl, Lx2 = (a.label(x) for x in ("w1", "w2", "w3", "xi", "xw", "noz", "sl", "x2"))
a(f"s_lshl_b32 s64, {sRB}, 16")
srd(R1, P_X, 2048 * 1024, "s64")
srd(R2, P_WMOD, 512 * 6144)
a(f"s_and_b32 s3, {sCB}, 1\ns_cselect_b32 s64, s{P_WV}, s{P_WK}\ns_cselect_b32 s65, s{P_WV+1}, s{P_WK+1}")
srd(R3, 64, 16384)
srd(R0, P_C, 1024)
a(f"""
v_mov_b32 v36, 0
v_mov_b32 v37, 0
v_mov_b32 v38, 0
v_mov_b32 v39, 0
s_and_b32 s69, s2, 15
s_lshl_b32 s69, s69, 6
v_lshlrev_b32 v25, 4, v2
buffer_load_dwordx4 v[8:11], v25, {R0}, s69 offen
s_cmp_eq_u32 {sW}, 0
s_cbranch_scc0 {Lw1}
""")
a(f"""
v_lshrrev_b32 v4, 2, v0
v_and_b32 v5, 3, v0
v_and_b32 v6, 1, v5
v_lshlrev_b32 v6, 7, v6
v_lshrrev_b32 v5, 1, v5
v_mul_u32_u24 v5, 3072, v5
s_movk_i32 s3, 6144
v_mad_u32_u24 v4, v4, s3, v6
v_add_u32 v4, v4, v5
s_mul_i32 s64, {sIDX}, {16*6144}
s_lshl_b32 s3, {sXCD}, 8
s_add_u32 s64, s64, s3
buffer_load_dword v24, v4, {R2}, s64 offen
s_cmp_lt_u32 {sIDX}, 16
s_cbranch_scc0 {Lsl}
s_lshl_b32 s68, {sXCD}, 3
s_add_u32 s68, s68, {sIDX}
s_add_u32 s65, s68, 88
s_cmp_lt_u32 {sIDX}, 8
s_cselect_b32 s68, s68, s65
s_cbranch_scc0 {Lnz}
s_lshl_b32 s3, s68, 7
s_mov_b64 exec, 0xff
buffer_store_dwordx4 v[36:39], v3, {WS}, s3 offen sc1
s_mov_b64 exec, -1
{Lnz}:
""")
a(f"buffer_load_dwordx4 v[32:35], v3, {R0}, 0 offen\ns_lshl_b32 s66, s68, 5\ns_movk_i32 s3, 6144\nv_mad_u32_u24 v6, v16, s3, v18")
for n in range(16):
    a(f"s_mov_b32 m0, {L_G0 + n*1024}\nbuffer_load_dwordx4 v6, {R2}, s66 offen lds")
    if n < 15: a("s_add_u32 s66, s66, 196608")
a("s_waitcnt vmcnt(16)")
if "ms" in XP: stamp("m_c")
silu8(32, 32)
a(f"v_add_u32 v6, {L_SILU}, v3\nds_write_b128 v6, v[32:35]\nv_lshlrev_b32 v5, 4, v2\nv_add_u32 v6, {L_SILU}, v5")
a("s_waitcnt vmcnt(0) lgkmcnt(0)")
if "ms" in XP: stamp("m_dma")
gemv_chain(L_G0, 17, 6)
round_bf16([32, 33, 34, 35])
Lno1 = a.label("no1")
a(f"s_lshr_b32 s65, s68, 5\ns_bitcmp1_b32 0x12, s65\ns_cbranch_scc0 {Lno1}")
for i in range(4): a(f"v_add_f32 v{32+i}, 1.0, v{32+i}")
round_bf16([32, 33, 34, 35])
a(f"""
{Lno1}:
s_lshl_b32 s3, s68, 6
s_add_u32 s3, s3, {WS_MOD}
s_mov_b32 exec_lo, 0x00010001
s_mov_b32 exec_hi, 0x00010001
s_add_u32 s65, {sEP}, 1
s_and_b32 s65, s65, 0xffff
v_or_b32 v36, s65, v32
v_or_b32 v37, s65, v33
v_or_b32 v38, s65, v34
v_or_b32 v39, s65, v35
s_add_u32 s65, s3, {WS_MODT - WS_MOD}
buffer_store_dwordx4 v[36:39], v5, {WS}, s65 offen sc1
buffer_store_dwordx4 v[32:35], v5, {WS}, s3 offen sc1
s_mov_b64 exec, -1
""")
if "ms" in XP: stamp("m_pub")
a(f"""
v_add_u32 v6, s69, v6
ds_read_b128 v[8:11], v6
s_branch {Lxw}
{Lw1}:
s_lshl_b32 s66, {sCB}, 7
""")
srd(R0, P_WQ, 512 * 1024, "s66")
a(f"""
v_lshlrev_b32 v4, 7, v0
s_cmp_eq_u32 {sW}, 2
s_cbranch_scc1 {Lw2}
s_cmp_eq_u32 {sW}, 3
s_cbranch_scc1 {Lxi}
s_lshl_b32 s3, {sCB}, 13
buffer_load_dword v24, v4, {R1}, s3 offen
s_branch {Lxi}
{Lw2}:
s_lshr_b32 s3, {sIDX}, 1
s_lshl_b32 s3, s3, 10
v_and_b32 v4, 0x380, v4
buffer_load_dword v24, v4, {R3}, s3 offen
{Lxi}:
v_lshrrev_b32 v4, 3, v0
v_and_b32 v5, 7, v0
v_xor_b32 v5, v5, v2
v_lshlrev_b32 v5, 4, v5
v_lshl_add_u32 v22, v4, 10, v5
v_xor_b32 v23, 64, v22
v_add_u32 v23, {8192 - 1024}, v23
s_sub_u32 s64, {sW}, 1
s_mul_i32 s64, s64, 11
s_min_u32 s64, s64, 21
s_lshl_b32 s67, s64, 11
s_add_u32 s67, s67, {L_WQ}
""")
for i in range(11):
    a(f"s_lshr_b32 s65, s64, 3\ns_lshl_b32 s65, s65, 14\ns_and_b32 s3, s64, 7\ns_lshl_b32 s3, s3, 7\ns_add_u32 s65, s65, s3\ns_mov_b32 m0, s67\ns_add_u32 s64, s64, 1\ns_add_u32 s67, s67, 2048")
    a(f"buffer_load_dwordx4 v22, {R1}, s65 offen lds\nbuffer_load_dwordx4 v23, {R1}, s65 offen offset:1024 lds")
a(f"v_lshl_add_u32 v21, v16, 5, v18\ns_sub_u32 s64, {sW}, 1\ns_mul_i32 s64, s64, 5120\ns_add_u32 s67, s64, {L_WKV}")
for i in range(6): a(f"s_mov_b32 m0, s67\ns_add_u32 s67, s67, 1024\nbuffer_load_dwordx4 v21, {R3}, s64 offen lds\ns_add_u32 s64, s64, 1024")
a(f"""
s_cmp_eq_u32 {sW}, 3
s_cbranch_scc1 {Lw3}
s_and_b32 s3, {sRB}, 3
s_lshl_b32 s3, s3, 1
s_add_u32 s3, s3, {sW}
s_sub_u32 s3, s3, 1
s_lshl_b32 s3, s3, 16
v_lshlrev_b32 v4, 10, v0
buffer_load_dword v26, v4, {R0}, s3 offen
s_branch {Lx2}
{Lw3}:
s_mul_i32 s3, s2, 768
s_add_u32 s3, s3, {F_HOP}
s_mov_b32 exec_hi, 0xffff
buffer_store_dwordx4 v[36:39], v3, {WS}, s3 offen sc1
s_mov_b64 exec, -1
{Lx2}:
s_waitcnt vmcnt(29)
{Lsl}:
s_waitcnt vmcnt(31)
""")
a("s_cmp_eq_u32 s48, 0\ns_cbranch_scc0 L_cin\ns_waitcnt vmcnt(1)\nL_cin:")
silu8(8, 8)
a(f"""
s_waitcnt vmcnt(1)
{Lxw}:
s_lshl_b32 s67, {sW}, 14
s_add_u32 s67, s67, {L_WQ}
s_barrier
""")
stamp("xin")
a(f"""
v_lshrrev_b32 v4, 1, v1
v_xor_b32 v4, v4, v2
v_lshlrev_b32 v4, 4, v4
v_lshl_add_u32 v4, v1, 7, v4
v_add_u32 v4, s67, v4
v_xor_b32 v5, 64, v4
s_waitcnt lgkmcnt(0)
s_add_u32 {sEP}, {sEP}, 1
s_and_b32 {sTAG}, {sEP}, 0xffff
""")
for T in range(16): a(f"ds_read_b128 {vr(64+4*T,4)}, v{4 + (T & 1)} offset:{(T >> 1)*2048}")
a(f"s_lshl_b32 s66, {sCB}, 7")
srd(R0, P_WQ, 512 * 1024, "s66")
a(f"""
v_lshrrev_b32 v4, 3, v0
v_bfe_u32 v5, v0, 1, 2
v_bfe_u32 v6, v4, 1, 1
v_xor_b32 v5, v5, v6
v_lshlrev_b32 v5, 5, v5
v_lshl_add_u32 v5, v4, 10, v5
v_add_u32 v19, v5, v18
v_xor_b32 v20, 64, v19
""")
a(f"s_lshl_b32 s66, {sW}, 17")
nst = [0]
def stage():
    n = nst[0]; nst[0] += 1
    a(f"s_mov_b32 m0, s67\ns_add_u32 s67, s67, 1024\nbuffer_load_dwordx4 v{19 + (n & 1)}, {R0}, s66 offen lds\ns_add_u32 s66, s66, 8192")
for i in range(64):
    if i % 4 == 0: a(f"s_waitcnt lgkmcnt({15 - i // 4})")
    a(f"v_lshlrev_b32 v{128+2*i}, 16, v{64+i}\nv_and_b32 v{129+2*i}, 0xffff0000, v{64+i}")
for k in range(4): a(f"v_pk_add_f32 {vr(32+2*k,2)}, {vr(128+4*k,2)}, {vr(130+4*k,2)}")
for k in range(4): a(f"v_pk_mul_f32 {vr(40+2*k,2)}, {vr(128+2*k,2)}, {vr(128+2*k,2)}")
for i in range(4, 64):
    if i >= 8: a(f"v_pk_add_f32 {vr(32+2*(i%4),2)}, {vr(32+2*(i%4),2)}, {vr(128+2*i,2)}")
    a(f"v_pk_fma_f32 {vr(40+2*(i%4),2)}, {vr(128+2*i,2)}, {vr(128+2*i,2)}, {vr(40+2*(i%4),2)}")
    if i % 6 == 4: stage()
for b in (32, 40):
    a(f"v_pk_add_f32 {vr(b,2)}, {vr(b,2)}, {vr(b+2,2)}\nv_pk_add_f32 {vr(b+4,2)}, {vr(b+4,2)}, {vr(b+6,2)}\nv_pk_add_f32 {vr(b,2)}, {vr(b,2)}, {vr(b+4,2)}\nv_add_f32 v{b}, v{b}, v{b+1}")
xgroup_sum2(32, 33, 40, 41)
finish_stats([(32, 40, 34, 36, None)], 512)
a("v_mul_f32 v34, v34, v36")
for i in range(64):
    a(f"v_pk_fma_f32 {vr(128+2*i,2)}, {vr(128+2*i,2)}, v[36:37], v[34:35] op_sel_hi:[1,0,0]")
    if i % 8 == 0 and nst[0] < 16: stage()
assert nst[0] == 16
Lna = a.label("nkvf")
a(f"s_cmp_eq_u32 {sW}, {sKVW}\ns_cbranch_scc0 {Lna}\nv_add_u32 v7, {L_WKV}, v17")
for T in range(16): a(f"ds_read_b64_tr_b16 {ar(4*T,2)}, v7 offset:{T*1024}\nds_read_b64_tr_b16 {ar(4*T+2,2)}, v7 offset:{T*1024+256}")
a(f"{Lna}:")
stamp("ln1")
def tagcheck(regs):
    out = [f"v_xor_b32 v{r}, {sTAG}, v{r}" for r in regs]
    out.append(f"v_or3_b32 v4, v{regs[0]}, v{regs[1]}, v{regs[2]}")
    for i in range(3, len(regs) - 1, 2): out.append(f"v_or3_b32 v4, v4, v{regs[i]}, v{regs[i+1]}")
    out.append(f"v_or_b32 v4, v4, v{regs[-1]}\nv_and_b32 v4, 0xffff, v4\nv_cmp_ne_u32 vcc, 0, v4")
    return "\n".join(out)
def setup_scalars():
    Lr2, Lr3, Lre = (a.label(x) for x in ("r2", "r3", "re"))
    a(f"""
s_mul_i32 s77, {sW}, 12288
s_lshl_b32 s68, {sW}, 12
s_movk_i32 s74, 1024
s_movk_i32 s75, 4
s_movk_i32 s76, 8
s_movk_i32 s1, 2048
s_movk_i32 s20, 8192
s_cmp_eq_u32 {sW}, 2
s_cbranch_scc1 {Lr2}
s_cmp_eq_u32 {sW}, 3
s_cbranch_scc1 {Lr3}
s_and_b32 s64, {sRB}, 15
s_mul_i32 s64, s64, 114688
s_lshr_b32 s3, {sRB}, 4
s_mul_i32 s3, s3, 1792
s_add_u32 s64, s64, s3
s_mul_i32 s3, {sCB}, 224
s_add_u32 s64, s64, s3
s_lshl_b32 s3, {sW}, 7
s_add_u32 s64, s64, s3
""")
    srd(R2, P_WIN, 512 * 3584, "s64")
    a(f"""
s_movk_i32 s74, 3584
s_movk_i32 s20, {8*3584}
s_mov_b32 s21, {16*3584}
s_mov_b32 s22, {24*3584}
s_lshl_b32 s36, {sCB}, 5
s_add_u32 s36, s36, {sRB}
s_mul_i32 s36, s36, {SLOT}
s_add_u32 s36, s36, s68
s_add_u32 s36, s36, {WS_WINF}
s_mov_b32 s24, s36
s_cmp_eq_u32 {sW}, 0
s_cselect_b32 s37, s36, {WS_SIZE}
s_branch {Lre}
{Lr2}:
s_min_u32 s67, {sRB}, 27
s_mul_i32 s64, s67, 37
s_lshr_b32 s64, s64, 8
s_mul_i32 s3, s64, 7
s_sub_u32 s65, s67, s3
s_mul_i32 s64, s64, 224
s_lshl_b32 s3, s65, 5
s_add_u32 s66, s3, 16
s_cmp_lt_u32 s65, 3
s_cselect_b32 s3, s3, s66
s_cmp_eq_u32 s65, 6
s_cselect_b32 s3, 96, s3
s_cselect_b32 s21, 112, 16
s_cselect_b32 s75, 8, 4
s_cselect_b32 s76, 16, 8
s_cselect_b32 s1, 512, s1
s_lshl_b32 s21, s21, 10
s_add_u32 s22, s21, 8192
s_add_u32 s64, s64, s3
s_lshl_b32 s64, s64, 10
s_lshl_b32 s3, {sCB}, 7
s_add_u32 s64, s64, s3
""")
    srd(R2, P_WOUT, 896 * 1024, "s64")
    a(f"""
s_mul_i32 s36, {sCB}, 28
s_add_u32 s36, s36, s67
s_lshl_b32 s36, s36, 12
s_add_u32 s36, s36, {WS_WOUTF}
s_cmp_lt_u32 {sRB}, 28
s_cselect_b32 s36, s36, {WS_SIZE}
s_mov_b32 s37, s36
s_mov_b32 s24, s36
s_branch {Lre}
{Lr3}:
s_lshr_b32 s67, {sRB}, 1
s_lshl_b32 s64, s67, 15
s_lshl_b32 s3, {sCB}, 7
s_add_u32 s64, s64, s3
""")
    srd(R2, P_WO, 512 * 1024, "s64")
    a(f"""
s_movk_i32 s21, 16384
s_movk_i32 s22, 24576
s_movk_i32 s75, 16
s_movk_i32 s76, 4
s_movk_i32 s1, 1024
s_lshl_b32 s36, {sCB}, 4
s_add_u32 s36, s36, s67
s_lshl_b32 s36, s36, 12
s_add_u32 s36, s36, {WS_WOF}
s_bitcmp1_b32 {sRB}, 0
s_cselect_b32 s37, s36, {WS_SIZE}
s_cselect_b32 s36, {WS_SIZE}, s36
s_mov_b32 s24, s37
{Lre}:
s_and_b32 s64, s2, 15
s_mul_i32 s64, s64, {32*6144}
s_lshr_b32 s65, s2, 4
s_lshl_b32 s3, s65, 7
s_add_u32 s64, s64, s3
s_lshl_b32 s3, {sW}, 5
s_add_u32 s64, s64, s3
s_cmp_lt_u32 s65, 8
s_cselect_b32 s3, 0, 2048
s_add_u32 s64, s64, s3
s_add_u32 s64, s64, 2048
""")
    srd(R3, P_WMOD, 512 * 6144, "s64")
    a(f"""
s_lshl_b32 s34, s65, 8
s_lshl_b32 s3, {sW}, 6
s_add_u32 s34, s34, s3
s_add_u32 s34, s34, {WS_G2}
s_lshl_b32 s35, {sW}, 10
s_lshl_b32 s64, {sRB}, 18
s_add_u32 s64, s64, s35
s_add_u32 s35, s35, {L_G2}
s_lshr_b32 s3, {sRB}, 4
s_mul_i32 s3, s3, 3584
s_mul_i32 s28, {sCB}, 448
s_add_u32 s28, s28, s3
s_lshl_b32 s3, {sW}, 8
s_add_u32 s28, s28, s3
s_add_u32 s28, s28, {WS_C12}
s_cmp_lt_u32 {sW}, 2
s_cselect_b32 s28, s28, {WS_SIZE}
s_add_u32 s29, s28, 7168
s_and_b32 s25, {sRB}, 15
s_lshl_b32 s25, s25, 7
s_add_u32 s25, s25, {WS_MOD + 3*2048}
""")
    srd(R0, P_WSP, 2048 * 4096, "s64")
    a(f"s_lshl_b32 s66, {sCB}, 7\ns_add_u32 s64, s66, s55")
    srd(R1, P_X, 2048 * 1024, "s64")
    for s_ in range(4): a(f"s_add_u32 s3, {sW}, {s_}\ns_and_b32 s3, s3, 3\ns_lshl_b32 s{70+s_}, s3, 16")
    a(f"""
s_lshr_b32 s31, s55, 4
s_add_u32 s31, s31, s66
s_add_u32 s31, s31, {WS_ST1}
s_lshl_b32 s19, {sCB}, 15
s_lshl_b32 s39, {sCB}, 9
s_mov_b32 s38, {F_P}
s_add_u32 s39, s39, s38
s_lshl_b32 s3, {sW}, 7
s_add_u32 s39, s39, s3
s_and_b32 s3, {sRB}, 3
s_lshl_b32 s3, s3, 2
s_add_u32 s3, s3, {sW}
s_mul_i32 s26, s3, {SLOT}
s_mul_i32 s3, {sCB}, {28*4096}
s_add_u32 s26, s26, s3
s_add_u32 s26, s26, {WS_WOUTF}
s_lshl_b32 s69, {sCB}, 16
s_add_u32 s69, s69, {WS_WOF}
s_lshl_b32 s64, {sW}, 11
s_add_u32 s65, s64, {L_KV}
s_add_u32 s64, s64, {WS_KV}
s_mul_i32 s66, {sIDX}, {33*128}
s_add_u32 s66, s66, {WS_KV}
s_lshl_b32 s67, {sRB}, 7
s_lshl_b32 s16, s55, 1
s_lshl_b32 s3, {sCB}, 11
s_add_u32 s16, s16, s3
s_add_u32 s16, s16, {WS_X}
s_add_u32 s17, s16, 16384
s_lshl_b32 s3, {sCB}, 8
s_add_u32 s18, s3, {WS_G2}
s_add_u32 s30, s3, {WS_MOD + 4*2048}
""")
assert F_B == 0

a(f"s_lshl_b32 s23, {sW}, 10\ns_add_u32 s3, s23, {L_PAR}\ns_add_u32 s23, s23, {WS_MODT}\nv_add_u32 v5, s3, v3")
a(f"buffer_load_dwordx4 v[32:35], v3, {WS}, s23 offen sc1")
setup_scalars()
a("s_waitcnt vmcnt(0)")
a(tagcheck([32, 33, 34, 35]))
a("s_cbranch_vccz L_parok")
poll(f"buffer_load_dwordx4 v[32:35], v3, {WS}, s23 offen sc1", tagcheck([32, 33, 34, 35]), "-1")
a("L_parok:\nds_write_b128 v5, v[32:35]\ns_waitcnt lgkmcnt(0)\ns_barrier")
stamp("barP")
a(f"s_sub_u32 s0, {sW}, {sKVW}")
LV, Lh, Lnkv, LV2, Lst, Lkve = (a.label(x) for x in ("isV", "hdone", "nokv", "isV2", "kvst", "kve"))
a(f"v_lshlrev_b32 v19, 5, v2\nv_add_u32 v19, {L_PAR}, v19\ns_bitcmp1_b32 {sCB}, 0\ns_cbranch_scc1 {LV}")
def hpass(isV):
    def rd(T):
        b = 32 + (T & 1) * 16
        for k, off in enumerate((2048, 2064, 0, 16)): a(f"ds_read_b128 {vr(b+4*k,4)}, v19 offset:{off + T*128}")
    def kv(T):
        A, B = (vr(64+4*T,4), ar(4*T,4)) if isV else (ar(4*T,4), vr(64+4*T,4))
        a(f"v_mfma_f32_16x16x32_bf16 v[12:15], {A}, {B}, {'0' if T == 0 else 'v[12:15]'}")
    def cp(T):
        b = 32 + (T & 1) * 16
        for k in range(4): a(f"v_pk_fma_f32 {vr(128+8*T+2*k,2)}, {vr(128+8*T+2*k,2)}, {vr(b+2*k,2)}, {vr(b+8+2*k,2)}")
        if T: kv(T - 1)
        for k in range(4): a(f"v_cvt_pk_bf16_f32 v{64+4*T+k}, v{128+8*T+2*k}, v{129+8*T+2*k}")
    pipeline(16, rd, cp, 4)
    kv(15)
hpass(False)
a(f"s_branch {Lh}\n{LV}:")
hpass(True)
a(f"{Lh}:")
if "ms" in XP: stamp("h")
a(f"""
s_cmp_eq_u32 s0, 0
s_cbranch_scc0 {Lnkv}
s_lshl_b32 s23, {sRB}, 1
s_lshr_b32 s3, {sW}, 1
s_add_u32 s23, s23, s3
s_mul_i32 s23, s23, {REC}
s_add_u32 s23, s23, {WS_KV}
s_and_b32 s27, {sW}, 1
v_lshrrev_b32 v20, 5, v0
v_cvt_pk_bf16_f32 v36, v12, v13
v_cvt_pk_bf16_f32 v37, v14, v15
v_mov_b32 v38, v36
v_mov_b32 v39, v37
v_permlane16_swap_b32 v36, v38
v_permlane16_swap_b32 v37, v39
s_bitcmp1_b32 {sCB}, 0
s_cbranch_scc1 {LV2}
v_lshlrev_b32 v20, 9, v20
v_lshl_add_u32 v20, v1, 4, v20
s_lshl_b32 s27, s27, 8
s_add_u32 s23, s23, s27
s_add_u32 s23, s23, 1088
s_mov_b32 exec_lo, 0x0000ffff
s_mov_b32 exec_hi, 0x0000ffff
s_branch {Lst}
{LV2}:
v_mul_u32_u24 v20, 272, v20
v_and_b32 v4, 31, v0
v_lshl_add_u32 v20, v4, 4, v20
s_mul_i32 s27, s27, 544
s_add_u32 s23, s23, s27
s_mov_b32 exec_lo, 0xffff0000
s_mov_b32 exec_hi, 0xffff0000
v_mov_b32 v36, 0x3f803f80
v_mov_b32 v37, 0x3f803f80
v_mov_b32 v38, 0x3f803f80
v_mov_b32 v39, 0x3f803f80
s_mov_b32 exec_lo, 0x0001ffff
s_mov_b32 exec_hi, 0x0001ffff
{Lst}:
buffer_store_dwordx4 v[36:39], v20, {WS}, s23 offen sc1
s_mov_b64 exec, -1
{Lnkv}:
s_lshl_b32 s3, {sXCC}, 2
s_lshl_b32 s3, 1, s3
v_mov_b32 v20, s3
v_mov_b32 v21, {OOB}
v_cmp_eq_u32 vcc, 0, v0
v_cndmask_b32 v21, v21, v0, vcc
s_cmp_eq_u32 s0, 0
s_cselect_b64 vcc, -1, 0
""")
TWO = 11
def arrive(T, j):
    if "two" in XP and (T, j) == (TWO, 0):
        L = a.label("arr2")
        a(f"""s_cbranch_vccz {L}
s_waitcnt vmcnt(0)
v_readfirstlane_b32 s23, v20
s_lshr_b32 s27, s23, 4
s_and_b32 s27, s27, 0x0f0f0f0f
s_and_b32 s23, s23, 0x0f0f0f0f
s_add_u32 s23, s23, s27
s_mul_i32 s23, s23, 0x01010101
s_lshr_b32 s23, s23, 24
s_cmp_eq_u32 s23, 7
s_cbranch_scc0 {L}
v_mov_b32 v20, 1
s_add_u32 s23, s67, 4096
buffer_store_dword v20, v21, {WS}, s23 offen offset:64 sc1
{L}:""")
    if (T, j) != (4, 0): return
    L = a.label("arr")
    if "two" not in XP: a(f"s_cbranch_vccz {L}\ns_waitcnt vmcnt(0)\nbuffer_atomic_add v20, v21, {WS}, s67 offen sc1\n{L}:")
    else: a(f"s_cbranch_vccz {L}\ns_waitcnt vmcnt(0)\nbuffer_atomic_add v20, v21, {WS}, s67 offen sc0 sc1\n{L}:")
    if "ms" in XP: stamp("arr")
def trbase128(dst, rowexpr_v, fexpr_v, lbase):
    a(f"v_and_b32 v6, 3, v1\nv_lshlrev_b32 v6, 3, v6\nv_lshl_add_u32 v6, v{rowexpr_v}, 7, v6\nv_lshl_add_u32 v6, v{fexpr_v}, 5, v6\nv_add_u32 v{dst}, {lbase}, v6")
    for j in range(1, 4): a(f"v_xor_b32 v{dst+j}, {j*32}, v{dst}")
a("v_lshrrev_b32 v4, 2, v1\nv_bfe_u32 v5, v1, 3, 1\nv_and_b32 v7, 1, v2\nv_lshl_or_b32 v5, v7, 1, v5\nv_lshl_add_u32 v4, v2, 3, v4")
trbase128(24, 4, 5, L_WQ)
fragloop(16, 4,
         lambda T, j: a(f"ds_read_b64_tr_b16 {vr(32+(T&1)*16+4*j,2)}, v{24+j} offset:{T*4096}\nds_read_b64_tr_b16 {vr(34+(T&1)*16+4*j,2)}, v{24+j} offset:{T*4096+512}"),
         lambda T, j: a(f"v_mfma_f32_16x16x32_bf16 {vr(128+4*j,4)}, {vr(32+(T&1)*16+4*j,4)}, {vr(64+4*T,4)}, {'0' if T == 0 else vr(128+4*j,4)}"), nper=2, after=arrive)
for i in range(16): a(f"v_mul_f32 v{128+i}, {fbits(0.25*math.log2(math.e))}, v{128+i}")
for i in range(8): a(f"v_cvt_pk_bf16_f32 v{16+i}, v{128+2*i}, v{129+2*i}")
for e in range(2): a(f"v_permlane16_swap_b32 v{16+4*e}, v{18+4*e}\nv_permlane16_swap_b32 v{17+4*e}, v{19+4*e}")
stamp("q")
img32_regs(212, 213)
a(f"""
v_add_u32 v24, {L_KV + 1088}, v3
v_add_u32 v25, {31*REC}, v24
v_add_u32 v26, {31*REC}, v25
v_lshrrev_b32 v4, 5, v0
v_mul_u32_u24 v4, 272, v4
v_and_b32 v5, 31, v0
v_lshl_add_u32 v4, v5, 4, v4
v_add_u32 v27, {L_KV}, v4
v_mov_b32 v4, 0x40000
v_cmp_lt_u32 vcc, {16 if PADZERO else 99}, v5
v_mov_b32 v31, {OOB}
v_mov_b32 v30, 0xdddd
v_cndmask_b32 v27, v27, v4, vcc
v_add_u32 v28, {31*REC}, v27
v_add_u32 v29, {31*REC}, v28
v_lshrrev_b32 v7, 3, v0
v_and_b32 v6, 7, v0
v_xor_b32 v5, v6, v2
v_lshlrev_b32 v5, 4, v5
v_lshl_add_u32 v168, v7, 12, v5
v_xor_b32 v169, 64, v168
v_add_u32 v169, {0x8000 - 1024}, v169
v_lshrrev_b32 v4, 1, v1
v_xor_b32 v4, v4, v2
v_lshlrev_b32 v4, 4, v4
v_lshl_add_u32 v4, v1, 7, v4
v_add_u32 v170, s77, v4
v_xor_b32 v171, 64, v170
v_lshlrev_b32 v4, 10, v1
v_lshl_add_u32 v172, v2, 3, v4
v_lshlrev_b32 v4, 7, v6
v_lshl_add_u32 v173, v7, 12, v4
v_lshlrev_b32 v6, 4, v6
v_mad_u32_u24 v176, v7, s74, v6
v_lshrrev_b32 v4, 2, v1
v_and_b32 v5, 1, v2
v_mad_u32_u24 v4, v5, s75, v4
v_lshrrev_b32 v5, 1, v2
v_mad_u32_u24 v4, v5, s76, v4
v_and_b32 v5, 3, v1
v_lshlrev_b32 v5, 3, v5
v_lshl_add_u32 v4, v4, 7, v5
v_add_u32 v177, s68, v4
v_add_u32 v178, s1, v177
v_lshlrev_b32 v4, 7, v0
v_cmp_gt_u32 vcc, 32, v0
v_cmp_gt_u32 s[74:75], 33, v0
v_mov_b32 v199, 1
v_lshlrev_b32 v218, 4, v2
v_cndmask_b32 v196, v31, v4, vcc
v_cndmask_b32 v197, v31, v4, s[74:75]
v_cmp_eq_u32 vcc, 0, v0
v_and_b32 v7, 1, v0
v_lshlrev_b32 v5, 4, v7
v_cndmask_b32 v198, v31, v4, vcc
s_movk_i32 s3, 6144
v_mad_u32_u24 v212, v212, s3, v5
v_add_u32 v213, s35, v213
v_lshlrev_b32 v4, 2, v0
v_cmp_gt_u32 vcc, 16, v0
s_cmp_eq_u32 {sW}, 0
s_cselect_b32 s3, 64, 48
v_cmp_gt_u32 s[74:75], s3, v0
v_lshlrev_b32 v5, 11, v7
v_cndmask_b32 v214, v31, v4, vcc
v_cndmask_b32 v215, v31, v4, s[74:75]
v_sub_u32 v4, 2048, v5
v_add_u32 v4, v218, v4
v_and_b32 v5, 2, v0
v_cmp_eq_u32 vcc, 0, v5
v_mul_u32_u24 v5, {WS_ST2 - WS_ST1}, v7
v_add_u32 v5, s33x, v5
v_cndmask_b32 v216, v31, v4, vcc
v_lshlrev_b32 v4, 7, v1
v_lshl_add_u32 v4, v2, 14, v4
v_add_u32 v202, s16, v4
v_cmp_lt_u32 vcc, 31, v0
v_cmp_gt_u32 s[74:75], 2, v0
v_mov_b64 v[80:81], 0
v_mov_b64 v[82:83], 0
v_cndmask_b32 v202, v202, v5, vcc
v_cndmask_b32 v217, v31, v5, s[74:75]
""".replace("s33x", "s31"))
for i in range(2, 16): a(f"v_mov_b64 {vr(80+2*i,2)}, 0")
if "ms" in XP: stamp("setup")
BKB = int(([x[3:] for x in XP if x.startswith("bk:")] or ["0"])[0])
Lnb = a.label("noB")
a(f"s_cmp_eq_u32 {sW}, {sKVW}\ns_cbranch_scc0 {Lnb}\nv_lshlrev_b32 v5, 7, v0\nv_add_u32 v6, 4096, v5")
poll(f"buffer_load_dword v4, v5, {WS}, 0 offen sc1",
     "v_lshrrev_b32 v6, 4, v4\nv_and_b32 v6, 0x0f0f0f0f, v6\nv_and_b32 v4, 0x0f0f0f0f, v4\nv_add_u32 v4, v4, v6\nv_sad_u8 v4, v4, 0, 0\nv_cmp_gt_u32 vcc, 8, v4",
     "0xffffffff", BKB) if "two" not in XP else poll(f"buffer_load_dword v4, v5, {WS}, 0 offen offset:64 sc1".replace("v5, ", "v6, "), "v_cmp_gt_u32 vcc, 1, v4", "0xffffffff", BKB)
a(f"buffer_load_dword v200, v197, {WS}, s66 offen sc1\ns_barrier\ns_branch L_Bdone\n{Lnb}:\ns_waitcnt vmcnt(0) lgkmcnt(0)\ns_barrier\nL_Bdone:")
stamp("barB")
Lne = a.label("noep")
a(f"s_or_b32 s3, s2, {sW}\ns_cbranch_scc1 {Lne}\nv_mov_b32 v4, {sEP}\ns_mov_b32 s3, {WS_EPOCH}\nbuffer_store_dword v4, v198, {WS}, s3 offen sc1\n{Lne}:")
vm.n = 0
def kv_group(i):
    if i < 16:
        return (["s_mov_b32 m0, s65"], [f"buffer_load_dwordx4 v3, {WS}, s64 offen sc1 lds", f"buffer_load_dwordx4 v3, {WS}, s64 offen offset:1024 sc1 lds"],
                f"kvg{i}", ["s_add_u32 s64, s64, 8192", "s_add_u32 s65, s65, 8192"])
    return ([f"s_lshl_b32 s3, {sW}, 10", "s_sub_u32 s64, s64, s3", "s_sub_u32 m0, s65, s3"], [f"buffer_load_dwordx4 v3, {WS}, s64 offen sc1 lds"], "kvg16", [])
def emit_item(x):
    pre, ins, tag, post = x
    for p in pre: a(p)
    for q_ in ins: vm.op(q_, tag)
    for p in post: a(p)
for i in range(2): emit_item(kv_group(i))

def win_items(half, grp, slot0, tag):
    ld = lambda i: f"buffer_load_dwordx4 v3, {WS}, s74 offen offset:{(i & 3)*1024} sc1 lds"
    first = [f"s_lshl_b32 s74, {sCB}, 5", f"s_add_u32 s74, s74, {sW}", f"s_mul_i32 s74, s74, {SLOT}", f"s_add_u32 s74, s74, {WS_WINF + (half*16 + grp*4)*SLOT}"] + slot0
    return [(first + ["s_mov_b32 m0, s75"], [ld(0), ld(1)], tag, []), (["s_mov_b32 m0, s75"], [ld(2), ld(3)], tag, ["s_add_u32 s74, s74, 4096", "s_add_u32 s75, s75, 4096"]),
            (["s_mov_b32 m0, s75"], [ld(4), ld(5)], tag, []), (["s_mov_b32 m0, s75"], [ld(6)], tag, [])]
def lin_slot(base): return [f"s_mul_i32 s75, {sW}, {SLOT}", f"s_add_u32 s75, s75, {base}"]

def kaddr(t): return f"v{24 + t//31} offset:{(t % 31)*REC}"
def vaddr(t, m): return f"v{27 + t//31} offset:{(t % 31)*REC + m*544}"
Kb = lambda t: vr(144 + 4*(t & 1), 4)
Vb = lambda t, m: vr(152 + 8*(t & 1) + 4*m, 4)
Sb = lambda u: 32 + 16*(u % 3)
Q = lambda e: vr(16 + 4*e, 4)
O = lambda e: 80 + 16*e
C = lambda e: 112 + 16*e
vm.wait("kvg0"); a("s_barrier")
stamp("kv0")
if "clk" in XP: a("s_memtime s[96:97]\ns_memrealtime s[98:99]\ns_waitcnt lgkmcnt(0)")
a(f"ds_read_b128 {Kb(0)}, {kaddr(0)}\nds_read_b128 {Kb(1)}, {kaddr(1)}\ns_waitcnt lgkmcnt(1)")
for e in range(2): a(f"v_mfma_f32_32x32x16_bf16 {vr(32+16*e,16)}, {Kb(0)}, {Q(e)}, 0")
def rowmax(S, dst, first):
    for i in range(0, 16, 2):
        if first and i == 0: a(f"v_max_f32 v{dst}, v{S}, v{S+1}")
        else: a(f"v_max3_f32 v{dst}, v{S+i}, v{S+i+1}, v{dst}")
def negbcast(src, e):
    a(f"v_mov_b32 v6, v{src}\nv_permlane32_swap_b32 v{src}, v6\nv_max_f32 v{src}, v{src}, v6\nv_sub_f32 v{C(e)}, 0, v{src}")
    for i in range(1, 16): a(f"v_mov_b32 v{C(e)+i}, v{C(e)}")
for e in range(2): rowmax(32 + 16*e, 4 + e, True)
for e in range(2): negbcast(4 + e, e)
a(f"v_mfma_f32_32x32x16_bf16 {vr(Sb(0),16)}, {Kb(0)}, {Q(0)}, {vr(C(0),16)}")

plan = {}
TP, TR = 19, 28
def put(t, slot, x): plan.setdefault((t, slot), []).append(x)
PREV = {"e1x": ("e0", 0), "o0": ("e1", 0), "e1": ("e0", 0), "eq": ("o1", -1), "oq": ("e1", 0), "e0": ("o1", -1)}
assert True
def vitem(t, slot, x):
    pre, ins, tag, post = x
    ps, dt = PREV[slot]
    pre = [p + " " for p in pre]
    m0 = [p for p in pre if " m0," in p]; rest = [p for p in pre if " m0," not in p]
    if t + dt < 0 or len(pre) > 2:
        pp, dd = PREV[ps] if ps in PREV else ("o0", 0)
        if t + dt + dd < 0: put(t, slot, ("salu", pre))
        else: put(t + dt + dd, pp + "a", ("salu", rest)); put(t + dt, ps + "a", ("salu", m0))
    else: put(t + dt, ps + "a", ("salu", pre))
    put(t, slot, ("vm", ins, tag, m0[0] if m0 else None))
    if post: put(t, slot, ("salu", post))
for i in range(2, 8): vitem((i - 2) // 2, ("e1", "o0")[i & 1], kv_group(i))
for i in range(8, 16): vitem(21 + (i - 8) // 2, ("e1", "o0")[i & 1], kv_group(i))
vitem(25, "e1", kv_group(16))
for n, so in enumerate(("0", "s20", "s21", "s22")):
    vitem(3 + (n >> 1), ("e1", "o0")[n & 1], ([f"s_add_u32 m0, s68, {n*1024}"], [f"buffer_load_dwordx4 v176, {R2}, {so} offen lds"], "praw", []))
put(1, "eq", ("vm", [f"buffer_load_dword v253, v198, {WS}, s67 offen sc1"], None))
for n in range(2):
    put(1 + n, "oq", ("vm", [f"buffer_store_dwordx4 v[16:19], v3, {WS}, s{16+n} offen offset:{i*1024} sc1" for i in range(2)], None))
put(0, "eq", ("vm", [f"buffer_store_dword v16, v217, {WS}, 0 offen sc1"], None))
put(46, "e1", ("vm", [f"buffer_load_dword v200, v202, {WS}, 0 offen"], None))
for j in range(8): put(49 + j, "oq", ("vm", [f"buffer_load_dwordx4 {vr(220+4*j,4)}, v218, {WS}, s{18 if j < 4 else 30} offen offset:{(j & 3)*64} sc1"], None))
put(5, "o0", ("vm", [f"buffer_load_dword v200, v173, {R0}, s19 offen"], None))
put(3, "eq", ("vm", [f"buffer_load_dword v200, v198, {WS}, {sGRP} offen sc1"], None))
vitem(5, "e1x", (["s_mov_b32 m0, s35"], [f"buffer_load_dwordx4 v212, {R3}, 0 offen lds"], "praw", []))
put(2, "eq", ("vm", [f"buffer_load_dwordx4 v[204:207], v216, {WS}, s25 offen sc1"], None))
put(0, "oq", ("vm", [f"buffer_load_dwordx4 v[208:211], v216, {WS}, s25 offen offset:64 sc1"], None))
put(TP - 1, "o1b", ("wait", "praw"))
put(TP - 1, "o1x", ("ds", ["ds_read_b64_tr_b16 v[220:221], v213", "ds_read_b64_tr_b16 v[222:223], v213 offset:256"]))
put(TP, "e0", ("salu", [f"v_cvt_pk_bf16_f32 v{204+i}, v{204+2*i}, v{205+2*i}" for i in range(4)]))
put(TP, "o0", ("salu", ["v_mfma_f32_16x16x32_bf16 v[224:227], v[8:11], v[220:223], 0"]))
put(TP + 2, "e0", ("salu", [f"v_mfma_f32_16x16x32_bf16 {vr(228+4*j,4)}, v[204:207], {vr(180+4*j,4)}, 0" for j in range(4)]))
put(TP + 3, "e0", ("salu", ["s_mov_b32 exec_lo, 0xffff0000", "s_mov_b32 exec_hi, 0", "v_mov_b32 v228, v232", "v_mov_b32 v229, v233",
                            "s_mov_b32 exec_lo, 0", "s_mov_b32 exec_hi, 0x0000ffff", "v_mov_b32 v228, v236", "v_mov_b32 v229, v237",
                            "s_mov_b32 exec_hi, 0xffff0000", "v_mov_b32 v228, v240", "v_mov_b32 v229, v241", "s_mov_b64 exec, -1"]))
put(25, "o0", ("vm", [f"buffer_atomic_add_f32 v228, v215, {WS}, s28 offen", f"buffer_atomic_add_f32 v229, v215, {WS}, s29 offen"], None))
put(25, "oq", ("vm", [f"buffer_atomic_add_f32 v224, v214, {WS}, s34 offen"], None))
for j in range(4):
    put(TP + (j >> 1), ("eq", "oq")[j & 1], ("ds", [f"ds_read_b64_tr_b16 {vr(180+4*j,2)}, v177 offset:{j*32}", f"ds_read_b64_tr_b16 {vr(182+4*j,2)}, v178 offset:{j*32}"]))
put(26, "e1", ("vm", [f"buffer_store_dwordx4 {vr(180+4*j,4)}, v3, {WS}, s36 offen offset:{j*1024} sc1" for j in (0, 1)], None))
put(26, "o0", ("vm", [f"buffer_store_dwordx4 {vr(188,4)}, v3, {WS}, s24 offen offset:2048 sc1", f"buffer_store_dwordx4 {vr(192,4)}, v3, {WS}, s37 offen offset:3072 sc1"], "pst"))
put(TR + 2, "oq", ("vm", [f"buffer_atomic_add v199, v198, {WS}, s39 offen sc1"], None))
put(40, "oq", ("vm", [f"buffer_load_dword v201, v196, {WS}, s38 offen sc1"], "pchk"))
for k in range(36):
    t, hf = TR + (k >> 1), k & 1
    if k < 32:
        T2, s_ = k >> 2, k & 3
        if s_ == 0: pass
        vitem(t, ("e1", "o0")[hf], ([f"s_add_u32 s75, s{70+s_}, {T2*128}", f"s_add_u32 m0, s77, {(k % 6)*2048}"],
                                    [f"buffer_load_dwordx4 v168, {R0}, s75 offen lds", f"buffer_load_dwordx4 v169, {R0}, s75 offen offset:1024 lds"], f"ring{k}", []))
    if k >= 4:
        T2, s_ = (k - 4) >> 2, (k - 4) & 3
        if hf == 0: put(t - 1, "o1b", ("wait", f"ring{k-3}"))
        for e_ in range(2): put(t, (("eq", "e0"), ("oq", "o1x"))[hf][e_], ("ds", [f"ds_read_b128 {ar(((2*T2+e_)*4+s_)*4,4)}, v{170+e_} offset:{((k-4) % 6)*2048}"]))
for grp, t0 in ((0, 44), (1, 56), (2, 60)):
    for n, x in enumerate(win_items(1, grp, lin_slot(slotA(4*grp)), f"z2g{grp}")): vitem(t0 + n, "o0", x)
for n in range(8):
    pre = [f"s_lshl_b32 s76, {sW}, 12", "s_add_u32 s74, s76, s69"] if n == 0 else []
    post = ["s_add_u32 s74, s74, 16384", "s_add_u32 s76, s76, 16384"] if n & 1 else []
    vitem(48 + n, "o0", (pre + ["s_mov_b32 m0, s76"], [f"buffer_load_dwordx4 v3, {WS}, s74 offen offset:{(2*(n & 1) + i)*1024} sc1 lds" for i in range(2)], "wo", post))
for n in range(2): put(58 + n, "eq", ("vm", [f"buffer_load_dwordx2 {vr(8+2*j,2)}, v172, {R1}, 0 offen offset:{j*32}" for j in (2*n, 2*n + 1)], None))
if "noextra" in XP: raise SystemExit("noextra unsupported")
syncs = {3: "kvg1", 7: "kvg7", 29: "kvg16", 35: None, 48: None, 60: "wo"}
last_m0 = [None]
def slot(t, k):
    for x in plan.pop((t, k), []):
        if x[0] == "salu":
            for p in x[1]:
                a(p)
                if " m0," in p: last_m0[0] = p
        elif x[0] == "vm":
            if len(x) > 3 and x[3] is not None and x[3] is not last_m0[0]:
                a(x[3]); last_m0[0] = x[3]
            for q_ in x[1]: vm.op(q_, x[2])
        elif x[0] == "ds":
            for q_ in x[1]: a(q_)
        else: vm.wait(x[1])
for u in range(128):
    t, e = u >> 1, u & 1
    S = Sb(u)
    ex = [f"v_exp_f32 v{S+i}, v{S+i}" for i in range(16)]
    pf = "eo"[e]
    if u + 1 < 128:
        t1, e1 = (u + 1) >> 1, (u + 1) & 1
        a(f"v_mfma_f32_32x32x16_bf16 {vr(Sb(u+1),16)}, {Kb(t1)}, {Q(e1)}, {vr(C(e1),16)}")
    a("s_waitcnt lgkmcnt(0)")
    if e == 1 and t + 2 in syncs:
        if syncs[t + 2]: vm.wait(syncs[t + 2])
        a("s_barrier")
    if "tst" in XP and e == 0 and t in (2, 4, 8, 11, 14, 17, 20, 23, 26, 28, 30, 34, 38, 42, 46, 50, 54, 58, 61): stamp(f"t{t}")
    if u == 86:
        vm.wait("pchk")
        a("v_cmp_gt_u32 vcc, 32, v201\ns_nop 1\ns_cmp_lg_u32 vcc_lo, 0\ns_cbranch_scc1 L_pwait\nL_pok:")
    slot(t, pf + "q")
    for x in ex[0:3]: a(x)
    Sp, tp, ep = Sb(u - 1), (u - 1) >> 1, (u - 1) & 1
    if u > 0: a(f"v_smfmac_f32_32x32x32_bf16 {vr(O(ep),16)}, {Vb(tp,0)}, {vr(Sp,8)}, v30")
    slot(t, pf + "0b")
    if e == 0:
        slot(t, "e0a"); a(f"ds_read_b128 {Vb(t,0)}, {vaddr(t,0)}"); slot(t, "e0")
    else:
        slot(t, "o0"); slot(t, "o0a")
    for x in ex[3:7]: a(x)
    if u > 0: a(f"v_smfmac_f32_32x32x32_bf16 {vr(O(ep),16)}, {Vb(tp,1)}, {vr(Sp+8,8)}, v30")
    slot(t, pf + "1b")
    if e == 0:
        slot(t, "e1"); slot(t, "e1x"); slot(t, "e1a"); a(f"ds_read_b128 {Vb(t,1)}, {vaddr(t,1)}")
    else:
        slot(t, "o1a")
        if t + 2 < 64: a(f"ds_read_b128 {Kb(t+2)}, {kaddr(t+2)}")
        slot(t, "o1x")
    for x in ex[7:16]: a(x)
assert not plan, plan.keys()
for m in range(2): a(f"v_smfmac_f32_32x32x32_bf16 {vr(O(1),16)}, {Vb(63,m)}, {vr(Sb(127)+8*m,8)}, v30")
if "clk" in XP: a("s_memtime s[100:101]\ns_memrealtime s[78:79]\ns_waitcnt lgkmcnt(0)\ns_sub_u32 s100, s100, s96\ns_sub_u32 s101, s78, s98")
stamp("attn")
Lfb, Lok = a.label("fb"), a.label("ok")
def getl():
    for e in range(2): a(f"v_mov_b32 v{4+2*e}, v{O(e)+8}\nv_mov_b32 v{5+2*e}, v{O(e)+8}")
    for e in range(2): a(f"v_permlane32_swap_b32 v{4+2*e}, v{5+2*e}")
a(f"""
s_lshl_b32 s3, {sXCC}, 2
s_lshl_b32 s3, 8, s3
v_readfirstlane_b32 s64, v253
s_lshl_b32 s65, {sCB}, 2
v_add_u32 v254, s65, v198
v_lshlrev_b32 v255, 2, v0
s_cmp_eq_u32 s64, s3
s_cselect_b32 {sFAST}, {0 if FORCE_SLOW else 1}, 0
v_mov_b32 v32, {fbits(2.0**40 if not FORCE_FB else -1.0)}
""")
if "probe" in XP:
    a(f"s_cmp_eq_u32 {sFAST}, 0\ns_cbranch_scc0 L_pr\ns_mov_b32 s3, 12\nL_pr0:\ns_sleep 127\ns_sub_u32 s3, s3, 1\ns_cmp_lg_u32 s3, 0\ns_cbranch_scc1 L_pr0\nL_pr:")
getl()
a(f"v_add_f32 v5, v4, v6\nv_cmp_nlt_f32 vcc, v5, v32\ns_cbranch_vccnz {Lfb}\n{Lok}:")
for e in range(2): a(f"v_rcp_f32 v{4+2*e}, v{4+2*e}")
for e in range(2):
    for i in range(4): a(f"v_pk_mul_f32 {vr(O(e)+2*i,2)}, {vr(O(e)+2*i,2)}, {vr(4+2*e,2)} op_sel_hi:[1,0]")
for e in range(2):
    for i in range(4): a(f"v_cvt_pk_bf16_f32 v{32+4*e+i}, v{O(e)+2*i}, v{O(e)+2*i+1}")
both_data(lambda sc: [vm.op(f"buffer_store_dwordx4 {vr(32+4*e,4)}, v3, {WS}, s16 offen offset:{e*1024}{sc}") for e in range(2)])
rd3 = lambda T, j: a(f"ds_read_b128 {vr(144+(T&1)*16+4*j,4)}, v3 offset:{L_WO + T*4096 + j*1024}")
for j in range(4): rd3(0, j)
hop_signal(1)
stamp("opub")
round_bf16(list(range(220, 236)))
for i in range(8): a(f"v_lshlrev_b32 v{32+2*i}, 16, v{8+i}\nv_and_b32 v{33+2*i}, 0xffff0000, v{8+i}")
a(f"""
v_mov_b32 v31, v218
s_lshl_b32 s64, s55, 1
s_add_u32 s64, s64, {WS_X}
s_lshr_b32 s68, s55, 4
s_lshl_b32 s3, {sCB}, 7
s_add_u32 s69, s68, s3
s_add_u32 s67, s69, {WS_ST1}
v_lshlrev_b32 v6, 3, v1
""")
hop_wait(1)
stamp("C")
def frag_load(T, tag):
    vm.op(f"buffer_load_dwordx4 {vr(64+4*T,4)}, v3, {WS}, s64 offen offset:{(T & 3)*1024} sc1", f"{tag}{T}")
    if T & 3 == 3: a("s_add_u32 s64, s64, 4096")
AH = 8
for T in range(AH): frag_load(T, "o")
fragloop(16, 4, rd3,
         lambda T, j: a(f"v_mfma_f32_16x16x32_bf16 {vr(128+4*j,4)}, {vr(144+(T&1)*16+4*j,4)}, {vr(64+4*T,4)}, {'0' if T == 0 else vr(128+4*j,4)}"),
         before=lambda T: vm.wait(f"o{T}"), after=lambda T, j: frag_load(T + AH, "o") if j == 0 and T + AH < 16 else None, preissued=True)
stamp("p3mm")
for i in range(8): a(f"v_pk_fma_f32 {vr(32+2*i,2)}, {vr(128+2*i,2)}, {vr(220+2*i,2)}, {vr(32+2*i,2)}")
for i in range(8): a(f"v_cvt_pk_bf16_f32 v{8+i}, v{32+2*i}, v{33+2*i}")
for i in range(8): a(f"v_lshlrev_b32 v{32+2*i}, 16, v{8+i}\nv_and_b32 v{33+2*i}, 0xffff0000, v{8+i}")
for i in range(8): a(f"v_pk_mul_f32 {vr(236+2*i,2)}, {vr(236+2*i,2)}, {vr(32+2*i,2)}")
for i in range(8): a(f"v_cvt_pk_bf16_f32 v{80+i}, v{236+2*i}, v{237+2*i}")
both_data(lambda sc: [vm.op(f"buffer_store_dwordx4 {vr(80+4*p,4)}, v3, {WS}, s17 offen offset:{p*1024}{sc}") for p in range(2)])
a("v_pk_mul_f32 v[88:89], v[32:33], v[32:33]\nv_pk_add_f32 v[90:91], v[32:33], v[34:35]\nv_pk_mul_f32 v[94:95], v[34:35], v[34:35]\nv_pk_add_f32 v[96:97], v[36:37], v[38:39]")
for i in range(2, 8): a(f"v_pk_fma_f32 {vr(88 + 6*(i & 1),2)}, {vr(32+2*i,2)}, {vr(32+2*i,2)}, {vr(88 + 6*(i & 1),2)}")
for i in range(4, 8): a(f"v_pk_add_f32 {vr(90 + 6*(i & 1),2)}, {vr(90 + 6*(i & 1),2)}, {vr(32+2*i,2)}")
a("v_pk_add_f32 v[88:89], v[88:89], v[94:95]\nv_pk_add_f32 v[90:91], v[90:91], v[96:97]\nv_add_f32 v93, v88, v89\nv_add_f32 v92, v90, v91")
xgroup_sum2(92, 94, 93, 95)
a("s_mov_b64 exec, 0xffff")
both_data(lambda sc: vm.op(f"buffer_store_dwordx2 v[92:93], v6, {WS}, s67 offen{sc}"))
a(f"""
s_mov_b64 exec, -1
v_add_u32 v25, 0xe000, v3
v_add_u32 v26, 0xe000, v25
v_and_b32 v4, 7, v1
v_lshlrev_b32 v4, 7, v4
v_lshl_add_u32 v30, v2, 5, v4
v_lshlrev_b32 v4, 8, v2
v_lshl_add_u32 v27, v1, 3, v4
""")
stamp("p3ep")
hop_signal(2)
stamp("ypub")
WB = (32, 204)
def rdl(dst, addr):
    w_, off = divmod(addr, 0xe000)
    a(f"ds_read_b128 {vr(dst,4)}, v{(3, 25, 26)[w_]} offset:{off}")
a(f"""
s_barrier
s_and_b32 s3, {sW}, 1
s_mul_i32 s66, s3, 3584
s_lshl_b32 s3, s3, 10
s_add_u32 m0, s3, {L_SM}
s_mul_i32 s3, {sCB}, 448
s_add_u32 s66, s66, s3
s_add_u32 s66, s66, {WS_C12}
v_add_u32 v6, {7168 - 448}, v3
v_cmp_gt_u32 vcc, 28, v0
v_cndmask_b32 v6, v6, v3, vcc
""")
vm.op(f"buffer_load_dwordx4 v6, {WS}, s66 offen sc1 lds")
for x in win_items(1, 3, [f"s_mul_i32 s75, {sW}, {SLOT}", f"s_sub_u32 s75, s75, {SLOT}", f"s_cmp_eq_u32 {sW}, 0", f"s_cselect_b32 s75, {slotA(12)}, s75"], "z2g3"): emit_item(x)
for j in range(7): rdl(WB[0] + 4*j, slot_z2(0) + j*1024)
a(f"v_add_u32 v29, {L_SM}, v31\nv_lshlrev_b32 v24, 2, v1\nv_add_u32 v24, {L_SM + 1024}, v24\ns_add_u32 s66, s68, {WS_ST1}")
hop_wait(2)
stamp("D")
vm.op(f"buffer_load_dwordx2 v[172:173], v27, {WS}, s66 offen sc1")
vm.op(f"buffer_load_dwordx2 v[174:175], v27, {WS}, s66 offen offset:128 sc1", "st1")
for T in range(AH): frag_load(T, "y")
a(f"v_lshlrev_b32 v4, 7, v0\nv_mov_b32 v27, {OOB}\nv_cmp_gt_u32 vcc, 14, v0\nv_cndmask_b32 v27, v27, v4, vcc")
vm.wait("st1")
a("v_pk_add_f32 v[172:173], v[172:173], v[174:175]")
xgroup_sum2(172, 174, 173, 175)
finish_stats([(172, 173, 62, 28, None)], 512)
a(f"v_mul_f32 v62, v62, v28\nv_mov_b32 v60, {fbits(-2*math.log2(math.e)*math.sqrt(2/math.pi))}\nv_mov_b32 v61, v60")
for i in range(4): a(f"ds_bpermute_b32 v{20+i}, v31, v28 offset:{4*i}\nds_bpermute_b32 v{16+i}, v31, v62 offset:{4*i}")
CP = [232, 234, 236, 238, 240, 242, 244]
z1items = {g_: win_items(0, g_, lin_slot(slotB(3) if g_ == 0 else slotA(4*(g_ - 1))), f"z1g{g_}") for g_ in range(4)}
def bef(T):
    if T == 11: a("s_waitcnt lgkmcnt(0)\ns_barrier")
    vm.wait(f"y{T}")
def aft(T, j):
    if j == 0 and T + AH < 16: frag_load(T + AH, "y")
    if j == 5 and T in (9, 11, 13, 15):
        vm.op(f"buffer_load_dword v252, v27, {WS}, s26 offen sc1"); a("s_add_u32 s26, s26, 1792")
    if j == 3 and 6 <= T < 10: emit_item(z1items[0][T - 6])
    if j == 3 and 11 <= T < 15: emit_item(z1items[1][T - 11])
fragloop(16, 7, lambda T, j: rdl(WB[T & 1] + 4*j, slot_z2(T) + j*1024),
         lambda T, j: a(f"v_mfma_f32_16x16x32_bf16 {vr(128+4*j,4)}, {vr(64+4*T,4)}, {vr(WB[T & 1]+4*j,4)}, {'0' if T == 0 else vr(128+4*j,4)}"),
         before=bef, after=aft, preissued=True)
for j in range(7): a(f"ds_read2_b32 {vr(CP[j],2)}, v24 offset0:{j*16} offset1:{j*16 + 112}")
stamp("z2mm")
a(f"s_mov_b32 s64, {fbits(-2*math.log2(math.e)*math.sqrt(2/math.pi)*0.044715)}\ns_mov_b32 s65, s64\ns_mov_b32 s66, 1.0\ns_mov_b32 s67, 1.0\ns_waitcnt lgkmcnt(0)")
def gelu(acc, tmp, mid=None):
    P = range(14)
    for i in P: a(f"v_pk_mul_f32 {vr(tmp+2*i,2)}, {vr(acc+2*i,2)}, {vr(acc+2*i,2)}")
    for i in P: a(f"v_pk_fma_f32 {vr(tmp+2*i,2)}, {vr(tmp+2*i,2)}, s[64:65], v[60:61]")
    for i in P: a(f"v_pk_mul_f32 {vr(tmp+2*i,2)}, {vr(tmp+2*i,2)}, {vr(acc+2*i,2)}")
    for i in range(28): a(f"v_exp_f32 v{tmp+i}, v{tmp+i}")
    if mid: mid()
    for i in P: a(f"v_pk_add_f32 {vr(tmp+2*i,2)}, {vr(tmp+2*i,2)}, s[66:67]")
    for i in range(28): a(f"v_rcp_f32 v{tmp+i}, v{tmp+i}")
    for i in P: a(f"v_pk_mul_f32 {vr(acc+2*i,2)}, {vr(acc+2*i,2)}, {vr(tmp+2*i,2)}")
for i in range(14): a(f"v_pk_fma_f32 {vr(32+2*i,2)}, {vr(16+2*(i & 1),2)}, {vr(CP[i >> 1],2)}, {vr(CP[i >> 1],2)} op_sel:[0,0,1] op_sel_hi:[1,0,1]")
for i in range(14): a(f"v_pk_fma_f32 {vr(128+2*i,2)}, {vr(128+2*i,2)}, {vr(20+2*(i & 1),2)}, {vr(32+2*i,2)}")
gelu(128, 32)
for j in range(7): rdl(WB[0] + 4*j, slot_z1(0) + j*1024) if False else None
for h in range(2):
    a(f"v_pk_add_f32 {vr(156+2*h,2)}, {vr(128+2*h,2)}, {vr(132+2*h,2)}\nv_pk_mul_f32 {vr(160+2*h,2)}, {vr(128+2*h,2)}, {vr(128+2*h,2)}")
for j in range(1, 7):
    for h in range(2):
        if j > 1: a(f"v_pk_add_f32 {vr(156+2*h,2)}, {vr(156+2*h,2)}, {vr(128+4*j+2*h,2)}")
        a(f"v_pk_fma_f32 {vr(160+2*h,2)}, {vr(128+4*j+2*h,2)}, {vr(128+4*j+2*h,2)}, {vr(160+2*h,2)}")
dppsum(range(156, 164), (8, 4, 2, 1))
a(f"s_add_u32 s70, s69, {WS_ST2}\nv_lshlrev_b32 v6, 5, v2\ns_mov_b32 exec_lo, 0x00010001\ns_mov_b32 exec_hi, 0x00010001")
both_data(lambda sc: (vm.op(f"buffer_store_dwordx4 v[156:159], v6, {WS}, s70 offen{sc}"), vm.op(f"buffer_store_dwordx4 v[160:163], v6, {WS}, s70 offen offset:16{sc}", "sst")))
a("s_mov_b64 exec, -1")
vm.wait("z1g1")
a("s_barrier")
stamp("spub")
def z2_publish():
    hop_wait(3)
    stamp("S")
    a(f"s_add_u32 s3, s68, {WS_ST2}")
    vm.op(f"buffer_load_dwordx4 v[164:167], v30, {WS}, s3 offen sc1")
    vm.op(f"buffer_load_dwordx4 v[168:171], v30, {WS}, s3 offen offset:16 sc1", "st2")
    srd(R1, P_BSP, 4096)
    a("s_lshr_b32 s3, s55, 9\nv_lshlrev_b32 v4, 1, v1")
    vm.op(f"buffer_load_ushort v16, v4, {R1}, s3 offen", "bsp")
    a(f"""
s_lshl_b32 s70, {sCB}, 6
s_lshl_b32 s3, {sRB}, 1
s_add_u32 s70, s70, s3
s_lshr_b32 s3, {sW}, 1
s_add_u32 s70, s70, s3
s_mul_i32 s70, s70, 7168
s_and_b32 s3, {sW}, 1
s_lshl_b32 s3, s3, 9
s_add_u32 s70, s70, s3
s_add_u32 s70, s70, {WS_Z2}
s_add_u32 s71, s70, 4096
v_and_b32 v4, 1, v2
v_lshlrev_b32 v4, 10, v4
v_lshrrev_b32 v5, 1, v2
v_lshl_add_u32 v4, v5, 8, v4
v_lshl_add_u32 v6, v1, 4, v4
""")
    vm.wait("st2")
    dppsum(range(164, 172), (4, 2, 1))
    finish_stats([(164+i, 168+i, 156+i, 160+i, None) for i in range(4)], 896)
    for h in range(2): a(f"v_pk_mul_f32 {vr(156+2*h,2)}, {vr(156+2*h,2)}, {vr(160+2*h,2)}")
    for i in range(14): a(f"v_pk_fma_f32 {vr(128+2*i,2)}, {vr(128+2*i,2)}, {vr(160+2*(i & 1),2)}, {vr(156+2*(i & 1),2)}")
    for i in range(14): a(f"v_cvt_pk_bf16_f32 v{232+i}, v{128+2*i}, v{129+2*i}")
    a("v_mov_b32 v246, v244\nv_mov_b32 v247, v245")
    for p in range(4): a(f"v_permlane16_swap_b32 v{232+4*p}, v{234+4*p}\nv_permlane16_swap_b32 v{233+4*p}, v{235+4*p}")
    vm.op(f"buffer_store_dwordx4 v[232:235], v6, {WS}, s70 offen sc1")
    vm.op(f"buffer_store_dwordx4 v[236:239], v6, {WS}, s70 offen offset:2048 sc1")
    vm.op(f"buffer_store_dwordx4 v[240:243], v6, {WS}, s71 offen sc1")
    a("s_mov_b32 exec_lo, 0x0000ffff\ns_mov_b32 exec_hi, 0x0000ffff")
    vm.op(f"buffer_store_dwordx4 v[244:247], v6, {WS}, s71 offen offset:2048 sc1", "zst")
    a(f"""
s_mov_b64 exec, -1
s_sub_u32 s71, s71, 4096
v_lshrrev_b32 v4, 2, v0
v_lshlrev_b32 v4, 10, v4
v_and_b32 v5, 3, v0
v_lshl_add_u32 v4, v5, 7, v4
v_mov_b32 v18, {OOB}
v_cmp_gt_u32 vcc, 28, v0
v_cndmask_b32 v18, v18, v4, vcc
s_lshl_b32 s70, {sRB}, 3
s_add_u32 s70, s70, {sCB}
s_lshl_b32 s70, s70, 9
s_lshl_b32 s3, {sW}, 7
s_add_u32 s70, s70, s3
s_add_u32 s70, s70, {F_E}
""")
    stamp("zst")
def bef(T):
    if T == 2: hop_signal(3, "sst")
    if T == TS: z2_publish()
    if T == TE:
        vm.wait("zst"); vm.op(f"buffer_store_dword v17, v63, {WS}, s70 offen sc1")
        vm.op(f"buffer_load_dword v252, v18, {WS}, s71 offen sc1")
        stamp("zpub")
    if T == 7: a("s_barrier")
def aft(T, j):
    if T < 2 and j in (1, 4): emit_item(z1items[2][2*T + (j == 4)])
    if 2 <= T < 4 and j in (1, 4): emit_item(z1items[3][2*(T - 2) + (j == 4)])
TS, TE = 7, 12
a(f"v_mov_b32 v17, 1\nv_mov_b32 v63, {OOB}\nv_cmp_eq_u32 vcc, 0, v0\nv_cndmask_b32 v63, v63, v0, vcc")
fragloop(16, 7, lambda T, j: rdl(WB[T & 1] + 4*j, slot_z1(T) + j*1024),
         lambda T, j: a(f"v_mfma_f32_16x16x32_bf16 {vr(176+4*j,4)}, {vr(WB[T & 1]+4*j,4)}, {vr(64+4*T,4)}, {'0' if T == 0 else vr(176+4*j,4)}"), before=bef, after=aft)
for j in range(7): a(f"ds_read_b128 {vr(204+4*j,4)}, v29 offset:{j*64}\nds_read_b128 {vr(128+4*j,4)}, v29 offset:{448 + j*64}")
a("s_barrier")
stamp("z1mm")
a(f"s_lshl_b32 s70, {sW}, 15\ns_lshl_b32 s3, {sCB}, 9\ns_add_u32 s70, s70, s3\ns_add_u32 s70, s70, {F_E}\nv_lshrrev_b32 v6, 2, v0\nv_lshlrev_b32 v6, 12, v6\nv_and_b32 v5, 3, v0\nv_lshl_add_u32 v6, v5, 7, v6")
a(f"s_lshl_b32 s72, {sCB}, 2\ns_add_u32 s72, s72, {sW}\ns_mul_i32 s72, s72, {16*7168}\ns_add_u32 s72, s72, {WS_Z2}\ns_add_u32 s73, s72, 4096")
poll(f"buffer_load_dword v4, v6, {WS}, s70 offen sc1", "v_cmp_gt_u32 vcc, 1, v4", "0xffffffff")
stamp("E")
ZB = lambda T: (64, 92, 32)[T % 3]
def ldz(T, j):
    vm.op(f"buffer_load_dwordx4 {vr(ZB(T)+4*j,4)}, v3, {WS}, s{72 + (j >> 2)} offen offset:{(j & 3)*1024} sc1", f"z{T}_{j}")
    if j == 6: a("s_add_u32 s72, s72, 7168\ns_add_u32 s73, s73, 7168")
for j in range(7): ldz(0, j)
a("s_waitcnt lgkmcnt(0)")
for i in range(14): a(f"v_pk_fma_f32 {vr(128+2*i,2)}, {vr(204+2*i,2)}, v[62:63], {vr(128+2*i,2)} op_sel_hi:[1,0,1]")
for i in range(14): a(f"v_pk_fma_f32 {vr(176+2*i,2)}, {vr(176+2*i,2)}, v[28:29], {vr(128+2*i,2)} op_sel_hi:[1,0,1]")
gelu(176, 32, mid=lambda: [ldz(1, j) for j in range(7)])
for i in range(14): a(f"v_cvt_pk_bf16_f32 v{240+i}, v{176+2*i}, v{177+2*i}")
Z1P = list(range(240, 254))
stamp("gelu1")
def wout_setup(n0):
    a(f"s_mul_i32 s3, {sCB}, {28*4096}\ns_add_u32 s75, s3, {WS_WOUTF + n0*4096}\ns_lshl_b32 s76, {sW}, 10\ns_add_u32 s74, s75, s76\ns_add_u32 s76, s76, {L_WOUT + n0*4096}")
def wout_one(tag):
    a("s_mov_b32 m0, s76\ns_add_u32 s76, s76, 4096")
    vm.op(f"buffer_load_dwordx4 v3, {WS}, s74 offen sc1 lds", tag)
    a("s_add_u32 s74, s74, 4096")
def wout_dma(n0, n1, tag):
    wout_setup(n0)
    for n in range(n0, n1): wout_one(tag)
wout_setup(0)
for s_ in range(1, 4):
    a(f"s_add_u32 s3, {sW}, {s_}\ns_and_b32 s3, s3, 3\ns_mul_i32 s3, s3, {21*1024}\ns_add_u32 s3, s3, {L_RED + (s_-1)*7168}\nv_add_u32 v{16+s_}, s3, v3")
a(f"s_mul_i32 s3, {sW}, {21*1024}\ns_add_u32 s3, s3, {L_RED}\nv_add_u32 v20, s3, v3\nv_lshlrev_b32 v16, 16, v16")
def p5(T, j, s_):
    d = vr(128 + (s_*7 + j)*4, 4)
    a(f"v_mfma_f32_16x16x32_bf16 {d}, {vr(ZB(T)+4*j,4)}, {ar((T*4+s_)*4,4)}, {'0' if T == 0 else d}")
for T in range(16):
    for j in range(7):
        vm.wait(f"z{T}_{j}")
        for s_ in ((0, 1, 2, 3) if T < 13 else (1, 2, 3)):
            p5(T, j, s_)
            if s_ == 0 and T + 2 < 16 or s_ == 1 and T == 13: ldz(T + 2, j)
            if s_ == 2 and (j == 3 or (j == 0 and T >= 13)): wout_one("wout0")
stamp("p5mm")
for n in range(21):
    a(f"ds_write_b128 v{17 + n // 7}, {vr(128 + (7 + n)*4, 4)} offset:{(n % 7)*1024}")
    p5(13 + n // 7, n % 7, 0)
for i in range(14): a(f"v_lshlrev_b32 v{156+2*i}, 16, v{Z1P[i]}\nv_and_b32 v{157+2*i}, 0xffff0000, v{Z1P[i]}")
for i in range(14): a(f"v_pk_add_f32 {vr(128+2*i,2)}, {vr(128+2*i,2)}, v[16:17] op_sel_hi:[1,0]")
a(f"""
s_lshl_b32 s68, s55, 1
s_add_u32 s68, s68, {WS_X}
s_mul_i32 s64, {sCB}, 3072
s_add_u32 s64, s64, s68
s_lshl_b32 s65, {sCB}, 9
s_add_u32 s65, s65, s68
s_add_u32 s65, s65, {24*1024}
v_lshrrev_b32 v6, 5, v0
v_lshlrev_b32 v6, 8, v6
v_lshl_add_u32 v6, v1, 4, v6
s_waitcnt lgkmcnt(0)
s_barrier
""")
stamp("red")
order = [(k, j) for j in range(7) for k in range(3)]
for k, j in order[:15]: a(f"ds_read_b128 {vr(32+(k*7+j)*4,4)}, v20 offset:{(k*7+j)*1024}")
for j in range(7):
    for k, jj in order[15 + 3*j:18 + 3*j]: a(f"ds_read_b128 {vr(32+(k*7+jj)*4,4)}, v20 offset:{(k*7+jj)*1024}")
    a(f"s_waitcnt lgkmcnt({min(15, 18 - 3*j)})")
    for h in range(2):
        a(f"v_pk_add_f32 {vr(32+4*j+2*h,2)}, {vr(32+4*j+2*h,2)}, {vr(60+4*j+2*h,2)}\nv_pk_add_f32 {vr(128+4*j+2*h,2)}, {vr(128+4*j+2*h,2)}, {vr(88+4*j+2*h,2)}")
    for h in range(2): a(f"v_pk_add_f32 {vr(128+4*j+2*h,2)}, {vr(128+4*j+2*h,2)}, {vr(32+4*j+2*h,2)}")
    for h in range(2): a(f"v_pk_mul_f32 {vr(128+4*j+2*h,2)}, {vr(128+4*j+2*h,2)}, {vr(156+4*j+2*h,2)}")
    for h in range(2): a(f"v_cvt_pk_bf16_f32 v{184+2*j+h}, v{128+4*j+2*h}, v{129+4*j+2*h}")
a("v_mov_b32 v198, v196\nv_mov_b32 v199, v197\nv_permlane16_swap_b32 v196, v198\nv_permlane16_swap_b32 v197, v199")
def pubu(sc):
    for p in range(3): vm.op(f"buffer_store_dwordx4 {vr(184+4*p,4)}, v3, {WS}, s64 offen offset:{p*1024}{sc}")
    a("s_mov_b32 exec_lo, 0x0000ffff\ns_mov_b32 exec_hi, 0x0000ffff")
    vm.op(f"buffer_store_dwordx4 v[196:199], v6, {WS}, s65 offen{sc}")
    a("s_mov_b64 exec, -1")
pubu(' sc1')
hop_signal(4)
stamp("upub")
a("s_barrier")
rd6 = lambda n, j: rdl(160 + (n & 1)*16 + 4*j, L_WOUT + n*4096 + j*1024)
for j in range(4): rd6(0, j)
wout_dma(19, 28, "wout1")
hop_wait(4)
stamp("F")
steps = []
for cbp in range(8):
    for p in range(3): steps.append((cbp*3 + p, 112*cbp + 32*p, False))
    if cbp & 1: steps.append((24 + (cbp >> 1), 224*(cbp >> 1) + 96, True))
a("s_mov_b32 s64, s68")
for n in range(1, 7): a(f"s_add_u32 s{64+n if n < 4 else 66+n}, s64, {4096*n}")
US = ["s64", "s65", "s66", "s67", "s70", "s71", "s72"]
def uload(n):
    st = steps[n][0]
    vm.op(f"buffer_load_dwordx4 {vr(32+4*n,4)}, v3, {WS}, {US[st >> 2]} offen offset:{(st & 3)*1024} sc1", f"u{n}")
for n in range(AH): uload(n)
a(f"s_lshl_b32 s74, {sCB}, 8\ns_add_u32 s74, s74, {WS_G2 + 2048}")
def aft6(n, j):
    if j == 0 and n + AH < 28: uload(n + AH)
    if j == 0 and 28 <= n + AH < 32: vm.op(f"buffer_load_dwordx4 {vr(216+4*(n+AH-28),4)}, v31, {WS}, s74 offen offset:{(n+AH-28)*64} sc1", "gb")
stamp("u_iss")
def bef(n):
    if n == 18: a("s_barrier")
    vm.wait(f"u{n}")
fragloop(28, 4, rd6,
         lambda n, j: a(f"v_mfma_f32_16x16x32_bf16 {vr(144+4*j,4)}, {vr(160+(n&1)*16+4*j,4)}, {vr(32+4*n,4)}, {'0' if n == 0 else vr(144+4*j,4)}"),
         before=bef, after=aft6, preissued=True)
stamp("p6mm")
vm.wait("gb")
for i in range(8): a(f"v_lshlrev_b32 v{32+2*i}, 16, v{8+i}\nv_and_b32 v{33+2*i}, 0xffff0000, v{8+i}")
for i in range(8): a(f"v_pk_fma_f32 {vr(32+2*i,2)}, {vr(144+2*i,2)}, {vr(216+2*i,2)}, {vr(32+2*i,2)}")
for i in range(8): a(f"v_cvt_pk_bf16_f32 v{48+i}, v{32+2*i}, v{33+2*i}")
for p in range(2): a(f"v_permlane16_swap_b32 v{48+4*p}, v{50+4*p}\nv_permlane16_swap_b32 v{49+4*p}, v{51+4*p}")
srd(R1, P_OUT, 2048 * 1024, "s55")
a(f"v_lshlrev_b32 v4, 10, v1\nv_and_b32 v5, 1, v2\nv_lshl_add_u32 v4, v5, 5, v4\nv_lshrrev_b32 v5, 1, v2\nv_lshl_add_u32 v4, v5, 4, v4\ns_lshl_b32 s3, {sCB}, 7")
for p in range(2): a(f"buffer_store_dwordx4 {vr(48+4*p,4)}, v4, {R1}, s3 offen offset:{p*64} nt")
if AMP:
    a("s_waitcnt vmcnt(0)")
    stamp("end")
    assert AMP[0] != "start"
    a("s_sub_u32 s91, s91, s90\ns_min_u32 s91, s91, 10000\ns_memrealtime s[78:79]\ns_waitcnt lgkmcnt(0)\ns_mov_b32 s92, s78\nL_amp:\ns_sleep 1\ns_memrealtime s[78:79]\ns_waitcnt lgkmcnt(0)\ns_sub_u32 s78, s78, s92\ns_cmp_lt_u32 s78, s91\ns_cbranch_scc1 L_amp")
elif "dbg" in XP:
    a("s_waitcnt vmcnt(0)")
    stamp("end")
    sel = ["xin", "barP", "barB", "kv0", "attn", "C", "D", "z2mm", "zpub", "E", "p5mm", "upub", "F", "p6mm", "end"]
    a("s_not_b32 s3, s80\nv_mov_b32 v32, s3")
    for n, nm in enumerate(sel):
        i = stamp_names.index(nm)
        a(f"s_bfe_u32 s3, s{81 + (i-1)//2}, {hex((16 << 16) | (16*((i-1) & 1)))}\ns_add_u32 s3, s3, s80\nv_writelane_b32 v32, s3, {n+1}")
    a("s_load_dwordx2 s[64:65], s[96:97], 104\ns_waitcnt lgkmcnt(0)")
    srd(R1, 64, 256)
    a(f"v_lshlrev_b32 v4, 2, v0\ns_mov_b64 exec, 0xffff\nbuffer_atomic_umax v32, v4, {R1}, 0 offen sc1\ns_waitcnt vmcnt(0)")
elif STAMPS:
    a("s_waitcnt vmcnt(0)")
    stamp("end")
    for i in range(22): a(f"v_writelane_b32 v32, s{80+i}, {i}")
    a(f"s_lshl_b32 s3, s2, 2\ns_add_u32 s3, s3, {sW}\ns_lshl_b32 s3, s3, 7\ns_add_u32 s3, s3, {WS_STAMP}\nv_lshlrev_b32 v4, 2, v0\ns_mov_b64 exec, 0xffffffff\nbuffer_store_dword v32, v4, {WS}, s3 offen")
a("s_endpgm")
a("L_pwait:")
poll(f"buffer_load_dword v201, v196, {WS}, s38 offen sc1", "v_cmp_gt_u32 vcc, 32, v201", "0xffffffff")
a("s_branch L_pok")
a(f"{Lfb}:")
a(f"""
v_lshrrev_b32 v4, 5, v0
v_mul_u32_u24 v4, 272, v4
v_and_b32 v5, 31, v0
v_lshl_add_u32 v27, v5, 4, v4
v_mov_b32 v4, 0xff800000
v_mov_b32 v5, 0xff800000
s_mov_b32 s64, {WS_KV}
L_fb1:
buffer_load_dwordx4 {Kb(0)}, v3, {WS}, s64 offen offset:1088 sc1
s_waitcnt vmcnt(0)
""")
for e in range(2): a(f"v_mfma_f32_32x32x16_bf16 {vr(32+16*e,16)}, {Kb(0)}, {Q(e)}, 0")
for e in range(2): rowmax(32 + 16*e, 4 + e, False)
a(f"s_add_u32 s64, s64, {REC}\ns_cmp_lt_u32 s64, {WS_KV + 64*REC}\ns_cbranch_scc1 L_fb1")
for e in range(2): negbcast(4 + e, e)
for i in range(32): a(f"v_mov_b32 v{80+i}, 0")
a(f"""
s_mov_b32 s64, {WS_KV}
L_fb2:
buffer_load_dwordx4 {Kb(0)}, v3, {WS}, s64 offen offset:1088 sc1
buffer_load_dwordx4 {Vb(0,0)}, v27, {WS}, s64 offen sc1
buffer_load_dwordx4 {Vb(0,1)}, v27, {WS}, s64 offen offset:544 sc1
s_waitcnt vmcnt(0)
""")
for e in range(2): a(f"v_mfma_f32_32x32x16_bf16 {vr(32+16*e,16)}, {Kb(0)}, {Q(e)}, {vr(C(e),16)}")
for i in range(32): a(f"v_exp_f32 v{32+i}, v{32+i}")
for e in range(2):
    for m in range(2): a(f"v_smfmac_f32_32x32x32_bf16 {vr(O(e),16)}, {Vb(0,m)}, {vr(32+16*e+8*m,8)}, v30")
a(f"s_add_u32 s64, s64, {REC}\ns_cmp_lt_u32 s64, {WS_KV + 64*REC}\ns_cbranch_scc1 L_fb2")
getl()
a(f"s_branch {Lok}\nL_end:\ns_endpgm")

body = a.finish()
head = open("cdna_kernels/" + NAME + ".s.ref").read().split("; Override launch")[0]
src = head + f"""; One persistent launch: 256 workgroups (32 row blocks x 8 column blocks), 4 waves each; generated by gen/gen.py.
; @launch grid=(256,1,1) block=(256,1,1) lds={LDS_BYTES}
.amdgcn_target "amdgcn-amd-amdhsa--gfx950"
.text
.globl {NAME}_kernel
.p2align 8
.type {NAME}_kernel,@function
{NAME}_kernel:
{body}.section .rodata,"a"
.p2align 6
.amdhsa_kernel {NAME}_kernel
  .amdhsa_next_free_vgpr 512
  .amdhsa_next_free_sgpr 102
  .amdhsa_accum_offset 256
  .amdhsa_group_segment_fixed_size 0
  .amdhsa_kernarg_size 120
  .amdhsa_user_sgpr_count 2
  .amdhsa_user_sgpr_kernarg_segment_ptr 1
  .amdhsa_system_sgpr_workgroup_id_x 1
.end_amdhsa_kernel
"""
out = [x for x in sys.argv[1:] if not x.startswith("--")]
open(out[0] if out else "cdna_kernels/" + NAME + ".s", "w").write(src)
if STAMPS:
    open("stamps.txt", "w").write("\n".join(stamp_names)); open(out[0] + ".st", "w").write("\n".join(stamp_names))
print("instructions:", sum(1 for k, _ in a.items if k == "ins"), "hazard nops:", a.nops, file=sys.stderr)
```

```python
import sys, struct, math
from asmlib import Asm

NAME = "adaLN_cond__grouped_kv_mqa__mixer_gmlp__prompt"
STAMPS = "--stamps" in sys.argv or "--cyc" in sys.argv
CYC = "--cyc" in sys.argv
FORCE_SLOW = "--slow" in sys.argv
PADZERO = "--nopadzero" not in sys.argv
XP = [x[5:] for x in sys.argv if x.startswith("--xp=")]
FORCE_FB = "--fallback" in sys.argv

def fbits(x): return "0x%08x" % struct.unpack("<I", struct.pack("<f", x))[0]

F_B, F_HOP, F_P, WS_G2, F_E, WS_C12 = 0, 32768, 49152, 53248, 57344, 188416
WS_MOD, WS_MODT, WS_EPOCH, WS_KV = 0x38000, 0x3B000, 0x3E000, 0x40000
WS_ST1, WS_ST2 = 0x70000, 0x90000
WS_X, WS_Z2, WS_STAMP, WS_SIZE = 0x100000, 0x500000, 0xD00000, 0x1200000
WS_WOF, WS_WOUTF, WS_DUMMY, WS_WINF = 0xD80000, 0xE00000, 0xF00000, 0x1000000
REC = 2112
L_G2 = 16384
L_KV = 28672
L_WQ, L_WKV, L_G0, L_SILU, L_PAR = 28672, 94208, 110592, 126976, 0
L_RING, L_SM = 0, 158720
L_WO = 0
SLOT = 7168
def slotA(i): return 65536 + SLOT * i
def slotB(i): return SLOT * i
def slot_z2(T): return slotA(T) if T < 13 else slotB(T - 13)
def slot_z1(T): return slotB(3 + T) if T < 4 else slotA(T - 4)
L_WOUT, L_RED = 0, 77824
LDS_BYTES = 163840
R0, WS, R1, R2, R3 = "s[4:7]", "s[8:11]", "s[12:15]", "s[56:59]", "s[60:63]"
P_X, P_WQ, P_WK, P_WV, P_WO, P_WIN, P_WSP, P_BSP, P_WOUT, P_C, P_WMOD, P_OUT, P_DBG, P_WS = 16, 18, 20, 22, 24, 28, 30, 32, 34, 36, 38, 40, 42, 44
sRB, sCB, sW, sXCC, sFAST, sIDX, sXCD, sKVW, sGRP = "s46", "s47", "s48", "s49", "s50", "s51", "s52", "s53", "s54"
sEP, sTAG = "s42", "s43"
SPIN = 1 << 17
OOB = 0x7fff0000

a = Asm()
def vr(b, n): return f"v[{b}:{b+n-1}]"
def ar(b, n): return f"a[{b}:{b+n-1}]"

class VM:
    def __init__(s): s.n = 0; s.tags = {}
    def op(s, text, tag=None):
        a(text); s.n += 1
        if tag: s.tags[tag] = s.n
    def tag(s, t): s.tags[t] = s.n
    def wait(s, t):
        k = s.n - s.tags[t]
        if k < 63: a(f"s_waitcnt vmcnt({k})")
    def drain(s): a("s_waitcnt vmcnt(0)")
vm = VM()

def srd(q, ptr, size, off=None):
    b = int(q[2:q.index(":")])
    if off is None:
        a(f"s_mov_b32 s{b}, s{ptr}\ns_mov_b32 s{b+1}, s{ptr+1}\ns_mov_b32 s{b+2}, {size}")
    else:
        a(f"s_add_u32 s{b}, s{ptr}, {off}\ns_addc_u32 s{b+1}, s{ptr+1}, 0\ns_sub_u32 s{b+2}, {size}, {off}")
    a(f"s_mov_b32 s{b+3}, 0x20000")

nstamp = [0]
stamp_names = []
AMP = [x[4:] for x in XP if x.startswith("amp:")]
def stamp(name):
    if AMP and name in ("start", AMP[0]): a(f"s_memrealtime s[78:79]\ns_waitcnt lgkmcnt(0)\ns_mov_b32 s{90 if name == 'start' else 91}, s78")
    if not STAMPS: return
    if "dbg" in XP and name not in ("start", "xin", "barP", "barB", "kv0", "attn", "C", "D", "z2mm", "zpub", "E", "p5mm", "upub", "F", "p6mm", "end"): return
    if "tst" in XP and name in ("xin", "ln1", "h", "kv", "q", "p3mm", "p3ep", "y_iss", "st1", "init", "u_iss", "S", "opub", "ypub", "spub"): return
    i = nstamp[0]; nstamp[0] += 1; stamp_names.append(name)
    if "clk" in XP and i >= 30: return
    assert i < 43
    a("s_memrealtime s[78:79]\ns_waitcnt lgkmcnt(0)" if not CYC else "s_memtime s[78:79]\ns_waitcnt lgkmcnt(0)\ns_lshr_b32 s78, s78, 2")
    if i == 0: a("s_mov_b32 s80, s78" if "ms" not in XP else "s_mov_b32 s80, s76")
    elif i & 1: a(f"s_sub_u32 s{81 + i//2}, s78, s80")
    else: a(f"s_sub_u32 s78, s78, s80\ns_pack_ll_b32_b16 s{80 + i//2}, s{80 + i//2}, s78")

def poll(load, cond, mask, backoff=0, pre=None):
    L, X = a.label("poll"), a.label("pollx")
    if pre: a(pre)
    a(f"s_mov_b64 exec, {mask}\ns_mov_b32 s3, 0\n{L}:\ns_add_u32 s3, s3, 1\ns_cmp_gt_u32 s3, {SPIN}\ns_cbranch_scc1 {X}")
    if backoff: a(f"s_sleep {backoff}")
    a(load); a("s_waitcnt vmcnt(0)"); a(cond)
    a(f"s_cbranch_vccnz {L}\n{X}:\ns_mov_b64 exec, -1")

def both_data(fn): fn(" sc1")
def both(fn):
    S, E = a.label("slow"), a.label("pub")
    n0 = vm.n
    a(f"s_cmp_eq_u32 {sFAST}, 0\ns_cbranch_scc1 {S}")
    fn(""); n1 = vm.n
    a(f"s_branch {E}\n{S}:"); vm.n = n0
    fn(" sc1"); assert vm.n == n1
    a(f"{E}:")

def hop_signal(phase, tag=None):
    a(f"v_mov_b32 v4, {phase}")
    if tag: vm.wait(tag)
    else: a("s_waitcnt vmcnt(0)")
    both(lambda sc: vm.op(f"buffer_store_dword v4, v254, {WS}, {sGRP} offen{sc}"))

def hop_wait(phase):
    poll(f"buffer_load_dword v4, v255, {WS}, {sGRP} offen sc1", f"v_cmp_gt_u32 vcc, {phase}, v4", "0xff")

def xgroup_sum(v, t):
    a(f"v_mov_b32 v{t}, v{v}\nv_permlane32_swap_b32 v{v}, v{t}\nv_add_f32 v{v}, v{v}, v{t}")
    a(f"v_mov_b32 v{t}, v{v}\nv_permlane16_swap_b32 v{v}, v{t}\nv_add_f32 v{v}, v{v}, v{t}")

def xgroup_sum2(v, t, v2, t2):
    for op in ("v_permlane32_swap_b32", "v_permlane16_swap_b32"):
        a(f"v_mov_b32 v{t}, v{v}\nv_mov_b32 v{t2}, v{v2}\n{op} v{v}, v{t}\n{op} v{v2}, v{t2}\nv_add_f32 v{v}, v{v}, v{t}\nv_add_f32 v{v2}, v{v2}, v{t2}")

def capture(fn):
    n = len(a.items); fn(); out = a.items[n:]; del a.items[n:]
    return out

def pipeline(nsteps, reads, compute, nreads, pre=1):
    for T in range(min(pre, nsteps)): reads(T)
    for T in range(nsteps):
        if T + pre < nsteps: reads(T + pre)
        left = min(pre, nsteps - 1 - T) * nreads
        a(f"s_waitcnt lgkmcnt({min(left, 15)})")
        compute(T)

def fragloop(nsteps, nf, read, mfma, before=None, after=None, nper=1, preissued=False):
    if not preissued:
        for j in range(nf): read(0, j)
    for T in range(nsteps):
        if before: before(T)
        for j in range(nf):
            left = (nf - 1 if T + 1 < nsteps else nf - 1 - j) * nper
            a(f"s_waitcnt lgkmcnt({min(left, 15)})")
            mfma(T, j)
            if T + 1 < nsteps: read(T + 1, j)
            if after: after(T, j)

def dppsum(regs, steps):
    for s in steps:
        for r in regs: a(f"v_add_f32_dpp v{r}, v{r}, v{r} row_ror:{s} row_mask:0xf bank_mask:0xf")
def finish_stats(rows, n):
    for s1, s2, mu, r, sd in rows: a(f"v_mul_f32 v{mu}, {fbits(-1.0/n)}, v{s1}\nv_mul_f32 v{s2}, {fbits(1.0/n)}, v{s2}")
    for s1, s2, mu, r, sd in rows: a(f"v_fma_f32 v{s2}, -v{mu}, v{mu}, v{s2}")
    for s1, s2, mu, r, sd in rows: a(f"v_max_f32 v{s2}, 0, v{s2}")
    for s1, s2, mu, r, sd in rows: a(f"v_add_f32 v{s2}, {fbits(1e-5)}, v{s2}")
    for s1, s2, mu, r, sd in rows: a(f"v_rsq_f32 v{r}, v{s2}")
    for s1, s2, mu, r, sd in rows:
        if sd is not None: a(f"v_mul_f32 v{sd}, v{s2}, v{r}")

a(f"""
{"s_memrealtime s[76:77]" if "ms" in XP else ""}
s_cmp_ge_u32 s2, 256
s_cbranch_scc1 L_end
s_load_dwordx16 s[16:31], s[0:1], 0
s_load_dwordx8 s[32:39], s[0:1], 64
s_load_dwordx4 s[40:43], s[0:1], 96
s_load_dwordx2 s[44:45], s[0:1], 112
v_lshrrev_b32 v4, 6, v0
v_and_b32 v0, 63, v0
v_readfirstlane_b32 {sW}, v4
v_and_b32 v1, 15, v0
v_lshrrev_b32 v2, 4, v0
v_lshlrev_b32 v3, 4, v0
s_and_b32 {sXCD}, s2, 7
s_lshr_b32 {sIDX}, s2, 3
s_and_b32 {sCB}, {sIDX}, 7
s_lshr_b32 s3, {sIDX}, 3
s_lshl_b32 {sRB}, {sXCD}, 2
s_add_u32 {sRB}, {sRB}, s3
s_lshr_b32 {sKVW}, {sCB}, 1
s_getreg_b32 {sXCC}, hwreg(HW_REG_XCC_ID, 0, 4)
s_and_b32 {sXCC}, {sXCC}, 7
s_lshl_b32 {sGRP}, {sRB}, 2
s_add_u32 {sGRP}, {sGRP}, {sW}
s_lshl_b32 s55, {sGRP}, 14
s_lshl_b32 {sGRP}, {sGRP}, 7
s_add_u32 {sGRP}, {sGRP}, {F_HOP}
""")
a(f"""
s_cmp_eq_u32 {sW}, 3
s_cbranch_scc0 L_nopf
s_getpc_b64 s[64:65]
L_pc:
s_lshl_b32 s3, {sIDX}, 4
v_add_u32 v6, s3, v1
v_lshlrev_b32 v6, 7, v6
v_min_u32 v6, L_end-L_pc-4, v6
v_mov_b32 v7, s65
v_add_co_u32 v6, vcc, s64, v6
v_addc_co_u32 v7, vcc, 0, v7, vcc
s_mov_b64 exec, 0xffff
global_load_dword v24, v[6:7], off
s_mov_b64 exec, -1
L_nopf:
""")
def img32_regs(row, trb):
    a(f"""
v_lshrrev_b32 v4, 1, v0
v_and_b32 v5, 19, v4
v_bfe_u32 v6, v4, 2, 1
v_lshl_or_b32 v5, v6, 3, v5
v_bfe_u32 v6, v4, 3, 1
v_lshl_or_b32 v{row}, v6, 2, v5
v_lshrrev_b32 v4, 2, v1
v_and_b32 v5, 1, v2
v_lshl_add_u32 v4, v5, 2, v4
v_lshrrev_b32 v5, 1, v2
v_lshl_add_u32 v4, v5, 4, v4
v_lshlrev_b32 v4, 5, v4
v_and_b32 v5, 3, v1
v_lshl_add_u32 v{trb}, v5, 3, v4
""")
img32_regs(16, 17)
a(f"""
v_and_b32 v18, 1, v0
v_lshlrev_b32 v18, 4, v18
s_waitcnt lgkmcnt(0)
""")
if "dbg" in XP: a("s_mov_b64 s[96:97], s[0:1]")
stamp("start")
if "ms" in XP: stamp("karg")
srd(WS, P_WS, hex(WS_SIZE))
a(f"s_load_dword {sEP}, s[{P_WS}:{P_WS+1}], {WS_EPOCH}")

def gemv_chain(lbase, trb, opaddr):
    a(f"v_add_u32 v7, {lbase}, v{trb}")
    def rd(T):
        b = 128 + (T % 4) * 8
        a(f"ds_read_b64_tr_b16 {vr(b,2)}, v7 offset:{T*1024}\nds_read_b64_tr_b16 {vr(b+2,2)}, v7 offset:{T*1024+256}")
        a(f"ds_read_b128 {vr(b+4,4)}, v{opaddr} offset:{T*64}")
    def cp(T):
        b = 128 + (T % 4) * 8
        a(f"v_mfma_f32_16x16x32_bf16 v[32:35], {vr(b,4)}, {vr(b+4,4)}, {'0' if T == 0 else 'v[32:35]'}")
    pipeline(16, rd, cp, 3, pre=3)

def round_bf16(regs):
    for i in range(0, len(regs), 2):
        x, y = regs[i], regs[i+1]
        a(f"v_cvt_pk_bf16_f32 v{y}, v{x}, v{y}\nv_lshlrev_b32 v{x}, 16, v{y}\nv_and_b32 v{y}, 0xffff0000, v{y}")

def silu8(src, dst):
    for i in range(4): a(f"v_lshlrev_b32 v{40+2*i}, 16, v{src+i}\nv_and_b32 v{41+2*i}, 0xffff0000, v{src+i}")
    for i in range(8): a(f"v_mul_f32 v{48+i}, {fbits(-math.log2(math.e))}, v{40+i}")
    for i in range(8): a(f"v_exp_f32 v{48+i}, v{48+i}")
    for i in range(8): a(f"v_add_f32 v{48+i}, 1.0, v{48+i}")
    for i in range(8): a(f"v_rcp_f32 v{48+i}, v{48+i}")
    for i in range(8): a(f"v_mul_f32 v{40+i}, v{40+i}, v{48+i}")
    for i in range(4): a(f"v_cvt_pk_bf16_f32 v{dst+i}, v{40+2*i}, v{41+2*i}")

Lr0, Lr2, Lr3, Lxi, Lxw, Lnz, Lsl = (a.label(x) for x in ("r0", "r2", "r3", "xi", "xw", "noz", "sl"))
srd(R1, P_X, 2048 * 1024, "s55")
srd(R2, P_WMOD, 512 * 6144)
a(f"s_and_b32 s3, {sCB}, 1\ns_cselect_b32 s64, s{P_WV}, s{P_WK}\ns_cselect_b32 s65, s{P_WV+1}, s{P_WK+1}")
srd(R3, 64, 16384)
srd(R0, P_C, 1024)
a(f"""
s_sub_u32 s0, {sW}, {sKVW}
s_and_b32 s0, s0, 3
v_mov_b32 v36, 0
v_mov_b32 v37, 0
v_mov_b32 v38, 0
v_mov_b32 v39, 0
s_and_b32 s69, s2, 15
s_lshl_b32 s69, s69, 6
v_lshlrev_b32 v25, 4, v2
v_lshrrev_b32 v4, 3, v0
v_and_b32 v5, 7, v0
v_xor_b32 v5, v5, v2
v_lshlrev_b32 v5, 4, v5
v_lshl_add_u32 v22, v4, 10, v5
v_xor_b32 v23, 64, v22
v_add_u32 v23, {8192 - 1024}, v23
s_lshl_b32 s67, {sW}, 14
s_add_u32 s67, s67, {L_WQ}
""")
def xstage():
    for T2 in range(8):
        a(f"s_add_u32 m0, s67, {T2*2048}\ns_movk_i32 s3, {T2*128}\nbuffer_load_dwordx4 v22, {R1}, s3 offen lds\nbuffer_load_dwordx4 v23, {R1}, s3 offen offset:1024 lds")
if "ms" in XP: stamp("iss0")
a(f"s_cmp_eq_u32 s0, 1\ns_cbranch_scc0 {Lr2}")
a(f"""
v_lshrrev_b32 v4, 2, v0
v_and_b32 v5, 3, v0
v_and_b32 v6, 1, v5
v_lshlrev_b32 v6, 7, v6
v_lshrrev_b32 v5, 1, v5
v_mul_u32_u24 v5, 3072, v5
s_movk_i32 s3, 6144
v_mad_u32_u24 v4, v4, s3, v6
v_add_u32 v4, v4, v5
s_mul_i32 s64, {sIDX}, {16*6144}
s_lshl_b32 s3, {sXCD}, 8
s_add_u32 s64, s64, s3
buffer_load_dword v24, v4, {R2}, s64 offen
s_cmp_lt_u32 {sIDX}, 16
s_cbranch_scc0 {Lxi}
s_lshl_b32 s68, {sXCD}, 3
s_add_u32 s68, s68, {sIDX}
s_add_u32 s65, s68, 88
s_cmp_lt_u32 {sIDX}, 8
s_cselect_b32 s68, s68, s65
s_cbranch_scc0 {Lnz}
s_lshl_b32 s3, s68, 9
s_mov_b64 exec, 0xffffffff
buffer_store_dwordx4 v[36:39], v3, {WS}, s3 offen sc1
s_mov_b64 exec, -1
{Lnz}:
""")
a(f"buffer_load_dwordx4 v[32:35], v3, {R0}, 0 offen\ns_lshl_b32 s66, s68, 5\ns_movk_i32 s3, 6144\nv_mad_u32_u24 v6, v16, s3, v18")
for n in range(16):
    a(f"s_mov_b32 m0, {L_G0 + n*1024}\nbuffer_load_dwordx4 v6, {R2}, s66 offen lds")
    if n < 15: a("s_add_u32 s66, s66, 196608")
a("s_barrier\ns_waitcnt vmcnt(16)")
if "ms" in XP: stamp("m_c")
silu8(32, 32)
a(f"v_add_u32 v6, {L_SILU}, v3\nds_write_b128 v6, v[32:35]\nv_lshlrev_b32 v5, 4, v2\nv_add_u32 v6, {L_SILU}, v5")
a("s_waitcnt vmcnt(0) lgkmcnt(0)")
if "ms" in XP: stamp("m_dma")
if "xmid" in XP: xstage()
gemv_chain(L_G0, 17, 6)
round_bf16([32, 33, 34, 35])
Lno1 = a.label("no1")
a(f"s_lshr_b32 s65, s68, 5\ns_bitcmp1_b32 0x12, s65\ns_cbranch_scc0 {Lno1}")
for i in range(4): a(f"v_add_f32 v{32+i}, 1.0, v{32+i}")
round_bf16([32, 33, 34, 35])
a(f"""
{Lno1}:
s_lshl_b32 s3, s68, 6
s_add_u32 s3, s3, {WS_MOD}
s_mov_b32 exec_lo, 0x00010001
s_mov_b32 exec_hi, 0x00010001
s_add_u32 s65, {sEP}, 1
s_and_b32 s65, s65, 0xffff
v_or_b32 v36, s65, v32
v_or_b32 v37, s65, v33
v_or_b32 v38, s65, v34
v_or_b32 v39, s65, v35
s_add_u32 s65, s3, {WS_MODT - WS_MOD}
buffer_store_dwordx4 v[36:39], v5, {WS}, s65 offen sc1
buffer_store_dwordx4 v[32:35], v5, {WS}, s3 offen sc1
s_mov_b64 exec, -1
""")
if "ms" in XP: stamp("m_pub")
a(f"""
v_add_u32 v6, s69, v6
ds_read_b128 v[8:11], v6
""")
if "xmid" not in XP: xstage()
a(f"""
s_waitcnt vmcnt({2 if "xmid" in XP else 0})
s_branch {Lxw}
{Lr2}:
v_lshlrev_b32 v4, 7, v0
s_cmp_eq_u32 s0, 0
s_cbranch_scc1 {Lr0}
s_cmp_eq_u32 s0, 3
s_cbranch_scc1 {Lr3}
s_lshl_b32 s64, {sRB}, 16
s_lshl_b32 s3, {sCB}, 13
s_add_u32 s64, s64, s3
""")
srd("s[72:75]", P_X, 2048 * 1024)
a(f"""
buffer_load_dword v24, v4, s[72:75], s64 offen
s_branch {Lxi}
{Lr3}:
s_lshr_b32 s3, {sIDX}, 1
s_lshl_b32 s3, s3, 10
v_and_b32 v4, 0x380, v4
buffer_load_dword v24, v4, {R3}, s3 offen
{Lxi}:
buffer_load_dwordx4 v[8:11], v25, {R0}, s69 offen
s_barrier
""")
xstage()
a(f"s_lshl_b32 s66, {sCB}, 7")
srd(R0, P_WQ, 512 * 1024, "s66")
Lnw = a.label("nw")
a(f"""
s_cmp_lt_u32 s0, 2
s_cbranch_scc1 {Lnw}
s_and_b32 s3, {sRB}, 3
s_lshl_b32 s3, s3, 1
s_add_u32 s3, s3, s0
s_sub_u32 s3, s3, 2
s_lshl_b32 s3, s3, 16
v_lshlrev_b32 v4, 10, v0
buffer_load_dword v26, v4, {R0}, s3 offen
s_waitcnt vmcnt(17)
""")
silu8(8, 8)
a(f"s_waitcnt vmcnt(1)\ns_branch {Lxw}\n{Lnw}:\ns_waitcnt vmcnt(16)")
silu8(8, 8)
a(f"s_waitcnt vmcnt(0)\ns_branch {Lxw}\n{Lr0}:\nbuffer_load_dwordx4 v[8:11], v25, {R0}, s69 offen\ns_barrier")
xstage()
a("v_lshl_add_u32 v21, v16, 5, v18")
for n in range(16): a(f"s_mov_b32 m0, {L_WKV + n*1024}\ns_movk_i32 s3, {n*1024}\nbuffer_load_dwordx4 v21, {R3}, s3 offen lds")
a(f"s_mul_i32 s3, s2, 768\ns_add_u32 s3, s3, {F_HOP}\ns_mov_b32 exec_hi, 0xffff\nbuffer_store_dwordx4 v[36:39], v3, {WS}, s3 offen sc1\ns_mov_b64 exec, -1\ns_waitcnt vmcnt(33)")
silu8(8, 8)
a(f"s_waitcnt vmcnt(17)\n{Lxw}:")
stamp("xin")
a(f"""
v_lshrrev_b32 v4, 1, v1
v_xor_b32 v4, v4, v2
v_lshlrev_b32 v4, 4, v4
v_lshl_add_u32 v4, v1, 7, v4
v_add_u32 v4, s67, v4
v_xor_b32 v5, 64, v4
s_waitcnt lgkmcnt(0)
s_add_u32 {sEP}, {sEP}, 1
s_and_b32 {sTAG}, {sEP}, 0xffff
""")
for T in range(16): a(f"ds_read_b128 {vr(64+4*T,4)}, v{4 + (T & 1)} offset:{(T >> 1)*2048}")
a(f"s_lshl_b32 s66, {sCB}, 7")
srd(R0, P_WQ, 512 * 1024, "s66")
a(f"""
v_lshrrev_b32 v4, 3, v0
v_bfe_u32 v5, v0, 1, 2
v_bfe_u32 v6, v4, 1, 1
v_xor_b32 v5, v5, v6
v_lshlrev_b32 v5, 5, v5
v_lshl_add_u32 v5, v4, 10, v5
v_add_u32 v19, v5, v18
v_xor_b32 v20, 64, v19
""")
a(f"s_lshl_b32 s66, {sW}, 17")
nst = [0]
def stage():
    n = nst[0]; nst[0] += 1
    a(f"s_mov_b32 m0, s67\ns_add_u32 s67, s67, 1024\nbuffer_load_dwordx4 v{19 + (n & 1)}, {R0}, s66 offen lds\ns_add_u32 s66, s66, 8192")
for i in range(64):
    if i % 4 == 0: a(f"s_waitcnt lgkmcnt({15 - i // 4})")
    a(f"v_lshlrev_b32 v{128+2*i}, 16, v{64+i}\nv_and_b32 v{129+2*i}, 0xffff0000, v{64+i}")
for k in range(4): a(f"v_pk_add_f32 {vr(32+2*k,2)}, {vr(128+4*k,2)}, {vr(130+4*k,2)}")
for k in range(4): a(f"v_pk_mul_f32 {vr(40+2*k,2)}, {vr(128+2*k,2)}, {vr(128+2*k,2)}")
for i in range(4, 64):
    if i >= 8: a(f"v_pk_add_f32 {vr(32+2*(i%4),2)}, {vr(32+2*(i%4),2)}, {vr(128+2*i,2)}")
    a(f"v_pk_fma_f32 {vr(40+2*(i%4),2)}, {vr(128+2*i,2)}, {vr(128+2*i,2)}, {vr(40+2*(i%4),2)}")
    if i % 6 == 4: stage()
for b in (32, 40):
    a(f"v_pk_add_f32 {vr(b,2)}, {vr(b,2)}, {vr(b+2,2)}\nv_pk_add_f32 {vr(b+4,2)}, {vr(b+4,2)}, {vr(b+6,2)}\nv_pk_add_f32 {vr(b,2)}, {vr(b,2)}, {vr(b+4,2)}\nv_add_f32 v{b}, v{b}, v{b+1}")
xgroup_sum2(32, 33, 40, 41)
finish_stats([(32, 40, 34, 36, None)], 512)
a("v_mul_f32 v34, v34, v36")
for i in range(64):
    a(f"v_pk_fma_f32 {vr(128+2*i,2)}, {vr(128+2*i,2)}, v[36:37], v[34:35] op_sel_hi:[1,0,0]")
    if i % 8 == 0 and nst[0] < 16: stage()
assert nst[0] == 16
a(f"s_mov_b32 s23, {WS_MODT}")
for i in range(4): a(f"buffer_load_dwordx4 {vr(40+4*i,4)}, v3, {WS}, s23 offen offset:{i*1024} sc1")
Lna = a.label("nkvf")
a(f"s_cmp_eq_u32 s0, 0\ns_cbranch_scc0 {Lna}\nv_add_u32 v7, {L_WKV}, v17\ns_waitcnt vmcnt(21)")
for T in range(16): a(f"ds_read_b64_tr_b16 {ar(4*T,2)}, v7 offset:{T*1024}\nds_read_b64_tr_b16 {ar(4*T+2,2)}, v7 offset:{T*1024+256}")
a(f"{Lna}:")
stamp("ln1")
def tagcheck(regs):
    out = [f"v_xor_b32 v{r}, {sTAG}, v{r}" for r in regs]
    out.append(f"v_or3_b32 v4, v{regs[0]}, v{regs[1]}, v{regs[2]}")
    for i in range(3, len(regs) - 1, 2): out.append(f"v_or3_b32 v4, v4, v{regs[i]}, v{regs[i+1]}")
    out.append(f"v_or_b32 v4, v4, v{regs[-1]}\nv_and_b32 v4, 0xffff, v4\nv_cmp_ne_u32 vcc, 0, v4")
    return "\n".join(out)
BKA = int(([x[4:] for x in XP if x.startswith("bka:")] or ["10"])[0])
def setup_scalars():
    Lr2, Lr3, Lre = (a.label(x) for x in ("r2", "r3", "re"))
    a(f"""
s_mul_i32 s77, {sW}, 12288
s_lshl_b32 s68, {sW}, 12
s_movk_i32 s74, 1024
s_movk_i32 s75, 4
s_movk_i32 s76, 8
s_movk_i32 s1, 2048
s_movk_i32 s20, 8192
s_cmp_eq_u32 {sW}, 2
s_cbranch_scc1 {Lr2}
s_cmp_eq_u32 {sW}, 3
s_cbranch_scc1 {Lr3}
s_and_b32 s64, {sRB}, 15
s_mul_i32 s64, s64, 114688
s_lshr_b32 s3, {sRB}, 4
s_mul_i32 s3, s3, 1792
s_add_u32 s64, s64, s3
s_mul_i32 s3, {sCB}, 224
s_add_u32 s64, s64, s3
s_lshl_b32 s3, {sW}, 7
s_add_u32 s64, s64, s3
""")
    srd(R2, P_WIN, 512 * 3584, "s64")
    a(f"""
s_movk_i32 s74, 3584
s_movk_i32 s20, {8*3584}
s_mov_b32 s21, {16*3584}
s_mov_b32 s22, {24*3584}
s_lshl_b32 s36, {sCB}, 5
s_add_u32 s36, s36, {sRB}
s_mul_i32 s36, s36, {SLOT}
s_add_u32 s36, s36, s68
s_add_u32 s36, s36, {WS_WINF}
s_mov_b32 s24, s36
s_cmp_eq_u32 {sW}, 0
s_cselect_b32 s37, s36, {WS_SIZE}
s_branch {Lre}
{Lr2}:
s_min_u32 s67, {sRB}, 27
s_mul_i32 s64, s67, 37
s_lshr_b32 s64, s64, 8
s_mul_i32 s3, s64, 7
s_sub_u32 s65, s67, s3
s_mul_i32 s64, s64, 224
s_lshl_b32 s3, s65, 5
s_add_u32 s66, s3, 16
s_cmp_lt_u32 s65, 3
s_cselect_b32 s3, s3, s66
s_cmp_eq_u32 s65, 6
s_cselect_b32 s3, 96, s3
s_cselect_b32 s21, 112, 16
s_cselect_b32 s75, 8, 4
s_cselect_b32 s76, 16, 8
s_cselect_b32 s1, 512, s1
s_lshl_b32 s21, s21, 10
s_add_u32 s22, s21, 8192
s_add_u32 s64, s64, s3
s_lshl_b32 s64, s64, 10
s_lshl_b32 s3, {sCB}, 7
s_add_u32 s64, s64, s3
""")
    srd(R2, P_WOUT, 896 * 1024, "s64")
    a(f"""
s_mul_i32 s36, {sCB}, 28
s_add_u32 s36, s36, s67
s_lshl_b32 s36, s36, 12
s_add_u32 s36, s36, {WS_WOUTF}
s_cmp_lt_u32 {sRB}, 28
s_cselect_b32 s36, s36, {WS_SIZE}
s_mov_b32 s37, s36
s_mov_b32 s24, s36
s_branch {Lre}
{Lr3}:
s_lshr_b32 s67, {sRB}, 1
s_lshl_b32 s64, s67, 15
s_lshl_b32 s3, {sCB}, 7
s_add_u32 s64, s64, s3
""")
    srd(R2, P_WO, 512 * 1024, "s64")
    a(f"""
s_movk_i32 s21, 16384
s_movk_i32 s22, 24576
s_movk_i32 s75, 16
s_movk_i32 s76, 4
s_movk_i32 s1, 1024
s_lshl_b32 s36, {sCB}, 4
s_add_u32 s36, s36, s67
s_lshl_b32 s36, s36, 12
s_add_u32 s36, s36, {WS_WOF}
s_bitcmp1_b32 {sRB}, 0
s_cselect_b32 s37, s36, {WS_SIZE}
s_cselect_b32 s36, {WS_SIZE}, s36
s_mov_b32 s24, s37
{Lre}:
s_and_b32 s64, s2, 15
s_mul_i32 s64, s64, {32*6144}
s_lshr_b32 s65, s2, 4
s_lshl_b32 s3, s65, 7
s_add_u32 s64, s64, s3
s_lshl_b32 s3, {sW}, 5
s_add_u32 s64, s64, s3
s_cmp_lt_u32 s65, 8
s_cselect_b32 s3, 0, 2048
s_add_u32 s64, s64, s3
s_add_u32 s64, s64, 2048
""")
    srd(R3, P_WMOD, 512 * 6144, "s64")
    a(f"""
s_lshl_b32 s34, s65, 8
s_lshl_b32 s3, {sW}, 6
s_add_u32 s34, s34, s3
s_add_u32 s34, s34, {WS_G2}
s_lshl_b32 s35, {sW}, 10
s_lshl_b32 s64, {sRB}, 18
s_add_u32 s64, s64, s35
s_add_u32 s35, s35, {L_G2}
s_lshr_b32 s3, {sRB}, 4
s_mul_i32 s3, s3, 3584
s_mul_i32 s28, {sCB}, 448
s_add_u32 s28, s28, s3
s_lshl_b32 s3, {sW}, 8
s_add_u32 s28, s28, s3
s_add_u32 s28, s28, {WS_C12}
s_cmp_lt_u32 {sW}, 2
s_cselect_b32 s28, s28, {WS_SIZE}
s_add_u32 s29, s28, 7168
s_and_b32 s25, {sRB}, 15
s_lshl_b32 s25, s25, 7
s_add_u32 s25, s25, {WS_MODT + 3*2048}
""")
    srd(R0, P_WSP, 2048 * 4096, "s64")
    a(f"s_lshl_b32 s66, {sCB}, 7\ns_add_u32 s64, s66, s55")
    srd(R1, P_X, 2048 * 1024, "s64")
    for s_ in range(4): a(f"s_add_u32 s3, {sW}, {s_}\ns_and_b32 s3, s3, 3\ns_lshl_b32 s{70+s_}, s3, 16")
    a(f"""
s_lshl_b32 s19, {sCB}, 15
s_lshl_b32 s39, {sCB}, 9
s_mov_b32 s38, {F_P}
s_add_u32 s39, s39, s38
s_lshl_b32 s3, {sW}, 7
s_add_u32 s39, s39, s3
s_and_b32 s3, {sRB}, 3
s_lshl_b32 s3, s3, 2
s_add_u32 s3, s3, {sW}
s_mul_i32 s26, s3, {SLOT}
s_mul_i32 s3, {sCB}, {28*4096}
s_add_u32 s26, s26, s3
s_add_u32 s26, s26, {WS_WOUTF}
s_lshl_b32 s69, {sCB}, 16
s_add_u32 s69, s69, {WS_WOF}
s_lshl_b32 s64, {sW}, 11
s_add_u32 s65, s64, {L_KV}
s_add_u32 s64, s64, {WS_KV}
s_mul_i32 s66, {sIDX}, {33*128}
s_add_u32 s66, s66, {WS_KV}
s_lshl_b32 s67, {sRB}, 10
s_lshl_b32 s16, s55, 1
s_lshl_b32 s3, {sCB}, 11
s_add_u32 s16, s16, s3
s_add_u32 s16, s16, {WS_X}
s_add_u32 s17, s16, 16384
s_lshl_b32 s3, {sCB}, 8
s_add_u32 s18, s3, {WS_G2}
s_add_u32 s30, s3, {WS_MOD + 4*2048}
""")
assert F_B == 0

setup_scalars()
PARLD = "\n".join(f"buffer_load_dwordx4 {vr(40+4*i,4)}, v3, {WS}, s23 offen offset:{i*1024} sc1" for i in range(4))
a("s_waitcnt vmcnt(0)")
a(tagcheck(list(range(40, 56))))
a("s_cbranch_vccz L_parok")
poll(PARLD, tagcheck(list(range(40, 56))), "-1", BKA)
a(f"L_parok:\ns_lshl_b32 s3, {sW}, 12\nv_add_u32 v5, s3, v3")
for i in range(4): a(f"ds_write_b128 v5, {vr(40+4*i,4)} offset:{L_PAR + i*1024}")
stamp("barP")
LV, Lh, Lnkv, LV2, Lst, Lkve = (a.label(x) for x in ("isV", "hdone", "nokv", "isV2", "kvst", "kve"))
a(f"v_lshlrev_b32 v19, 5, v2\nv_add_u32 v19, s3, v19\ns_waitcnt lgkmcnt(0)\ns_bitcmp1_b32 {sCB}, 0\ns_cbranch_scc1 {LV}")
def hpass(isV):
    def rd(T):
        b = 32 + (T & 1) * 16
        for k, off in enumerate((2048, 2064, 0, 16)): a(f"ds_read_b128 {vr(b+4*k,4)}, v19 offset:{off + T*128}")
    def kv(T):
        A, B = (vr(64+4*T,4), ar(4*T,4)) if isV else (ar(4*T,4), vr(64+4*T,4))
        a(f"v_mfma_f32_16x16x32_bf16 v[12:15], {A}, {B}, {'0' if T == 0 else 'v[12:15]'}")
    def cp(T):
        b = 32 + (T & 1) * 16
        for k in range(4): a(f"v_pk_fma_f32 {vr(128+8*T+2*k,2)}, {vr(128+8*T+2*k,2)}, {vr(b+2*k,2)}, {vr(b+8+2*k,2)}")
        if T: kv(T - 1)
        for k in range(4): a(f"v_cvt_pk_bf16_f32 v{64+4*T+k}, v{128+8*T+2*k}, v{129+8*T+2*k}")
    pipeline(16, rd, cp, 4)
    kv(15)
hpass(False)
a(f"s_branch {Lh}\n{LV}:")
hpass(True)
a(f"{Lh}:")
if "ms" in XP: stamp("h")
a(f"""
s_cmp_eq_u32 s0, 0
s_cbranch_scc0 {Lnkv}
s_lshl_b32 s23, {sRB}, 1
s_lshr_b32 s3, {sW}, 1
s_add_u32 s23, s23, s3
s_mul_i32 s23, s23, {REC}
s_add_u32 s23, s23, {WS_KV}
s_and_b32 s27, {sW}, 1
v_lshrrev_b32 v20, 5, v0
v_cvt_pk_bf16_f32 v36, v12, v13
v_cvt_pk_bf16_f32 v37, v14, v15
v_mov_b32 v38, v36
v_mov_b32 v39, v37
v_permlane16_swap_b32 v36, v38
v_permlane16_swap_b32 v37, v39
s_bitcmp1_b32 {sCB}, 0
s_cbranch_scc1 {LV2}
v_lshlrev_b32 v20, 9, v20
v_lshl_add_u32 v20, v1, 4, v20
s_lshl_b32 s27, s27, 8
s_add_u32 s23, s23, s27
s_add_u32 s23, s23, 1088
s_mov_b32 exec_lo, 0x0000ffff
s_mov_b32 exec_hi, 0x0000ffff
s_branch {Lst}
{LV2}:
v_mul_u32_u24 v20, 272, v20
v_and_b32 v4, 31, v0
v_lshl_add_u32 v20, v4, 4, v20
s_mul_i32 s27, s27, 544
s_add_u32 s23, s23, s27
s_mov_b32 exec_lo, 0xffff0000
s_mov_b32 exec_hi, 0xffff0000
v_mov_b32 v36, 0x3f803f80
v_mov_b32 v37, 0x3f803f80
v_mov_b32 v38, 0x3f803f80
v_mov_b32 v39, 0x3f803f80
s_mov_b32 exec_lo, 0x0001ffff
s_mov_b32 exec_hi, 0x0001ffff
{Lst}:
buffer_store_dwordx4 v[36:39], v20, {WS}, s23 offen sc1
s_mov_b64 exec, 1
s_add_u32 s3, {sXCC}, 1
v_mov_b32 v20, s3
s_lshl_b32 s23, {sCB}, 7
s_add_u32 s23, s23, s67
s_waitcnt vmcnt(0)
buffer_store_dword v20, v0, {WS}, s23 offen sc1
s_mov_b64 exec, -1
""")
if "ms" in XP: stamp("arr")
a(f"{Lnkv}:")
def trbase128(dst, rowexpr_v, fexpr_v, lbase):
    a(f"v_and_b32 v6, 3, v1\nv_lshlrev_b32 v6, 3, v6\nv_lshl_add_u32 v6, v{rowexpr_v}, 7, v6\nv_lshl_add_u32 v6, v{fexpr_v}, 5, v6\nv_add_u32 v{dst}, {lbase}, v6")
    for j in range(1, 4): a(f"v_xor_b32 v{dst+j}, {j*32}, v{dst}")
a("v_lshrrev_b32 v4, 2, v1\nv_bfe_u32 v5, v1, 3, 1\nv_and_b32 v7, 1, v2\nv_lshl_or_b32 v5, v7, 1, v5\nv_lshl_add_u32 v4, v2, 3, v4")
trbase128(24, 4, 5, L_WQ)
a("s_barrier")
fragloop(16, 4,
         lambda T, j: a(f"ds_read_b64_tr_b16 {vr(32+(T&1)*16+4*j,2)}, v{24+j} offset:{T*4096}\nds_read_b64_tr_b16 {vr(34+(T&1)*16+4*j,2)}, v{24+j} offset:{T*4096+512}"),
         lambda T, j: a(f"v_mfma_f32_16x16x32_bf16 {vr(128+4*j,4)}, {vr(32+(T&1)*16+4*j,4)}, {vr(64+4*T,4)}, {'0' if T == 0 else vr(128+4*j,4)}"), nper=2)
for i in range(16): a(f"v_mul_f32 v{128+i}, {fbits(0.25*math.log2(math.e))}, v{128+i}")
for i in range(8): a(f"v_cvt_pk_bf16_f32 v{16+i}, v{128+2*i}, v{129+2*i}")
for e in range(2): a(f"v_permlane16_swap_b32 v{16+4*e}, v{18+4*e}\nv_permlane16_swap_b32 v{17+4*e}, v{19+4*e}")
stamp("q")
img32_regs(212, 213)
a(f"""
v_add_u32 v24, {L_KV + 1088}, v3
v_add_u32 v25, {31*REC}, v24
v_add_u32 v26, {31*REC}, v25
v_lshrrev_b32 v4, 5, v0
v_mul_u32_u24 v4, 272, v4
v_and_b32 v5, 31, v0
v_lshl_add_u32 v4, v5, 4, v4
v_add_u32 v27, {L_KV}, v4
v_mov_b32 v4, 0x40000
v_cmp_lt_u32 vcc, {16 if PADZERO else 99}, v5
v_mov_b32 v31, {OOB}
v_mov_b32 v30, 0xdddd
v_cndmask_b32 v27, v27, v4, vcc
v_add_u32 v28, {31*REC}, v27
v_add_u32 v29, {31*REC}, v28
v_lshrrev_b32 v7, 3, v0
v_and_b32 v6, 7, v0
v_xor_b32 v5, v6, v2
v_lshlrev_b32 v5, 4, v5
v_lshl_add_u32 v168, v7, 12, v5
v_xor_b32 v169, 64, v168
v_add_u32 v169, {0x8000 - 1024}, v169
v_lshrrev_b32 v4, 1, v1
v_xor_b32 v4, v4, v2
v_lshlrev_b32 v4, 4, v4
v_lshl_add_u32 v4, v1, 7, v4
v_add_u32 v170, s77, v4
v_xor_b32 v171, 64, v170
v_lshlrev_b32 v4, 10, v1
v_lshl_add_u32 v172, v2, 3, v4
v_lshlrev_b32 v4, 7, v6
v_lshl_add_u32 v173, v7, 12, v4
v_lshlrev_b32 v6, 4, v6
v_mad_u32_u24 v176, v7, s74, v6
v_lshrrev_b32 v4, 2, v1
v_and_b32 v5, 1, v2
v_mad_u32_u24 v4, v5, s75, v4
v_lshrrev_b32 v5, 1, v2
v_mad_u32_u24 v4, v5, s76, v4
v_and_b32 v5, 3, v1
v_lshlrev_b32 v5, 3, v5
v_lshl_add_u32 v4, v4, 7, v5
v_add_u32 v177, s68, v4
v_add_u32 v178, s1, v177
v_lshlrev_b32 v4, 7, v0
v_cmp_gt_u32 vcc, 32, v0
v_cmp_gt_u32 s[74:75], 33, v0
v_mov_b32 v199, 1
v_lshlrev_b32 v218, 4, v2
v_cndmask_b32 v196, v31, v4, vcc
v_cndmask_b32 v197, v31, v4, s[74:75]
v_cmp_gt_u32 s[74:75], 4, v0
s_lshl_b32 s27, {sCB}, 9
s_add_u32 s27, s27, {F_P}
v_cndmask_b32 v174, v31, v4, s[74:75]
v_cmp_eq_u32 vcc, 0, v0
v_and_b32 v7, 1, v0
v_lshlrev_b32 v5, 4, v7
v_cndmask_b32 v198, v31, v4, vcc
s_movk_i32 s3, 6144
v_mad_u32_u24 v212, v212, s3, v5
v_add_u32 v213, s35, v213
v_lshlrev_b32 v4, 2, v0
v_cmp_gt_u32 vcc, 16, v0
s_cmp_eq_u32 {sW}, 0
s_cselect_b32 s3, 64, 48
v_cmp_gt_u32 s[74:75], s3, v0
v_lshlrev_b32 v5, 11, v7
v_cndmask_b32 v214, v31, v4, vcc
v_cndmask_b32 v215, v31, v4, s[74:75]
v_sub_u32 v4, 2048, v5
v_add_u32 v4, v218, v4
v_and_b32 v5, 2, v0
v_cmp_eq_u32 vcc, 0, v5
v_mov_b64 v[80:81], 0
v_mov_b64 v[82:83], 0
v_cndmask_b32 v216, v31, v4, vcc
""")
for i in range(2, 16): a(f"v_mov_b64 {vr(80+2*i,2)}, 0")
if "ms" in XP: stamp("setup")
BKB = int(([x[3:] for x in XP if x.startswith("bk:")] or ["8"])[0])
a(f"v_lshlrev_b32 v5, 7, v0\ns_lshl_b32 s23, {sW}, 13")
poll(f"buffer_load_dword v4, v5, {WS}, s23 offen sc1", "v_cmp_eq_u32 vcc, 0, v4", "-1", BKB)
a("s_waitcnt lgkmcnt(0)\ns_barrier")
stamp("barB")
Lne = a.label("noep")
a(f"s_or_b32 s3, s2, {sW}\ns_cbranch_scc1 {Lne}\nv_mov_b32 v4, {sEP}\ns_mov_b32 s3, {WS_EPOCH}\nbuffer_store_dword v4, v198, {WS}, s3 offen sc1\n{Lne}:")
a(f"s_cmp_eq_u32 {sW}, 3\ns_cbranch_scc0 L_nkt\nbuffer_load_dword v200, v197, {WS}, s66 offen sc1\nL_nkt:")
vm.n = 0
def kv_group(i):
    if i < 16:
        return (["s_mov_b32 m0, s65"], [f"buffer_load_dwordx4 v3, {WS}, s64 offen sc1 lds", f"buffer_load_dwordx4 v3, {WS}, s64 offen offset:1024 sc1 lds"],
                f"kvg{i}", ["s_add_u32 s64, s64, 8192", "s_add_u32 s65, s65, 8192"])
    return ([f"s_lshl_b32 s3, {sW}, 10", "s_sub_u32 s64, s64, s3", "s_sub_u32 m0, s65, s3"], [f"buffer_load_dwordx4 v3, {WS}, s64 offen sc1 lds"], "kvg16", [])
def emit_item(x):
    pre, ins, tag, post = x
    for p in pre: a(p)
    for q_ in ins: vm.op(q_, tag)
    for p in post: a(p)
for i in range(2): emit_item(kv_group(i))

def win_items(half, grp, slot0, tag):
    ld = lambda i: f"buffer_load_dwordx4 v3, {WS}, s74 offen offset:{(i & 3)*1024} sc1 lds"
    first = [f"s_lshl_b32 s74, {sCB}, 5", f"s_add_u32 s74, s74, {sW}", f"s_mul_i32 s74, s74, {SLOT}", f"s_add_u32 s74, s74, {WS_WINF + (half*16 + grp*4)*SLOT}"] + slot0
    return [(first + ["s_mov_b32 m0, s75"], [ld(0), ld(1)], tag, []), (["s_mov_b32 m0, s75"], [ld(2), ld(3)], tag, ["s_add_u32 s74, s74, 4096", "s_add_u32 s75, s75, 4096"]),
            (["s_mov_b32 m0, s75"], [ld(4), ld(5)], tag, []), (["s_mov_b32 m0, s75"], [ld(6)], tag, [])]
def lin_slot(base): return [f"s_mul_i32 s75, {sW}, {SLOT}", f"s_add_u32 s75, s75, {base}"]

def kaddr(t): return f"v{24 + t//31} offset:{(t % 31)*REC}"
def vaddr(t, m): return f"v{27 + t//31} offset:{(t % 31)*REC + m*544}"
Kb = lambda t: vr(144 + 4*(t & 1), 4)
Vb = lambda t, m: vr(152 + 8*(t & 1) + 4*m, 4)
Sb = lambda u: 32 + 16*(u % 3)
Q = lambda e: vr(16 + 4*e, 4)
O = lambda e: 80 + 16*e
C = lambda e: 112 + 16*e
vm.wait("kvg0"); a("s_barrier")
stamp("kv0")
if "clk" in XP: a("s_memtime s[96:97]\ns_memrealtime s[98:99]\ns_waitcnt lgkmcnt(0)")
a(f"ds_read_b128 {Kb(0)}, {kaddr(0)}\nds_read_b128 {Kb(1)}, {kaddr(1)}\ns_waitcnt lgkmcnt(1)")
for e in range(2): a(f"v_mfma_f32_32x32x16_bf16 {vr(32+16*e,16)}, {Kb(0)}, {Q(e)}, 0")
def rowmax(S, dst, first):
    for i in range(0, 16, 2):
        if first and i == 0: a(f"v_max_f32 v{dst}, v{S}, v{S+1}")
        else: a(f"v_max3_f32 v{dst}, v{S+i}, v{S+i+1}, v{dst}")
def negbcast(src, e):
    a(f"v_mov_b32 v6, v{src}\nv_permlane32_swap_b32 v{src}, v6\nv_max_f32 v{src}, v{src}, v6\nv_sub_f32 v{C(e)}, 0, v{src}")
    for i in range(1, 16): a(f"v_mov_b32 v{C(e)+i}, v{C(e)}")
for e in range(2): rowmax(32 + 16*e, 4 + e, True)
for e in range(2): negbcast(4 + e, e)
a(f"v_mfma_f32_32x32x16_bf16 {vr(Sb(0),16)}, {Kb(0)}, {Q(0)}, {vr(C(0),16)}")

plan = {}
WT = 49
TP, TR = 19, 28
def put(t, slot, x): plan.setdefault((t, slot), []).append(x)
PREV = {"e1x": ("e0", 0), "o0": ("e1", 0), "e1": ("e0", 0), "eq": ("o1", -1), "oq": ("e1", 0), "e0": ("o1", -1)}
assert True
def vitem(t, slot, x):
    pre, ins, tag, post = x
    ps, dt = PREV[slot]
    pre = [p + " " for p in pre]
    m0 = [p for p in pre if " m0," in p]; rest = [p for p in pre if " m0," not in p]
    if t + dt < 0 or len(pre) > 2:
        pp, dd = PREV[ps] if ps in PREV else ("o0", 0)
        if t + dt + dd < 0: put(t, slot, ("salu", pre))
        else: put(t + dt + dd, pp + "a", ("salu", rest)); put(t + dt, ps + "a", ("salu", m0))
    else: put(t + dt, ps + "a", ("salu", pre))
    put(t, slot, ("vm", ins, tag, m0[0] if m0 else None))
    if post: put(t, slot, ("salu", post))
for i in range(2, 8): vitem((i - 2) // 2, ("e1", "o0")[i & 1], kv_group(i))
for i in range(8, 16): vitem(22 + (i - 7) // 2, ("o0", "e1")[i & 1], kv_group(i))
vitem(27, "e1", kv_group(16))
for n, so in enumerate(("0", "s20", "s21", "s22")):
    vitem(3 + (n >> 1), ("e1", "o0")[n & 1], ([f"s_add_u32 m0, s68, {n*1024}"], [f"buffer_load_dwordx4 v176, {R2}, {so} offen lds"], "praw", []))
put(1, "eq", ("vm", [f"buffer_load_dword v253, v196, {WS}, s67 offen sc1"], None))
for j in range(8): put(50 + j, "oq", ("vm", [f"buffer_load_dwordx4 {vr(220+4*j,4)}, v218, {WS}, s{18 if j < 4 else 30} offen offset:{(j & 3)*64} sc1"], None))
put(5, "o0", ("vm", [f"buffer_load_dword v200, v173, {R0}, s19 offen"], None))
put(3, "eq", ("vm", [f"buffer_load_dword v200, v198, {WS}, {sGRP} offen sc1"], None))
vitem(5, "e1x", (["s_mov_b32 m0, s35"], [f"buffer_load_dwordx4 v212, {R3}, 0 offen lds"], "praw", []))
put(2, "eq", ("vm", [f"buffer_load_dwordx4 v[204:207], v216, {WS}, s25 offen sc1"], None))
put(0, "oq", ("vm", [f"buffer_load_dwordx4 v[208:211], v216, {WS}, s25 offen offset:64 sc1"], None))
put(TP - 1, "o1b", ("wait", "praw"))
put(TP - 1, "o1x", ("ds", ["ds_read_b64_tr_b16 v[220:221], v213", "ds_read_b64_tr_b16 v[222:223], v213 offset:256"]))
put(TP, "e0", ("salu", [f"v_cvt_pk_bf16_f32 v{204+i}, v{204+2*i}, v{205+2*i}" for i in range(4)]))
put(TP, "o0", ("salu", ["v_mfma_f32_16x16x32_bf16 v[224:227], v[8:11], v[220:223], 0"]))
put(TP + 2, "e0", ("salu", [f"v_mfma_f32_16x16x32_bf16 {vr(228+4*j,4)}, v[204:207], {vr(180+4*j,4)}, 0" for j in range(4)]))
put(TP + 3, "e0", ("salu", ["s_mov_b32 exec_lo, 0xffff0000", "s_mov_b32 exec_hi, 0", "v_mov_b32 v228, v232", "v_mov_b32 v229, v233",
                            "s_mov_b32 exec_lo, 0", "s_mov_b32 exec_hi, 0x0000ffff", "v_mov_b32 v228, v236", "v_mov_b32 v229, v237",
                            "s_mov_b32 exec_hi, 0xffff0000", "v_mov_b32 v228, v240", "v_mov_b32 v229, v241", "s_mov_b64 exec, -1"]))
put(22, "e1", ("vm", [f"buffer_atomic_add_f32 v228, v215, {WS}, s28 offen", f"buffer_atomic_add_f32 v229, v215, {WS}, s29 offen"], "pat"))
put(20, "e1", ("vm", [f"buffer_atomic_add_f32 v224, v214, {WS}, s34 offen"], None))
for j in range(4):
    put(TP + (j >> 1), ("eq", "oq")[j & 1], ("ds", [f"ds_read_b64_tr_b16 {vr(180+4*j,2)}, v177 offset:{j*32}", f"ds_read_b64_tr_b16 {vr(182+4*j,2)}, v178 offset:{j*32}"]))
put(20, "o0", ("vm", [f"buffer_store_dwordx4 {vr(180+4*j,4)}, v3, {WS}, s36 offen offset:{j*1024} sc1" for j in (0, 1)], None))
put(21, "o0", ("vm", [f"buffer_store_dwordx4 {vr(188,4)}, v3, {WS}, s24 offen offset:2048 sc1", f"buffer_store_dwordx4 {vr(192,4)}, v3, {WS}, s37 offen offset:3072 sc1"], "pst"))
put(26, "o0b", ("wait", "pat"))
put(26, "o0", ("vm", [f"buffer_atomic_add v199, v198, {WS}, s39 offen sc1"], None))
put(41, "oq", ("vm", [f"buffer_load_dword v201, v174, {WS}, s27 offen sc1"], "pchk"))
put(47, "oq", ("vm", [f"buffer_load_dword v201, v196, {WS}, s38 offen sc1"], "gchk"))
for k in range(36):
    t, hf = TR + (k >> 1), k & 1
    if k < 32:
        T2, s_ = k >> 2, k & 3
        if s_ == 0: pass
        vitem(t, ("e1", "o0")[hf], ([f"s_add_u32 s75, s{70+s_}, {T2*128}", f"s_add_u32 m0, s77, {(k % 6)*2048}"],
                                    [f"buffer_load_dwordx4 v168, {R0}, s75 offen lds", f"buffer_load_dwordx4 v169, {R0}, s75 offen offset:1024 lds"], f"ring{k}", []))
    if k >= 4:
        T2, s_ = (k - 4) >> 2, (k - 4) & 3
        if hf == 0: put(t - 1, "o1b", ("wait", f"ring{k-3}"))
        for e_ in range(2): put(t, (("eq", "e0"), ("oq", "o1x"))[hf][e_], ("ds", [f"ds_read_b128 {ar(((2*T2+e_)*4+s_)*4,4)}, v{170+e_} offset:{((k-4) % 6)*2048}"]))
for grp, t0 in ((0, 44), (1, 56)):
    for n, x in enumerate(win_items(1, grp, lin_slot(slotA(4*grp)), f"z2g{grp}")): vitem(t0 + n, "o0", x)
for n in range(8):
    pre = [f"s_lshl_b32 s76, {sW}, 12", "s_add_u32 s74, s76, s69"] if n == 0 else []
    post = ["s_add_u32 s74, s74, 16384", "s_add_u32 s76, s76, 16384"] if n & 1 else []
    vitem(48 + n, "o0", (pre + ["s_mov_b32 m0, s76"], [f"buffer_load_dwordx4 v3, {WS}, s74 offen offset:{(2*(n & 1) + i)*1024} sc1 lds" for i in range(2)], "wo", post))
for n in range(2): put(58 + n, "eq", ("vm", [f"buffer_load_dwordx2 {vr(8+2*j,2)}, v172, {R1}, 0 offen offset:{j*32}" for j in (2*n, 2*n + 1)], None))
if "noextra" in XP: raise SystemExit("noextra unsupported")
syncs = {3: "kvg1", 7: "kvg7", 27: None, 31: "kvg16", 35: None, 48: None, 60: "wo"}
last_m0 = [None]
def slot(t, k):
    for x in plan.pop((t, k), []):
        if x[0] == "salu":
            for p in x[1]:
                a(p)
                if " m0," in p: last_m0[0] = p
        elif x[0] == "vm":
            if len(x) > 3 and x[3] is not None and x[3] is not last_m0[0]:
                a(x[3]); last_m0[0] = x[3]
            for q_ in x[1]: vm.op(q_, x[2])
        elif x[0] == "ds":
            for q_ in x[1]: a(q_)
        else: vm.wait(x[1])
for u in range(128):
    t, e = u >> 1, u & 1
    S = Sb(u)
    ex = [f"v_exp_f32 v{S+i}, v{S+i}" for i in range(16)]
    pf = "eo"[e]
    if u + 1 < 128:
        t1, e1 = (u + 1) >> 1, (u + 1) & 1
        a(f"v_mfma_f32_32x32x16_bf16 {vr(Sb(u+1),16)}, {Kb(t1)}, {Q(e1)}, {vr(C(e1),16)}")
    a("s_waitcnt lgkmcnt(0)")
    if e == 1 and t + 2 in syncs:
        if syncs[t + 2]: vm.wait(syncs[t + 2])
        a("s_barrier")
    if "tst" in XP and e == 0 and t in (2, 4, 8, 11, 14, 17, 20, 23, 26, 28, 30, 34, 38, 42, 46, 50, 54, 58, 61): stamp(f"t{t}")
    if u == 2*(TP - 2):
        a(tagcheck(list(range(204, 212))) + "\ns_nop 1\ns_and_b32 s3, vcc_lo, 0x33333333\ns_and_b32 s23, vcc_hi, 0x33333333\ns_or_b32 s3, s3, s23\ns_cbranch_scc1 L_xwait\nL_xok:")
    if u == 86:
        vm.wait("pchk")
        a("v_cmp_gt_u32 vcc, 32, v201\ns_nop 1\ns_and_b32 s3, vcc_lo, 15\ns_cbranch_scc1 L_pwait\nL_pok:")
    if u == 100:
        vm.wait("gchk")
        a("v_cmp_gt_u32 vcc, 32, v201\ns_nop 1\ns_cmp_lg_u32 vcc_lo, 0\ns_cbranch_scc1 L_gwait\nL_gok:")
    slot(t, pf + "q")
    for x in ex[0:3]: a(x)
    Sp, tp, ep = Sb(u - 1), (u - 1) >> 1, (u - 1) & 1
    if u > 0: a(f"v_smfmac_f32_32x32x32_bf16 {vr(O(ep),16)}, {Vb(tp,0)}, {vr(Sp,8)}, v30")
    slot(t, pf + "0b")
    if e == 0:
        slot(t, "e0a"); a(f"ds_read_b128 {Vb(t,0)}, {vaddr(t,0)}"); slot(t, "e0")
    else:
        slot(t, "o0"); slot(t, "o0a")
    for x in ex[3:7]: a(x)
    if u > 0: a(f"v_smfmac_f32_32x32x32_bf16 {vr(O(ep),16)}, {Vb(tp,1)}, {vr(Sp+8,8)}, v30")
    slot(t, pf + "1b")
    if e == 0:
        slot(t, "e1"); slot(t, "e1x"); slot(t, "e1a"); a(f"ds_read_b128 {Vb(t,1)}, {vaddr(t,1)}")
    else:
        slot(t, "o1a")
        if t + 2 < 64: a(f"ds_read_b128 {Kb(t+2)}, {kaddr(t+2)}")
        slot(t, "o1x")
    for x in ex[7:16]: a(x)
assert not plan, plan.keys()
for m in range(2): a(f"v_smfmac_f32_32x32x32_bf16 {vr(O(1),16)}, {Vb(63,m)}, {vr(Sb(127)+8*m,8)}, v30")
if "clk" in XP: a("s_memtime s[100:101]\ns_memrealtime s[78:79]\ns_waitcnt lgkmcnt(0)\ns_sub_u32 s100, s100, s96\ns_sub_u32 s101, s78, s98")
stamp("attn")
Lfb, Lok = a.label("fb"), a.label("ok")
def getl():
    for e in range(2): a(f"v_mov_b32 v{4+2*e}, v{O(e)+8}\nv_mov_b32 v{5+2*e}, v{O(e)+8}")
    for e in range(2): a(f"v_permlane32_swap_b32 v{4+2*e}, v{5+2*e}")
a(f"""
s_add_u32 s3, {sXCC}, 1
v_cmp_ne_u32 vcc, s3, v253
s_lshl_b32 s65, {sCB}, 2
v_add_u32 v254, s65, v198
v_lshlrev_b32 v255, 2, v0
s_and_b32 s3, vcc_lo, 0xff
s_cselect_b32 {sFAST}, 0, {0 if FORCE_SLOW else 1}
v_mov_b32 v32, {fbits(2.0**40 if not FORCE_FB else -1.0)}
""")
if "probe" in XP:
    a(f"s_cmp_eq_u32 {sFAST}, 0\ns_cbranch_scc0 L_pr\ns_mov_b32 s3, 12\nL_pr0:\ns_sleep 127\ns_sub_u32 s3, s3, 1\ns_cmp_lg_u32 s3, 0\ns_cbranch_scc1 L_pr0\nL_pr:")
getl()
a(f"v_add_f32 v5, v4, v6\nv_cmp_nlt_f32 vcc, v5, v32\ns_cbranch_vccnz {Lfb}\n{Lok}:")
for e in range(2): a(f"v_rcp_f32 v{4+2*e}, v{4+2*e}")
for e in range(2):
    for i in range(4): a(f"v_pk_mul_f32 {vr(O(e)+2*i,2)}, {vr(O(e)+2*i,2)}, {vr(4+2*e,2)} op_sel_hi:[1,0]")
for e in range(2):
    for i in range(4): a(f"v_cvt_pk_bf16_f32 v{32+4*e+i}, v{O(e)+2*i}, v{O(e)+2*i+1}")
both_data(lambda sc: [vm.op(f"buffer_store_dwordx4 {vr(32+4*e,4)}, v3, {WS}, s16 offen offset:{e*1024}{sc}") for e in range(2)])
rd3 = lambda T, j: a(f"ds_read_b128 {vr(144+(T&1)*16+4*j,4)}, v3 offset:{L_WO + T*4096 + j*1024}")
for j in range(4): rd3(0, j)
hop_signal(1)
stamp("opub")
round_bf16(list(range(220, 236)))
for i in range(8): a(f"v_lshlrev_b32 v{32+2*i}, 16, v{8+i}\nv_and_b32 v{33+2*i}, 0xffff0000, v{8+i}")
a(f"""
v_mov_b32 v31, v218
s_lshl_b32 s64, s55, 1
s_add_u32 s64, s64, {WS_X}
s_lshr_b32 s68, s55, 4
s_lshl_b32 s3, {sCB}, 7
s_add_u32 s69, s68, s3
s_add_u32 s67, s69, {WS_ST1}
v_lshlrev_b32 v6, 3, v1
""")
hop_wait(1)
stamp("C")
def frag_load(T, tag):
    vm.op(f"buffer_load_dwordx4 {vr(64+4*T,4)}, v3, {WS}, s64 offen offset:{(T & 3)*1024} sc1", f"{tag}{T}")
    if T & 3 == 3: a("s_add_u32 s64, s64, 4096")
AH = 8
for T in range(AH): frag_load(T, "o")
g2items = win_items(1, 2, lin_slot(slotA(8)), "z2g2")
def aft3(T, j):
    if j == 0 and T + AH < 16: frag_load(T + AH, "o")
    if j == 0 and 8 <= T < 12: emit_item(g2items[T - 8])
fragloop(16, 4, rd3,
         lambda T, j: a(f"v_mfma_f32_16x16x32_bf16 {vr(128+4*j,4)}, {vr(144+(T&1)*16+4*j,4)}, {vr(64+4*T,4)}, {'0' if T == 0 else vr(128+4*j,4)}"),
         before=lambda T: vm.wait(f"o{T}"), after=aft3, preissued=True)
stamp("p3mm")
for i in range(8): a(f"v_pk_fma_f32 {vr(32+2*i,2)}, {vr(128+2*i,2)}, {vr(220+2*i,2)}, {vr(32+2*i,2)}")
for i in range(8): a(f"v_cvt_pk_bf16_f32 v{8+i}, v{32+2*i}, v{33+2*i}")
for i in range(8): a(f"v_lshlrev_b32 v{32+2*i}, 16, v{8+i}\nv_and_b32 v{33+2*i}, 0xffff0000, v{8+i}")
for i in range(8): a(f"v_pk_mul_f32 {vr(236+2*i,2)}, {vr(236+2*i,2)}, {vr(32+2*i,2)}")
for i in range(8): a(f"v_cvt_pk_bf16_f32 v{80+i}, v{236+2*i}, v{237+2*i}")
both_data(lambda sc: [vm.op(f"buffer_store_dwordx4 {vr(80+4*p,4)}, v3, {WS}, s17 offen offset:{p*1024}{sc}") for p in range(2)])
a("v_pk_mul_f32 v[88:89], v[32:33], v[32:33]\nv_pk_add_f32 v[90:91], v[32:33], v[34:35]\nv_pk_mul_f32 v[94:95], v[34:35], v[34:35]\nv_pk_add_f32 v[96:97], v[36:37], v[38:39]")
for i in range(2, 8): a(f"v_pk_fma_f32 {vr(88 + 6*(i & 1),2)}, {vr(32+2*i,2)}, {vr(32+2*i,2)}, {vr(88 + 6*(i & 1),2)}")
for i in range(4, 8): a(f"v_pk_add_f32 {vr(90 + 6*(i & 1),2)}, {vr(90 + 6*(i & 1),2)}, {vr(32+2*i,2)}")
a("v_pk_add_f32 v[88:89], v[88:89], v[94:95]\nv_pk_add_f32 v[90:91], v[90:91], v[96:97]\nv_add_f32 v93, v88, v89\nv_add_f32 v92, v90, v91")
xgroup_sum2(92, 94, 93, 95)
a("s_mov_b64 exec, 0xffff")
both_data(lambda sc: vm.op(f"buffer_store_dwordx2 v[92:93], v6, {WS}, s67 offen{sc}"))
a(f"""
s_mov_b64 exec, -1
v_add_u32 v25, 0xe000, v3
v_add_u32 v26, 0xe000, v25
v_and_b32 v4, 7, v1
v_lshlrev_b32 v4, 7, v4
v_lshl_add_u32 v30, v2, 5, v4
v_lshlrev_b32 v4, 8, v2
v_lshl_add_u32 v27, v1, 3, v4
""")
stamp("p3ep")
hop_signal(2)
stamp("ypub")
WB = (32, 204)
def rdl(dst, addr):
    w_, off = divmod(addr, 0xe000)
    a(f"ds_read_b128 {vr(dst,4)}, v{(3, 25, 26)[w_]} offset:{off}")
a(f"""
s_barrier
s_and_b32 s3, {sW}, 1
s_mul_i32 s66, s3, 3584
s_lshl_b32 s3, s3, 10
s_add_u32 m0, s3, {L_SM}
s_mul_i32 s3, {sCB}, 448
s_add_u32 s66, s66, s3
s_add_u32 s66, s66, {WS_C12}
v_add_u32 v6, {7168 - 448}, v3
v_cmp_gt_u32 vcc, 28, v0
v_cndmask_b32 v6, v6, v3, vcc
""")
vm.op(f"buffer_load_dwordx4 v6, {WS}, s66 offen sc1 lds")
for x in win_items(1, 3, [f"s_mul_i32 s75, {sW}, {SLOT}", f"s_sub_u32 s75, s75, {SLOT}", f"s_cmp_eq_u32 {sW}, 0", f"s_cselect_b32 s75, {slotA(12)}, s75"], "z2g3"): emit_item(x)
for j in range(7): rdl(WB[0] + 4*j, slot_z2(0) + j*1024)
a(f"v_add_u32 v29, {L_SM}, v31\nv_lshlrev_b32 v24, 2, v1\nv_add_u32 v24, {L_SM + 1024}, v24\ns_add_u32 s66, s68, {WS_ST1}")
hop_wait(2)
stamp("D")
vm.op(f"buffer_load_dwordx2 v[172:173], v27, {WS}, s66 offen sc1")
vm.op(f"buffer_load_dwordx2 v[174:175], v27, {WS}, s66 offen offset:128 sc1", "st1")
for T in range(AH): frag_load(T, "y")
a(f"v_lshlrev_b32 v4, 7, v0\nv_mov_b32 v27, {OOB}\nv_cmp_gt_u32 vcc, 14, v0\nv_cndmask_b32 v27, v27, v4, vcc")
vm.wait("st1")
a("v_pk_add_f32 v[172:173], v[172:173], v[174:175]")
xgroup_sum2(172, 174, 173, 175)
finish_stats([(172, 173, 62, 28, None)], 512)
a(f"v_mul_f32 v62, v62, v28\nv_mov_b32 v60, {fbits(-2*math.log2(math.e)*math.sqrt(2/math.pi))}\nv_mov_b32 v61, v60")
for i in range(4): a(f"ds_bpermute_b32 v{20+i}, v31, v28 offset:{4*i}\nds_bpermute_b32 v{16+i}, v31, v62 offset:{4*i}")
CP = [232, 234, 236, 238, 240, 242, 244]
z1items = {g_: win_items(0, g_, lin_slot(slotB(3) if g_ == 0 else slotA(4*(g_ - 1))), f"z1g{g_}") for g_ in range(4)}
def bef(T):
    if T == 11: a("s_waitcnt lgkmcnt(0)\ns_barrier")
    vm.wait(f"y{T}")
def aft(T, j):
    if j == 0 and T + AH < 16: frag_load(T + AH, "y")
    if j == 3 and T in (8, 10, 12, 14): emit_item(z1items[0][(T - 8) // 2])
    if j == 3 and T in (9, 11, 13, 15):
        vm.op(f"buffer_load_dword v252, v27, {WS}, s26 offen sc1"); a("s_add_u32 s26, s26, 1792")
fragloop(16, 7, lambda T, j: rdl(WB[T & 1] + 4*j, slot_z2(T) + j*1024),
         lambda T, j: a(f"v_mfma_f32_16x16x32_bf16 {vr(128+4*j,4)}, {vr(64+4*T,4)}, {vr(WB[T & 1]+4*j,4)}, {'0' if T == 0 else vr(128+4*j,4)}"),
         before=bef, after=aft, preissued=True)
for j in range(7): a(f"ds_read2_b32 {vr(CP[j],2)}, v24 offset0:{j*16} offset1:{j*16 + 112}")
stamp("z2mm")
a(f"s_mov_b32 s64, {fbits(-2*math.log2(math.e)*math.sqrt(2/math.pi)*0.044715)}\ns_mov_b32 s65, s64\ns_mov_b32 s66, 1.0\ns_mov_b32 s67, 1.0\ns_waitcnt lgkmcnt(0)")
def gelu(acc, tmp, mid=None, mid2=None, mid0=None):
    P = range(14)
    for i in P: a(f"v_pk_mul_f32 {vr(tmp+2*i,2)}, {vr(acc+2*i,2)}, {vr(acc+2*i,2)}")
    for i in P: a(f"v_pk_fma_f32 {vr(tmp+2*i,2)}, {vr(tmp+2*i,2)}, s[64:65], v[60:61]")
    for i in P: a(f"v_pk_mul_f32 {vr(tmp+2*i,2)}, {vr(tmp+2*i,2)}, {vr(acc+2*i,2)}")
    if mid0: mid0()
    for i in range(28): a(f"v_exp_f32 v{tmp+i}, v{tmp+i}")
    if mid: mid()
    for i in P: a(f"v_pk_add_f32 {vr(tmp+2*i,2)}, {vr(tmp+2*i,2)}, s[66:67]")
    for i in range(28): a(f"v_rcp_f32 v{tmp+i}, v{tmp+i}")
    if mid2: mid2()
    for i in P: a(f"v_pk_mul_f32 {vr(acc+2*i,2)}, {vr(acc+2*i,2)}, {vr(tmp+2*i,2)}")
for i in range(14): a(f"v_pk_fma_f32 {vr(32+2*i,2)}, {vr(16+2*(i & 1),2)}, {vr(CP[i >> 1],2)}, {vr(CP[i >> 1],2)} op_sel:[0,0,1] op_sel_hi:[1,0,1]")
for i in range(14): a(f"v_pk_fma_f32 {vr(128+2*i,2)}, {vr(128+2*i,2)}, {vr(20+2*(i & 1),2)}, {vr(32+2*i,2)}")
gelu(128, 32, mid0=lambda: emit_item(z1items[1][0]), mid=lambda: (emit_item(z1items[1][1]), emit_item(z1items[1][2])), mid2=lambda: emit_item(z1items[1][3]))
for j in range(7): rdl(WB[0] + 4*j, slot_z1(0) + j*1024) if False else None
for h in range(2):
    a(f"v_pk_add_f32 {vr(156+2*h,2)}, {vr(128+2*h,2)}, {vr(132+2*h,2)}\nv_pk_mul_f32 {vr(160+2*h,2)}, {vr(128+2*h,2)}, {vr(128+2*h,2)}")
for j in range(1, 7):
    for h in range(2):
        if j > 1: a(f"v_pk_add_f32 {vr(156+2*h,2)}, {vr(156+2*h,2)}, {vr(128+4*j+2*h,2)}")
        a(f"v_pk_fma_f32 {vr(160+2*h,2)}, {vr(128+4*j+2*h,2)}, {vr(128+4*j+2*h,2)}, {vr(160+2*h,2)}")
dppsum(range(156, 164), (8, 4, 2, 1))
a(f"s_add_u32 s70, s69, {WS_ST2}\nv_lshlrev_b32 v6, 5, v2\ns_mov_b32 exec_lo, 0x00010001\ns_mov_b32 exec_hi, 0x00010001")
both_data(lambda sc: (vm.op(f"buffer_store_dwordx4 v[156:159], v6, {WS}, s70 offen{sc}"), vm.op(f"buffer_store_dwordx4 v[160:163], v6, {WS}, s70 offen offset:16{sc}", "sst")))
a("s_mov_b64 exec, -1")
vm.wait("z1g0")
a("s_barrier")
stamp("spub")
def z2_publish():
    hop_wait(3)
    stamp("S")
    a(f"s_add_u32 s3, s68, {WS_ST2}")
    vm.op(f"buffer_load_dwordx4 v[164:167], v30, {WS}, s3 offen sc1")
    vm.op(f"buffer_load_dwordx4 v[168:171], v30, {WS}, s3 offen offset:16 sc1", "st2")
    srd(R1, P_BSP, 4096)
    a("s_lshr_b32 s3, s55, 9\nv_lshlrev_b32 v4, 1, v1")
    vm.op(f"buffer_load_ushort v16, v4, {R1}, s3 offen", "bsp")
    a(f"""
s_lshl_b32 s70, {sCB}, 6
s_lshl_b32 s3, {sRB}, 1
s_add_u32 s70, s70, s3
s_lshr_b32 s3, {sW}, 1
s_add_u32 s70, s70, s3
s_mul_i32 s70, s70, 7168
s_and_b32 s3, {sW}, 1
s_lshl_b32 s3, s3, 9
s_add_u32 s70, s70, s3
s_add_u32 s70, s70, {WS_Z2}
s_add_u32 s71, s70, 4096
v_and_b32 v4, 1, v2
v_lshlrev_b32 v4, 10, v4
v_lshrrev_b32 v5, 1, v2
v_lshl_add_u32 v4, v5, 8, v4
v_lshl_add_u32 v6, v1, 4, v4
""")
    vm.wait("st2")
    dppsum(range(164, 172), (4, 2, 1))
    finish_stats([(164+i, 168+i, 156+i, 160+i, None) for i in range(4)], 896)
    for h in range(2): a(f"v_pk_mul_f32 {vr(156+2*h,2)}, {vr(156+2*h,2)}, {vr(160+2*h,2)}")
    for i in range(14): a(f"v_pk_fma_f32 {vr(128+2*i,2)}, {vr(128+2*i,2)}, {vr(160+2*(i & 1),2)}, {vr(156+2*(i & 1),2)}")
    for i in range(14): a(f"v_cvt_pk_bf16_f32 v{232+i}, v{128+2*i}, v{129+2*i}")
    a("v_mov_b32 v246, v244\nv_mov_b32 v247, v245")
    for p in range(4): a(f"v_permlane16_swap_b32 v{232+4*p}, v{234+4*p}\nv_permlane16_swap_b32 v{233+4*p}, v{235+4*p}")
    vm.op(f"buffer_store_dwordx4 v[232:235], v6, {WS}, s70 offen sc1")
    vm.op(f"buffer_store_dwordx4 v[236:239], v6, {WS}, s70 offen offset:2048 sc1")
    vm.op(f"buffer_store_dwordx4 v[240:243], v6, {WS}, s71 offen sc1")
    a("s_mov_b32 exec_lo, 0x0000ffff\ns_mov_b32 exec_hi, 0x0000ffff")
    vm.op(f"buffer_store_dwordx4 v[244:247], v6, {WS}, s71 offen offset:2048 sc1", "zst")
    a(f"""
s_mov_b64 exec, -1
s_sub_u32 s71, s71, 4096
v_lshrrev_b32 v4, 2, v0
v_lshlrev_b32 v4, 10, v4
v_and_b32 v5, 3, v0
v_lshl_add_u32 v4, v5, 7, v4
v_mov_b32 v18, {OOB}
v_cmp_gt_u32 vcc, 28, v0
v_cndmask_b32 v18, v18, v4, vcc
s_lshl_b32 s70, {sRB}, 3
s_add_u32 s70, s70, {sCB}
s_lshl_b32 s70, s70, 9
s_lshl_b32 s3, {sW}, 7
s_add_u32 s70, s70, s3
s_add_u32 s70, s70, {F_E}
""")
    stamp("zst")
def bef(T):
    if T == 2: hop_signal(3, "sst")
    if T == 3: a("s_barrier")
    if T == TS: z2_publish()
    if T == TE:
        vm.wait("zst"); vm.op(f"buffer_store_dword v17, v63, {WS}, s70 offen sc1")
        if "own" in XP: vm.op(f"buffer_load_dword v252, v18, {WS}, s71 offen sc1")
        stamp("zpub")
    if T == 7: a("s_barrier")
def aft(T, j):
    if T < 2 and j in (1, 4): emit_item(z1items[2][2*T + (j == 4)])
    if 2 <= T < 4 and j in (1, 4): emit_item(z1items[3][2*(T - 2) + (j == 4)])
    pass
TS, TE = 7, 12
a(f"v_mov_b32 v17, 1\nv_mov_b32 v63, {OOB}\nv_cmp_eq_u32 vcc, 0, v0\nv_cndmask_b32 v63, v63, v0, vcc")
fragloop(16, 7, lambda T, j: rdl(WB[T & 1] + 4*j, slot_z1(T) + j*1024),
         lambda T, j: a(f"v_mfma_f32_16x16x32_bf16 {vr(176+4*j,4)}, {vr(WB[T & 1]+4*j,4)}, {vr(64+4*T,4)}, {'0' if T == 0 else vr(176+4*j,4)}"), before=bef, after=aft)
for j in range(7): a(f"ds_read_b128 {vr(204+4*j,4)}, v29 offset:{j*64}\nds_read_b128 {vr(128+4*j,4)}, v29 offset:{448 + j*64}")
a("s_barrier")
stamp("z1mm")
a(f"s_lshl_b32 s70, {sW}, 15\ns_lshl_b32 s3, {sCB}, 9\ns_add_u32 s70, s70, s3\ns_add_u32 s70, s70, {F_E}\nv_lshrrev_b32 v6, 2, v0\nv_lshlrev_b32 v6, 12, v6\nv_and_b32 v5, 3, v0\nv_lshl_add_u32 v6, v5, 7, v6")
a(f"s_lshl_b32 s72, {sCB}, 2\ns_add_u32 s72, s72, {sW}\ns_mul_i32 s72, s72, {16*7168}\ns_add_u32 s72, s72, {WS_Z2}\ns_add_u32 s73, s72, 4096")
poll(f"buffer_load_dword v4, v6, {WS}, s70 offen sc1", "v_cmp_gt_u32 vcc, 1, v4", "0xffffffff", int(([x[4:] for x in XP if x.startswith("bke:")] or ["0"])[0]))
stamp("E")
ZB = lambda T: (64, 92, 32)[T % 3]
def ldz(T, j):
    vm.op(f"buffer_load_dwordx4 {vr(ZB(T)+4*j,4)}, v3, {WS}, s{72 + (j >> 2)} offen offset:{(j & 3)*1024} sc1", f"z{T}_{j}")
    if j == 6: a("s_add_u32 s72, s72, 7168\ns_add_u32 s73, s73, 7168")
for j in range(7): ldz(0, j)
a("s_waitcnt lgkmcnt(0)")
for i in range(14): a(f"v_pk_fma_f32 {vr(128+2*i,2)}, {vr(204+2*i,2)}, v[62:63], {vr(128+2*i,2)} op_sel_hi:[1,0,1]")
for i in range(14): a(f"v_pk_fma_f32 {vr(176+2*i,2)}, {vr(176+2*i,2)}, v[28:29], {vr(128+2*i,2)} op_sel_hi:[1,0,1]")
P3D = "p3d" in XP
gelu(176, 204, mid=lambda: [ldz(1, j) for j in range(7)], mid2=(lambda: [ldz(2, j) for j in range(7)]) if P3D else None)
for i in range(14): a(f"v_cvt_pk_bf16_f32 v{240+i}, v{176+2*i}, v{177+2*i}")
Z1P = list(range(240, 254))
stamp("gelu1")
def wout_setup(n0):
    a(f"s_mul_i32 s3, {sCB}, {28*4096}\ns_add_u32 s75, s3, {WS_WOUTF + n0*4096}\ns_lshl_b32 s76, {sW}, 10\ns_add_u32 s74, s75, s76\ns_add_u32 s76, s76, {L_WOUT + n0*4096}")
def wout_one(tag):
    a("s_mov_b32 m0, s76\ns_add_u32 s76, s76, 4096")
    vm.op(f"buffer_load_dwordx4 v3, {WS}, s74 offen sc1 lds", tag)
    a("s_add_u32 s74, s74, 4096")
def wout_dma(n0, n1, tag):
    wout_setup(n0)
    for n in range(n0, n1): wout_one(tag)
wout_setup(0)
for s_ in range(1, 4):
    a(f"s_add_u32 s3, {sW}, {s_}\ns_and_b32 s3, s3, 3\ns_mul_i32 s3, s3, {21*1024}\ns_add_u32 s3, s3, {L_RED + (s_-1)*7168}\nv_add_u32 v{16+s_}, s3, v3")
a(f"s_mul_i32 s3, {sW}, {21*1024}\ns_add_u32 s3, s3, {L_RED}\nv_add_u32 v20, s3, v3\nv_lshlrev_b32 v16, 16, v16")
def p5(T, j, s_):
    d = vr(128 + (s_*7 + j)*4, 4)
    a(f"v_mfma_f32_16x16x32_bf16 {d}, {vr(ZB(T)+4*j,4)}, {ar((T*4+s_)*4,4)}, {'0' if T == 0 else d}")
for T in range(16):
    for j in range(7):
        vm.wait(f"z{T}_{j}")
        for s_ in ((0, 1, 2, 3) if T < 13 else (1, 2, 3)):
            p5(T, j, s_)
            if P3D and s_ == 3 and T + 3 < 16: ldz(T + 3, j)
            if not P3D and (s_ == 0 and T + 2 < 16 or s_ == 1 and T == 13): ldz(T + 2, j)
            if s_ == 2 and (j == 3 or (j == 0 and T >= 13)): wout_one("wout0")
stamp("p5mm")
for n in range(21):
    a(f"ds_write_b128 v{17 + n // 7}, {vr(128 + (7 + n)*4, 4)} offset:{(n % 7)*1024}")
    p5(13 + n // 7, n % 7, 0)
for i in range(14): a(f"v_lshlrev_b32 v{156+2*i}, 16, v{Z1P[i]}\nv_and_b32 v{157+2*i}, 0xffff0000, v{Z1P[i]}")
for i in range(14): a(f"v_pk_add_f32 {vr(128+2*i,2)}, {vr(128+2*i,2)}, v[16:17] op_sel_hi:[1,0]")
a(f"""
s_lshl_b32 s68, s55, 1
s_add_u32 s68, s68, {WS_X}
s_mul_i32 s64, {sCB}, 3072
s_add_u32 s64, s64, s68
s_lshl_b32 s65, {sCB}, 9
s_add_u32 s65, s65, s68
s_add_u32 s65, s65, {24*1024}
v_lshrrev_b32 v6, 5, v0
v_lshlrev_b32 v6, 8, v6
v_lshl_add_u32 v6, v1, 4, v6
s_waitcnt lgkmcnt(0)
s_barrier
""")
stamp("red")
order = [(k, j) for j in range(7) for k in range(3)]
for k, j in order[:15]: a(f"ds_read_b128 {vr(32+(k*7+j)*4,4)}, v20 offset:{(k*7+j)*1024}")
for j in range(7):
    for k, jj in order[15 + 3*j:18 + 3*j]: a(f"ds_read_b128 {vr(32+(k*7+jj)*4,4)}, v20 offset:{(k*7+jj)*1024}")
    a(f"s_waitcnt lgkmcnt({min(15, 18 - 3*j)})")
    for h in range(2):
        a(f"v_pk_add_f32 {vr(32+4*j+2*h,2)}, {vr(32+4*j+2*h,2)}, {vr(60+4*j+2*h,2)}\nv_pk_add_f32 {vr(128+4*j+2*h,2)}, {vr(128+4*j+2*h,2)}, {vr(88+4*j+2*h,2)}")
    for h in range(2): a(f"v_pk_add_f32 {vr(128+4*j+2*h,2)}, {vr(128+4*j+2*h,2)}, {vr(32+4*j+2*h,2)}")
    for h in range(2): a(f"v_pk_mul_f32 {vr(128+4*j+2*h,2)}, {vr(128+4*j+2*h,2)}, {vr(156+4*j+2*h,2)}")
    for h in range(2): a(f"v_cvt_pk_bf16_f32 v{184+2*j+h}, v{128+4*j+2*h}, v{129+4*j+2*h}")
a("v_mov_b32 v198, v196\nv_mov_b32 v199, v197\nv_permlane16_swap_b32 v196, v198\nv_permlane16_swap_b32 v197, v199")
def pubu(sc):
    for p in range(3): vm.op(f"buffer_store_dwordx4 {vr(184+4*p,4)}, v3, {WS}, s64 offen offset:{p*1024}{sc}")
    a("s_mov_b32 exec_lo, 0x0000ffff\ns_mov_b32 exec_hi, 0x0000ffff")
    vm.op(f"buffer_store_dwordx4 v[196:199], v6, {WS}, s65 offen{sc}")
    a("s_mov_b64 exec, -1")
pubu(' sc1')
hop_signal(4)
stamp("upub")
a("s_barrier")
rd6 = lambda n, j: rdl(160 + (n & 1)*16 + 4*j, L_WOUT + n*4096 + j*1024)
for j in range(4): rd6(0, j)
wout_dma(19, 28, "wout1")
hop_wait(4)
stamp("F")
steps = []
for cbp in range(8):
    for p in range(3): steps.append((cbp*3 + p, 112*cbp + 32*p, False))
    if cbp & 1: steps.append((24 + (cbp >> 1), 224*(cbp >> 1) + 96, True))
a("s_mov_b32 s64, s68")
for n in range(1, 7): a(f"s_add_u32 s{64+n if n < 4 else 66+n}, s64, {4096*n}")
US = ["s64", "s65", "s66", "s67", "s70", "s71", "s72"]
def uload(n):
    st = steps[n][0]
    vm.op(f"buffer_load_dwordx4 {vr(32+4*n,4)}, v3, {WS}, {US[st >> 2]} offen offset:{(st & 3)*1024} sc1", f"u{n}")
for n in range(AH): uload(n)
a(f"s_lshl_b32 s74, {sCB}, 8\ns_add_u32 s74, s74, {WS_G2 + 2048}")
def aft6(n, j):
    if j == 0 and n + AH < 28: uload(n + AH)
    if j == 0 and 28 <= n + AH < 32: vm.op(f"buffer_load_dwordx4 {vr(216+4*(n+AH-28),4)}, v31, {WS}, s74 offen offset:{(n+AH-28)*64} sc1", "gb")
stamp("u_iss")
def bef(n):
    if n == 18: a("s_barrier")
    vm.wait(f"u{n}")
fragloop(28, 4, rd6,
         lambda n, j: a(f"v_mfma_f32_16x16x32_bf16 {vr(144+4*j,4)}, {vr(160+(n&1)*16+4*j,4)}, {vr(32+4*n,4)}, {'0' if n == 0 else vr(144+4*j,4)}"),
         before=bef, after=aft6, preissued=True)
stamp("p6mm")
vm.wait("gb")
for i in range(8): a(f"v_lshlrev_b32 v{32+2*i}, 16, v{8+i}\nv_and_b32 v{33+2*i}, 0xffff0000, v{8+i}")
for i in range(8): a(f"v_pk_fma_f32 {vr(32+2*i,2)}, {vr(144+2*i,2)}, {vr(216+2*i,2)}, {vr(32+2*i,2)}")
for i in range(8): a(f"v_cvt_pk_bf16_f32 v{48+i}, v{32+2*i}, v{33+2*i}")
for p in range(2): a(f"v_permlane16_swap_b32 v{48+4*p}, v{50+4*p}\nv_permlane16_swap_b32 v{49+4*p}, v{51+4*p}")
srd(R1, P_OUT, 2048 * 1024, "s55")
a(f"v_lshlrev_b32 v4, 10, v1\nv_and_b32 v5, 1, v2\nv_lshl_add_u32 v4, v5, 5, v4\nv_lshrrev_b32 v5, 1, v2\nv_lshl_add_u32 v4, v5, 4, v4\ns_lshl_b32 s3, {sCB}, 7")
for p in range(2): a(f"buffer_store_dwordx4 {vr(48+4*p,4)}, v4, {R1}, s3 offen offset:{p*64} nt")
if AMP:
    a("s_waitcnt vmcnt(0)")
    stamp("end")
    assert AMP[0] != "start"
    a("s_sub_u32 s91, s91, s90\ns_min_u32 s91, s91, 10000\ns_memrealtime s[78:79]\ns_waitcnt lgkmcnt(0)\ns_mov_b32 s92, s78\nL_amp:\ns_sleep 1\ns_memrealtime s[78:79]\ns_waitcnt lgkmcnt(0)\ns_sub_u32 s78, s78, s92\ns_cmp_lt_u32 s78, s91\ns_cbranch_scc1 L_amp")
elif "dbg" in XP:
    a("s_waitcnt vmcnt(0)")
    stamp("end")
    sel = ["xin", "barP", "barB", "kv0", "attn", "C", "D", "z2mm", "zpub", "E", "p5mm", "upub", "F", "p6mm", "end"]
    a("s_not_b32 s3, s80\nv_mov_b32 v32, s3")
    for n, nm in enumerate(sel):
        i = stamp_names.index(nm)
        a(f"s_bfe_u32 s3, s{81 + (i-1)//2}, {hex((16 << 16) | (16*((i-1) & 1)))}\ns_add_u32 s3, s3, s80\nv_writelane_b32 v32, s3, {n+1}")
    a("s_load_dwordx2 s[64:65], s[96:97], 104\ns_waitcnt lgkmcnt(0)")
    srd(R1, 64, 256)
    a(f"v_lshlrev_b32 v4, 2, v0\ns_mov_b64 exec, 0xffff\nbuffer_atomic_umax v32, v4, {R1}, 0 offen sc1\ns_waitcnt vmcnt(0)")
elif STAMPS:
    a("s_waitcnt vmcnt(0)")
    stamp("end")
    for i in range(22): a(f"v_writelane_b32 v32, s{80+i}, {i}")
    a(f"s_lshl_b32 s3, s2, 2\ns_add_u32 s3, s3, {sW}\ns_lshl_b32 s3, s3, 7\ns_add_u32 s3, s3, {WS_STAMP}\nv_lshlrev_b32 v4, 2, v0\ns_mov_b64 exec, 0xffffffff\nbuffer_store_dword v32, v4, {WS}, s3 offen")
a("s_endpgm")
a("L_xwait:")
poll(f"buffer_load_dwordx4 v[204:207], v216, {WS}, s25 offen sc1\nbuffer_load_dwordx4 v[208:211], v216, {WS}, s25 offen offset:64 sc1", tagcheck(list(range(204, 212))), "s[74:75]", pre="s_mov_b32 s74, 0x33333333\ns_mov_b32 s75, s74")
a("s_branch L_xok\nL_pwait:")
poll(f"buffer_load_dword v201, v174, {WS}, s27 offen sc1", "v_cmp_gt_u32 vcc, 32, v201", "15", 8)
a("s_branch L_pok\nL_gwait:")
poll(f"buffer_load_dword v201, v196, {WS}, s38 offen sc1", "v_cmp_gt_u32 vcc, 32, v201", "0xffffffff", 8)
a("s_branch L_gok")
a(f"{Lfb}:")
a(f"""
v_lshrrev_b32 v4, 5, v0
v_mul_u32_u24 v4, 272, v4
v_and_b32 v5, 31, v0
v_lshl_add_u32 v27, v5, 4, v4
v_mov_b32 v4, 0xff800000
v_mov_b32 v5, 0xff800000
s_mov_b32 s64, {WS_KV}
L_fb1:
buffer_load_dwordx4 {Kb(0)}, v3, {WS}, s64 offen offset:1088 sc1
s_waitcnt vmcnt(0)
""")
for e in range(2): a(f"v_mfma_f32_32x32x16_bf16 {vr(32+16*e,16)}, {Kb(0)}, {Q(e)}, 0")
for e in range(2): rowmax(32 + 16*e, 4 + e, False)
a(f"s_add_u32 s64, s64, {REC}\ns_cmp_lt_u32 s64, {WS_KV + 64*REC}\ns_cbranch_scc1 L_fb1")
for e in range(2): negbcast(4 + e, e)
for i in range(32): a(f"v_mov_b32 v{80+i}, 0")
a(f"""
s_mov_b32 s64, {WS_KV}
L_fb2:
buffer_load_dwordx4 {Kb(0)}, v3, {WS}, s64 offen offset:1088 sc1
buffer_load_dwordx4 {Vb(0,0)}, v27, {WS}, s64 offen sc1
buffer_load_dwordx4 {Vb(0,1)}, v27, {WS}, s64 offen offset:544 sc1
s_waitcnt vmcnt(0)
""")
for e in range(2): a(f"v_mfma_f32_32x32x16_bf16 {vr(32+16*e,16)}, {Kb(0)}, {Q(e)}, {vr(C(e),16)}")
for i in range(32): a(f"v_exp_f32 v{32+i}, v{32+i}")
for e in range(2):
    for m in range(2): a(f"v_smfmac_f32_32x32x32_bf16 {vr(O(e),16)}, {Vb(0,m)}, {vr(32+16*e+8*m,8)}, v30")
a(f"s_add_u32 s64, s64, {REC}\ns_cmp_lt_u32 s64, {WS_KV + 64*REC}\ns_cbranch_scc1 L_fb2")
getl()
a(f"s_branch {Lok}\nL_end:\ns_endpgm")

body = a.finish()
head = open("cdna_kernels/" + NAME + ".s.ref").read().split("; Override launch")[0]
src = head + f"""; One persistent launch: 256 workgroups (32 row blocks x 8 column blocks), 4 waves each; generated by gen/gen.py.
; @launch grid=(256,1,1) block=(256,1,1) lds={LDS_BYTES}
.amdgcn_target "amdgcn-amd-amdhsa--gfx950"
.text
.globl {NAME}_kernel
.p2align 8
.type {NAME}_kernel,@function
{NAME}_kernel:
{body}.section .rodata,"a"
.p2align 6
.amdhsa_kernel {NAME}_kernel
  .amdhsa_next_free_vgpr 512
  .amdhsa_next_free_sgpr 102
  .amdhsa_accum_offset 256
  .amdhsa_group_segment_fixed_size 0
  .amdhsa_kernarg_size 120
  .amdhsa_user_sgpr_count 2
  .amdhsa_user_sgpr_kernarg_segment_ptr 1
  .amdhsa_system_sgpr_workgroup_id_x 1
.end_amdhsa_kernel
"""
out = [x for x in sys.argv[1:] if not x.startswith("--")]
open(out[0] if out else "cdna_kernels/" + NAME + ".s", "w").write(src)
if STAMPS:
    open("stamps.txt", "w").write("\n".join(stamp_names)); open(out[0] + ".st", "w").write("\n".join(stamp_names))
print("instructions:", sum(1 for k, _ in a.items if k == "ins"), "hazard nops:", a.nops, file=sys.stderr)
```

```python
import sys, struct, math
from asmlib import Asm

NAME = "adaLN_cond__grouped_kv_mqa__mixer_gmlp__prompt"
STAMPS = "--stamps" in sys.argv or "--cyc" in sys.argv
CYC = "--cyc" in sys.argv
FORCE_SLOW = "--slow" in sys.argv
PADZERO = "--nopadzero" not in sys.argv
XP = [x[5:] for x in sys.argv if x.startswith("--xp=")]
FORCE_FB = "--fallback" in sys.argv

def fbits(x): return "0x%08x" % struct.unpack("<I", struct.pack("<f", x))[0]

F_B, F_HOP, F_P, WS_G2, F_E, WS_C12 = 0, 32768, 49152, 53248, 57344, 188416
WS_MOD, WS_MODT, WS_EPOCH, WS_KV = 0x38000, 0x3B000, 0x3E000, 0x40000
WS_ST1, WS_ST2 = 0x70000, 0x90000
WS_X, WS_Z2, WS_STAMP, WS_SIZE = 0x100000, 0x500000, 0xD00000, 0x1200000
WS_WOF, WS_WOUTF, WS_DUMMY, WS_WINF = 0xD80000, 0xE00000, 0xF00000, 0x1000000
REC = 2112
L_G2 = 16384
L_KV = 28672
L_WQ, L_WKV, L_G0, L_SILU, L_PAR = 28672, 94208, 110592, 126976, 0
L_RING, L_SM = 0, 158720
L_WO = 0
SLOT = 7168
def slotA(i): return 65536 + SLOT * i
def slotB(i): return SLOT * i
def slot_z2(T): return slotA(T) if T < 13 else slotB(T - 13)
def slot_z1(T): return slotB(3 + T) if T < 4 else slotA(T - 4)
L_WOUT, L_RED = 0, 114688
LDS_BYTES = 163840
R0, WS, R1, R2, R3 = "s[4:7]", "s[8:11]", "s[12:15]", "s[56:59]", "s[60:63]"
P_X, P_WQ, P_WK, P_WV, P_WO, P_WIN, P_WSP, P_BSP, P_WOUT, P_C, P_WMOD, P_OUT, P_DBG, P_WS = 16, 18, 20, 22, 24, 28, 30, 32, 34, 36, 38, 40, 42, 44
sRB, sCB, sW, sXCC, sFAST, sIDX, sXCD, sKVW, sGRP = "s46", "s47", "s48", "s49", "s50", "s51", "s52", "s53", "s54"
sEP, sTAG = "s42", "s43"
SPIN = 1 << 17
OOB = 0x7fff0000

a = Asm()
def vr(b, n): return f"v[{b}:{b+n-1}]"
def ar(b, n): return f"a[{b}:{b+n-1}]"

class VM:
    def __init__(s): s.n = 0; s.tags = {}
    def op(s, text, tag=None):
        a(text); s.n += 1
        if tag: s.tags[tag] = s.n
    def tag(s, t): s.tags[t] = s.n
    def wait(s, t):
        k = s.n - s.tags[t]
        if k < 63: a(f"s_waitcnt vmcnt({k})")
    def drain(s): a("s_waitcnt vmcnt(0)")
vm = VM()

def srd(q, ptr, size, off=None):
    b = int(q[2:q.index(":")])
    if off is None:
        a(f"s_mov_b32 s{b}, s{ptr}\ns_mov_b32 s{b+1}, s{ptr+1}\ns_mov_b32 s{b+2}, {size}")
    else:
        a(f"s_add_u32 s{b}, s{ptr}, {off}\ns_addc_u32 s{b+1}, s{ptr+1}, 0\ns_sub_u32 s{b+2}, {size}, {off}")
    a(f"s_mov_b32 s{b+3}, 0x20000")

nstamp = [0]
stamp_names = []
AMP = [x[4:] for x in XP if x.startswith("amp:")]
def stamp(name):
    if AMP and name in ("start", AMP[0]): a(f"s_memrealtime s[78:79]\ns_waitcnt lgkmcnt(0)\ns_mov_b32 s{90 if name == 'start' else 91}, s78")
    if not STAMPS: return
    if "dbg" in XP and name not in ("start", "xin", "barP", "barB", "kv0", "attn", "C", "D", "z2mm", "zpub", "E", "p5mm", "upub", "F", "p6mm", "end"): return
    if "tst" in XP and name in ("xin", "ln1", "h", "kv", "q", "p3mm", "p3ep", "y_iss", "st1", "init", "u_iss", "S", "opub", "ypub", "spub"): return
    i = nstamp[0]; nstamp[0] += 1; stamp_names.append(name)
    if "clk" in XP and i >= 30: return
    assert i < 43
    a("s_memrealtime s[78:79]\ns_waitcnt lgkmcnt(0)" if not CYC else "s_memtime s[78:79]\ns_waitcnt lgkmcnt(0)\ns_lshr_b32 s78, s78, 2")
    if i == 0: a("s_mov_b32 s80, s78" if "ms" not in XP else "s_mov_b32 s80, s76")
    elif i & 1: a(f"s_sub_u32 s{81 + i//2}, s78, s80")
    else: a(f"s_sub_u32 s78, s78, s80\ns_pack_ll_b32_b16 s{80 + i//2}, s{80 + i//2}, s78")

def poll(load, cond, mask, backoff=0, pre=None):
    L, X = a.label("poll"), a.label("pollx")
    if pre: a(pre)
    a(f"s_mov_b64 exec, {mask}\ns_mov_b32 s3, 0\n{L}:\ns_add_u32 s3, s3, 1\ns_cmp_gt_u32 s3, {SPIN}\ns_cbranch_scc1 {X}")
    if backoff: a(f"s_sleep {backoff}")
    a(load); a("s_waitcnt vmcnt(0)"); a(cond)
    a(f"s_cbranch_vccnz {L}\n{X}:\ns_mov_b64 exec, -1")

PLAIN = "noplain" not in XP
def both_data(fn): both(fn) if PLAIN else fn(" sc1")
def both(fn):
    S, E = a.label("slow"), a.label("pub")
    n0 = vm.n
    a(f"s_cmp_eq_u32 {sFAST}, 0\ns_cbranch_scc1 {S}")
    fn(""); n1 = vm.n
    a(f"s_branch {E}\n{S}:"); vm.n = n0
    fn(" sc1"); assert vm.n == n1
    a(f"{E}:")

def hop_signal(phase, tag=None):
    a(f"v_mov_b32 v4, {phase}")
    if tag: vm.wait(tag)
    else: a("s_waitcnt vmcnt(0)")
    both(lambda sc: vm.op(f"buffer_store_dword v4, v254, {WS}, {sGRP} offen{sc}"))

def hop_wait(phase):
    poll(f"buffer_load_dword v4, v255, {WS}, {sGRP} offen sc1", f"v_cmp_gt_u32 vcc, {phase}, v4", "0xff")

def xgroup_sum(v, t):
    a(f"v_mov_b32 v{t}, v{v}\nv_permlane32_swap_b32 v{v}, v{t}\nv_add_f32 v{v}, v{v}, v{t}")
    a(f"v_mov_b32 v{t}, v{v}\nv_permlane16_swap_b32 v{v}, v{t}\nv_add_f32 v{v}, v{v}, v{t}")

def xgroup_sum2(v, t, v2, t2):
    for op in ("v_permlane32_swap_b32", "v_permlane16_swap_b32"):
        a(f"v_mov_b32 v{t}, v{v}\nv_mov_b32 v{t2}, v{v2}\n{op} v{v}, v{t}\n{op} v{v2}, v{t2}\nv_add_f32 v{v}, v{v}, v{t}\nv_add_f32 v{v2}, v{v2}, v{t2}")

def capture(fn):
    n = len(a.items); fn(); out = a.items[n:]; del a.items[n:]
    return out

def pipeline(nsteps, reads, compute, nreads, pre=1):
    for T in range(min(pre, nsteps)): reads(T)
    for T in range(nsteps):
        if T + pre < nsteps: reads(T + pre)
        left = min(pre, nsteps - 1 - T) * nreads
        a(f"s_waitcnt lgkmcnt({min(left, 15)})")
        compute(T)

def fragloop(nsteps, nf, read, mfma, before=None, after=None, nper=1, preissued=False):
    if not preissued:
        for j in range(nf): read(0, j)
    for T in range(nsteps):
        if before: before(T)
        for j in range(nf):
            left = (nf - 1 if T + 1 < nsteps else nf - 1 - j) * nper
            a(f"s_waitcnt lgkmcnt({min(left, 15)})")
            mfma(T, j)
            if T + 1 < nsteps: read(T + 1, j)
            if after: after(T, j)

def dppsum(regs, steps):
    for s in steps:
        for r in regs: a(f"v_add_f32_dpp v{r}, v{r}, v{r} row_ror:{s} row_mask:0xf bank_mask:0xf")
def finish_stats(rows, n):
    for s1, s2, mu, r, sd in rows: a(f"v_mul_f32 v{mu}, {fbits(-1.0/n)}, v{s1}\nv_mul_f32 v{s2}, {fbits(1.0/n)}, v{s2}")
    for s1, s2, mu, r, sd in rows: a(f"v_fma_f32 v{s2}, -v{mu}, v{mu}, v{s2}")
    for s1, s2, mu, r, sd in rows: a(f"v_max_f32 v{s2}, 0, v{s2}")
    for s1, s2, mu, r, sd in rows: a(f"v_add_f32 v{s2}, {fbits(1e-5)}, v{s2}")
    for s1, s2, mu, r, sd in rows: a(f"v_rsq_f32 v{r}, v{s2}")
    for s1, s2, mu, r, sd in rows:
        if sd is not None: a(f"v_mul_f32 v{sd}, v{s2}, v{r}")

a(f"""
{"s_memrealtime s[76:77]" if "ms" in XP else ""}
s_cmp_ge_u32 s2, 256
s_cbranch_scc1 L_end
s_load_dwordx16 s[16:31], s[0:1], 0
s_load_dwordx8 s[32:39], s[0:1], 64
s_load_dwordx4 s[40:43], s[0:1], 96
s_load_dwordx2 s[44:45], s[0:1], 112
v_lshrrev_b32 v4, 6, v0
v_and_b32 v0, 63, v0
v_readfirstlane_b32 {sW}, v4
v_and_b32 v1, 15, v0
v_lshrrev_b32 v2, 4, v0
v_lshlrev_b32 v3, 4, v0
s_and_b32 {sXCD}, s2, 7
s_lshr_b32 {sIDX}, s2, 3
s_and_b32 {sCB}, {sIDX}, 7
s_lshr_b32 s3, {sIDX}, 3
s_lshl_b32 {sRB}, {sXCD}, 2
s_add_u32 {sRB}, {sRB}, s3
s_lshr_b32 {sKVW}, {sCB}, 1
s_getreg_b32 {sXCC}, hwreg(HW_REG_XCC_ID, 0, 4)
s_and_b32 {sXCC}, {sXCC}, 7
s_lshl_b32 {sGRP}, {sRB}, 2
s_add_u32 {sGRP}, {sGRP}, {sW}
s_lshl_b32 s55, {sGRP}, 14
s_lshl_b32 {sGRP}, {sGRP}, 7
s_add_u32 {sGRP}, {sGRP}, {F_HOP}
""")
a(f"""
s_cmp_eq_u32 {sW}, 3
s_cbranch_scc0 L_nopf
s_getpc_b64 s[64:65]
L_pc:
s_lshl_b32 s3, {sIDX}, 4
v_add_u32 v6, s3, v1
v_lshlrev_b32 v6, 7, v6
v_min_u32 v6, L_end-L_pc-4, v6
v_mov_b32 v7, s65
v_add_co_u32 v6, vcc, s64, v6
v_addc_co_u32 v7, vcc, 0, v7, vcc
s_mov_b64 exec, 0xffff
global_load_dword v24, v[6:7], off
s_mov_b64 exec, -1
L_nopf:
""")
def img32_regs(row, trb):
    a(f"""
v_lshrrev_b32 v4, 1, v0
v_and_b32 v5, 19, v4
v_bfe_u32 v6, v4, 2, 1
v_lshl_or_b32 v5, v6, 3, v5
v_bfe_u32 v6, v4, 3, 1
v_lshl_or_b32 v{row}, v6, 2, v5
v_lshrrev_b32 v4, 2, v1
v_and_b32 v5, 1, v2
v_lshl_add_u32 v4, v5, 2, v4
v_lshrrev_b32 v5, 1, v2
v_lshl_add_u32 v4, v5, 4, v4
v_lshlrev_b32 v4, 5, v4
v_and_b32 v5, 3, v1
v_lshl_add_u32 v{trb}, v5, 3, v4
""")
img32_regs(16, 17)
a(f"""
v_and_b32 v18, 1, v0
v_lshlrev_b32 v18, 4, v18
s_waitcnt lgkmcnt(0)
""")
if "dbg" in XP: a("s_mov_b64 s[96:97], s[0:1]")
stamp("start")
if "ms" in XP: stamp("karg")
srd(WS, P_WS, hex(WS_SIZE))
a(f"s_load_dword {sEP}, s[{P_WS}:{P_WS+1}], {WS_EPOCH}")

def gemv_chain(lbase, trb, opaddr):
    a(f"v_add_u32 v7, {lbase}, v{trb}")
    def rd(T):
        b = 128 + (T % 4) * 8
        a(f"ds_read_b64_tr_b16 {vr(b,2)}, v7 offset:{T*1024}\nds_read_b64_tr_b16 {vr(b+2,2)}, v7 offset:{T*1024+256}")
        a(f"ds_read_b128 {vr(b+4,4)}, v{opaddr} offset:{T*64}")
    def cp(T):
        b = 128 + (T % 4) * 8
        a(f"v_mfma_f32_16x16x32_bf16 v[32:35], {vr(b,4)}, {vr(b+4,4)}, {'0' if T == 0 else 'v[32:35]'}")
    pipeline(16, rd, cp, 3, pre=3)

def round_bf16(regs):
    for i in range(0, len(regs), 2):
        x, y = regs[i], regs[i+1]
        a(f"v_cvt_pk_bf16_f32 v{y}, v{x}, v{y}\nv_lshlrev_b32 v{x}, 16, v{y}\nv_and_b32 v{y}, 0xffff0000, v{y}")

def silu8(src, dst):
    for i in range(4): a(f"v_lshlrev_b32 v{40+2*i}, 16, v{src+i}\nv_and_b32 v{41+2*i}, 0xffff0000, v{src+i}")
    for i in range(8): a(f"v_mul_f32 v{48+i}, {fbits(-math.log2(math.e))}, v{40+i}")
    for i in range(8): a(f"v_exp_f32 v{48+i}, v{48+i}")
    for i in range(8): a(f"v_add_f32 v{48+i}, 1.0, v{48+i}")
    for i in range(8): a(f"v_rcp_f32 v{48+i}, v{48+i}")
    for i in range(8): a(f"v_mul_f32 v{40+i}, v{40+i}, v{48+i}")
    for i in range(4): a(f"v_cvt_pk_bf16_f32 v{dst+i}, v{40+2*i}, v{41+2*i}")

Lr0, Lr2, Lr3, Lxi, Lxw, Lnz, Lsl = (a.label(x) for x in ("r0", "r2", "r3", "xi", "xw", "noz", "sl"))
srd(R1, P_X, 2048 * 1024, "s55")
srd(R2, P_WMOD, 512 * 6144)
a(f"s_and_b32 s3, {sCB}, 1\ns_cselect_b32 s64, s{P_WV}, s{P_WK}\ns_cselect_b32 s65, s{P_WV+1}, s{P_WK+1}")
srd(R3, 64, 16384)
srd(R0, P_C, 1024)
a(f"""
s_sub_u32 s0, {sW}, {sKVW}
s_and_b32 s0, s0, 3
v_mov_b32 v36, 0
v_mov_b32 v37, 0
v_mov_b32 v38, 0
v_mov_b32 v39, 0
s_and_b32 s69, s2, 15
s_lshl_b32 s69, s69, 6
v_lshlrev_b32 v25, 4, v2
v_lshrrev_b32 v4, 3, v0
v_and_b32 v5, 7, v0
v_xor_b32 v5, v5, v2
v_lshlrev_b32 v5, 4, v5
v_lshl_add_u32 v22, v4, 10, v5
v_xor_b32 v23, 64, v22
v_add_u32 v23, {8192 - 1024}, v23
s_lshl_b32 s67, {sW}, 14
s_add_u32 s67, s67, {L_WQ}
""")
def xstage():
    for T2 in range(8):
        a(f"s_add_u32 m0, s67, {T2*2048}\ns_movk_i32 s3, {T2*128}\nbuffer_load_dwordx4 v22, {R1}, s3 offen lds\nbuffer_load_dwordx4 v23, {R1}, s3 offen offset:1024 lds")
if "ms" in XP: stamp("iss0")
a(f"s_cmp_eq_u32 s0, 1\ns_cbranch_scc0 {Lr2}")
a(f"""
v_lshrrev_b32 v4, 2, v0
v_and_b32 v5, 3, v0
v_and_b32 v6, 1, v5
v_lshlrev_b32 v6, 7, v6
v_lshrrev_b32 v5, 1, v5
v_mul_u32_u24 v5, 3072, v5
s_movk_i32 s3, 6144
v_mad_u32_u24 v4, v4, s3, v6
v_add_u32 v4, v4, v5
s_mul_i32 s64, {sIDX}, {16*6144}
s_lshl_b32 s3, {sXCD}, 8
s_add_u32 s64, s64, s3
buffer_load_dword v24, v4, {R2}, s64 offen
s_cmp_lt_u32 {sIDX}, 16
s_cbranch_scc0 {Lxi}
s_lshl_b32 s68, {sXCD}, 3
s_add_u32 s68, s68, {sIDX}
s_add_u32 s65, s68, 88
s_cmp_lt_u32 {sIDX}, 8
s_cselect_b32 s68, s68, s65
s_cbranch_scc0 {Lnz}
s_lshl_b32 s3, s68, 9
s_mov_b64 exec, 0xffffffff
buffer_store_dwordx4 v[36:39], v3, {WS}, s3 offen sc1
s_mov_b64 exec, -1
{Lnz}:
""")
a(f"buffer_load_dwordx4 v[32:35], v3, {R0}, 0 offen\ns_lshl_b32 s66, s68, 5\ns_movk_i32 s3, 6144\nv_mad_u32_u24 v6, v16, s3, v18")
for n in range(16):
    a(f"s_mov_b32 m0, {L_G0 + n*1024}\nbuffer_load_dwordx4 v6, {R2}, s66 offen lds")
    if n < 15: a("s_add_u32 s66, s66, 196608")
a("s_barrier\ns_waitcnt vmcnt(16)")
if "ms" in XP: stamp("m_c")
silu8(32, 32)
a(f"v_add_u32 v6, {L_SILU}, v3\nds_write_b128 v6, v[32:35]\nv_lshlrev_b32 v5, 4, v2\nv_add_u32 v6, {L_SILU}, v5")
a("s_waitcnt vmcnt(0) lgkmcnt(0)")
if "ms" in XP: stamp("m_dma")
if "xmid" in XP: xstage()
gemv_chain(L_G0, 17, 6)
round_bf16([32, 33, 34, 35])
Lno1 = a.label("no1")
a(f"s_lshr_b32 s65, s68, 5\ns_bitcmp1_b32 0x12, s65\ns_cbranch_scc0 {Lno1}")
for i in range(4): a(f"v_add_f32 v{32+i}, 1.0, v{32+i}")
round_bf16([32, 33, 34, 35])
a(f"""
{Lno1}:
s_lshl_b32 s3, s68, 6
s_add_u32 s3, s3, {WS_MOD}
s_mov_b32 exec_lo, 0x00010001
s_mov_b32 exec_hi, 0x00010001
s_add_u32 s65, {sEP}, 1
s_and_b32 s65, s65, 0xffff
v_or_b32 v36, s65, v32
v_or_b32 v37, s65, v33
v_or_b32 v38, s65, v34
v_or_b32 v39, s65, v35
s_add_u32 s65, s3, {WS_MODT - WS_MOD}
buffer_store_dwordx4 v[36:39], v5, {WS}, s65 offen sc1
buffer_store_dwordx4 v[32:35], v5, {WS}, s3 offen sc1
s_mov_b64 exec, -1
""")
if "ms" in XP: stamp("m_pub")
a(f"""
v_add_u32 v6, s69, v6
ds_read_b128 v[8:11], v6
""")
if "xmid" not in XP: xstage()
a(f"""
s_waitcnt vmcnt({2 if "xmid" in XP else 0})
s_branch {Lxw}
{Lr2}:
v_lshlrev_b32 v4, 7, v0
s_cmp_eq_u32 s0, 0
s_cbranch_scc1 {Lr0}
s_cmp_eq_u32 s0, 3
s_cbranch_scc1 {Lr3}
s_lshl_b32 s64, {sRB}, 16
s_lshl_b32 s3, {sCB}, 13
s_add_u32 s64, s64, s3
""")
srd("s[72:75]", P_X, 2048 * 1024)
if "xd" in XP: a(f"buffer_load_dword v26, v25, {R0}, s69 offen\ns_waitcnt vmcnt(0)")
if "xd2" in XP: a(f"buffer_load_dword v26, v25, {R0}, s69 offen\ns_waitcnt vmcnt(0)\nbuffer_load_dword v26, v25, {R3}, 0 offen\ns_waitcnt vmcnt(0)")
a(f"""
buffer_load_dword v24, v4, s[72:75], s64 offen
s_branch {Lxi}
{Lr3}:
s_lshr_b32 s3, {sIDX}, 1
s_lshl_b32 s3, s3, 10
v_and_b32 v4, 0x380, v4
buffer_load_dword v24, v4, {R3}, s3 offen
{Lxi}:
buffer_load_dwordx4 v[8:11], v25, {R0}, s69 offen
s_barrier
""")
xstage()
a(f"s_lshl_b32 s66, {sCB}, 7")
srd(R0, P_WQ, 512 * 1024, "s66")
Lnw = a.label("nw")
a(f"""
s_cmp_lt_u32 s0, 2
s_cbranch_scc1 {Lnw}
s_and_b32 s3, {sRB}, 3
s_lshl_b32 s3, s3, 1
s_add_u32 s3, s3, s0
s_sub_u32 s3, s3, 2
s_lshl_b32 s3, s3, 16
v_lshlrev_b32 v4, 10, v0
buffer_load_dword v26, v4, {R0}, s3 offen
s_waitcnt vmcnt(17)
""")
silu8(8, 8)
a(f"s_waitcnt vmcnt(1)\ns_branch {Lxw}\n{Lnw}:\ns_waitcnt vmcnt(16)")
silu8(8, 8)
a(f"s_waitcnt vmcnt(0)\ns_branch {Lxw}\n{Lr0}:\nbuffer_load_dwordx4 v[8:11], v25, {R0}, s69 offen\ns_barrier")
xstage()
a("v_lshl_add_u32 v21, v16, 5, v18")
for n in range(16): a(f"s_mov_b32 m0, {L_WKV + n*1024}\ns_movk_i32 s3, {n*1024}\nbuffer_load_dwordx4 v21, {R3}, s3 offen lds")
a(f"s_mul_i32 s3, s2, 768\ns_add_u32 s3, s3, {F_HOP}\ns_mov_b32 exec_hi, 0xffff\nbuffer_store_dwordx4 v[36:39], v3, {WS}, s3 offen sc1\ns_mov_b64 exec, -1\ns_waitcnt vmcnt(33)")
silu8(8, 8)
a(f"s_waitcnt vmcnt(17)\n{Lxw}:")
stamp("xin")
a(f"""
v_lshrrev_b32 v4, 1, v1
v_xor_b32 v4, v4, v2
v_lshlrev_b32 v4, 4, v4
v_lshl_add_u32 v4, v1, 7, v4
v_add_u32 v4, s67, v4
v_xor_b32 v5, 64, v4
s_waitcnt lgkmcnt(0)
s_add_u32 {sEP}, {sEP}, 1
s_and_b32 {sTAG}, {sEP}, 0xffff
""")
for T in range(16): a(f"ds_read_b128 {vr(64+4*T,4)}, v{4 + (T & 1)} offset:{(T >> 1)*2048}")
a(f"s_lshl_b32 s66, {sCB}, 7")
srd(R0, P_WQ, 512 * 1024, "s66")
a(f"""
v_lshrrev_b32 v4, 3, v0
v_bfe_u32 v5, v0, 1, 2
v_bfe_u32 v6, v4, 1, 1
v_xor_b32 v5, v5, v6
v_lshlrev_b32 v5, 5, v5
v_lshl_add_u32 v5, v4, 10, v5
v_add_u32 v19, v5, v18
v_xor_b32 v20, 64, v19
""")
a(f"s_lshl_b32 s66, {sW}, 17")
nst = [0]
def stage():
    n = nst[0]; nst[0] += 1
    a(f"s_mov_b32 m0, s67\ns_add_u32 s67, s67, 1024\nbuffer_load_dwordx4 v{19 + (n & 1)}, {R0}, s66 offen lds\ns_add_u32 s66, s66, 8192")
for i in range(64):
    if i % 4 == 0: a(f"s_waitcnt lgkmcnt({15 - i // 4})")
    a(f"v_lshlrev_b32 v{128+2*i}, 16, v{64+i}\nv_and_b32 v{129+2*i}, 0xffff0000, v{64+i}")
for k in range(4): a(f"v_pk_add_f32 {vr(32+2*k,2)}, {vr(128+4*k,2)}, {vr(130+4*k,2)}")
for k in range(4): a(f"v_pk_mul_f32 {vr(40+2*k,2)}, {vr(128+2*k,2)}, {vr(128+2*k,2)}")
for i in range(4, 64):
    if i >= 8: a(f"v_pk_add_f32 {vr(32+2*(i%4),2)}, {vr(32+2*(i%4),2)}, {vr(128+2*i,2)}")
    a(f"v_pk_fma_f32 {vr(40+2*(i%4),2)}, {vr(128+2*i,2)}, {vr(128+2*i,2)}, {vr(40+2*(i%4),2)}")
    if i % 6 == 4: stage()
for b in (32, 40):
    a(f"v_pk_add_f32 {vr(b,2)}, {vr(b,2)}, {vr(b+2,2)}\nv_pk_add_f32 {vr(b+4,2)}, {vr(b+4,2)}, {vr(b+6,2)}\nv_pk_add_f32 {vr(b,2)}, {vr(b,2)}, {vr(b+4,2)}\nv_add_f32 v{b}, v{b}, v{b+1}")
xgroup_sum2(32, 33, 40, 41)
finish_stats([(32, 40, 34, 36, None)], 512)
a("v_mul_f32 v34, v34, v36")
for i in range(64):
    a(f"v_pk_fma_f32 {vr(128+2*i,2)}, {vr(128+2*i,2)}, v[36:37], v[34:35] op_sel_hi:[1,0,0]")
    if i % 8 == 0 and nst[0] < 16: stage()
assert nst[0] == 16
a(f"s_mov_b32 s23, {WS_MODT}")
for i in range(4): a(f"buffer_load_dwordx4 {vr(40+4*i,4)}, v3, {WS}, s23 offen offset:{i*1024} sc1")
Lna = a.label("nkvf")
a(f"s_cmp_eq_u32 s0, 0\ns_cbranch_scc0 {Lna}\nv_add_u32 v7, {L_WKV}, v17\ns_waitcnt vmcnt(21)")
for T in range(16): a(f"ds_read_b64_tr_b16 {ar(4*T,2)}, v7 offset:{T*1024}\nds_read_b64_tr_b16 {ar(4*T+2,2)}, v7 offset:{T*1024+256}")
a(f"{Lna}:")
stamp("ln1")
def tagcheck(regs):
    out = [f"v_xor_b32 v{r}, {sTAG}, v{r}" for r in regs]
    out.append(f"v_or3_b32 v4, v{regs[0]}, v{regs[1]}, v{regs[2]}")
    for i in range(3, len(regs) - 1, 2): out.append(f"v_or3_b32 v4, v4, v{regs[i]}, v{regs[i+1]}")
    out.append(f"v_or_b32 v4, v4, v{regs[-1]}\nv_and_b32 v4, 0xffff, v4\nv_cmp_ne_u32 vcc, 0, v4")
    return "\n".join(out)
BKA = int(([x[4:] for x in XP if x.startswith("bka:")] or ["10"])[0])
def setup_scalars():
    Lr2, Lr3, Lre = (a.label(x) for x in ("r2", "r3", "re"))
    a(f"""
s_mul_i32 s77, {sW}, 12288
s_lshl_b32 s68, {sW}, 12
s_movk_i32 s74, 1024
s_movk_i32 s75, 4
s_movk_i32 s76, 8
s_movk_i32 s1, 2048
s_movk_i32 s20, 8192
s_cmp_eq_u32 {sW}, 2
s_cbranch_scc1 {Lr2}
s_cmp_eq_u32 {sW}, 3
s_cbranch_scc1 {Lr3}
s_and_b32 s64, {sRB}, 15
s_mul_i32 s64, s64, 114688
s_lshr_b32 s3, {sRB}, 4
s_mul_i32 s3, s3, 1792
s_add_u32 s64, s64, s3
s_mul_i32 s3, {sCB}, 224
s_add_u32 s64, s64, s3
s_lshl_b32 s3, {sW}, 7
s_add_u32 s64, s64, s3
""")
    srd(R2, P_WIN, 512 * 3584, "s64")
    a(f"""
s_movk_i32 s74, 3584
s_movk_i32 s20, {8*3584}
s_mov_b32 s21, {16*3584}
s_mov_b32 s22, {24*3584}
s_lshl_b32 s36, {sCB}, 5
s_add_u32 s36, s36, {sRB}
s_mul_i32 s36, s36, {SLOT}
s_add_u32 s36, s36, s68
s_add_u32 s36, s36, {WS_WINF}
s_mov_b32 s24, s36
s_cmp_eq_u32 {sW}, 0
s_cselect_b32 s37, s36, {WS_SIZE}
s_branch {Lre}
{Lr2}:
s_min_u32 s67, {sRB}, 27
s_mul_i32 s64, s67, 37
s_lshr_b32 s64, s64, 8
s_mul_i32 s3, s64, 7
s_sub_u32 s65, s67, s3
s_mul_i32 s64, s64, 224
s_lshl_b32 s3, s65, 5
s_add_u32 s66, s3, 16
s_cmp_lt_u32 s65, 3
s_cselect_b32 s3, s3, s66
s_cmp_eq_u32 s65, 6
s_cselect_b32 s3, 96, s3
s_cselect_b32 s21, 112, 16
s_cselect_b32 s75, 8, 4
s_cselect_b32 s76, 16, 8
s_cselect_b32 s1, 512, s1
s_lshl_b32 s21, s21, 10
s_add_u32 s22, s21, 8192
s_add_u32 s64, s64, s3
s_lshl_b32 s64, s64, 10
s_lshl_b32 s3, {sCB}, 7
s_add_u32 s64, s64, s3
""")
    srd(R2, P_WOUT, 896 * 1024, "s64")
    a(f"""
s_mul_i32 s36, {sCB}, 28
s_add_u32 s36, s36, s67
s_lshl_b32 s36, s36, 12
s_add_u32 s36, s36, {WS_WOUTF}
s_cmp_lt_u32 {sRB}, 28
s_cselect_b32 s36, s36, {WS_SIZE}
s_mov_b32 s37, s36
s_mov_b32 s24, s36
s_branch {Lre}
{Lr3}:
s_lshr_b32 s67, {sRB}, 1
s_lshl_b32 s64, s67, 15
s_lshl_b32 s3, {sCB}, 7
s_add_u32 s64, s64, s3
""")
    srd(R2, P_WO, 512 * 1024, "s64")
    a(f"""
s_movk_i32 s21, 16384
s_movk_i32 s22, 24576
s_movk_i32 s75, 16
s_movk_i32 s76, 4
s_movk_i32 s1, 1024
s_lshl_b32 s36, {sCB}, 4
s_add_u32 s36, s36, s67
s_lshl_b32 s36, s36, 12
s_add_u32 s36, s36, {WS_WOF}
s_bitcmp1_b32 {sRB}, 0
s_cselect_b32 s37, s36, {WS_SIZE}
s_cselect_b32 s36, {WS_SIZE}, s36
s_mov_b32 s24, s37
{Lre}:
s_and_b32 s64, s2, 15
s_mul_i32 s64, s64, {32*6144}
s_lshr_b32 s65, s2, 4
s_lshl_b32 s3, s65, 7
s_add_u32 s64, s64, s3
s_lshl_b32 s3, {sW}, 5
s_add_u32 s64, s64, s3
s_cmp_lt_u32 s65, 8
s_cselect_b32 s3, 0, 2048
s_add_u32 s64, s64, s3
s_add_u32 s64, s64, 2048
""")
    srd(R3, P_WMOD, 512 * 6144, "s64")
    a(f"""
s_lshl_b32 s34, s65, 8
s_lshl_b32 s3, {sW}, 6
s_add_u32 s34, s34, s3
s_add_u32 s34, s34, {WS_G2}
s_lshl_b32 s35, {sW}, 10
s_lshl_b32 s64, {sRB}, 18
s_add_u32 s64, s64, s35
s_add_u32 s35, s35, {L_G2}
s_lshr_b32 s3, {sRB}, 4
s_mul_i32 s3, s3, 3584
s_mul_i32 s28, {sCB}, 448
s_add_u32 s28, s28, s3
s_lshl_b32 s3, {sW}, 8
s_add_u32 s28, s28, s3
s_add_u32 s28, s28, {WS_C12}
s_cmp_lt_u32 {sW}, 2
s_cselect_b32 s28, s28, {WS_SIZE}
s_add_u32 s29, s28, 7168
s_and_b32 s25, {sRB}, 15
s_lshl_b32 s25, s25, 7
s_add_u32 s25, s25, {WS_MODT + 3*2048}
""")
    srd(R0, P_WSP, 2048 * 4096, "s64")
    a(f"s_lshl_b32 s66, {sCB}, 7\ns_add_u32 s64, s66, s55")
    srd(R1, P_X, 2048 * 1024, "s64")
    for s_ in range(4): a(f"s_add_u32 s3, {sW}, {s_}\ns_and_b32 s3, s3, 3\ns_lshl_b32 s{70+s_}, s3, 16")
    a(f"""
s_lshr_b32 s31, s55, 4
s_add_u32 s31, s31, s66
s_add_u32 s31, s31, {WS_ST1}
s_lshl_b32 s19, {sCB}, 15
s_lshl_b32 s39, {sCB}, 9
s_mov_b32 s38, {F_P}
s_add_u32 s39, s39, s38
s_lshl_b32 s3, {sW}, 7
s_add_u32 s39, s39, s3
s_and_b32 s3, {sRB}, 3
s_lshl_b32 s3, s3, 2
s_add_u32 s3, s3, {sW}
s_mul_i32 s26, s3, {SLOT}
s_mul_i32 s3, {sCB}, {28*4096}
s_add_u32 s26, s26, s3
s_add_u32 s26, s26, {WS_WOUTF}
s_lshl_b32 s69, {sCB}, 16
s_add_u32 s69, s69, {WS_WOF}
s_lshl_b32 s64, {sW}, 11
s_add_u32 s65, s64, {L_KV}
s_add_u32 s64, s64, {WS_KV}
s_mul_i32 s66, {sIDX}, {33*128}
s_add_u32 s66, s66, {WS_KV}
s_lshl_b32 s67, {sRB}, 10
s_lshl_b32 s16, s55, 1
s_lshl_b32 s3, {sCB}, 11
s_add_u32 s16, s16, s3
s_add_u32 s16, s16, {WS_X}
s_add_u32 s17, s16, 16384
s_lshl_b32 s3, {sCB}, 8
s_add_u32 s18, s3, {WS_G2}
s_add_u32 s30, s3, {WS_MOD + 4*2048}
""")
assert F_B == 0

setup_scalars()
PARLD = "\n".join(f"buffer_load_dwordx4 {vr(40+4*i,4)}, v3, {WS}, s23 offen offset:{i*1024} sc1" for i in range(4))
a("s_waitcnt vmcnt(0)")
a(tagcheck(list(range(40, 56))))
a("s_cbranch_vccz L_parok")
poll(PARLD, tagcheck(list(range(40, 56))), "-1", BKA)
a(f"L_parok:\ns_lshl_b32 s3, {sW}, 12\nv_add_u32 v5, s3, v3")
for i in range(4): a(f"ds_write_b128 v5, {vr(40+4*i,4)} offset:{L_PAR + i*1024}")
stamp("barP")
LV, Lh, Lnkv, LV2, Lst, Lkve = (a.label(x) for x in ("isV", "hdone", "nokv", "isV2", "kvst", "kve"))
a(f"v_lshlrev_b32 v19, 5, v2\nv_add_u32 v19, s3, v19\ns_waitcnt lgkmcnt(0)\ns_bitcmp1_b32 {sCB}, 0\ns_cbranch_scc1 {LV}")
def hpass(isV):
    def rd(T):
        b = 32 + (T & 1) * 16
        for k, off in enumerate((2048, 2064, 0, 16)): a(f"ds_read_b128 {vr(b+4*k,4)}, v19 offset:{off + T*128}")
    def kv(T):
        A, B = (vr(64+4*T,4), ar(4*T,4)) if isV else (ar(4*T,4), vr(64+4*T,4))
        a(f"v_mfma_f32_16x16x32_bf16 v[12:15], {A}, {B}, {'0' if T == 0 else 'v[12:15]'}")
    def cp(T):
        b = 32 + (T & 1) * 16
        for k in range(4): a(f"v_pk_fma_f32 {vr(128+8*T+2*k,2)}, {vr(128+8*T+2*k,2)}, {vr(b+2*k,2)}, {vr(b+8+2*k,2)}")
        if T: kv(T - 1)
        for k in range(4): a(f"v_cvt_pk_bf16_f32 v{64+4*T+k}, v{128+8*T+2*k}, v{129+8*T+2*k}")
    pipeline(16, rd, cp, 4)
    kv(15)
hpass(False)
a(f"s_branch {Lh}\n{LV}:")
hpass(True)
a(f"{Lh}:")
if "ms" in XP: stamp("h")
a(f"""
s_cmp_eq_u32 s0, 0
s_cbranch_scc0 {Lnkv}
s_lshl_b32 s23, {sRB}, 1
s_lshr_b32 s3, {sW}, 1
s_add_u32 s23, s23, s3
s_mul_i32 s23, s23, {REC}
s_add_u32 s23, s23, {WS_KV}
s_and_b32 s27, {sW}, 1
v_lshrrev_b32 v20, 5, v0
v_cvt_pk_bf16_f32 v36, v12, v13
v_cvt_pk_bf16_f32 v37, v14, v15
v_mov_b32 v38, v36
v_mov_b32 v39, v37
v_permlane16_swap_b32 v36, v38
v_permlane16_swap_b32 v37, v39
s_bitcmp1_b32 {sCB}, 0
s_cbranch_scc1 {LV2}
v_lshlrev_b32 v20, 9, v20
v_lshl_add_u32 v20, v1, 4, v20
s_lshl_b32 s27, s27, 8
s_add_u32 s23, s23, s27
s_add_u32 s23, s23, 1088
s_mov_b32 exec_lo, 0x0000ffff
s_mov_b32 exec_hi, 0x0000ffff
s_branch {Lst}
{LV2}:
v_mul_u32_u24 v20, 272, v20
v_and_b32 v4, 31, v0
v_lshl_add_u32 v20, v4, 4, v20
s_mul_i32 s27, s27, 544
s_add_u32 s23, s23, s27
s_mov_b32 exec_lo, 0xffff0000
s_mov_b32 exec_hi, 0xffff0000
v_mov_b32 v36, 0x3f803f80
v_mov_b32 v37, 0x3f803f80
v_mov_b32 v38, 0x3f803f80
v_mov_b32 v39, 0x3f803f80
s_mov_b32 exec_lo, 0x0001ffff
s_mov_b32 exec_hi, 0x0001ffff
{Lst}:
buffer_store_dwordx4 v[36:39], v20, {WS}, s23 offen sc1
s_mov_b64 exec, 1
s_add_u32 s3, {sXCC}, 1
v_mov_b32 v20, s3
s_lshl_b32 s23, {sCB}, 7
s_add_u32 s23, s23, s67
s_waitcnt vmcnt(0)
buffer_store_dword v20, v0, {WS}, s23 offen sc1
s_mov_b64 exec, -1
""")
if "ms" in XP: stamp("arr")
a(f"{Lnkv}:")
def trbase128(dst, rowexpr_v, fexpr_v, lbase):
    a(f"v_and_b32 v6, 3, v1\nv_lshlrev_b32 v6, 3, v6\nv_lshl_add_u32 v6, v{rowexpr_v}, 7, v6\nv_lshl_add_u32 v6, v{fexpr_v}, 5, v6\nv_add_u32 v{dst}, {lbase}, v6")
    for j in range(1, 4): a(f"v_xor_b32 v{dst+j}, {j*32}, v{dst}")
a("v_lshrrev_b32 v4, 2, v1\nv_bfe_u32 v5, v1, 3, 1\nv_and_b32 v7, 1, v2\nv_lshl_or_b32 v5, v7, 1, v5\nv_lshl_add_u32 v4, v2, 3, v4")
trbase128(24, 4, 5, L_WQ)
a("s_barrier")
fragloop(16, 4,
         lambda T, j: a(f"ds_read_b64_tr_b16 {vr(32+(T&1)*16+4*j,2)}, v{24+j} offset:{T*4096}\nds_read_b64_tr_b16 {vr(34+(T&1)*16+4*j,2)}, v{24+j} offset:{T*4096+512}"),
         lambda T, j: a(f"v_mfma_f32_16x16x32_bf16 {vr(128+4*j,4)}, {vr(32+(T&1)*16+4*j,4)}, {vr(64+4*T,4)}, {'0' if T == 0 else vr(128+4*j,4)}"), nper=2)
for i in range(16): a(f"v_mul_f32 v{128+i}, {fbits(0.25*math.log2(math.e))}, v{128+i}")
for i in range(8): a(f"v_cvt_pk_bf16_f32 v{16+i}, v{128+2*i}, v{129+2*i}")
for e in range(2): a(f"v_permlane16_swap_b32 v{16+4*e}, v{18+4*e}\nv_permlane16_swap_b32 v{17+4*e}, v{19+4*e}")
stamp("q")
img32_regs(212, 213)
a(f"""
v_add_u32 v24, {L_KV + 1088}, v3
v_add_u32 v25, {31*REC}, v24
v_add_u32 v26, {31*REC}, v25
v_lshrrev_b32 v4, 5, v0
v_mul_u32_u24 v4, 272, v4
v_and_b32 v5, 31, v0
v_lshl_add_u32 v4, v5, 4, v4
v_add_u32 v27, {L_KV}, v4
v_mov_b32 v4, 0x40000
v_cmp_lt_u32 vcc, {16 if PADZERO else 99}, v5
v_mov_b32 v31, {OOB}
v_mov_b32 v30, 0xdddd
v_cndmask_b32 v27, v27, v4, vcc
v_add_u32 v28, {31*REC}, v27
v_add_u32 v29, {31*REC}, v28
v_lshrrev_b32 v7, 3, v0
v_and_b32 v6, 7, v0
v_xor_b32 v5, v6, v2
v_lshlrev_b32 v5, 4, v5
v_lshl_add_u32 v168, v7, 12, v5
v_xor_b32 v169, 64, v168
v_add_u32 v169, {0x8000 - 1024}, v169
v_lshrrev_b32 v4, 1, v1
v_xor_b32 v4, v4, v2
v_lshlrev_b32 v4, 4, v4
v_lshl_add_u32 v4, v1, 7, v4
v_add_u32 v170, s77, v4
v_xor_b32 v171, 64, v170
v_lshlrev_b32 v4, 10, v1
v_lshl_add_u32 v172, v2, 3, v4
v_lshlrev_b32 v4, 7, v6
v_lshl_add_u32 v173, v7, 12, v4
v_lshlrev_b32 v6, 4, v6
v_mad_u32_u24 v176, v7, s74, v6
v_lshrrev_b32 v4, 2, v1
v_and_b32 v5, 1, v2
v_mad_u32_u24 v4, v5, s75, v4
v_lshrrev_b32 v5, 1, v2
v_mad_u32_u24 v4, v5, s76, v4
v_and_b32 v5, 3, v1
v_lshlrev_b32 v5, 3, v5
v_lshl_add_u32 v4, v4, 7, v5
v_add_u32 v177, s68, v4
v_add_u32 v178, s1, v177
v_lshlrev_b32 v4, 7, v0
v_cmp_gt_u32 vcc, 32, v0
v_cmp_gt_u32 s[74:75], 33, v0
v_mov_b32 v199, 1
v_lshlrev_b32 v218, 4, v2
v_cndmask_b32 v196, v31, v4, vcc
v_cndmask_b32 v197, v31, v4, s[74:75]
v_cmp_gt_u32 vcc, 14, v0
v_cmp_gt_u32 s[74:75], 4, v0
s_nop 0
v_cndmask_b32 v175, v31, v4, vcc
s_lshl_b32 s27, {sCB}, 9
s_add_u32 s27, s27, {F_P}
v_cndmask_b32 v174, v31, v4, s[74:75]
v_cmp_eq_u32 vcc, 0, v0
v_and_b32 v7, 1, v0
v_lshlrev_b32 v5, 4, v7
v_cndmask_b32 v198, v31, v4, vcc
s_movk_i32 s3, 6144
v_mad_u32_u24 v212, v212, s3, v5
v_add_u32 v213, s35, v213
v_lshlrev_b32 v4, 2, v0
v_cmp_gt_u32 vcc, 16, v0
s_cmp_eq_u32 {sW}, 0
s_cselect_b32 s3, 64, 48
v_cmp_gt_u32 s[74:75], s3, v0
v_lshlrev_b32 v5, 11, v7
v_cndmask_b32 v214, v31, v4, vcc
v_cndmask_b32 v215, v31, v4, s[74:75]
v_sub_u32 v4, 2048, v5
v_add_u32 v4, v218, v4
v_and_b32 v5, 2, v0
v_cmp_eq_u32 vcc, 0, v5
v_mul_u32_u24 v5, {WS_ST2 - WS_ST1}, v7
v_cndmask_b32 v216, v31, v4, vcc
v_lshlrev_b32 v4, 7, v1
v_lshl_add_u32 v4, v2, 14, v4
v_add_u32 v4, s16, v4
v_cmp_gt_u32 vcc, 32, v0
v_cmp_gt_u32 s[74:75], 2, v0
v_mov_b64 v[80:81], 0
v_mov_b64 v[82:83], 0
v_cndmask_b32 v202, v31, v4, vcc
v_cndmask_b32 v217, v31, v5, s[74:75]
""")
for i in range(2, 16): a(f"v_mov_b64 {vr(80+2*i,2)}, 0")
if "ms" in XP: stamp("setup")
BKB = int(([x[3:] for x in XP if x.startswith("bk:")] or ["8"])[0])
a(f"v_lshlrev_b32 v5, 7, v0\ns_lshl_b32 s23, {sW}, 13")
poll(f"buffer_load_dword v4, v5, {WS}, s23 offen sc1", "v_cmp_eq_u32 vcc, 0, v4", "-1", BKB)
a("s_waitcnt lgkmcnt(0)\ns_barrier")
stamp("barB")
Lne = a.label("noep")
a(f"s_or_b32 s3, s2, {sW}\ns_cbranch_scc1 {Lne}\nv_mov_b32 v4, {sEP}\ns_mov_b32 s3, {WS_EPOCH}\nbuffer_store_dword v4, v198, {WS}, s3 offen sc1\n{Lne}:")
a(f"s_cmp_eq_u32 {sW}, 3\ns_cbranch_scc0 L_nkt\nbuffer_load_dword v200, v197, {WS}, s66 offen sc1\nL_nkt:")
vm.n = 0
def kv_group(i):
    if i < 16:
        return (["s_mov_b32 m0, s65"], [f"buffer_load_dwordx4 v3, {WS}, s64 offen sc1 lds", f"buffer_load_dwordx4 v3, {WS}, s64 offen offset:1024 sc1 lds"],
                f"kvg{i}", ["s_add_u32 s64, s64, 8192", "s_add_u32 s65, s65, 8192"])
    return ([f"s_lshl_b32 s3, {sW}, 10", "s_sub_u32 s64, s64, s3", "s_sub_u32 m0, s65, s3"], [f"buffer_load_dwordx4 v3, {WS}, s64 offen sc1 lds"], "kvg16", [])
def emit_item(x):
    pre, ins, tag, post = x
    for p in pre: a(p)
    for q_ in ins: vm.op(q_, tag)
    for p in post: a(p)
for i in range(2): emit_item(kv_group(i))

def win_items(half, grp, slot0, tag):
    ld = lambda i: f"buffer_load_dwordx4 v3, {WS}, s74 offen offset:{(i & 3)*1024} sc1 lds"
    first = [f"s_lshl_b32 s74, {sCB}, 5", f"s_add_u32 s74, s74, {sW}", f"s_mul_i32 s74, s74, {SLOT}", f"s_add_u32 s74, s74, {WS_WINF + (half*16 + grp*4)*SLOT}"] + slot0
    return [(first + ["s_mov_b32 m0, s75"], [ld(0), ld(1)], tag, []), (["s_mov_b32 m0, s75"], [ld(2), ld(3)], tag, ["s_add_u32 s74, s74, 4096", "s_add_u32 s75, s75, 4096"]),
            (["s_mov_b32 m0, s75"], [ld(4), ld(5)], tag, []), (["s_mov_b32 m0, s75"], [ld(6)], tag, [])]
def lin_slot(base): return [f"s_mul_i32 s75, {sW}, {SLOT}", f"s_add_u32 s75, s75, {base}"]

def kaddr(t): return f"v{24 + t//31} offset:{(t % 31)*REC}"
def vaddr(t, m): return f"v{27 + t//31} offset:{(t % 31)*REC + m*544}"
Kb = lambda t: vr(144 + 4*(t & 1), 4)
Vb = lambda t, m: vr(152 + 8*(t & 1) + 4*m, 4)
Sb = lambda u: 32 + 16*(u % 3)
Q = lambda e: vr(16 + 4*e, 4)
O = lambda e: 80 + 16*e
C = lambda e: 112 + 16*e
vm.wait("kvg0"); a("s_barrier")
stamp("kv0")
if "clk" in XP: a("s_memtime s[96:97]\ns_memrealtime s[98:99]\ns_waitcnt lgkmcnt(0)")
a(f"ds_read_b128 {Kb(0)}, {kaddr(0)}\nds_read_b128 {Kb(1)}, {kaddr(1)}\ns_waitcnt lgkmcnt(1)")
for e in range(2): a(f"v_mfma_f32_32x32x16_bf16 {vr(32+16*e,16)}, {Kb(0)}, {Q(e)}, 0")
def rowmax(S, dst, first):
    for i in range(0, 16, 2):
        if first and i == 0: a(f"v_max_f32 v{dst}, v{S}, v{S+1}")
        else: a(f"v_max3_f32 v{dst}, v{S+i}, v{S+i+1}, v{dst}")
def negbcast(src, e):
    a(f"v_mov_b32 v6, v{src}\nv_permlane32_swap_b32 v{src}, v6\nv_max_f32 v{src}, v{src}, v6\nv_sub_f32 v{C(e)}, 0, v{src}")
    for i in range(1, 16): a(f"v_mov_b32 v{C(e)+i}, v{C(e)}")
for e in range(2): rowmax(32 + 16*e, 4 + e, True)
for e in range(2): negbcast(4 + e, e)
a(f"v_mfma_f32_32x32x16_bf16 {vr(Sb(0),16)}, {Kb(0)}, {Q(0)}, {vr(C(0),16)}")

plan = {}
WT = 49
TP, TR = 19, 28
def put(t, slot, x): plan.setdefault((t, slot), []).append(x)
PREV = {"e1x": ("e0", 0), "o0": ("e1", 0), "e1": ("e0", 0), "eq": ("o1", -1), "oq": ("e1", 0), "e0": ("o1", -1)}
assert True
def vitem(t, slot, x):
    pre, ins, tag, post = x
    ps, dt = PREV[slot]
    pre = [p + " " for p in pre]
    m0 = [p for p in pre if " m0," in p]; rest = [p for p in pre if " m0," not in p]
    if t + dt < 0 or len(pre) > 2:
        pp, dd = PREV[ps] if ps in PREV else ("o0", 0)
        if t + dt + dd < 0: put(t, slot, ("salu", pre))
        else: put(t + dt + dd, pp + "a", ("salu", rest)); put(t + dt, ps + "a", ("salu", m0))
    else: put(t + dt, ps + "a", ("salu", pre))
    put(t, slot, ("vm", ins, tag, m0[0] if m0 else None))
    if post: put(t, slot, ("salu", post))
for i in range(2, 8): vitem((i - 2) // 2, ("e1", "o0")[i & 1], kv_group(i))
for i in range(8, 16): vitem(22 + (i - 7) // 2, ("o0", "e1")[i & 1], kv_group(i))
vitem(27, "e1", kv_group(16))
for n, so in enumerate(("0", "s20", "s21", "s22")):
    vitem(3 + (n >> 1), ("e1", "o0")[n & 1], ([f"s_add_u32 m0, s68, {n*1024}"], [f"buffer_load_dwordx4 v176, {R2}, {so} offen lds"], "praw", []))
put(1, "eq", ("vm", [f"buffer_load_dword v253, v196, {WS}, s67 offen sc1"], None))
if PLAIN:
    for n in range(2):
        put(44 + n, "e1", ("vm", [f"buffer_store_dwordx4 v[16:19], v3, {WS}, s{16+n} offen offset:{i*1024} sc1" for i in range(2)], None))
    put(53, "e1", ("vm", [f"buffer_load_dword v200, v202, {WS}, 0 offen"], None))
for j in range(8): put(50 + j, "oq", ("vm", [f"buffer_load_dwordx4 {vr(220+4*j,4)}, v218, {WS}, s{18 if j < 4 else 30} offen offset:{(j & 3)*64} sc1"], None))
put(5, "o0", ("vm", [f"buffer_load_dword v200, v173, {R0}, s19 offen"], None))
put(3, "eq", ("vm", [f"buffer_load_dword v200, v198, {WS}, {sGRP} offen sc1"], None))
put(5, "oq", ("vm", [f"buffer_load_dword v200, v217, {WS}, s31 offen sc1"], None))
vitem(5, "e1x", (["s_mov_b32 m0, s35"], [f"buffer_load_dwordx4 v212, {R3}, 0 offen lds"], "praw", []))
put(2, "eq", ("vm", [f"buffer_load_dwordx4 v[204:207], v216, {WS}, s25 offen sc1"], None))
put(0, "oq", ("vm", [f"buffer_load_dwordx4 v[208:211], v216, {WS}, s25 offen offset:64 sc1"], None))
put(TP - 1, "o1b", ("wait", "praw"))
put(TP - 1, "o1x", ("ds", ["ds_read_b64_tr_b16 v[220:221], v213", "ds_read_b64_tr_b16 v[222:223], v213 offset:256"]))
put(TP, "e0", ("salu", [f"v_cvt_pk_bf16_f32 v{204+i}, v{204+2*i}, v{205+2*i}" for i in range(4)]))
put(TP, "o0", ("salu", ["v_mfma_f32_16x16x32_bf16 v[224:227], v[8:11], v[220:223], 0"]))
put(TP + 2, "e0", ("salu", [f"v_mfma_f32_16x16x32_bf16 {vr(228+4*j,4)}, v[204:207], {vr(180+4*j,4)}, 0" for j in range(4)]))
put(TP + 3, "e0", ("salu", ["s_mov_b32 exec_lo, 0xffff0000", "s_mov_b32 exec_hi, 0", "v_mov_b32 v228, v232", "v_mov_b32 v229, v233",
                            "s_mov_b32 exec_lo, 0", "s_mov_b32 exec_hi, 0x0000ffff", "v_mov_b32 v228, v236", "v_mov_b32 v229, v237",
                            "s_mov_b32 exec_hi, 0xffff0000", "v_mov_b32 v228, v240", "v_mov_b32 v229, v241", "s_mov_b64 exec, -1"]))
put(22, "e1", ("vm", [f"buffer_atomic_add_f32 v228, v215, {WS}, s28 offen", f"buffer_atomic_add_f32 v229, v215, {WS}, s29 offen"], "pat"))
put(20, "e1", ("vm", [f"buffer_atomic_add_f32 v224, v214, {WS}, s34 offen"], None))
for j in range(4):
    put(TP + (j >> 1), ("eq", "oq")[j & 1], ("ds", [f"ds_read_b64_tr_b16 {vr(180+4*j,2)}, v177 offset:{j*32}", f"ds_read_b64_tr_b16 {vr(182+4*j,2)}, v178 offset:{j*32}"]))
put(20, "o0", ("vm", [f"buffer_store_dwordx4 {vr(180+4*j,4)}, v3, {WS}, s36 offen offset:{j*1024} sc1" for j in (0, 1)], None))
put(21, "o0", ("vm", [f"buffer_store_dwordx4 {vr(188,4)}, v3, {WS}, s24 offen offset:2048 sc1", f"buffer_store_dwordx4 {vr(192,4)}, v3, {WS}, s37 offen offset:3072 sc1"], "pst"))
put(26, "o0b", ("wait", "pat"))
put(26, "o0", ("vm", [f"buffer_atomic_add v199, v198, {WS}, s39 offen sc1"], None))
put(41, "oq", ("vm", [f"buffer_load_dword v201, v174, {WS}, s27 offen sc1"], "pchk"))
put(47, "oq", ("vm", [f"buffer_load_dword v201, v196, {WS}, s38 offen sc1"], "gchk"))
for k in range(36):
    t, hf = TR + (k >> 1), k & 1
    if k < 32:
        T2, s_ = k >> 2, k & 3
        if s_ == 0: pass
        vitem(t, ("e1", "o0")[hf], ([f"s_add_u32 s75, s{70+s_}, {T2*128}", f"s_add_u32 m0, s77, {(k % 6)*2048}"],
                                    [f"buffer_load_dwordx4 v168, {R0}, s75 offen lds", f"buffer_load_dwordx4 v169, {R0}, s75 offen offset:1024 lds"], f"ring{k}", []))
    if k >= 4:
        T2, s_ = (k - 4) >> 2, (k - 4) & 3
        if hf == 0: put(t - 1, "o1b", ("wait", f"ring{k-3}"))
        for e_ in range(2): put(t, (("eq", "e0"), ("oq", "o1x"))[hf][e_], ("ds", [f"ds_read_b128 {ar(((2*T2+e_)*4+s_)*4,4)}, v{170+e_} offset:{((k-4) % 6)*2048}"]))
for grp, t0 in ((0, 44), (1, 56)):
    for n, x in enumerate(win_items(1, grp, lin_slot(slotA(4*grp)), f"z2g{grp}")): vitem(t0 + n, "o0", x)
for n in range(8):
    pre = [f"s_lshl_b32 s76, {sW}, 12", "s_add_u32 s74, s76, s69"] if n == 0 else []
    post = ["s_add_u32 s74, s74, 16384", "s_add_u32 s76, s76, 16384"] if n & 1 else []
    vitem(48 + n, "o0", (pre + ["s_mov_b32 m0, s76"], [f"buffer_load_dwordx4 v3, {WS}, s74 offen offset:{(2*(n & 1) + i)*1024} sc1 lds" for i in range(2)], "wo", post))
for n in range(2): put(58 + n, "eq", ("vm", [f"buffer_load_dwordx2 {vr(8+2*j,2)}, v172, {R1}, 0 offen offset:{j*32}" for j in (2*n, 2*n + 1)], None))
if "noz1t" not in XP:
    for n in range(4):
        put(48 + 3*n + (n > 1), "e1", ("vm", [f"buffer_load_dword v200, v175, {WS}, s23 offen sc1"], None))
        put(48 + 3*n + (n > 1), "o1a", ("salu", ["s_add_u32 s23, s23, 1792"]))
    put(46, "o1a", ("salu", [f"s_and_b32 s23, {sRB}, 3", "s_lshl_b32 s23, s23, 2"]))
    put(47, "e0a", ("salu", [f"s_add_u32 s23, s23, {sW}", f"s_lshl_b32 s3, {sCB}, 5"]))
    put(47, "e1a", ("salu", ["s_add_u32 s23, s23, s3", f"s_mul_i32 s23, s23, {SLOT}"]))
    put(47, "o1a", ("salu", [f"s_add_u32 s23, s23, {WS_WINF}"]))
if "noextra" in XP: raise SystemExit("noextra unsupported")
syncs = {3: "kvg1", 7: "kvg7", 27: None, 31: "kvg16", 35: None, 48: None, 60: "wo"}
last_m0 = [None]
def slot(t, k):
    for x in plan.pop((t, k), []):
        if x[0] == "salu":
            for p in x[1]:
                a(p)
                if " m0," in p: last_m0[0] = p
        elif x[0] == "vm":
            if len(x) > 3 and x[3] is not None and x[3] is not last_m0[0]:
                a(x[3]); last_m0[0] = x[3]
            for q_ in x[1]: vm.op(q_, x[2])
        elif x[0] == "ds":
            for q_ in x[1]: a(q_)
        else: vm.wait(x[1])
for u in range(128):
    t, e = u >> 1, u & 1
    S = Sb(u)
    ex = [f"v_exp_f32 v{S+i}, v{S+i}" for i in range(16)]
    pf = "eo"[e]
    if u + 1 < 128:
        t1, e1 = (u + 1) >> 1, (u + 1) & 1
        a(f"v_mfma_f32_32x32x16_bf16 {vr(Sb(u+1),16)}, {Kb(t1)}, {Q(e1)}, {vr(C(e1),16)}")
    a("s_waitcnt lgkmcnt(0)")
    if e == 1 and t + 2 in syncs:
        if syncs[t + 2]: vm.wait(syncs[t + 2])
        a("s_barrier")
    if "tst" in XP and e == 0 and t in (2, 4, 8, 11, 14, 17, 20, 23, 26, 28, 30, 34, 38, 42, 46, 50, 54, 58, 61): stamp(f"t{t}")
    if u == 2*(TP - 2):
        a(tagcheck(list(range(204, 212))) + "\ns_nop 1\ns_and_b32 s3, vcc_lo, 0x33333333\ns_and_b32 s23, vcc_hi, 0x33333333\ns_or_b32 s3, s3, s23\ns_cbranch_scc1 L_xwait\nL_xok:")
    if u == 86:
        vm.wait("pchk")
        a("v_cmp_gt_u32 vcc, 32, v201\ns_nop 1\ns_and_b32 s3, vcc_lo, 15\ns_cbranch_scc1 L_pwait\nL_pok:")
    if u == 100:
        vm.wait("gchk")
        a("v_cmp_gt_u32 vcc, 32, v201\ns_nop 1\ns_cmp_lg_u32 vcc_lo, 0\ns_cbranch_scc1 L_gwait\nL_gok:")
    slot(t, pf + "q")
    for x in ex[0:3]: a(x)
    Sp, tp, ep = Sb(u - 1), (u - 1) >> 1, (u - 1) & 1
    if u > 0: a(f"v_smfmac_f32_32x32x32_bf16 {vr(O(ep),16)}, {Vb(tp,0)}, {vr(Sp,8)}, v30")
    slot(t, pf + "0b")
    if e == 0:
        slot(t, "e0a"); a(f"ds_read_b128 {Vb(t,0)}, {vaddr(t,0)}"); slot(t, "e0")
    else:
        slot(t, "o0"); slot(t, "o0a")
    for x in ex[3:7]: a(x)
    if u > 0: a(f"v_smfmac_f32_32x32x32_bf16 {vr(O(ep),16)}, {Vb(tp,1)}, {vr(Sp+8,8)}, v30")
    slot(t, pf + "1b")
    if e == 0:
        slot(t, "e1"); slot(t, "e1x"); slot(t, "e1a"); a(f"ds_read_b128 {Vb(t,1)}, {vaddr(t,1)}")
    else:
        slot(t, "o1a")
        if t + 2 < 64: a(f"ds_read_b128 {Kb(t+2)}, {kaddr(t+2)}")
        slot(t, "o1x")
    for x in ex[7:16]: a(x)
assert not plan, plan.keys()
for m in range(2): a(f"v_smfmac_f32_32x32x32_bf16 {vr(O(1),16)}, {Vb(63,m)}, {vr(Sb(127)+8*m,8)}, v30")
if "clk" in XP: a("s_memtime s[100:101]\ns_memrealtime s[78:79]\ns_waitcnt lgkmcnt(0)\ns_sub_u32 s100, s100, s96\ns_sub_u32 s101, s78, s98")
stamp("attn")
Lfb, Lok = a.label("fb"), a.label("ok")
def getl():
    for e in range(2): a(f"v_mov_b32 v{4+2*e}, v{O(e)+8}\nv_mov_b32 v{5+2*e}, v{O(e)+8}")
    for e in range(2): a(f"v_permlane32_swap_b32 v{4+2*e}, v{5+2*e}")
a(f"""
s_add_u32 s3, {sXCC}, 1
v_cmp_ne_u32 vcc, s3, v253
s_lshl_b32 s65, {sCB}, 2
v_add_u32 v254, s65, v198
v_lshlrev_b32 v255, 2, v0
s_and_b32 s3, vcc_lo, 0xff
s_cselect_b32 {sFAST}, 0, {0 if FORCE_SLOW else 1}
v_mov_b32 v32, {fbits(2.0**40 if not FORCE_FB else -1.0)}
""")
if "probe" in XP:
    a(f"s_cmp_eq_u32 {sFAST}, 0\ns_cbranch_scc0 L_pr\ns_mov_b32 s3, 12\nL_pr0:\ns_sleep 127\ns_sub_u32 s3, s3, 1\ns_cmp_lg_u32 s3, 0\ns_cbranch_scc1 L_pr0\nL_pr:")
getl()
a(f"v_add_f32 v5, v4, v6\nv_cmp_nlt_f32 vcc, v5, v32\ns_cbranch_vccnz {Lfb}\n{Lok}:")
for e in range(2): a(f"v_rcp_f32 v{4+2*e}, v{4+2*e}")
for e in range(2):
    for i in range(4): a(f"v_pk_mul_f32 {vr(O(e)+2*i,2)}, {vr(O(e)+2*i,2)}, {vr(4+2*e,2)} op_sel_hi:[1,0]")
for e in range(2):
    for i in range(4): a(f"v_cvt_pk_bf16_f32 v{32+4*e+i}, v{O(e)+2*i}, v{O(e)+2*i+1}")
both_data(lambda sc: [vm.op(f"buffer_store_dwordx4 {vr(32+4*e,4)}, v3, {WS}, s16 offen offset:{e*1024}{sc}") for e in range(2)])
rd3 = lambda T, j: a(f"ds_read_b128 {vr(144+(T&1)*16+4*j,4)}, v3 offset:{L_WO + T*4096 + j*1024}")
for j in range(4): rd3(0, j)
hop_signal(1)
stamp("opub")
round_bf16(list(range(220, 236)))
for i in range(8): a(f"v_lshlrev_b32 v{32+2*i}, 16, v{8+i}\nv_and_b32 v{33+2*i}, 0xffff0000, v{8+i}")
a(f"""
v_mov_b32 v31, v218
s_lshl_b32 s64, s55, 1
s_add_u32 s64, s64, {WS_X}
s_lshr_b32 s68, s55, 4
s_lshl_b32 s3, {sCB}, 7
s_add_u32 s69, s68, s3
s_add_u32 s67, s69, {WS_ST1}
v_lshlrev_b32 v6, 3, v1
""")
hop_wait(1)
stamp("C")
def frag_load(T, tag):
    vm.op(f"buffer_load_dwordx4 {vr(64+4*T,4)}, v3, {WS}, s64 offen offset:{(T & 3)*1024} sc1", f"{tag}{T}")
    if T & 3 == 3: a("s_add_u32 s64, s64, 4096")
AH = 8
for T in range(AH): frag_load(T, "o")
g2items = win_items(1, 2, lin_slot(slotA(8)), "z2g2")
def aft3(T, j):
    if j == 0 and T + AH < 16: frag_load(T + AH, "o")
    if j == 0 and 8 <= T < 12: emit_item(g2items[T - 8])
fragloop(16, 4, rd3,
         lambda T, j: a(f"v_mfma_f32_16x16x32_bf16 {vr(128+4*j,4)}, {vr(144+(T&1)*16+4*j,4)}, {vr(64+4*T,4)}, {'0' if T == 0 else vr(128+4*j,4)}"),
         before=lambda T: vm.wait(f"o{T}"), after=aft3, preissued=True)
stamp("p3mm")
for i in range(8): a(f"v_pk_fma_f32 {vr(32+2*i,2)}, {vr(128+2*i,2)}, {vr(220+2*i,2)}, {vr(32+2*i,2)}")
for i in range(8): a(f"v_cvt_pk_bf16_f32 v{8+i}, v{32+2*i}, v{33+2*i}")
for i in range(8): a(f"v_lshlrev_b32 v{32+2*i}, 16, v{8+i}\nv_and_b32 v{33+2*i}, 0xffff0000, v{8+i}")
for i in range(8): a(f"v_pk_mul_f32 {vr(236+2*i,2)}, {vr(236+2*i,2)}, {vr(32+2*i,2)}")
for i in range(8): a(f"v_cvt_pk_bf16_f32 v{80+i}, v{236+2*i}, v{237+2*i}")
both_data(lambda sc: [vm.op(f"buffer_store_dwordx4 {vr(80+4*p,4)}, v3, {WS}, s17 offen offset:{p*1024}{sc}") for p in range(2)])
a("v_pk_mul_f32 v[88:89], v[32:33], v[32:33]\nv_pk_add_f32 v[90:91], v[32:33], v[34:35]\nv_pk_mul_f32 v[94:95], v[34:35], v[34:35]\nv_pk_add_f32 v[96:97], v[36:37], v[38:39]")
for i in range(2, 8): a(f"v_pk_fma_f32 {vr(88 + 6*(i & 1),2)}, {vr(32+2*i,2)}, {vr(32+2*i,2)}, {vr(88 + 6*(i & 1),2)}")
for i in range(4, 8): a(f"v_pk_add_f32 {vr(90 + 6*(i & 1),2)}, {vr(90 + 6*(i & 1),2)}, {vr(32+2*i,2)}")
a("v_pk_add_f32 v[88:89], v[88:89], v[94:95]\nv_pk_add_f32 v[90:91], v[90:91], v[96:97]\nv_add_f32 v93, v88, v89\nv_add_f32 v92, v90, v91")
xgroup_sum2(92, 94, 93, 95)
a("s_mov_b64 exec, 0xffff")
both_data(lambda sc: vm.op(f"buffer_store_dwordx2 v[92:93], v6, {WS}, s67 offen{sc}"))
a(f"""
s_mov_b64 exec, -1
v_add_u32 v25, 0xe000, v3
v_add_u32 v26, 0xe000, v25
v_and_b32 v4, 7, v1
v_lshlrev_b32 v4, 7, v4
v_lshl_add_u32 v30, v2, 5, v4
v_lshlrev_b32 v4, 8, v2
v_lshl_add_u32 v27, v1, 3, v4
""")
stamp("p3ep")
hop_signal(2)
stamp("ypub")
WB = (32, 204)
def rdl(dst, addr):
    w_, off = divmod(addr, 0xe000)
    a(f"ds_read_b128 {vr(dst,4)}, v{(3, 25, 26)[w_]} offset:{off}")
a(f"""
s_barrier
s_and_b32 s3, {sW}, 1
s_mul_i32 s66, s3, 3584
s_lshl_b32 s3, s3, 10
s_add_u32 m0, s3, {L_SM}
s_mul_i32 s3, {sCB}, 448
s_add_u32 s66, s66, s3
s_add_u32 s66, s66, {WS_C12}
v_add_u32 v6, {7168 - 448}, v3
v_cmp_gt_u32 vcc, 28, v0
v_cndmask_b32 v6, v6, v3, vcc
""")
vm.op(f"buffer_load_dwordx4 v6, {WS}, s66 offen sc1 lds")
for x in win_items(1, 3, [f"s_mul_i32 s75, {sW}, {SLOT}", f"s_sub_u32 s75, s75, {SLOT}", f"s_cmp_eq_u32 {sW}, 0", f"s_cselect_b32 s75, {slotA(12)}, s75"], "z2g3"): emit_item(x)
for j in range(7): rdl(WB[0] + 4*j, slot_z2(0) + j*1024)
a(f"v_add_u32 v29, {L_SM}, v31\nv_lshlrev_b32 v24, 2, v1\nv_add_u32 v24, {L_SM + 1024}, v24\ns_add_u32 s66, s68, {WS_ST1}")
hop_wait(2)
stamp("D")
vm.op(f"buffer_load_dwordx2 v[172:173], v27, {WS}, s66 offen sc1")
vm.op(f"buffer_load_dwordx2 v[174:175], v27, {WS}, s66 offen offset:128 sc1", "st1")
for T in range(AH): frag_load(T, "y")
a(f"v_lshlrev_b32 v4, 7, v0\nv_mov_b32 v27, {OOB}\nv_cmp_gt_u32 vcc, 14, v0\nv_cndmask_b32 v27, v27, v4, vcc")
vm.wait("st1")
a("v_pk_add_f32 v[172:173], v[172:173], v[174:175]")
xgroup_sum2(172, 174, 173, 175)
finish_stats([(172, 173, 62, 28, None)], 512)
a(f"v_mul_f32 v62, v62, v28\nv_mov_b32 v60, {fbits(-2*math.log2(math.e)*math.sqrt(2/math.pi))}\nv_mov_b32 v61, v60")
for i in range(4): a(f"ds_bpermute_b32 v{20+i}, v31, v28 offset:{4*i}\nds_bpermute_b32 v{16+i}, v31, v62 offset:{4*i}")
CP = [232, 234, 236, 238, 240, 242, 244]
z1items = {g_: win_items(0, g_, lin_slot(slotB(3) if g_ == 0 else slotA(4*(g_ - 1))), f"z1g{g_}") for g_ in range(4)}
def bef(T):
    if T == 11: a("s_waitcnt lgkmcnt(0)\ns_barrier")
    vm.wait(f"y{T}")
def aft(T, j):
    if j == 0 and T + AH < 16: frag_load(T + AH, "y")
    if j == 3 and T in (8, 10, 12, 14): emit_item(z1items[0][(T - 8) // 2])
    if j == 3 and T in (9, 11, 13, 15):
        vm.op(f"buffer_load_dword v252, v27, {WS}, s26 offen sc1"); a("s_add_u32 s26, s26, 1792")
fragloop(16, 7, lambda T, j: rdl(WB[T & 1] + 4*j, slot_z2(T) + j*1024),
         lambda T, j: a(f"v_mfma_f32_16x16x32_bf16 {vr(128+4*j,4)}, {vr(64+4*T,4)}, {vr(WB[T & 1]+4*j,4)}, {'0' if T == 0 else vr(128+4*j,4)}"),
         before=bef, after=aft, preissued=True)
for j in range(7): a(f"ds_read2_b32 {vr(CP[j],2)}, v24 offset0:{j*16} offset1:{j*16 + 112}")
stamp("z2mm")
a(f"s_mov_b32 s64, {fbits(-2*math.log2(math.e)*math.sqrt(2/math.pi)*0.044715)}\ns_mov_b32 s65, s64\ns_mov_b32 s66, 1.0\ns_mov_b32 s67, 1.0\ns_waitcnt lgkmcnt(0)")
def gelu(acc, tmp, mid=None, mid2=None, mid0=None):
    P = range(14)
    for i in P: a(f"v_pk_mul_f32 {vr(tmp+2*i,2)}, {vr(acc+2*i,2)}, {vr(acc+2*i,2)}")
    for i in P: a(f"v_pk_fma_f32 {vr(tmp+2*i,2)}, {vr(tmp+2*i,2)}, s[64:65], v[60:61]")
    for i in P: a(f"v_pk_mul_f32 {vr(tmp+2*i,2)}, {vr(tmp+2*i,2)}, {vr(acc+2*i,2)}")
    if mid0: mid0()
    for i in range(28): a(f"v_exp_f32 v{tmp+i}, v{tmp+i}")
    if mid: mid()
    for i in P: a(f"v_pk_add_f32 {vr(tmp+2*i,2)}, {vr(tmp+2*i,2)}, s[66:67]")
    for i in range(28): a(f"v_rcp_f32 v{tmp+i}, v{tmp+i}")
    if mid2: mid2()
    for i in P: a(f"v_pk_mul_f32 {vr(acc+2*i,2)}, {vr(acc+2*i,2)}, {vr(tmp+2*i,2)}")
for i in range(14): a(f"v_pk_fma_f32 {vr(32+2*i,2)}, {vr(16+2*(i & 1),2)}, {vr(CP[i >> 1],2)}, {vr(CP[i >> 1],2)} op_sel:[0,0,1] op_sel_hi:[1,0,1]")
for i in range(14): a(f"v_pk_fma_f32 {vr(128+2*i,2)}, {vr(128+2*i,2)}, {vr(20+2*(i & 1),2)}, {vr(32+2*i,2)}")
gelu(128, 32, mid0=lambda: emit_item(z1items[1][0]), mid=lambda: (emit_item(z1items[1][1]), emit_item(z1items[1][2])), mid2=lambda: emit_item(z1items[1][3]))
for j in range(7): rdl(WB[0] + 4*j, slot_z1(0) + j*1024) if False else None
for h in range(2):
    a(f"v_pk_add_f32 {vr(156+2*h,2)}, {vr(128+2*h,2)}, {vr(132+2*h,2)}\nv_pk_mul_f32 {vr(160+2*h,2)}, {vr(128+2*h,2)}, {vr(128+2*h,2)}")
for j in range(1, 7):
    for h in range(2):
        if j > 1: a(f"v_pk_add_f32 {vr(156+2*h,2)}, {vr(156+2*h,2)}, {vr(128+4*j+2*h,2)}")
        a(f"v_pk_fma_f32 {vr(160+2*h,2)}, {vr(128+4*j+2*h,2)}, {vr(128+4*j+2*h,2)}, {vr(160+2*h,2)}")
dppsum(range(156, 164), (8, 4, 2, 1))
a(f"s_add_u32 s70, s69, {WS_ST2}\nv_lshlrev_b32 v6, 5, v2\ns_mov_b32 exec_lo, 0x00010001\ns_mov_b32 exec_hi, 0x00010001")
both(lambda sc: (vm.op(f"buffer_store_dwordx4 v[156:159], v6, {WS}, s70 offen{sc}"), vm.op(f"buffer_store_dwordx4 v[160:163], v6, {WS}, s70 offen offset:16{sc}", "sst")))
a("s_mov_b64 exec, -1")
vm.wait("z1g0")
a("s_barrier")
stamp("spub")
def z2_publish():
    hop_wait(3)
    stamp("S")
    a(f"s_add_u32 s3, s68, {WS_ST2}")
    vm.op(f"buffer_load_dwordx4 v[164:167], v30, {WS}, s3 offen sc1")
    vm.op(f"buffer_load_dwordx4 v[168:171], v30, {WS}, s3 offen offset:16 sc1", "st2")
    srd(R1, P_BSP, 4096)
    a("s_lshr_b32 s3, s55, 9\nv_lshlrev_b32 v4, 1, v1")
    vm.op(f"buffer_load_ushort v16, v4, {R1}, s3 offen", "bsp")
    a(f"""
s_lshl_b32 s70, {sCB}, 6
s_lshl_b32 s3, {sRB}, 1
s_add_u32 s70, s70, s3
s_lshr_b32 s3, {sW}, 1
s_add_u32 s70, s70, s3
s_mul_i32 s70, s70, 7168
s_and_b32 s3, {sW}, 1
s_lshl_b32 s3, s3, 9
s_add_u32 s70, s70, s3
s_add_u32 s70, s70, {WS_Z2}
s_add_u32 s71, s70, 4096
v_and_b32 v4, 1, v2
v_lshlrev_b32 v4, 10, v4
v_lshrrev_b32 v5, 1, v2
v_lshl_add_u32 v4, v5, 8, v4
v_lshl_add_u32 v6, v1, 4, v4
""")
    vm.wait("st2")
    dppsum(range(164, 172), (4, 2, 1))
    finish_stats([(164+i, 168+i, 156+i, 160+i, None) for i in range(4)], 896)
    for h in range(2): a(f"v_pk_mul_f32 {vr(156+2*h,2)}, {vr(156+2*h,2)}, {vr(160+2*h,2)}")
    for i in range(14): a(f"v_pk_fma_f32 {vr(128+2*i,2)}, {vr(128+2*i,2)}, {vr(160+2*(i & 1),2)}, {vr(156+2*(i & 1),2)}")
    for i in range(14): a(f"v_cvt_pk_bf16_f32 v{232+i}, v{128+2*i}, v{129+2*i}")
    a("v_mov_b32 v246, v244\nv_mov_b32 v247, v245")
    for p in range(4): a(f"v_permlane16_swap_b32 v{232+4*p}, v{234+4*p}\nv_permlane16_swap_b32 v{233+4*p}, v{235+4*p}")
    vm.op(f"buffer_store_dwordx4 v[232:235], v6, {WS}, s70 offen sc1")
    vm.op(f"buffer_store_dwordx4 v[236:239], v6, {WS}, s70 offen offset:2048 sc1")
    vm.op(f"buffer_store_dwordx4 v[240:243], v6, {WS}, s71 offen sc1")
    a("s_mov_b32 exec_lo, 0x0000ffff\ns_mov_b32 exec_hi, 0x0000ffff")
    vm.op(f"buffer_store_dwordx4 v[244:247], v6, {WS}, s71 offen offset:2048 sc1", "zst")
    a(f"""
s_mov_b64 exec, -1
s_sub_u32 s71, s71, 4096
v_lshrrev_b32 v4, 2, v0
v_lshlrev_b32 v4, 10, v4
v_and_b32 v5, 3, v0
v_lshl_add_u32 v4, v5, 7, v4
v_mov_b32 v18, {OOB}
v_cmp_gt_u32 vcc, 28, v0
v_cndmask_b32 v18, v18, v4, vcc
s_lshl_b32 s70, {sRB}, 3
s_add_u32 s70, s70, {sCB}
s_lshl_b32 s70, s70, 9
s_lshl_b32 s3, {sW}, 7
s_add_u32 s70, s70, s3
s_add_u32 s70, s70, {F_E}
""")
    stamp("zst")
def bef(T):
    if T == 1: hop_signal(3, "sst")
    if T == 3: a("s_barrier")
    if T == TS: z2_publish()
    if T == TE:
        vm.wait("zst"); vm.op(f"buffer_store_dword v17, v63, {WS}, s70 offen sc1")
        if "own" in XP: vm.op(f"buffer_load_dword v252, v18, {WS}, s71 offen sc1")
        stamp("zpub")
    if T == TA:
        a(f"s_lshl_b32 s70, {sW}, 15\ns_lshl_b32 s3, {sCB}, 9\ns_add_u32 s70, s70, s3\ns_add_u32 s70, s70, {F_E}\nv_lshrrev_b32 v19, 2, v0\nv_lshlrev_b32 v19, 12, v19\nv_and_b32 v5, 3, v0\nv_lshl_add_u32 v19, v5, 7, v19")
        a("v_mov_b32 v21, v19\ns_mov_b32 exec_hi, 0"); vm.op(f"buffer_load_dword v22, v19, {WS}, s70 offen sc1", "echk"); a("s_mov_b64 exec, -1")
    if T in (7, 11): vm.wait("z1g2" if T == 7 else "z1g3"); a("s_barrier")
def aft(T, j):
    T -= TZ
    if 0 <= T < 2 and j in (1, 4): emit_item(z1items[2][2*T + (j == 4)])
    if 2 <= T < 4 and j in (1, 4): emit_item(z1items[3][2*(T - 2) + (j == 4)])
    pass
TA = int(([x[3:] for x in XP if x.startswith('ta:')] or ['14'])[0])
TS, TE, TZ = (int(x) for x in ([x[3:] for x in XP if x.startswith("ts:")] or ["3,6,0"])[0].split(","))
a(f"v_mov_b32 v17, 1\nv_mov_b32 v63, {OOB}\nv_cmp_eq_u32 vcc, 0, v0\nv_cndmask_b32 v63, v63, v0, vcc")
fragloop(16, 7, lambda T, j: rdl(WB[T & 1] + 4*j, slot_z1(T) + j*1024),
         lambda T, j: a(f"v_mfma_f32_16x16x32_bf16 {vr(176+4*j,4)}, {vr(WB[T & 1]+4*j,4)}, {vr(64+4*T,4)}, {'0' if T == 0 else vr(176+4*j,4)}"), before=bef, after=aft)
for j in range(7): a(f"ds_read_b128 {vr(204+4*j,4)}, v29 offset:{j*64}\nds_read_b128 {vr(128+4*j,4)}, v29 offset:{448 + j*64}")
a("s_barrier")
stamp("z1mm")
a(f"s_lshl_b32 s72, {sCB}, 2\ns_add_u32 s72, s72, {sW}\ns_mul_i32 s72, s72, {16*7168}\ns_add_u32 s72, s72, {WS_Z2}\ns_add_u32 s73, s72, 4096")
ZSEQ = [(T, j) for T in range(16) for j in range(4)] + [(T, j) for T in range(16) for j in range(4, 7)]
ZR = lambda n: (64, 92, 32)[(n % 21) // 7] + 4*(n % 7)
def ldz(n):
    T, j = ZSEQ[n]
    vm.op(f"buffer_load_dwordx4 {vr(ZR(n),4)}, v3, {WS}, s{72 + (j >> 2)} offen offset:{(j & 3)*1024} sc1", f"z{n}")
    if j in (3, 6): a(f"s_add_u32 s{72 + (j >> 2)}, s{72 + (j >> 2)}, 7168")
def wout_setup(n0):
    a(f"s_mul_i32 s3, {sCB}, {28*4096}\ns_add_u32 s75, s3, {WS_WOUTF + n0*4096}\ns_lshl_b32 s76, {sW}, 10\ns_add_u32 s74, s75, s76\ns_add_u32 s76, s76, {L_WOUT + n0*4096}")
def wout_one(tag):
    a("s_mov_b32 m0, s76\ns_add_u32 s76, s76, 4096")
    vm.op(f"buffer_load_dwordx4 v3, {WS}, s74 offen sc1 lds", tag)
    a("s_add_u32 s74, s74, 4096")
def wout_dma(n0, n1, tag):
    wout_setup(n0)
    for n in range(n0, n1): wout_one(tag)
wout_setup(0)
for s_ in range(1, 4):
    a(f"s_add_u32 s3, {sW}, {s_}\ns_and_b32 s3, s3, 3\ns_mul_i32 s3, s3, {12*1024}\ns_add_u32 s3, s3, {L_RED + (s_-1)*4096}\nv_add_u32 v{16+s_}, s3, v3")
a(f"s_mul_i32 s3, {sW}, {12*1024}\ns_add_u32 s3, s3, {L_RED}\nv_add_u32 v20, s3, v3\nv_lshlrev_b32 v16, 16, v16")
WPRE = int(([x[3:] for x in XP if x.startswith('wp:')] or ['24'])[0])
for n in range(WPRE): wout_one("wout0")
vm.wait("echk")
a("v_cmp_gt_u32 vcc, 1, v22\ns_nop 1\ns_cmp_eq_u32 vcc_lo, 0\ns_cbranch_scc1 L_eok")
poll(f"buffer_load_dword v4, v21, {WS}, s70 offen sc1", "v_cmp_gt_u32 vcc, 1, v4", "0xffffffff")
a("L_eok:")
stamp("E")
for n in range(7): ldz(n)
a("s_waitcnt lgkmcnt(0)")
for i in range(14): a(f"v_pk_fma_f32 {vr(128+2*i,2)}, {vr(204+2*i,2)}, v[62:63], {vr(128+2*i,2)} op_sel_hi:[1,0,1]")
for i in range(14): a(f"v_pk_fma_f32 {vr(176+2*i,2)}, {vr(176+2*i,2)}, v[28:29], {vr(128+2*i,2)} op_sel_hi:[1,0,1]")
gelu(176, 204, mid=lambda: [ldz(n) for n in range(7, 14)])
for i in range(14): a(f"v_cvt_pk_bf16_f32 v{240+i}, v{176+2*i}, v{177+2*i}")
Z1P = list(range(240, 254))
stamp("gelu1")
ACC = lambda s_, j: 128 + (s_*7 + j)*4
def p5(n, s_):
    T, j = ZSEQ[n]
    d = vr(ACC(s_, j), 4)
    a(f"v_mfma_f32_16x16x32_bf16 {d}, {vr(ZR(n),4)}, {ar((T*4+s_)*4,4)}, {'0' if T == 0 else d}")
red_w = lambda s_, j: a(f"ds_write_b128 v{16+s_}, {vr(ACC(s_, j),4)} offset:{(j & 3)*1024}")
red_r = lambda s_, j: a(f"ds_read_b128 {vr(ACC(s_, j),4)}, v20 offset:{(s_-1)*4096 + (j & 3)*1024}")
UP = lambda j: (120, 122, 124, 126, 60, 62, 24)[j]
def u_frag(j):
    A0, A1, A2, A3 = (ACC(s_, j) for s_ in range(4))
    for h in (0, 2): a(f"v_pk_add_f32 {vr(A1+h,2)}, {vr(A1+h,2)}, {vr(A2+h,2)}\nv_pk_add_f32 {vr(A0+h,2)}, {vr(A0+h,2)}, {vr(A3+h,2)}")
    for h in (0, 1): a(f"v_lshlrev_b32 v{A2+2*h}, 16, v{Z1P[2*j+h]}\nv_and_b32 v{A2+2*h+1}, 0xffff0000, v{Z1P[2*j+h]}")
    for h in (0, 2): a(f"v_pk_add_f32 {vr(A1+h,2)}, {vr(A1+h,2)}, v[16:17] op_sel_hi:[1,0]")
    for h in (0, 2): a(f"v_pk_add_f32 {vr(A0+h,2)}, {vr(A0+h,2)}, {vr(A1+h,2)}")
    for h in (0, 2): a(f"v_pk_mul_f32 {vr(A0+h,2)}, {vr(A0+h,2)}, {vr(A2+h,2)}")
    for h in (0, 1): a(f"v_cvt_pk_bf16_f32 v{UP(j)+h}, v{A0+2*h}, v{A0+2*h+1}")
a(f"""
s_lshl_b32 s68, s55, 1
s_add_u32 s68, s68, {WS_X}
s_mul_i32 s64, {sCB}, 3072
s_add_u32 s64, s64, s68
s_lshl_b32 s65, {sCB}, 9
s_add_u32 s65, s65, s68
s_add_u32 s65, s65, {24*1024}
v_lshrrev_b32 v6, 5, v0
v_lshlrev_b32 v6, 8, v6
v_lshl_add_u32 v6, v1, 4, v6
""")
side = capture(lambda: [u_frag(j) for j in range(4)])
NDEF = 103
ZD = int(([x[3:] for x in XP if x.startswith('zd:')] or ['14'])[0]); nld = [14]
for n in range(112):
    m = n - 64
    if m == 14: a("s_waitcnt lgkmcnt(0)\ns_barrier")
    if m == 28: a("s_waitcnt lgkmcnt(0)\ns_barrier")
    vm.wait(f"z{n}")
    for s_ in ((0, 1, 2, 3) if n < NDEF else (1, 2, 3)):
        p5(n, s_)
        if s_ == 0 and nld[0] < 112 and nld[0] <= n + ZD: ldz(nld[0]); nld[0] += 1
        if s_ == 3 and nld[0] < 112 and nld[0] <= n + ZD: ldz(nld[0]); nld[0] += 1
        if s_ == 2 and n % 4 == 1 and n // 4 >= WPRE: wout_one("wout0")
        if s_ == 1 and 1 <= m < 13: red_w(1 + (m - 1) // 4, (m - 1) % 4)
        if s_ == 1 and 14 <= m < 26: red_r(1 + (m - 14) % 3, (m - 14) // 3)
        if s_ >= 1 and m >= 28:
            for _ in range(2):
                if side: a.items.append(side.pop(0))
    if m == 40:
        assert not side
        for p in range(2): vm.op(f"buffer_store_dwordx4 {vr(120+4*p,4)}, v3, {WS}, s64 offen offset:{p*1024} sc1")
stamp("p5mm")
for k in range(9):
    red_w(1 + k // 3, 4 + k % 3)
    p5(NDEF + k, 0)
a("s_waitcnt lgkmcnt(0)\ns_barrier")
stamp("red")
for j in range(4, 7):
    for s_ in range(1, 4): red_r(s_, j)
for j in range(4, 7):
    a(f"s_waitcnt lgkmcnt({18 - 3*j})")
    u_frag(j)
    if j == 5: vm.op(f"buffer_store_dwordx4 v[60:63], v3, {WS}, s64 offen offset:2048 sc1")
a("v_mov_b32 v26, v24\nv_mov_b32 v27, v25\nv_permlane16_swap_b32 v24, v26\nv_permlane16_swap_b32 v25, v27\ns_mov_b32 exec_lo, 0x0000ffff\ns_mov_b32 exec_hi, 0x0000ffff")
vm.op(f"buffer_store_dwordx4 v[24:27], v6, {WS}, s65 offen sc1")
a("s_mov_b64 exec, -1")
hop_signal(4)
a("v_add_u32 v25, 0xe000, v3\nv_add_u32 v26, 0xe000, v25")
stamp("upub")
a("s_barrier")
rd6 = lambda n, j: rdl(160 + (n & 1)*16 + 4*j, L_WOUT + n*4096 + j*1024)
for j in range(4): rd6(0, j)
hop_wait(4)
stamp("F")
steps = []
for cbp in range(8):
    for p in range(3): steps.append((cbp*3 + p, 112*cbp + 32*p, False))
    if cbp & 1: steps.append((24 + (cbp >> 1), 224*(cbp >> 1) + 96, True))
a("s_mov_b32 s64, s68")
for n in range(1, 7): a(f"s_add_u32 s{64+n if n < 4 else 66+n}, s64, {4096*n}")
US = ["s64", "s65", "s66", "s67", "s70", "s71", "s72"]
def uload(n):
    st = steps[n][0]
    vm.op(f"buffer_load_dwordx4 {vr(32+4*n,4)}, v3, {WS}, {US[st >> 2]} offen offset:{(st & 3)*1024} sc1", f"u{n}")
for n in range(AH): uload(n)
a(f"s_lshl_b32 s74, {sCB}, 8\ns_add_u32 s74, s74, {WS_G2 + 2048}")
def aft6(n, j):
    if j == 0 and n + AH < 28: uload(n + AH)
    if j == 0 and 28 <= n + AH < 32: vm.op(f"buffer_load_dwordx4 {vr(216+4*(n+AH-28),4)}, v31, {WS}, s74 offen offset:{(n+AH-28)*64} sc1", "gb")
stamp("u_iss")
def bef(n):
    vm.wait(f"u{n}")
fragloop(28, 4, rd6,
         lambda n, j: a(f"v_mfma_f32_16x16x32_bf16 {vr(144+4*j,4)}, {vr(160+(n&1)*16+4*j,4)}, {vr(32+4*n,4)}, {'0' if n == 0 else vr(144+4*j,4)}"),
         before=bef, after=aft6, preissued=True)
stamp("p6mm")
vm.wait("gb")
for i in range(8): a(f"v_lshlrev_b32 v{32+2*i}, 16, v{8+i}\nv_and_b32 v{33+2*i}, 0xffff0000, v{8+i}")
for i in range(8): a(f"v_pk_fma_f32 {vr(32+2*i,2)}, {vr(144+2*i,2)}, {vr(216+2*i,2)}, {vr(32+2*i,2)}")
for i in range(8): a(f"v_cvt_pk_bf16_f32 v{48+i}, v{32+2*i}, v{33+2*i}")
for p in range(2): a(f"v_permlane16_swap_b32 v{48+4*p}, v{50+4*p}\nv_permlane16_swap_b32 v{49+4*p}, v{51+4*p}")
srd(R1, P_OUT, 2048 * 1024, "s55")
a(f"v_lshlrev_b32 v4, 10, v1\nv_and_b32 v5, 1, v2\nv_lshl_add_u32 v4, v5, 5, v4\nv_lshrrev_b32 v5, 1, v2\nv_lshl_add_u32 v4, v5, 4, v4\ns_lshl_b32 s3, {sCB}, 7")
for p in range(2): a(f"buffer_store_dwordx4 {vr(48+4*p,4)}, v4, {R1}, s3 offen offset:{p*64} nt")
if AMP:
    a("s_waitcnt vmcnt(0)")
    stamp("end")
    assert AMP[0] != "start"
    a(f"s_sub_u32 s91, s91, s90\ns_mul_i32 s91, s91, {1 if 'x1' in XP else 3}\ns_min_u32 s91, s91, 20000\ns_memrealtime s[78:79]\ns_waitcnt lgkmcnt(0)\ns_mov_b32 s92, s78\nL_amp:\ns_sleep 1\ns_memrealtime s[78:79]\ns_waitcnt lgkmcnt(0)\ns_sub_u32 s78, s78, s92\ns_cmp_lt_u32 s78, s91\ns_cbranch_scc1 L_amp")
elif "dbg" in XP:
    a("s_waitcnt vmcnt(0)")
    stamp("end")
    sel = ["xin", "barP", "barB", "kv0", "attn", "C", "D", "z2mm", "zpub", "E", "p5mm", "upub", "F", "p6mm", "end"]
    a("s_not_b32 s3, s80\nv_mov_b32 v32, s3")
    for n, nm in enumerate(sel):
        i = stamp_names.index(nm)
        a(f"s_bfe_u32 s3, s{81 + (i-1)//2}, {hex((16 << 16) | (16*((i-1) & 1)))}\ns_add_u32 s3, s3, s80\nv_writelane_b32 v32, s3, {n+1}")
    a("s_load_dwordx2 s[64:65], s[96:97], 104\ns_waitcnt lgkmcnt(0)")
    srd(R1, 64, 256)
    a(f"v_lshlrev_b32 v4, 2, v0\ns_mov_b64 exec, 0xffff\nbuffer_atomic_umax v32, v4, {R1}, 0 offen sc1\ns_waitcnt vmcnt(0)")
elif STAMPS:
    a("s_waitcnt vmcnt(0)")
    stamp("end")
    for i in range(22): a(f"v_writelane_b32 v32, s{80+i}, {i}")
    a(f"s_lshl_b32 s3, s2, 2\ns_add_u32 s3, s3, {sW}\ns_lshl_b32 s3, s3, 7\ns_add_u32 s3, s3, {WS_STAMP}\nv_lshlrev_b32 v4, 2, v0\ns_mov_b64 exec, 0xffffffff\nbuffer_store_dword v32, v4, {WS}, s3 offen")
a("s_endpgm")
a("L_xwait:")
poll(f"buffer_load_dwordx4 v[204:207], v216, {WS}, s25 offen sc1\nbuffer_load_dwordx4 v[208:211], v216, {WS}, s25 offen offset:64 sc1", tagcheck(list(range(204, 212))), "s[74:75]", pre="s_mov_b32 s74, 0x33333333\ns_mov_b32 s75, s74")
a("s_branch L_xok\nL_pwait:")
poll(f"buffer_load_dword v201, v174, {WS}, s27 offen sc1", "v_cmp_gt_u32 vcc, 32, v201", "15", 8)
a("s_branch L_pok\nL_gwait:")
poll(f"buffer_load_dword v201, v196, {WS}, s38 offen sc1", "v_cmp_gt_u32 vcc, 32, v201", "0xffffffff", 8)
a("s_branch L_gok")
a(f"{Lfb}:")
a(f"""
v_lshrrev_b32 v4, 5, v0
v_mul_u32_u24 v4, 272, v4
v_and_b32 v5, 31, v0
v_lshl_add_u32 v27, v5, 4, v4
v_mov_b32 v4, 0xff800000
v_mov_b32 v5, 0xff800000
s_mov_b32 s64, {WS_KV}
L_fb1:
buffer_load_dwordx4 {Kb(0)}, v3, {WS}, s64 offen offset:1088 sc1
s_waitcnt vmcnt(0)
""")
for e in range(2): a(f"v_mfma_f32_32x32x16_bf16 {vr(32+16*e,16)}, {Kb(0)}, {Q(e)}, 0")
for e in range(2): rowmax(32 + 16*e, 4 + e, False)
a(f"s_add_u32 s64, s64, {REC}\ns_cmp_lt_u32 s64, {WS_KV + 64*REC}\ns_cbranch_scc1 L_fb1")
for e in range(2): negbcast(4 + e, e)
for i in range(32): a(f"v_mov_b32 v{80+i}, 0")
a(f"""
s_mov_b32 s64, {WS_KV}
L_fb2:
buffer_load_dwordx4 {Kb(0)}, v3, {WS}, s64 offen offset:1088 sc1
buffer_load_dwordx4 {Vb(0,0)}, v27, {WS}, s64 offen sc1
buffer_load_dwordx4 {Vb(0,1)}, v27, {WS}, s64 offen offset:544 sc1
s_waitcnt vmcnt(0)
""")
for e in range(2): a(f"v_mfma_f32_32x32x16_bf16 {vr(32+16*e,16)}, {Kb(0)}, {Q(e)}, {vr(C(e),16)}")
for i in range(32): a(f"v_exp_f32 v{32+i}, v{32+i}")
for e in range(2):
    for m in range(2): a(f"v_smfmac_f32_32x32x32_bf16 {vr(O(e),16)}, {Vb(0,m)}, {vr(32+16*e+8*m,8)}, v30")
a(f"s_add_u32 s64, s64, {REC}\ns_cmp_lt_u32 s64, {WS_KV + 64*REC}\ns_cbranch_scc1 L_fb2")
getl()
a(f"s_branch {Lok}\nL_end:\ns_endpgm")

body = a.finish()
head = open("cdna_kernels/" + NAME + ".s.ref").read().split("; Override launch")[0]
src = head + f"""; One persistent launch: 256 workgroups (32 row blocks x 8 column blocks), 4 waves each; generated by gen/gen.py.
; @launch grid=(256,1,1) block=(256,1,1) lds={LDS_BYTES}
.amdgcn_target "amdgcn-amd-amdhsa--gfx950"
.text
.globl {NAME}_kernel
.p2align 8
.type {NAME}_kernel,@function
{NAME}_kernel:
{body}.section .rodata,"a"
.p2align 6
.amdhsa_kernel {NAME}_kernel
  .amdhsa_next_free_vgpr 512
  .amdhsa_next_free_sgpr 102
  .amdhsa_accum_offset 256
  .amdhsa_group_segment_fixed_size 0
  .amdhsa_kernarg_size 120
  .amdhsa_user_sgpr_count 2
  .amdhsa_user_sgpr_kernarg_segment_ptr 1
  .amdhsa_system_sgpr_workgroup_id_x 1
.end_amdhsa_kernel
"""
out = [x for x in sys.argv[1:] if not x.startswith("--")]
open(out[0] if out else "cdna_kernels/" + NAME + ".s", "w").write(src)
if STAMPS:
    open("stamps.txt", "w").write("\n".join(stamp_names)); open(out[0] + ".st", "w").write("\n".join(stamp_names))
print("instructions:", sum(1 for k, _ in a.items if k == "ins"), "hazard nops:", a.nops, file=sys.stderr)
```

```python
import sys, struct, math
from asmlib import Asm

NAME = "adaLN_cond__grouped_kv_mqa__mixer_gmlp__prompt"
STAMPS = "--stamps" in sys.argv or "--cyc" in sys.argv
CYC = "--cyc" in sys.argv
FORCE_SLOW = "--slow" in sys.argv
PADZERO = "--nopadzero" not in sys.argv
XP = [x[5:] for x in sys.argv if x.startswith("--xp=")]
FORCE_FB = "--fallback" in sys.argv

def fbits(x): return "0x%08x" % struct.unpack("<I", struct.pack("<f", x))[0]

F_B, F_HOP, F_P, WS_G2, F_E, WS_C12 = 0, 8192, 24576, 28672, 32768, 163840
WS_MOD, WS_MODT, WS_EPOCH, WS_KV = 0x32000, 0x35000, 0x3C000, 0x40000
WS_ST1, WS_ST2 = 0x70000, 0x90000
WS_X, WS_Z2, WS_STAMP, WS_SIZE = 0x100000, 0x500000, 0xD00000, 0x1200000
WS_WOF, WS_WOUTF, WS_DUMMY, WS_WINF = 0xD80000, 0xE00000, 0xF00000, 0x1000000
REC = 2112
L_G2 = 16384
L_KV = 28672
L_WQ, L_WKV, L_G0, L_SILU, L_PAR = 28672, 94208, 110592, 126976, 128000
L_RING, L_SM = 0, 158720
L_WO = 0
SLOT = 7168
def slotA(i): return 65536 + SLOT * i
def slotB(i): return SLOT * i
def slot_z2(T): return slotA(T) if T < 13 else slotB(T - 13)
def slot_z1(T): return slotB(3 + T) if T < 4 else slotA(T - 4)
L_WOUT, L_RED = 0, 77824
LDS_BYTES = 163840
R0, WS, R1, R2, R3 = "s[4:7]", "s[8:11]", "s[12:15]", "s[56:59]", "s[60:63]"
P_X, P_WQ, P_WK, P_WV, P_WO, P_WIN, P_WSP, P_BSP, P_WOUT, P_C, P_WMOD, P_OUT, P_DBG, P_WS = 16, 18, 20, 22, 24, 28, 30, 32, 34, 36, 38, 40, 42, 44
sRB, sCB, sW, sXCC, sFAST, sIDX, sXCD, sKVW, sGRP = "s46", "s47", "s48", "s49", "s50", "s51", "s52", "s53", "s54"
sEP, sTAG = "s42", "s43"
SPIN = 1 << 17
OOB = 0x7fff0000

a = Asm()
def vr(b, n): return f"v[{b}:{b+n-1}]"
def ar(b, n): return f"a[{b}:{b+n-1}]"

class VM:
    def __init__(s): s.n = 0; s.tags = {}
    def op(s, text, tag=None):
        a(text); s.n += 1
        if tag: s.tags[tag] = s.n
    def tag(s, t): s.tags[t] = s.n
    def wait(s, t):
        k = s.n - s.tags[t]
        if k < 63: a(f"s_waitcnt vmcnt({k})")
    def drain(s): a("s_waitcnt vmcnt(0)")
vm = VM()

def srd(q, ptr, size, off=None):
    b = int(q[2:q.index(":")])
    if off is None:
        a(f"s_mov_b32 s{b}, s{ptr}\ns_mov_b32 s{b+1}, s{ptr+1}\ns_mov_b32 s{b+2}, {size}")
    else:
        a(f"s_add_u32 s{b}, s{ptr}, {off}\ns_addc_u32 s{b+1}, s{ptr+1}, 0\ns_sub_u32 s{b+2}, {size}, {off}")
    a(f"s_mov_b32 s{b+3}, 0x20000")

nstamp = [0]
stamp_names = []
AMP = [x[4:] for x in XP if x.startswith("amp:")]
def stamp(name):
    if AMP and name in ("start", AMP[0]): a(f"s_memrealtime s[78:79]\ns_waitcnt lgkmcnt(0)\ns_mov_b32 s{90 if name == 'start' else 91}, s78")
    if not STAMPS: return
    if "dbg" in XP and name not in ("start", "xin", "barP", "barB", "kv0", "attn", "C", "D", "z2mm", "zpub", "E", "p5mm", "upub", "F", "p6mm", "end"): return
    if "tst" in XP and name in ("xin", "ln1", "h", "kv", "q", "p3mm", "p3ep", "y_iss", "st1", "init", "u_iss", "S", "opub", "ypub", "spub"): return
    i = nstamp[0]; nstamp[0] += 1; stamp_names.append(name)
    if "clk" in XP and i >= 30: return
    assert i < 43
    a("s_memrealtime s[78:79]\ns_waitcnt lgkmcnt(0)" if not CYC else "s_memtime s[78:79]\ns_waitcnt lgkmcnt(0)\ns_lshr_b32 s78, s78, 2")
    if i == 0: a("s_mov_b32 s80, s78")
    elif i & 1: a(f"s_sub_u32 s{81 + i//2}, s78, s80")
    else: a(f"s_sub_u32 s78, s78, s80\ns_pack_ll_b32_b16 s{80 + i//2}, s{80 + i//2}, s78")

def poll(load, cond, mask):
    L, X = a.label("poll"), a.label("pollx")
    a(f"s_mov_b64 exec, {mask}\ns_mov_b32 s3, 0\n{L}:\ns_add_u32 s3, s3, 1\ns_cmp_gt_u32 s3, {SPIN}\ns_cbranch_scc1 {X}")
    a(load); a("s_waitcnt vmcnt(0)"); a(cond)
    a(f"s_cbranch_vccnz {L}\n{X}:\ns_mov_b64 exec, -1")

def both_data(fn):
    if "allsc1" in XP: fn(" sc1")
    else: both(fn)
def both(fn):
    S, E = a.label("slow"), a.label("pub")
    n0 = vm.n
    a(f"s_cmp_eq_u32 {sFAST}, 0\ns_cbranch_scc1 {S}")
    fn(""); n1 = vm.n
    a(f"s_branch {E}\n{S}:"); vm.n = n0
    fn(" sc1"); assert vm.n == n1
    a(f"{E}:")

def hop_signal(phase, tag=None):
    a(f"v_mov_b32 v4, {phase}")
    if tag: vm.wait(tag)
    else: a("s_waitcnt vmcnt(0)")
    both(lambda sc: vm.op(f"buffer_store_dword v4, v254, {WS}, {sGRP} offen{sc}"))

def hop_wait(phase):
    poll(f"buffer_load_dword v4, v255, {WS}, {sGRP} offen sc1", f"v_cmp_gt_u32 vcc, {phase}, v4", "0xff")

def xgroup_sum(v, t):
    a(f"v_mov_b32 v{t}, v{v}\nv_permlane32_swap_b32 v{v}, v{t}\nv_add_f32 v{v}, v{v}, v{t}")
    a(f"v_mov_b32 v{t}, v{v}\nv_permlane16_swap_b32 v{v}, v{t}\nv_add_f32 v{v}, v{v}, v{t}")

def xgroup_sum2(v, t, v2, t2):
    for op in ("v_permlane32_swap_b32", "v_permlane16_swap_b32"):
        a(f"v_mov_b32 v{t}, v{v}\nv_mov_b32 v{t2}, v{v2}\n{op} v{v}, v{t}\n{op} v{v2}, v{t2}\nv_add_f32 v{v}, v{v}, v{t}\nv_add_f32 v{v2}, v{v2}, v{t2}")

def capture(fn):
    n = len(a.items); fn(); out = a.items[n:]; del a.items[n:]
    return out

def pipeline(nsteps, reads, compute, nreads, pre=1):
    for T in range(min(pre, nsteps)): reads(T)
    for T in range(nsteps):
        if T + pre < nsteps: reads(T + pre)
        left = min(pre, nsteps - 1 - T) * nreads
        a(f"s_waitcnt lgkmcnt({min(left, 15)})")
        compute(T)

def fragloop(nsteps, nf, read, mfma, before=None, after=None, nper=1, preissued=False):
    if not preissued:
        for j in range(nf): read(0, j)
    for T in range(nsteps):
        if before: before(T)
        for j in range(nf):
            left = (nf - 1 if T + 1 < nsteps else nf - 1 - j) * nper
            a(f"s_waitcnt lgkmcnt({min(left, 15)})")
            mfma(T, j)
            if T + 1 < nsteps: read(T + 1, j)
            if after: after(T, j)

def dppsum(regs, steps):
    for s in steps:
        for r in regs: a(f"v_add_f32_dpp v{r}, v{r}, v{r} row_ror:{s} row_mask:0xf bank_mask:0xf")
def finish_stats(rows, n):
    for s1, s2, mu, r, sd in rows: a(f"v_mul_f32 v{mu}, {fbits(-1.0/n)}, v{s1}\nv_mul_f32 v{s2}, {fbits(1.0/n)}, v{s2}")
    for s1, s2, mu, r, sd in rows: a(f"v_fma_f32 v{s2}, -v{mu}, v{mu}, v{s2}")
    for s1, s2, mu, r, sd in rows: a(f"v_max_f32 v{s2}, 0, v{s2}")
    for s1, s2, mu, r, sd in rows: a(f"v_add_f32 v{s2}, {fbits(1e-5)}, v{s2}")
    for s1, s2, mu, r, sd in rows: a(f"v_rsq_f32 v{r}, v{s2}")
    for s1, s2, mu, r, sd in rows:
        if sd is not None: a(f"v_mul_f32 v{sd}, v{s2}, v{r}")

a(f"""
s_cmp_ge_u32 s2, 256
s_cbranch_scc1 L_end
s_load_dwordx16 s[16:31], s[0:1], 0
s_load_dwordx8 s[32:39], s[0:1], 64
s_load_dwordx4 s[40:43], s[0:1], 96
s_load_dwordx2 s[44:45], s[0:1], 112
v_lshrrev_b32 v4, 6, v0
v_and_b32 v0, 63, v0
v_readfirstlane_b32 {sW}, v4
v_and_b32 v1, 15, v0
v_lshrrev_b32 v2, 4, v0
v_lshlrev_b32 v3, 4, v0
s_and_b32 {sXCD}, s2, 7
s_lshr_b32 {sIDX}, s2, 3
s_and_b32 {sCB}, {sIDX}, 7
s_lshr_b32 s3, {sIDX}, 3
s_lshl_b32 {sRB}, {sXCD}, 2
s_add_u32 {sRB}, {sRB}, s3
s_lshr_b32 {sKVW}, {sCB}, 1
s_getreg_b32 {sXCC}, hwreg(HW_REG_XCC_ID, 0, 4)
s_and_b32 {sXCC}, {sXCC}, 7
s_lshl_b32 {sGRP}, {sRB}, 2
s_add_u32 {sGRP}, {sGRP}, {sW}
s_lshl_b32 s55, {sGRP}, 14
s_lshl_b32 {sGRP}, {sGRP}, 7
s_add_u32 {sGRP}, {sGRP}, {F_HOP}
""")
a(f"""
s_cmp_eq_u32 {sW}, 3
s_cbranch_scc0 L_nopf
s_getpc_b64 s[64:65]
L_pc:
s_lshl_b32 s3, {sIDX}, 4
v_add_u32 v6, s3, v1
v_lshlrev_b32 v6, 7, v6
v_min_u32 v6, L_end-L_pc-4, v6
v_mov_b32 v7, s65
v_add_co_u32 v6, vcc, s64, v6
v_addc_co_u32 v7, vcc, 0, v7, vcc
s_mov_b64 exec, 0xffff
global_load_dword v24, v[6:7], off
s_mov_b64 exec, -1
L_nopf:
""")
def img32_regs(row, trb):
    a(f"""
v_lshrrev_b32 v4, 1, v0
v_and_b32 v5, 19, v4
v_bfe_u32 v6, v4, 2, 1
v_lshl_or_b32 v5, v6, 3, v5
v_bfe_u32 v6, v4, 3, 1
v_lshl_or_b32 v{row}, v6, 2, v5
v_lshrrev_b32 v4, 2, v1
v_and_b32 v5, 1, v2
v_lshl_add_u32 v4, v5, 2, v4
v_lshrrev_b32 v5, 1, v2
v_lshl_add_u32 v4, v5, 4, v4
v_lshlrev_b32 v4, 5, v4
v_and_b32 v5, 3, v1
v_lshl_add_u32 v{trb}, v5, 3, v4
""")
img32_regs(16, 17)
a(f"""
v_and_b32 v18, 1, v0
v_lshlrev_b32 v18, 4, v18
s_waitcnt lgkmcnt(0)
""")
if "dbg" in XP: a("s_mov_b64 s[96:97], s[0:1]")
stamp("start")
srd(WS, P_WS, hex(WS_SIZE))
a(f"s_load_dword {sEP}, s[{P_WS}:{P_WS+1}], {WS_EPOCH}")

def gemv_chain(lbase, trb, opaddr):
    a(f"v_add_u32 v7, {lbase}, v{trb}")
    def rd(T):
        b = 128 + (T % 4) * 8
        a(f"ds_read_b64_tr_b16 {vr(b,2)}, v7 offset:{T*1024}\nds_read_b64_tr_b16 {vr(b+2,2)}, v7 offset:{T*1024+256}")
        a(f"ds_read_b128 {vr(b+4,4)}, v{opaddr} offset:{T*64}")
    def cp(T):
        b = 128 + (T % 4) * 8
        a(f"v_mfma_f32_16x16x32_bf16 v[32:35], {vr(b,4)}, {vr(b+4,4)}, {'0' if T == 0 else 'v[32:35]'}")
    pipeline(16, rd, cp, 3, pre=3)

def round_bf16(regs):
    for i in range(0, len(regs), 2):
        x, y = regs[i], regs[i+1]
        a(f"v_cvt_pk_bf16_f32 v{y}, v{x}, v{y}\nv_lshlrev_b32 v{x}, 16, v{y}\nv_and_b32 v{y}, 0xffff0000, v{y}")

def silu8(src, dst):
    for i in range(4): a(f"v_lshlrev_b32 v{40+2*i}, 16, v{src+i}\nv_and_b32 v{41+2*i}, 0xffff0000, v{src+i}")
    for i in range(8): a(f"v_mul_f32 v{48+i}, {fbits(-math.log2(math.e))}, v{40+i}")
    for i in range(8): a(f"v_exp_f32 v{48+i}, v{48+i}")
    for i in range(8): a(f"v_add_f32 v{48+i}, 1.0, v{48+i}")
    for i in range(8): a(f"v_rcp_f32 v{48+i}, v{48+i}")
    for i in range(8): a(f"v_mul_f32 v{40+i}, v{40+i}, v{48+i}")
    for i in range(4): a(f"v_cvt_pk_bf16_f32 v{dst+i}, v{40+2*i}, v{41+2*i}")

Lw1, Lw2, Lw3, Lxi, Lxw, Lnz, Lsl, Lx2 = (a.label(x) for x in ("w1", "w2", "w3", "xi", "xw", "noz", "sl", "x2"))
a(f"s_lshl_b32 s64, {sRB}, 16")
srd(R1, P_X, 2048 * 1024, "s64")
srd(R2, P_WMOD, 512 * 6144)
a(f"s_and_b32 s3, {sCB}, 1\ns_cselect_b32 s64, s{P_WV}, s{P_WK}\ns_cselect_b32 s65, s{P_WV+1}, s{P_WK+1}")
srd(R3, 64, 16384)
srd(R0, P_C, 1024)
a(f"""
v_mov_b32 v36, 0
v_mov_b32 v37, 0
v_mov_b32 v38, 0
v_mov_b32 v39, 0
s_and_b32 s69, s2, 15
s_lshl_b32 s69, s69, 6
v_lshlrev_b32 v25, 4, v2
buffer_load_dwordx4 v[8:11], v25, {R0}, s69 offen
s_cmp_eq_u32 {sW}, 0
s_cbranch_scc0 {Lw1}
""")
a(f"""
v_lshrrev_b32 v4, 2, v0
v_and_b32 v5, 3, v0
v_and_b32 v6, 1, v5
v_lshlrev_b32 v6, 7, v6
v_lshrrev_b32 v5, 1, v5
v_mul_u32_u24 v5, 3072, v5
s_movk_i32 s3, 6144
v_mad_u32_u24 v4, v4, s3, v6
v_add_u32 v4, v4, v5
s_mul_i32 s64, {sIDX}, {16*6144}
s_lshl_b32 s3, {sXCD}, 8
s_add_u32 s64, s64, s3
buffer_load_dword v24, v4, {R2}, s64 offen
s_cmp_lt_u32 {sIDX}, 16
s_cbranch_scc0 {Lsl}
s_lshl_b32 s68, {sXCD}, 3
s_add_u32 s68, s68, {sIDX}
s_add_u32 s65, s68, 88
s_cmp_lt_u32 {sIDX}, 8
s_cselect_b32 s68, s68, s65
s_cbranch_scc0 {Lnz}
s_lshl_b32 s3, s68, 7
s_mov_b64 exec, 0xff
buffer_store_dwordx4 v[36:39], v3, {WS}, s3 offen sc1
s_mov_b64 exec, -1
{Lnz}:
""")
a(f"buffer_load_dwordx4 v[32:35], v3, {R0}, 0 offen\ns_lshl_b32 s66, s68, 5\ns_movk_i32 s3, 6144\nv_mad_u32_u24 v6, v16, s3, v18")
for n in range(16):
    a(f"s_mov_b32 m0, {L_G0 + n*1024}\nbuffer_load_dwordx4 v6, {R2}, s66 offen lds")
    if n < 15: a("s_add_u32 s66, s66, 196608")
a("s_waitcnt vmcnt(16)")
if "ms" in XP: stamp("m_c")
silu8(32, 32)
a(f"v_add_u32 v6, {L_SILU}, v3\nds_write_b128 v6, v[32:35]\nv_lshlrev_b32 v5, 4, v2\nv_add_u32 v6, {L_SILU}, v5")
a("s_waitcnt vmcnt(0) lgkmcnt(0)")
if "ms" in XP: stamp("m_dma")
gemv_chain(L_G0, 17, 6)
round_bf16([32, 33, 34, 35])
Lno1 = a.label("no1")
a(f"s_lshr_b32 s65, s68, 5\ns_bitcmp1_b32 0x12, s65\ns_cbranch_scc0 {Lno1}")
for i in range(4): a(f"v_add_f32 v{32+i}, 1.0, v{32+i}")
round_bf16([32, 33, 34, 35])
a(f"""
{Lno1}:
s_lshl_b32 s3, s68, 6
s_add_u32 s3, s3, {WS_MOD}
s_mov_b32 exec_lo, 0x00010001
s_mov_b32 exec_hi, 0x00010001
s_add_u32 s65, {sEP}, 1
s_and_b32 s65, s65, 0xffff
v_or_b32 v36, s65, v32
v_or_b32 v37, s65, v33
v_or_b32 v38, s65, v34
v_or_b32 v39, s65, v35
s_add_u32 s65, s3, {WS_MODT - WS_MOD}
buffer_store_dwordx4 v[36:39], v5, {WS}, s65 offen sc1
buffer_store_dwordx4 v[32:35], v5, {WS}, s3 offen sc1
s_mov_b64 exec, -1
""")
if "ms" in XP: stamp("m_pub")
a(f"""
v_add_u32 v6, s69, v6
ds_read_b128 v[8:11], v6
s_branch {Lxw}
{Lw1}:
s_lshl_b32 s66, {sCB}, 7
""")
srd(R0, P_WQ, 512 * 1024, "s66")
a(f"""
v_lshlrev_b32 v4, 7, v0
s_cmp_eq_u32 {sW}, 2
s_cbranch_scc1 {Lw2}
s_cmp_eq_u32 {sW}, 3
s_cbranch_scc1 {Lxi}
s_lshl_b32 s3, {sCB}, 13
buffer_load_dword v24, v4, {R1}, s3 offen
s_branch {Lxi}
{Lw2}:
s_lshr_b32 s3, {sIDX}, 1
s_lshl_b32 s3, s3, 10
v_and_b32 v4, 0x380, v4
buffer_load_dword v24, v4, {R3}, s3 offen
{Lxi}:
v_lshrrev_b32 v4, 3, v0
v_and_b32 v5, 7, v0
v_xor_b32 v5, v5, v2
v_lshlrev_b32 v5, 4, v5
v_lshl_add_u32 v22, v4, 10, v5
v_xor_b32 v23, 64, v22
v_add_u32 v23, {8192 - 1024}, v23
s_sub_u32 s64, {sW}, 1
s_mul_i32 s64, s64, 11
s_min_u32 s64, s64, 21
s_lshl_b32 s67, s64, 11
s_add_u32 s67, s67, {L_WQ}
""")
for i in range(11):
    a(f"s_lshr_b32 s65, s64, 3\ns_lshl_b32 s65, s65, 14\ns_and_b32 s3, s64, 7\ns_lshl_b32 s3, s3, 7\ns_add_u32 s65, s65, s3\ns_mov_b32 m0, s67\ns_add_u32 s64, s64, 1\ns_add_u32 s67, s67, 2048")
    a(f"buffer_load_dwordx4 v22, {R1}, s65 offen lds\nbuffer_load_dwordx4 v23, {R1}, s65 offen offset:1024 lds")
a(f"v_lshl_add_u32 v21, v16, 5, v18\ns_sub_u32 s64, {sW}, 1\ns_mul_i32 s64, s64, 5120\ns_add_u32 s67, s64, {L_WKV}")
for i in range(6): a(f"s_mov_b32 m0, s67\ns_add_u32 s67, s67, 1024\nbuffer_load_dwordx4 v21, {R3}, s64 offen lds\ns_add_u32 s64, s64, 1024")
a(f"""
s_cmp_eq_u32 {sW}, 3
s_cbranch_scc1 {Lw3}
s_and_b32 s3, {sRB}, 3
s_lshl_b32 s3, s3, 1
s_add_u32 s3, s3, {sW}
s_sub_u32 s3, s3, 1
s_lshl_b32 s3, s3, 16
v_lshlrev_b32 v4, 10, v0
buffer_load_dword v26, v4, {R0}, s3 offen
s_branch {Lx2}
{Lw3}:
s_mul_i32 s3, s2, 768
s_add_u32 s3, s3, {F_HOP}
s_mov_b32 exec_hi, 0xffff
buffer_store_dwordx4 v[36:39], v3, {WS}, s3 offen sc1
s_mov_b64 exec, -1
{Lx2}:
s_waitcnt vmcnt(29)
{Lsl}:
s_waitcnt vmcnt(31)
""")
a("s_cmp_eq_u32 s48, 0\ns_cbranch_scc0 L_cin\ns_waitcnt vmcnt(1)\nL_cin:")
silu8(8, 8)
a(f"""
s_waitcnt vmcnt(1)
{Lxw}:
s_lshl_b32 s67, {sW}, 14
s_add_u32 s67, s67, {L_WQ}
s_barrier
""")
stamp("xin")
a(f"""
v_lshrrev_b32 v4, 1, v1
v_xor_b32 v4, v4, v2
v_lshlrev_b32 v4, 4, v4
v_lshl_add_u32 v4, v1, 7, v4
v_add_u32 v4, s67, v4
v_xor_b32 v5, 64, v4
s_waitcnt lgkmcnt(0)
s_add_u32 {sEP}, {sEP}, 1
s_and_b32 {sTAG}, {sEP}, 0xffff
""")
for T in range(16): a(f"ds_read_b128 {vr(64+4*T,4)}, v{4 + (T & 1)} offset:{(T >> 1)*2048}")
a(f"s_lshl_b32 s66, {sCB}, 7")
srd(R0, P_WQ, 512 * 1024, "s66")
a(f"""
v_lshrrev_b32 v4, 3, v0
v_bfe_u32 v5, v0, 1, 2
v_bfe_u32 v6, v4, 1, 1
v_xor_b32 v5, v5, v6
v_lshlrev_b32 v5, 5, v5
v_lshl_add_u32 v5, v4, 10, v5
v_add_u32 v19, v5, v18
v_xor_b32 v20, 64, v19
""")
a(f"s_lshl_b32 s66, {sW}, 17")
def stage(k):
    for n in range(4): a(f"s_mov_b32 m0, s67\ns_add_u32 s67, s67, 1024\nbuffer_load_dwordx4 v{19 + (n & 1)}, {R0}, s66 offen lds\ns_add_u32 s66, s66, 8192")
for i in range(64):
    if i % 4 == 0: a(f"s_waitcnt lgkmcnt({15 - i // 4})")
    a(f"v_lshlrev_b32 v{128+2*i}, 16, v{64+i}\nv_and_b32 v{129+2*i}, 0xffff0000, v{64+i}")
for k in range(4): a(f"v_pk_add_f32 {vr(32+2*k,2)}, {vr(128+4*k,2)}, {vr(130+4*k,2)}")
for k in range(4): a(f"v_pk_mul_f32 {vr(40+2*k,2)}, {vr(128+2*k,2)}, {vr(128+2*k,2)}")
for i in range(4, 64):
    if i >= 8: a(f"v_pk_add_f32 {vr(32+2*(i%4),2)}, {vr(32+2*(i%4),2)}, {vr(128+2*i,2)}")
    a(f"v_pk_fma_f32 {vr(40+2*(i%4),2)}, {vr(128+2*i,2)}, {vr(128+2*i,2)}, {vr(40+2*(i%4),2)}")
    if i % 16 == 7: stage(i // 16)
for b in (32, 40):
    a(f"v_pk_add_f32 {vr(b,2)}, {vr(b,2)}, {vr(b+2,2)}\nv_pk_add_f32 {vr(b+4,2)}, {vr(b+4,2)}, {vr(b+6,2)}\nv_pk_add_f32 {vr(b,2)}, {vr(b,2)}, {vr(b+4,2)}\nv_add_f32 v{b}, v{b}, v{b+1}")
xgroup_sum2(32, 33, 40, 41)
finish_stats([(32, 40, 34, 36, None)], 512)
a("v_mul_f32 v34, v34, v36")
for i in range(64): a(f"v_pk_fma_f32 {vr(128+2*i,2)}, {vr(128+2*i,2)}, v[36:37], v[34:35] op_sel_hi:[1,0,0]")
Lna = a.label("nkvf")
a(f"s_cmp_eq_u32 {sW}, {sKVW}\ns_cbranch_scc0 {Lna}\nv_add_u32 v7, {L_WKV}, v17")
for T in range(16): a(f"ds_read_b64_tr_b16 {ar(4*T,2)}, v7 offset:{T*1024}\nds_read_b64_tr_b16 {ar(4*T+2,2)}, v7 offset:{T*1024+256}")
a(f"{Lna}:")
stamp("ln1")
def tagcheck(regs):
    out = [f"v_xor_b32 v{r}, {sTAG}, v{r}" for r in regs]
    out.append(f"v_or3_b32 v4, v{regs[0]}, v{regs[1]}, v{regs[2]}")
    for i in range(3, len(regs) - 1, 2): out.append(f"v_or3_b32 v4, v4, v{regs[i]}, v{regs[i+1]}")
    out.append(f"v_or_b32 v4, v4, v{regs[-1]}\nv_and_b32 v4, 0xffff, v4\nv_cmp_ne_u32 vcc, 0, v4")
    return "\n".join(out)
a(f"s_lshl_b32 s64, {sW}, 10\ns_add_u32 s65, s64, {L_PAR}\ns_add_u32 s64, s64, {WS_MODT}\nv_add_u32 v5, s65, v3")
poll(f"buffer_load_dwordx4 v[32:35], v3, {WS}, s64 offen sc1", tagcheck([32, 33, 34, 35]), "-1")
a("ds_write_b128 v5, v[32:35]\ns_waitcnt lgkmcnt(0)\ns_barrier")
stamp("barP")
a(f"s_sub_u32 s69, {sW}, {sKVW}")
LV, Lh, Lnkv, LV2, Lst, Lkve = (a.label(x) for x in ("isV", "hdone", "nokv", "isV2", "kvst", "kve"))
a(f"v_lshlrev_b32 v19, 5, v2\nv_add_u32 v19, {L_PAR}, v19\ns_bitcmp1_b32 {sCB}, 0\ns_cbranch_scc1 {LV}")
def hpass(isV):
    def rd(T):
        b = 32 + (T & 1) * 16
        for k, off in enumerate((2048, 2064, 0, 16)): a(f"ds_read_b128 {vr(b+4*k,4)}, v19 offset:{off + T*128}")
    def kv(T):
        A, B = (vr(64+4*T,4), ar(4*T,4)) if isV else (ar(4*T,4), vr(64+4*T,4))
        a(f"v_mfma_f32_16x16x32_bf16 v[12:15], {A}, {B}, {'0' if T == 0 else 'v[12:15]'}")
    def cp(T):
        b = 32 + (T & 1) * 16
        for k in range(4): a(f"v_pk_fma_f32 {vr(128+8*T+2*k,2)}, {vr(128+8*T+2*k,2)}, {vr(b+2*k,2)}, {vr(b+8+2*k,2)}")
        if T: kv(T - 1)
        for k in range(4): a(f"v_cvt_pk_bf16_f32 v{64+4*T+k}, v{128+8*T+2*k}, v{129+8*T+2*k}")
    pipeline(16, rd, cp, 4)
    kv(15)
hpass(False)
a(f"s_branch {Lh}\n{LV}:")
hpass(True)
a(f"{Lh}:")
if "ms" in XP: stamp("h")
a(f"""
s_cmp_eq_u32 s69, 0
s_cbranch_scc0 {Lnkv}
s_lshl_b32 s64, {sRB}, 1
s_lshr_b32 s3, {sW}, 1
s_add_u32 s64, s64, s3
s_mul_i32 s64, s64, {REC}
s_add_u32 s64, s64, {WS_KV}
s_and_b32 s65, {sW}, 1
v_lshrrev_b32 v20, 5, v0
v_cvt_pk_bf16_f32 v36, v12, v13
v_cvt_pk_bf16_f32 v37, v14, v15
v_mov_b32 v38, v36
v_mov_b32 v39, v37
v_permlane16_swap_b32 v36, v38
v_permlane16_swap_b32 v37, v39
s_bitcmp1_b32 {sCB}, 0
s_cbranch_scc1 {LV2}
v_lshlrev_b32 v20, 9, v20
v_lshl_add_u32 v20, v1, 4, v20
s_lshl_b32 s65, s65, 8
s_add_u32 s64, s64, s65
s_add_u32 s64, s64, 1088
s_mov_b32 exec_lo, 0x0000ffff
s_mov_b32 exec_hi, 0x0000ffff
s_branch {Lst}
{LV2}:
v_mul_u32_u24 v20, 272, v20
v_and_b32 v4, 31, v0
v_lshl_add_u32 v20, v4, 4, v20
s_mul_i32 s65, s65, 544
s_add_u32 s64, s64, s65
s_mov_b32 exec_lo, 0xffff0000
s_mov_b32 exec_hi, 0xffff0000
v_mov_b32 v36, 0x3f803f80
v_mov_b32 v37, 0x3f803f80
v_mov_b32 v38, 0x3f803f80
v_mov_b32 v39, 0x3f803f80
s_mov_b32 exec_lo, 0x0001ffff
s_mov_b32 exec_hi, 0x0001ffff
{Lst}:
buffer_store_dwordx4 v[36:39], v20, {WS}, s64 offen sc1
s_mov_b64 exec, -1
{Lnkv}:
s_lshl_b32 s3, {sXCC}, 2
s_lshl_b32 s3, 1, s3
v_mov_b32 v20, s3
s_lshl_b32 s64, {sRB}, 7
v_mov_b32 v21, {OOB}
v_cmp_eq_u32 vcc, 0, v0
v_cndmask_b32 v21, v21, v0, vcc
s_cmp_eq_u32 s69, 0
s_cselect_b64 vcc, -1, 0
""")
def arrive(T, j):
    if (T, j) != (4, 0): return
    L = a.label("arr")
    a(f"s_cbranch_vccz {L}\ns_waitcnt vmcnt(0)\nbuffer_atomic_add v20, v21, {WS}, s64 offen sc1\n{L}:")
    if "ms" in XP: stamp("arr")
def trbase128(dst, rowexpr_v, fexpr_v, lbase):
    a(f"v_and_b32 v6, 3, v1\nv_lshlrev_b32 v6, 3, v6\nv_lshl_add_u32 v6, v{rowexpr_v}, 7, v6\nv_lshl_add_u32 v6, v{fexpr_v}, 5, v6\nv_add_u32 v{dst}, {lbase}, v6")
    for j in range(1, 4): a(f"v_xor_b32 v{dst+j}, {j*32}, v{dst}")
a("v_lshrrev_b32 v4, 2, v1\nv_bfe_u32 v5, v1, 3, 1\nv_and_b32 v7, 1, v2\nv_lshl_or_b32 v5, v7, 1, v5\nv_lshl_add_u32 v4, v2, 3, v4")
trbase128(24, 4, 5, L_WQ)
fragloop(16, 4,
         lambda T, j: a(f"ds_read_b64_tr_b16 {vr(32+(T&1)*16+4*j,2)}, v{24+j} offset:{T*4096}\nds_read_b64_tr_b16 {vr(34+(T&1)*16+4*j,2)}, v{24+j} offset:{T*4096+512}"),
         lambda T, j: a(f"v_mfma_f32_16x16x32_bf16 {vr(128+4*j,4)}, {vr(32+(T&1)*16+4*j,4)}, {vr(64+4*T,4)}, {'0' if T == 0 else vr(128+4*j,4)}"), nper=2, after=arrive)
for i in range(16): a(f"v_mul_f32 v{128+i}, {fbits(0.25*math.log2(math.e))}, v{128+i}")
for i in range(8): a(f"v_cvt_pk_bf16_f32 v{16+i}, v{128+2*i}, v{129+2*i}")
for e in range(2): a(f"v_permlane16_swap_b32 v{16+4*e}, v{18+4*e}\nv_permlane16_swap_b32 v{17+4*e}, v{19+4*e}")
stamp("q")
a(f"""
v_add_u32 v24, {L_KV + 1088}, v3
v_add_u32 v25, {31*REC}, v24
v_add_u32 v26, {31*REC}, v25
v_lshrrev_b32 v4, 5, v0
v_mul_u32_u24 v4, 272, v4
v_and_b32 v5, 31, v0
v_lshl_add_u32 v4, v5, 4, v4
v_add_u32 v27, {L_KV}, v4
v_mov_b32 v4, 0x40000
v_cmp_lt_u32 vcc, {16 if PADZERO else 99}, v5
v_cndmask_b32 v27, v27, v4, vcc
v_add_u32 v28, {31*REC}, v27
v_add_u32 v29, {31*REC}, v28
v_mov_b32 v30, 0xdddd
v_lshrrev_b32 v7, 3, v0
v_and_b32 v6, 7, v0
v_xor_b32 v5, v6, v2
v_lshlrev_b32 v5, 4, v5
v_lshl_add_u32 v168, v7, 12, v5
v_xor_b32 v169, 64, v168
v_add_u32 v169, {0x8000 - 1024}, v169
v_lshrrev_b32 v4, 1, v1
v_xor_b32 v4, v4, v2
v_lshlrev_b32 v4, 4, v4
v_lshl_add_u32 v4, v1, 7, v4
s_mul_i32 s77, {sW}, 12288
v_add_u32 v170, s77, v4
v_xor_b32 v171, 64, v170
v_lshlrev_b32 v4, 10, v1
v_lshl_add_u32 v172, v2, 3, v4
v_mov_b32 v31, {OOB}
v_lshlrev_b32 v4, 7, v6
v_lshl_add_u32 v173, v7, 12, v4
v_lshlrev_b32 v4, 7, v0
v_cmp_gt_u32 vcc, 56, v0
v_cndmask_b32 v174, v31, v4, vcc
v_cmp_gt_u32 vcc, 14, v0
v_cndmask_b32 v175, v31, v4, vcc
v_cmp_gt_u32 vcc, 32, v0
v_cndmask_b32 v196, v31, v4, vcc
v_cmp_gt_u32 vcc, 33, v0
v_cndmask_b32 v197, v31, v4, vcc
v_cmp_eq_u32 vcc, 0, v0
v_cndmask_b32 v198, v31, v4, vcc
v_mov_b32 v199, 1
""")
for i in range(32): a(f"v_mov_b32 v{80+i}, 0")
Lr2, Lr3, Lre, Lrm, Lrr = (a.label(x) for x in ("r2", "r3", "re", "rm", "rr"))
a(f"""
v_lshlrev_b32 v6, 4, v6
v_lshrrev_b32 v4, 2, v1
v_and_b32 v5, 3, v1
v_lshlrev_b32 v5, 3, v5
s_lshl_b32 s68, {sW}, 12
v_add_u32 v5, s68, v5
s_cmp_eq_u32 {sW}, 2
s_cbranch_scc1 {Lr2}
s_cmp_eq_u32 {sW}, 3
s_cbranch_scc1 {Lr3}
s_and_b32 s64, {sRB}, 15
s_mul_i32 s64, s64, 114688
s_lshr_b32 s3, {sRB}, 4
s_mul_i32 s3, s3, 1792
s_add_u32 s64, s64, s3
s_mul_i32 s3, {sCB}, 224
s_add_u32 s64, s64, s3
s_lshl_b32 s3, {sW}, 7
s_add_u32 s64, s64, s3
""")
srd(R2, P_WIN, 512 * 3584, "s64")
a(f"""
s_movk_i32 s3, 3584
v_mad_u32_u24 v176, v7, s3, v6
s_movk_i32 s20, {8*3584}
s_mov_b32 s21, {16*3584}
s_mov_b32 s22, {24*3584}
v_lshl_add_u32 v4, v2, 2, v4
v_lshl_add_u32 v177, v4, 7, v5
v_add_u32 v178, 2048, v177
s_lshl_b32 s36, {sCB}, 5
s_add_u32 s36, s36, {sRB}
s_mul_i32 s36, s36, {SLOT}
s_lshl_b32 s3, {sW}, 12
s_add_u32 s36, s36, s3
s_add_u32 s36, s36, {WS_WINF}
s_mov_b32 s24, s36
s_cmp_eq_u32 {sW}, 0
s_cselect_b32 s37, s36, {WS_SIZE}
s_branch {Lre}
{Lr2}:
s_min_u32 s67, {sRB}, 27
s_mul_i32 s64, s67, 37
s_lshr_b32 s64, s64, 8
s_mul_i32 s3, s64, 7
s_sub_u32 s65, s67, s3
s_mul_i32 s64, s64, 224
s_lshl_b32 s3, s65, 5
s_add_u32 s66, s3, 16
s_cmp_lt_u32 s65, 3
s_cselect_b32 s3, s3, s66
s_cmp_eq_u32 s65, 6
s_cselect_b32 s3, 96, s3
s_cselect_b32 s21, 112, 16
s_lshl_b32 s21, s21, 10
s_add_u32 s22, s21, 8192
s_movk_i32 s20, 8192
s_add_u32 s64, s64, s3
s_lshl_b32 s64, s64, 10
s_lshl_b32 s3, {sCB}, 7
s_add_u32 s64, s64, s3
""")
srd(R2, P_WOUT, 896 * 1024, "s64")
a(f"""
v_lshl_add_u32 v176, v7, 10, v6
s_mul_i32 s36, {sCB}, 28
s_add_u32 s36, s36, s67
s_lshl_b32 s36, s36, 12
s_add_u32 s36, s36, {WS_WOUTF}
s_cmp_lt_u32 {sRB}, 28
s_cselect_b32 s36, s36, {WS_SIZE}
s_mov_b32 s37, s36
s_mov_b32 s24, s36
s_cmp_eq_u32 s65, 6
s_cbranch_scc1 {Lrm}
v_lshl_add_u32 v4, v2, 2, v4
v_lshl_add_u32 v177, v4, 7, v5
v_add_u32 v178, 2048, v177
s_branch {Lre}
{Lrm}:
v_lshl_add_u32 v4, v2, 3, v4
v_lshl_add_u32 v177, v4, 7, v5
v_add_u32 v178, 512, v177
s_branch {Lre}
{Lr3}:
s_lshr_b32 s67, {sRB}, 1
s_lshl_b32 s64, s67, 15
s_lshl_b32 s3, {sCB}, 7
s_add_u32 s64, s64, s3
""")
srd(R2, P_WO, 512 * 1024, "s64")
a(f"""
v_lshl_add_u32 v176, v7, 10, v6
s_movk_i32 s20, 8192
s_movk_i32 s21, 16384
s_movk_i32 s22, 24576
v_and_b32 v6, 1, v2
v_lshl_add_u32 v4, v6, 4, v4
v_lshrrev_b32 v6, 1, v2
v_lshl_add_u32 v4, v6, 2, v4
v_lshl_add_u32 v177, v4, 7, v5
v_add_u32 v178, 1024, v177
s_lshl_b32 s36, {sCB}, 4
s_add_u32 s36, s36, s67
s_lshl_b32 s36, s36, 12
s_add_u32 s36, s36, {WS_WOF}
s_bitcmp1_b32 {sRB}, 0
s_cselect_b32 s37, s36, {WS_SIZE}
s_cselect_b32 s36, {WS_SIZE}, s36
s_mov_b32 s24, s37
{Lre}:
""")
a(f"""
s_and_b32 s64, s2, 15
s_mul_i32 s64, s64, {32*6144}
s_lshr_b32 s65, s2, 4
s_lshl_b32 s3, s65, 7
s_add_u32 s64, s64, s3
s_lshl_b32 s3, {sW}, 5
s_add_u32 s64, s64, s3
s_cmp_lt_u32 s65, 8
s_cselect_b32 s3, 0, 2048
s_add_u32 s64, s64, s3
s_add_u32 s64, s64, 2048
""")
srd(R3, P_WMOD, 512 * 6144, "s64")
img32_regs(212, 213)
a(f"""
s_lshl_b32 s34, s65, 8
s_lshl_b32 s3, {sW}, 6
s_add_u32 s34, s34, s3
s_add_u32 s34, s34, {WS_G2}
v_and_b32 v4, 1, v0
v_lshlrev_b32 v4, 4, v4
s_movk_i32 s3, 6144
v_mad_u32_u24 v212, v212, s3, v4
s_lshl_b32 s35, {sW}, 10
s_add_u32 s35, s35, {L_G2}
v_add_u32 v213, s35, v213
v_lshlrev_b32 v4, 2, v0
v_cmp_gt_u32 vcc, 16, v0
v_cndmask_b32 v214, v31, v4, vcc
v_cmp_gt_u32 vcc, 48, v0
v_cndmask_b32 v215, v31, v4, vcc
s_cmp_eq_u32 {sW}, 0
s_cselect_b64 vcc, -1, 0
v_cndmask_b32 v215, v215, v4, vcc
s_lshr_b32 s3, {sRB}, 4
s_mul_i32 s3, s3, 3584
s_mul_i32 s28, {sCB}, 448
s_add_u32 s28, s28, s3
s_lshl_b32 s3, {sW}, 8
s_add_u32 s28, s28, s3
s_add_u32 s28, s28, {WS_C12}
s_cmp_lt_u32 {sW}, 2
s_cselect_b32 s28, s28, {WS_SIZE}
s_add_u32 s29, s28, 7168
v_and_b32 v4, 1, v0
v_lshlrev_b32 v4, 11, v4
v_sub_u32 v4, 2048, v4
v_lshl_add_u32 v4, v2, 4, v4
v_and_b32 v5, 2, v0
v_cmp_eq_u32 vcc, 0, v5
v_cndmask_b32 v216, v31, v4, vcc
s_and_b32 s25, {sRB}, 15
s_lshl_b32 s25, s25, 7
s_add_u32 s25, s25, {WS_MOD + 3*2048}
""")
a(f"s_lshl_b32 s64, {sRB}, 18\ns_lshl_b32 s3, {sW}, 10\ns_add_u32 s64, s64, s3")
srd(R0, P_WSP, 2048 * 4096, "s64")
a(f"s_lshl_b32 s64, {sCB}, 7\ns_add_u32 s64, s64, s55")
srd(R1, P_X, 2048 * 1024, "s64")
for s_ in range(4): a(f"s_add_u32 s3, {sW}, {s_}\ns_and_b32 s3, s3, 3\ns_lshl_b32 s{70+s_}, s3, 16")
a(f"""
s_and_b32 s23, {sRB}, 3
s_lshl_b32 s19, {sCB}, 15
s_lshl_b32 s39, {sCB}, 9
s_mov_b32 s38, {F_P}
s_add_u32 s39, s39, s38
s_lshl_b32 s3, {sW}, 7
s_add_u32 s39, s39, s3
s_lshl_b32 s3, s23, 2
s_add_u32 s3, s3, {sW}
s_mul_i32 s26, s3, {SLOT}
s_mul_i32 s27, s3, {SLOT // 4}
s_mul_i32 s3, {sCB}, {32*SLOT}
s_add_u32 s27, s27, s3
s_add_u32 s27, s27, {WS_WINF + 28*SLOT}
s_add_u32 s0, s26, s3
s_add_u32 s0, s0, {WS_WINF}
s_mul_i32 s3, {sCB}, {28*4096}
s_add_u32 s26, s26, s3
s_add_u32 s26, s26, {WS_WOUTF}
s_lshl_b32 s69, {sCB}, 16
s_add_u32 s69, s69, {WS_WOF}
s_lshl_b32 s64, {sW}, 11
s_add_u32 s65, s64, {L_KV}
s_add_u32 s64, s64, {WS_KV}
s_mul_i32 s66, {sIDX}, {33*128}
s_add_u32 s66, s66, {WS_KV}
s_lshl_b32 s67, {sRB}, 7
s_add_u32 s67, s67, {F_B}
""")
if "ms" in XP: stamp("setup")
a(f"""
s_lshl_b32 s12x, s55, 1
s_lshl_b32 s3, {sCB}, 11
s_add_u32 s16, s12x, s3
s_add_u32 s16, s16, {WS_X}
s_add_u32 s17, s16, 16384
v_lshlrev_b32 v4, 7, v1
v_lshl_add_u32 v4, v2, 14, v4
v_add_u32 v202, s16, v4
s_lshr_b32 s74, s55, 4
s_lshl_b32 s3, {sCB}, 7
s_add_u32 s74, s74, s3
s_add_u32 s74, s74, {WS_ST1}
v_and_b32 v5, 1, v0
v_mul_u32_u24 v5, {WS_ST2 - WS_ST1}, v5
v_add_u32 v5, s74, v5
v_cmp_lt_u32 vcc, 31, v0
v_cndmask_b32 v202, v202, v5, vcc
v_cmp_gt_u32 vcc, 2, v0
v_cndmask_b32 v217, v31, v5, vcc
v_lshlrev_b32 v218, 4, v2
s_lshl_b32 s3, {sCB}, 8
s_add_u32 s18, s3, {WS_G2}
s_add_u32 s2x, s3, {WS_MOD + 4*2048}
""".replace("s12x", "s75").replace("s2x", "s30"))
Lnb = a.label("noB")
a(f"s_cmp_eq_u32 {sW}, {sKVW}\ns_cbranch_scc0 {Lnb}\nv_lshlrev_b32 v5, 7, v0\ns_mov_b32 s1, {F_B}")
poll(f"buffer_load_dword v4, v5, {WS}, s1 offen sc1",
     "v_lshrrev_b32 v6, 4, v4\nv_and_b32 v6, 0x0f0f0f0f, v6\nv_and_b32 v4, 0x0f0f0f0f, v4\nv_add_u32 v4, v4, v6\nv_sad_u8 v4, v4, 0, 0\nv_cmp_gt_u32 vcc, 8, v4",
     "0xffffffff")
a(f"buffer_load_dword v200, v197, {WS}, s66 offen sc1\ns_barrier\ns_branch L_Bdone\n{Lnb}:\ns_waitcnt vmcnt(0) lgkmcnt(0)\ns_barrier\nL_Bdone:")
stamp("barB")
Lne = a.label("noep")
a(f"s_or_b32 s3, s2, {sW}\ns_cbranch_scc1 {Lne}\nv_mov_b32 v4, {sEP}\ns_mov_b32 s3, {WS_EPOCH}\nbuffer_store_dword v4, v198, {WS}, s3 offen sc1\n{Lne}:")
vm.n = 0
def kv_group(i):
    if i < 16:
        return (["s_mov_b32 m0, s65"], [f"buffer_load_dwordx4 v3, {WS}, s64 offen sc1 lds", f"buffer_load_dwordx4 v3, {WS}, s64 offen offset:1024 sc1 lds"],
                f"kvg{i}", ["s_add_u32 s64, s64, 8192", "s_add_u32 s65, s65, 8192"])
    return ([f"s_lshl_b32 s3, {sW}, 10", "s_sub_u32 s64, s64, s3", "s_sub_u32 m0, s65, s3"], [f"buffer_load_dwordx4 v3, {WS}, s64 offen sc1 lds"], "kvg16", [])
def emit_item(x):
    pre, ins, tag, post = x
    for p in pre: a(p)
    for q_ in ins: vm.op(q_, tag)
    for p in post: a(p)
for i in range(2): emit_item(kv_group(i))

def win_items(half, grp, slot0, tag):
    ld = lambda i: f"buffer_load_dwordx4 v3, {WS}, s74 offen offset:{(i & 3)*1024} sc1 lds"
    first = [f"s_lshl_b32 s74, {sCB}, 5", f"s_add_u32 s74, s74, {sW}", f"s_mul_i32 s74, s74, {SLOT}", f"s_add_u32 s74, s74, {WS_WINF + (half*16 + grp*4)*SLOT}"] + slot0
    return [(first + ["s_mov_b32 m0, s75"], [ld(0), ld(1)], tag, []), (["s_mov_b32 m0, s75"], [ld(2), ld(3)], tag, ["s_add_u32 s74, s74, 4096", "s_add_u32 s75, s75, 4096"]),
            (["s_mov_b32 m0, s75"], [ld(4), ld(5)], tag, []), (["s_mov_b32 m0, s75"], [ld(6)], tag, [])]
def lin_slot(base): return [f"s_mul_i32 s75, {sW}, {SLOT}", f"s_add_u32 s75, s75, {base}"]

def kaddr(t): return f"v{24 + t//31} offset:{(t % 31)*REC}"
def vaddr(t, m): return f"v{27 + t//31} offset:{(t % 31)*REC + m*544}"
Kb = lambda t: vr(144 + 4*(t & 1), 4)
Vb = lambda t, m: vr(152 + 8*(t & 1) + 4*m, 4)
Sb = lambda u: 32 + 16*(u % 3)
Q = lambda e: vr(16 + 4*e, 4)
O = lambda e: 80 + 16*e
C = lambda e: 112 + 16*e
vm.wait("kvg0"); a("s_barrier")
stamp("kv0")
if "clk" in XP: a("s_memtime s[96:97]\ns_memrealtime s[98:99]\ns_waitcnt lgkmcnt(0)")
a(f"ds_read_b128 {Kb(0)}, {kaddr(0)}\nds_read_b128 {Kb(1)}, {kaddr(1)}\ns_waitcnt lgkmcnt(1)")
for e in range(2): a(f"v_mfma_f32_32x32x16_bf16 {vr(32+16*e,16)}, {Kb(0)}, {Q(e)}, 0")
def rowmax(S, dst, first):
    for i in range(0, 16, 2):
        if first and i == 0: a(f"v_max_f32 v{dst}, v{S}, v{S+1}")
        else: a(f"v_max3_f32 v{dst}, v{S+i}, v{S+i+1}, v{dst}")
def negbcast(src, e):
    a(f"v_mov_b32 v6, v{src}\nv_permlane32_swap_b32 v{src}, v6\nv_max_f32 v{src}, v{src}, v6\nv_sub_f32 v{C(e)}, 0, v{src}")
    for i in range(1, 16): a(f"v_mov_b32 v{C(e)+i}, v{C(e)}")
for e in range(2): rowmax(32 + 16*e, 4 + e, True)
for e in range(2): negbcast(4 + e, e)
a(f"v_mfma_f32_32x32x16_bf16 {vr(Sb(0),16)}, {Kb(0)}, {Q(0)}, {vr(C(0),16)}")

plan = {}
TP, TR = 19, 28
def put(t, slot, x): plan.setdefault((t, slot), []).append(x)
PREV = {"e1x": ("e0", 0), "o0": ("e1", 0), "e1": ("e0", 0), "eq": ("o1", -1), "oq": ("e1", 0), "e0": ("o1", -1)}
assert True
def vitem(t, slot, x):
    pre, ins, tag, post = x
    ps, dt = PREV[slot]
    pre = [p + " " for p in pre]
    m0 = [p for p in pre if " m0," in p]; rest = [p for p in pre if " m0," not in p]
    if t + dt < 0 or len(pre) > 2:
        pp, dd = PREV[ps] if ps in PREV else ("o0", 0)
        if t + dt + dd < 0: put(t, slot, ("salu", pre))
        else: put(t + dt + dd, pp + "a", ("salu", rest)); put(t + dt, ps + "a", ("salu", m0))
    else: put(t + dt, ps + "a", ("salu", pre))
    put(t, slot, ("vm", ins, tag, m0[0] if m0 else None))
    if post: put(t, slot, ("salu", post))
for i in range(2, 8): vitem((i - 2) // 2, ("e1", "o0")[i & 1], kv_group(i))
for i in range(8, 16): vitem(21 + (i - 8) // 2, ("e1", "o0")[i & 1], kv_group(i))
vitem(25, "e1", kv_group(16))
for n, so in enumerate(("0", "s20", "s21", "s22")):
    vitem(3 + (n >> 1), ("e1", "o0")[n & 1], ([f"s_add_u32 m0, s68, {n*1024}"], [f"buffer_load_dwordx4 v176, {R2}, {so} offen lds"], "praw", []))
put(1, "eq", ("vm", [f"buffer_load_dword v253, v198, {WS}, s67 offen sc1"], None))
for n in range(2):
    put(1 + n, "oq", ("vm", [f"buffer_store_dwordx4 v[16:19], v3, {WS}, s{16+n} offen offset:{i*1024} sc1" for i in range(2)], None))
put(0, "eq", ("vm", [f"buffer_store_dword v16, v217, {WS}, 0 offen sc1"], None))
put(46, "e1", ("vm", [f"buffer_load_dword v200, v202, {WS}, 0 offen"], None))
for j in range(8): put(49 + j, "oq", ("vm", [f"buffer_load_dwordx4 {vr(220+4*j,4)}, v218, {WS}, s{18 if j < 4 else 30} offen offset:{(j & 3)*64} sc1"], None))
put(5, "o0", ("vm", [f"buffer_load_dword v200, v173, {R0}, s19 offen"], None))
put(3, "eq", ("vm", [f"buffer_load_dword v200, v198, {WS}, {sGRP} offen sc1"], None))
vitem(5, "e1x", (["s_mov_b32 m0, s35"], [f"buffer_load_dwordx4 v212, {R3}, 0 offen lds"], "praw", []))
put(2, "eq", ("vm", [f"buffer_load_dwordx4 v[204:207], v216, {WS}, s25 offen sc1"], None))
put(0, "oq", ("vm", [f"buffer_load_dwordx4 v[208:211], v216, {WS}, s25 offen offset:64 sc1"], None))
put(TP - 1, "o1b", ("wait", "praw"))
put(TP - 1, "o1x", ("ds", ["ds_read_b64_tr_b16 v[220:221], v213", "ds_read_b64_tr_b16 v[222:223], v213 offset:256"]))
put(TP, "e0", ("salu", [f"v_cvt_pk_bf16_f32 v{204+i}, v{204+2*i}, v{205+2*i}" for i in range(4)]))
put(TP, "o0", ("salu", ["v_mfma_f32_16x16x32_bf16 v[224:227], v[8:11], v[220:223], 0"]))
put(TP + 2, "e0", ("salu", [f"v_mfma_f32_16x16x32_bf16 {vr(228+4*j,4)}, v[204:207], {vr(180+4*j,4)}, 0" for j in range(4)]))
put(TP + 3, "e0", ("salu", ["s_mov_b32 exec_lo, 0xffff0000", "s_mov_b32 exec_hi, 0", "v_mov_b32 v228, v232", "v_mov_b32 v229, v233",
                            "s_mov_b32 exec_lo, 0", "s_mov_b32 exec_hi, 0x0000ffff", "v_mov_b32 v228, v236", "v_mov_b32 v229, v237",
                            "s_mov_b32 exec_hi, 0xffff0000", "v_mov_b32 v228, v240", "v_mov_b32 v229, v241", "s_mov_b64 exec, -1"]))
put(25, "o0", ("vm", [f"buffer_atomic_add_f32 v228, v215, {WS}, s28 offen", f"buffer_atomic_add_f32 v229, v215, {WS}, s29 offen"], None))
put(25, "oq", ("vm", [f"buffer_atomic_add_f32 v224, v214, {WS}, s34 offen"], None))
for j in range(4):
    put(TP + (j >> 1), ("eq", "oq")[j & 1], ("ds", [f"ds_read_b64_tr_b16 {vr(180+4*j,2)}, v177 offset:{j*32}", f"ds_read_b64_tr_b16 {vr(182+4*j,2)}, v178 offset:{j*32}"]))
put(26, "e1", ("vm", [f"buffer_store_dwordx4 {vr(180+4*j,4)}, v3, {WS}, s36 offen offset:{j*1024} sc1" for j in (0, 1)], None))
put(26, "o0", ("vm", [f"buffer_store_dwordx4 {vr(188,4)}, v3, {WS}, s24 offen offset:2048 sc1", f"buffer_store_dwordx4 {vr(192,4)}, v3, {WS}, s37 offen offset:3072 sc1"], "pst"))
put(TR + 2, "oq", ("vm", [f"buffer_atomic_add v199, v198, {WS}, s39 offen sc1"], None))
put(40, "oq", ("vm", [f"buffer_load_dword v201, v196, {WS}, s38 offen sc1"], "pchk"))
for k in range(36):
    t, hf = TR + (k >> 1), k & 1
    if k < 32:
        T2, s_ = k >> 2, k & 3
        if s_ == 0: pass
        vitem(t, ("e1", "o0")[hf], ([f"s_add_u32 s75, s{70+s_}, {T2*128}", f"s_add_u32 m0, s77, {(k % 6)*2048}"],
                                    [f"buffer_load_dwordx4 v168, {R0}, s75 offen lds", f"buffer_load_dwordx4 v169, {R0}, s75 offen offset:1024 lds"], f"ring{k}", []))
    if k >= 4:
        T2, s_ = (k - 4) >> 2, (k - 4) & 3
        if hf == 0: put(t - 1, "o1b", ("wait", f"ring{k-3}"))
        for e_ in range(2): put(t, (("eq", "e0"), ("oq", "o1x"))[hf][e_], ("ds", [f"ds_read_b128 {ar(((2*T2+e_)*4+s_)*4,4)}, v{170+e_} offset:{((k-4) % 6)*2048}"]))
for grp, t0 in ((0, 44), (1, 56), (2, 60)):
    for n, x in enumerate(win_items(1, grp, lin_slot(slotA(4*grp)), f"z2g{grp}")): vitem(t0 + n, "o0", x)
for n in range(8):
    pre = [f"s_lshl_b32 s76, {sW}, 12", "s_add_u32 s74, s76, s69"] if n == 0 else []
    post = ["s_add_u32 s74, s74, 16384", "s_add_u32 s76, s76, 16384"] if n & 1 else []
    vitem(48 + n, "o0", (pre + ["s_mov_b32 m0, s76"], [f"buffer_load_dwordx4 v3, {WS}, s74 offen offset:{(2*(n & 1) + i)*1024} sc1 lds" for i in range(2)], "wo", post))
for n in range(2): put(58 + n, "eq", ("vm", [f"buffer_load_dwordx2 {vr(8+2*j,2)}, v172, {R1}, 0 offen offset:{j*32}" for j in (2*n, 2*n + 1)], None))
if "noextra" in XP: raise SystemExit("noextra unsupported")
syncs = {3: "kvg1", 7: "kvg7", 29: "kvg16", 35: None, 48: None, 60: "wo"}
last_m0 = [None]
def slot(t, k):
    for x in plan.pop((t, k), []):
        if x[0] == "salu":
            for p in x[1]:
                a(p)
                if " m0," in p: last_m0[0] = p
        elif x[0] == "vm":
            if len(x) > 3 and x[3] is not None and x[3] is not last_m0[0]:
                a(x[3]); last_m0[0] = x[3]
            for q_ in x[1]: vm.op(q_, x[2])
        elif x[0] == "ds":
            for q_ in x[1]: a(q_)
        else: vm.wait(x[1])
for u in range(128):
    t, e = u >> 1, u & 1
    S = Sb(u)
    ex = [f"v_exp_f32 v{S+i}, v{S+i}" for i in range(16)]
    pf = "eo"[e]
    if u + 1 < 128:
        t1, e1 = (u + 1) >> 1, (u + 1) & 1
        a(f"v_mfma_f32_32x32x16_bf16 {vr(Sb(u+1),16)}, {Kb(t1)}, {Q(e1)}, {vr(C(e1),16)}")
    a("s_waitcnt lgkmcnt(0)")
    if e == 1 and t + 2 in syncs:
        if syncs[t + 2]: vm.wait(syncs[t + 2])
        a("s_barrier")
    if "tst" in XP and e == 0 and t in (2, 4, 8, 11, 14, 17, 20, 23, 26, 28, 30, 34, 38, 42, 46, 50, 54, 58, 61): stamp(f"t{t}")
    if u == 86:
        vm.wait("pchk")
        a("v_cmp_gt_u32 vcc, 32, v201\ns_nop 1\ns_cmp_lg_u32 vcc_lo, 0\ns_cbranch_scc1 L_pwait\nL_pok:")
    slot(t, pf + "q")
    for x in ex[0:3]: a(x)
    Sp, tp, ep = Sb(u - 1), (u - 1) >> 1, (u - 1) & 1
    if u > 0: a(f"v_smfmac_f32_32x32x32_bf16 {vr(O(ep),16)}, {Vb(tp,0)}, {vr(Sp,8)}, v30")
    slot(t, pf + "0b")
    if e == 0:
        slot(t, "e0a"); a(f"ds_read_b128 {Vb(t,0)}, {vaddr(t,0)}"); slot(t, "e0")
    else:
        slot(t, "o0"); slot(t, "o0a")
    for x in ex[3:7]: a(x)
    if u > 0: a(f"v_smfmac_f32_32x32x32_bf16 {vr(O(ep),16)}, {Vb(tp,1)}, {vr(Sp+8,8)}, v30")
    slot(t, pf + "1b")
    if e == 0:
        slot(t, "e1"); slot(t, "e1x"); slot(t, "e1a"); a(f"ds_read_b128 {Vb(t,1)}, {vaddr(t,1)}")
    else:
        slot(t, "o1a")
        if t + 2 < 64: a(f"ds_read_b128 {Kb(t+2)}, {kaddr(t+2)}")
        slot(t, "o1x")
    for x in ex[7:16]: a(x)
assert not plan, plan.keys()
for m in range(2): a(f"v_smfmac_f32_32x32x32_bf16 {vr(O(1),16)}, {Vb(63,m)}, {vr(Sb(127)+8*m,8)}, v30")
if "clk" in XP: a("s_memtime s[100:101]\ns_memrealtime s[78:79]\ns_waitcnt lgkmcnt(0)\ns_sub_u32 s100, s100, s96\ns_sub_u32 s101, s78, s98")
stamp("attn")
Lfb, Lok = a.label("fb"), a.label("ok")
def getl():
    for e in range(2): a(f"v_mov_b32 v{4+2*e}, v{O(e)+8}\nv_mov_b32 v{5+2*e}, v{O(e)+8}")
    for e in range(2): a(f"v_permlane32_swap_b32 v{4+2*e}, v{5+2*e}")
a(f"""
s_lshl_b32 s3, {sXCC}, 2
s_lshl_b32 s3, 8, s3
v_readfirstlane_b32 s64, v253
s_lshl_b32 s65, {sCB}, 2
v_add_u32 v254, s65, v198
v_lshlrev_b32 v255, 2, v0
s_cmp_eq_u32 s64, s3
s_cselect_b32 {sFAST}, {0 if FORCE_SLOW else 1}, 0
v_mov_b32 v32, {fbits(2.0**40 if not FORCE_FB else -1.0)}
""")
if "probe" in XP:
    a(f"s_cmp_eq_u32 {sFAST}, 0\ns_cbranch_scc0 L_pr\ns_mov_b32 s3, 12\nL_pr0:\ns_sleep 127\ns_sub_u32 s3, s3, 1\ns_cmp_lg_u32 s3, 0\ns_cbranch_scc1 L_pr0\nL_pr:")
getl()
a(f"v_add_f32 v5, v4, v6\nv_cmp_nlt_f32 vcc, v5, v32\ns_cbranch_vccnz {Lfb}\n{Lok}:")
for e in range(2): a(f"v_rcp_f32 v{4+2*e}, v{4+2*e}")
for e in range(2):
    for i in range(4): a(f"v_pk_mul_f32 {vr(O(e)+2*i,2)}, {vr(O(e)+2*i,2)}, {vr(4+2*e,2)} op_sel_hi:[1,0]")
for e in range(2):
    for i in range(4): a(f"v_cvt_pk_bf16_f32 v{32+4*e+i}, v{O(e)+2*i}, v{O(e)+2*i+1}")
both_data(lambda sc: [vm.op(f"buffer_store_dwordx4 {vr(32+4*e,4)}, v3, {WS}, s16 offen offset:{e*1024}{sc}") for e in range(2)])
rd3 = lambda T, j: a(f"ds_read_b128 {vr(144+(T&1)*16+4*j,4)}, v3 offset:{L_WO + T*4096 + j*1024}")
for j in range(4): rd3(0, j)
hop_signal(1)
stamp("opub")
round_bf16(list(range(220, 236)))
for i in range(8): a(f"v_lshlrev_b32 v{32+2*i}, 16, v{8+i}\nv_and_b32 v{33+2*i}, 0xffff0000, v{8+i}")
a(f"""
v_mov_b32 v31, v218
s_lshl_b32 s64, s55, 1
s_add_u32 s64, s64, {WS_X}
s_lshr_b32 s68, s55, 4
s_lshl_b32 s3, {sCB}, 7
s_add_u32 s69, s68, s3
s_add_u32 s67, s69, {WS_ST1}
v_lshlrev_b32 v6, 3, v1
""")
hop_wait(1)
stamp("C")
def frag_load(T, tag):
    vm.op(f"buffer_load_dwordx4 {vr(64+4*T,4)}, v3, {WS}, s64 offen offset:{(T & 3)*1024} sc1", f"{tag}{T}")
    if T & 3 == 3: a("s_add_u32 s64, s64, 4096")
AH = 8
for T in range(AH): frag_load(T, "o")
fragloop(16, 4, rd3,
         lambda T, j: a(f"v_mfma_f32_16x16x32_bf16 {vr(128+4*j,4)}, {vr(144+(T&1)*16+4*j,4)}, {vr(64+4*T,4)}, {'0' if T == 0 else vr(128+4*j,4)}"),
         before=lambda T: vm.wait(f"o{T}"), after=lambda T, j: frag_load(T + AH, "o") if j == 0 and T + AH < 16 else None, preissued=True)
stamp("p3mm")
for i in range(8): a(f"v_pk_fma_f32 {vr(32+2*i,2)}, {vr(128+2*i,2)}, {vr(220+2*i,2)}, {vr(32+2*i,2)}")
for i in range(8): a(f"v_cvt_pk_bf16_f32 v{8+i}, v{32+2*i}, v{33+2*i}")
for i in range(8): a(f"v_lshlrev_b32 v{32+2*i}, 16, v{8+i}\nv_and_b32 v{33+2*i}, 0xffff0000, v{8+i}")
for i in range(8): a(f"v_pk_mul_f32 {vr(236+2*i,2)}, {vr(236+2*i,2)}, {vr(32+2*i,2)}")
for i in range(8): a(f"v_cvt_pk_bf16_f32 v{80+i}, v{236+2*i}, v{237+2*i}")
both_data(lambda sc: [vm.op(f"buffer_store_dwordx4 {vr(80+4*p,4)}, v3, {WS}, s17 offen offset:{p*1024}{sc}") for p in range(2)])
a("v_pk_mul_f32 v[88:89], v[32:33], v[32:33]\nv_pk_add_f32 v[90:91], v[32:33], v[34:35]\nv_pk_mul_f32 v[94:95], v[34:35], v[34:35]\nv_pk_add_f32 v[96:97], v[36:37], v[38:39]")
for i in range(2, 8): a(f"v_pk_fma_f32 {vr(88 + 6*(i & 1),2)}, {vr(32+2*i,2)}, {vr(32+2*i,2)}, {vr(88 + 6*(i & 1),2)}")
for i in range(4, 8): a(f"v_pk_add_f32 {vr(90 + 6*(i & 1),2)}, {vr(90 + 6*(i & 1),2)}, {vr(32+2*i,2)}")
a("v_pk_add_f32 v[88:89], v[88:89], v[94:95]\nv_pk_add_f32 v[90:91], v[90:91], v[96:97]\nv_add_f32 v93, v88, v89\nv_add_f32 v92, v90, v91")
xgroup_sum2(92, 94, 93, 95)
a("s_mov_b64 exec, 0xffff")
both_data(lambda sc: vm.op(f"buffer_store_dwordx2 v[92:93], v6, {WS}, s67 offen{sc}"))
a(f"""
s_mov_b64 exec, -1
v_add_u32 v25, 0xe000, v3
v_add_u32 v26, 0xe000, v25
v_and_b32 v4, 7, v1
v_lshlrev_b32 v4, 7, v4
v_lshl_add_u32 v30, v2, 5, v4
v_lshlrev_b32 v4, 8, v2
v_lshl_add_u32 v27, v1, 3, v4
""")
stamp("p3ep")
hop_signal(2)
stamp("ypub")
WB = (32, 204)
def rdl(dst, addr):
    w_, off = divmod(addr, 0xe000)
    a(f"ds_read_b128 {vr(dst,4)}, v{(3, 25, 26)[w_]} offset:{off}")
a(f"""
s_barrier
s_and_b32 s3, {sW}, 1
s_mul_i32 s66, s3, 3584
s_lshl_b32 s3, s3, 10
s_add_u32 m0, s3, {L_SM}
s_mul_i32 s3, {sCB}, 448
s_add_u32 s66, s66, s3
s_add_u32 s66, s66, {WS_C12}
v_add_u32 v6, {7168 - 448}, v3
v_cmp_gt_u32 vcc, 28, v0
v_cndmask_b32 v6, v6, v3, vcc
""")
vm.op(f"buffer_load_dwordx4 v6, {WS}, s66 offen sc1 lds")
for x in win_items(1, 3, [f"s_mul_i32 s75, {sW}, {SLOT}", f"s_sub_u32 s75, s75, {SLOT}", f"s_cmp_eq_u32 {sW}, 0", f"s_cselect_b32 s75, {slotA(12)}, s75"], "z2g3"): emit_item(x)
for j in range(7): rdl(WB[0] + 4*j, slot_z2(0) + j*1024)
a(f"v_add_u32 v29, {L_SM}, v31\nv_lshlrev_b32 v24, 2, v1\nv_add_u32 v24, {L_SM + 1024}, v24\ns_add_u32 s66, s68, {WS_ST1}")
hop_wait(2)
stamp("D")
vm.op(f"buffer_load_dwordx2 v[172:173], v27, {WS}, s66 offen sc1")
vm.op(f"buffer_load_dwordx2 v[174:175], v27, {WS}, s66 offen offset:128 sc1", "st1")
for T in range(AH): frag_load(T, "y")
a(f"v_lshlrev_b32 v4, 7, v0\nv_mov_b32 v27, {OOB}\nv_cmp_gt_u32 vcc, 14, v0\nv_cndmask_b32 v27, v27, v4, vcc")
vm.wait("st1")
a("v_pk_add_f32 v[172:173], v[172:173], v[174:175]")
xgroup_sum2(172, 174, 173, 175)
finish_stats([(172, 173, 62, 28, None)], 512)
a(f"v_mul_f32 v62, v62, v28\nv_mov_b32 v60, {fbits(-2*math.log2(math.e)*math.sqrt(2/math.pi))}\nv_mov_b32 v61, v60")
for i in range(4): a(f"ds_bpermute_b32 v{20+i}, v31, v28 offset:{4*i}\nds_bpermute_b32 v{16+i}, v31, v62 offset:{4*i}")
CP = [232, 234, 236, 238, 240, 242, 244]
z1items = {g_: win_items(0, g_, lin_slot(slotB(3) if g_ == 0 else slotA(4*(g_ - 1))), f"z1g{g_}") for g_ in range(4)}
def bef(T):
    if T == 11: a("s_waitcnt lgkmcnt(0)\ns_barrier")
    vm.wait(f"y{T}")
def aft(T, j):
    if j == 0 and T + AH < 16: frag_load(T + AH, "y")
    if j == 5 and T in (9, 11, 13, 15):
        vm.op(f"buffer_load_dword v252, v27, {WS}, s26 offen sc1"); a("s_add_u32 s26, s26, 1792")
    if j == 3 and 6 <= T < 10: emit_item(z1items[0][T - 6])
    if j == 3 and 11 <= T < 15: emit_item(z1items[1][T - 11])
fragloop(16, 7, lambda T, j: rdl(WB[T & 1] + 4*j, slot_z2(T) + j*1024),
         lambda T, j: a(f"v_mfma_f32_16x16x32_bf16 {vr(128+4*j,4)}, {vr(64+4*T,4)}, {vr(WB[T & 1]+4*j,4)}, {'0' if T == 0 else vr(128+4*j,4)}"),
         before=bef, after=aft, preissued=True)
for j in range(7): a(f"ds_read2_b32 {vr(CP[j],2)}, v24 offset0:{j*16} offset1:{j*16 + 112}")
stamp("z2mm")
a(f"s_mov_b32 s64, {fbits(-2*math.log2(math.e)*math.sqrt(2/math.pi)*0.044715)}\ns_mov_b32 s65, s64\ns_mov_b32 s66, 1.0\ns_mov_b32 s67, 1.0\ns_waitcnt lgkmcnt(0)")
def gelu(acc, tmp, mid=None):
    P = range(14)
    for i in P: a(f"v_pk_mul_f32 {vr(tmp+2*i,2)}, {vr(acc+2*i,2)}, {vr(acc+2*i,2)}")
    for i in P: a(f"v_pk_fma_f32 {vr(tmp+2*i,2)}, {vr(tmp+2*i,2)}, s[64:65], v[60:61]")
    for i in P: a(f"v_pk_mul_f32 {vr(tmp+2*i,2)}, {vr(tmp+2*i,2)}, {vr(acc+2*i,2)}")
    for i in range(28): a(f"v_exp_f32 v{tmp+i}, v{tmp+i}")
    if mid: mid()
    for i in P: a(f"v_pk_add_f32 {vr(tmp+2*i,2)}, {vr(tmp+2*i,2)}, s[66:67]")
    for i in range(28): a(f"v_rcp_f32 v{tmp+i}, v{tmp+i}")
    for i in P: a(f"v_pk_mul_f32 {vr(acc+2*i,2)}, {vr(acc+2*i,2)}, {vr(tmp+2*i,2)}")
for i in range(14): a(f"v_pk_fma_f32 {vr(32+2*i,2)}, {vr(16+2*(i & 1),2)}, {vr(CP[i >> 1],2)}, {vr(CP[i >> 1],2)} op_sel:[0,0,1] op_sel_hi:[1,0,1]")
for i in range(14): a(f"v_pk_fma_f32 {vr(128+2*i,2)}, {vr(128+2*i,2)}, {vr(20+2*(i & 1),2)}, {vr(32+2*i,2)}")
gelu(128, 32)
for j in range(7): rdl(WB[0] + 4*j, slot_z1(0) + j*1024) if False else None
for h in range(2):
    a(f"v_pk_add_f32 {vr(156+2*h,2)}, {vr(128+2*h,2)}, {vr(132+2*h,2)}\nv_pk_mul_f32 {vr(160+2*h,2)}, {vr(128+2*h,2)}, {vr(128+2*h,2)}")
for j in range(1, 7):
    for h in range(2):
        if j > 1: a(f"v_pk_add_f32 {vr(156+2*h,2)}, {vr(156+2*h,2)}, {vr(128+4*j+2*h,2)}")
        a(f"v_pk_fma_f32 {vr(160+2*h,2)}, {vr(128+4*j+2*h,2)}, {vr(128+4*j+2*h,2)}, {vr(160+2*h,2)}")
dppsum(range(156, 164), (8, 4, 2, 1))
a(f"s_add_u32 s70, s69, {WS_ST2}\nv_lshlrev_b32 v6, 5, v2\ns_mov_b32 exec_lo, 0x00010001\ns_mov_b32 exec_hi, 0x00010001")
both_data(lambda sc: (vm.op(f"buffer_store_dwordx4 v[156:159], v6, {WS}, s70 offen{sc}"), vm.op(f"buffer_store_dwordx4 v[160:163], v6, {WS}, s70 offen offset:16{sc}", "sst")))
a("s_mov_b64 exec, -1")
vm.wait("z1g1")
a("s_barrier")
stamp("spub")
def z2_publish():
    hop_wait(3)
    stamp("S")
    a(f"s_add_u32 s3, s68, {WS_ST2}")
    vm.op(f"buffer_load_dwordx4 v[164:167], v30, {WS}, s3 offen sc1")
    vm.op(f"buffer_load_dwordx4 v[168:171], v30, {WS}, s3 offen offset:16 sc1", "st2")
    srd(R1, P_BSP, 4096)
    a("s_lshr_b32 s3, s55, 9\nv_lshlrev_b32 v4, 1, v1")
    vm.op(f"buffer_load_ushort v16, v4, {R1}, s3 offen", "bsp")
    a(f"""
s_lshl_b32 s70, {sCB}, 6
s_lshl_b32 s3, {sRB}, 1
s_add_u32 s70, s70, s3
s_lshr_b32 s3, {sW}, 1
s_add_u32 s70, s70, s3
s_mul_i32 s70, s70, 7168
s_and_b32 s3, {sW}, 1
s_lshl_b32 s3, s3, 9
s_add_u32 s70, s70, s3
s_add_u32 s70, s70, {WS_Z2}
s_add_u32 s71, s70, 4096
v_and_b32 v4, 1, v2
v_lshlrev_b32 v4, 10, v4
v_lshrrev_b32 v5, 1, v2
v_lshl_add_u32 v4, v5, 8, v4
v_lshl_add_u32 v6, v1, 4, v4
""")
    vm.wait("st2")
    dppsum(range(164, 172), (4, 2, 1))
    finish_stats([(164+i, 168+i, 156+i, 160+i, None) for i in range(4)], 896)
    for h in range(2): a(f"v_pk_mul_f32 {vr(156+2*h,2)}, {vr(156+2*h,2)}, {vr(160+2*h,2)}")
    for i in range(14): a(f"v_pk_fma_f32 {vr(128+2*i,2)}, {vr(128+2*i,2)}, {vr(160+2*(i & 1),2)}, {vr(156+2*(i & 1),2)}")
    for i in range(14): a(f"v_cvt_pk_bf16_f32 v{232+i}, v{128+2*i}, v{129+2*i}")
    a("v_mov_b32 v246, v244\nv_mov_b32 v247, v245")
    for p in range(4): a(f"v_permlane16_swap_b32 v{232+4*p}, v{234+4*p}\nv_permlane16_swap_b32 v{233+4*p}, v{235+4*p}")
    vm.op(f"buffer_store_dwordx4 v[232:235], v6, {WS}, s70 offen sc1")
    vm.op(f"buffer_store_dwordx4 v[236:239], v6, {WS}, s70 offen offset:2048 sc1")
    vm.op(f"buffer_store_dwordx4 v[240:243], v6, {WS}, s71 offen sc1")
    a("s_mov_b32 exec_lo, 0x0000ffff\ns_mov_b32 exec_hi, 0x0000ffff")
    vm.op(f"buffer_store_dwordx4 v[244:247], v6, {WS}, s71 offen offset:2048 sc1", "zst")
    a(f"""
s_mov_b64 exec, -1
s_lshl_b32 s70, {sRB}, 3
s_add_u32 s70, s70, {sCB}
s_lshl_b32 s70, s70, 9
s_lshl_b32 s3, {sW}, 7
s_add_u32 s70, s70, s3
s_add_u32 s70, s70, {F_E}
""")
    stamp("zst")
def bef(T):
    if T == 2: hop_signal(3, "sst")
    if T == TS: z2_publish()
    if T == TE:
        vm.wait("zst"); vm.op(f"buffer_store_dword v17, v63, {WS}, s70 offen sc1")
        stamp("zpub")
    if T == 7: a("s_barrier")
def aft(T, j):
    if T < 2 and j in (1, 4): emit_item(z1items[2][2*T + (j == 4)])
    if 2 <= T < 4 and j in (1, 4): emit_item(z1items[3][2*(T - 2) + (j == 4)])
TS, TE = 7, 12
a(f"v_mov_b32 v17, 1\nv_mov_b32 v63, {OOB}\nv_cmp_eq_u32 vcc, 0, v0\nv_cndmask_b32 v63, v63, v0, vcc")
fragloop(16, 7, lambda T, j: rdl(WB[T & 1] + 4*j, slot_z1(T) + j*1024),
         lambda T, j: a(f"v_mfma_f32_16x16x32_bf16 {vr(176+4*j,4)}, {vr(WB[T & 1]+4*j,4)}, {vr(64+4*T,4)}, {'0' if T == 0 else vr(176+4*j,4)}"), before=bef, after=aft)
for j in range(7): a(f"ds_read_b128 {vr(204+4*j,4)}, v29 offset:{j*64}\nds_read_b128 {vr(128+4*j,4)}, v29 offset:{448 + j*64}")
a("s_barrier")
stamp("z1mm")
a(f"s_lshl_b32 s70, {sW}, 15\ns_lshl_b32 s3, {sCB}, 9\ns_add_u32 s70, s70, s3\ns_add_u32 s70, s70, {F_E}\nv_lshrrev_b32 v6, 2, v0\nv_lshlrev_b32 v6, 12, v6\nv_and_b32 v5, 3, v0\nv_lshl_add_u32 v6, v5, 7, v6")
a(f"s_lshl_b32 s72, {sCB}, 2\ns_add_u32 s72, s72, {sW}\ns_mul_i32 s72, s72, {16*7168}\ns_add_u32 s72, s72, {WS_Z2}\ns_add_u32 s73, s72, 4096")
poll(f"buffer_load_dword v4, v6, {WS}, s70 offen sc1", "v_cmp_gt_u32 vcc, 1, v4", "0xffffffff")
stamp("E")
ZB = lambda T: (64, 92, 32)[T % 3]
def ldz(T, j):
    vm.op(f"buffer_load_dwordx4 {vr(ZB(T)+4*j,4)}, v3, {WS}, s{72 + (j >> 2)} offen offset:{(j & 3)*1024} sc1", f"z{T}_{j}")
    if j == 6: a("s_add_u32 s72, s72, 7168\ns_add_u32 s73, s73, 7168")
for j in range(7): ldz(0, j)
a("s_waitcnt lgkmcnt(0)")
for i in range(14): a(f"v_pk_fma_f32 {vr(128+2*i,2)}, {vr(204+2*i,2)}, v[62:63], {vr(128+2*i,2)} op_sel_hi:[1,0,1]")
for i in range(14): a(f"v_pk_fma_f32 {vr(176+2*i,2)}, {vr(176+2*i,2)}, v[28:29], {vr(128+2*i,2)} op_sel_hi:[1,0,1]")
gelu(176, 32, mid=lambda: [ldz(1, j) for j in range(7)])
for i in range(14): a(f"v_cvt_pk_bf16_f32 v{240+i}, v{176+2*i}, v{177+2*i}")
Z1P = list(range(240, 254))
stamp("gelu1")
def wout_setup(n0):
    a(f"s_mul_i32 s3, {sCB}, {28*4096}\ns_add_u32 s75, s3, {WS_WOUTF + n0*4096}\ns_lshl_b32 s76, {sW}, 10\ns_add_u32 s74, s75, s76\ns_add_u32 s76, s76, {L_WOUT + n0*4096}")
def wout_one(tag):
    a("s_mov_b32 m0, s76\ns_add_u32 s76, s76, 4096")
    vm.op(f"buffer_load_dwordx4 v3, {WS}, s74 offen sc1 lds", tag)
    a("s_add_u32 s74, s74, 4096")
def wout_dma(n0, n1, tag):
    wout_setup(n0)
    for n in range(n0, n1): wout_one(tag)
wout_setup(0)
for s_ in range(1, 4):
    a(f"s_add_u32 s3, {sW}, {s_}\ns_and_b32 s3, s3, 3\ns_mul_i32 s3, s3, {21*1024}\ns_add_u32 s3, s3, {L_RED + (s_-1)*7168}\nv_add_u32 v{16+s_}, s3, v3")
a(f"s_mul_i32 s3, {sW}, {21*1024}\ns_add_u32 s3, s3, {L_RED}\nv_add_u32 v20, s3, v3\nv_lshlrev_b32 v16, 16, v16")
def p5(T, j, s_):
    d = vr(128 + (s_*7 + j)*4, 4)
    a(f"v_mfma_f32_16x16x32_bf16 {d}, {vr(ZB(T)+4*j,4)}, {ar((T*4+s_)*4,4)}, {'0' if T == 0 else d}")
for T in range(16):
    for j in range(7):
        vm.wait(f"z{T}_{j}")
        for s_ in ((0, 1, 2, 3) if T < 13 else (1, 2, 3)):
            p5(T, j, s_)
            if s_ == 0 and T + 2 < 16 or s_ == 1 and T == 13: ldz(T + 2, j)
            if s_ == 2 and (j == 3 or (j == 0 and T >= 13)): wout_one("wout0")
stamp("p5mm")
for n in range(21):
    a(f"ds_write_b128 v{17 + n // 7}, {vr(128 + (7 + n)*4, 4)} offset:{(n % 7)*1024}")
    p5(13 + n // 7, n % 7, 0)
for i in range(14): a(f"v_lshlrev_b32 v{156+2*i}, 16, v{Z1P[i]}\nv_and_b32 v{157+2*i}, 0xffff0000, v{Z1P[i]}")
for i in range(14): a(f"v_pk_add_f32 {vr(128+2*i,2)}, {vr(128+2*i,2)}, v[16:17] op_sel_hi:[1,0]")
a(f"""
s_lshl_b32 s68, s55, 1
s_add_u32 s68, s68, {WS_X}
s_mul_i32 s64, {sCB}, 3072
s_add_u32 s64, s64, s68
s_lshl_b32 s65, {sCB}, 9
s_add_u32 s65, s65, s68
s_add_u32 s65, s65, {24*1024}
v_lshrrev_b32 v6, 5, v0
v_lshlrev_b32 v6, 8, v6
v_lshl_add_u32 v6, v1, 4, v6
s_waitcnt lgkmcnt(0)
s_barrier
""")
stamp("red")
order = [(k, j) for j in range(7) for k in range(3)]
for k, j in order[:15]: a(f"ds_read_b128 {vr(32+(k*7+j)*4,4)}, v20 offset:{(k*7+j)*1024}")
for j in range(7):
    for k, jj in order[15 + 3*j:18 + 3*j]: a(f"ds_read_b128 {vr(32+(k*7+jj)*4,4)}, v20 offset:{(k*7+jj)*1024}")
    a(f"s_waitcnt lgkmcnt({min(15, 18 - 3*j)})")
    for h in range(2):
        a(f"v_pk_add_f32 {vr(32+4*j+2*h,2)}, {vr(32+4*j+2*h,2)}, {vr(60+4*j+2*h,2)}\nv_pk_add_f32 {vr(128+4*j+2*h,2)}, {vr(128+4*j+2*h,2)}, {vr(88+4*j+2*h,2)}")
    for h in range(2): a(f"v_pk_add_f32 {vr(128+4*j+2*h,2)}, {vr(128+4*j+2*h,2)}, {vr(32+4*j+2*h,2)}")
    for h in range(2): a(f"v_pk_mul_f32 {vr(128+4*j+2*h,2)}, {vr(128+4*j+2*h,2)}, {vr(156+4*j+2*h,2)}")
    for h in range(2): a(f"v_cvt_pk_bf16_f32 v{184+2*j+h}, v{128+4*j+2*h}, v{129+4*j+2*h}")
a("v_mov_b32 v198, v196\nv_mov_b32 v199, v197\nv_permlane16_swap_b32 v196, v198\nv_permlane16_swap_b32 v197, v199")
def pubu(sc):
    for p in range(3): vm.op(f"buffer_store_dwordx4 {vr(184+4*p,4)}, v3, {WS}, s64 offen offset:{p*1024}{sc}")
    a("s_mov_b32 exec_lo, 0x0000ffff\ns_mov_b32 exec_hi, 0x0000ffff")
    vm.op(f"buffer_store_dwordx4 v[196:199], v6, {WS}, s65 offen{sc}")
    a("s_mov_b64 exec, -1")
pubu(' sc1') if 'usc1' in XP or 'allsc1' in XP else both(pubu)
hop_signal(4)
stamp("upub")
a("s_barrier")
rd6 = lambda n, j: rdl(160 + (n & 1)*16 + 4*j, L_WOUT + n*4096 + j*1024)
for j in range(4): rd6(0, j)
wout_dma(19, 28, "wout1")
hop_wait(4)
stamp("F")
steps = []
for cbp in range(8):
    for p in range(3): steps.append((cbp*3 + p, 112*cbp + 32*p, False))
    if cbp & 1: steps.append((24 + (cbp >> 1), 224*(cbp >> 1) + 96, True))
a("s_mov_b32 s64, s68")
for n in range(1, 7): a(f"s_add_u32 s{64+n if n < 4 else 66+n}, s64, {4096*n}")
US = ["s64", "s65", "s66", "s67", "s70", "s71", "s72"]
def uload(n):
    st = steps[n][0]
    vm.op(f"buffer_load_dwordx4 {vr(32+4*n,4)}, v3, {WS}, {US[st >> 2]} offen offset:{(st & 3)*1024} sc1", f"u{n}")
for n in range(AH): uload(n)
a(f"s_lshl_b32 s74, {sCB}, 8\ns_add_u32 s74, s74, {WS_G2 + 2048}")
def aft6(n, j):
    if j == 0 and n + AH < 28: uload(n + AH)
    if j == 0 and 28 <= n + AH < 32: vm.op(f"buffer_load_dwordx4 {vr(216+4*(n+AH-28),4)}, v31, {WS}, s74 offen offset:{(n+AH-28)*64} sc1", "gb")
stamp("u_iss")
def bef(n):
    if n == 18: a("s_barrier")
    vm.wait(f"u{n}")
fragloop(28, 4, rd6,
         lambda n, j: a(f"v_mfma_f32_16x16x32_bf16 {vr(144+4*j,4)}, {vr(160+(n&1)*16+4*j,4)}, {vr(32+4*n,4)}, {'0' if n == 0 else vr(144+4*j,4)}"),
         before=bef, after=aft6, preissued=True)
stamp("p6mm")
vm.wait("gb")
for i in range(8): a(f"v_lshlrev_b32 v{32+2*i}, 16, v{8+i}\nv_and_b32 v{33+2*i}, 0xffff0000, v{8+i}")
for i in range(8): a(f"v_pk_fma_f32 {vr(32+2*i,2)}, {vr(144+2*i,2)}, {vr(216+2*i,2)}, {vr(32+2*i,2)}")
for i in range(8): a(f"v_cvt_pk_bf16_f32 v{48+i}, v{32+2*i}, v{33+2*i}")
for p in range(2): a(f"v_permlane16_swap_b32 v{48+4*p}, v{50+4*p}\nv_permlane16_swap_b32 v{49+4*p}, v{51+4*p}")
srd(R1, P_OUT, 2048 * 1024, "s55")
a(f"v_lshlrev_b32 v4, 10, v1\nv_and_b32 v5, 1, v2\nv_lshl_add_u32 v4, v5, 5, v4\nv_lshrrev_b32 v5, 1, v2\nv_lshl_add_u32 v4, v5, 4, v4\ns_lshl_b32 s3, {sCB}, 7")
for p in range(2): a(f"buffer_store_dwordx4 {vr(48+4*p,4)}, v4, {R1}, s3 offen offset:{p*64}{' sc1' if 'outsc1' in XP else ' nt' if 'outnt' in XP else ''}")
if AMP:
    a("s_waitcnt vmcnt(0)")
    stamp("end")
    assert AMP[0] != "start"
    a("s_sub_u32 s91, s91, s90\ns_min_u32 s91, s91, 10000\ns_memrealtime s[78:79]\ns_waitcnt lgkmcnt(0)\ns_mov_b32 s92, s78\nL_amp:\ns_sleep 1\ns_memrealtime s[78:79]\ns_waitcnt lgkmcnt(0)\ns_sub_u32 s78, s78, s92\ns_cmp_lt_u32 s78, s91\ns_cbranch_scc1 L_amp")
elif "dbg" in XP:
    a("s_waitcnt vmcnt(0)")
    stamp("end")
    sel = ["xin", "barP", "barB", "kv0", "attn", "C", "D", "z2mm", "zpub", "E", "p5mm", "upub", "F", "p6mm", "end"]
    a("s_not_b32 s3, s80\nv_mov_b32 v32, s3")
    for n, nm in enumerate(sel):
        i = stamp_names.index(nm)
        a(f"s_bfe_u32 s3, s{81 + (i-1)//2}, {hex((16 << 16) | (16*((i-1) & 1)))}\ns_add_u32 s3, s3, s80\nv_writelane_b32 v32, s3, {n+1}")
    a("s_load_dwordx2 s[64:65], s[96:97], 104\ns_waitcnt lgkmcnt(0)")
    srd(R1, 64, 256)
    a(f"v_lshlrev_b32 v4, 2, v0\ns_mov_b64 exec, 0xffff\nbuffer_atomic_umax v32, v4, {R1}, 0 offen sc1\ns_waitcnt vmcnt(0)")
elif STAMPS:
    a("s_waitcnt vmcnt(0)")
    stamp("end")
    for i in range(22): a(f"v_writelane_b32 v32, s{80+i}, {i}")
    a(f"s_lshl_b32 s3, s2, 2\ns_add_u32 s3, s3, {sW}\ns_lshl_b32 s3, s3, 7\ns_add_u32 s3, s3, {WS_STAMP}\nv_lshlrev_b32 v4, 2, v0\ns_mov_b64 exec, 0xffffffff\nbuffer_store_dword v32, v4, {WS}, s3 offen")
a("s_endpgm")
a("L_pwait:")
poll(f"buffer_load_dword v201, v196, {WS}, s38 offen sc1", "v_cmp_gt_u32 vcc, 32, v201", "0xffffffff")
a("s_branch L_pok")
a(f"{Lfb}:")
a(f"""
v_lshrrev_b32 v4, 5, v0
v_mul_u32_u24 v4, 272, v4
v_and_b32 v5, 31, v0
v_lshl_add_u32 v27, v5, 4, v4
v_mov_b32 v4, 0xff800000
v_mov_b32 v5, 0xff800000
s_mov_b32 s64, {WS_KV}
L_fb1:
buffer_load_dwordx4 {Kb(0)}, v3, {WS}, s64 offen offset:1088 sc1
s_waitcnt vmcnt(0)
""")
for e in range(2): a(f"v_mfma_f32_32x32x16_bf16 {vr(32+16*e,16)}, {Kb(0)}, {Q(e)}, 0")
for e in range(2): rowmax(32 + 16*e, 4 + e, False)
a(f"s_add_u32 s64, s64, {REC}\ns_cmp_lt_u32 s64, {WS_KV + 64*REC}\ns_cbranch_scc1 L_fb1")
for e in range(2): negbcast(4 + e, e)
for i in range(32): a(f"v_mov_b32 v{80+i}, 0")
a(f"""
s_mov_b32 s64, {WS_KV}
L_fb2:
buffer_load_dwordx4 {Kb(0)}, v3, {WS}, s64 offen offset:1088 sc1
buffer_load_dwordx4 {Vb(0,0)}, v27, {WS}, s64 offen sc1
buffer_load_dwordx4 {Vb(0,1)}, v27, {WS}, s64 offen offset:544 sc1
s_waitcnt vmcnt(0)
""")
for e in range(2): a(f"v_mfma_f32_32x32x16_bf16 {vr(32+16*e,16)}, {Kb(0)}, {Q(e)}, {vr(C(e),16)}")
for i in range(32): a(f"v_exp_f32 v{32+i}, v{32+i}")
for e in range(2):
    for m in range(2): a(f"v_smfmac_f32_32x32x32_bf16 {vr(O(e),16)}, {Vb(0,m)}, {vr(32+16*e+8*m,8)}, v30")
a(f"s_add_u32 s64, s64, {REC}\ns_cmp_lt_u32 s64, {WS_KV + 64*REC}\ns_cbranch_scc1 L_fb2")
getl()
a(f"s_branch {Lok}\nL_end:\ns_endpgm")

body = a.finish()
head = open("cdna_kernels/" + NAME + ".s.ref").read().split("; Override launch")[0]
src = head + f"""; One persistent launch: 256 workgroups (32 row blocks x 8 column blocks), 4 waves each; generated by gen/gen.py.
; @launch grid=(256,1,1) block=(256,1,1) lds={LDS_BYTES}
.amdgcn_target "amdgcn-amd-amdhsa--gfx950"
.text
.globl {NAME}_kernel
.p2align 8
.type {NAME}_kernel,@function
{NAME}_kernel:
{body}.section .rodata,"a"
.p2align 6
.amdhsa_kernel {NAME}_kernel
  .amdhsa_next_free_vgpr 512
  .amdhsa_next_free_sgpr 102
  .amdhsa_accum_offset 256
  .amdhsa_group_segment_fixed_size 0
  .amdhsa_kernarg_size 120
  .amdhsa_user_sgpr_count 2
  .amdhsa_user_sgpr_kernarg_segment_ptr 1
  .amdhsa_system_sgpr_workgroup_id_x 1
.end_amdhsa_kernel
"""
out = [x for x in sys.argv[1:] if not x.startswith("--")]
open(out[0] if out else "cdna_kernels/" + NAME + ".s", "w").write(src)
if STAMPS:
    open(out[0] + ".st", "w").write("\n".join(stamp_names))
print("instructions:", sum(1 for k, _ in a.items if k == "ins"), "hazard nops:", a.nops, file=sys.stderr)
```

```python
import sys, struct, math
from asmlib import Asm

NAME = "adaLN_cond__grouped_kv_mqa__mixer_gmlp__prompt"
STAMPS = "--stamps" in sys.argv or "--cyc" in sys.argv
CYC = "--cyc" in sys.argv
FORCE_SLOW = "--slow" in sys.argv
PADZERO = "--nopadzero" not in sys.argv
XP = [x[5:] for x in sys.argv if x.startswith("--xp=")]
FORCE_FB = "--fallback" in sys.argv

def fbits(x): return "0x%08x" % struct.unpack("<I", struct.pack("<f", x))[0]

F_B, F_HOP, F_P, WS_G2, F_E, WS_C12 = 0, 32768, 49152, 53248, 57344, 188416
WS_MOD, WS_MODT, WS_EPOCH, WS_KV = 0x38000, 0x3B000, 0x3E000, 0x40000
WS_ST1, WS_ST2 = 0x70000, 0x90000
WS_X, WS_Z2, WS_STAMP, WS_SIZE = 0x100000, 0x500000, 0xD00000, 0x1200000
WS_WOF, WS_WOUTF, WS_DUMMY, WS_WINF = 0xD80000, 0xE00000, 0xF00000, 0x1000000
REC = 2112
L_G2 = 16384
L_KV = 28672
L_WQ, L_WKV, L_G0, L_SILU, L_PAR = 28672, 94208, 110592, 126976, 0
L_RING, L_SM = 0, 158720
L_WO = 0
SLOT = 7168
def slotA(i): return 65536 + SLOT * i
def slotB(i): return SLOT * i
def slot_z2(T): return slotA(T) if T < 13 else slotB(T - 13)
def slot_z1(T): return slotB(3 + T) if T < 4 else slotA(T - 4)
L_WOUT, L_RED = 0, 114688
LDS_BYTES = 163840
R0, WS, R1, R2, R3 = "s[4:7]", "s[8:11]", "s[12:15]", "s[56:59]", "s[60:63]"
P_X, P_WQ, P_WK, P_WV, P_WO, P_WIN, P_WSP, P_BSP, P_WOUT, P_C, P_WMOD, P_OUT, P_DBG, P_WS = 16, 18, 20, 22, 24, 28, 30, 32, 34, 36, 38, 40, 42, 44
sRB, sCB, sW, sXCC, sFAST, sIDX, sXCD, sKVW, sGRP = "s46", "s47", "s48", "s49", "s50", "s51", "s52", "s53", "s54"
sEP, sTAG = "s42", "s43"
SPIN = 1 << 17
OOB = 0x7fff0000

a = Asm()
def vr(b, n): return f"v[{b}:{b+n-1}]"
def ar(b, n): return f"a[{b}:{b+n-1}]"

class VM:
    def __init__(s): s.n = 0; s.tags = {}
    def op(s, text, tag=None):
        a(text); s.n += 1
        if tag: s.tags[tag] = s.n
    def tag(s, t): s.tags[t] = s.n
    def wait(s, t):
        k = s.n - s.tags[t]
        if k < 63: a(f"s_waitcnt vmcnt({k})")
    def drain(s): a("s_waitcnt vmcnt(0)")
vm = VM()

def srd(q, ptr, size, off=None):
    b = int(q[2:q.index(":")])
    if off is None:
        a(f"s_mov_b32 s{b}, s{ptr}\ns_mov_b32 s{b+1}, s{ptr+1}\ns_mov_b32 s{b+2}, {size}")
    else:
        a(f"s_add_u32 s{b}, s{ptr}, {off}\ns_addc_u32 s{b+1}, s{ptr+1}, 0\ns_sub_u32 s{b+2}, {size}, {off}")
    a(f"s_mov_b32 s{b+3}, 0x20000")

nstamp = [0]
stamp_names = []
AMP = [x[4:] for x in XP if x.startswith("amp:")]
def stamp(name):
    if AMP and name in ("start", AMP[0]): a(f"s_memrealtime s[78:79]\ns_waitcnt lgkmcnt(0)\ns_mov_b32 s{90 if name == 'start' else 91}, s78")
    if not STAMPS: return
    if "dbg" in XP and name not in ("start", "xin", "barP", "barB", "kv0", "attn", "C", "D", "z2mm", "zpub", "E", "p5mm", "upub", "F", "p6mm", "end"): return
    if "tst" in XP and name in ("xin", "ln1", "h", "kv", "q", "p3mm", "p3ep", "y_iss", "st1", "init", "u_iss", "S", "opub", "ypub", "spub"): return
    i = nstamp[0]; nstamp[0] += 1; stamp_names.append(name)
    if "clk" in XP and i >= 30: return
    assert i < 43
    a("s_memrealtime s[78:79]\ns_waitcnt lgkmcnt(0)" if not CYC else "s_memtime s[78:79]\ns_waitcnt lgkmcnt(0)\ns_lshr_b32 s78, s78, 2")
    if i == 0: a("s_mov_b32 s80, s78" if "ms" not in XP else "s_nop 0")
    elif i & 1: a(f"s_sub_u32 s{81 + i//2}, s78, s80")
    else: a(f"s_sub_u32 s78, s78, s80\ns_pack_ll_b32_b16 s{80 + i//2}, s{80 + i//2}, s78")

def poll(load, cond, mask, backoff=0, pre=None):
    L, X = a.label("poll"), a.label("pollx")
    if pre: a(pre)
    a(f"s_mov_b64 exec, {mask}\ns_mov_b32 s3, 0\n{L}:\ns_add_u32 s3, s3, 1\ns_cmp_gt_u32 s3, {SPIN}\ns_cbranch_scc1 {X}")
    if backoff: a(f"s_sleep {backoff}")
    a(load); a("s_waitcnt vmcnt(0)"); a(cond)
    a(f"s_cbranch_vccnz {L}\n{X}:\ns_mov_b64 exec, -1")

PLAIN = "noplain" not in XP
def both_data(fn): both(fn) if PLAIN else fn(" sc1")
def both(fn):
    S, E = a.label("slow"), a.label("pub")
    n0 = vm.n
    a(f"s_cmp_eq_u32 {sFAST}, 0\ns_cbranch_scc1 {S}")
    fn(""); n1 = vm.n
    a(f"s_branch {E}\n{S}:"); vm.n = n0
    fn(" sc1"); assert vm.n == n1
    a(f"{E}:")

def hop_signal(phase, tag=None):
    a(f"v_mov_b32 v4, {phase}")
    if tag: vm.wait(tag)
    else: a("s_waitcnt vmcnt(0)")
    both(lambda sc: vm.op(f"buffer_store_dword v4, v254, {WS}, {sGRP} offen{sc}"))

def hop_wait(phase):
    poll(f"buffer_load_dword v4, v255, {WS}, {sGRP} offen sc1", f"v_cmp_gt_u32 vcc, {phase}, v4", "0xff")

def xgroup_sum(v, t):
    a(f"v_mov_b32 v{t}, v{v}\nv_permlane32_swap_b32 v{v}, v{t}\nv_add_f32 v{v}, v{v}, v{t}")
    a(f"v_mov_b32 v{t}, v{v}\nv_permlane16_swap_b32 v{v}, v{t}\nv_add_f32 v{v}, v{v}, v{t}")

def xgroup_sum2(v, t, v2, t2):
    for op in ("v_permlane32_swap_b32", "v_permlane16_swap_b32"):
        a(f"v_mov_b32 v{t}, v{v}\nv_mov_b32 v{t2}, v{v2}\n{op} v{v}, v{t}\n{op} v{v2}, v{t2}\nv_add_f32 v{v}, v{v}, v{t}\nv_add_f32 v{v2}, v{v2}, v{t2}")

def capture(fn):
    n = len(a.items); fn(); out = a.items[n:]; del a.items[n:]
    return out

def pipeline(nsteps, reads, compute, nreads, pre=1):
    for T in range(min(pre, nsteps)): reads(T)
    for T in range(nsteps):
        if T + pre < nsteps: reads(T + pre)
        left = min(pre, nsteps - 1 - T) * nreads
        a(f"s_waitcnt lgkmcnt({min(left, 15)})")
        compute(T)

def fragloop(nsteps, nf, read, mfma, before=None, after=None, nper=1, preissued=False):
    if not preissued:
        for j in range(nf): read(0, j)
    for T in range(nsteps):
        if before: before(T)
        for j in range(nf):
            left = (nf - 1 if T + 1 < nsteps else nf - 1 - j) * nper
            a(f"s_waitcnt lgkmcnt({min(left, 15)})")
            mfma(T, j)
            if T + 1 < nsteps: read(T + 1, j)
            if after: after(T, j)

def dppsum(regs, steps):
    for s in steps:
        for r in regs: a(f"v_add_f32_dpp v{r}, v{r}, v{r} row_ror:{s} row_mask:0xf bank_mask:0xf")
def finish_stats(rows, n):
    for s1, s2, mu, r, sd in rows: a(f"v_mul_f32 v{mu}, {fbits(-1.0/n)}, v{s1}\nv_mul_f32 v{s2}, {fbits(1.0/n)}, v{s2}")
    for s1, s2, mu, r, sd in rows: a(f"v_fma_f32 v{s2}, -v{mu}, v{mu}, v{s2}")
    for s1, s2, mu, r, sd in rows: a(f"v_max_f32 v{s2}, 0, v{s2}")
    for s1, s2, mu, r, sd in rows: a(f"v_add_f32 v{s2}, {fbits(1e-5)}, v{s2}")
    for s1, s2, mu, r, sd in rows: a(f"v_rsq_f32 v{r}, v{s2}")
    for s1, s2, mu, r, sd in rows:
        if sd is not None: a(f"v_mul_f32 v{sd}, v{s2}, v{r}")

a(f"""
{"s_memrealtime s[80:81]" if "ms" in XP else ""}
s_cmp_ge_u32 s2, 256
s_cbranch_scc1 L_end
{"s_lshr_b32 s3, s2, 3" + chr(10) + "s_and_b32 s3, s3, 7" + chr(10) + "s_xor_b32 s2, s2, s3" if "perm" in XP else ""}
{"s_mul_i32 s2, s2, 37" + chr(10) + "s_and_b32 s2, s2, 255" if "perm2" in XP else ""}
s_load_dwordx16 s[16:31], s[0:1], 0
s_load_dwordx8 s[32:39], s[0:1], 64
s_load_dwordx4 s[40:43], s[0:1], 96
s_load_dwordx2 s[44:45], s[0:1], 112
v_lshrrev_b32 v4, 6, v0
v_and_b32 v0, 63, v0
v_readfirstlane_b32 {sW}, v4
v_and_b32 v1, 15, v0
v_lshrrev_b32 v2, 4, v0
v_lshlrev_b32 v3, 4, v0
s_and_b32 {sXCD}, s2, 7
s_lshr_b32 {sIDX}, s2, 3
s_and_b32 {sCB}, {sIDX}, 7
s_lshr_b32 s3, {sIDX}, 3
s_lshl_b32 {sRB}, {sXCD}, 2
s_add_u32 {sRB}, {sRB}, s3
s_lshr_b32 {sKVW}, {sCB}, 1
s_getreg_b32 {sXCC}, hwreg(HW_REG_XCC_ID, 0, 4)
s_and_b32 {sXCC}, {sXCC}, 7
s_lshl_b32 {sGRP}, {sRB}, 2
s_add_u32 {sGRP}, {sGRP}, {sW}
s_lshl_b32 s55, {sGRP}, 14
s_lshl_b32 {sGRP}, {sGRP}, 7
s_add_u32 {sGRP}, {sGRP}, {F_HOP}
""")
a(f"""
s_cmp_eq_u32 {sW}, 3
s_cbranch_scc0 L_nopf
s_getpc_b64 s[64:65]
L_pc:
s_lshl_b32 s3, {sIDX}, 4
v_add_u32 v6, s3, v1
v_lshlrev_b32 v6, 7, v6
v_min_u32 v6, L_end-L_pc-4, v6
v_mov_b32 v7, s65
v_add_co_u32 v6, vcc, s64, v6
v_addc_co_u32 v7, vcc, 0, v7, vcc
s_mov_b64 exec, 0xffff
global_load_dword v24, v[6:7], off
s_mov_b64 exec, -1
L_nopf:
""")
def img32_regs(row, trb):
    a(f"""
v_lshrrev_b32 v4, 1, v0
v_and_b32 v5, 19, v4
v_bfe_u32 v6, v4, 2, 1
v_lshl_or_b32 v5, v6, 3, v5
v_bfe_u32 v6, v4, 3, 1
v_lshl_or_b32 v{row}, v6, 2, v5
v_lshrrev_b32 v4, 2, v1
v_and_b32 v5, 1, v2
v_lshl_add_u32 v4, v5, 2, v4
v_lshrrev_b32 v5, 1, v2
v_lshl_add_u32 v4, v5, 4, v4
v_lshlrev_b32 v4, 5, v4
v_and_b32 v5, 3, v1
v_lshl_add_u32 v{trb}, v5, 3, v4
""")
img32_regs(16, 17)
a(f"""
v_and_b32 v18, 1, v0
v_lshlrev_b32 v18, 4, v18
{"s_mov_b64 s[96:97], s[0:1]" if "dbg" in XP else ""}
s_sub_u32 s0, {sW}, {sKVW}
s_and_b32 s0, s0, 3
v_mov_b64 v[36:37], 0
v_mov_b64 v[38:39], 0
s_and_b32 s69, s2, 15
s_lshl_b32 s69, s69, 6
v_lshlrev_b32 v25, 4, v2
v_lshrrev_b32 v4, 3, v0
v_and_b32 v5, 7, v0
v_xor_b32 v5, v5, v2
v_lshlrev_b32 v5, 4, v5
v_lshl_add_u32 v22, v4, 10, v5
v_xor_b32 v23, 64, v22
v_add_u32 v23, {8192 - 1024}, v23
s_lshl_b32 s67, {sW}, 14
s_add_u32 s67, s67, {L_WQ}
v_lshrrev_b32 v4, 2, v0
v_and_b32 v5, 3, v0
v_and_b32 v6, 1, v5
v_lshlrev_b32 v6, 7, v6
v_lshrrev_b32 v5, 1, v5
v_mul_u32_u24 v5, 3072, v5
s_movk_i32 s3, 6144
v_mad_u32_u24 v4, v4, s3, v6
v_add_u32 v27, v4, v5
v_mad_u32_u24 v28, v16, s3, v18
v_lshlrev_b32 v29, 7, v0
v_and_b32 v30, 0x380, v29
s_mul_i32 s70, {sIDX}, {16*6144}
s_lshl_b32 s3, {sXCD}, 8
s_add_u32 s70, s70, s3
s_lshl_b32 s68, {sXCD}, 3
s_add_u32 s68, s68, {sIDX}
s_add_u32 s65, s68, 88
s_cmp_lt_u32 {sIDX}, 8
s_cselect_b32 s68, s68, s65
s_lshl_b32 s66, s68, 5
s_lshl_b32 s71, {sRB}, 16
s_lshl_b32 s3, {sCB}, 13
s_add_u32 s71, s71, s3
s_lshr_b32 s76, {sIDX}, 1
s_lshl_b32 s76, s76, 10
s_mov_b32 s6, 1024
s_mov_b32 s7, 0x20000
s_mov_b32 s10, {hex(WS_SIZE)}
s_mov_b32 s11, 0x20000
s_sub_u32 s14, {2048*1024}, s55
s_mov_b32 s15, 0x20000
s_mov_b32 s58, {512*6144}
s_mov_b32 s59, 0x20000
s_mov_b32 s62, 16384
s_mov_b32 s63, 0x20000
s_mov_b32 s74, {2048*1024}
s_mov_b32 s75, 0x20000
s_waitcnt lgkmcnt(0)
s_mov_b64 s[56:57], s[{P_WMOD}:{P_WMOD+1}]
s_mov_b64 s[72:73], s[{P_X}:{P_X+1}]
s_mov_b64 s[4:5], s[{P_C}:{P_C+1}]
""")
stamp("start")
if "ms" in XP: stamp("karg")


def round_bf16(regs):
    for i in range(0, len(regs), 2):
        x, y = regs[i], regs[i+1]
        a(f"v_cvt_pk_bf16_f32 v{y}, v{x}, v{y}\nv_lshlrev_b32 v{x}, 16, v{y}\nv_and_b32 v{y}, 0xffff0000, v{y}")

def silu8(src, dst):
    for i in range(4): a(f"v_lshlrev_b32 v{40+2*i}, 16, v{src+i}\nv_and_b32 v{41+2*i}, 0xffff0000, v{src+i}")
    for i in range(8): a(f"v_mul_f32 v{48+i}, {fbits(-math.log2(math.e))}, v{40+i}")
    for i in range(8): a(f"v_exp_f32 v{48+i}, v{48+i}")
    for i in range(8): a(f"v_add_f32 v{48+i}, 1.0, v{48+i}")
    for i in range(8): a(f"v_rcp_f32 v{48+i}, v{48+i}")
    for i in range(8): a(f"v_mul_f32 v{40+i}, v{40+i}, v{48+i}")
    for i in range(4): a(f"v_cvt_pk_bf16_f32 v{dst+i}, v{40+2*i}, v{41+2*i}")

Lr0, Lr2, Lr3, Lxi, Lxw, Lnz, Lsl = (a.label(x) for x in ("r0", "r2", "r3", "xi", "xw", "noz", "sl"))
def late_srds():
    a(f"""
s_mov_b64 s[8:9], s[{P_WS}:{P_WS+1}]
s_load_dword {sEP}, s[{P_WS}:{P_WS+1}], {WS_EPOCH}
s_add_u32 s12, s{P_X}, s55
s_addc_u32 s13, s{P_X+1}, 0
s_bitcmp1_b32 {sCB}, 0
s_cselect_b64 s[60:61], s[{P_WV}:{P_WV+1}], s[{P_WK}:{P_WK+1}]
""")
def xstage():
    for T2 in range(8):
        a(f"s_add_u32 m0, s67, {T2*2048}\ns_movk_i32 s3, {T2*128}\nbuffer_load_dwordx4 v22, {R1}, s3 offen lds\nbuffer_load_dwordx4 v23, {R1}, s3 offen offset:1024 lds")
if "ms" in XP: stamp("iss0")
a(f"s_cmp_eq_u32 s0, 1\ns_cbranch_scc0 {Lr2}")
a(f"buffer_load_dword v24, v27, {R2}, s70 offen")
late_srds()
a(f"s_cmp_lt_u32 {sIDX}, 16\ns_cbranch_scc0 {Lxi}\nbuffer_load_dwordx4 v[32:35], v3, {R0}, 0 offen")
for n in range(16):
    a(f"s_mov_b32 m0, {L_G0 + n*1024}\nbuffer_load_dwordx4 v28, {R2}, s66 offen lds")
    if n < 15: a("s_add_u32 s66, s66, 196608")
a(f"""
s_cmp_lt_u32 {sIDX}, 8
s_cbranch_scc0 {Lnz}
s_lshl_b32 s3, s68, 9
s_mov_b64 exec, 0xffffffff
buffer_store_dwordx4 v[36:39], v3, {WS}, s3 offen sc1
s_mov_b64 exec, -1
{Lnz}:
""")
a("s_barrier\ns_waitcnt vmcnt(16)")
if "ms" in XP: stamp("m_c")
silu8(32, 32)
a(f"v_add_u32 v6, {L_SILU}, v3\nds_write_b128 v6, v[32:35]\nv_lshlrev_b32 v5, 4, v2\nv_add_u32 v6, {L_SILU}, v5")
a(f"v_add_u32 v7, {L_G0}, v17\ns_waitcnt lgkmcnt(0)")
for T in range(16): a(f"ds_read_b128 {vr(160+4*T,4)}, v6 offset:{T*64}")
a("s_waitcnt vmcnt(0)")
if "ms" in XP: stamp("m_dma")
pipeline(16, lambda T: a(f"ds_read_b64_tr_b16 {vr(128+(T%8)*4,2)}, v7 offset:{T*1024}\nds_read_b64_tr_b16 {vr(130+(T%8)*4,2)}, v7 offset:{T*1024+256}"),
         lambda T: a(f"v_mfma_f32_16x16x32_bf16 v[32:35], {vr(128+(T%8)*4,4)}, {vr(160+4*T,4)}, {'0' if T == 0 else 'v[32:35]'}"), 2, pre=6)
round_bf16([32, 33, 34, 35])
Lno1 = a.label("no1")
a(f"s_lshr_b32 s65, s68, 5\ns_bitcmp1_b32 0x12, s65\ns_cbranch_scc0 {Lno1}")
for i in range(4): a(f"v_add_f32 v{32+i}, 1.0, v{32+i}")
round_bf16([32, 33, 34, 35])
a(f"""
{Lno1}:
s_lshl_b32 s3, s68, 6
s_add_u32 s3, s3, {WS_MOD}
s_mov_b32 exec_lo, 0x00010001
s_mov_b32 exec_hi, 0x00010001
s_add_u32 s65, {sEP}, 1
s_and_b32 s65, s65, 0xffff
v_or_b32 v36, s65, v32
v_or_b32 v37, s65, v33
v_or_b32 v38, s65, v34
v_or_b32 v39, s65, v35
s_add_u32 s65, s3, {WS_MODT - WS_MOD}
buffer_store_dwordx4 v[36:39], v5, {WS}, s65 offen sc1
buffer_store_dwordx4 v[32:35], v5, {WS}, s3 offen sc1
s_mov_b64 exec, -1
""")
if "ms" in XP: stamp("m_pub")
a(f"""
v_add_u32 v6, s69, v6
ds_read_b128 v[8:11], v6
""")
if "xmid" not in XP: xstage()
a(f"""
s_waitcnt vmcnt({2 if "xmid" in XP else 0})
s_branch {Lxw}
{Lr2}:
s_cmp_eq_u32 s0, 2
s_cbranch_scc0 {Lr3}
buffer_load_dword v24, v29, s[72:75], s71 offen
""")
late_srds()
a(f"s_branch {Lxi}\n{Lr3}:")
late_srds()
a(f"""
s_cmp_eq_u32 s0, 0
s_cbranch_scc1 {Lr0}
buffer_load_dword v24, v30, {R3}, s76 offen
{Lxi}:
buffer_load_dwordx4 v[8:11], v25, {R0}, s69 offen
s_barrier
""")
xstage()
a(f"s_lshl_b32 s66, {sCB}, 7")
srd(R0, P_WQ, 512 * 1024, "s66")
Lnw = a.label("nw")
a(f"""
s_cmp_lt_u32 s0, 2
s_cbranch_scc1 {Lnw}
s_and_b32 s3, {sRB}, 3
s_lshl_b32 s3, s3, 1
s_add_u32 s3, s3, s0
s_sub_u32 s3, s3, 2
s_lshl_b32 s3, s3, 16
v_lshlrev_b32 v4, 10, v0
buffer_load_dword v26, v4, {R0}, s3 offen
s_waitcnt vmcnt(17)
""")
silu8(8, 8)
a(f"s_waitcnt vmcnt(1)\ns_branch {Lxw}\n{Lnw}:\ns_waitcnt vmcnt(16)")
silu8(8, 8)
a(f"s_waitcnt vmcnt(0)\ns_branch {Lxw}\n{Lr0}:\nbuffer_load_dwordx4 v[8:11], v25, {R0}, s69 offen\ns_barrier")
xstage()
a("v_lshl_add_u32 v21, v16, 5, v18")
for n in range(16): a(f"s_mov_b32 m0, {L_WKV + n*1024}\ns_movk_i32 s3, {n*1024}\nbuffer_load_dwordx4 v21, {R3}, s3 offen lds")
a(f"s_mul_i32 s3, s2, 768\ns_add_u32 s3, s3, {F_HOP}\ns_mov_b32 exec_hi, 0xffff\nbuffer_store_dwordx4 v[36:39], v3, {WS}, s3 offen sc1\ns_mov_b64 exec, -1\ns_waitcnt vmcnt(33)")
silu8(8, 8)
a(f"s_waitcnt vmcnt(17)\n{Lxw}:")
stamp("xin")
a(f"""
v_lshrrev_b32 v4, 1, v1
v_xor_b32 v4, v4, v2
v_lshlrev_b32 v4, 4, v4
v_lshl_add_u32 v4, v1, 7, v4
v_add_u32 v4, s67, v4
v_xor_b32 v5, 64, v4
s_waitcnt lgkmcnt(0)
s_add_u32 {sEP}, {sEP}, 1
s_and_b32 {sTAG}, {sEP}, 0xffff
""")
for T in range(16): a(f"ds_read_b128 {vr(64+4*T,4)}, v{4 + (T & 1)} offset:{(T >> 1)*2048}")
a(f"s_lshl_b32 s66, {sCB}, 7")
srd(R0, P_WQ, 512 * 1024, "s66")
a(f"""
v_lshrrev_b32 v4, 3, v0
v_bfe_u32 v5, v0, 1, 2
v_bfe_u32 v6, v4, 1, 1
v_xor_b32 v5, v5, v6
v_lshlrev_b32 v5, 5, v5
v_lshl_add_u32 v5, v4, 10, v5
v_add_u32 v19, v5, v18
v_xor_b32 v20, 64, v19
""")
a(f"s_lshl_b32 s66, {sW}, 17")
nst = [0]
def stage():
    n = nst[0]; nst[0] += 1
    a(f"s_mov_b32 m0, s67\ns_add_u32 s67, s67, 1024\nbuffer_load_dwordx4 v{19 + (n & 1)}, {R0}, s66 offen lds\ns_add_u32 s66, s66, 8192")
for i in range(64):
    if i % 4 == 0: a(f"s_waitcnt lgkmcnt({15 - i // 4})")
    a(f"v_lshlrev_b32 v{128+2*i}, 16, v{64+i}\nv_and_b32 v{129+2*i}, 0xffff0000, v{64+i}")
for k in range(4): a(f"v_pk_add_f32 {vr(32+2*k,2)}, {vr(128+4*k,2)}, {vr(130+4*k,2)}")
for k in range(4): a(f"v_pk_mul_f32 {vr(40+2*k,2)}, {vr(128+2*k,2)}, {vr(128+2*k,2)}")
for i in range(4, 64):
    if i >= 8: a(f"v_pk_add_f32 {vr(32+2*(i%4),2)}, {vr(32+2*(i%4),2)}, {vr(128+2*i,2)}")
    a(f"v_pk_fma_f32 {vr(40+2*(i%4),2)}, {vr(128+2*i,2)}, {vr(128+2*i,2)}, {vr(40+2*(i%4),2)}")
    if i % 6 == 4: stage()
for b in (32, 40):
    a(f"v_pk_add_f32 {vr(b,2)}, {vr(b,2)}, {vr(b+2,2)}\nv_pk_add_f32 {vr(b+4,2)}, {vr(b+4,2)}, {vr(b+6,2)}\nv_pk_add_f32 {vr(b,2)}, {vr(b,2)}, {vr(b+4,2)}\nv_add_f32 v{b}, v{b}, v{b+1}")
xgroup_sum2(32, 33, 40, 41)
finish_stats([(32, 40, 34, 36, None)], 512)
a("v_mul_f32 v34, v34, v36")
for i in range(64):
    a(f"v_pk_fma_f32 {vr(128+2*i,2)}, {vr(128+2*i,2)}, v[36:37], v[34:35] op_sel_hi:[1,0,0]")
    if i % 8 == 0 and nst[0] < 16: stage()
assert nst[0] == 16
a(f"s_mov_b32 s23, {WS_MODT}")
for i in range(4): a(f"buffer_load_dwordx4 {vr(40+4*i,4)}, v3, {WS}, s23 offen offset:{i*1024} sc1")
Lna = a.label("nkvf")
a(f"s_cmp_eq_u32 s0, 0\ns_cbranch_scc0 {Lna}\nv_add_u32 v7, {L_WKV}, v17\ns_waitcnt vmcnt(21)")
for T in range(16): a(f"ds_read_b64_tr_b16 {ar(4*T,2)}, v7 offset:{T*1024}\nds_read_b64_tr_b16 {ar(4*T+2,2)}, v7 offset:{T*1024+256}")
a(f"{Lna}:")
stamp("ln1")
def tagcheck(regs):
    out = [f"v_xor_b32 v{r}, {sTAG}, v{r}" for r in regs]
    out.append(f"v_or3_b32 v4, v{regs[0]}, v{regs[1]}, v{regs[2]}")
    for i in range(3, len(regs) - 1, 2): out.append(f"v_or3_b32 v4, v4, v{regs[i]}, v{regs[i+1]}")
    out.append(f"v_or_b32 v4, v4, v{regs[-1]}\nv_and_b32 v4, 0xffff, v4\nv_cmp_ne_u32 vcc, 0, v4")
    return "\n".join(out)
BKA = int(([x[4:] for x in XP if x.startswith("bka:")] or ["5"])[0])
def setup_scalars():
    Lr2, Lr3, Lre = (a.label(x) for x in ("r2", "r3", "re"))
    a(f"""
s_mul_i32 s77, {sW}, 12288
s_lshl_b32 s68, {sW}, 12
s_movk_i32 s74, 1024
s_movk_i32 s75, 4
s_movk_i32 s76, 8
s_movk_i32 s1, 2048
s_movk_i32 s20, 8192
s_cmp_eq_u32 {sW}, 2
s_cbranch_scc1 {Lr2}
s_cmp_eq_u32 {sW}, 3
s_cbranch_scc1 {Lr3}
s_and_b32 s64, {sRB}, 15
s_mul_i32 s64, s64, 114688
s_lshr_b32 s3, {sRB}, 4
s_mul_i32 s3, s3, 1792
s_add_u32 s64, s64, s3
s_mul_i32 s3, {sCB}, 224
s_add_u32 s64, s64, s3
s_lshl_b32 s3, {sW}, 7
s_add_u32 s64, s64, s3
""")
    srd(R2, P_WIN, 512 * 3584, "s64")
    a(f"""
s_movk_i32 s74, 3584
s_movk_i32 s20, {8*3584}
s_mov_b32 s21, {16*3584}
s_mov_b32 s22, {24*3584}
s_lshl_b32 s36, {sCB}, 5
s_add_u32 s36, s36, {sRB}
s_mul_i32 s36, s36, {SLOT}
s_add_u32 s36, s36, s68
s_add_u32 s36, s36, {WS_WINF}
s_mov_b32 s24, s36
s_cmp_eq_u32 {sW}, 0
s_cselect_b32 s37, s36, {WS_SIZE}
s_branch {Lre}
{Lr2}:
s_min_u32 s67, {sRB}, 27
s_mul_i32 s64, s67, 37
s_lshr_b32 s64, s64, 8
s_mul_i32 s3, s64, 7
s_sub_u32 s65, s67, s3
s_mul_i32 s64, s64, 224
s_lshl_b32 s3, s65, 5
s_add_u32 s66, s3, 16
s_cmp_lt_u32 s65, 3
s_cselect_b32 s3, s3, s66
s_cmp_eq_u32 s65, 6
s_cselect_b32 s3, 96, s3
s_cselect_b32 s21, 112, 16
s_cselect_b32 s75, 8, 4
s_cselect_b32 s76, 16, 8
s_cselect_b32 s1, 512, s1
s_lshl_b32 s21, s21, 10
s_add_u32 s22, s21, 8192
s_add_u32 s64, s64, s3
s_lshl_b32 s64, s64, 10
s_lshl_b32 s3, {sCB}, 7
s_add_u32 s64, s64, s3
""")
    srd(R2, P_WOUT, 896 * 1024, "s64")
    a(f"""
s_mul_i32 s3, s67, 37
s_lshr_b32 s3, s3, 8
s_sub_u32 s36, s67, s3
s_add_u32 s3, s3, 24
s_cmp_eq_u32 s65, 6
s_cselect_b32 s3, s3, s36
s_mul_i32 s36, {sCB}, 28
s_add_u32 s36, s36, s3
s_lshl_b32 s36, s36, 12
s_add_u32 s36, s36, {WS_WOUTF}
s_cmp_lt_u32 {sRB}, 28
s_cselect_b32 s36, s36, {WS_SIZE}
s_mov_b32 s37, s36
s_mov_b32 s24, s36
s_branch {Lre}
{Lr3}:
s_lshr_b32 s67, {sRB}, 1
s_lshl_b32 s64, s67, 15
s_lshl_b32 s3, {sCB}, 7
s_add_u32 s64, s64, s3
""")
    srd(R2, P_WO, 512 * 1024, "s64")
    a(f"""
s_movk_i32 s21, 16384
s_movk_i32 s22, 24576
s_movk_i32 s75, 16
s_movk_i32 s76, 4
s_movk_i32 s1, 1024
s_lshl_b32 s36, {sCB}, 4
s_add_u32 s36, s36, s67
s_lshl_b32 s36, s36, 12
s_add_u32 s36, s36, {WS_WOF}
s_bitcmp1_b32 {sRB}, 0
s_cselect_b32 s37, s36, {WS_SIZE}
s_cselect_b32 s36, {WS_SIZE}, s36
s_mov_b32 s24, s37
{Lre}:
s_and_b32 s64, s2, 15
s_mul_i32 s64, s64, {32*6144}
s_lshr_b32 s65, s2, 4
s_lshl_b32 s3, s65, 7
s_add_u32 s64, s64, s3
s_lshl_b32 s3, {sW}, 5
s_add_u32 s64, s64, s3
s_cmp_lt_u32 s65, 8
s_cselect_b32 s3, 0, 2048
s_add_u32 s64, s64, s3
s_add_u32 s64, s64, 2048
""")
    srd(R3, P_WMOD, 512 * 6144, "s64")
    a(f"""
s_lshl_b32 s34, s65, 8
s_lshl_b32 s3, {sW}, 6
s_add_u32 s34, s34, s3
s_add_u32 s34, s34, {WS_G2}
s_lshl_b32 s35, {sW}, 10
s_lshl_b32 s64, {sRB}, 18
s_add_u32 s64, s64, s35
s_add_u32 s35, s35, {L_G2}
s_lshr_b32 s3, {sRB}, 4
s_mul_i32 s3, s3, 3584
s_mul_i32 s28, {sCB}, 448
s_add_u32 s28, s28, s3
s_lshl_b32 s3, {sW}, 8
s_add_u32 s28, s28, s3
s_add_u32 s28, s28, {WS_C12}
s_cmp_lt_u32 {sW}, 2
s_cselect_b32 s28, s28, {WS_SIZE}
s_add_u32 s29, s28, 7168
s_and_b32 s25, {sRB}, 15
s_lshl_b32 s25, s25, 7
s_add_u32 s25, s25, {WS_MODT + 3*2048}
""")
    srd(R0, P_WSP, 2048 * 4096, "s64")
    a(f"s_lshl_b32 s66, {sCB}, 7\ns_add_u32 s64, s66, s55")
    srd(R1, P_X, 2048 * 1024, "s64")
    for s_ in range(4): a(f"s_add_u32 s3, {sW}, {s_}\ns_and_b32 s3, s3, 3\ns_lshl_b32 s{70+s_}, s3, 16")
    a(f"""
s_lshr_b32 s31, s55, 4
s_add_u32 s31, s31, s66
s_add_u32 s31, s31, {WS_ST1}
s_lshl_b32 s19, {sCB}, 15
s_lshl_b32 s39, {sCB}, 9
s_mov_b32 s38, {F_P}
s_add_u32 s39, s39, s38
s_lshl_b32 s3, {sW}, 7
s_add_u32 s39, s39, s3
s_and_b32 s3, {sRB}, 3
s_lshl_b32 s3, s3, 2
s_add_u32 s3, s3, {sW}
s_mul_i32 s26, s3, {SLOT}
s_mul_i32 s3, {sCB}, {28*4096}
s_add_u32 s26, s26, s3
s_add_u32 s26, s26, {WS_WOUTF}
s_lshl_b32 s69, {sCB}, 16
s_add_u32 s69, s69, {WS_WOF}
s_lshl_b32 s64, {sW}, 11
s_add_u32 s65, s64, {L_KV}
s_add_u32 s64, s64, {WS_KV}
s_mul_i32 s66, {sIDX}, {33*128}
s_add_u32 s66, s66, {WS_KV}
s_lshl_b32 s67, {sRB}, 10
s_lshl_b32 s16, s55, 1
s_lshl_b32 s3, {sCB}, 11
s_add_u32 s16, s16, s3
s_add_u32 s16, s16, {WS_X}
s_add_u32 s17, s16, 16384
s_lshl_b32 s3, {sCB}, 8
s_add_u32 s18, s3, {WS_G2}
s_add_u32 s30, s3, {WS_MOD + 4*2048}
""")
assert F_B == 0

STAG = "stag" in XP
if STAG: a("s_cmp_eq_u32 s0, 0\ns_cbranch_scc0 L_ns1")
setup_scalars()
a("L_ns1:")
PARLD = "\n".join(f"buffer_load_dwordx4 {vr(40+4*i,4)}, v3, {WS}, s23 offen offset:{i*1024} sc1" for i in range(4))
a("s_waitcnt vmcnt(0)")
a(tagcheck(list(range(40, 56))))
a("s_cbranch_vccz L_parok")
poll(PARLD, tagcheck(list(range(40, 56))), "-1", BKA)
a(f"L_parok:\ns_lshl_b32 s3, {sW}, 12\nv_add_u32 v5, s3, v3")
for i in range(4): a(f"ds_write_b128 v5, {vr(40+4*i,4)} offset:{L_PAR + i*1024}")
stamp("barP")
if STAG:
    a("s_cmp_eq_u32 s0, 0\ns_cbranch_scc1 L_ns2")
    setup_scalars()
    a(f"s_lshl_b32 s3, {sW}, 12\nL_ns2:")
LV, Lh, Lnkv, LV2, Lst, Lkve = (a.label(x) for x in ("isV", "hdone", "nokv", "isV2", "kvst", "kve"))
a(f"v_lshlrev_b32 v19, 5, v2\nv_add_u32 v19, s3, v19\ns_waitcnt lgkmcnt(0)\ns_bitcmp1_b32 {sCB}, 0\ns_cbranch_scc1 {LV}")
def hpass(isV):
    OFF = (2048, 0, 2064, 16)
    rd = lambda T, k: a(f"ds_read_b128 {vr(32 + (T & 1)*16 + 4*k, 4)}, v19 offset:{OFF[k] + T*128}")
    def kv(T):
        A, B = (vr(64+4*T,4), ar(4*T,4)) if isV else (ar(4*T,4), vr(64+4*T,4))
        a(f"v_mfma_f32_16x16x32_bf16 v[12:15], {A}, {B}, {'0' if T == 0 else 'v[12:15]'}")
    for T in range(2):
        for k in range(4): rd(T, k)
    for T in range(16):
        b = 32 + (T & 1) * 16
        for hf in range(2):
            a(f"s_waitcnt lgkmcnt({(6 if T < 15 else 2 - 2*hf) if T < 14 or hf == 0 and T == 14 else (4 if T == 14 else 2 - 2*hf)})")
            for k in range(2):
                x = 128 + 8*T + 4*hf + 2*k
                a(f"v_pk_fma_f32 {vr(x,2)}, {vr(x,2)}, {vr(b+8*hf+2*k,2)}, {vr(b+8*hf+4+2*k,2)}")
            if hf == 0 and T: kv(T - 1)
            if T + 2 < 16: rd(T + 2, 2*hf); rd(T + 2, 2*hf + 1)
            for k in range(2):
                x = 128 + 8*T + 4*hf + 2*k
                a(f"v_cvt_pk_bf16_f32 v{64+4*T+2*hf+k}, v{x}, v{x+1}")
    kv(15)
hpass(False)
a(f"s_branch {Lh}\n{LV}:")
hpass(True)
a(f"{Lh}:")
if "ms" in XP: stamp("h")
a(f"""
s_cmp_eq_u32 s0, 0
s_cbranch_scc0 {Lnkv}
s_lshl_b32 s23, {sRB}, 1
s_lshr_b32 s3, {sW}, 1
s_add_u32 s23, s23, s3
s_mul_i32 s23, s23, {REC}
s_add_u32 s23, s23, {WS_KV}
s_and_b32 s27, {sW}, 1
v_lshrrev_b32 v20, 5, v0
v_cvt_pk_bf16_f32 v36, v12, v13
v_cvt_pk_bf16_f32 v37, v14, v15
v_mov_b32 v38, v36
v_mov_b32 v39, v37
v_permlane16_swap_b32 v36, v38
v_permlane16_swap_b32 v37, v39
s_bitcmp1_b32 {sCB}, 0
s_cbranch_scc1 {LV2}
v_lshlrev_b32 v20, 9, v20
v_lshl_add_u32 v20, v1, 4, v20
s_lshl_b32 s27, s27, 8
s_add_u32 s23, s23, s27
s_add_u32 s23, s23, 1088
s_mov_b32 exec_lo, 0x0000ffff
s_mov_b32 exec_hi, 0x0000ffff
s_branch {Lst}
{LV2}:
v_mul_u32_u24 v20, 272, v20
v_and_b32 v4, 31, v0
v_lshl_add_u32 v20, v4, 4, v20
s_mul_i32 s27, s27, 544
s_add_u32 s23, s23, s27
s_mov_b32 exec_lo, 0xffff0000
s_mov_b32 exec_hi, 0xffff0000
v_mov_b32 v36, 0x3f803f80
v_mov_b32 v37, 0x3f803f80
v_mov_b32 v38, 0x3f803f80
v_mov_b32 v39, 0x3f803f80
s_mov_b32 exec_lo, 0x0001ffff
s_mov_b32 exec_hi, 0x0001ffff
{Lst}:
buffer_store_dwordx4 v[36:39], v20, {WS}, s23 offen sc1
s_mov_b64 exec, 1
s_add_u32 s3, {sXCC}, 1
v_mov_b32 v20, s3
s_lshl_b32 s23, {sCB}, 7
s_add_u32 s23, s23, s67
s_waitcnt vmcnt(0)
buffer_store_dword v20, v0, {WS}, s23 offen sc1
s_mov_b64 exec, -1
""")
if "ms" in XP: stamp("arr")
a(f"{Lnkv}:")
def trbase128(dst, rowexpr_v, fexpr_v, lbase):
    a(f"v_and_b32 v6, 3, v1\nv_lshlrev_b32 v6, 3, v6\nv_lshl_add_u32 v6, v{rowexpr_v}, 7, v6\nv_lshl_add_u32 v6, v{fexpr_v}, 5, v6\nv_add_u32 v{dst}, {lbase}, v6")
    for j in range(1, 4): a(f"v_xor_b32 v{dst+j}, {j*32}, v{dst}")
a("v_lshrrev_b32 v4, 2, v1\nv_bfe_u32 v5, v1, 3, 1\nv_and_b32 v7, 1, v2\nv_lshl_or_b32 v5, v7, 1, v5\nv_lshl_add_u32 v4, v2, 3, v4")
trbase128(24, 4, 5, L_WQ)
a("s_barrier")
fragloop(16, 4,
         lambda T, j: a(f"ds_read_b64_tr_b16 {vr(32+(T&1)*16+4*j,2)}, v{24+j} offset:{T*4096}\nds_read_b64_tr_b16 {vr(34+(T&1)*16+4*j,2)}, v{24+j} offset:{T*4096+512}"),
         lambda T, j: a(f"v_mfma_f32_16x16x32_bf16 {vr(128+4*j,4)}, {vr(32+(T&1)*16+4*j,4)}, {vr(64+4*T,4)}, {'0' if T == 0 else vr(128+4*j,4)}"), nper=2)
for i in range(16): a(f"v_mul_f32 v{128+i}, {fbits(0.25*math.log2(math.e))}, v{128+i}")
for i in range(8): a(f"v_cvt_pk_bf16_f32 v{16+i}, v{128+2*i}, v{129+2*i}")
for e in range(2): a(f"v_permlane16_swap_b32 v{16+4*e}, v{18+4*e}\nv_permlane16_swap_b32 v{17+4*e}, v{19+4*e}")
stamp("q")
img32_regs(212, 213)
a(f"""
v_add_u32 v24, {L_KV + 1088}, v3
v_add_u32 v25, {31*REC}, v24
v_add_u32 v26, {31*REC}, v25
v_lshrrev_b32 v4, 5, v0
v_mul_u32_u24 v4, 272, v4
v_and_b32 v5, 31, v0
v_lshl_add_u32 v4, v5, 4, v4
v_add_u32 v27, {L_KV}, v4
v_mov_b32 v4, 0x40000
v_cmp_lt_u32 vcc, {16 if PADZERO else 99}, v5
v_mov_b32 v31, {OOB}
v_mov_b32 v30, 0xdddd
v_cndmask_b32 v27, v27, v4, vcc
v_add_u32 v28, {31*REC}, v27
v_add_u32 v29, {31*REC}, v28
v_lshrrev_b32 v7, 3, v0
v_and_b32 v6, 7, v0
v_xor_b32 v5, v6, v2
v_lshlrev_b32 v5, 4, v5
v_lshl_add_u32 v168, v7, 12, v5
v_xor_b32 v169, 64, v168
v_add_u32 v169, {0x8000 - 1024}, v169
v_lshrrev_b32 v4, 1, v1
v_xor_b32 v4, v4, v2
v_lshlrev_b32 v4, 4, v4
v_lshl_add_u32 v4, v1, 7, v4
v_add_u32 v170, s77, v4
v_xor_b32 v171, 64, v170
v_lshlrev_b32 v4, 10, v1
v_lshl_add_u32 v172, v2, 3, v4
v_lshrrev_b32 v4, 2, v0
v_lshlrev_b32 v4, 12, v4
v_and_b32 v5, 3, v0
v_lshl_add_u32 v4, v5, 7, v4
v_cmp_gt_u32 vcc, 32, v0
v_lshlrev_b32 v5, 7, v6
v_lshl_add_u32 v5, v7, 12, v5
v_cndmask_b32 v173, {"v31, v4" if "half" in XP else "v5, v5"}, vcc
v_lshlrev_b32 v6, 4, v6
v_mad_u32_u24 v176, v7, s74, v6
v_lshrrev_b32 v4, 2, v1
v_and_b32 v5, 1, v2
v_mad_u32_u24 v4, v5, s75, v4
v_lshrrev_b32 v5, 1, v2
v_mad_u32_u24 v4, v5, s76, v4
v_and_b32 v5, 3, v1
v_lshlrev_b32 v5, 3, v5
v_lshl_add_u32 v4, v4, 7, v5
v_add_u32 v177, s68, v4
v_add_u32 v178, s1, v177
v_lshlrev_b32 v4, 7, v0
v_cmp_gt_u32 vcc, 32, v0
v_cmp_gt_u32 s[74:75], 33, v0
v_mov_b32 v199, 1
v_lshlrev_b32 v218, 4, v2
v_cndmask_b32 v196, v31, v4, vcc
v_cndmask_b32 v197, v31, v4, s[74:75]
v_cmp_gt_u32 vcc, 14, v0
v_cmp_gt_u32 s[74:75], 4, v0
s_nop 0
v_cndmask_b32 v175, v31, v4, vcc
s_lshl_b32 s27, {sCB}, 9
s_add_u32 s27, s27, {F_P}
v_cndmask_b32 v174, v31, v4, s[74:75]
v_cmp_eq_u32 vcc, 0, v0
v_and_b32 v7, 1, v0
v_lshlrev_b32 v5, 4, v7
v_cndmask_b32 v198, v31, v4, vcc
s_movk_i32 s3, 6144
v_mad_u32_u24 v212, v212, s3, v5
v_add_u32 v213, s35, v213
v_lshlrev_b32 v4, 2, v0
v_cmp_gt_u32 vcc, 16, v0
s_cmp_eq_u32 {sW}, 0
s_cselect_b32 s3, 64, 48
v_cmp_gt_u32 s[74:75], s3, v0
v_lshlrev_b32 v5, 11, v7
v_cndmask_b32 v214, v31, v4, vcc
v_cndmask_b32 v215, v31, v4, s[74:75]
v_sub_u32 v4, 2048, v5
v_add_u32 v4, v218, v4
v_and_b32 v5, 2, v0
v_cmp_eq_u32 vcc, 0, v5
v_mul_u32_u24 v5, {WS_ST2 - WS_ST1}, v7
v_cndmask_b32 v216, v31, v4, vcc
v_lshlrev_b32 v4, 7, v1
v_lshl_add_u32 v4, v2, 14, v4
v_add_u32 v4, s16, v4
v_cmp_gt_u32 vcc, 32, v0
v_cmp_gt_u32 s[74:75], 2, v0
v_mov_b64 v[80:81], 0
v_mov_b64 v[82:83], 0
v_cndmask_b32 v202, v31, v4, vcc
v_cndmask_b32 v217, v31, v5, s[74:75]
""")
for i in range(2, 16): a(f"v_mov_b64 {vr(80+2*i,2)}, 0")
if "ms" in XP: stamp("setup")
BKB = int(([x[3:] for x in XP if x.startswith("bk:")] or ["8"])[0])
a(f"v_lshlrev_b32 v5, 7, v0\ns_lshl_b32 s23, {sW}, 13")
poll(f"buffer_load_dword v4, v5, {WS}, s23 offen sc1", "v_cmp_eq_u32 vcc, 0, v4", "-1", BKB)
a("s_waitcnt lgkmcnt(0)\ns_barrier")
stamp("barB")
Lne = a.label("noep")
a(f"s_or_b32 s3, s2, {sW}\ns_cbranch_scc1 {Lne}\nv_mov_b32 v4, {sEP}\ns_mov_b32 s3, {WS_EPOCH}\nbuffer_store_dword v4, v198, {WS}, s3 offen sc1\n{Lne}:")
a(f"s_cmp_eq_u32 {sW}, 3\ns_cbranch_scc0 L_nkt\nbuffer_load_dword v200, v197, {WS}, s66 offen sc1\nL_nkt:")
vm.n = 0
def kv_group(i):
    if i < 16:
        return (["s_mov_b32 m0, s65"], [f"buffer_load_dwordx4 v3, {WS}, s64 offen sc1 lds", f"buffer_load_dwordx4 v3, {WS}, s64 offen offset:1024 sc1 lds"],
                f"kvg{i}", ["s_add_u32 s64, s64, 8192", "s_add_u32 s65, s65, 8192"])
    return ([f"s_lshl_b32 s3, {sW}, 10", "s_sub_u32 s64, s64, s3", "s_sub_u32 m0, s65, s3"], [f"buffer_load_dwordx4 v3, {WS}, s64 offen sc1 lds"], "kvg16", [])
def emit_item(x):
    pre, ins, tag, post = x
    for p in pre: a(p)
    for q_ in ins: vm.op(q_, tag)
    for p in post: a(p)
for i in range(2): emit_item(kv_group(i))

def win_items(half, grp, slot0, tag):
    ld = lambda i: f"buffer_load_dwordx4 v3, {WS}, s74 offen offset:{(i & 3)*1024} sc1 lds"
    first = [f"s_add_u32 s74, s21, {4*grp}", "s_and_b32 s74, s74, 15", "s_add_u32 s74, s74, s22", f"s_mul_i32 s74, s74, {SLOT}", f"s_add_u32 s74, s74, {WS_WINF + half*16*SLOT}"] + slot0
    return [(first + ["s_mov_b32 m0, s75"], [ld(0), ld(1)], tag, []), (["s_mov_b32 m0, s75"], [ld(2), ld(3)], tag, ["s_add_u32 s74, s74, 4096", "s_add_u32 s75, s75, 4096"]),
            (["s_mov_b32 m0, s75"], [ld(4), ld(5)], tag, []), (["s_mov_b32 m0, s75"], [ld(6)], tag, [])]
def lin_slot(base): return [f"s_mul_i32 s75, {sW}, {SLOT}", f"s_add_u32 s75, s75, {base}"]

def kaddr(t): return f"v{24 + t//31} offset:{(t % 31)*REC}"
def vaddr(t, m): return f"v{27 + t//31} offset:{(t % 31)*REC + m*544}"
Kb = lambda t: vr(144 + 4*(t & 1), 4)
Vb = lambda t, m: vr(152 + 8*(t & 1) + 4*m, 4)
Sb = lambda u: 32 + 16*(u % 3)
Q = lambda e: vr(16 + 4*e, 4)
O = lambda e: 80 + 16*e
C = lambda e: 112 + 16*e
vm.wait("kvg0"); a("s_barrier")
stamp("kv0")
if "clk" in XP: a("s_memtime s[96:97]\ns_memrealtime s[98:99]\ns_waitcnt lgkmcnt(0)")
a(f"ds_read_b128 {Kb(0)}, {kaddr(0)}\nds_read_b128 {Kb(1)}, {kaddr(1)}\ns_waitcnt lgkmcnt(1)")
for e in range(2): a(f"v_mfma_f32_32x32x16_bf16 {vr(32+16*e,16)}, {Kb(0)}, {Q(e)}, 0")
def rowmax(first):
    for i in range(0, 16, 2):
        for e in range(2):
            if first and i == 0: a(f"v_max_f32 v{4+e}, v{32+16*e}, v{33+16*e}")
            else: a(f"v_max3_f32 v{4+e}, v{32+16*e+i}, v{33+16*e+i}, v{4+e}")
def negbcast():
    a("v_mov_b32 v6, v4\nv_mov_b32 v7, v5\nv_permlane32_swap_b32 v4, v6\nv_permlane32_swap_b32 v5, v7")
    for e in range(2): a(f"v_max_f32 v{4+e}, v{4+e}, v{6+e}")
    for e in range(2): a(f"v_sub_f32 v{C(e)}, 0, v{4+e}\nv_sub_f32 v{C(e)+1}, 0, v{4+e}")
    for e in range(2):
        for i in range(2, 16, 2): a(f"v_mov_b64 {vr(C(e)+i,2)}, {vr(C(e),2)}")
rowmax(True); negbcast()
a(f"v_mfma_f32_32x32x16_bf16 {vr(Sb(0),16)}, {Kb(0)}, {Q(0)}, {vr(C(0),16)}")

plan = {}
TW, TARR, TK, TW2 = (int(x) for x in ([x[3:] for x in XP if x.startswith('tw:')] or ['6,28,8,13'])[0].split(','))
TP, TR = 19, 28
def put(t, slot, x): plan.setdefault((t, slot), []).append(x)
PREV = {"e1x": ("e0", 0), "o0": ("e1", 0), "e1": ("e0", 0), "eq": ("o1", -1), "oq": ("e1", 0), "e0": ("o1", -1)}
assert True
def vitem(t, slot, x):
    pre, ins, tag, post = x
    ps, dt = PREV[slot]
    pre = [p + " " for p in pre]
    m0 = [p for p in pre if " m0," in p]; rest = [p for p in pre if " m0," not in p]
    if t + dt < 0 or len(pre) > 2:
        pp, dd = PREV[ps] if ps in PREV else ("o0", 0)
        if t + dt + dd < 0: put(t, slot, ("salu", pre))
        else: put(t + dt + dd, pp + "a", ("salu", rest)); put(t + dt, ps + "a", ("salu", m0))
    else: put(t + dt, ps + "a", ("salu", pre))
    put(t, slot, ("vm", ins, tag, m0[0] if m0 else None))
    if post: put(t, slot, ("salu", post))
for i in range(2, 8): vitem((i - 2) // 2, ("e1", "o0")[i & 1], kv_group(i))
KVE = "kve" in XP
if KVE:
    for i in range(8, 16): vitem((i - 2) // 2, ("e1", "o0")[i & 1], kv_group(i))
    vitem(7, "e1", kv_group(16))
elif "half" in XP:
    for i in range(8, 16): vitem(TK + (i - 8) // 2, ("e1", "o0")[i & 1], kv_group(i))
    vitem(TK + 4, "e1", kv_group(16))
else:
    for i in range(8, 16): vitem(22 + (i - 7) // 2, ("o0", "e1")[i & 1], kv_group(i))
    vitem(27, "e1", kv_group(16))
for n, so in enumerate(("0", "s20", "s21", "s22")):
    vitem((8 if KVE else 3) + (n >> 1), ("e1", "o0")[n & 1], ([f"s_add_u32 m0, s68, {n*1024}"], [f"buffer_load_dwordx4 v176, {R2}, {so} offen lds"], "praw", []))
put(1, "eq", ("vm", [f"buffer_load_dword v253, v196, {WS}, s67 offen sc1"], None))
if PLAIN:
    for n in range(2):
        put(44 + n, "e1", ("vm", [f"buffer_store_dwordx4 v[16:19], v3, {WS}, s{16+n} offen offset:{i*1024} sc1" for i in range(2)], None))
    put(53, "e1", ("vm", [f"buffer_load_dword v200, v202, {WS}, 0 offen"], None))
for j in range(8): put(50 + j, "oq", ("vm", [f"buffer_load_dwordx4 {vr(220+4*j,4)}, v218, {WS}, s{18 if j < 4 else 30} offen offset:{(j & 3)*64} sc1"], None))
put(TW, "o0", ("vm", [f"buffer_load_dword v200, v173, {R0}, s19 offen"], None))
if "half" in XP: put(TW2, "o0", ("vm", [f"buffer_load_dword v200, v173, {R0}, s19 offen offset:512"], None))
put(3, "eq", ("vm", [f"buffer_load_dword v200, v198, {WS}, {sGRP} offen sc1"], None))
put(5, "oq", ("vm", [f"buffer_load_dword v200, v217, {WS}, s31 offen sc1"], None))
vitem(10 if KVE else 5, "e1x", (["s_mov_b32 m0, s35"], [f"buffer_load_dwordx4 v212, {R3}, 0 offen lds"], "praw", []))
put(2, "eq", ("vm", [f"buffer_load_dwordx4 v[204:207], v216, {WS}, s25 offen sc1"], None))
put(0, "oq", ("vm", [f"buffer_load_dwordx4 v[208:211], v216, {WS}, s25 offen offset:64 sc1"], None))
put(12, "e0a", ("salu", [f"s_lshl_b32 s21, {sCB}, 1", f"s_add_u32 s21, s21, {sW}"]))
put(12, "e1a", ("salu", [f"s_lshl_b32 s22, {sCB}, 5", "s_lshl_b32 s1, s21, 12"]))
put(TP - 1, "o1b", ("wait", "praw"))
put(TP - 1, "o1x", ("ds", ["ds_read_b64_tr_b16 v[220:221], v213", "ds_read_b64_tr_b16 v[222:223], v213 offset:256"]))
put(TP, "e0", ("salu", [f"v_cvt_pk_bf16_f32 v{204+i}, v{204+2*i}, v{205+2*i}" for i in range(4)]))
put(TP, "o0", ("salu", ["v_mfma_f32_16x16x32_bf16 v[224:227], v[8:11], v[220:223], 0"]))
put(TP + 2, "e0", ("salu", [f"v_mfma_f32_16x16x32_bf16 {vr(228+4*j,4)}, v[204:207], {vr(180+4*j,4)}, 0" for j in range(4)]))
put(TP + 3, "e0", ("salu", ["s_mov_b32 exec_lo, 0xffff0000", "s_mov_b32 exec_hi, 0", "v_mov_b32 v228, v232", "v_mov_b32 v229, v233",
                            "s_mov_b32 exec_lo, 0", "s_mov_b32 exec_hi, 0x0000ffff", "v_mov_b32 v228, v236", "v_mov_b32 v229, v237",
                            "s_mov_b32 exec_hi, 0xffff0000", "v_mov_b32 v228, v240", "v_mov_b32 v229, v241", "s_mov_b64 exec, -1"]))
put(22, "e1", ("vm", [f"buffer_atomic_add_f32 v228, v215, {WS}, s28 offen", f"buffer_atomic_add_f32 v229, v215, {WS}, s29 offen"], "pat"))
put(20, "e1", ("vm", [f"buffer_atomic_add_f32 v224, v214, {WS}, s34 offen"], None))
for j in range(4):
    put(TP + (j >> 1), ("eq", "oq")[j & 1], ("ds", [f"ds_read_b64_tr_b16 {vr(180+4*j,2)}, v177 offset:{j*32}", f"ds_read_b64_tr_b16 {vr(182+4*j,2)}, v178 offset:{j*32}"]))
put(20, "o0", ("vm", [f"buffer_store_dwordx4 {vr(180+4*j,4)}, v3, {WS}, s36 offen offset:{j*1024} sc1" for j in (0, 1)], None))
put(21, "o0", ("vm", [f"buffer_store_dwordx4 {vr(188,4)}, v3, {WS}, s24 offen offset:2048 sc1", f"buffer_store_dwordx4 {vr(192,4)}, v3, {WS}, s37 offen offset:3072 sc1"], "pst"))
put(TARR, "o1b", ("wait", "pat"))
put(TARR + 1, "eq", ("vm", [f"buffer_atomic_add v199, v198, {WS}, s39 offen sc1"], None))
put(41, "oq", ("vm", [f"buffer_load_dword v201, v174, {WS}, s27 offen sc1"], "pchk"))
put(47, "oq", ("vm", [f"buffer_load_dword v201, v196, {WS}, s38 offen sc1"], "gchk"))
for k in range(36):
    t, hf = TR + (k >> 1), k & 1
    if k < 32:
        T2, s_ = k >> 2, k & 3
        if s_ == 0: pass
        vitem(t, ("e1", "o0")[hf], ([f"s_add_u32 s75, s{70+s_}, {T2*128}", f"s_add_u32 m0, s77, {(k % 6)*2048}"],
                                    [f"buffer_load_dwordx4 v168, {R0}, s75 offen lds", f"buffer_load_dwordx4 v169, {R0}, s75 offen offset:1024 lds"], f"ring{k}", []))
    if k >= 4:
        T2, s_ = (k - 4) >> 2, (k - 4) & 3
        if hf == 0: put(t - 1, "o1b", ("wait", f"ring{k-3}"))
        for e_ in range(2): put(t, (("eq", "e0"), ("oq", "o1x"))[hf][e_], ("ds", [f"ds_read_b128 {ar(((2*T2+e_)*4+s_)*4,4)}, v{170+e_} offset:{((k-4) % 6)*2048}"]))
for grp, t0 in ((0, 44), (1, 56)):
    for n, x in enumerate(win_items(1, grp, lin_slot(slotA(4*grp)), f"z2g{grp}")): vitem(t0 + n, "o0", x)
if "g2p3" not in XP:
    for n, x in enumerate(win_items(1, 2, lin_slot(slotA(8)), "z2g2")): vitem(60 + (n >> 1), ("e1", "o0")[n & 1], x)
for n in range(8):
    pre = ([f"s_lshl_b32 s76, {sW}, 12"] if n == 0 else []) + (["s_and_b32 s74, s1, 0xffff", "s_add_u32 s74, s74, s69"] if n & 1 == 0 else [])
    post = ["s_add_u32 s1, s1, 16384", "s_add_u32 s76, s76, 16384"] if n & 1 else []
    vitem(48 + n, "o0", (pre + ["s_mov_b32 m0, s76"], [f"buffer_load_dwordx4 v3, {WS}, s74 offen offset:{(2*(n & 1) + i)*1024} sc1 lds" for i in range(2)], "wo", post))
for n in range(2): put(58 + n, "eq", ("vm", [f"buffer_load_dwordx2 {vr(8+2*j,2)}, v172, {R1}, 0 offen offset:{j*32}" for j in (2*n, 2*n + 1)], None))
if "noz1t" not in XP:
    for n in range(4):
        put(48 + 3*n + (n > 1), "e1", ("vm", [f"buffer_load_dword v200, v175, {WS}, s23 offen sc1"], None))
        put(48 + 3*n + (n > 1), "o1a", ("salu", ["s_add_u32 s23, s23, 1792"]))
    put(46, "o1a", ("salu", [f"s_and_b32 s23, {sRB}, 3", "s_lshl_b32 s23, s23, 2"]))
    put(47, "e0a", ("salu", [f"s_add_u32 s23, s23, {sW}", f"s_lshl_b32 s3, {sCB}, 5"]))
    put(47, "e1a", ("salu", ["s_add_u32 s23, s23, s3", f"s_mul_i32 s23, s23, {SLOT}"]))
    put(47, "o1a", ("salu", [f"s_add_u32 s23, s23, {WS_WINF}"]))
if "noextra" in XP: raise SystemExit("noextra unsupported")
syncs = {3: "kvg1", 7: "kvg7", 27: None, 31: "kvg16", 35: None, 48: None, 60: "wo"}
last_m0 = [None]
def slot(t, k):
    for x in plan.pop((t, k), []):
        if x[0] == "salu":
            for p in x[1]:
                a(p)
                if " m0," in p: last_m0[0] = p
        elif x[0] == "vm":
            if len(x) > 3 and x[3] is not None and x[3] is not last_m0[0]:
                a(x[3]); last_m0[0] = x[3]
            for q_ in x[1]: vm.op(q_, x[2])
        elif x[0] == "ds":
            for q_ in x[1]: a(q_)
        else: vm.wait(x[1])
for u in range(128):
    t, e = u >> 1, u & 1
    S = Sb(u)
    ex = [f"v_exp_f32 v{S+i}, v{S+i}" for i in range(16)]
    pf = "eo"[e]
    if u + 1 < 128:
        t1, e1 = (u + 1) >> 1, (u + 1) & 1
        a(f"v_mfma_f32_32x32x16_bf16 {vr(Sb(u+1),16)}, {Kb(t1)}, {Q(e1)}, {vr(C(e1),16)}")
    a("s_waitcnt lgkmcnt(0)")
    if e == 1 and t + 2 in syncs:
        if syncs[t + 2]: vm.wait(syncs[t + 2])
        a("s_barrier")
    if "tst" in XP and e == 0 and t in (2, 4, 8, 11, 14, 17, 20, 23, 26, 28, 30, 34, 38, 42, 46, 50, 54, 58, 61): stamp(f"t{t}")
    if u == 2*(TP - 2):
        a(tagcheck(list(range(204, 212))) + "\ns_nop 1\ns_and_b32 s3, vcc_lo, 0x33333333\ns_and_b32 s23, vcc_hi, 0x33333333\ns_or_b32 s3, s3, s23\ns_cbranch_scc1 L_xwait\nL_xok:")
    if u == 86:
        vm.wait("pchk")
        a("v_cmp_gt_u32 vcc, 32, v201\ns_nop 1\ns_and_b32 s3, vcc_lo, 15\ns_cbranch_scc1 L_pwait\nL_pok:")
    if u == 100:
        vm.wait("gchk")
        a("v_cmp_gt_u32 vcc, 32, v201\ns_nop 1\ns_cmp_lg_u32 vcc_lo, 0\ns_cbranch_scc1 L_gwait\nL_gok:")
    slot(t, pf + "q")
    for x in ex[0:3]: a(x)
    Sp, tp, ep = Sb(u - 1), (u - 1) >> 1, (u - 1) & 1
    if u > 0: a(f"v_smfmac_f32_32x32x32_bf16 {vr(O(ep),16)}, {Vb(tp,0)}, {vr(Sp,8)}, v30")
    slot(t, pf + "0b")
    if e == 0:
        slot(t, "e0a"); a(f"ds_read_b128 {Vb(t,0)}, {vaddr(t,0)}"); slot(t, "e0")
    else:
        slot(t, "o0"); slot(t, "o0a")
    for x in ex[3:7]: a(x)
    if u > 0: a(f"v_smfmac_f32_32x32x32_bf16 {vr(O(ep),16)}, {Vb(tp,1)}, {vr(Sp+8,8)}, v30")
    slot(t, pf + "1b")
    if e == 0:
        slot(t, "e1"); slot(t, "e1x"); slot(t, "e1a"); a(f"ds_read_b128 {Vb(t,1)}, {vaddr(t,1)}")
    else:
        slot(t, "o1a")
        if t + 2 < 64: a(f"ds_read_b128 {Kb(t+2)}, {kaddr(t+2)}")
        slot(t, "o1x")
    for x in ex[7:16]: a(x)
assert not plan, plan.keys()
for m in range(2): a(f"v_smfmac_f32_32x32x32_bf16 {vr(O(1),16)}, {Vb(63,m)}, {vr(Sb(127)+8*m,8)}, v30")
if "clk" in XP: a("s_memtime s[100:101]\ns_memrealtime s[78:79]\ns_waitcnt lgkmcnt(0)\ns_sub_u32 s100, s100, s96\ns_sub_u32 s101, s78, s98")
stamp("attn")
Lfb, Lok = a.label("fb"), a.label("ok")
def getl():
    for e in range(2): a(f"v_mov_b32 v{4+2*e}, v{O(e)+8}\nv_mov_b32 v{5+2*e}, v{O(e)+8}")
    for e in range(2): a(f"v_permlane32_swap_b32 v{4+2*e}, v{5+2*e}")
a(f"""
s_add_u32 s3, {sXCC}, 1
v_cmp_ne_u32 vcc, s3, v253
s_lshl_b32 s65, {sCB}, 2
v_add_u32 v254, s65, v198
v_lshlrev_b32 v255, 2, v0
s_and_b32 s3, vcc_lo, 0xff
s_cselect_b32 {sFAST}, 0, {0 if FORCE_SLOW else 1}
v_mov_b32 v32, {fbits(2.0**40 if not FORCE_FB else -1.0)}
""")
if "probe" in XP:
    a(f"s_cmp_eq_u32 {sFAST}, 0\ns_cbranch_scc0 L_pr\ns_mov_b32 s3, 12\nL_pr0:\ns_sleep 127\ns_sub_u32 s3, s3, 1\ns_cmp_lg_u32 s3, 0\ns_cbranch_scc1 L_pr0\nL_pr:")
getl()
a(f"v_add_f32 v5, v4, v6\nv_cmp_nlt_f32 vcc, v5, v32\ns_cbranch_vccnz {Lfb}\n{Lok}:")
for e in range(2): a(f"v_rcp_f32 v{4+2*e}, v{4+2*e}")
for e in range(2):
    for i in range(4): a(f"v_pk_mul_f32 {vr(O(e)+2*i,2)}, {vr(O(e)+2*i,2)}, {vr(4+2*e,2)} op_sel_hi:[1,0]")
for e in range(2):
    for i in range(4): a(f"v_cvt_pk_bf16_f32 v{64+4*e+i}, v{O(e)+2*i}, v{O(e)+2*i+1}")
both_data(lambda sc: [vm.op(f"buffer_store_dwordx4 {vr(64+4*e,4)}, v3, {WS}, s16 offen offset:{e*1024}{sc}") for e in range(2)])
rd3 = lambda T, j: a(f"ds_read_b128 {vr(144+(T&1)*16+4*j,4)}, v3 offset:{L_WO + T*4096 + j*1024}")
for j in range(4): rd3(0, j)
hop_signal(1)
stamp("opub")
def frag_load(T, tag):
    if T & 1 == 0: a("s_add_u32 s65, s65, 2048\ns_and_b32 s65, s65, 16383\ns_add_u32 s64, s65, s77")
    vm.op(f"buffer_load_dwordx4 {vr(64+4*T,4)}, v3, {WS}, s64 offen offset:{(T & 1)*1024} sc1", f"{tag}{T}")
AH = 8
g2items = win_items(1, 2, lin_slot(slotA(8)), "z2g2")
def bef3(T):
    if T == 2:
        round_bf16(list(range(220, 236)))
        for i in range(8): a(f"v_lshlrev_b32 v{32+2*i}, 16, v{8+i}\nv_and_b32 v{33+2*i}, 0xffff0000, v{8+i}")
        a(f"""
v_mov_b32 v31, v218
s_lshl_b32 s77, s55, 1
s_add_u32 s77, s77, {WS_X}
s_lshl_b32 s65, {sCB}, 11
s_lshr_b32 s68, s55, 4
s_lshl_b32 s3, {sCB}, 7
s_add_u32 s69, s68, s3
s_add_u32 s67, s69, {WS_ST1}
v_lshlrev_b32 v6, 3, v1
""")
        hop_wait(1)
        stamp("C")
        for t_ in range(2, 2 + AH): frag_load(t_, "o")
    if T >= 2: vm.wait(f"o{T}")
def aft3(T, j):
    if j == 0 and T >= 2 and T + AH < 16: frag_load(T + AH, "o")
    if j == 0 and 8 <= T < 12 and "g2p3" in XP: emit_item(g2items[T - 8])
fragloop(16, 4, rd3,
         lambda T, j: a(f"v_mfma_f32_16x16x32_bf16 {vr(128+4*j,4)}, {vr(144+(T&1)*16+4*j,4)}, {vr(64+4*T,4)}, {'0' if T == 0 else vr(128+4*j,4)}"),
         before=bef3, after=aft3, preissued=True)
stamp("p3mm")
for i in range(8): a(f"v_pk_fma_f32 {vr(32+2*i,2)}, {vr(128+2*i,2)}, {vr(220+2*i,2)}, {vr(32+2*i,2)}")
for i in range(8): a(f"v_cvt_pk_bf16_f32 v{8+i}, v{32+2*i}, v{33+2*i}")
for i in range(8): a(f"v_lshlrev_b32 v{32+2*i}, 16, v{8+i}\nv_and_b32 v{33+2*i}, 0xffff0000, v{8+i}")
for i in range(8): a(f"v_pk_mul_f32 {vr(236+2*i,2)}, {vr(236+2*i,2)}, {vr(32+2*i,2)}")
for i in range(8): a(f"v_cvt_pk_bf16_f32 v{64+i}, v{236+2*i}, v{237+2*i}")
both_data(lambda sc: [vm.op(f"buffer_store_dwordx4 {vr(64+4*p,4)}, v3, {WS}, s17 offen offset:{p*1024}{sc}") for p in range(2)])
a("v_pk_mul_f32 v[88:89], v[32:33], v[32:33]\nv_pk_add_f32 v[90:91], v[32:33], v[34:35]\nv_pk_mul_f32 v[94:95], v[34:35], v[34:35]\nv_pk_add_f32 v[96:97], v[36:37], v[38:39]")
for i in range(2, 8): a(f"v_pk_fma_f32 {vr(88 + 6*(i & 1),2)}, {vr(32+2*i,2)}, {vr(32+2*i,2)}, {vr(88 + 6*(i & 1),2)}")
for i in range(4, 8): a(f"v_pk_add_f32 {vr(90 + 6*(i & 1),2)}, {vr(90 + 6*(i & 1),2)}, {vr(32+2*i,2)}")
a("v_pk_add_f32 v[88:89], v[88:89], v[94:95]\nv_pk_add_f32 v[90:91], v[90:91], v[96:97]\nv_add_f32 v93, v88, v89\nv_add_f32 v92, v90, v91")
xgroup_sum2(92, 94, 93, 95)
a("s_mov_b64 exec, 0xffff")
both_data(lambda sc: vm.op(f"buffer_store_dwordx2 v[92:93], v6, {WS}, s67 offen{sc}"))
a(f"""
s_mov_b64 exec, -1
v_add_u32 v25, 0xe000, v3
v_add_u32 v26, 0xe000, v25
v_and_b32 v4, 7, v1
v_lshlrev_b32 v4, 7, v4
v_lshl_add_u32 v30, v2, 5, v4
v_lshlrev_b32 v4, 8, v2
v_lshl_add_u32 v27, v1, 3, v4
""")
stamp("p3ep")
hop_signal(2)
stamp("ypub")
WB = (32, 204)
def rdl(dst, addr):
    w_, off = divmod(addr, 0xe000)
    a(f"ds_read_b128 {vr(dst,4)}, v{(3, 25, 26)[w_]} offset:{off}")
a(f"""
s_barrier
s_and_b32 s3, {sW}, 1
s_mul_i32 s66, s3, 3584
s_lshl_b32 s3, s3, 10
s_add_u32 m0, s3, {L_SM}
s_mul_i32 s3, {sCB}, 448
s_add_u32 s66, s66, s3
s_add_u32 s66, s66, {WS_C12}
v_add_u32 v6, {7168 - 448}, v3
v_cmp_gt_u32 vcc, 28, v0
v_cndmask_b32 v6, v6, v3, vcc
""")
vm.op(f"buffer_load_dwordx4 v6, {WS}, s66 offen sc1 lds")
for x in win_items(1, 3, [f"s_mul_i32 s75, {sW}, {SLOT}", f"s_sub_u32 s75, s75, {SLOT}", f"s_cmp_eq_u32 {sW}, 0", f"s_cselect_b32 s75, {slotA(12)}, s75"], "z2g3"): emit_item(x)
for j in range(7): rdl(WB[0] + 4*j, slot_z2(0) + j*1024)
a(f"v_add_u32 v29, {L_SM}, v31\nv_lshlrev_b32 v24, 2, v1\nv_add_u32 v24, {L_SM + 1024}, v24\ns_add_u32 s66, s68, {WS_ST1}")
def d_wait():
    a(f"s_add_u32 s77, s77, 16384\ns_lshl_b32 s65, {sCB}, 11")
    hop_wait(2)
    stamp("D")
    vm.op(f"buffer_load_dwordx2 v[172:173], v27, {WS}, s66 offen sc1")
    vm.op(f"buffer_load_dwordx2 v[174:175], v27, {WS}, s66 offen offset:128 sc1", "st1")
    for t_ in range(2, 2 + AH): frag_load(t_, "y")
    a(f"v_lshlrev_b32 v4, 7, v0\nv_mov_b32 v27, {OOB}\nv_cmp_gt_u32 vcc, 14, v0\nv_cndmask_b32 v27, v27, v4, vcc")
    vm.wait("st1")
    a("v_pk_add_f32 v[172:173], v[172:173], v[174:175]")
    xgroup_sum2(172, 174, 173, 175)
    finish_stats([(172, 173, 62, 28, None)], 512)
    a(f"v_mul_f32 v62, v62, v28\nv_mov_b32 v60, {fbits(-2*math.log2(math.e)*math.sqrt(2/math.pi))}\nv_mov_b32 v61, v60")
    for i in range(4): a(f"ds_bpermute_b32 v{20+i}, v31, v28 offset:{4*i}\nds_bpermute_b32 v{16+i}, v31, v62 offset:{4*i}")
CP = [232, 234, 236, 238, 240, 242, 244]
z1items = {g_: win_items(0, g_, lin_slot(slotB(3) if g_ == 0 else slotA(4*(g_ - 1))), f"z1g{g_}") for g_ in range(4)}
def bef(T):
    if T == 2: d_wait()
    if T == 11: a("s_waitcnt lgkmcnt(0)\ns_barrier")
    if T >= 2: vm.wait(f"y{T}")
def aft(T, j):
    if j == 0 and T >= 2 and T + AH < 16: frag_load(T + AH, "y")
    if j == 3 and T in (8, 10, 12, 14): emit_item(z1items[0][(T - 8) // 2])
    if j == 3 and T in (9, 11, 13, 15):
        vm.op(f"buffer_load_dword v252, v27, {WS}, s26 offen sc1"); a("s_add_u32 s26, s26, 1792")
fragloop(16, 7, lambda T, j: rdl(WB[T & 1] + 4*j, slot_z2(T) + j*1024),
         lambda T, j: a(f"v_mfma_f32_16x16x32_bf16 {vr(128+4*j,4)}, {vr(64+4*T,4)}, {vr(WB[T & 1]+4*j,4)}, {'0' if T == 0 else vr(128+4*j,4)}"),
         before=bef, after=aft, preissued=True)
for j in range(7): a(f"ds_read2_b32 {vr(CP[j],2)}, v24 offset0:{j*16} offset1:{j*16 + 112}")
stamp("z2mm")
a(f"s_mov_b32 s64, {fbits(-2*math.log2(math.e)*math.sqrt(2/math.pi)*0.044715)}\ns_mov_b32 s65, s64\ns_mov_b32 s66, 1.0\ns_mov_b32 s67, 1.0\ns_waitcnt lgkmcnt(0)")
def gelu(acc, tmp, mid=None, mid2=None, mid0=None):
    P = range(14)
    for i in P: a(f"v_pk_mul_f32 {vr(tmp+2*i,2)}, {vr(acc+2*i,2)}, {vr(acc+2*i,2)}")
    for i in P: a(f"v_pk_fma_f32 {vr(tmp+2*i,2)}, {vr(tmp+2*i,2)}, s[64:65], v[60:61]")
    for i in P: a(f"v_pk_mul_f32 {vr(tmp+2*i,2)}, {vr(tmp+2*i,2)}, {vr(acc+2*i,2)}")
    if mid0: mid0()
    for i in range(28): a(f"v_exp_f32 v{tmp+i}, v{tmp+i}")
    if mid: mid()
    for i in P: a(f"v_pk_add_f32 {vr(tmp+2*i,2)}, {vr(tmp+2*i,2)}, s[66:67]")
    for i in range(28): a(f"v_rcp_f32 v{tmp+i}, v{tmp+i}")
    if mid2: mid2()
    for i in P: a(f"v_pk_mul_f32 {vr(acc+2*i,2)}, {vr(acc+2*i,2)}, {vr(tmp+2*i,2)}")
for i in range(14): a(f"v_pk_fma_f32 {vr(32+2*i,2)}, {vr(16+2*(i & 1),2)}, {vr(CP[i >> 1],2)}, {vr(CP[i >> 1],2)} op_sel:[0,0,1] op_sel_hi:[1,0,1]")
for i in range(14): a(f"v_pk_fma_f32 {vr(128+2*i,2)}, {vr(128+2*i,2)}, {vr(20+2*(i & 1),2)}, {vr(32+2*i,2)}")
zq = z1items[1] + z1items[2] + z1items[3]
body = capture(lambda: gelu(128, 32))
step = len(body) // 12
for i, x in enumerate(body):
    if i % step == 0 and zq: emit_item(zq.pop(0))
    a.items.append(x)
assert not zq
for j in range(7): rdl(WB[0] + 4*j, slot_z1(0) + j*1024) if False else None
for h in range(2):
    a(f"v_pk_add_f32 {vr(156+2*h,2)}, {vr(128+2*h,2)}, {vr(132+2*h,2)}\nv_pk_mul_f32 {vr(160+2*h,2)}, {vr(128+2*h,2)}, {vr(128+2*h,2)}")
for j in range(1, 7):
    for h in range(2):
        if j > 1: a(f"v_pk_add_f32 {vr(156+2*h,2)}, {vr(156+2*h,2)}, {vr(128+4*j+2*h,2)}")
        a(f"v_pk_fma_f32 {vr(160+2*h,2)}, {vr(128+4*j+2*h,2)}, {vr(128+4*j+2*h,2)}, {vr(160+2*h,2)}")
dppsum(range(156, 164), (8, 4, 2, 1))
a(f"s_and_b32 s71, {sEP}, 0xff\ns_movk_i32 s3, 0xff\nv_mov_b32 v4, s71")
for i in range(8): a(f"v_bfi_b32 v{156+i}, s3, v4, v{156+i}")
a(f"s_add_u32 s70, s69, {WS_ST2}\nv_lshlrev_b32 v6, 5, v2\ns_mov_b32 exec_lo, 0x00010001\ns_mov_b32 exec_hi, 0x00010001")
both(lambda sc: (vm.op(f"buffer_store_dwordx4 v[156:159], v6, {WS}, s70 offen{sc}"), vm.op(f"buffer_store_dwordx4 v[160:163], v6, {WS}, s70 offen offset:16{sc}", "sst")))
a("s_mov_b64 exec, -1")
vm.wait("z1g0")
a("s_barrier")
stamp("spub")
nwo = [0]
def wout_setup(n0):
    a(f"s_mul_i32 s3, {sCB}, {28*4096}\ns_lshl_b32 s76, {sW}, 10\ns_add_u32 s77, s3, s76\ns_add_u32 s77, s77, {WS_WOUTF}\ns_mul_i32 s75, {sCB}, {3*4096}")
def wout_one(tag):
    n = nwo[0]; nwo[0] += 1
    a("s_mov_b32 m0, s76\ns_add_u32 s74, s75, s77" if n < 24 else f"s_mov_b32 m0, s76\ns_add_u32 s74, s77, {n*4096}")
    vm.op(f"buffer_load_dwordx4 v3, {WS}, s74 offen sc1 lds", tag)
    a("s_add_u32 s76, s76, 4096")
    if n < 23: a(f"s_add_u32 s75, s75, 4096\ns_cmp_eq_u32 s75, {24*4096}\ns_cselect_b32 s75, 0, s75")
def z2_publish():
    a(f"s_add_u32 s70, s68, {WS_ST2}")
    chk = "\n".join(f"v_xor_b32 v{164+i}, s71, v{164+i}" for i in range(8))
    chk += "\nv_or3_b32 v4, v164, v165, v166\nv_or3_b32 v5, v167, v168, v169\nv_or3_b32 v4, v4, v170, v171\nv_or_b32 v4, v4, v5\nv_and_b32 v4, 0xff, v4\nv_cmp_ne_u32 vcc, 0, v4"
    poll(f"buffer_load_dwordx4 v[164:167], v30, {WS}, s70 offen sc1\nbuffer_load_dwordx4 v[168:171], v30, {WS}, s70 offen offset:16 sc1", chk, "-1")
    stamp("S")
    srd(R1, P_BSP, 4096)
    a("s_lshr_b32 s3, s55, 9\nv_lshlrev_b32 v4, 1, v1")
    vm.op(f"buffer_load_ushort v16, v4, {R1}, s3 offen", "bsp")
    a(f"""
s_lshl_b32 s70, {sCB}, 6
s_lshl_b32 s3, {sRB}, 1
s_add_u32 s70, s70, s3
s_lshr_b32 s3, {sW}, 1
s_add_u32 s70, s70, s3
s_mul_i32 s70, s70, 7168
s_and_b32 s3, {sW}, 1
s_lshl_b32 s3, s3, 9
s_add_u32 s70, s70, s3
s_add_u32 s70, s70, {WS_Z2}
s_add_u32 s71, s70, 4096
v_and_b32 v4, 1, v2
v_lshlrev_b32 v4, 10, v4
v_lshrrev_b32 v5, 1, v2
v_lshl_add_u32 v4, v5, 8, v4
v_lshl_add_u32 v6, v1, 4, v4
""")
    dppsum(range(164, 172), (4, 2, 1))
    finish_stats([(164+i, 168+i, 156+i, 160+i, None) for i in range(4)], 896)
    for h in range(2): a(f"v_pk_mul_f32 {vr(156+2*h,2)}, {vr(156+2*h,2)}, {vr(160+2*h,2)}")
    for i in range(14): a(f"v_pk_fma_f32 {vr(128+2*i,2)}, {vr(128+2*i,2)}, {vr(160+2*(i & 1),2)}, {vr(156+2*(i & 1),2)}")
    for i in range(14): a(f"v_cvt_pk_bf16_f32 v{232+i}, v{128+2*i}, v{129+2*i}")
    a("v_mov_b32 v246, v244\nv_mov_b32 v247, v245")
    for p in range(4): a(f"v_permlane16_swap_b32 v{232+4*p}, v{234+4*p}\nv_permlane16_swap_b32 v{233+4*p}, v{235+4*p}")
    vm.op(f"buffer_store_dwordx4 v[232:235], v6, {WS}, s70 offen sc1")
    vm.op(f"buffer_store_dwordx4 v[236:239], v6, {WS}, s70 offen offset:2048 sc1")
    vm.op(f"buffer_store_dwordx4 v[240:243], v6, {WS}, s71 offen sc1")
    a("s_mov_b32 exec_lo, 0x0000ffff\ns_mov_b32 exec_hi, 0x0000ffff")
    vm.op(f"buffer_store_dwordx4 v[244:247], v6, {WS}, s71 offen offset:2048 sc1", "zst")
    a(f"""
s_mov_b64 exec, -1
s_lshl_b32 s70, {sRB}, 3
s_add_u32 s70, s70, {sCB}
s_lshl_b32 s70, s70, 9
s_lshl_b32 s3, {sW}, 7
s_add_u32 s70, s70, s3
s_add_u32 s70, s70, {F_E}
""")
    stamp("zst")
def bef(T):
    if T == TS: z2_publish()
    if T == 3:
        if TS > 3: vm.wait("z1g3")
        a("s_barrier")
    if T == 4: a("s_waitcnt lgkmcnt(0)\ns_barrier"); wout_setup(0)
    if T == TE:
        vm.wait("zst"); vm.op(f"buffer_store_dword v17, v63, {WS}, s70 offen sc1")
        stamp("zpub")
    if T == TA:
        a(f"s_lshl_b32 s70, {sW}, 15\ns_lshl_b32 s3, {sCB}, 9\ns_add_u32 s70, s70, s3\ns_add_u32 s70, s70, {F_E}\nv_lshrrev_b32 v21, 2, v0\nv_lshlrev_b32 v21, 12, v21\nv_and_b32 v5, 3, v0\nv_lshl_add_u32 v21, v5, 7, v21")
        a("s_mov_b32 exec_hi, 0"); vm.op(f"buffer_load_dword v22, v21, {WS}, s70 offen sc1", "echk"); a("s_mov_b64 exec, -1")
def aft(T, j):
    if T >= max(4, TE) and j in (1, 4) and nwo[0] < 16: wout_one("wout0")
TA = int(([x[3:] for x in XP if x.startswith('ta:')] or ['14'])[0])
TS, TE, TZ = (int(x) for x in ([x[3:] for x in XP if x.startswith("ts:")] or ["2,5,0"])[0].split(","))
a(f"v_mov_b32 v17, 1\nv_mov_b32 v63, {OOB}\nv_cmp_eq_u32 vcc, 0, v0\nv_cndmask_b32 v63, v63, v0, vcc")
fragloop(16, 7, lambda T, j: rdl(WB[T & 1] + 4*j, slot_z1(T) + j*1024),
         lambda T, j: a(f"v_mfma_f32_16x16x32_bf16 {vr(176+4*j,4)}, {vr(WB[T & 1]+4*j,4)}, {vr(64+4*T,4)}, {'0' if T == 0 else vr(176+4*j,4)}"), before=bef, after=aft)
for j in range(7): a(f"ds_read_b128 {vr(204+4*j,4)}, v29 offset:{j*64}\nds_read_b128 {vr(128+4*j,4)}, v29 offset:{448 + j*64}")
a("s_barrier")
stamp("z1mm")
a(f"s_lshl_b32 s72, {sCB}, 2\ns_add_u32 s72, s72, {sW}\ns_mul_i32 s72, s72, {16*7168}\ns_add_u32 s72, s72, {WS_Z2}\ns_add_u32 s73, s72, 4096")
ZSEQ = [(T, j) for T in range(16) for j in range(4)] + [(T, j) for T in range(16) for j in range(4, 7)]
ZR = lambda n: (64, 92, 32)[(n % 21) // 7] + 4*(n % 7)
def ldz(n):
    T, j = ZSEQ[n]
    vm.op(f"buffer_load_dwordx4 {vr(ZR(n),4)}, v3, {WS}, s{72 + (j >> 2)} offen offset:{(j & 3)*1024} sc1", f"z{n}")
    if j in (3, 6): a(f"s_add_u32 s{72 + (j >> 2)}, s{72 + (j >> 2)}, 7168")
for s_ in range(1, 4):
    a(f"s_add_u32 s3, {sW}, {s_}\ns_and_b32 s3, s3, 3\ns_mul_i32 s3, s3, {12*1024}\ns_add_u32 s3, s3, {L_RED + (s_-1)*4096}\nv_add_u32 v{16+s_}, s3, v3")
a(f"s_mul_i32 s3, {sW}, {12*1024}\ns_add_u32 s3, s3, {L_RED}\nv_add_u32 v20, s3, v3\nv_lshlrev_b32 v16, 16, v16")
WPRE = int(([x[3:] for x in XP if x.startswith('wp:')] or ['22'])[0])
while nwo[0] < WPRE: wout_one("wout0")
vm.wait("echk")
a("v_cmp_gt_u32 vcc, 1, v22\ns_nop 1\ns_cmp_eq_u32 vcc_lo, 0\ns_cbranch_scc1 L_eok")
poll(f"buffer_load_dword v4, v21, {WS}, s70 offen sc1", "v_cmp_gt_u32 vcc, 1, v4", "0xffffffff")
a("L_eok:")
stamp("E")
for n in range(7): ldz(n)
a("s_waitcnt lgkmcnt(0)")
for i in range(14): a(f"v_pk_fma_f32 {vr(128+2*i,2)}, {vr(204+2*i,2)}, v[62:63], {vr(128+2*i,2)} op_sel_hi:[1,0,1]")
for i in range(14): a(f"v_pk_fma_f32 {vr(176+2*i,2)}, {vr(176+2*i,2)}, v[28:29], {vr(128+2*i,2)} op_sel_hi:[1,0,1]")
gelu(176, 204, mid=lambda: [ldz(n) for n in range(7, 14)])
for i in range(14): a(f"v_cvt_pk_bf16_f32 v{240+i}, v{176+2*i}, v{177+2*i}")
Z1P = list(range(240, 254))
stamp("gelu1")
ACC = lambda s_, j: 128 + (s_*7 + j)*4
def p5(n, s_):
    T, j = ZSEQ[n]
    d = vr(ACC(s_, j), 4)
    a(f"v_mfma_f32_16x16x32_bf16 {d}, {vr(ZR(n),4)}, {ar((T*4+s_)*4,4)}, {'0' if T == 0 else d}")
red_w = lambda s_, j: a(f"ds_write_b128 v{16+s_}, {vr(ACC(s_, j),4)} offset:{(j & 3)*1024}")
red_r = lambda s_, j: a(f"ds_read_b128 {vr(ACC(s_, j),4)}, v20 offset:{(s_-1)*4096 + (j & 3)*1024}")
UP = lambda j: (120, 122, 124, 126, 60, 62, 24)[j]
def u_frag(j):
    A0, A1, A2, A3 = (ACC(s_, j) for s_ in range(4))
    for h in (0, 2): a(f"v_pk_add_f32 {vr(A1+h,2)}, {vr(A1+h,2)}, {vr(A2+h,2)}\nv_pk_add_f32 {vr(A0+h,2)}, {vr(A0+h,2)}, {vr(A3+h,2)}")
    for h in (0, 1): a(f"v_lshlrev_b32 v{A2+2*h}, 16, v{Z1P[2*j+h]}\nv_and_b32 v{A2+2*h+1}, 0xffff0000, v{Z1P[2*j+h]}")
    for h in (0, 2): a(f"v_pk_add_f32 {vr(A1+h,2)}, {vr(A1+h,2)}, v[16:17] op_sel_hi:[1,0]")
    for h in (0, 2): a(f"v_pk_add_f32 {vr(A0+h,2)}, {vr(A0+h,2)}, {vr(A1+h,2)}")
    for h in (0, 2): a(f"v_pk_mul_f32 {vr(A0+h,2)}, {vr(A0+h,2)}, {vr(A2+h,2)}")
    for h in (0, 1): a(f"v_cvt_pk_bf16_f32 v{UP(j)+h}, v{A0+2*h}, v{A0+2*h+1}")
a(f"""
s_lshl_b32 s68, s55, 1
s_add_u32 s68, s68, {WS_X}
s_mul_i32 s64, {sCB}, 3072
s_add_u32 s64, s64, s68
s_lshl_b32 s65, {sCB}, 9
s_add_u32 s65, s65, s68
s_add_u32 s65, s65, {24*1024}
v_lshrrev_b32 v6, 5, v0
v_lshlrev_b32 v6, 8, v6
v_lshl_add_u32 v6, v1, 4, v6
""")
side = capture(lambda: [u_frag(j) for j in range(4)])
NDEF = 103
ZD = int(([x[3:] for x in XP if x.startswith('zd:')] or ['14'])[0]); nld = [14]
for n in range(112):
    m = n - 64
    if m == 14: a("s_waitcnt lgkmcnt(0)\ns_barrier")
    if m == 28: a("s_waitcnt lgkmcnt(0)\ns_barrier")
    vm.wait(f"z{n}")
    for s_ in ((0, 1, 2, 3) if n < NDEF else (1, 2, 3)):
        p5(n, s_)
        if s_ == 0 and nld[0] < 112 and nld[0] <= n + ZD: ldz(nld[0]); nld[0] += 1
        if s_ == 3 and nld[0] < 112 and nld[0] <= n + ZD: ldz(nld[0]); nld[0] += 1
        if s_ == 2 and n % 4 == 1 and nwo[0] < 28: wout_one("wout0")
        if s_ == 1 and 1 <= m < 13: red_w(1 + (m - 1) // 4, (m - 1) % 4)
        if s_ == 1 and 14 <= m < 26: red_r(1 + (m - 14) % 3, (m - 14) // 3)
        if s_ >= 1 and m >= 28:
            for _ in range(2):
                if side: a.items.append(side.pop(0))
    if m == 40:
        assert not side
        for p in range(2): vm.op(f"buffer_store_dwordx4 {vr(120+4*p,4)}, v3, {WS}, s64 offen offset:{p*1024} sc1")
stamp("p5mm")
for k in range(9):
    red_w(1 + k // 3, 4 + k % 3)
    p5(NDEF + k, 0)
a("s_waitcnt lgkmcnt(0)\ns_barrier")
stamp("red")
for j in range(4, 7):
    for s_ in range(1, 4): red_r(s_, j)
for j in range(4, 7):
    a(f"s_waitcnt lgkmcnt({18 - 3*j})")
    u_frag(j)
    if j == 5: vm.op(f"buffer_store_dwordx4 v[60:63], v3, {WS}, s64 offen offset:2048 sc1")
a("v_mov_b32 v26, v24\nv_mov_b32 v27, v25\nv_permlane16_swap_b32 v24, v26\nv_permlane16_swap_b32 v25, v27\ns_mov_b32 exec_lo, 0x0000ffff\ns_mov_b32 exec_hi, 0x0000ffff")
vm.op(f"buffer_store_dwordx4 v[24:27], v6, {WS}, s65 offen sc1")
a("s_mov_b64 exec, -1")
hop_signal(3)
a("v_add_u32 v25, 0xe000, v3\nv_add_u32 v26, 0xe000, v25")
stamp("upub")
a("s_barrier")
rd6 = lambda n, j: rdl(160 + (n & 1)*16 + 4*j, L_WOUT + n*4096 + j*1024)
for j in range(4): rd6(0, j)
UR = lambda n: (120, 124, 60)[n] if n < 3 else 32 + 4*n
def uload(n):
    if n < 24: a(f"s_add_u32 s65, s65, 1024\ns_cmp_eq_u32 s65, {24*1024}\ns_cselect_b32 s65, 0, s65\ns_add_u32 s64, s65, s68")
    elif n == 24: a(f"s_add_u32 s64, s68, {24*1024}")
    vm.op(f"buffer_load_dwordx4 {vr(UR(n),4)}, v3, {WS}, s64 offen offset:{max(0, n - 24)*1024} sc1", f"u{n}")
def bef(n):
    if n == 3:
        for i in range(8): a(f"v_lshlrev_b32 v{192+2*i}, 16, v{8+i}\nv_and_b32 v{193+2*i}, 0xffff0000, v{8+i}")
        srd(R1, P_OUT, 2048 * 1024, "s55")
        a(f"v_lshlrev_b32 v7, 10, v1\nv_and_b32 v5, 1, v2\nv_lshl_add_u32 v7, v5, 5, v7\nv_lshrrev_b32 v5, 1, v2\nv_lshl_add_u32 v7, v5, 4, v7\ns_lshl_b32 s75, {sCB}, 7")
        a(f"s_mul_i32 s65, {sCB}, 3072\ns_add_u32 s65, s65, 2048\ns_lshl_b32 s74, {sCB}, 8\ns_add_u32 s74, s74, {WS_G2 + 2048}")
        hop_wait(3)
        stamp("F")
        for n_ in range(3, 3 + AH): uload(n_)
    if n >= 3: vm.wait(f"u{n}")
def aft6(n, j):
    if j == 0 and n >= 3 and n + AH < 28: uload(n + AH)
    if j == 0 and 28 <= n + AH < 32: vm.op(f"buffer_load_dwordx4 {vr(216+4*(n+AH-28),4)}, v31, {WS}, s74 offen offset:{(n+AH-28)*64} sc1", "gb")
fragloop(28, 4, rd6,
         lambda n, j: a(f"v_mfma_f32_16x16x32_bf16 {vr(144+4*j,4)}, {vr(160+(n&1)*16+4*j,4)}, {vr(UR(n),4)}, {'0' if n == 0 else vr(144+4*j,4)}"),
         before=bef, after=aft6, preissued=True)
stamp("p6mm")
vm.wait("gb")
for i in range(8): a(f"v_pk_fma_f32 {vr(192+2*i,2)}, {vr(144+2*i,2)}, {vr(216+2*i,2)}, {vr(192+2*i,2)}")
for i in range(8): a(f"v_cvt_pk_bf16_f32 v{48+i}, v{192+2*i}, v{193+2*i}")
for p in range(2): a(f"v_permlane16_swap_b32 v{48+4*p}, v{50+4*p}\nv_permlane16_swap_b32 v{49+4*p}, v{51+4*p}")
for p in range(2): a(f"buffer_store_dwordx4 {vr(48+4*p,4)}, v7, {R1}, s75 offen offset:{p*64} nt")
if AMP:
    a("s_waitcnt vmcnt(0)")
    stamp("end")
    assert AMP[0] != "start"
    a(f"s_sub_u32 s91, s91, s90\ns_mul_i32 s91, s91, {1 if 'x1' in XP else 3}\ns_min_u32 s91, s91, 20000\ns_memrealtime s[78:79]\ns_waitcnt lgkmcnt(0)\ns_mov_b32 s92, s78\nL_amp:\ns_sleep 1\ns_memrealtime s[78:79]\ns_waitcnt lgkmcnt(0)\ns_sub_u32 s78, s78, s92\ns_cmp_lt_u32 s78, s91\ns_cbranch_scc1 L_amp")
elif "dbg" in XP:
    a("s_waitcnt vmcnt(0)")
    stamp("end")
    sel = ["xin", "barP", "barB", "kv0", "attn", "C", "D", "z2mm", "zpub", "E", "p5mm", "upub", "F", "p6mm", "end"]
    a("s_not_b32 s3, s80\nv_mov_b32 v32, s3")
    for n, nm in enumerate(sel):
        i = stamp_names.index(nm)
        a(f"s_bfe_u32 s3, s{81 + (i-1)//2}, {hex((16 << 16) | (16*((i-1) & 1)))}\ns_add_u32 s3, s3, s80\nv_writelane_b32 v32, s3, {n+1}")
    a("s_load_dwordx2 s[64:65], s[96:97], 104\ns_waitcnt lgkmcnt(0)")
    srd(R1, 64, 256)
    a(f"v_lshlrev_b32 v4, 2, v0\ns_mov_b64 exec, 0xffff\nbuffer_atomic_umax v32, v4, {R1}, 0 offen sc1\ns_waitcnt vmcnt(0)")
elif STAMPS:
    a("s_waitcnt vmcnt(0)")
    stamp("end")
    for i in range(22): a(f"v_writelane_b32 v32, s{80+i}, {i}")
    a(f"s_lshl_b32 s3, s2, 2\ns_add_u32 s3, s3, {sW}\ns_lshl_b32 s3, s3, 7\ns_add_u32 s3, s3, {WS_STAMP}\nv_lshlrev_b32 v4, 2, v0\ns_mov_b64 exec, 0xffffffff\nbuffer_store_dword v32, v4, {WS}, s3 offen")
a("s_endpgm")
a("L_xwait:")
poll(f"buffer_load_dwordx4 v[204:207], v216, {WS}, s25 offen sc1\nbuffer_load_dwordx4 v[208:211], v216, {WS}, s25 offen offset:64 sc1", tagcheck(list(range(204, 212))), "s[74:75]", pre="s_mov_b32 s74, 0x33333333\ns_mov_b32 s75, s74")
a("s_branch L_xok\nL_pwait:")
poll(f"buffer_load_dword v201, v174, {WS}, s27 offen sc1", "v_cmp_gt_u32 vcc, 32, v201", "15", 8)
a("s_branch L_pok\nL_gwait:")
poll(f"buffer_load_dword v201, v196, {WS}, s38 offen sc1", "v_cmp_gt_u32 vcc, 32, v201", "0xffffffff", 8)
a("s_branch L_gok")
a(f"{Lfb}:")
a(f"""
v_lshrrev_b32 v4, 5, v0
v_mul_u32_u24 v4, 272, v4
v_and_b32 v5, 31, v0
v_lshl_add_u32 v27, v5, 4, v4
v_mov_b32 v4, 0xff800000
v_mov_b32 v5, 0xff800000
s_mov_b32 s64, {WS_KV}
L_fb1:
buffer_load_dwordx4 {Kb(0)}, v3, {WS}, s64 offen offset:1088 sc1
s_waitcnt vmcnt(0)
""")
for e in range(2): a(f"v_mfma_f32_32x32x16_bf16 {vr(32+16*e,16)}, {Kb(0)}, {Q(e)}, 0")
rowmax(False)
a(f"s_add_u32 s64, s64, {REC}\ns_cmp_lt_u32 s64, {WS_KV + 64*REC}\ns_cbranch_scc1 L_fb1")
negbcast()
for i in range(32): a(f"v_mov_b32 v{80+i}, 0")
a(f"""
s_mov_b32 s64, {WS_KV}
L_fb2:
buffer_load_dwordx4 {Kb(0)}, v3, {WS}, s64 offen offset:1088 sc1
buffer_load_dwordx4 {Vb(0,0)}, v27, {WS}, s64 offen sc1
buffer_load_dwordx4 {Vb(0,1)}, v27, {WS}, s64 offen offset:544 sc1
s_waitcnt vmcnt(0)
""")
for e in range(2): a(f"v_mfma_f32_32x32x16_bf16 {vr(32+16*e,16)}, {Kb(0)}, {Q(e)}, {vr(C(e),16)}")
for i in range(32): a(f"v_exp_f32 v{32+i}, v{32+i}")
for e in range(2):
    for m in range(2): a(f"v_smfmac_f32_32x32x32_bf16 {vr(O(e),16)}, {Vb(0,m)}, {vr(32+16*e+8*m,8)}, v30")
a(f"s_add_u32 s64, s64, {REC}\ns_cmp_lt_u32 s64, {WS_KV + 64*REC}\ns_cbranch_scc1 L_fb2")
getl()
a(f"s_branch {Lok}\nL_end:\ns_endpgm")

body = a.finish()
head = open("cdna_kernels/" + NAME + ".s.ref").read().split("; Override launch")[0]
src = head + f"""; One persistent launch: 256 workgroups (32 row blocks x 8 column blocks), 4 waves each; generated by gen/gen.py.
; @launch grid=(256,1,1) block=(256,1,1) lds={LDS_BYTES}
.amdgcn_target "amdgcn-amd-amdhsa--gfx950"
.text
.globl {NAME}_kernel
.p2align 8
.type {NAME}_kernel,@function
{NAME}_kernel:
{body}.section .rodata,"a"
.p2align 6
.amdhsa_kernel {NAME}_kernel
  .amdhsa_next_free_vgpr 512
  .amdhsa_next_free_sgpr 102
  .amdhsa_accum_offset 256
  .amdhsa_group_segment_fixed_size 0
  .amdhsa_kernarg_size 120
  .amdhsa_user_sgpr_count 2
  .amdhsa_user_sgpr_kernarg_segment_ptr 1
  .amdhsa_system_sgpr_workgroup_id_x 1
.end_amdhsa_kernel
"""
out = [x for x in sys.argv[1:] if not x.startswith("--")]
open(out[0] if out else "cdna_kernels/" + NAME + ".s", "w").write(src)
if STAMPS:
    open("stamps.txt", "w").write("\n".join(stamp_names)); open(out[0] + ".st", "w").write("\n".join(stamp_names))
print("instructions:", sum(1 for k, _ in a.items if k == "ins"), "hazard nops:", a.nops, file=sys.stderr)
```

```python
import sys, struct, math
from asmlib import Asm

NAME = "adaLN_cond__grouped_kv_mqa__mixer_gmlp__prompt"
STAMPS = "--stamps" in sys.argv or "--cyc" in sys.argv
CYC = "--cyc" in sys.argv
FORCE_SLOW = "--slow" in sys.argv
PADZERO = "--nopadzero" not in sys.argv
XP = [x[5:] for x in sys.argv if x.startswith("--xp=")]
FORCE_FB = "--fallback" in sys.argv

def fbits(x): return "0x%08x" % struct.unpack("<I", struct.pack("<f", x))[0]

F_B, F_HOP, F_P, WS_G2, F_E, WS_C12, F_Q = 0, 32768, 49152, 53248, 61440, 192512, 207872
WS_MOD, WS_MODT, WS_EPOCH, WS_KV = 0x38000, 0x3B000, 0x3E000, 0x40000
WS_ST1, WS_ST2 = 0x70000, 0x90000
WS_X, WS_Z2, WS_STAMP, WS_SIZE = 0x100000, 0x500000, 0xD00000, 0x1200000
WS_WOF, WS_WOUTF, WS_DUMMY, WS_WINF = 0xD80000, 0xE00000, 0xF00000, 0x1000000
REC = 2112
L_G2 = 16384
L_KV = 28672
L_WQ, L_WKV, L_G0, L_SILU, L_PAR = 28672, 94208, 110592, 126976, 0
L_RING, L_SM = 0, 158720
L_WO = 0
SLOT = 7168
def slotA(i): return 65536 + SLOT * i
def slotB(i): return SLOT * i
def slot_z2(T): return slotA(T) if T < 13 else slotB(T - 13)
def slot_z1(T): return slotB(3 + T) if T < 4 else slotA(T - 4)
L_WOUT, L_RED = 0, 114688
LDS_BYTES = 163840
R0, WS, R1, R2, R3 = "s[4:7]", "s[8:11]", "s[12:15]", "s[56:59]", "s[60:63]"
P_X, P_WQ, P_WK, P_WV, P_WO, P_WIN, P_WSP, P_BSP, P_WOUT, P_C, P_WMOD, P_OUT, P_DBG, P_WS = 16, 18, 20, 22, 24, 28, 30, 32, 34, 36, 38, 40, 42, 44
sRB, sCB, sW, sXCC, sFAST, sIDX, sXCD, sKVW, sGRP = "s46", "s47", "s48", "s49", "s50", "s51", "s52", "s53", "s54"
sEP, sTAG = "s42", "s43"
SPIN = 1 << 17
OOB = 0x7fff0000

a = Asm()
def vr(b, n): return f"v[{b}:{b+n-1}]"
def ar(b, n): return f"a[{b}:{b+n-1}]"

class VM:
    def __init__(s): s.n = 0; s.tags = {}
    def op(s, text, tag=None):
        a(text); s.n += 1
        if tag: s.tags[tag] = s.n
    def tag(s, t): s.tags[t] = s.n
    def wait(s, t):
        k = s.n - s.tags[t]
        if k < 63: a(f"s_waitcnt vmcnt({k})")
    def drain(s): a("s_waitcnt vmcnt(0)")
vm = VM()

def srd(q, ptr, size, off=None):
    b = int(q[2:q.index(":")])
    if off is None:
        a(f"s_mov_b32 s{b}, s{ptr}\ns_mov_b32 s{b+1}, s{ptr+1}\ns_mov_b32 s{b+2}, {size}")
    else:
        a(f"s_add_u32 s{b}, s{ptr}, {off}\ns_addc_u32 s{b+1}, s{ptr+1}, 0\ns_sub_u32 s{b+2}, {size}, {off}")
    a(f"s_mov_b32 s{b+3}, 0x20000")

nstamp = [0]
stamp_names = []
AMP = [x[4:] for x in XP if x.startswith("amp:")]
def stamp(name):
    if AMP and name == AMP[0]: a(f"s_memrealtime s[78:79]\ns_waitcnt lgkmcnt(0)\ns_mov_b32 s93, s78")
    if not STAMPS: return
    if "dbg" in XP and name not in ("start", "xin", "barP", "barB", "kv0", "attn", "C", "D", "z2mm", "zpub", "E", "p5mm", "upub", "F", "p6mm", "end"): return
    if "tst" in XP and name in ("xin", "ln1", "h", "kv", "q", "p3mm", "p3ep", "y_iss", "st1", "init", "u_iss", "S", "opub", "ypub", "spub"): return
    if name in ("karg", "iss0"): return
    i = nstamp[0]; nstamp[0] += 1; stamp_names.append(name)
    if i == 0:
        if CYC: a("s_lshr_b32 s80, s80, 2")
        return
    if "clk" in XP and i >= 30: return
    assert i < 43
    a("s_memrealtime s[78:79]\ns_waitcnt lgkmcnt(0)" if not CYC else "s_memtime s[78:79]\ns_waitcnt lgkmcnt(0)\ns_lshr_b32 s78, s78, 2")
    if i == 0: a("s_mov_b32 s80, s78" if "ms" not in XP else "s_nop 0")
    elif i & 1: a(f"s_sub_u32 s{81 + i//2}, s78, s80")
    else: a(f"s_sub_u32 s78, s78, s80\ns_pack_ll_b32_b16 s{80 + i//2}, s{80 + i//2}, s78")

def poll(load, cond, mask, backoff=0, pre=None):
    L, X = a.label("poll"), a.label("pollx")
    if pre: a(pre)
    a(f"s_mov_b64 exec, {mask}\ns_mov_b32 s3, 0\n{L}:\ns_add_u32 s3, s3, 1\ns_cmp_gt_u32 s3, {SPIN}\ns_cbranch_scc1 {X}")
    if backoff: a(f"s_sleep {backoff}")
    a(load); a("s_waitcnt vmcnt(0)"); a(cond)
    a(f"s_cbranch_vccnz {L}\n{X}:\ns_mov_b64 exec, -1")

PLAIN = "noplain" not in XP
def both_data(fn): both(fn) if PLAIN else fn(" sc1")
def both(fn):
    S, E = a.label("slow"), a.label("pub")
    n0 = vm.n
    a(f"s_cmp_eq_u32 {sFAST}, 0\ns_cbranch_scc1 {S}")
    fn(""); n1 = vm.n
    a(f"s_branch {E}\n{S}:"); vm.n = n0
    fn(" sc1"); assert vm.n == n1
    a(f"{E}:")

def hop_signal(phase, tag=None):
    a(f"v_mov_b32 v4, {phase}")
    if tag: vm.wait(tag)
    else: a("s_waitcnt vmcnt(0)")
    both(lambda sc: vm.op(f"buffer_store_dword v4, v254, {WS}, {sGRP} offen{sc}"))

def hop_wait(phase):
    poll(f"buffer_load_dword v4, v255, {WS}, {sGRP} offen sc1", f"v_cmp_gt_u32 vcc, {phase}, v4", "0xff")

def xgroup_sum(v, t):
    a(f"v_mov_b32 v{t}, v{v}\nv_permlane32_swap_b32 v{v}, v{t}\nv_add_f32 v{v}, v{v}, v{t}")
    a(f"v_mov_b32 v{t}, v{v}\nv_permlane16_swap_b32 v{v}, v{t}\nv_add_f32 v{v}, v{v}, v{t}")

def xgroup_sum2(v, t, v2, t2):
    for op in ("v_permlane32_swap_b32", "v_permlane16_swap_b32"):
        a(f"v_mov_b32 v{t}, v{v}\nv_mov_b32 v{t2}, v{v2}\n{op} v{v}, v{t}\n{op} v{v2}, v{t2}\nv_add_f32 v{v}, v{v}, v{t}\nv_add_f32 v{v2}, v{v2}, v{t2}")

def capture(fn):
    n = len(a.items); fn(); out = a.items[n:]; del a.items[n:]
    return out

def pipeline(nsteps, reads, compute, nreads, pre=1):
    for T in range(min(pre, nsteps)): reads(T)
    for T in range(nsteps):
        if T + pre < nsteps: reads(T + pre)
        left = min(pre, nsteps - 1 - T) * nreads
        a(f"s_waitcnt lgkmcnt({min(left, 15)})")
        compute(T)

def fragloop(nsteps, nf, read, mfma, before=None, after=None, nper=1, preissued=False):
    if not preissued:
        for j in range(nf): read(0, j)
    for T in range(nsteps):
        if before: before(T)
        for j in range(nf):
            left = (nf - 1 if T + 1 < nsteps else nf - 1 - j) * nper
            a(f"s_waitcnt lgkmcnt({min(left, 15)})")
            mfma(T, j)
            if T + 1 < nsteps: read(T + 1, j)
            if after: after(T, j)

def deeploop(nsteps, nf, read, mfma, vmtag, before=None, after=None, nper=1):
    for T in range(nsteps):
        if before: before(T)
        w = f"lgkmcnt({nf*nper if T + 1 < nsteps else 0})"
        if vmtag(T) and vm.n - vm.tags[vmtag(T)] < 63: w = f"vmcnt({vm.n - vm.tags[vmtag(T)]}) " + w
        a("s_waitcnt " + w)
        for j in range(nf):
            mfma(T, j)
            if after: after(T, j)
            if T + 2 < nsteps: read(T + 2, j)

def dppsum(regs, steps):
    for s in steps:
        for r in regs: a(f"v_add_f32_dpp v{r}, v{r}, v{r} row_ror:{s} row_mask:0xf bank_mask:0xf")
def finish_stats(rows, n):
    for s1, s2, mu, r, sd in rows: a(f"v_mul_f32 v{mu}, {fbits(-1.0/n)}, v{s1}\nv_mul_f32 v{s2}, {fbits(1.0/n)}, v{s2}")
    for s1, s2, mu, r, sd in rows: a(f"v_fma_f32 v{s2}, -v{mu}, v{mu}, v{s2}")
    for s1, s2, mu, r, sd in rows: a(f"v_max_f32 v{s2}, 0, v{s2}")
    for s1, s2, mu, r, sd in rows: a(f"v_add_f32 v{s2}, {fbits(1e-5)}, v{s2}")
    for s1, s2, mu, r, sd in rows: a(f"v_rsq_f32 v{r}, v{s2}")
    for s1, s2, mu, r, sd in rows:
        if sd is not None: a(f"v_mul_f32 v{sd}, v{s2}, v{r}")

a(f"""
{("s_memrealtime s[80:81]" if not CYC else "s_memtime s[80:81]") if STAMPS else ""}{"s_memrealtime s[90:91]" if AMP else ""}
s_cmp_ge_u32 s2, 256
s_cbranch_scc1 L_end
{"s_lshr_b32 s3, s2, 3" + chr(10) + "s_and_b32 s3, s3, 7" + chr(10) + "s_xor_b32 s2, s2, s3" if "perm" in XP else ""}
{"s_mul_i32 s2, s2, 37" + chr(10) + "s_and_b32 s2, s2, 255" if "perm2" in XP else ""}
s_getpc_b64 s[64:65]
L_pc:
s_load_dwordx16 s[16:31], s[0:1], 0
v_and_b32 v4, 0xfc, v0
v_lshlrev_b32 v4, 5, v4
v_mov_b32 v7, s65
v_add_co_u32 v6, vcc, s64, v4
s_load_dwordx8 s[32:39], s[0:1], 64
s_load_dwordx4 s[40:43], s[0:1], 96
v_addc_co_u32 v7, vcc, 0, v7, vcc
global_load_dword v26, v[6:7], off
s_load_dwordx2 s[44:45], s[0:1], 112
v_lshrrev_b32 v4, 6, v0
v_and_b32 v0, 63, v0
v_readfirstlane_b32 {sW}, v4
s_and_b32 {sXCD}, s2, 7
s_lshr_b32 {sIDX}, s2, 3
s_mov_b32 s75, 0x20000
v_lshlrev_b32 v29, 7, v0
s_cmp_eq_u32 {sW}, 0
s_cbranch_scc0 L_t1
""")
a(f"""
v_bfe_u32 v4, v0, 1, 4
v_mul_u32_u24 v4, 6144, v4
v_and_b32 v5, 0x80, v29
v_add_u32 v4, v4, v5
s_mul_i32 s70, {sIDX}, {16*6144}
s_lshl_b32 s3, {sXCD}, 8
s_add_u32 s70, s70, s3
s_mov_b32 s74, {512*6144}
s_waitcnt lgkmcnt(0)
s_mov_b64 s[72:73], s[{P_WMOD}:{P_WMOD+1}]
s_mov_b32 exec_hi, 0
buffer_load_dword v24, v4, s[72:75], s70 offen
s_mov_b64 exec, -1
s_branch L_t9
L_t1:
s_cmp_eq_u32 {sW}, 1
s_cbranch_scc0 L_t2
s_lshl_b32 s70, {sXCD}, 18
s_lshl_b32 s3, {sIDX}, 13
s_add_u32 s70, s70, s3
s_mov_b32 s74, {2048*1024}
s_waitcnt lgkmcnt(0)
s_mov_b64 s[72:73], s[{P_X}:{P_X+1}]
buffer_load_dword v24, v29, s[72:75], s70 offen
s_branch L_t9
L_t2:
s_cmp_eq_u32 {sW}, 2
s_cbranch_scc0 L_t3
s_lshr_b32 s70, {sIDX}, 1
s_lshl_b32 s70, s70, 10
v_and_b32 v4, 0x380, v29
s_movk_i32 s74, 16384
s_bitcmp1_b32 {sIDX}, 0
s_waitcnt lgkmcnt(0)
s_cselect_b64 s[72:73], s[{P_WV}:{P_WV+1}], s[{P_WK}:{P_WK+1}]
buffer_load_dword v24, v4, s[72:75], s70 offen
s_branch L_t9
L_t3:
s_lshl_b32 s3, {sIDX}, 11
s_add_u32 s3, s3, 8192
v_and_b32 v6, 0x780, v29
v_add_u32 v6, s3, v6
v_min_u32 v6, L_end-L_pc-4, v6
v_mov_b32 v7, s65
v_add_co_u32 v6, vcc, s64, v6
v_addc_co_u32 v7, vcc, 0, v7, vcc
s_mov_b64 exec, 0xffff
global_load_dword v24, v[6:7], off
s_mov_b64 exec, -1
L_t9:
v_and_b32 v1, 15, v0
v_lshrrev_b32 v2, 4, v0
v_lshlrev_b32 v3, 4, v0
s_and_b32 {sCB}, {sIDX}, 7
s_lshr_b32 s3, {sIDX}, 3
s_lshl_b32 {sRB}, {sXCD}, 2
s_add_u32 {sRB}, {sRB}, s3
s_lshr_b32 {sKVW}, {sCB}, 1
s_getreg_b32 {sXCC}, hwreg(HW_REG_XCC_ID, 0, 4)
s_and_b32 {sXCC}, {sXCC}, 7
s_lshl_b32 {sGRP}, {sRB}, 2
s_add_u32 {sGRP}, {sGRP}, {sW}
s_lshl_b32 s55, {sGRP}, 14
s_lshl_b32 {sGRP}, {sGRP}, 7
s_add_u32 {sGRP}, {sGRP}, {F_HOP}
""")
def img32_regs(row, trb):
    a(f"""
v_lshrrev_b32 v4, 1, v0
v_and_b32 v5, 19, v4
v_bfe_u32 v6, v4, 2, 1
v_lshl_or_b32 v5, v6, 3, v5
v_bfe_u32 v6, v4, 3, 1
v_lshl_or_b32 v{row}, v6, 2, v5
v_lshrrev_b32 v4, 2, v1
v_and_b32 v5, 1, v2
v_lshl_add_u32 v4, v5, 2, v4
v_lshrrev_b32 v5, 1, v2
v_lshl_add_u32 v4, v5, 4, v4
v_lshlrev_b32 v4, 5, v4
v_and_b32 v5, 3, v1
v_lshl_add_u32 v{trb}, v5, 3, v4
""")
img32_regs(16, 17)
a(f"""
v_and_b32 v18, 1, v0
v_lshlrev_b32 v18, 4, v18
{"s_mov_b64 s[96:97], s[0:1]" if "dbg" in XP else ""}
s_sub_u32 s0, {sW}, {sKVW}
s_and_b32 s0, s0, 3
v_mov_b64 v[36:37], 0
v_mov_b64 v[38:39], 0
s_and_b32 s69, s2, 15
s_lshl_b32 s69, s69, 6
v_lshlrev_b32 v25, 4, v2
v_lshrrev_b32 v4, 3, v0
v_and_b32 v5, 7, v0
v_xor_b32 v5, v5, v2
v_lshlrev_b32 v5, 4, v5
v_lshl_add_u32 v22, v4, 10, v5
v_xor_b32 v23, 64, v22
v_add_u32 v23, {8192 - 1024}, v23
s_lshl_b32 s67, {sW}, 14
s_add_u32 s67, s67, {L_WQ}
s_movk_i32 s3, 6144
v_mad_u32_u24 v28, v16, s3, v18
s_lshl_b32 s68, {sXCD}, 3
s_add_u32 s68, s68, {sIDX}
s_lshl_b32 s66, s68, 5
s_mov_b32 s6, 1024
s_mov_b32 s7, 0x20000
s_mov_b32 s10, {hex(WS_SIZE)}
s_mov_b32 s11, 0x20000
s_sub_u32 s14, {2048*1024}, s55
s_mov_b32 s15, 0x20000
s_mov_b32 s58, {512*6144}
s_mov_b32 s59, 0x20000
s_mov_b32 s62, 16384
s_mov_b32 s63, 0x20000
s_waitcnt lgkmcnt(0)
s_mov_b64 s[56:57], s[{P_WMOD}:{P_WMOD+1}]
s_mov_b64 s[4:5], s[{P_C}:{P_C+1}]
s_mov_b64 s[8:9], s[{P_WS}:{P_WS+1}]
s_load_dword {sEP}, s[{P_WS}:{P_WS+1}], {WS_EPOCH}
s_add_u32 s12, s{P_X}, s55
s_addc_u32 s13, s{P_X+1}, 0
s_bitcmp1_b32 {sCB}, 0
s_cselect_b64 s[60:61], s[{P_WV}:{P_WV+1}], s[{P_WK}:{P_WK+1}]
""")
stamp("start")
if "ms" in XP: stamp("karg")


def round_bf16(regs):
    for i in range(0, len(regs), 2):
        x, y = regs[i], regs[i+1]
        a(f"v_cvt_pk_bf16_f32 v{y}, v{x}, v{y}\nv_lshlrev_b32 v{x}, 16, v{y}\nv_and_b32 v{y}, 0xffff0000, v{y}")

def silu8(src, dst):
    for i in range(4): a(f"v_lshlrev_b32 v{40+2*i}, 16, v{src+i}\nv_and_b32 v{41+2*i}, 0xffff0000, v{src+i}")
    for i in range(8): a(f"v_mul_f32 v{48+i}, {fbits(-math.log2(math.e))}, v{40+i}")
    for i in range(8): a(f"v_exp_f32 v{48+i}, v{48+i}")
    for i in range(8): a(f"v_add_f32 v{48+i}, 1.0, v{48+i}")
    for i in range(8): a(f"v_rcp_f32 v{48+i}, v{48+i}")
    for i in range(8): a(f"v_mul_f32 v{40+i}, v{40+i}, v{48+i}")
    for i in range(4): a(f"v_cvt_pk_bf16_f32 v{dst+i}, v{40+2*i}, v{41+2*i}")

Lr0, Lr2, Lr3, Lxi, Lxw, Lnz, Lsl = (a.label(x) for x in ("r0", "r2", "r3", "xi", "xw", "noz", "sl"))
def xstage():
    for T2 in range(8):
        a(f"s_add_u32 m0, s67, {T2*2048}\ns_movk_i32 s3, {T2*128}\nbuffer_load_dwordx4 v22, {R1}, s3 offen lds\nbuffer_load_dwordx4 v23, {R1}, s3 offen offset:1024 lds")
if "ms" in XP: stamp("iss0")
a(f"s_cmp_eq_u32 s0, 1\ns_cbranch_scc0 {Lr2}")
a(f"s_cmp_lt_u32 {sIDX}, 8\ns_cbranch_scc0 {Lxi}\nbuffer_load_dwordx4 v[32:35], v3, {R0}, 0 offen")
for n in range(16):
    a(f"s_mov_b32 m0, {L_G0 + n*1024}\nbuffer_load_dwordx4 v28, {R2}, s66 offen lds")
    if n < 15: a("s_add_u32 s66, s66, 196608")
a(f"""
s_lshl_b32 s3, s68, 9
s_mov_b64 exec, 0xffffffff
buffer_store_dwordx4 v[36:39], v3, {WS}, s3 offen sc1
s_mov_b64 exec, -1
""")
a("s_barrier\ns_waitcnt vmcnt(17)")
if "ms" in XP: stamp("m_c")
silu8(32, 32)
a(f"v_add_u32 v6, {L_SILU}, v3\nds_write_b128 v6, v[32:35]\nv_lshlrev_b32 v5, 4, v2\nv_add_u32 v6, {L_SILU}, v5")
a(f"v_add_u32 v7, {L_G0}, v17\ns_waitcnt lgkmcnt(0)")
for T in range(16): a(f"ds_read_b128 {vr(160+4*T,4)}, v6 offset:{T*64}")
a("s_waitcnt vmcnt(0)")
if "ms" in XP: stamp("m_dma")
pipeline(16, lambda T: a(f"ds_read_b64_tr_b16 {vr(128+(T%8)*4,2)}, v7 offset:{T*1024}\nds_read_b64_tr_b16 {vr(130+(T%8)*4,2)}, v7 offset:{T*1024+256}"),
         lambda T: a(f"v_mfma_f32_16x16x32_bf16 v[32:35], {vr(128+(T%8)*4,4)}, {vr(160+4*T,4)}, {'0' if T == 0 else 'v[32:35]'}"), 2, pre=6)
round_bf16([32, 33, 34, 35])
Lno1 = a.label("no1")
a(f"s_bitcmp1_b32 s68, 5\ns_cbranch_scc0 {Lno1}")
for i in range(4): a(f"v_add_f32 v{32+i}, 1.0, v{32+i}")
round_bf16([32, 33, 34, 35])
a(f"""
{Lno1}:
s_lshl_b32 s3, s68, 6
s_add_u32 s3, s3, {WS_MODT}
s_mov_b32 exec_lo, 0x00010001
s_mov_b32 exec_hi, 0x00010001
s_add_u32 s65, {sEP}, 1
s_and_b32 s65, s65, 0xffff
v_or_b32 v36, s65, v32
v_or_b32 v37, s65, v33
v_or_b32 v38, s65, v34
v_or_b32 v39, s65, v35
buffer_store_dwordx4 v[36:39], v5, {WS}, s3 offen sc1
s_mov_b64 exec, -1
""")
if "ms" in XP: stamp("m_pub")
a(f"""
v_add_u32 v6, s69, v6
ds_read_b128 v[8:11], v6
""")
xstage()
a(f"""
s_waitcnt vmcnt(0)
s_branch {Lxw}
{Lr2}:
s_cmp_eq_u32 s0, 0
s_cbranch_scc1 {Lr0}
{Lxi}:
buffer_load_dwordx4 v[8:11], v25, {R0}, s69 offen
s_barrier
""")
xstage()
a(f"s_lshl_b32 s66, {sCB}, 7")
srd(R0, P_WQ, 512 * 1024, "s66")
Lnw = a.label("nw")
a(f"""
s_cmp_lt_u32 s0, 2
s_cbranch_scc1 {Lnw}
s_and_b32 s3, {sRB}, 3
s_lshl_b32 s3, s3, 1
s_add_u32 s3, s3, s0
s_sub_u32 s3, s3, 2
s_lshl_b32 s3, s3, 16
v_lshlrev_b32 v4, 10, v0
buffer_load_dword v26, v4, {R0}, s3 offen
s_waitcnt vmcnt(17)
""")
silu8(8, 8)
a(f"s_waitcnt vmcnt(1)\ns_branch {Lxw}\n{Lnw}:\ns_waitcnt vmcnt(16)")
silu8(8, 8)
a(f"s_waitcnt vmcnt(0)\ns_branch {Lxw}\n{Lr0}:\nbuffer_load_dwordx4 v[8:11], v25, {R0}, s69 offen\ns_barrier")
xstage()
a("v_lshl_add_u32 v21, v16, 5, v18")
for n in range(16): a(f"s_mov_b32 m0, {L_WKV + n*1024}\ns_movk_i32 s3, {n*1024}\nbuffer_load_dwordx4 v21, {R3}, s3 offen lds")
a(f"s_mul_i32 s3, s2, 768\ns_add_u32 s3, s3, {F_HOP}\ns_mov_b32 exec_hi, 0xffff\nbuffer_store_dwordx4 v[36:39], v3, {WS}, s3 offen sc1\ns_mov_b64 exec, -1\ns_waitcnt vmcnt(33)")
silu8(8, 8)
a(f"s_waitcnt vmcnt(17)\n{Lxw}:")
stamp("xin")
a(f"""
v_lshrrev_b32 v4, 1, v1
v_xor_b32 v4, v4, v2
v_lshlrev_b32 v4, 4, v4
v_lshl_add_u32 v4, v1, 7, v4
v_add_u32 v4, s67, v4
v_xor_b32 v5, 64, v4
s_waitcnt lgkmcnt(0)
s_add_u32 {sEP}, {sEP}, 1
s_and_b32 {sTAG}, {sEP}, 0xffff
""")
for T in range(16): a(f"ds_read_b128 {vr(64+4*T,4)}, v{4 + (T & 1)} offset:{(T >> 1)*2048}")
a(f"s_lshl_b32 s66, {sCB}, 7")
srd(R0, P_WQ, 512 * 1024, "s66")
a(f"""
v_lshrrev_b32 v4, 3, v0
v_bfe_u32 v5, v0, 1, 2
v_bfe_u32 v6, v4, 1, 1
v_xor_b32 v5, v5, v6
v_lshlrev_b32 v5, 5, v5
v_lshl_add_u32 v5, v4, 10, v5
v_add_u32 v19, v5, v18
v_xor_b32 v20, 64, v19
""")
a(f"s_lshl_b32 s66, {sW}, 17")
nst = [0]
def stage():
    n = nst[0]; nst[0] += 1
    a(f"s_mov_b32 m0, s67\ns_add_u32 s67, s67, 1024\nbuffer_load_dwordx4 v{19 + (n & 1)}, {R0}, s66 offen lds\ns_add_u32 s66, s66, 8192")
for i in range(64):
    if i % 4 == 0: a(f"s_waitcnt lgkmcnt({15 - i // 4})")
    a(f"v_lshlrev_b32 v{128+2*i}, 16, v{64+i}\nv_and_b32 v{129+2*i}, 0xffff0000, v{64+i}")
for k in range(4): a(f"v_pk_add_f32 {vr(32+2*k,2)}, {vr(128+4*k,2)}, {vr(130+4*k,2)}")
for k in range(4): a(f"v_pk_mul_f32 {vr(40+2*k,2)}, {vr(128+2*k,2)}, {vr(128+2*k,2)}")
for i in range(4, 64):
    if i >= 8: a(f"v_pk_add_f32 {vr(32+2*(i%4),2)}, {vr(32+2*(i%4),2)}, {vr(128+2*i,2)}")
    a(f"v_pk_fma_f32 {vr(40+2*(i%4),2)}, {vr(128+2*i,2)}, {vr(128+2*i,2)}, {vr(40+2*(i%4),2)}")
    if i % 4 == 3 and nst[0] < 16: stage()
for b in (32, 40):
    a(f"v_pk_add_f32 {vr(b,2)}, {vr(b,2)}, {vr(b+2,2)}\nv_pk_add_f32 {vr(b+4,2)}, {vr(b+4,2)}, {vr(b+6,2)}\nv_pk_add_f32 {vr(b,2)}, {vr(b,2)}, {vr(b+4,2)}\nv_add_f32 v{b}, v{b}, v{b+1}")
xgroup_sum2(32, 33, 40, 41)
finish_stats([(32, 40, 34, 36, None)], 512)
a("v_mul_f32 v34, v34, v36")
PE = int(([x[3:] for x in XP if x.startswith('pe:')] or ['32'])[0])
a(f"s_mov_b32 s23, {WS_MODT}")
for i in range(65):
    if i == PE:
        while nst[0] < 16: stage()
        for k in range(4): a(f"buffer_load_dwordx4 {vr(40+4*k,4)}, v3, {WS}, s23 offen offset:{k*1024} sc1")
    if i == 64: break
    a(f"v_pk_fma_f32 {vr(128+2*i,2)}, {vr(128+2*i,2)}, v[36:37], v[34:35] op_sel_hi:[1,0,0]")
    if i % 8 == 0 and nst[0] < 16: stage()
Lna = a.label("nkvf")
a(f"s_cmp_eq_u32 s0, 0\ns_cbranch_scc0 {Lna}\nv_add_u32 v7, {L_WKV}, v17\ns_waitcnt vmcnt(21)")
for T in range(16): a(f"ds_read_b64_tr_b16 {ar(4*T,2)}, v7 offset:{T*1024}\nds_read_b64_tr_b16 {ar(4*T+2,2)}, v7 offset:{T*1024+256}")
a(f"{Lna}:")
stamp("ln1")
def tagcheck(regs):
    out = [f"v_xor_b32 v{r}, {sTAG}, v{r}" for r in regs]
    out.append(f"v_or3_b32 v4, v{regs[0]}, v{regs[1]}, v{regs[2]}")
    for i in range(3, len(regs) - 1, 2): out.append(f"v_or3_b32 v4, v4, v{regs[i]}, v{regs[i+1]}")
    out.append(f"v_or_b32 v4, v4, v{regs[-1]}\nv_and_b32 v4, 0xffff, v4\nv_cmp_ne_u32 vcc, 0, v4")
    return "\n".join(out)
BKA = int(([x[4:] for x in XP if x.startswith("bka:")] or ["5"])[0])
def setup_scalars():
    Lr2, Lr3, Lre = (a.label(x) for x in ("r2", "r3", "re"))
    a(f"""
s_mul_i32 s77, {sW}, 12288
s_lshl_b32 s68, {sW}, 12
s_movk_i32 s74, 1024
s_movk_i32 s75, 4
s_movk_i32 s76, 8
s_movk_i32 s1, 2048
s_movk_i32 s20, 8192
s_cmp_eq_u32 {sW}, 2
s_cbranch_scc1 {Lr2}
s_cmp_eq_u32 {sW}, 3
s_cbranch_scc1 {Lr3}
s_and_b32 s64, {sRB}, 15
s_mul_i32 s64, s64, 114688
s_lshr_b32 s3, {sRB}, 4
s_mul_i32 s3, s3, 1792
s_add_u32 s64, s64, s3
s_mul_i32 s3, {sCB}, 224
s_add_u32 s64, s64, s3
s_lshl_b32 s3, {sW}, 7
s_add_u32 s64, s64, s3
""")
    srd(R2, P_WIN, 512 * 3584, "s64")
    a(f"""
s_movk_i32 s74, 3584
s_movk_i32 s20, {8*3584}
s_mov_b32 s21, {16*3584}
s_mov_b32 s22, {24*3584}
s_lshl_b32 s36, {sCB}, 5
s_add_u32 s36, s36, {sRB}
s_mul_i32 s36, s36, {SLOT}
s_add_u32 s36, s36, s68
s_add_u32 s36, s36, {WS_WINF}
s_mov_b32 s24, s36
s_cmp_eq_u32 {sW}, 0
s_cselect_b32 s37, s36, {WS_SIZE}
s_branch {Lre}
{Lr2}:
s_min_u32 s67, {sRB}, 27
s_mul_i32 s64, s67, 37
s_lshr_b32 s64, s64, 8
s_mul_i32 s3, s64, 7
s_sub_u32 s65, s67, s3
s_mul_i32 s64, s64, 224
s_lshl_b32 s3, s65, 5
s_add_u32 s66, s3, 16
s_cmp_lt_u32 s65, 3
s_cselect_b32 s3, s3, s66
s_cmp_eq_u32 s65, 6
s_cselect_b32 s3, 96, s3
s_cselect_b32 s21, 112, 16
s_cselect_b32 s75, 8, 4
s_cselect_b32 s76, 16, 8
s_cselect_b32 s1, 512, s1
s_lshl_b32 s21, s21, 10
s_add_u32 s22, s21, 8192
s_add_u32 s64, s64, s3
s_lshl_b32 s64, s64, 10
s_lshl_b32 s3, {sCB}, 7
s_add_u32 s64, s64, s3
""")
    srd(R2, P_WOUT, 896 * 1024, "s64")
    a(f"""
s_mul_i32 s3, s67, 37
s_lshr_b32 s3, s3, 8
s_sub_u32 s36, s67, s3
s_add_u32 s3, s3, 24
s_cmp_eq_u32 s65, 6
s_cselect_b32 s3, s3, s36
s_mul_i32 s36, {sCB}, 28
s_add_u32 s36, s36, s3
s_lshl_b32 s36, s36, 12
s_add_u32 s36, s36, {WS_WOUTF}
s_cmp_lt_u32 {sRB}, 28
s_cselect_b32 s36, s36, {WS_SIZE}
s_mov_b32 s37, s36
s_mov_b32 s24, s36
s_branch {Lre}
{Lr3}:
s_lshr_b32 s67, {sRB}, 1
s_lshl_b32 s64, s67, 15
s_lshl_b32 s3, {sCB}, 7
s_add_u32 s64, s64, s3
""")
    srd(R2, P_WO, 512 * 1024, "s64")
    a(f"""
s_movk_i32 s21, 16384
s_movk_i32 s22, 24576
s_movk_i32 s75, 16
s_movk_i32 s76, 4
s_movk_i32 s1, 1024
s_lshl_b32 s36, {sCB}, 4
s_add_u32 s36, s36, s67
s_lshl_b32 s36, s36, 12
s_add_u32 s36, s36, {WS_WOF}
s_bitcmp1_b32 {sRB}, 0
s_cselect_b32 s37, s36, {WS_SIZE}
s_cselect_b32 s36, {WS_SIZE}, s36
s_mov_b32 s24, s37
{Lre}:
s_and_b32 s64, s2, 15
s_mul_i32 s64, s64, {32*6144}
s_lshr_b32 s65, s2, 4
s_lshl_b32 s3, s65, 8
s_add_u32 s64, s64, s3
s_lshl_b32 s3, {sW}, 6
s_add_u32 s64, s64, s3
s_add_u32 s64, s64, 2048
""")
    srd(R3, P_WMOD, 512 * 6144, "s64")
    a(f"""
s_lshl_b32 s35, {sW}, 11
s_add_u32 s35, s35, {L_G2}
s_lshl_b32 s64, {sW}, 11
s_add_u32 s65, s64, {L_KV}
s_add_u32 s64, s64, {WS_KV}
s_mul_i32 s66, {sIDX}, {33*128}
s_add_u32 s66, s66, {WS_KV}
s_lshl_b32 s67, {sRB}, 10
""")
def late_scalars():
    a(f"s_lshl_b32 s23, {sRB}, 18\ns_lshl_b32 s19, {sW}, 10\ns_add_u32 s23, s23, s19")
    srd(R0, P_WSP, 2048 * 4096, "s23")
    a(f"""
s_lshl_b32 s19, {sCB}, 15
s_lshl_b32 s30, {sCB}, 7
s_lshr_b32 s31, s55, 4
s_add_u32 s31, s31, s30
s_add_u32 s31, s31, {WS_ST1}
s_add_u32 s23, s30, s55
""")
    srd(R1, P_X, 2048 * 1024, "s23")
    a(f"""
s_lshr_b32 s34, s2, 4
s_lshl_b32 s34, s34, 9
s_lshl_b32 s23, {sW}, 7
s_add_u32 s34, s34, s23
s_add_u32 s34, s34, {WS_G2}
s_lshl_b32 s39, {sCB}, 9
s_mov_b32 s38, {F_P}
s_add_u32 s27, s39, s38
s_add_u32 s39, s27, s23
s_lshr_b32 s23, {sRB}, 4
s_mul_i32 s23, s23, 3584
s_mul_i32 s28, {sCB}, 448
s_add_u32 s28, s28, s23
s_lshl_b32 s23, {sW}, 8
s_add_u32 s28, s28, s23
s_add_u32 s28, s28, {WS_C12}
s_lshr_b32 s23, {sW}, 1
s_mul_i32 s23, s23, {WS_SIZE}
s_add_u32 s28, s28, s23
s_add_u32 s29, s28, 7168
s_and_b32 s25, {sRB}, 15
s_lshl_b32 s25, s25, 7
s_add_u32 s25, s25, {WS_G2 + 2048}
s_and_b32 s23, {sRB}, 3
s_lshl_b32 s23, s23, 2
s_add_u32 s23, s23, {sW}
s_mul_i32 s26, s23, {SLOT}
s_mul_i32 s23, {sCB}, {28*4096}
s_add_u32 s26, s26, s23
s_add_u32 s26, s26, {WS_WOUTF}
s_lshl_b32 s69, {sCB}, 16
s_add_u32 s69, s69, {WS_WOF}
s_lshl_b32 s16, s55, 1
s_lshl_b32 s23, {sCB}, 11
s_add_u32 s16, s16, s23
s_add_u32 s16, s16, {WS_X}
s_add_u32 s17, s16, 16384
s_lshl_b32 s23, {sCB}, 8
s_add_u32 s18, s23, {WS_G2}
s_add_u32 s30, s23, {WS_G2 + 2*2048}
""")
    for s_ in range(4): a(f"s_add_u32 s23, {sW}, {s_}\ns_and_b32 s23, s23, 3\ns_lshl_b32 s{70+s_}, s23, 16")
assert F_B == 0

STAG = "stag" in XP
if STAG: a("s_cmp_eq_u32 s0, 0\ns_cbranch_scc0 L_ns1")
setup_scalars()
a("L_ns1:")
PARLD = "\n".join(f"buffer_load_dwordx4 {vr(40+4*i,4)}, v3, {WS}, s23 offen offset:{i*1024} sc1" for i in range(4))
a("s_waitcnt vmcnt(0)")
a(tagcheck(list(range(40, 56))))
a("s_cbranch_vccz L_parok")
poll(PARLD, tagcheck(list(range(40, 56))), "-1", BKA)
a(f"L_parok:\ns_lshl_b32 s3, {sW}, 12\nv_add_u32 v5, s3, v3")
for i in range(4): a(f"ds_write_b128 v5, {vr(40+4*i,4)} offset:{L_PAR + i*1024}")
stamp("barP")
if STAG:
    a("s_cmp_eq_u32 s0, 0\ns_cbranch_scc1 L_ns2")
    setup_scalars()
    a(f"s_lshl_b32 s3, {sW}, 12\nL_ns2:")
LV, Lh, Lnkv, LV2, Lst, Lkve = (a.label(x) for x in ("isV", "hdone", "nokv", "isV2", "kvst", "kve"))
a(f"v_lshlrev_b32 v19, 5, v2\nv_add_u32 v19, s3, v19\ns_waitcnt lgkmcnt(0)\ns_bitcmp1_b32 {sCB}, 0\ns_cbranch_scc1 {LV}")
def hpass(isV):
    OFF = (2048, 0, 2064, 16)
    rd = lambda T, k: a(f"ds_read_b128 {vr(32 + (T & 1)*16 + 4*k, 4)}, v19 offset:{OFF[k] + T*128}")
    def kv(T):
        A, B = (vr(64+4*T,4), ar(4*T,4)) if isV else (ar(4*T,4), vr(64+4*T,4))
        a(f"v_mfma_f32_16x16x32_bf16 v[12:15], {A}, {B}, {'0' if T == 0 else 'v[12:15]'}")
    for T in range(2):
        for k in range(4): rd(T, k)
    for T in range(16):
        b = 32 + (T & 1) * 16
        for hf in range(2):
            a(f"s_waitcnt lgkmcnt({(6 if T < 15 else 2 - 2*hf) if T < 14 or hf == 0 and T == 14 else (4 if T == 14 else 2 - 2*hf)})")
            for k in range(2):
                x = 128 + 8*T + 4*hf + 2*k
                a(f"v_pk_fma_f32 {vr(x,2)}, {vr(x,2)}, {vr(b+8*hf+2*k,2)}, {vr(b+8*hf+4+2*k,2)}")
            if hf == 0 and T: kv(T - 1)
            if T + 2 < 16: rd(T + 2, 2*hf); rd(T + 2, 2*hf + 1)
            for k in range(2):
                x = 128 + 8*T + 4*hf + 2*k
                a(f"v_cvt_pk_bf16_f32 v{64+4*T+2*hf+k}, v{x}, v{x+1}")
    kv(15)
hpass(False)
a(f"s_branch {Lh}\n{LV}:")
hpass(True)
a(f"{Lh}:")
if "ms" in XP: stamp("h")
a(f"""
s_cmp_eq_u32 s0, 0
s_cbranch_scc0 {Lnkv}
s_lshl_b32 s23, {sRB}, 1
s_lshr_b32 s3, {sW}, 1
s_add_u32 s23, s23, s3
s_mul_i32 s23, s23, {REC}
s_add_u32 s23, s23, {WS_KV}
s_and_b32 s27, {sW}, 1
v_lshrrev_b32 v20, 5, v0
v_cvt_pk_bf16_f32 v36, v12, v13
v_cvt_pk_bf16_f32 v37, v14, v15
v_mov_b32 v38, v36
v_mov_b32 v39, v37
v_permlane16_swap_b32 v36, v38
v_permlane16_swap_b32 v37, v39
s_bitcmp1_b32 {sCB}, 0
s_cbranch_scc1 {LV2}
v_lshlrev_b32 v20, 9, v20
v_lshl_add_u32 v20, v1, 4, v20
s_lshl_b32 s27, s27, 8
s_add_u32 s23, s23, s27
s_add_u32 s23, s23, 1088
s_mov_b32 exec_lo, 0x0000ffff
s_mov_b32 exec_hi, 0x0000ffff
s_branch {Lst}
{LV2}:
v_mul_u32_u24 v20, 272, v20
v_and_b32 v4, 31, v0
v_lshl_add_u32 v20, v4, 4, v20
s_mul_i32 s27, s27, 544
s_add_u32 s23, s23, s27
s_mov_b32 exec_lo, 0xffff0000
s_mov_b32 exec_hi, 0xffff0000
v_mov_b32 v36, 0x3f803f80
v_mov_b32 v37, 0x3f803f80
v_mov_b32 v38, 0x3f803f80
v_mov_b32 v39, 0x3f803f80
s_mov_b32 exec_lo, 0x0001ffff
s_mov_b32 exec_hi, 0x0001ffff
{Lst}:
buffer_store_dwordx4 v[36:39], v20, {WS}, s23 offen sc1
s_mov_b64 exec, 1
s_add_u32 s3, {sXCC}, 1
v_mov_b32 v20, s3
s_lshl_b32 s23, {sCB}, 7
s_add_u32 s23, s23, s67
s_waitcnt vmcnt(0)
buffer_store_dword v20, v0, {WS}, s23 offen sc1
s_mov_b64 exec, -1
""")
if "ms" in XP: stamp("arr")
a(f"{Lnkv}:")
def trbase128(dst, rowexpr_v, fexpr_v, lbase):
    a(f"v_and_b32 v6, 3, v1\nv_lshlrev_b32 v6, 3, v6\nv_lshl_add_u32 v6, v{rowexpr_v}, 7, v6\nv_lshl_add_u32 v6, v{fexpr_v}, 5, v6\nv_add_u32 v{dst}, {lbase}, v6")
    for j in range(1, 4): a(f"v_xor_b32 v{dst+j}, {j*32}, v{dst}")
a("v_lshrrev_b32 v4, 2, v1\nv_bfe_u32 v5, v1, 3, 1\nv_and_b32 v7, 1, v2\nv_lshl_or_b32 v5, v7, 1, v5\nv_lshl_add_u32 v4, v2, 3, v4")
trbase128(24, 4, 5, L_WQ)
a("s_barrier")
BQ = lambda T, j: (32, 48, 144)[T % 3] + 4*j
rdq = lambda T, j: a(f"ds_read_b64_tr_b16 {vr(BQ(T, j),2)}, v{24+j} offset:{T*4096}\nds_read_b64_tr_b16 {vr(BQ(T, j)+2,2)}, v{24+j} offset:{T*4096+512}")
for n in range(8): rdq(n >> 2, n & 3)
deeploop(16, 4, rdq, lambda T, j: a(f"v_mfma_f32_16x16x32_bf16 {vr(128+4*j,4)}, {vr(BQ(T, j),4)}, {vr(64+4*T,4)}, {'0' if T == 0 else vr(128+4*j,4)}"),
         lambda T: None, nper=2)
for i in range(16): a(f"v_mul_f32 v{128+i}, {fbits(0.25*math.log2(math.e))}, v{128+i}")
for i in range(8): a(f"v_cvt_pk_bf16_f32 v{16+i}, v{128+2*i}, v{129+2*i}")
for e in range(2): a(f"v_permlane16_swap_b32 v{16+4*e}, v{18+4*e}\nv_permlane16_swap_b32 v{17+4*e}, v{19+4*e}")
stamp("q")
a(f"""
v_add_u32 v24, {L_KV + 1088}, v3
v_add_u32 v25, {31*REC}, v24
v_add_u32 v26, {31*REC}, v25
v_lshrrev_b32 v4, 5, v0
v_mul_u32_u24 v4, 272, v4
v_and_b32 v5, 31, v0
v_lshl_add_u32 v4, v5, 4, v4
v_add_u32 v27, {L_KV}, v4
v_mov_b32 v4, 0x40000
v_cmp_lt_u32 vcc, {16 if PADZERO else 99}, v5
v_mov_b32 v31, {OOB}
v_mov_b32 v30, 0xdddd
v_cndmask_b32 v27, v27, v4, vcc
v_add_u32 v28, {31*REC}, v27
v_add_u32 v29, {31*REC}, v28
v_lshrrev_b32 v7, 3, v0
v_and_b32 v6, 7, v0
v_xor_b32 v5, v6, v2
v_lshlrev_b32 v5, 4, v5
v_lshl_add_u32 v168, v7, 12, v5
v_xor_b32 v169, 64, v168
v_add_u32 v169, {0x8000 - 1024}, v169
v_lshrrev_b32 v4, 1, v1
v_xor_b32 v4, v4, v2
v_lshlrev_b32 v4, 4, v4
v_lshl_add_u32 v4, v1, 7, v4
v_add_u32 v170, s77, v4
v_xor_b32 v171, 64, v170
v_lshlrev_b32 v4, 10, v1
v_lshl_add_u32 v172, v2, 3, v4
v_lshrrev_b32 v4, 2, v0
v_lshlrev_b32 v4, 12, v4
v_and_b32 v5, 3, v0
v_lshl_add_u32 v4, v5, 7, v4
v_cmp_gt_u32 vcc, 32, v0
v_lshlrev_b32 v5, 7, v6
v_lshl_add_u32 v5, v7, 12, v5
v_cndmask_b32 v173, {"v31, v4" if "half" in XP else "v5, v5"}, vcc
v_lshlrev_b32 v6, 4, v6
v_mad_u32_u24 v176, v7, s74, v6
v_lshrrev_b32 v4, 2, v1
v_and_b32 v5, 1, v2
v_mad_u32_u24 v4, v5, s75, v4
v_lshrrev_b32 v5, 1, v2
v_mad_u32_u24 v4, v5, s76, v4
v_and_b32 v5, 3, v1
v_lshlrev_b32 v5, 3, v5
v_lshl_add_u32 v4, v4, 7, v5
v_add_u32 v177, s68, v4
v_add_u32 v178, s1, v177
v_lshlrev_b32 v4, 7, v0
v_cmp_gt_u32 vcc, 32, v0
v_cmp_gt_u32 s[74:75], 33, v0
v_mov_b32 v199, 1
v_lshlrev_b32 v218, 4, v2
v_cndmask_b32 v196, v31, v4, vcc
v_cndmask_b32 v197, v31, v4, s[74:75]
v_cmp_gt_u32 vcc, 14, v0
v_cmp_gt_u32 s[74:75], 4, v0
s_nop 0
v_cndmask_b32 v175, v31, v4, vcc
v_cndmask_b32 v174, v31, v4, s[74:75]
v_cmp_eq_u32 vcc, 0, v0
v_and_b32 v7, 1, v0
v_lshlrev_b32 v5, 4, v7
v_cndmask_b32 v198, v31, v4, vcc
v_lshrrev_b32 v4, 2, v0
v_mul_u32_u24 v4, 6144, v4
v_and_b32 v5, 3, v0
v_lshl_add_u32 v212, v5, 4, v4
v_lshrrev_b32 v4, 2, v1
v_lshl_add_u32 v4, v2, 3, v4
v_lshlrev_b32 v4, 6, v4
v_lshl_add_u32 v4, v5, 3, v4
v_add_u32 v213, s35, v4
v_cvt_f32_u32 v219, v7
v_sub_f32 v219, 1.0, v219
v_lshlrev_b32 v4, 2, v0
v_cmp_gt_u32 vcc, 32, v0
s_cmp_eq_u32 {sW}, 0
s_cselect_b32 s3, 64, 48
v_cmp_gt_u32 s[74:75], s3, v0
v_lshlrev_b32 v5, 11, v7
v_cndmask_b32 v214, v31, v4, vcc
v_cndmask_b32 v215, v31, v4, s[74:75]
v_sub_u32 v4, 2048, v5
v_add_u32 v4, v218, v4
v_and_b32 v5, 2, v0
v_cmp_eq_u32 vcc, 0, v5
v_mul_u32_u24 v5, {WS_ST2 - WS_ST1}, v7
v_cndmask_b32 v216, v31, v4, vcc
v_lshlrev_b32 v4, 7, v1
v_lshl_add_u32 v4, v2, 14, v4
v_cmp_gt_u32 vcc, 32, v0
v_cmp_gt_u32 s[74:75], 2, v0
v_mov_b64 v[80:81], 0
v_mov_b64 v[82:83], 0
v_cndmask_b32 v202, v31, v4, vcc
v_cndmask_b32 v217, v31, v5, s[74:75]
""")
for i in range(2, 16): a(f"v_mov_b64 {vr(80+2*i,2)}, 0")
if "ms" in XP: stamp("setup")
BKB = int(([x[3:] for x in XP if x.startswith("bk:")] or ["6"])[0])
a(f"v_lshlrev_b32 v5, 7, v0\ns_lshl_b32 s23, {sW}, 13")
a(f"buffer_load_dword v4, v5, {WS}, s23 offen sc1")
a("s_waitcnt vmcnt(0)\nv_cmp_eq_u32 vcc, 0, v4\ns_cbranch_vccz L_bok")
poll(f"buffer_load_dword v4, v5, {WS}, s23 offen sc1", "v_cmp_eq_u32 vcc, 0, v4", "-1", BKB)
a("L_bok:")
a("s_waitcnt lgkmcnt(0)\ns_barrier")
stamp("barB")
Lne = a.label("noep")
a(f"s_or_b32 s3, s2, {sW}\ns_cbranch_scc1 {Lne}\nv_mov_b32 v4, {sEP}\ns_mov_b32 s3, {WS_EPOCH}\nbuffer_store_dword v4, v198, {WS}, s3 offen sc1\n{Lne}:")
a(f"s_cmp_eq_u32 {sW}, 3\ns_cbranch_scc0 L_nkt\nbuffer_load_dword v200, v197, {WS}, s66 offen sc1\nL_nkt:")
vm.n = 0
def kv_group(i):
    if i < 16:
        return (["s_mov_b32 m0, s65"], [f"buffer_load_dwordx4 v3, {WS}, s64 offen sc1 lds", f"buffer_load_dwordx4 v3, {WS}, s64 offen offset:1024 sc1 lds"],
                f"kvg{i}", ["s_add_u32 s64, s64, 8192", "s_add_u32 s65, s65, 8192"])
    return ([f"s_lshl_b32 s3, {sW}, 10", "s_sub_u32 s64, s64, s3", "s_sub_u32 m0, s65, s3"], [f"buffer_load_dwordx4 v3, {WS}, s64 offen sc1 lds"], "kvg16", [])
def emit_item(x):
    pre, ins, tag, post = x
    for p in pre: a(p)
    for q_ in ins: vm.op(q_, tag)
    for p in post: a(p)
for i in range(2): emit_item(kv_group(i))

def win_items(half, grp, slot0, tag):
    ld = lambda i: f"buffer_load_dwordx4 v3, {WS}, s74 offen offset:{(i & 3)*1024} sc1 lds"
    first = [f"s_add_u32 s74, s21, {4*grp}", "s_and_b32 s74, s74, 15", "s_add_u32 s74, s74, s22", f"s_mul_i32 s74, s74, {SLOT}", f"s_add_u32 s74, s74, {WS_WINF + half*16*SLOT}"] + slot0
    return [(first + ["s_mov_b32 m0, s75"], [ld(0), ld(1)], tag, []), (["s_mov_b32 m0, s75"], [ld(2), ld(3)], tag, ["s_add_u32 s74, s74, 4096", "s_add_u32 s75, s75, 4096"]),
            (["s_mov_b32 m0, s75"], [ld(4), ld(5)], tag, []), (["s_mov_b32 m0, s75"], [ld(6)], tag, [])]
def lin_slot(base): return [f"s_mul_i32 s75, {sW}, {SLOT}", f"s_add_u32 s75, s75, {base}"]

def kaddr(t): return f"v{24 + t//31} offset:{(t % 31)*REC}"
def vaddr(t, m): return f"v{27 + t//31} offset:{(t % 31)*REC + m*544}"
Kb = lambda t: vr(144 + 4*(t & 1), 4)
Vb = lambda t, m: vr(152 + 8*(t & 1) + 4*m, 4)
Sb = lambda u: 32 + 16*(u % 3)
Q = lambda e: vr(16 + 4*e, 4)
O = lambda e: 80 + 16*e
C = lambda e: 112 + 16*e
vm.wait("kvg0"); a("s_barrier")
stamp("kv0")
if "clk" in XP: a("s_memtime s[96:97]\ns_memrealtime s[98:99]\ns_waitcnt lgkmcnt(0)")
a(f"ds_read_b128 {Kb(0)}, {kaddr(0)}\nds_read_b128 {Kb(1)}, {kaddr(1)}\ns_waitcnt lgkmcnt(1)")
for e in range(2): a(f"v_mfma_f32_32x32x16_bf16 {vr(32+16*e,16)}, {Kb(0)}, {Q(e)}, 0")
def rowmax(first):
    for i in range(0, 16, 2):
        for e in range(2):
            if first and i == 0: a(f"v_max_f32 v{4+e}, v{32+16*e}, v{33+16*e}")
            else: a(f"v_max3_f32 v{4+e}, v{32+16*e+i}, v{33+16*e+i}, v{4+e}")
def negbcast():
    a("v_mov_b32 v6, v4\nv_mov_b32 v7, v5\nv_permlane32_swap_b32 v4, v6\nv_permlane32_swap_b32 v5, v7")
    for e in range(2): a(f"v_max_f32 v{4+e}, v{4+e}, v{6+e}")
    for e in range(2): a(f"v_sub_f32 v{C(e)}, 0, v{4+e}\nv_sub_f32 v{C(e)+1}, 0, v{4+e}")
    for e in range(2):
        for i in range(2, 16, 2): a(f"v_mov_b64 {vr(C(e)+i,2)}, {vr(C(e),2)}")
a.note("""Softmax shift: each query's max over the first 32 keys is subtracted through the MFMA C operand (scores are in log2 units).
After the last key the row sums are checked; if any is not < 2^40 the two query tiles are redone with the true row max (L path at the end).
P goes to the sparse MFMA as raw f32: the index 0xdddd picks the high (bf16) half of every register; row 16 of V^T is ones and yields the row sum.""")
rowmax(True); negbcast()
a(f"v_mfma_f32_32x32x16_bf16 {vr(Sb(0),16)}, {Kb(0)}, {Q(0)}, {vr(C(0),16)}")

plan = {}
TW, TARR, TK, TW2 = (int(x) for x in ([x[3:] for x in XP if x.startswith('tw:')] or ['6,28,8,13'])[0].split(','))
SH = int(([x[3:] for x in XP if x.startswith('sh:')] or ['0'])[0])
TP, TR = 19, 28 + SH
def put(t, slot, x): plan.setdefault((t, slot), []).append(x)
PREV = {"e1x": ("e0", 0), "o0": ("e1", 0), "e1": ("e0", 0), "eq": ("o1", -1), "oq": ("e1", 0), "e0": ("o1", -1)}
assert True
def vitem(t, slot, x):
    pre, ins, tag, post = x
    ps, dt = PREV[slot]
    pre = [p + " " for p in pre]
    m0 = [p for p in pre if " m0," in p]; rest = [p for p in pre if " m0," not in p]
    if t + dt < 0 or len(pre) > 2:
        pp, dd = PREV[ps] if ps in PREV else ("o0", 0)
        if t + dt + dd < 0: put(t, slot, ("salu", pre))
        else: put(t + dt + dd, pp + "a", ("salu", rest)); put(t + dt, ps + "a", ("salu", m0))
    else: put(t + dt, ps + "a", ("salu", pre))
    put(t, slot, ("vm", ins, tag, m0[0] if m0 else None))
    if post: put(t, slot, ("salu", post))
for i in range(2, 8): vitem((i - 2) // 2, ("e1", "o0")[i & 1], kv_group(i))
KVE = False
TK = int(([x[3:] for x in XP if x.startswith('tk:')] or ['24'])[0])
for i in range(8, 16): vitem(TK + (i - 8) // 2, ("e1", "o0")[i & 1], kv_group(i))
vitem(TK + 4, "eq", kv_group(16))
late = [x.text for _, x in capture(late_scalars)]
free = [(t, k) for t in range(0, 3) for k in ("o1a",)] + [(3, "o1a"), (4, "o1a"), (3, "e0b"), (4, "e0b"), (5, "e0b")] + [(t, k) for t in range(6, 19) for k in ("e0a", "e1a", "o1a")]
free.sort(key=lambda x: (x[0], ("e0b", "e0a", "e1a", "o1a").index(x[1])))
n_ = 0
for t, k in free:
    cnt = 3 if t < 5 else 2
    while n_ + cnt < len(late) and late[n_ + cnt].startswith("s_addc"): cnt += 1
    if n_ < len(late): put(t, k, ("salu", late[n_:n_ + cnt]))
    n_ += cnt
assert n_ >= len(late)
for n, so in enumerate(("0", "s20", "s21", "s22")):
    vitem((8 if KVE else 3) + (n >> 1), ("e1", "o0")[n & 1], ([f"s_add_u32 m0, s68, {n*1024}"], [f"buffer_load_dwordx4 v176, {R2}, {so} offen lds"], "praw", []))
put(1, "eq", ("vm", [f"buffer_load_dword v253, v196, {WS}, s67 offen sc1"], None))
if PLAIN:
    for n in range(2):
        put(44 + SH + n, "e1", ("vm", [f"buffer_store_dwordx4 v[16:19], v3, {WS}, s{16+n} offen offset:{i*1024} sc1" for i in range(2)], None))
    put(53, "e1", ("vm", [f"buffer_load_dword v200, v202, {WS}, s16 offen"], None))
for j in range(8): put((51, 58, 52, 53, 54, 55, 56, 57)[j], "oq", ("vm", [f"buffer_load_dwordx4 {vr(220+4*j,4)}, v218, {WS}, s{18 if j < 4 else 30} offen offset:{(j & 3)*64} sc1"], None))
put(TW, "o0", ("vm", [f"buffer_load_dword v200, v173, {R0}, s19 offen"], None))
if "half" in XP: put(TW2, "o0", ("vm", [f"buffer_load_dword v200, v173, {R0}, s19 offen offset:512"], None))
put(3, "eq", ("vm", [f"buffer_load_dword v200, v198, {WS}, {sGRP} offen sc1"], None))
put(5, "oq", ("vm", [f"buffer_load_dword v200, v217, {WS}, s31 offen sc1"], None))
vitem(5, "e1", (["s_mov_b32 m0, s35"], [f"buffer_load_dwordx4 v212, {R3}, 0 offen lds"], None, []))
vitem(5, "o0", ([f"s_mov_b32 s3, {16*6144}", "s_add_u32 m0, s35, 1024"], [f"buffer_load_dwordx4 v212, {R3}, s3 offen lds"], "praw", []))
put(12, "e0a", ("salu", [f"s_lshl_b32 s21, {sCB}, 1", f"s_add_u32 s21, s21, {sW}"]))
put(12, "e1a", ("salu", [f"s_lshl_b32 s22, {sCB}, 5", "s_lshl_b32 s1, s21, 12"]))
put(TP - 1, "o1b", ("wait", "praw"))
put(TP - 1, "o1x", ("ds", ["ds_read_b64_tr_b16 v[220:221], v213", "ds_read_b64_tr_b16 v[222:223], v213 offset:256"]))
put(TP, "e0", ("ds", ["ds_read_b64_tr_b16 v[224:225], v213 offset:32", "ds_read_b64_tr_b16 v[226:227], v213 offset:288"]))
put(TP, "o0", ("salu", ["v_mfma_f32_16x16x32_bf16 v[228:231], v[8:11], v[220:223], 0", "v_mfma_f32_16x16x32_bf16 v[232:235], v[8:11], v[224:227], 0"]))
put(TP + 1, "e0", ("salu", ["s_mov_b32 exec_lo, 0xffff0000", "v_mov_b32 v228, v232", "s_mov_b32 exec_lo, -1"]))
put(TP + 1, "e1", ("vm", [f"buffer_atomic_add_f32 v228, v214, {WS}, s34 offen"], None))
put(50, "eq", ("vm", [f"buffer_load_dwordx4 v[204:207], v216, {WS}, s25 offen sc1"], None))
put(50, "oq", ("vm", [f"buffer_load_dwordx4 v[208:211], v216, {WS}, s25 offen offset:64 sc1"], "xop"))
put(53, "e0b", ("wait", "xop"))
put(53, "e0", ("salu", [x.text for _, x in capture(lambda: round_bf16(list(range(204, 212))))]))
put(53, "o0x", ("salu", [f"v_add_f32 v{204+i}, v219, v{204+i}" for i in range(8)] + [f"v_cvt_pk_bf16_f32 v{204+i}, v{204+2*i}, v{205+2*i}" for i in range(4)]))
DJ = (168, 208, 176, 224)
put(54, "e0", ("salu", [f"v_mfma_f32_16x16x32_bf16 {vr(DJ[j],4)}, v[204:207], {vr(180+4*j,4)}, 0" for j in range(4)]))
put(55, "e0", ("salu", ["s_mov_b32 exec_lo, 0xffff0000", "s_mov_b32 exec_hi, 0", "v_mov_b64 v[168:169], v[208:209]",
                        "s_mov_b32 exec_lo, 0", "s_mov_b32 exec_hi, 0x0000ffff", "v_mov_b64 v[168:169], v[176:177]",
                        "s_mov_b32 exec_hi, 0xffff0000", "v_mov_b64 v[168:169], v[224:225]", "s_mov_b64 exec, -1"]))
put(55, "e1", ("vm", [f"buffer_atomic_add_f32 v168, v215, {WS}, s28 offen", f"buffer_atomic_add_f32 v169, v215, {WS}, s29 offen"], "cat"))
put(57, "e0a", ("salu", [f"s_lshl_b32 s27, {sCB}, 8", f"s_add_u32 s27, s27, {F_Q}"]))
put(57, "o1a", ("salu", [f"s_lshl_b32 s28, {sW}, 7", "s_add_u32 s28, s28, s27"]))
put(58, "e0a", ("salu", [f"s_cmp_lt_u32 {sW}, 2", f"s_cselect_b32 s28, s28, {WS_SIZE}"]))
put(59, "e1b", ("wait", "cat"))
put(59, "e1", ("vm", [f"buffer_atomic_add v199, v198, {WS}, s28 offen sc1"], None))
for j in range(4):
    put(TP + (j >> 1), ("eq", "oq")[j & 1], ("ds", [f"ds_read_b64_tr_b16 {vr(180+4*j,2)}, v177 offset:{j*32}", f"ds_read_b64_tr_b16 {vr(182+4*j,2)}, v178 offset:{j*32}"]))
put(20, "o0", ("vm", [f"buffer_store_dwordx4 {vr(180+4*j,4)}, v3, {WS}, s36 offen offset:{j*1024} sc1" for j in (0, 1)], None))
put(21, "o0", ("vm", [f"buffer_store_dwordx4 {vr(188,4)}, v3, {WS}, s24 offen offset:2048 sc1", f"buffer_store_dwordx4 {vr(192,4)}, v3, {WS}, s37 offen offset:3072 sc1"], "pat"))
put(TARR, "o1b", ("wait", "pat"))
put(TARR + 1, "eq", ("vm", [f"buffer_atomic_add v199, v198, {WS}, s39 offen sc1"], None))
put(41, "oq", ("vm", [f"buffer_load_dword v201, v174, {WS}, s27 offen sc1"], "pchk"))
put(47, "oq", ("vm", [f"buffer_load_dword v201, v196, {WS}, s38 offen sc1"], "gchk"))
for k in range(36):
    t, hf = TR + (k >> 1), k & 1
    if k < 32:
        T2, s_ = k >> 2, k & 3
        if s_ == 0: pass
        vitem(t, ("e1", "o0")[hf], ([f"s_add_u32 s75, s{70+s_}, {T2*128}", f"s_add_u32 m0, s77, {(k % 6)*2048}"],
                                    [f"buffer_load_dwordx4 v168, {R0}, s75 offen lds", f"buffer_load_dwordx4 v169, {R0}, s75 offen offset:1024 lds"], f"ring{k}", []))
    if k >= 4:
        T2, s_ = (k - 4) >> 2, (k - 4) & 3
        if hf == 0: put(t - 1, "o1b", ("wait", f"ring{k-3}"))
        for e_ in range(2): put(t, (("eq", "e0"), ("oq", "o1x"))[hf][e_], ("ds", [f"ds_read_b128 {ar(((2*T2+e_)*4+s_)*4,4)}, v{170+e_} offset:{((k-4) % 6)*2048}"]))
for grp, t0 in ((0, 44 + SH), (1, 56 + SH)):
    for n, x in enumerate(win_items(1, grp, lin_slot(slotA(4*grp)), f"z2g{grp}")): vitem(t0 + n, "o0", x)
if True:
    for n, x in enumerate(win_items(1, 2, lin_slot(slotA(8)), "z2g2")): vitem(60 + SH + (n >> 1), ("e1", "o0")[n & 1], x)
for n in range(8):
    pre = ([f"s_lshl_b32 s76, {sW}, 12"] if n == 0 else []) + (["s_and_b32 s74, s1, 0xffff", "s_add_u32 s74, s74, s69"] if n & 1 == 0 else [])
    post = ["s_add_u32 s1, s1, 16384", "s_add_u32 s76, s76, 16384"] if n & 1 else []
    vitem(48 + SH + n, "o0", (pre + ["s_mov_b32 m0, s76"], [f"buffer_load_dwordx4 v3, {WS}, s74 offen offset:{(2*(n & 1) + i)*1024} sc1 lds" for i in range(2)], "wo", post))
for n in range(2): put(58 + n, "eq", ("vm", [f"buffer_load_dwordx2 {vr(8+2*j,2)}, v172, {R1}, 0 offen offset:{j*32}" for j in (2*n, 2*n + 1)], None))
if "noz1t" not in XP:
    for n in range(4):
        put(48 + 3*n + (n > 1), "e1", ("vm", [f"buffer_load_dword v200, v175, {WS}, s23 offen sc1"], None))
        put(48 + 3*n + (n > 1), "o1a", ("salu", ["s_add_u32 s23, s23, 1792"]))
    put(46, "o1a", ("salu", [f"s_and_b32 s23, {sRB}, 3", "s_lshl_b32 s23, s23, 2"]))
    put(47, "e0a", ("salu", [f"s_add_u32 s23, s23, {sW}", f"s_lshl_b32 s3, {sCB}, 5"]))
    put(47, "e1a", ("salu", ["s_add_u32 s23, s23, s3", f"s_mul_i32 s23, s23, {SLOT}"]))
    put(47, "o1a", ("salu", [f"s_add_u32 s23, s23, {WS_WINF}"]))
if "noextra" in XP: raise SystemExit("noextra unsupported")
syncs = {3: "kvg1", 7: "kvg7", 27: None, 31: "kvg16", 35: None, 48 + SH: None, 60: "wo"}
last_m0 = [None]
def slot(t, k):
    for x in plan.pop((t, k), []):
        if x[0] == "salu":
            for p in x[1]:
                a(p)
                if " m0," in p: last_m0[0] = p
        elif x[0] == "vm":
            if len(x) > 3 and x[3] is not None and x[3] is not last_m0[0]:
                a(x[3]); last_m0[0] = x[3]
            for q_ in x[1]: vm.op(q_, x[2])
        elif x[0] == "ds":
            for q_ in x[1]: a(q_)
        else: vm.wait(x[1])
for u in range(128):
    t, e = u >> 1, u & 1
    S = Sb(u)
    ex = [f"v_exp_f32 v{S+i}, v{S+i}" for i in range(16)]
    pf = "eo"[e]
    if u + 1 < 128:
        t1, e1 = (u + 1) >> 1, (u + 1) & 1
        a(f"v_mfma_f32_32x32x16_bf16 {vr(Sb(u+1),16)}, {Kb(t1)}, {Q(e1)}, {vr(C(e1),16)}")
    a("s_waitcnt lgkmcnt(0)")
    if e == 1 and t + 2 in syncs:
        if syncs[t + 2]: vm.wait(syncs[t + 2])
        a("s_barrier")
    if "tst" in XP and e == 0 and t in (2, 4, 8, 11, 14, 17, 20, 23, 26, 28, 30, 34, 38, 42, 46, 50, 54, 58, 61): stamp(f"t{t}")
    if u == 86:
        vm.wait("pchk")
        a("v_cmp_gt_u32 vcc, 32, v201\ns_nop 1\ns_and_b32 s3, vcc_lo, 15\ns_cbranch_scc1 L_pwait\nL_pok:")
    if u == 100:
        vm.wait("gchk")
        a("v_cmp_gt_u32 vcc, 32, v201\ns_nop 1\ns_cmp_lg_u32 vcc_lo, 0\ns_cbranch_scc1 L_gwait\nL_gok:")
    slot(t, pf + "q")
    for x in ex[0:3]: a(x)
    Sp, tp, ep = Sb(u - 1), (u - 1) >> 1, (u - 1) & 1
    if u > 0: a(f"v_smfmac_f32_32x32x32_bf16 {vr(O(ep),16)}, {Vb(tp,0)}, {vr(Sp,8)}, v30")
    slot(t, pf + "0b")
    if e == 0:
        slot(t, "e0a"); a(f"ds_read_b128 {Vb(t,0)}, {vaddr(t,0)}"); slot(t, "e0")
    else:
        slot(t, "o0"); slot(t, "o0a"); slot(t, "o0x")
    for x in ex[3:7]: a(x)
    if u > 0: a(f"v_smfmac_f32_32x32x32_bf16 {vr(O(ep),16)}, {Vb(tp,1)}, {vr(Sp+8,8)}, v30")
    slot(t, pf + "1b")
    if e == 0:
        slot(t, "e1"); slot(t, "e1x"); slot(t, "e1a"); a(f"ds_read_b128 {Vb(t,1)}, {vaddr(t,1)}")
    else:
        slot(t, "o1a")
        if t + 2 < 64: a(f"ds_read_b128 {Kb(t+2)}, {kaddr(t+2)}")
        slot(t, "o1x")
    for x in ex[7:16]: a(x)
assert not plan, plan.keys()
for m in range(2): a(f"v_smfmac_f32_32x32x32_bf16 {vr(O(1),16)}, {Vb(63,m)}, {vr(Sb(127)+8*m,8)}, v30")
if "clk" in XP: a("s_memtime s[100:101]\ns_memrealtime s[78:79]\ns_waitcnt lgkmcnt(0)\ns_sub_u32 s100, s100, s96\ns_sub_u32 s101, s78, s98")
stamp("attn")
Lfb, Lok = a.label("fb"), a.label("ok")
def getl():
    for e in range(2): a(f"v_mov_b32 v{4+2*e}, v{O(e)+8}\nv_mov_b32 v{5+2*e}, v{O(e)+8}")
    for e in range(2): a(f"v_permlane32_swap_b32 v{4+2*e}, v{5+2*e}")
a(f"""
s_add_u32 s3, {sXCC}, 1
v_cmp_ne_u32 vcc, s3, v253
s_lshl_b32 s65, {sCB}, 2
v_add_u32 v254, s65, v198
v_lshlrev_b32 v255, 2, v0
v_mov_b32 v29, v174
s_and_b32 s3, vcc_lo, 0xff
s_cselect_b32 {sFAST}, 0, {0 if FORCE_SLOW else 1}
v_mov_b32 v32, {fbits(2.0**40 if not FORCE_FB else -1.0)}
""")
if "probe" in XP:
    a(f"s_cmp_eq_u32 {sFAST}, 0\ns_cbranch_scc0 L_pr\ns_mov_b32 s3, 12\nL_pr0:\ns_sleep 127\ns_sub_u32 s3, s3, 1\ns_cmp_lg_u32 s3, 0\ns_cbranch_scc1 L_pr0\nL_pr:")
getl()
a(f"v_add_f32 v5, v4, v6\nv_cmp_nlt_f32 vcc, v5, v32\ns_cbranch_vccnz {Lfb}\n{Lok}:")
for e in range(2): a(f"v_rcp_f32 v{4+2*e}, v{4+2*e}")
for e in range(2):
    for i in range(4): a(f"v_pk_mul_f32 {vr(O(e)+2*i,2)}, {vr(O(e)+2*i,2)}, {vr(4+2*e,2)} op_sel_hi:[1,0]")
for e in range(2):
    for i in range(4): a(f"v_cvt_pk_bf16_f32 v{64+4*e+i}, v{O(e)+2*i}, v{O(e)+2*i+1}")
both_data(lambda sc: [vm.op(f"buffer_store_dwordx4 {vr(64+4*e,4)}, v3, {WS}, s16 offen offset:{e*1024}{sc}") for e in range(2)])
B3 = lambda T, j: 144 + (T % 3)*16 + 4*j
rd3 = lambda T, j: a(f"ds_read_b128 {vr(B3(T, j),4)}, v3 offset:{L_WO + T*4096 + j*1024}")
for n in range(8): rd3(n >> 2, n & 3)
hop_signal(1)
stamp("opub")
SL = (70, 71, 72, 73, 76, 0, 1)
def block_offsets(base, size):
    for b in range(7): a(f"s_add_u32 s3, {sCB}, {1 + b}\ns_and_b32 s3, s3, 7\ns_mul_i32 s3, s3, {size}\ns_add_u32 s{SL[b]}, s3, {base}")
def frag_load(T, tag):
    vm.op(f"buffer_load_dwordx4 {vr(64+4*T,4)}, v3, {WS}, s{SL[T//2 - 1]} offen offset:{(T & 1)*1024} sc1", f"{tag}{T}")
AH = 8
def bef3(T):
    if T == 2:
        round_bf16(list(range(220, 252)))
        for i in range(16): a(f"v_add_f32 v{236+i}, 1.0, v{236+i}")
        round_bf16(list(range(236, 252)))
        for i in range(8): a(f"v_lshlrev_b32 v{32+2*i}, 16, v{8+i}\nv_and_b32 v{33+2*i}, 0xffff0000, v{8+i}")
        a(f"""
v_mov_b32 v31, v218
s_lshl_b32 s77, s55, 1
s_add_u32 s77, s77, {WS_X}
s_lshr_b32 s68, s55, 4
s_lshl_b32 s3, {sCB}, 7
s_add_u32 s69, s68, s3
s_add_u32 s67, s69, {WS_ST1}
v_lshlrev_b32 v6, 3, v1
""")
        block_offsets("s77", 2048)
        hop_wait(1)
        stamp("C")
        for t_ in range(2, 2 + AH): frag_load(t_, "o")
def aft3(T, j):
    if j == 0 and T >= 2 and T + AH < 16: frag_load(T + AH, "o")
    if j == 0 and T == 12: vm.op(f"buffer_load_dword v252, v29, {WS}, s27 offen sc1")
deeploop(16, 4, rd3,
         lambda T, j: a(f"v_mfma_f32_16x16x32_bf16 {vr(128+4*j,4)}, {vr(B3(T, j),4)}, {vr(64+4*T,4)}, {'0' if T == 0 else vr(128+4*j,4)}"),
         lambda T: f"o{T}" if T >= 2 else None, before=bef3, after=aft3)
stamp("p3mm")
for i in range(8): a(f"v_pk_fma_f32 {vr(32+2*i,2)}, {vr(128+2*i,2)}, {vr(220+2*i,2)}, {vr(32+2*i,2)}")
for i in range(8): a(f"v_cvt_pk_bf16_f32 v{8+i}, v{32+2*i}, v{33+2*i}")
for i in range(8): a(f"v_lshlrev_b32 v{32+2*i}, 16, v{8+i}\nv_and_b32 v{33+2*i}, 0xffff0000, v{8+i}")
for i in range(8): a(f"v_pk_mul_f32 {vr(236+2*i,2)}, {vr(236+2*i,2)}, {vr(32+2*i,2)}")
for i in range(8): a(f"v_cvt_pk_bf16_f32 v{64+i}, v{236+2*i}, v{237+2*i}")
both_data(lambda sc: [vm.op(f"buffer_store_dwordx4 {vr(64+4*p,4)}, v3, {WS}, s17 offen offset:{p*1024}{sc}") for p in range(2)])
a("v_pk_mul_f32 v[88:89], v[32:33], v[32:33]\nv_pk_add_f32 v[90:91], v[32:33], v[34:35]\nv_pk_mul_f32 v[94:95], v[34:35], v[34:35]\nv_pk_add_f32 v[96:97], v[36:37], v[38:39]")
for i in range(2, 8): a(f"v_pk_fma_f32 {vr(88 + 6*(i & 1),2)}, {vr(32+2*i,2)}, {vr(32+2*i,2)}, {vr(88 + 6*(i & 1),2)}")
for i in range(4, 8): a(f"v_pk_add_f32 {vr(90 + 6*(i & 1),2)}, {vr(90 + 6*(i & 1),2)}, {vr(32+2*i,2)}")
a("v_pk_add_f32 v[88:89], v[88:89], v[94:95]\nv_pk_add_f32 v[90:91], v[90:91], v[96:97]\nv_add_f32 v93, v88, v89\nv_add_f32 v92, v90, v91")
xgroup_sum2(92, 94, 93, 95)
a("s_mov_b64 exec, 0xffff")
both_data(lambda sc: vm.op(f"buffer_store_dwordx2 v[92:93], v6, {WS}, s67 offen{sc}"))
a(f"""
s_mov_b64 exec, -1
v_add_u32 v25, 0xe000, v3
v_add_u32 v26, 0xe000, v25
v_and_b32 v4, 7, v1
v_lshlrev_b32 v4, 7, v4
v_lshl_add_u32 v30, v2, 5, v4
v_lshlrev_b32 v4, 8, v2
v_lshl_add_u32 v27, v1, 3, v4
""")
stamp("p3ep")
hop_signal(2)
stamp("ypub")
WB = (32, 204)
def rdl(dst, addr):
    w_, off = divmod(addr, 0xe000)
    a(f"ds_read_b128 {vr(dst,4)}, v{(3, 25, 26)[w_]} offset:{off}")
a(f"""
s_barrier
s_and_b32 s3, {sW}, 1
s_mul_i32 s66, s3, 3584
s_lshl_b32 s3, s3, 10
s_add_u32 m0, s3, {L_SM}
s_mul_i32 s3, {sCB}, 448
s_add_u32 s66, s66, s3
s_add_u32 s66, s66, {WS_C12}
v_add_u32 v6, {7168 - 448}, v3
v_cmp_gt_u32 vcc, 28, v0
v_cndmask_b32 v6, v6, v3, vcc
v_cmp_gt_u32 vcc, 32, v252
s_nop 1
s_and_b32 s3, vcc_lo, 3
s_cbranch_scc1 L_qwait
L_qok:
""")
vm.op(f"buffer_load_dwordx4 v6, {WS}, s66 offen sc1 lds")
for x in win_items(1, 3, [f"s_mul_i32 s75, {sW}, {SLOT}", f"s_sub_u32 s75, s75, {SLOT}", f"s_cmp_eq_u32 {sW}, 0", f"s_cselect_b32 s75, {slotA(12)}, s75"], "z2g3"): emit_item(x)
for j in range(7): rdl(WB[0] + 4*j, slot_z2(0) + j*1024)
a(f"v_add_u32 v29, {L_SM}, v31\nv_lshlrev_b32 v24, 2, v1\nv_add_u32 v24, {L_SM + 1024}, v24\ns_add_u32 s66, s68, {WS_ST1}")
def d_wait():
    for b in SL: a(f"s_add_u32 s{b}, s{b}, 16384")
    hop_wait(2)
    stamp("D")
    vm.op(f"buffer_load_dwordx2 v[172:173], v27, {WS}, s66 offen sc1")
    vm.op(f"buffer_load_dwordx2 v[174:175], v27, {WS}, s66 offen offset:128 sc1", "st1")
    for t_ in range(2, 2 + AH): frag_load(t_, "y")
    a(f"v_lshlrev_b32 v4, 7, v0\nv_mov_b32 v27, {OOB}\nv_cmp_gt_u32 vcc, 14, v0\nv_cndmask_b32 v27, v27, v4, vcc")
    vm.wait("st1")
    a("v_pk_add_f32 v[172:173], v[172:173], v[174:175]")
    xgroup_sum2(172, 174, 173, 175)
    finish_stats([(172, 173, 62, 28, None)], 512)
    a(f"v_mul_f32 v62, v62, v28\nv_mov_b32 v60, {fbits(-2*math.log2(math.e)*math.sqrt(2/math.pi))}\nv_mov_b32 v61, v60")
    for i in range(4): a(f"ds_bpermute_b32 v{20+i}, v31, v28 offset:{4*i}\nds_bpermute_b32 v{16+i}, v31, v62 offset:{4*i}")
CP = [232, 234, 236, 238, 240, 242, 244]
z1items = {g_: win_items(0, g_, lin_slot(slotB(3) if g_ == 0 else slotA(4*(g_ - 1))), f"z1g{g_}") for g_ in range(4)}
def bef(T):
    if T == 2: d_wait()
    if T == 11: a("s_waitcnt lgkmcnt(0)\ns_barrier")
    if T >= 2: vm.wait(f"y{T}")
def aft(T, j):
    if j == 0 and T >= 2 and T + AH < 16: frag_load(T + AH, "y")
    if j == 3 and T in (8, 10, 12, 14): emit_item(z1items[0][(T - 8) // 2])
    if j == 3 and T in (9, 11, 13, 15):
        vm.op(f"buffer_load_dword v252, v27, {WS}, s26 offen sc1"); a("s_add_u32 s26, s26, 1792")
fragloop(16, 7, lambda T, j: rdl(WB[T & 1] + 4*j, slot_z2(T) + j*1024),
         lambda T, j: a(f"v_mfma_f32_16x16x32_bf16 {vr(128+4*j,4)}, {vr(64+4*T,4)}, {vr(WB[T & 1]+4*j,4)}, {'0' if T == 0 else vr(128+4*j,4)}"),
         before=bef, after=aft, preissued=True)
for j in range(7): a(f"ds_read2_b32 {vr(CP[j],2)}, v24 offset0:{j*16} offset1:{j*16 + 112}")
stamp("z2mm")
a(f"s_mov_b32 s64, {fbits(-2*math.log2(math.e)*math.sqrt(2/math.pi)*0.044715)}\ns_mov_b32 s65, s64\ns_mov_b32 s66, 1.0\ns_mov_b32 s67, 1.0\ns_waitcnt lgkmcnt(0)")
def gelu(acc, tmp, mid=None, mid2=None, mid0=None):
    P = range(14)
    for i in P: a(f"v_pk_mul_f32 {vr(tmp+2*i,2)}, {vr(acc+2*i,2)}, {vr(acc+2*i,2)}")
    for i in P: a(f"v_pk_fma_f32 {vr(tmp+2*i,2)}, {vr(tmp+2*i,2)}, s[64:65], v[60:61]")
    for i in P: a(f"v_pk_mul_f32 {vr(tmp+2*i,2)}, {vr(tmp+2*i,2)}, {vr(acc+2*i,2)}")
    if mid0: mid0()
    for i in range(28): a(f"v_exp_f32 v{tmp+i}, v{tmp+i}")
    if mid: mid()
    for i in P: a(f"v_pk_add_f32 {vr(tmp+2*i,2)}, {vr(tmp+2*i,2)}, s[66:67]")
    for i in range(28): a(f"v_rcp_f32 v{tmp+i}, v{tmp+i}")
    if mid2: mid2()
    for i in P: a(f"v_pk_mul_f32 {vr(acc+2*i,2)}, {vr(acc+2*i,2)}, {vr(tmp+2*i,2)}")
for i in range(14): a(f"v_pk_fma_f32 {vr(32+2*i,2)}, {vr(16+2*(i & 1),2)}, {vr(CP[i >> 1],2)}, {vr(CP[i >> 1],2)} op_sel:[0,0,1] op_sel_hi:[1,0,1]")
for i in range(14): a(f"v_pk_fma_f32 {vr(128+2*i,2)}, {vr(128+2*i,2)}, {vr(20+2*(i & 1),2)}, {vr(32+2*i,2)}")
zq = z1items[1] + z1items[2] + z1items[3]
body = capture(lambda: gelu(128, 32))
step = len(body) // 12
for i, x in enumerate(body):
    if i % step == 0 and zq: emit_item(zq.pop(0))
    a.items.append(x)
assert not zq
for j in range(7): rdl(WB[0] + 4*j, slot_z1(0) + j*1024) if False else None
for h in range(2):
    a(f"v_pk_add_f32 {vr(156+2*h,2)}, {vr(128+2*h,2)}, {vr(132+2*h,2)}\nv_pk_mul_f32 {vr(160+2*h,2)}, {vr(128+2*h,2)}, {vr(128+2*h,2)}")
for j in range(1, 7):
    for h in range(2):
        if j > 1: a(f"v_pk_add_f32 {vr(156+2*h,2)}, {vr(156+2*h,2)}, {vr(128+4*j+2*h,2)}")
        a(f"v_pk_fma_f32 {vr(160+2*h,2)}, {vr(128+4*j+2*h,2)}, {vr(128+4*j+2*h,2)}, {vr(160+2*h,2)}")
dppsum(range(156, 164), (8, 4, 2, 1))
a(f"s_and_b32 s71, {sEP}, 0xff\ns_movk_i32 s3, 0xff\nv_mov_b32 v4, s71")
for i in range(8): a(f"v_bfi_b32 v{156+i}, s3, v4, v{156+i}")
a(f"s_add_u32 s70, s69, {WS_ST2}\nv_lshlrev_b32 v6, 5, v2\ns_mov_b32 exec_lo, 0x00010001\ns_mov_b32 exec_hi, 0x00010001")
both(lambda sc: (vm.op(f"buffer_store_dwordx4 v[156:159], v6, {WS}, s70 offen{sc}"), vm.op(f"buffer_store_dwordx4 v[160:163], v6, {WS}, s70 offen offset:16{sc}", "sst")))
a("s_mov_b64 exec, -1")
vm.wait("z1g0")
a("s_barrier")
stamp("spub")
nwo = [0]
def wout_setup(n0):
    a(f"s_mul_i32 s3, {sCB}, {28*4096}\ns_lshl_b32 s76, {sW}, 10\ns_add_u32 s77, s3, s76\ns_add_u32 s77, s77, {WS_WOUTF}\ns_mul_i32 s75, {sCB}, {3*4096}")
def wout_one(tag):
    n = nwo[0]; nwo[0] += 1
    a("s_mov_b32 m0, s76\ns_add_u32 s74, s75, s77" if n < 24 else f"s_mov_b32 m0, s76\ns_add_u32 s74, s77, {n*4096}")
    vm.op(f"buffer_load_dwordx4 v3, {WS}, s74 offen sc1 lds", tag)
    a("s_add_u32 s76, s76, 4096")
    if n < 23: a(f"s_add_u32 s75, s75, 4096\ns_cmp_eq_u32 s75, {24*4096}\ns_cselect_b32 s75, 0, s75")
def z2_publish():
    a(f"s_add_u32 s70, s68, {WS_ST2}")
    chk = "\n".join(f"v_xor_b32 v{164+i}, s71, v{164+i}" for i in range(8))
    chk += "\nv_or3_b32 v4, v164, v165, v166\nv_or3_b32 v5, v167, v168, v169\nv_or3_b32 v4, v4, v170, v171\nv_or_b32 v4, v4, v5\nv_and_b32 v4, 0xff, v4\nv_cmp_ne_u32 vcc, 0, v4"
    poll(f"buffer_load_dwordx4 v[164:167], v30, {WS}, s70 offen sc1\nbuffer_load_dwordx4 v[168:171], v30, {WS}, s70 offen offset:16 sc1", chk, "-1")
    stamp("S")
    srd(R1, P_BSP, 4096)
    a("s_lshr_b32 s3, s55, 9\nv_lshlrev_b32 v4, 1, v1")
    vm.op(f"buffer_load_ushort v16, v4, {R1}, s3 offen", "bsp")
    a(f"""
s_lshl_b32 s70, {sCB}, 6
s_lshl_b32 s3, {sRB}, 1
s_add_u32 s70, s70, s3
s_lshr_b32 s3, {sW}, 1
s_add_u32 s70, s70, s3
s_mul_i32 s70, s70, 7168
s_and_b32 s3, {sW}, 1
s_lshl_b32 s3, s3, 9
s_add_u32 s70, s70, s3
s_add_u32 s70, s70, {WS_Z2}
s_add_u32 s71, s70, 4096
v_and_b32 v4, 1, v2
v_lshlrev_b32 v4, 10, v4
v_lshrrev_b32 v5, 1, v2
v_lshl_add_u32 v4, v5, 8, v4
v_lshl_add_u32 v6, v1, 4, v4
""")
    dppsum(range(164, 172), (4, 2, 1))
    finish_stats([(164+i, 168+i, 156+i, 160+i, None) for i in range(4)], 896)
    for h in range(2): a(f"v_pk_mul_f32 {vr(156+2*h,2)}, {vr(156+2*h,2)}, {vr(160+2*h,2)}")
    for i in range(14): a(f"v_pk_fma_f32 {vr(128+2*i,2)}, {vr(128+2*i,2)}, {vr(160+2*(i & 1),2)}, {vr(156+2*(i & 1),2)}")
    for i in range(14): a(f"v_cvt_pk_bf16_f32 v{232+i}, v{128+2*i}, v{129+2*i}")
    a("v_mov_b32 v246, v244\nv_mov_b32 v247, v245")
    for p in range(4): a(f"v_permlane16_swap_b32 v{232+4*p}, v{234+4*p}\nv_permlane16_swap_b32 v{233+4*p}, v{235+4*p}")
    vm.op(f"buffer_store_dwordx4 v[232:235], v6, {WS}, s70 offen sc1")
    vm.op(f"buffer_store_dwordx4 v[236:239], v6, {WS}, s70 offen offset:2048 sc1")
    vm.op(f"buffer_store_dwordx4 v[240:243], v6, {WS}, s71 offen sc1")
    a("s_mov_b32 exec_lo, 0x0000ffff\ns_mov_b32 exec_hi, 0x0000ffff")
    vm.op(f"buffer_store_dwordx4 v[244:247], v6, {WS}, s71 offen offset:2048 sc1", "zst")
    a(f"""
s_mov_b64 exec, -1
s_lshl_b32 s70, {sRB}, 3
s_add_u32 s70, s70, {sCB}
s_lshl_b32 s70, s70, 9
s_lshl_b32 s3, {sW}, 7
s_add_u32 s70, s70, s3
s_add_u32 s70, s70, {F_E}
""")
    stamp("zst")
def bef(T):
    if T == TS: z2_publish()
    if T == 3:
        if TS > 3: vm.wait("z1g3")
        a("s_barrier")
    if T == 4: a("s_waitcnt lgkmcnt(0)\ns_barrier"); wout_setup(0)
    if T == TE:
        vm.wait("zst"); vm.op(f"buffer_store_dword v17, v63, {WS}, s70 offen sc1")
        stamp("zpub")
    if T == TA:
        a(f"s_lshl_b32 s70, {sW}, 15\ns_lshl_b32 s3, {sCB}, 9\ns_add_u32 s70, s70, s3\ns_add_u32 s70, s70, {F_E}\nv_lshrrev_b32 v21, 2, v0\nv_lshlrev_b32 v21, 12, v21\nv_and_b32 v5, 3, v0\nv_lshl_add_u32 v21, v5, 7, v21")
        a("s_mov_b32 exec_hi, 0"); vm.op(f"buffer_load_dword v22, v21, {WS}, s70 offen sc1", "echk"); a("s_mov_b64 exec, -1")
def aft(T, j):
    if T >= max(4, TE) and j in (1, 4) and nwo[0] < 16: wout_one("wout0")
TA = int(([x[3:] for x in XP if x.startswith('ta:')] or ['14'])[0])
TS, TE, TZ = (int(x) for x in ([x[3:] for x in XP if x.startswith("ts:")] or ["2,5,0"])[0].split(","))
a(f"v_mov_b32 v17, 1\nv_mov_b32 v63, {OOB}\nv_cmp_eq_u32 vcc, 0, v0\nv_cndmask_b32 v63, v63, v0, vcc")
fragloop(16, 7, lambda T, j: rdl(WB[T & 1] + 4*j, slot_z1(T) + j*1024),
         lambda T, j: a(f"v_mfma_f32_16x16x32_bf16 {vr(176+4*j,4)}, {vr(WB[T & 1]+4*j,4)}, {vr(64+4*T,4)}, {'0' if T == 0 else vr(176+4*j,4)}"), before=bef, after=aft)
for j in range(7): a(f"ds_read_b128 {vr(204+4*j,4)}, v29 offset:{j*64}\nds_read_b128 {vr(128+4*j,4)}, v29 offset:{448 + j*64}")
a("s_barrier")
stamp("z1mm")
a(f"s_lshl_b32 s72, {sCB}, 2\ns_add_u32 s72, s72, {sW}\ns_mul_i32 s72, s72, {16*7168}\ns_add_u32 s72, s72, {WS_Z2}\ns_add_u32 s73, s72, 4096")
ZSEQ = [(T, j) for T in range(16) for j in range(4)] + [(T, j) for T in range(16) for j in range(4, 7)]
ZR = lambda n: (64, 92, 32)[(n % 21) // 7] + 4*(n % 7)
def ldz(n):
    T, j = ZSEQ[n]
    vm.op(f"buffer_load_dwordx4 {vr(ZR(n),4)}, v3, {WS}, s{72 + (j >> 2)} offen offset:{(j & 3)*1024}{'' if 'zpl' in XP else ' sc1'}", f"z{n}")
    if j in (3, 6): a(f"s_add_u32 s{72 + (j >> 2)}, s{72 + (j >> 2)}, 7168")
for s_ in range(1, 4):
    a(f"s_add_u32 s3, {sW}, {s_}\ns_and_b32 s3, s3, 3\ns_mul_i32 s3, s3, {12*1024}\ns_add_u32 s3, s3, {L_RED + (s_-1)*4096}\nv_add_u32 v{16+s_}, s3, v3")
a(f"s_mul_i32 s3, {sW}, {12*1024}\ns_add_u32 s3, s3, {L_RED}\nv_add_u32 v20, s3, v3\nv_lshlrev_b32 v16, 16, v16")
WPRE = int(([x[3:] for x in XP if x.startswith('wp:')] or ['22'])[0])
while nwo[0] < WPRE: wout_one("wout0")
vm.wait("echk")
a("v_cmp_gt_u32 vcc, 1, v22\ns_nop 1\ns_cmp_eq_u32 vcc_lo, 0\ns_cbranch_scc1 L_eok")
poll(f"buffer_load_dword v4, v21, {WS}, s70 offen sc1", "v_cmp_gt_u32 vcc, 1, v4", "0xffffffff")
a("L_eok:")
stamp("E")
for n in range(7): ldz(n)
a("s_waitcnt lgkmcnt(0)")
for i in range(14): a(f"v_pk_fma_f32 {vr(128+2*i,2)}, {vr(204+2*i,2)}, v[62:63], {vr(128+2*i,2)} op_sel_hi:[1,0,1]")
for i in range(14): a(f"v_pk_fma_f32 {vr(176+2*i,2)}, {vr(176+2*i,2)}, v[28:29], {vr(128+2*i,2)} op_sel_hi:[1,0,1]")
gelu(176, 204, mid=lambda: [ldz(n) for n in range(7, 14)])
for i in range(14): a(f"v_cvt_pk_bf16_f32 v{240+i}, v{176+2*i}, v{177+2*i}")
Z1P = list(range(240, 254))
stamp("gelu1")
ACC = lambda s_, j: 128 + (s_*7 + j)*4
def p5(n, s_):
    T, j = ZSEQ[n]
    d = vr(ACC(s_, j), 4)
    if "halfmm" in XP and s_ >= 2: return
    a(f"v_mfma_f32_16x16x32_bf16 {d}, {vr(ZR(n),4)}, {ar((T*4+s_)*4,4)}, {'0' if T == 0 else d}")
red_w = lambda s_, j: a(f"ds_write_b128 v{16+s_}, {vr(ACC(s_, j),4)} offset:{(j & 3)*1024}")
red_r = lambda s_, j: a(f"ds_read_b128 {vr(ACC(s_, j),4)}, v20 offset:{(s_-1)*4096 + (j & 3)*1024}")
UP = lambda j: (120, 122, 124, 126, 60, 62, 24)[j]
def u_frag(j):
    A0, A1, A2, A3 = (ACC(s_, j) for s_ in range(4))
    for h in (0, 2): a(f"v_pk_add_f32 {vr(A1+h,2)}, {vr(A1+h,2)}, {vr(A2+h,2)}\nv_pk_add_f32 {vr(A0+h,2)}, {vr(A0+h,2)}, {vr(A3+h,2)}")
    for h in (0, 1): a(f"v_lshlrev_b32 v{A2+2*h}, 16, v{Z1P[2*j+h]}\nv_and_b32 v{A2+2*h+1}, 0xffff0000, v{Z1P[2*j+h]}")
    for h in (0, 2): a(f"v_pk_add_f32 {vr(A1+h,2)}, {vr(A1+h,2)}, v[16:17] op_sel_hi:[1,0]")
    for h in (0, 2): a(f"v_pk_add_f32 {vr(A0+h,2)}, {vr(A0+h,2)}, {vr(A1+h,2)}")
    for h in (0, 2): a(f"v_pk_mul_f32 {vr(A0+h,2)}, {vr(A0+h,2)}, {vr(A2+h,2)}")
    for h in (0, 1): a(f"v_cvt_pk_bf16_f32 v{UP(j)+h}, v{A0+2*h}, v{A0+2*h+1}")
a(f"""
s_lshl_b32 s68, s55, 1
s_add_u32 s68, s68, {WS_X + (0x800000 if "usep" in XP else 0)}
s_mul_i32 s64, {sCB}, 3072
s_add_u32 s64, s64, s68
s_lshl_b32 s65, {sCB}, 9
s_add_u32 s65, s65, s68
s_add_u32 s65, s65, {24*1024}
v_lshrrev_b32 v6, 5, v0
v_lshlrev_b32 v6, 8, v6
v_lshl_add_u32 v6, v1, 4, v6
""")
side = capture(lambda: [u_frag(j) for j in range(4)])
ust = both if 'upl' in XP else (lambda f: f(' sc1'))
NDEF = 103
ZD = int(([x[3:] for x in XP if x.startswith('zd:')] or ['14'])[0]); nld = [14]
for n in range(112):
    m = n - 64
    if m in (14, 28) and "nobar" in XP: a("s_waitcnt lgkmcnt(0)")
    elif m == 14: a("s_waitcnt lgkmcnt(0)\ns_barrier")
    elif m == 28: a("s_waitcnt lgkmcnt(0)\ns_barrier")
    if n in (32, 64, 80, 96) and "p5s" in XP: stamp(f"n{n}")
    vm.wait(f"z{n}")
    for s_ in ((0, 1, 2, 3) if n < NDEF else (1, 2, 3)):
        p5(n, s_)
        if s_ == 0 and nld[0] < 112 and nld[0] <= n + ZD: ldz(nld[0]); nld[0] += 1
        if s_ == 3 and nld[0] < 112 and nld[0] <= n + ZD: ldz(nld[0]); nld[0] += 1
        if s_ == 2 and n % 4 == 1 and nwo[0] < 28: wout_one("wout0")
        if s_ == 1 and 1 <= m < 13: red_w(1 + (m - 1) // 4, (m - 1) % 4)
        if s_ == 1 and 14 <= m < 26: red_r(1 + (m - 14) % 3, (m - 14) // 3)
        if s_ >= 1 and m >= 28:
            for _ in range(2):
                if side: a.items.append(side.pop(0))
    if m == 40:
        assert not side
        ust(lambda sc: [vm.op(f"buffer_store_dwordx4 {vr(120+4*p,4)}, v3, {WS}, s64 offen offset:{p*1024}{sc}") for p in range(2)])
stamp("p5mm")
for k in range(9):
    red_w(1 + k // 3, 4 + k % 3)
    p5(NDEF + k, 0)
a("s_waitcnt lgkmcnt(0)\ns_barrier")
stamp("red")
for j in range(4, 7):
    for s_ in range(1, 4): red_r(s_, j)
for j in range(4, 7):
    a(f"s_waitcnt lgkmcnt({18 - 3*j})")
    u_frag(j)
    if j == 5: ust(lambda sc: vm.op(f"buffer_store_dwordx4 v[60:63], v3, {WS}, s64 offen offset:2048{sc}"))
a("v_mov_b32 v26, v24\nv_mov_b32 v27, v25\nv_permlane16_swap_b32 v24, v26\nv_permlane16_swap_b32 v25, v27\ns_mov_b32 exec_lo, 0x0000ffff\ns_mov_b32 exec_hi, 0x0000ffff")
ust(lambda sc: vm.op(f"buffer_store_dwordx4 v[24:27], v6, {WS}, s65 offen{sc}"))
a("s_mov_b64 exec, -1")
hop_signal(3)
a("v_add_u32 v25, 0xe000, v3\nv_add_u32 v26, 0xe000, v25")
stamp("upub")
a("s_barrier")
B6 = lambda n, j: (160, 176, 232)[n % 3] + 4*j
rd6 = lambda n, j: rdl(B6(n, j), L_WOUT + n*4096 + j*1024)
for n in range(8): rd6(n >> 2, n & 3)
AU = int(([x[3:] for x in XP if x.startswith('au:')] or ['8'])[0])
UR = lambda n: (120, 124, 60)[n] if n < 3 else 32 + 4*n
def uload(n):
    so, off = (f"s{SL[n//3 - 1]}", n % 3) if n < 24 else ("s64", n - 24)
    vm.op(f"buffer_load_dwordx4 {vr(UR(n),4)}, v3, {WS}, {so} offen offset:{off*1024} sc1", f"u{n}")
def bef(n):
    if n == 3:
        for i in range(8): a(f"v_lshlrev_b32 v{192+2*i}, 16, v{8+i}\nv_and_b32 v{193+2*i}, 0xffff0000, v{8+i}")
        srd(R1, P_OUT, 2048 * 1024, "s55")
        a(f"v_lshlrev_b32 v7, 10, v1\nv_and_b32 v5, 1, v2\nv_lshl_add_u32 v7, v5, 5, v7\nv_lshrrev_b32 v5, 1, v2\nv_lshl_add_u32 v7, v5, 4, v7\ns_lshl_b32 s75, {sCB}, 7")
        block_offsets("s68", 3072)
        a(f"s_add_u32 s64, s68, {24*1024}\ns_lshl_b32 s74, {sCB}, 8\ns_add_u32 s74, s74, {WS_G2 + 3*2048}")
        hop_wait(3)
        stamp("F")
        for n_ in range(3, 3 + AU): uload(n_)
def aft6(n, j):
    if j == 0 and n >= 3 and n + AU < 28: uload(n + AU)
    if j == 0 and 28 <= n + AU < 32: vm.op(f"buffer_load_dwordx4 {vr(216+4*(n+AU-28),4)}, v31, {WS}, s74 offen offset:{(n+AU-28)*64} sc1", "gb")
deeploop(28, 4, rd6,
         lambda n, j: a(f"v_mfma_f32_16x16x32_bf16 {vr(144+4*j,4)}, {vr(B6(n, j),4)}, {vr(UR(n),4)}, {'0' if n == 0 else vr(144+4*j,4)}"),
         lambda n: f"u{n}" if n >= 3 else None, before=bef, after=aft6)
stamp("p6mm")
vm.wait("gb")
for i in range(8): a(f"v_pk_fma_f32 {vr(192+2*i,2)}, {vr(144+2*i,2)}, {vr(216+2*i,2)}, {vr(192+2*i,2)}")
for i in range(8): a(f"v_cvt_pk_bf16_f32 v{48+i}, v{192+2*i}, v{193+2*i}")
for p in range(2): a(f"v_permlane16_swap_b32 v{48+4*p}, v{50+4*p}\nv_permlane16_swap_b32 v{49+4*p}, v{51+4*p}")
for p in range(2): a(f"buffer_store_dwordx4 {vr(48+4*p,4)}, v7, {R1}, s75 offen offset:{p*64} nt")
if AMP:
    a("s_waitcnt vmcnt(0)")
    stamp("end")
    assert AMP[0] != "start"
    a(f"s_sub_u32 s91, s93, s90\ns_mul_i32 s91, s91, {1 if 'x1' in XP else 3}\ns_min_u32 s91, s91, 20000\ns_memrealtime s[78:79]\ns_waitcnt lgkmcnt(0)\ns_mov_b32 s92, s78\nL_amp:\ns_sleep 1\ns_memrealtime s[78:79]\ns_waitcnt lgkmcnt(0)\ns_sub_u32 s78, s78, s92\ns_cmp_lt_u32 s78, s91\ns_cbranch_scc1 L_amp")
elif "dbg" in XP:
    a("s_waitcnt vmcnt(0)")
    stamp("end")
    sel = ["xin", "barP", "barB", "kv0", "attn", "C", "D", "z2mm", "zpub", "E", "p5mm", "upub", "F", "p6mm", "end"]
    a("s_not_b32 s3, s80\nv_mov_b32 v32, s3")
    for n, nm in enumerate(sel):
        i = stamp_names.index(nm)
        a(f"s_bfe_u32 s3, s{81 + (i-1)//2}, {hex((16 << 16) | (16*((i-1) & 1)))}\ns_add_u32 s3, s3, s80\nv_writelane_b32 v32, s3, {n+1}")
    a("s_load_dwordx2 s[64:65], s[96:97], 104\ns_waitcnt lgkmcnt(0)")
    srd(R1, 64, 256)
    a(f"v_lshlrev_b32 v4, 2, v0\ns_mov_b64 exec, 0xffff\nbuffer_atomic_umax v32, v4, {R1}, 0 offen sc1\ns_waitcnt vmcnt(0)")
elif STAMPS:
    a("s_waitcnt vmcnt(0)")
    stamp("end")
    for i in range(22): a(f"v_writelane_b32 v32, s{80+i}, {i}")
    a(f"s_lshl_b32 s3, s2, 2\ns_add_u32 s3, s3, {sW}\ns_lshl_b32 s3, s3, 7\ns_add_u32 s3, s3, {WS_STAMP}\nv_lshlrev_b32 v4, 2, v0\ns_mov_b64 exec, 0xffffffff\nbuffer_store_dword v32, v4, {WS}, s3 offen")
a("s_endpgm")
a("L_qwait:")
poll(f"buffer_load_dword v252, v29, {WS}, s27 offen sc1", "v_cmp_gt_u32 vcc, 32, v252", "3", 4)
a("s_branch L_qok\nL_pwait:")
poll(f"buffer_load_dword v201, v174, {WS}, s27 offen sc1", "v_cmp_gt_u32 vcc, 32, v201", "15", 8)
a("s_branch L_pok\nL_gwait:")
poll(f"buffer_load_dword v201, v196, {WS}, s38 offen sc1", "v_cmp_gt_u32 vcc, 32, v201", "0xffffffff", 8)
a("s_branch L_gok")
a(f"{Lfb}:")
a(f"""
v_lshrrev_b32 v4, 5, v0
v_mul_u32_u24 v4, 272, v4
v_and_b32 v5, 31, v0
v_lshl_add_u32 v27, v5, 4, v4
v_mov_b32 v4, 0xff800000
v_mov_b32 v5, 0xff800000
s_mov_b32 s64, {WS_KV}
L_fb1:
buffer_load_dwordx4 {Kb(0)}, v3, {WS}, s64 offen offset:1088 sc1
s_waitcnt vmcnt(0)
""")
for e in range(2): a(f"v_mfma_f32_32x32x16_bf16 {vr(32+16*e,16)}, {Kb(0)}, {Q(e)}, 0")
rowmax(False)
a(f"s_add_u32 s64, s64, {REC}\ns_cmp_lt_u32 s64, {WS_KV + 64*REC}\ns_cbranch_scc1 L_fb1")
negbcast()
for i in range(32): a(f"v_mov_b32 v{80+i}, 0")
a(f"""
s_mov_b32 s64, {WS_KV}
L_fb2:
buffer_load_dwordx4 {Kb(0)}, v3, {WS}, s64 offen offset:1088 sc1
buffer_load_dwordx4 {Vb(0,0)}, v27, {WS}, s64 offen sc1
buffer_load_dwordx4 {Vb(0,1)}, v27, {WS}, s64 offen offset:544 sc1
s_waitcnt vmcnt(0)
""")
for e in range(2): a(f"v_mfma_f32_32x32x16_bf16 {vr(32+16*e,16)}, {Kb(0)}, {Q(e)}, {vr(C(e),16)}")
for i in range(32): a(f"v_exp_f32 v{32+i}, v{32+i}")
for e in range(2):
    for m in range(2): a(f"v_smfmac_f32_32x32x32_bf16 {vr(O(e),16)}, {Vb(0,m)}, {vr(32+16*e+8*m,8)}, v30")
a(f"s_add_u32 s64, s64, {REC}\ns_cmp_lt_u32 s64, {WS_KV + 64*REC}\ns_cbranch_scc1 L_fb2")
getl()
a(f"s_branch {Lok}\nL_end:\ns_endpgm")

body = a.finish()
head = open("cdna_kernels/" + NAME + ".s.ref").read().split("; Override launch")[0]
src = head + f"""; One persistent launch: 256 workgroups (32 row blocks of 64 rows x 8 column blocks), 4 waves of 16 rows each; written by gen/gen.py.
; Phases: mod (sa, ca) -> LN1, K/V, q -> attention (weights are re-laid out and staged underneath) -> wo + residual ->
; w_in + gelu, LN of z2 -> w_sp GEMM * z1 -> w_out + residual. Workgroups hand data over through d_ws with flags they clear themselves;
; the word at WS_EPOCH only tags this launch's first hand-offs. Every spin is bounded.
; @launch grid=(256,1,1) block=(256,1,1) lds={LDS_BYTES}
.amdgcn_target "amdgcn-amd-amdhsa--gfx950"
.text
.globl {NAME}_kernel
.p2align 8
.type {NAME}_kernel,@function
{NAME}_kernel:
{body}.section .rodata,"a"
.p2align 6
.amdhsa_kernel {NAME}_kernel
  .amdhsa_next_free_vgpr 512
  .amdhsa_next_free_sgpr 102
  .amdhsa_accum_offset 256
  .amdhsa_group_segment_fixed_size 0
  .amdhsa_kernarg_size 120
  .amdhsa_user_sgpr_count 2
  .amdhsa_user_sgpr_kernarg_segment_ptr 1
  .amdhsa_system_sgpr_workgroup_id_x 1
.end_amdhsa_kernel
"""
out = [x for x in sys.argv[1:] if not x.startswith("--")]
open(out[0] if out else "cdna_kernels/" + NAME + ".s", "w").write(src)
if STAMPS:
    open("stamps.txt", "w").write("\n".join(stamp_names)); open(out[0] + ".st", "w").write("\n".join(stamp_names))
print("instructions:", sum(1 for k, _ in a.items if k == "ins"), "hazard nops:", a.nops, file=sys.stderr)
```

```python
import sys, struct, math
from asmlib import Asm

NAME = "adaLN_cond__grouped_kv_mqa__mixer_gmlp__prompt"
STAMPS = "--stamps" in sys.argv or "--cyc" in sys.argv
CYC = "--cyc" in sys.argv
FORCE_SLOW = "--slow" in sys.argv
PADZERO = "--nopadzero" not in sys.argv
XP = [x[5:] for x in sys.argv if x.startswith("--xp=")]
FORCE_FB = "--fallback" in sys.argv

def fbits(x): return "0x%08x" % struct.unpack("<I", struct.pack("<f", x))[0]

F_B, F_HOP, F_P, WS_G2, F_E, WS_C12, F_Q = 0, 32768, 49152, 53248, 61440, 192512, 207872
WS_MOD, WS_MODT, WS_EPOCH, WS_KV = 0x38000, 0x3B000, 0x3E000, 0x40000
WS_ST1, WS_ST2 = 0x70000, 0x90000
WS_X, WS_Z2, WS_STAMP, WS_SIZE = 0x100000, 0x500000, 0xD00000, 0x1200000
WS_WOF, WS_WOUTF, WS_DUMMY, WS_WINF = 0xD80000, 0xE00000, 0xF00000, 0x1000000
REC = 2112
L_G2 = 16384
L_KV = 28672
L_WQ, L_WKV, L_G0, L_SILU, L_PAR = 28672, 94208, 110592, 126976, 0
L_RING, L_SM = 0, 158720
L_WO = 0
SLOT = 7168
def slotA(i): return 65536 + SLOT * i
def slotB(i): return SLOT * i
def slot_z2(T): return slotA(T) if T < 13 else slotB(T - 13)
def slot_z1(T): return slotB(3 + T) if T < 4 else slotA(T - 4)
L_WOUT, L_RED = 0, 114688
LDS_BYTES = 163840
R0, WS, R1, R2, R3 = "s[4:7]", "s[8:11]", "s[12:15]", "s[56:59]", "s[60:63]"
P_X, P_WQ, P_WK, P_WV, P_WO, P_WIN, P_WSP, P_BSP, P_WOUT, P_C, P_WMOD, P_OUT, P_DBG, P_WS = 16, 18, 20, 22, 24, 28, 30, 32, 34, 36, 38, 40, 42, 44
sRB, sCB, sW, sXCC, sFAST, sIDX, sXCD, sKVW, sGRP = "s46", "s47", "s48", "s49", "s50", "s51", "s52", "s53", "s54"
sEP, sTAG = "s42", "s43"
SPIN = 1 << 17
OOB = 0x7fff0000

a = Asm()
def vr(b, n): return f"v[{b}:{b+n-1}]"
def ar(b, n): return f"a[{b}:{b+n-1}]"

class VM:
    def __init__(s): s.n = 0; s.tags = {}
    def op(s, text, tag=None):
        a(text); s.n += 1
        if tag: s.tags[tag] = s.n
    def tag(s, t): s.tags[t] = s.n
    def wait(s, t):
        k = s.n - s.tags[t]
        if k < 63: a(f"s_waitcnt vmcnt({k})")
    def drain(s): a("s_waitcnt vmcnt(0)")
vm = VM()

def srd(q, ptr, size, off=None):
    b = int(q[2:q.index(":")])
    if off is None:
        a(f"s_mov_b32 s{b}, s{ptr}\ns_mov_b32 s{b+1}, s{ptr+1}\ns_mov_b32 s{b+2}, {size}")
    else:
        a(f"s_add_u32 s{b}, s{ptr}, {off}\ns_addc_u32 s{b+1}, s{ptr+1}, 0\ns_sub_u32 s{b+2}, {size}, {off}")
    a(f"s_mov_b32 s{b+3}, 0x20000")

nstamp = [0]
stamp_names = []
AMP = [x[4:] for x in XP if x.startswith("amp:")]
def stamp(name):
    if AMP and name == AMP[0]: a(f"s_memrealtime s[78:79]\ns_waitcnt lgkmcnt(0)\ns_mov_b32 s93, s78")
    if not STAMPS: return
    if "dbg" in XP and name not in ("start", "xin", "barP", "barB", "kv0", "attn", "C", "D", "z2mm", "zpub", "E", "p5mm", "upub", "F", "p6mm", "end"): return
    if "tst" in XP and name in ("xin", "ln1", "h", "kv", "q", "p3mm", "p3ep", "y_iss", "st1", "init", "u_iss", "S", "opub", "ypub", "spub"): return
    if name in ("karg", "iss0"): return
    i = nstamp[0]; nstamp[0] += 1; stamp_names.append(name)
    if i == 0:
        if CYC: a("s_lshr_b32 s80, s80, 2")
        return
    if "clk" in XP and i >= 30: return
    assert i < 43
    a("s_memrealtime s[78:79]\ns_waitcnt lgkmcnt(0)" if not CYC else "s_memtime s[78:79]\ns_waitcnt lgkmcnt(0)\ns_lshr_b32 s78, s78, 2")
    if i == 0: a("s_mov_b32 s80, s78" if "ms" not in XP else "s_nop 0")
    elif i & 1: a(f"s_sub_u32 s{81 + i//2}, s78, s80")
    else: a(f"s_sub_u32 s78, s78, s80\ns_pack_ll_b32_b16 s{80 + i//2}, s{80 + i//2}, s78")

def poll(load, cond, mask, backoff=0, pre=None):
    L, X = a.label("poll"), a.label("pollx")
    if pre: a(pre)
    a(f"s_mov_b64 exec, {mask}\ns_mov_b32 s3, 0\n{L}:\ns_add_u32 s3, s3, 1\ns_cmp_gt_u32 s3, {SPIN}\ns_cbranch_scc1 {X}")
    if backoff: a(f"s_sleep {backoff}")
    a(load); a("s_waitcnt vmcnt(0)"); a(cond)
    a(f"s_cbranch_vccnz {L}\n{X}:\ns_mov_b64 exec, -1")

PLAIN = "noplain" not in XP
def both_data(fn): both(fn) if PLAIN else fn(" sc1")
def both(fn):
    S, E = a.label("slow"), a.label("pub")
    n0 = vm.n
    a(f"s_cmp_eq_u32 {sFAST}, 0\ns_cbranch_scc1 {S}")
    fn(""); n1 = vm.n
    a(f"s_branch {E}\n{S}:"); vm.n = n0
    fn(" sc1"); assert vm.n == n1
    a(f"{E}:")

def hop_signal(phase, tag=None):
    a(f"v_mov_b32 v4, {phase}")
    if tag: vm.wait(tag)
    else: a("s_waitcnt vmcnt(0)")
    both(lambda sc: vm.op(f"buffer_store_dword v4, v254, {WS}, {sGRP} offen{sc}"))

def hop_wait(phase):
    poll(f"buffer_load_dword v4, v255, {WS}, {sGRP} offen sc1", f"v_cmp_gt_u32 vcc, {phase}, v4", "0xff")

def xgroup_sum(v, t):
    a(f"v_mov_b32 v{t}, v{v}\nv_permlane32_swap_b32 v{v}, v{t}\nv_add_f32 v{v}, v{v}, v{t}")
    a(f"v_mov_b32 v{t}, v{v}\nv_permlane16_swap_b32 v{v}, v{t}\nv_add_f32 v{v}, v{v}, v{t}")

def xgroup_sum2(v, t, v2, t2):
    for op in ("v_permlane32_swap_b32", "v_permlane16_swap_b32"):
        a(f"v_mov_b32 v{t}, v{v}\nv_mov_b32 v{t2}, v{v2}\n{op} v{v}, v{t}\n{op} v{v2}, v{t2}\nv_add_f32 v{v}, v{v}, v{t}\nv_add_f32 v{v2}, v{v2}, v{t2}")

def capture(fn):
    n = len(a.items); fn(); out = a.items[n:]; del a.items[n:]
    return out

def pipeline(nsteps, reads, compute, nreads, pre=1):
    for T in range(min(pre, nsteps)): reads(T)
    for T in range(nsteps):
        if T + pre < nsteps: reads(T + pre)
        left = min(pre, nsteps - 1 - T) * nreads
        a(f"s_waitcnt lgkmcnt({min(left, 15)})")
        compute(T)

def fragloop(nsteps, nf, read, mfma, before=None, after=None, nper=1, preissued=False):
    if not preissued:
        for j in range(nf): read(0, j)
    for T in range(nsteps):
        if before: before(T)
        for j in range(nf):
            left = (nf - 1 if T + 1 < nsteps else nf - 1 - j) * nper
            a(f"s_waitcnt lgkmcnt({min(left, 15)})")
            mfma(T, j)
            if T + 1 < nsteps: read(T + 1, j)
            if after: after(T, j)

def deeploop(nsteps, nf, read, mfma, vmtag, before=None, after=None, nper=1):
    for T in range(nsteps):
        if before: before(T)
        w = f"lgkmcnt({nf*nper if T + 1 < nsteps else 0})"
        if vmtag(T) and vm.n - vm.tags[vmtag(T)] < 63: w = f"vmcnt({vm.n - vm.tags[vmtag(T)]}) " + w
        a("s_waitcnt " + w)
        for j in range(nf):
            mfma(T, j)
            if after: after(T, j)
            if T + 2 < nsteps: read(T + 2, j)

def dppsum(regs, steps):
    for s in steps:
        for r in regs: a(f"v_add_f32_dpp v{r}, v{r}, v{r} row_ror:{s} row_mask:0xf bank_mask:0xf")
def finish_stats(rows, n):
    for s1, s2, mu, r, sd in rows: a(f"v_mul_f32 v{mu}, {fbits(-1.0/n)}, v{s1}\nv_mul_f32 v{s2}, {fbits(1.0/n)}, v{s2}")
    for s1, s2, mu, r, sd in rows: a(f"v_fma_f32 v{s2}, -v{mu}, v{mu}, v{s2}")
    for s1, s2, mu, r, sd in rows: a(f"v_max_f32 v{s2}, 0, v{s2}")
    for s1, s2, mu, r, sd in rows: a(f"v_add_f32 v{s2}, {fbits(1e-5)}, v{s2}")
    for s1, s2, mu, r, sd in rows: a(f"v_rsq_f32 v{r}, v{s2}")
    for s1, s2, mu, r, sd in rows:
        if sd is not None: a(f"v_mul_f32 v{sd}, v{s2}, v{r}")

a(f"""
{("s_memrealtime s[80:81]" if not CYC else "s_memtime s[80:81]") if STAMPS else ""}{"s_memrealtime s[90:91]" if AMP else ""}
s_cmp_ge_u32 s2, 256
s_cbranch_scc1 L_end
{"s_lshr_b32 s3, s2, 3" + chr(10) + "s_and_b32 s3, s3, 7" + chr(10) + "s_xor_b32 s2, s2, s3" if "perm" in XP else ""}
{"s_mul_i32 s2, s2, 37" + chr(10) + "s_and_b32 s2, s2, 255" if "perm2" in XP else ""}
s_getpc_b64 s[64:65]
L_pc:
s_load_dwordx16 s[16:31], s[0:1], 0
v_and_b32 v4, 0xfc, v0
v_lshlrev_b32 v4, 5, v4
v_mov_b32 v7, s65
v_add_co_u32 v6, vcc, s64, v4
s_load_dwordx8 s[32:39], s[0:1], 64
s_load_dwordx4 s[40:43], s[0:1], 96
v_addc_co_u32 v7, vcc, 0, v7, vcc
global_load_dword v26, v[6:7], off
s_load_dwordx2 s[44:45], s[0:1], 112
v_lshrrev_b32 v4, 6, v0
v_and_b32 v0, 63, v0
v_readfirstlane_b32 {sW}, v4
s_and_b32 {sXCD}, s2, 7
s_lshr_b32 {sIDX}, s2, 3
s_mov_b32 s75, 0x20000
v_lshlrev_b32 v29, 7, v0
s_cmp_eq_u32 {sW}, 0
s_cbranch_scc0 L_t1
""")
a(f"""
v_bfe_u32 v4, v0, 1, 4
v_mul_u32_u24 v4, 6144, v4
v_and_b32 v5, 0x80, v29
v_add_u32 v4, v4, v5
s_mul_i32 s70, {sIDX}, {16*6144}
s_lshl_b32 s3, {sXCD}, 8
s_add_u32 s70, s70, s3
s_mov_b32 s74, {512*6144}
s_waitcnt lgkmcnt(0)
s_mov_b64 s[72:73], s[{P_WMOD}:{P_WMOD+1}]
s_mov_b32 exec_hi, 0
buffer_load_dword v24, v4, s[72:75], s70 offen
s_mov_b64 exec, -1
s_branch L_t9
L_t1:
s_cmp_eq_u32 {sW}, 1
s_cbranch_scc0 L_t2
s_lshl_b32 s70, {sXCD}, 18
s_lshl_b32 s3, {sIDX}, 13
s_add_u32 s70, s70, s3
s_mov_b32 s74, {2048*1024}
s_waitcnt lgkmcnt(0)
s_mov_b64 s[72:73], s[{P_X}:{P_X+1}]
buffer_load_dword v24, v29, s[72:75], s70 offen
s_branch L_t9
L_t2:
s_cmp_eq_u32 {sW}, 2
s_cbranch_scc0 L_t3
s_lshr_b32 s70, {sIDX}, 1
s_lshl_b32 s70, s70, 10
v_and_b32 v4, 0x380, v29
s_movk_i32 s74, 16384
s_bitcmp1_b32 {sIDX}, 0
s_waitcnt lgkmcnt(0)
s_cselect_b64 s[72:73], s[{P_WV}:{P_WV+1}], s[{P_WK}:{P_WK+1}]
buffer_load_dword v24, v4, s[72:75], s70 offen
s_branch L_t9
L_t3:
s_lshl_b32 s3, {sIDX}, 11
s_add_u32 s3, s3, 8192
v_and_b32 v6, 0x780, v29
v_add_u32 v6, s3, v6
v_min_u32 v6, L_end-L_pc-4, v6
v_mov_b32 v7, s65
v_add_co_u32 v6, vcc, s64, v6
v_addc_co_u32 v7, vcc, 0, v7, vcc
s_mov_b64 exec, 0xffff
global_load_dword v24, v[6:7], off
s_mov_b64 exec, -1
L_t9:
v_and_b32 v1, 15, v0
v_lshrrev_b32 v2, 4, v0
v_lshlrev_b32 v3, 4, v0
s_and_b32 {sCB}, {sIDX}, 7
s_lshr_b32 s3, {sIDX}, 3
s_lshl_b32 {sRB}, {sXCD}, 2
s_add_u32 {sRB}, {sRB}, s3
s_lshr_b32 {sKVW}, {sCB}, 1
s_getreg_b32 {sXCC}, hwreg(HW_REG_XCC_ID, 0, 4)
s_and_b32 {sXCC}, {sXCC}, 7
s_lshl_b32 {sGRP}, {sRB}, 2
s_add_u32 {sGRP}, {sGRP}, {sW}
s_lshl_b32 s55, {sGRP}, 14
s_lshl_b32 {sGRP}, {sGRP}, 7
s_add_u32 {sGRP}, {sGRP}, {F_HOP}
""")
def img32_regs(row, trb):
    a(f"""
v_lshrrev_b32 v4, 1, v0
v_and_b32 v5, 19, v4
v_bfe_u32 v6, v4, 2, 1
v_lshl_or_b32 v5, v6, 3, v5
v_bfe_u32 v6, v4, 3, 1
v_lshl_or_b32 v{row}, v6, 2, v5
v_lshrrev_b32 v4, 2, v1
v_and_b32 v5, 1, v2
v_lshl_add_u32 v4, v5, 2, v4
v_lshrrev_b32 v5, 1, v2
v_lshl_add_u32 v4, v5, 4, v4
v_lshlrev_b32 v4, 5, v4
v_and_b32 v5, 3, v1
v_lshl_add_u32 v{trb}, v5, 3, v4
""")
img32_regs(16, 17)
a(f"""
v_and_b32 v18, 1, v0
v_lshlrev_b32 v18, 4, v18
{"s_mov_b64 s[96:97], s[0:1]" if "dbg" in XP else ""}
s_sub_u32 s0, {sW}, {sKVW}
s_and_b32 s0, s0, 3
v_mov_b64 v[36:37], 0
v_mov_b64 v[38:39], 0
s_and_b32 s69, s2, 15
s_lshl_b32 s69, s69, 6
v_lshlrev_b32 v25, 4, v2
v_lshrrev_b32 v4, 3, v0
v_and_b32 v5, 7, v0
v_xor_b32 v5, v5, v2
v_lshlrev_b32 v5, 4, v5
v_lshl_add_u32 v22, v4, 10, v5
v_xor_b32 v23, 64, v22
v_add_u32 v23, {8192 - 1024}, v23
s_lshl_b32 s67, {sW}, 14
s_add_u32 s67, s67, {L_WQ}
s_movk_i32 s3, 6144
v_mad_u32_u24 v28, v16, s3, v18
s_lshl_b32 s68, {sXCD}, 3
s_add_u32 s68, s68, {sIDX}
s_lshl_b32 s66, s68, 5
s_mov_b32 s6, 1024
s_mov_b32 s7, 0x20000
s_mov_b32 s10, {hex(WS_SIZE)}
s_mov_b32 s11, 0x20000
s_sub_u32 s14, {2048*1024}, s55
s_mov_b32 s15, 0x20000
s_mov_b32 s58, {512*6144}
s_mov_b32 s59, 0x20000
s_mov_b32 s62, 16384
s_mov_b32 s63, 0x20000
s_waitcnt lgkmcnt(0)
s_mov_b64 s[56:57], s[{P_WMOD}:{P_WMOD+1}]
s_mov_b64 s[4:5], s[{P_C}:{P_C+1}]
s_mov_b64 s[8:9], s[{P_WS}:{P_WS+1}]
s_load_dword {sEP}, s[{P_WS}:{P_WS+1}], {WS_EPOCH}
s_add_u32 s12, s{P_X}, s55
s_addc_u32 s13, s{P_X+1}, 0
s_bitcmp1_b32 {sCB}, 0
s_cselect_b64 s[60:61], s[{P_WV}:{P_WV+1}], s[{P_WK}:{P_WK+1}]
""")
stamp("start")
if "ms" in XP: stamp("karg")


def round_bf16(regs):
    for i in range(0, len(regs), 2):
        x, y = regs[i], regs[i+1]
        a(f"v_cvt_pk_bf16_f32 v{y}, v{x}, v{y}\nv_lshlrev_b32 v{x}, 16, v{y}\nv_and_b32 v{y}, 0xffff0000, v{y}")

def silu8(src, dst):
    for i in range(4): a(f"v_lshlrev_b32 v{40+2*i}, 16, v{src+i}\nv_and_b32 v{41+2*i}, 0xffff0000, v{src+i}")
    for i in range(8): a(f"v_mul_f32 v{48+i}, {fbits(-math.log2(math.e))}, v{40+i}")
    for i in range(8): a(f"v_exp_f32 v{48+i}, v{48+i}")
    for i in range(8): a(f"v_add_f32 v{48+i}, 1.0, v{48+i}")
    for i in range(8): a(f"v_rcp_f32 v{48+i}, v{48+i}")
    for i in range(8): a(f"v_mul_f32 v{40+i}, v{40+i}, v{48+i}")
    for i in range(4): a(f"v_cvt_pk_bf16_f32 v{dst+i}, v{40+2*i}, v{41+2*i}")

Lr0, Lr2, Lr3, Lxi, Lxw, Lnz, Lsl = (a.label(x) for x in ("r0", "r2", "r3", "xi", "xw", "noz", "sl"))
def xstage():
    for T2 in range(8):
        a(f"s_add_u32 m0, s67, {T2*2048}\ns_movk_i32 s3, {T2*128}\nbuffer_load_dwordx4 v22, {R1}, s3 offen lds\nbuffer_load_dwordx4 v23, {R1}, s3 offen offset:1024 lds")
if "ms" in XP: stamp("iss0")
a(f"s_cmp_eq_u32 s0, 1\ns_cbranch_scc0 {Lr2}")
a(f"s_cmp_lt_u32 {sIDX}, 8\ns_cbranch_scc0 {Lxi}\nbuffer_load_dwordx4 v[32:35], v3, {R0}, 0 offen")
for n in range(16):
    a(f"s_mov_b32 m0, {L_G0 + n*1024}\nbuffer_load_dwordx4 v28, {R2}, s66 offen lds")
    if n < 15: a("s_add_u32 s66, s66, 196608")
a(f"""
s_lshl_b32 s3, s68, 9
s_mov_b64 exec, 0xffffffff
buffer_store_dwordx4 v[36:39], v3, {WS}, s3 offen sc1
s_mov_b64 exec, -1
""")
a("s_barrier\ns_waitcnt vmcnt(17)")
if "ms" in XP: stamp("m_c")
silu8(32, 32)
a(f"v_add_u32 v6, {L_SILU}, v3\nds_write_b128 v6, v[32:35]\nv_lshlrev_b32 v5, 4, v2\nv_add_u32 v6, {L_SILU}, v5")
a(f"v_add_u32 v7, {L_G0}, v17\ns_waitcnt lgkmcnt(0)")
for T in range(16): a(f"ds_read_b128 {vr(160+4*T,4)}, v6 offset:{T*64}")
a("s_waitcnt vmcnt(0)")
if "ms" in XP: stamp("m_dma")
pipeline(16, lambda T: a(f"ds_read_b64_tr_b16 {vr(128+(T%8)*4,2)}, v7 offset:{T*1024}\nds_read_b64_tr_b16 {vr(130+(T%8)*4,2)}, v7 offset:{T*1024+256}"),
         lambda T: a(f"v_mfma_f32_16x16x32_bf16 v[32:35], {vr(128+(T%8)*4,4)}, {vr(160+4*T,4)}, {'0' if T == 0 else 'v[32:35]'}"), 2, pre=6)
round_bf16([32, 33, 34, 35])
Lno1 = a.label("no1")
a(f"s_bitcmp1_b32 s68, 5\ns_cbranch_scc0 {Lno1}")
for i in range(4): a(f"v_add_f32 v{32+i}, 1.0, v{32+i}")
round_bf16([32, 33, 34, 35])
a(f"""
{Lno1}:
s_lshl_b32 s3, s68, 6
s_add_u32 s3, s3, {WS_MODT}
s_mov_b32 exec_lo, 0x00010001
s_mov_b32 exec_hi, 0x00010001
s_add_u32 s65, {sEP}, 1
s_and_b32 s65, s65, 0xffff
v_or_b32 v36, s65, v32
v_or_b32 v37, s65, v33
v_or_b32 v38, s65, v34
v_or_b32 v39, s65, v35
buffer_store_dwordx4 v[36:39], v5, {WS}, s3 offen sc1
s_mov_b64 exec, -1
""")
if "ms" in XP: stamp("m_pub")
a(f"""
v_add_u32 v6, s69, v6
ds_read_b128 v[8:11], v6
""")
xstage()
a(f"""
s_waitcnt vmcnt(0)
s_branch {Lxw}
{Lr2}:
s_cmp_eq_u32 s0, 0
s_cbranch_scc1 {Lr0}
{Lxi}:
buffer_load_dwordx4 v[8:11], v25, {R0}, s69 offen
s_barrier
""")
xstage()
a(f"s_lshl_b32 s66, {sCB}, 7")
srd(R0, P_WQ, 512 * 1024, "s66")
Lnw = a.label("nw")
a(f"""
s_cmp_lt_u32 s0, 2
s_cbranch_scc1 {Lnw}
s_and_b32 s3, {sRB}, 3
s_lshl_b32 s3, s3, 1
s_add_u32 s3, s3, s0
s_sub_u32 s3, s3, 2
s_lshl_b32 s3, s3, 16
v_lshlrev_b32 v4, 10, v0
buffer_load_dword v26, v4, {R0}, s3 offen
s_waitcnt vmcnt(17)
""")
silu8(8, 8)
a(f"s_waitcnt vmcnt(1)\ns_branch {Lxw}\n{Lnw}:\ns_waitcnt vmcnt(16)")
silu8(8, 8)
a(f"s_waitcnt vmcnt(0)\ns_branch {Lxw}\n{Lr0}:\nbuffer_load_dwordx4 v[8:11], v25, {R0}, s69 offen\ns_barrier")
xstage()
a("v_lshl_add_u32 v21, v16, 5, v18")
for n in range(16): a(f"s_mov_b32 m0, {L_WKV + n*1024}\ns_movk_i32 s3, {n*1024}\nbuffer_load_dwordx4 v21, {R3}, s3 offen lds")
a(f"s_mul_i32 s3, s2, 768\ns_add_u32 s3, s3, {F_HOP}\ns_mov_b32 exec_hi, 0xffff\nbuffer_store_dwordx4 v[36:39], v3, {WS}, s3 offen sc1\ns_mov_b64 exec, -1\ns_waitcnt vmcnt(33)")
silu8(8, 8)
a(f"s_waitcnt vmcnt(17)\n{Lxw}:")
stamp("xin")
a(f"""
v_lshrrev_b32 v4, 1, v1
v_xor_b32 v4, v4, v2
v_lshlrev_b32 v4, 4, v4
v_lshl_add_u32 v4, v1, 7, v4
v_add_u32 v4, s67, v4
v_xor_b32 v5, 64, v4
s_waitcnt lgkmcnt(0)
s_add_u32 {sEP}, {sEP}, 1
s_and_b32 {sTAG}, {sEP}, 0xffff
""")
for T in range(16): a(f"ds_read_b128 {vr(64+4*T,4)}, v{4 + (T & 1)} offset:{(T >> 1)*2048}")
a(f"s_lshl_b32 s66, {sCB}, 7")
srd(R0, P_WQ, 512 * 1024, "s66")
a(f"""
v_lshrrev_b32 v4, 3, v0
v_bfe_u32 v5, v0, 1, 2
v_bfe_u32 v6, v4, 1, 1
v_xor_b32 v5, v5, v6
v_lshlrev_b32 v5, 5, v5
v_lshl_add_u32 v5, v4, 10, v5
v_add_u32 v19, v5, v18
v_xor_b32 v20, 64, v19
""")
a(f"s_lshl_b32 s66, {sW}, 17")
nst = [0]
def stage():
    n = nst[0]; nst[0] += 1
    a(f"s_mov_b32 m0, s67\ns_add_u32 s67, s67, 1024\nbuffer_load_dwordx4 v{19 + (n & 1)}, {R0}, s66 offen lds\ns_add_u32 s66, s66, 8192")
for i in range(64):
    if i % 4 == 0: a(f"s_waitcnt lgkmcnt({15 - i // 4})")
    a(f"v_lshlrev_b32 v{128+2*i}, 16, v{64+i}\nv_and_b32 v{129+2*i}, 0xffff0000, v{64+i}")
for k in range(4): a(f"v_pk_add_f32 {vr(32+2*k,2)}, {vr(128+4*k,2)}, {vr(130+4*k,2)}")
for k in range(4): a(f"v_pk_mul_f32 {vr(40+2*k,2)}, {vr(128+2*k,2)}, {vr(128+2*k,2)}")
for i in range(4, 64):
    if i >= 8: a(f"v_pk_add_f32 {vr(32+2*(i%4),2)}, {vr(32+2*(i%4),2)}, {vr(128+2*i,2)}")
    a(f"v_pk_fma_f32 {vr(40+2*(i%4),2)}, {vr(128+2*i,2)}, {vr(128+2*i,2)}, {vr(40+2*(i%4),2)}")
    if i % 4 == 3 and nst[0] < 16: stage()
for b in (32, 40):
    a(f"v_pk_add_f32 {vr(b,2)}, {vr(b,2)}, {vr(b+2,2)}\nv_pk_add_f32 {vr(b+4,2)}, {vr(b+4,2)}, {vr(b+6,2)}\nv_pk_add_f32 {vr(b,2)}, {vr(b,2)}, {vr(b+4,2)}\nv_add_f32 v{b}, v{b}, v{b+1}")
xgroup_sum2(32, 33, 40, 41)
finish_stats([(32, 40, 34, 36, None)], 512)
a("v_mul_f32 v34, v34, v36")
PE = int(([x[3:] for x in XP if x.startswith('pe:')] or ['32'])[0])
a(f"s_mov_b32 s23, {WS_MODT}")
for i in range(65):
    if i == PE:
        while nst[0] < 16: stage()
        for k in range(4): a(f"buffer_load_dwordx4 {vr(40+4*k,4)}, v3, {WS}, s23 offen offset:{k*1024} sc1")
    if i == 64: break
    a(f"v_pk_fma_f32 {vr(128+2*i,2)}, {vr(128+2*i,2)}, v[36:37], v[34:35] op_sel_hi:[1,0,0]")
    if i % 8 == 0 and nst[0] < 16: stage()
Lna = a.label("nkvf")
a(f"s_cmp_eq_u32 s0, 0\ns_cbranch_scc0 {Lna}\nv_add_u32 v7, {L_WKV}, v17\ns_waitcnt vmcnt(21)")
for T in range(16): a(f"ds_read_b64_tr_b16 {ar(4*T,2)}, v7 offset:{T*1024}\nds_read_b64_tr_b16 {ar(4*T+2,2)}, v7 offset:{T*1024+256}")
a(f"{Lna}:")
stamp("ln1")
def tagcheck(regs):
    out = [f"v_xor_b32 v{r}, {sTAG}, v{r}" for r in regs]
    out.append(f"v_or3_b32 v4, v{regs[0]}, v{regs[1]}, v{regs[2]}")
    for i in range(3, len(regs) - 1, 2): out.append(f"v_or3_b32 v4, v4, v{regs[i]}, v{regs[i+1]}")
    out.append(f"v_or_b32 v4, v4, v{regs[-1]}\nv_and_b32 v4, 0xffff, v4\nv_cmp_ne_u32 vcc, 0, v4")
    return "\n".join(out)
BKA = int(([x[4:] for x in XP if x.startswith("bka:")] or ["5"])[0])
def setup_scalars():
    Lr2, Lr3, Lre = (a.label(x) for x in ("r2", "r3", "re"))
    a(f"""
s_mul_i32 s77, {sW}, 12288
s_lshl_b32 s68, {sW}, 12
s_movk_i32 s74, 1024
s_movk_i32 s75, 4
s_movk_i32 s76, 8
s_movk_i32 s1, 2048
s_movk_i32 s20, 8192
s_cmp_eq_u32 {sW}, 2
s_cbranch_scc1 {Lr2}
s_cmp_eq_u32 {sW}, 3
s_cbranch_scc1 {Lr3}
s_and_b32 s64, {sRB}, 15
s_mul_i32 s64, s64, 114688
s_lshr_b32 s3, {sRB}, 4
s_mul_i32 s3, s3, 1792
s_add_u32 s64, s64, s3
s_mul_i32 s3, {sCB}, 224
s_add_u32 s64, s64, s3
s_lshl_b32 s3, {sW}, 7
s_add_u32 s64, s64, s3
""")
    srd(R2, P_WIN, 512 * 3584, "s64")
    a(f"""
s_movk_i32 s74, 3584
s_movk_i32 s20, {8*3584}
s_mov_b32 s21, {16*3584}
s_mov_b32 s22, {24*3584}
s_lshl_b32 s36, {sCB}, 5
s_add_u32 s36, s36, {sRB}
s_mul_i32 s36, s36, {SLOT}
s_add_u32 s36, s36, s68
s_add_u32 s36, s36, {WS_WINF}
s_mov_b32 s24, s36
s_cmp_eq_u32 {sW}, 0
s_cselect_b32 s37, s36, {WS_SIZE}
s_branch {Lre}
{Lr2}:
s_min_u32 s67, {sRB}, 27
s_mul_i32 s64, s67, 37
s_lshr_b32 s64, s64, 8
s_mul_i32 s3, s64, 7
s_sub_u32 s65, s67, s3
s_mul_i32 s64, s64, 224
s_lshl_b32 s3, s65, 5
s_add_u32 s66, s3, 16
s_cmp_lt_u32 s65, 3
s_cselect_b32 s3, s3, s66
s_cmp_eq_u32 s65, 6
s_cselect_b32 s3, 96, s3
s_cselect_b32 s21, 112, 16
s_cselect_b32 s75, 8, 4
s_cselect_b32 s76, 16, 8
s_cselect_b32 s1, 512, s1
s_lshl_b32 s21, s21, 10
s_add_u32 s22, s21, 8192
s_add_u32 s64, s64, s3
s_lshl_b32 s64, s64, 10
s_lshl_b32 s3, {sCB}, 7
s_add_u32 s64, s64, s3
""")
    srd(R2, P_WOUT, 896 * 1024, "s64")
    a(f"""
s_mul_i32 s3, s67, 37
s_lshr_b32 s3, s3, 8
s_sub_u32 s36, s67, s3
s_add_u32 s3, s3, 24
s_cmp_eq_u32 s65, 6
s_cselect_b32 s3, s3, s36
s_mul_i32 s36, {sCB}, 28
s_add_u32 s36, s36, s3
s_lshl_b32 s36, s36, 12
s_add_u32 s36, s36, {WS_WOUTF}
s_cmp_lt_u32 {sRB}, 28
s_cselect_b32 s36, s36, {WS_SIZE}
s_mov_b32 s37, s36
s_mov_b32 s24, s36
s_branch {Lre}
{Lr3}:
s_lshr_b32 s67, {sRB}, 1
s_lshl_b32 s64, s67, 15
s_lshl_b32 s3, {sCB}, 7
s_add_u32 s64, s64, s3
""")
    srd(R2, P_WO, 512 * 1024, "s64")
    a(f"""
s_movk_i32 s21, 16384
s_movk_i32 s22, 24576
s_movk_i32 s75, 16
s_movk_i32 s76, 4
s_movk_i32 s1, 1024
s_lshl_b32 s36, {sCB}, 4
s_add_u32 s36, s36, s67
s_lshl_b32 s36, s36, 12
s_add_u32 s36, s36, {WS_WOF}
s_bitcmp1_b32 {sRB}, 0
s_cselect_b32 s37, s36, {WS_SIZE}
s_cselect_b32 s36, {WS_SIZE}, s36
s_mov_b32 s24, s37
{Lre}:
s_and_b32 s64, s2, 15
s_mul_i32 s64, s64, {32*6144}
s_lshr_b32 s65, s2, 4
s_lshl_b32 s3, s65, 8
s_add_u32 s64, s64, s3
s_lshl_b32 s3, {sW}, 6
s_add_u32 s64, s64, s3
s_add_u32 s64, s64, 2048
""")
    srd(R3, P_WMOD, 512 * 6144, "s64")
    a(f"""
s_lshl_b32 s35, {sW}, 11
s_add_u32 s35, s35, {L_G2}
s_lshl_b32 s64, {sW}, 11
s_add_u32 s65, s64, {L_KV}
s_add_u32 s64, s64, {WS_KV}
s_mul_i32 s66, {sIDX}, {33*128}
s_add_u32 s66, s66, {WS_KV}
s_lshl_b32 s67, {sRB}, 10
""")
def late_scalars():
    a(f"s_lshl_b32 s23, {sRB}, 18\ns_lshl_b32 s19, {sW}, 10\ns_add_u32 s23, s23, s19")
    srd(R0, P_WSP, 2048 * 4096, "s23")
    a(f"""
s_lshl_b32 s19, {sCB}, 15
s_lshl_b32 s30, {sCB}, 7
s_lshr_b32 s31, s55, 4
s_add_u32 s31, s31, s30
s_add_u32 s31, s31, {WS_ST1}
s_add_u32 s23, s30, s55
""")
    srd(R1, P_X, 2048 * 1024, "s23")
    a(f"""
s_lshr_b32 s34, s2, 4
s_lshl_b32 s34, s34, 9
s_lshl_b32 s23, {sW}, 7
s_add_u32 s34, s34, s23
s_add_u32 s34, s34, {WS_G2}
s_lshl_b32 s39, {sCB}, 9
s_mov_b32 s38, {F_P}
s_add_u32 s27, s39, s38
s_add_u32 s39, s27, s23
s_lshr_b32 s23, {sRB}, 4
s_mul_i32 s23, s23, 3584
s_mul_i32 s28, {sCB}, 448
s_add_u32 s28, s28, s23
s_lshl_b32 s23, {sW}, 8
s_add_u32 s28, s28, s23
s_add_u32 s28, s28, {WS_C12}
s_lshr_b32 s23, {sW}, 1
s_mul_i32 s23, s23, {WS_SIZE}
s_add_u32 s28, s28, s23
s_add_u32 s29, s28, 7168
s_and_b32 s25, {sRB}, 15
s_lshl_b32 s25, s25, 7
s_add_u32 s25, s25, {WS_G2 + 2048}
s_and_b32 s23, {sRB}, 3
s_lshl_b32 s23, s23, 2
s_add_u32 s23, s23, {sW}
s_mul_i32 s26, s23, {SLOT}
s_mul_i32 s23, {sCB}, {28*4096}
s_add_u32 s26, s26, s23
s_add_u32 s26, s26, {WS_WOUTF}
s_lshl_b32 s69, {sCB}, 16
s_add_u32 s69, s69, {WS_WOF}
s_lshl_b32 s16, s55, 1
s_lshl_b32 s23, {sCB}, 11
s_add_u32 s16, s16, s23
s_add_u32 s16, s16, {WS_X}
s_add_u32 s17, s16, 16384
s_lshl_b32 s23, {sCB}, 8
s_add_u32 s18, s23, {WS_G2}
s_add_u32 s30, s23, {WS_G2 + 2*2048}
""")
    for s_ in range(4): a(f"s_add_u32 s23, {sW}, {s_}\ns_and_b32 s23, s23, 3\ns_lshl_b32 s{70+s_}, s23, 16")
assert F_B == 0

STAG = "stag" in XP
if STAG: a("s_cmp_eq_u32 s0, 0\ns_cbranch_scc0 L_ns1")
setup_scalars()
a("L_ns1:")
PARLD = "\n".join(f"buffer_load_dwordx4 {vr(40+4*i,4)}, v3, {WS}, s23 offen offset:{i*1024} sc1" for i in range(4))
a("s_waitcnt vmcnt(0)")
a(tagcheck(list(range(40, 56))))
a("s_cbranch_vccz L_parok")
poll(PARLD, tagcheck(list(range(40, 56))), "-1", BKA)
a(f"L_parok:\ns_lshl_b32 s3, {sW}, 12\nv_add_u32 v5, s3, v3")
for i in range(4): a(f"ds_write_b128 v5, {vr(40+4*i,4)} offset:{L_PAR + i*1024}")
stamp("barP")
if STAG:
    a("s_cmp_eq_u32 s0, 0\ns_cbranch_scc1 L_ns2")
    setup_scalars()
    a(f"s_lshl_b32 s3, {sW}, 12\nL_ns2:")
LV, Lh, Lnkv, LV2, Lst, Lkve = (a.label(x) for x in ("isV", "hdone", "nokv", "isV2", "kvst", "kve"))
a(f"v_lshlrev_b32 v19, 5, v2\nv_add_u32 v19, s3, v19\ns_waitcnt lgkmcnt(0)\ns_bitcmp1_b32 {sCB}, 0\ns_cbranch_scc1 {LV}")
def hpass(isV):
    OFF = (2048, 0, 2064, 16)
    rd = lambda T, k: a(f"ds_read_b128 {vr(32 + (T & 1)*16 + 4*k, 4)}, v19 offset:{OFF[k] + T*128}")
    def kv(T):
        A, B = (vr(64+4*T,4), ar(4*T,4)) if isV else (ar(4*T,4), vr(64+4*T,4))
        a(f"v_mfma_f32_16x16x32_bf16 v[12:15], {A}, {B}, {'0' if T == 0 else 'v[12:15]'}")
    for T in range(2):
        for k in range(4): rd(T, k)
    for T in range(16):
        b = 32 + (T & 1) * 16
        for hf in range(2):
            a(f"s_waitcnt lgkmcnt({(6 if T < 15 else 2 - 2*hf) if T < 14 or hf == 0 and T == 14 else (4 if T == 14 else 2 - 2*hf)})")
            for k in range(2):
                x = 128 + 8*T + 4*hf + 2*k
                a(f"v_pk_fma_f32 {vr(x,2)}, {vr(x,2)}, {vr(b+8*hf+2*k,2)}, {vr(b+8*hf+4+2*k,2)}")
            if hf == 0 and T: kv(T - 1)
            if T + 2 < 16: rd(T + 2, 2*hf); rd(T + 2, 2*hf + 1)
            for k in range(2):
                x = 128 + 8*T + 4*hf + 2*k
                a(f"v_cvt_pk_bf16_f32 v{64+4*T+2*hf+k}, v{x}, v{x+1}")
    kv(15)
hpass(False)
a(f"s_branch {Lh}\n{LV}:")
hpass(True)
a(f"{Lh}:")
if "ms" in XP: stamp("h")
a(f"""
s_cmp_eq_u32 s0, 0
s_cbranch_scc0 {Lnkv}
s_lshl_b32 s23, {sRB}, 1
s_lshr_b32 s3, {sW}, 1
s_add_u32 s23, s23, s3
s_mul_i32 s23, s23, {REC}
s_add_u32 s23, s23, {WS_KV}
s_and_b32 s27, {sW}, 1
v_lshrrev_b32 v20, 5, v0
v_cvt_pk_bf16_f32 v36, v12, v13
v_cvt_pk_bf16_f32 v37, v14, v15
v_mov_b32 v38, v36
v_mov_b32 v39, v37
v_permlane16_swap_b32 v36, v38
v_permlane16_swap_b32 v37, v39
s_bitcmp1_b32 {sCB}, 0
s_cbranch_scc1 {LV2}
v_lshlrev_b32 v20, 9, v20
v_lshl_add_u32 v20, v1, 4, v20
s_lshl_b32 s27, s27, 8
s_add_u32 s23, s23, s27
s_add_u32 s23, s23, 1088
s_mov_b32 exec_lo, 0x0000ffff
s_mov_b32 exec_hi, 0x0000ffff
s_branch {Lst}
{LV2}:
v_mul_u32_u24 v20, 272, v20
v_and_b32 v4, 31, v0
v_lshl_add_u32 v20, v4, 4, v20
s_mul_i32 s27, s27, 544
s_add_u32 s23, s23, s27
s_mov_b32 exec_lo, 0xffff0000
s_mov_b32 exec_hi, 0xffff0000
v_mov_b32 v36, 0x3f803f80
v_mov_b32 v37, 0x3f803f80
v_mov_b32 v38, 0x3f803f80
v_mov_b32 v39, 0x3f803f80
s_mov_b32 exec_lo, 0x0001ffff
s_mov_b32 exec_hi, 0x0001ffff
{Lst}:
buffer_store_dwordx4 v[36:39], v20, {WS}, s23 offen sc1
s_mov_b64 exec, 1
s_add_u32 s3, {sXCC}, 1
v_mov_b32 v20, s3
s_lshl_b32 s23, {sCB}, 7
s_add_u32 s23, s23, s67
s_waitcnt vmcnt(0)
buffer_store_dword v20, v0, {WS}, s23 offen sc1
s_mov_b64 exec, -1
""")
if "ms" in XP: stamp("arr")
a(f"{Lnkv}:")
def trbase128(dst, rowexpr_v, fexpr_v, lbase):
    a(f"v_and_b32 v6, 3, v1\nv_lshlrev_b32 v6, 3, v6\nv_lshl_add_u32 v6, v{rowexpr_v}, 7, v6\nv_lshl_add_u32 v6, v{fexpr_v}, 5, v6\nv_add_u32 v{dst}, {lbase}, v6")
    for j in range(1, 4): a(f"v_xor_b32 v{dst+j}, {j*32}, v{dst}")
a("v_lshrrev_b32 v4, 2, v1\nv_bfe_u32 v5, v1, 3, 1\nv_and_b32 v7, 1, v2\nv_lshl_or_b32 v5, v7, 1, v5\nv_lshl_add_u32 v4, v2, 3, v4")
trbase128(24, 4, 5, L_WQ)
a("s_barrier")
BQ = lambda T, j: (32, 48, 144)[T % 3] + 4*j
rdq = lambda T, j: a(f"ds_read_b64_tr_b16 {vr(BQ(T, j),2)}, v{24+j} offset:{T*4096}\nds_read_b64_tr_b16 {vr(BQ(T, j)+2,2)}, v{24+j} offset:{T*4096+512}")
for n in range(8): rdq(n >> 2, n & 3)
deeploop(16, 4, rdq, lambda T, j: a(f"v_mfma_f32_16x16x32_bf16 {vr(128+4*j,4)}, {vr(BQ(T, j),4)}, {vr(64+4*T,4)}, {'0' if T == 0 else vr(128+4*j,4)}"),
         lambda T: None, nper=2)
for i in range(16): a(f"v_mul_f32 v{128+i}, {fbits(0.25*math.log2(math.e))}, v{128+i}")
for i in range(8): a(f"v_cvt_pk_bf16_f32 v{16+i}, v{128+2*i}, v{129+2*i}")
for e in range(2): a(f"v_permlane16_swap_b32 v{16+4*e}, v{18+4*e}\nv_permlane16_swap_b32 v{17+4*e}, v{19+4*e}")
stamp("q")
a(f"""
v_add_u32 v24, {L_KV + 1088}, v3
v_add_u32 v25, {31*REC}, v24
v_add_u32 v26, {31*REC}, v25
v_lshrrev_b32 v4, 5, v0
v_mul_u32_u24 v4, 272, v4
v_and_b32 v5, 31, v0
v_lshl_add_u32 v4, v5, 4, v4
v_add_u32 v27, {L_KV}, v4
v_mov_b32 v4, 0x40000
v_cmp_lt_u32 vcc, {16 if PADZERO else 99}, v5
v_mov_b32 v31, {OOB}
v_mov_b32 v30, 0xdddd
v_cndmask_b32 v27, v27, v4, vcc
v_add_u32 v28, {31*REC}, v27
v_add_u32 v29, {31*REC}, v28
v_lshrrev_b32 v7, 3, v0
v_and_b32 v6, 7, v0
v_xor_b32 v5, v6, v2
v_lshlrev_b32 v5, 4, v5
v_lshl_add_u32 v168, v7, 12, v5
v_xor_b32 v169, 64, v168
v_add_u32 v169, {0x8000 - 1024}, v169
v_lshrrev_b32 v4, 1, v1
v_xor_b32 v4, v4, v2
v_lshlrev_b32 v4, 4, v4
v_lshl_add_u32 v4, v1, 7, v4
v_add_u32 v170, s77, v4
v_xor_b32 v171, 64, v170
v_lshlrev_b32 v4, 10, v1
v_lshl_add_u32 v172, v2, 3, v4
v_lshrrev_b32 v4, 2, v0
v_lshlrev_b32 v4, 12, v4
v_and_b32 v5, 3, v0
v_lshl_add_u32 v4, v5, 7, v4
v_cmp_gt_u32 vcc, 32, v0
v_lshlrev_b32 v5, 7, v6
v_lshl_add_u32 v5, v7, 12, v5
v_cndmask_b32 v173, {"v31, v4" if "half" in XP else "v5, v5"}, vcc
v_lshlrev_b32 v6, 4, v6
v_mad_u32_u24 v176, v7, s74, v6
v_lshrrev_b32 v4, 2, v1
v_and_b32 v5, 1, v2
v_mad_u32_u24 v4, v5, s75, v4
v_lshrrev_b32 v5, 1, v2
v_mad_u32_u24 v4, v5, s76, v4
v_and_b32 v5, 3, v1
v_lshlrev_b32 v5, 3, v5
v_lshl_add_u32 v4, v4, 7, v5
v_add_u32 v177, s68, v4
v_add_u32 v178, s1, v177
v_lshlrev_b32 v4, 7, v0
v_cmp_gt_u32 vcc, 32, v0
v_cmp_gt_u32 s[74:75], 33, v0
v_mov_b32 v199, 1
v_lshlrev_b32 v218, 4, v2
v_cndmask_b32 v196, v31, v4, vcc
v_cndmask_b32 v197, v31, v4, s[74:75]
v_cmp_gt_u32 vcc, 14, v0
v_cmp_gt_u32 s[74:75], 4, v0
s_nop 0
v_cndmask_b32 v175, v31, v4, vcc
v_cndmask_b32 v174, v31, v4, s[74:75]
v_cmp_eq_u32 vcc, 0, v0
v_and_b32 v7, 1, v0
v_lshlrev_b32 v5, 4, v7
v_cndmask_b32 v198, v31, v4, vcc
v_lshrrev_b32 v4, 2, v0
v_mul_u32_u24 v4, 6144, v4
v_and_b32 v5, 3, v0
v_lshl_add_u32 v212, v5, 4, v4
v_lshrrev_b32 v4, 2, v1
v_lshl_add_u32 v4, v2, 3, v4
v_lshlrev_b32 v4, 6, v4
v_lshl_add_u32 v4, v5, 3, v4
v_add_u32 v213, s35, v4
v_cvt_f32_u32 v219, v7
v_sub_f32 v219, 1.0, v219
v_lshlrev_b32 v4, 2, v0
v_cmp_gt_u32 vcc, 32, v0
s_cmp_eq_u32 {sW}, 0
s_cselect_b32 s3, 64, 48
v_cmp_gt_u32 s[74:75], s3, v0
v_lshlrev_b32 v5, 11, v7
v_cndmask_b32 v214, v31, v4, vcc
v_cndmask_b32 v215, v31, v4, s[74:75]
v_sub_u32 v4, 2048, v5
v_add_u32 v4, v218, v4
v_and_b32 v5, 2, v0
v_cmp_eq_u32 vcc, 0, v5
v_mul_u32_u24 v5, {WS_ST2 - WS_ST1}, v7
v_cndmask_b32 v216, v31, v4, vcc
v_lshlrev_b32 v4, 7, v1
v_lshl_add_u32 v4, v2, 14, v4
v_cmp_gt_u32 vcc, 32, v0
v_cmp_gt_u32 s[74:75], 2, v0
v_mov_b64 v[80:81], 0
v_mov_b64 v[82:83], 0
v_cndmask_b32 v202, v31, v4, vcc
v_cndmask_b32 v217, v31, v5, s[74:75]
""")
for i in range(2, 16): a(f"v_mov_b64 {vr(80+2*i,2)}, 0")
if "ms" in XP: stamp("setup")
BKB = int(([x[3:] for x in XP if x.startswith("bk:")] or ["6"])[0])
a(f"v_lshlrev_b32 v5, 7, v0\ns_lshl_b32 s23, {sW}, 13")
a(f"buffer_load_dword v4, v5, {WS}, s23 offen sc1")
a("s_waitcnt vmcnt(0)\nv_cmp_eq_u32 vcc, 0, v4\ns_cbranch_vccz L_bok")
poll(f"buffer_load_dword v4, v5, {WS}, s23 offen sc1", "v_cmp_eq_u32 vcc, 0, v4", "-1", BKB)
a("L_bok:")
a("s_waitcnt lgkmcnt(0)\ns_barrier")
stamp("barB")
Lne = a.label("noep")
a(f"s_or_b32 s3, s2, {sW}\ns_cbranch_scc1 {Lne}\nv_mov_b32 v4, {sEP}\ns_mov_b32 s3, {WS_EPOCH}\nbuffer_store_dword v4, v198, {WS}, s3 offen sc1\n{Lne}:")
a(f"s_cmp_eq_u32 {sW}, 3\ns_cbranch_scc0 L_nkt\nbuffer_load_dword v200, v197, {WS}, s66 offen sc1\nL_nkt:")
vm.n = 0
def kv_group(i):
    if i < 16:
        return (["s_mov_b32 m0, s65"], [f"buffer_load_dwordx4 v3, {WS}, s64 offen sc1 lds", f"buffer_load_dwordx4 v3, {WS}, s64 offen offset:1024 sc1 lds"],
                f"kvg{i}", ["s_add_u32 s64, s64, 8192", "s_add_u32 s65, s65, 8192"])
    return ([f"s_lshl_b32 s3, {sW}, 10", "s_sub_u32 s64, s64, s3", "s_sub_u32 m0, s65, s3"], [f"buffer_load_dwordx4 v3, {WS}, s64 offen sc1 lds"], "kvg16", [])
def emit_item(x):
    pre, ins, tag, post = x
    for p in pre: a(p)
    for q_ in ins: vm.op(q_, tag)
    for p in post: a(p)
for i in range(2): emit_item(kv_group(i))

def win_items(half, grp, slot0, tag):
    ld = lambda i: f"buffer_load_dwordx4 v3, {WS}, s74 offen offset:{(i & 3)*1024} sc1 lds"
    first = [f"s_add_u32 s74, s21, {4*grp}", "s_and_b32 s74, s74, 15", "s_add_u32 s74, s74, s22", f"s_mul_i32 s74, s74, {SLOT}", f"s_add_u32 s74, s74, {WS_WINF + half*16*SLOT}"] + slot0
    return [(first + ["s_mov_b32 m0, s75"], [ld(0), ld(1)], tag, []), (["s_mov_b32 m0, s75"], [ld(2), ld(3)], tag, ["s_add_u32 s74, s74, 4096", "s_add_u32 s75, s75, 4096"]),
            (["s_mov_b32 m0, s75"], [ld(4), ld(5)], tag, []), (["s_mov_b32 m0, s75"], [ld(6)], tag, [])]
def lin_slot(base): return [f"s_mul_i32 s75, {sW}, {SLOT}", f"s_add_u32 s75, s75, {base}"]

def kaddr(t): return f"v{24 + t//31} offset:{(t % 31)*REC}"
def vaddr(t, m): return f"v{27 + t//31} offset:{(t % 31)*REC + m*544}"
Kb = lambda t: vr(144 + 4*(t & 1), 4)
Vb = lambda t, m: vr(152 + 8*(t & 1) + 4*m, 4)
Sb = lambda u: 32 + 16*(u % 3)
Q = lambda e: vr(16 + 4*e, 4)
O = lambda e: 80 + 16*e
C = lambda e: 112 + 16*e
vm.wait("kvg0"); a("s_barrier")
stamp("kv0")
if "clk" in XP: a("s_memtime s[96:97]\ns_memrealtime s[98:99]\ns_waitcnt lgkmcnt(0)")
a(f"ds_read_b128 {Kb(0)}, {kaddr(0)}\nds_read_b128 {Kb(1)}, {kaddr(1)}\ns_waitcnt lgkmcnt(1)")
for e in range(2): a(f"v_mfma_f32_32x32x16_bf16 {vr(32+16*e,16)}, {Kb(0)}, {Q(e)}, 0")
def rowmax(first):
    for i in range(0, 16, 2):
        for e in range(2):
            if first and i == 0: a(f"v_max_f32 v{4+e}, v{32+16*e}, v{33+16*e}")
            else: a(f"v_max3_f32 v{4+e}, v{32+16*e+i}, v{33+16*e+i}, v{4+e}")
def negbcast():
    a("v_mov_b32 v6, v4\nv_mov_b32 v7, v5\nv_permlane32_swap_b32 v4, v6\nv_permlane32_swap_b32 v5, v7")
    for e in range(2): a(f"v_max_f32 v{4+e}, v{4+e}, v{6+e}")
    for e in range(2): a(f"v_sub_f32 v{C(e)}, 0, v{4+e}\nv_sub_f32 v{C(e)+1}, 0, v{4+e}")
    for e in range(2):
        for i in range(2, 16, 2): a(f"v_mov_b64 {vr(C(e)+i,2)}, {vr(C(e),2)}")
a.note("""Softmax shift: each query's max over the first 32 keys is subtracted through the MFMA C operand (scores are in log2 units).
After the last key the row sums are checked; if any is not < 2^40 the two query tiles are redone with the true row max (L path at the end).
P goes to the sparse MFMA as raw f32: the index 0xdddd picks the high (bf16) half of every register; row 16 of V^T is ones and yields the row sum.""")
rowmax(True); negbcast()
a(f"v_mfma_f32_32x32x16_bf16 {vr(Sb(0),16)}, {Kb(0)}, {Q(0)}, {vr(C(0),16)}")

plan = {}
TW, TARR, TK, TW2 = (int(x) for x in ([x[3:] for x in XP if x.startswith('tw:')] or ['6,28,8,13'])[0].split(','))
SH = int(([x[3:] for x in XP if x.startswith('sh:')] or ['0'])[0])
TP, TR = 19, 28 + SH
def put(t, slot, x): plan.setdefault((t, slot), []).append(x)
PREV = {"e1x": ("e0", 0), "o0": ("e1", 0), "e1": ("e0", 0), "eq": ("o1", -1), "oq": ("e1", 0), "e0": ("o1", -1)}
assert True
def vitem(t, slot, x):
    pre, ins, tag, post = x
    ps, dt = PREV[slot]
    pre = [p + " " for p in pre]
    m0 = [p for p in pre if " m0," in p]; rest = [p for p in pre if " m0," not in p]
    if t + dt < 0 or len(pre) > 2:
        pp, dd = PREV[ps] if ps in PREV else ("o0", 0)
        if t + dt + dd < 0: put(t, slot, ("salu", pre))
        else: put(t + dt + dd, pp + "a", ("salu", rest)); put(t + dt, ps + "a", ("salu", m0))
    else: put(t + dt, ps + "a", ("salu", pre))
    put(t, slot, ("vm", ins, tag, m0[0] if m0 else None))
    if post: put(t, slot, ("salu", post))
for i in range(2, 8): vitem((i - 2) // 2, ("e1", "o0")[i & 1], kv_group(i))
KVE = False
TK = int(([x[3:] for x in XP if x.startswith('tk:')] or ['24'])[0])
for i in range(8, 16): vitem(TK + (i - 8) // 2, ("e1", "o0")[i & 1], kv_group(i))
vitem(TK + 4, "eq", kv_group(16))
late = [x.text for _, x in capture(late_scalars)]
free = [(t, k) for t in range(0, 3) for k in ("o1a",)] + [(3, "o1a"), (4, "o1a"), (3, "e0b"), (4, "e0b"), (5, "e0b")] + [(t, k) for t in range(6, 19) for k in ("e0a", "e1a", "o1a")]
free.sort(key=lambda x: (x[0], ("e0b", "e0a", "e1a", "o1a").index(x[1])))
n_ = 0
for t, k in free:
    cnt = 3 if t < 5 else 2
    while n_ + cnt < len(late) and late[n_ + cnt].startswith("s_addc"): cnt += 1
    if n_ < len(late): put(t, k, ("salu", late[n_:n_ + cnt]))
    n_ += cnt
assert n_ >= len(late)
for n, so in enumerate(("0", "s20", "s21", "s22")):
    vitem((8 if KVE else 3) + (n >> 1), ("e1", "o0")[n & 1], ([f"s_add_u32 m0, s68, {n*1024}"], [f"buffer_load_dwordx4 v176, {R2}, {so} offen lds"], "praw", []))
put(1, "eq", ("vm", [f"buffer_load_dword v253, v196, {WS}, s67 offen sc1"], None))
if PLAIN:
    for n in range(2):
        put(44 + SH + n, "e1", ("vm", [f"buffer_store_dwordx4 v[16:19], v3, {WS}, s{16+n} offen offset:{i*1024} sc1" for i in range(2)], None))
    put(53, "e1", ("vm", [f"buffer_load_dword v200, v202, {WS}, s16 offen"], None))
for j in range(8): put((51, 58, 52, 53, 54, 55, 56, 57)[j], "oq", ("vm", [f"buffer_load_dwordx4 {vr(220+4*j,4)}, v218, {WS}, s{18 if j < 4 else 30} offen offset:{(j & 3)*64} sc1"], None))
put(TW, "o0", ("vm", [f"buffer_load_dword v200, v173, {R0}, s19 offen"], None))
if "half" in XP: put(TW2, "o0", ("vm", [f"buffer_load_dword v200, v173, {R0}, s19 offen offset:512"], None))
put(3, "eq", ("vm", [f"buffer_load_dword v200, v198, {WS}, {sGRP} offen sc1"], None))
put(5, "oq", ("vm", [f"buffer_load_dword v200, v217, {WS}, s31 offen sc1"], None))
vitem(5, "e1", (["s_mov_b32 m0, s35"], [f"buffer_load_dwordx4 v212, {R3}, 0 offen lds"], None, []))
vitem(5, "o0", ([f"s_mov_b32 s3, {16*6144}", "s_add_u32 m0, s35, 1024"], [f"buffer_load_dwordx4 v212, {R3}, s3 offen lds"], "praw", []))
put(12, "e0a", ("salu", [f"s_lshl_b32 s21, {sCB}, 1", f"s_add_u32 s21, s21, {sW}"]))
put(12, "e1a", ("salu", [f"s_lshl_b32 s22, {sCB}, 5", "s_lshl_b32 s1, s21, 12"]))
put(TP - 1, "o1b", ("wait", "praw"))
put(TP - 1, "o1x", ("ds", ["ds_read_b64_tr_b16 v[220:221], v213", "ds_read_b64_tr_b16 v[222:223], v213 offset:256"]))
put(TP, "e0", ("ds", ["ds_read_b64_tr_b16 v[224:225], v213 offset:32", "ds_read_b64_tr_b16 v[226:227], v213 offset:288"]))
put(TP, "o0", ("salu", ["v_mfma_f32_16x16x32_bf16 v[228:231], v[8:11], v[220:223], 0", "v_mfma_f32_16x16x32_bf16 v[232:235], v[8:11], v[224:227], 0"]))
put(TP + 1, "e0", ("salu", ["s_mov_b32 exec_lo, 0xffff0000", "v_mov_b32 v228, v232", "s_mov_b32 exec_lo, -1"]))
put(TP + 1, "e1", ("vm", [f"buffer_atomic_add_f32 v228, v214, {WS}, s34 offen"], None))
put(50, "eq", ("vm", [f"buffer_load_dwordx4 v[204:207], v216, {WS}, s25 offen sc1"], None))
put(50, "oq", ("vm", [f"buffer_load_dwordx4 v[208:211], v216, {WS}, s25 offen offset:64 sc1"], "xop"))
put(53, "e0b", ("wait", "xop"))
put(53, "e0", ("salu", [x.text for _, x in capture(lambda: round_bf16(list(range(204, 212))))]))
put(53, "o0x", ("salu", [f"v_add_f32 v{204+i}, v219, v{204+i}" for i in range(8)] + [f"v_cvt_pk_bf16_f32 v{204+i}, v{204+2*i}, v{205+2*i}" for i in range(4)]))
DJ = (168, 208, 176, 224)
put(54, "e0", ("salu", [f"v_mfma_f32_16x16x32_bf16 {vr(DJ[j],4)}, v[204:207], {vr(180+4*j,4)}, 0" for j in range(4)]))
put(55, "e0", ("salu", ["s_mov_b32 exec_lo, 0xffff0000", "s_mov_b32 exec_hi, 0", "v_mov_b64 v[168:169], v[208:209]",
                        "s_mov_b32 exec_lo, 0", "s_mov_b32 exec_hi, 0x0000ffff", "v_mov_b64 v[168:169], v[176:177]",
                        "s_mov_b32 exec_hi, 0xffff0000", "v_mov_b64 v[168:169], v[224:225]", "s_mov_b64 exec, -1"]))
put(55, "e1", ("vm", [f"buffer_atomic_add_f32 v168, v215, {WS}, s28 offen", f"buffer_atomic_add_f32 v169, v215, {WS}, s29 offen"], "cat"))
put(57, "e0a", ("salu", [f"s_lshl_b32 s27, {sCB}, 8", f"s_add_u32 s27, s27, {F_Q}"]))
put(57, "o1a", ("salu", [f"s_lshl_b32 s28, {sW}, 7", "s_add_u32 s28, s28, s27"]))
put(58, "e0a", ("salu", [f"s_cmp_lt_u32 {sW}, 2", f"s_cselect_b32 s28, s28, {WS_SIZE}"]))
put(59, "e1b", ("wait", "cat"))
put(59, "e1", ("vm", [f"buffer_atomic_add v199, v198, {WS}, s28 offen sc1"], None))
for j in range(4):
    put(TP + (j >> 1), ("eq", "oq")[j & 1], ("ds", [f"ds_read_b64_tr_b16 {vr(180+4*j,2)}, v177 offset:{j*32}", f"ds_read_b64_tr_b16 {vr(182+4*j,2)}, v178 offset:{j*32}"]))
put(20, "o0", ("vm", [f"buffer_store_dwordx4 {vr(180+4*j,4)}, v3, {WS}, s36 offen offset:{j*1024} sc1" for j in (0, 1)], None))
put(21, "o0", ("vm", [f"buffer_store_dwordx4 {vr(188,4)}, v3, {WS}, s24 offen offset:2048 sc1", f"buffer_store_dwordx4 {vr(192,4)}, v3, {WS}, s37 offen offset:3072 sc1"], "pat"))
put(TARR, "o1b", ("wait", "pat"))
put(TARR + 1, "eq", ("vm", [f"buffer_atomic_add v199, v198, {WS}, s39 offen sc1"], None))
put(41, "oq", ("vm", [f"buffer_load_dword v201, v174, {WS}, s27 offen sc1"], "pchk"))
put(47, "oq", ("vm", [f"buffer_load_dword v201, v196, {WS}, s38 offen sc1"], "gchk"))
for k in range(36):
    t, hf = TR + (k >> 1), k & 1
    if k < 32:
        T2, s_ = k >> 2, k & 3
        if s_ == 0: pass
        vitem(t, ("e1", "o0")[hf], ([f"s_add_u32 s75, s{70+s_}, {T2*128}", f"s_add_u32 m0, s77, {(k % 6)*2048}"],
                                    [f"buffer_load_dwordx4 v168, {R0}, s75 offen lds", f"buffer_load_dwordx4 v169, {R0}, s75 offen offset:1024 lds"], f"ring{k}", []))
    if k >= 4:
        T2, s_ = (k - 4) >> 2, (k - 4) & 3
        if hf == 0: put(t - 1, "o1b", ("wait", f"ring{k-3}"))
        for e_ in range(2): put(t, (("eq", "e0"), ("oq", "o1x"))[hf][e_], ("ds", [f"ds_read_b128 {ar(((2*T2+e_)*4+s_)*4,4)}, v{170+e_} offset:{((k-4) % 6)*2048}"]))
for grp, t0 in ((0, 44 + SH), (1, 56 + SH)):
    for n, x in enumerate(win_items(1, grp, lin_slot(slotA(4*grp)), f"z2g{grp}")): vitem(t0 + n, "o0", x)
if True:
    for n, x in enumerate(win_items(1, 2, lin_slot(slotA(8)), "z2g2")): vitem(60 + SH + (n >> 1), ("e1", "o0")[n & 1], x)
for n in range(8):
    pre = ([f"s_lshl_b32 s76, {sW}, 12"] if n == 0 else []) + (["s_and_b32 s74, s1, 0xffff", "s_add_u32 s74, s74, s69"] if n & 1 == 0 else [])
    post = ["s_add_u32 s1, s1, 16384", "s_add_u32 s76, s76, 16384"] if n & 1 else []
    vitem(48 + SH + n, "o0", (pre + ["s_mov_b32 m0, s76"], [f"buffer_load_dwordx4 v3, {WS}, s74 offen offset:{(2*(n & 1) + i)*1024} sc1 lds" for i in range(2)], "wo", post))
for n in range(2): put(58 + n, "eq", ("vm", [f"buffer_load_dwordx2 {vr(8+2*j,2)}, v172, {R1}, 0 offen offset:{j*32}" for j in (2*n, 2*n + 1)], None))
if "noz1t" not in XP:
    for n in range(4):
        put(48 + 3*n + (n > 1), "e1", ("vm", [f"buffer_load_dword v200, v175, {WS}, s23 offen sc1"], None))
        put(48 + 3*n + (n > 1), "o1a", ("salu", ["s_add_u32 s23, s23, 1792"]))
    put(46, "o1a", ("salu", [f"s_and_b32 s23, {sRB}, 3", "s_lshl_b32 s23, s23, 2"]))
    put(47, "e0a", ("salu", [f"s_add_u32 s23, s23, {sW}", f"s_lshl_b32 s3, {sCB}, 5"]))
    put(47, "e1a", ("salu", ["s_add_u32 s23, s23, s3", f"s_mul_i32 s23, s23, {SLOT}"]))
    put(47, "o1a", ("salu", [f"s_add_u32 s23, s23, {WS_WINF}"]))
if "noextra" in XP: raise SystemExit("noextra unsupported")
syncs = {3: "kvg1", 7: "kvg7", 27: None, 31: "kvg16", 35: None, 48 + SH: None, 60: "wo"}
last_m0 = [None]
def slot(t, k):
    for x in plan.pop((t, k), []):
        if x[0] == "salu":
            for p in x[1]:
                a(p)
                if " m0," in p: last_m0[0] = p
        elif x[0] == "vm":
            if len(x) > 3 and x[3] is not None and x[3] is not last_m0[0]:
                a(x[3]); last_m0[0] = x[3]
            for q_ in x[1]: vm.op(q_, x[2])
        elif x[0] == "ds":
            for q_ in x[1]: a(q_)
        else: vm.wait(x[1])
for u in range(128):
    t, e = u >> 1, u & 1
    S = Sb(u)
    ex = [f"v_exp_f32 v{S+i}, v{S+i}" for i in range(16)]
    pf = "eo"[e]
    if u + 1 < 128:
        t1, e1 = (u + 1) >> 1, (u + 1) & 1
        a(f"v_mfma_f32_32x32x16_bf16 {vr(Sb(u+1),16)}, {Kb(t1)}, {Q(e1)}, {vr(C(e1),16)}")
    a("s_waitcnt lgkmcnt(0)")
    if e == 1 and t + 2 in syncs:
        if syncs[t + 2]: vm.wait(syncs[t + 2])
        a("s_barrier")
    if "tst" in XP and e == 0 and t in (2, 4, 8, 11, 14, 17, 20, 23, 26, 28, 30, 34, 38, 42, 46, 50, 54, 58, 61): stamp(f"t{t}")
    if u == 86:
        vm.wait("pchk")
        a("v_cmp_gt_u32 vcc, 32, v201\ns_nop 1\ns_and_b32 s3, vcc_lo, 15\ns_cbranch_scc1 L_pwait\nL_pok:")
    if u == 100:
        vm.wait("gchk")
        a("v_cmp_gt_u32 vcc, 32, v201\ns_nop 1\ns_cmp_lg_u32 vcc_lo, 0\ns_cbranch_scc1 L_gwait\nL_gok:")
    slot(t, pf + "q")
    for x in ex[0:3]: a(x)
    Sp, tp, ep = Sb(u - 1), (u - 1) >> 1, (u - 1) & 1
    if u > 0: a(f"v_smfmac_f32_32x32x32_bf16 {vr(O(ep),16)}, {Vb(tp,0)}, {vr(Sp,8)}, v30")
    slot(t, pf + "0b")
    if e == 0:
        slot(t, "e0a"); a(f"ds_read_b128 {Vb(t,0)}, {vaddr(t,0)}"); slot(t, "e0")
    else:
        slot(t, "o0"); slot(t, "o0a"); slot(t, "o0x")
    for x in ex[3:7]: a(x)
    if u > 0: a(f"v_smfmac_f32_32x32x32_bf16 {vr(O(ep),16)}, {Vb(tp,1)}, {vr(Sp+8,8)}, v30")
    slot(t, pf + "1b")
    if e == 0:
        slot(t, "e1"); slot(t, "e1x"); slot(t, "e1a"); a(f"ds_read_b128 {Vb(t,1)}, {vaddr(t,1)}")
    else:
        slot(t, "o1a")
        if t + 2 < 64: a(f"ds_read_b128 {Kb(t+2)}, {kaddr(t+2)}")
        slot(t, "o1x")
    for x in ex[7:16]: a(x)
assert not plan, plan.keys()
for m in range(2): a(f"v_smfmac_f32_32x32x32_bf16 {vr(O(1),16)}, {Vb(63,m)}, {vr(Sb(127)+8*m,8)}, v30")
if "clk" in XP: a("s_memtime s[100:101]\ns_memrealtime s[78:79]\ns_waitcnt lgkmcnt(0)\ns_sub_u32 s100, s100, s96\ns_sub_u32 s101, s78, s98")
stamp("attn")
Lfb, Lok = a.label("fb"), a.label("ok")
def getl():
    for e in range(2): a(f"v_mov_b32 v{4+2*e}, v{O(e)+8}\nv_mov_b32 v{5+2*e}, v{O(e)+8}")
    for e in range(2): a(f"v_permlane32_swap_b32 v{4+2*e}, v{5+2*e}")
a(f"""
s_add_u32 s3, {sXCC}, 1
v_cmp_ne_u32 vcc, s3, v253
s_lshl_b32 s65, {sCB}, 2
v_add_u32 v254, s65, v198
v_lshlrev_b32 v255, 2, v0
v_mov_b32 v29, v174
s_and_b32 s3, vcc_lo, 0xff
s_cselect_b32 {sFAST}, 0, {0 if FORCE_SLOW else 1}
v_mov_b32 v32, {fbits(2.0**40 if not FORCE_FB else -1.0)}
""")
if "probe" in XP:
    a(f"s_cmp_eq_u32 {sFAST}, 0\ns_cbranch_scc0 L_pr\ns_mov_b32 s3, 12\nL_pr0:\ns_sleep 127\ns_sub_u32 s3, s3, 1\ns_cmp_lg_u32 s3, 0\ns_cbranch_scc1 L_pr0\nL_pr:")
getl()
a(f"v_add_f32 v5, v4, v6\nv_cmp_nlt_f32 vcc, v5, v32\ns_cbranch_vccnz {Lfb}\n{Lok}:")
for e in range(2): a(f"v_rcp_f32 v{4+2*e}, v{4+2*e}")
for e in range(2):
    for i in range(4): a(f"v_pk_mul_f32 {vr(O(e)+2*i,2)}, {vr(O(e)+2*i,2)}, {vr(4+2*e,2)} op_sel_hi:[1,0]")
for e in range(2):
    for i in range(4): a(f"v_cvt_pk_bf16_f32 v{64+4*e+i}, v{O(e)+2*i}, v{O(e)+2*i+1}")
both_data(lambda sc: [vm.op(f"buffer_store_dwordx4 {vr(64+4*e,4)}, v3, {WS}, s16 offen offset:{e*1024}{sc}") for e in range(2)])
B3 = lambda T, j: 144 + (T % 3)*16 + 4*j
rd3 = lambda T, j: a(f"ds_read_b128 {vr(B3(T, j),4)}, v3 offset:{L_WO + T*4096 + j*1024}")
for n in range(8): rd3(n >> 2, n & 3)
hop_signal(1)
stamp("opub")
SL = (70, 71, 72, 73, 76, 0, 1)
def block_offsets(base, size):
    for b in range(7): a(f"s_add_u32 s3, {sCB}, {1 + b}\ns_and_b32 s3, s3, 7\ns_mul_i32 s3, s3, {size}\ns_add_u32 s{SL[b]}, s3, {base}")
def frag_load(T, tag):
    vm.op(f"buffer_load_dwordx4 {vr(64+4*T,4)}, v3, {WS}, s{SL[T//2 - 1]} offen offset:{(T & 1)*1024} sc1", f"{tag}{T}")
AH = 8
def bef3(T):
    if T == 2:
        round_bf16(list(range(220, 252)))
        for i in range(16): a(f"v_add_f32 v{236+i}, 1.0, v{236+i}")
        round_bf16(list(range(236, 252)))
        for i in range(8): a(f"v_lshlrev_b32 v{32+2*i}, 16, v{8+i}\nv_and_b32 v{33+2*i}, 0xffff0000, v{8+i}")
        a(f"""
v_mov_b32 v31, v218
s_lshl_b32 s77, s55, 1
s_add_u32 s77, s77, {WS_X}
s_lshr_b32 s68, s55, 4
s_lshl_b32 s3, {sCB}, 7
s_add_u32 s69, s68, s3
s_add_u32 s67, s69, {WS_ST1}
v_lshlrev_b32 v6, 3, v1
""")
        block_offsets("s77", 2048)
        hop_wait(1)
        stamp("C")
        for t_ in range(2, 2 + AH): frag_load(t_, "o")
def aft3(T, j):
    if j == 0 and T >= 2 and T + AH < 16: frag_load(T + AH, "o")
    if j == 0 and T == 12: vm.op(f"buffer_load_dword v252, v29, {WS}, s27 offen sc1")
deeploop(16, 4, rd3,
         lambda T, j: a(f"v_mfma_f32_16x16x32_bf16 {vr(128+4*j,4)}, {vr(B3(T, j),4)}, {vr(64+4*T,4)}, {'0' if T == 0 else vr(128+4*j,4)}"),
         lambda T: f"o{T}" if T >= 2 else None, before=bef3, after=aft3)
stamp("p3mm")
for i in range(8): a(f"v_pk_fma_f32 {vr(32+2*i,2)}, {vr(128+2*i,2)}, {vr(220+2*i,2)}, {vr(32+2*i,2)}")
for i in range(8): a(f"v_cvt_pk_bf16_f32 v{8+i}, v{32+2*i}, v{33+2*i}")
for i in range(8): a(f"v_lshlrev_b32 v{32+2*i}, 16, v{8+i}\nv_and_b32 v{33+2*i}, 0xffff0000, v{8+i}")
for i in range(8): a(f"v_pk_mul_f32 {vr(236+2*i,2)}, {vr(236+2*i,2)}, {vr(32+2*i,2)}")
for i in range(8): a(f"v_cvt_pk_bf16_f32 v{64+i}, v{236+2*i}, v{237+2*i}")
both_data(lambda sc: [vm.op(f"buffer_store_dwordx4 {vr(64+4*p,4)}, v3, {WS}, s17 offen offset:{p*1024}{sc}") for p in range(2)])
a("v_pk_mul_f32 v[88:89], v[32:33], v[32:33]\nv_pk_add_f32 v[90:91], v[32:33], v[34:35]\nv_pk_mul_f32 v[94:95], v[34:35], v[34:35]\nv_pk_add_f32 v[96:97], v[36:37], v[38:39]")
for i in range(2, 8): a(f"v_pk_fma_f32 {vr(88 + 6*(i & 1),2)}, {vr(32+2*i,2)}, {vr(32+2*i,2)}, {vr(88 + 6*(i & 1),2)}")
for i in range(4, 8): a(f"v_pk_add_f32 {vr(90 + 6*(i & 1),2)}, {vr(90 + 6*(i & 1),2)}, {vr(32+2*i,2)}")
a("v_pk_add_f32 v[88:89], v[88:89], v[94:95]\nv_pk_add_f32 v[90:91], v[90:91], v[96:97]\nv_add_f32 v93, v88, v89\nv_add_f32 v92, v90, v91")
xgroup_sum2(92, 94, 93, 95)
a("s_mov_b64 exec, 0xffff")
both_data(lambda sc: vm.op(f"buffer_store_dwordx2 v[92:93], v6, {WS}, s67 offen{sc}"))
a(f"""
s_mov_b64 exec, -1
v_add_u32 v25, 0xe000, v3
v_add_u32 v26, 0xe000, v25
v_and_b32 v4, 7, v1
v_lshlrev_b32 v4, 7, v4
v_lshl_add_u32 v30, v2, 5, v4
v_lshlrev_b32 v4, 8, v2
v_lshl_add_u32 v27, v1, 3, v4
""")
stamp("p3ep")
hop_signal(2)
stamp("ypub")
WB = (32, 204)
def rdl(dst, addr):
    w_, off = divmod(addr, 0xe000)
    a(f"ds_read_b128 {vr(dst,4)}, v{(3, 25, 26)[w_]} offset:{off}")
a(f"""
s_barrier
s_and_b32 s3, {sW}, 1
s_mul_i32 s66, s3, 3584
s_lshl_b32 s3, s3, 10
s_add_u32 m0, s3, {L_SM}
s_mul_i32 s3, {sCB}, 448
s_add_u32 s66, s66, s3
s_add_u32 s66, s66, {WS_C12}
v_add_u32 v6, {7168 - 448}, v3
v_cmp_gt_u32 vcc, 28, v0
v_cndmask_b32 v6, v6, v3, vcc
v_cmp_gt_u32 vcc, 32, v252
s_nop 1
s_and_b32 s3, vcc_lo, 3
s_cbranch_scc1 L_qwait
L_qok:
""")
vm.op(f"buffer_load_dwordx4 v6, {WS}, s66 offen sc1 lds")
for x in win_items(1, 3, [f"s_mul_i32 s75, {sW}, {SLOT}", f"s_sub_u32 s75, s75, {SLOT}", f"s_cmp_eq_u32 {sW}, 0", f"s_cselect_b32 s75, {slotA(12)}, s75"], "z2g3"): emit_item(x)
for j in range(7): rdl(WB[0] + 4*j, slot_z2(0) + j*1024)
a(f"v_add_u32 v29, {L_SM}, v31\nv_lshlrev_b32 v24, 2, v1\nv_add_u32 v24, {L_SM + 1024}, v24\ns_add_u32 s66, s68, {WS_ST1}")
def d_wait():
    for b in SL: a(f"s_add_u32 s{b}, s{b}, 16384")
    hop_wait(2)
    stamp("D")
    vm.op(f"buffer_load_dwordx2 v[172:173], v27, {WS}, s66 offen sc1")
    vm.op(f"buffer_load_dwordx2 v[174:175], v27, {WS}, s66 offen offset:128 sc1", "st1")
    for t_ in range(2, 2 + AH): frag_load(t_, "y")
    a(f"v_lshlrev_b32 v4, 7, v0\nv_mov_b32 v27, {OOB}\nv_cmp_gt_u32 vcc, 14, v0\nv_cndmask_b32 v27, v27, v4, vcc")
    vm.wait("st1")
    a("v_pk_add_f32 v[172:173], v[172:173], v[174:175]")
    xgroup_sum2(172, 174, 173, 175)
    finish_stats([(172, 173, 62, 28, None)], 512)
    a(f"v_mul_f32 v62, v62, v28\nv_mov_b32 v60, {fbits(-2*math.log2(math.e)*math.sqrt(2/math.pi))}\nv_mov_b32 v61, v60")
    for i in range(4): a(f"ds_bpermute_b32 v{20+i}, v31, v28 offset:{4*i}\nds_bpermute_b32 v{16+i}, v31, v62 offset:{4*i}")
CP = [232, 234, 236, 238, 240, 242, 244]
z1items = {g_: win_items(0, g_, lin_slot(slotB(3) if g_ == 0 else slotA(4*(g_ - 1))), f"z1g{g_}") for g_ in range(4)}
def bef(T):
    if T == 2: d_wait()
    if T == 11: a("s_waitcnt lgkmcnt(0)\ns_barrier")
    if T >= 2: vm.wait(f"y{T}")
def aft(T, j):
    if j == 0 and T >= 2 and T + AH < 16: frag_load(T + AH, "y")
    if j == 3 and T in (8, 10, 12, 14): emit_item(z1items[0][(T - 8) // 2])
    if j == 3 and T in (9, 11, 13, 15):
        vm.op(f"buffer_load_dword v252, v27, {WS}, s26 offen sc1"); a("s_add_u32 s26, s26, 1792")
fragloop(16, 7, lambda T, j: rdl(WB[T & 1] + 4*j, slot_z2(T) + j*1024),
         lambda T, j: a(f"v_mfma_f32_16x16x32_bf16 {vr(128+4*j,4)}, {vr(64+4*T,4)}, {vr(WB[T & 1]+4*j,4)}, {'0' if T == 0 else vr(128+4*j,4)}"),
         before=bef, after=aft, preissued=True)
for j in range(7): a(f"ds_read2_b32 {vr(CP[j],2)}, v24 offset0:{j*16} offset1:{j*16 + 112}")
stamp("z2mm")
a(f"s_mov_b32 s64, {fbits(-2*math.log2(math.e)*math.sqrt(2/math.pi)*0.044715)}\ns_mov_b32 s65, s64\ns_mov_b32 s66, 1.0\ns_mov_b32 s67, 1.0\ns_waitcnt lgkmcnt(0)")
def gelu(acc, tmp, mid=None, mid2=None, mid0=None):
    P = range(14)
    for i in P: a(f"v_pk_mul_f32 {vr(tmp+2*i,2)}, {vr(acc+2*i,2)}, {vr(acc+2*i,2)}")
    for i in P: a(f"v_pk_fma_f32 {vr(tmp+2*i,2)}, {vr(tmp+2*i,2)}, s[64:65], v[60:61]")
    for i in P: a(f"v_pk_mul_f32 {vr(tmp+2*i,2)}, {vr(tmp+2*i,2)}, {vr(acc+2*i,2)}")
    if mid0: mid0()
    for i in range(28): a(f"v_exp_f32 v{tmp+i}, v{tmp+i}")
    if mid: mid()
    for i in P: a(f"v_pk_add_f32 {vr(tmp+2*i,2)}, {vr(tmp+2*i,2)}, s[66:67]")
    for i in range(28): a(f"v_rcp_f32 v{tmp+i}, v{tmp+i}")
    if mid2: mid2()
    for i in P: a(f"v_pk_mul_f32 {vr(acc+2*i,2)}, {vr(acc+2*i,2)}, {vr(tmp+2*i,2)}")
for i in range(14): a(f"v_pk_fma_f32 {vr(32+2*i,2)}, {vr(16+2*(i & 1),2)}, {vr(CP[i >> 1],2)}, {vr(CP[i >> 1],2)} op_sel:[0,0,1] op_sel_hi:[1,0,1]")
for i in range(14): a(f"v_pk_fma_f32 {vr(128+2*i,2)}, {vr(128+2*i,2)}, {vr(20+2*(i & 1),2)}, {vr(32+2*i,2)}")
zq = z1items[1] + z1items[2] + z1items[3]
body = capture(lambda: gelu(128, 32))
step = len(body) // 12
for i, x in enumerate(body):
    if i % step == 0 and zq: emit_item(zq.pop(0))
    a.items.append(x)
assert not zq
for j in range(7): rdl(WB[0] + 4*j, slot_z1(0) + j*1024) if False else None
for h in range(2):
    a(f"v_pk_add_f32 {vr(156+2*h,2)}, {vr(128+2*h,2)}, {vr(132+2*h,2)}\nv_pk_mul_f32 {vr(160+2*h,2)}, {vr(128+2*h,2)}, {vr(128+2*h,2)}")
for j in range(1, 7):
    for h in range(2):
        if j > 1: a(f"v_pk_add_f32 {vr(156+2*h,2)}, {vr(156+2*h,2)}, {vr(128+4*j+2*h,2)}")
        a(f"v_pk_fma_f32 {vr(160+2*h,2)}, {vr(128+4*j+2*h,2)}, {vr(128+4*j+2*h,2)}, {vr(160+2*h,2)}")
dppsum(range(156, 164), (8, 4, 2, 1))
a(f"s_and_b32 s71, {sEP}, 0xff\ns_movk_i32 s3, 0xff\nv_mov_b32 v4, s71")
for i in range(8): a(f"v_bfi_b32 v{156+i}, s3, v4, v{156+i}")
a(f"s_add_u32 s70, s69, {WS_ST2}\nv_lshlrev_b32 v6, 5, v2\ns_mov_b32 exec_lo, 0x00010001\ns_mov_b32 exec_hi, 0x00010001")
both(lambda sc: (vm.op(f"buffer_store_dwordx4 v[156:159], v6, {WS}, s70 offen{sc}"), vm.op(f"buffer_store_dwordx4 v[160:163], v6, {WS}, s70 offen offset:16{sc}", "sst")))
a("s_mov_b64 exec, -1")
vm.wait("z1g0")
a("s_barrier")
stamp("spub")
nwo = [0]
def wout_setup(n0):
    a(f"s_mul_i32 s3, {sCB}, {28*4096}\ns_lshl_b32 s76, {sW}, 10\ns_add_u32 s77, s3, s76\ns_add_u32 s77, s77, {WS_WOUTF}\ns_mul_i32 s75, {sCB}, {3*4096}")
def wout_one(tag):
    n = nwo[0]; nwo[0] += 1
    a("s_mov_b32 m0, s76\ns_add_u32 s74, s75, s77" if n < 24 else f"s_mov_b32 m0, s76\ns_add_u32 s74, s77, {n*4096}")
    vm.op(f"buffer_load_dwordx4 v3, {WS}, s74 offen sc1 lds", tag)
    a("s_add_u32 s76, s76, 4096")
    if n < 23: a(f"s_add_u32 s75, s75, 4096\ns_cmp_eq_u32 s75, {24*4096}\ns_cselect_b32 s75, 0, s75")
def z2_publish():
    a(f"s_add_u32 s70, s68, {WS_ST2}")
    chk = "\n".join(f"v_xor_b32 v{164+i}, s71, v{164+i}" for i in range(8))
    chk += "\nv_or3_b32 v4, v164, v165, v166\nv_or3_b32 v5, v167, v168, v169\nv_or3_b32 v4, v4, v170, v171\nv_or_b32 v4, v4, v5\nv_and_b32 v4, 0xff, v4\nv_cmp_ne_u32 vcc, 0, v4"
    poll(f"buffer_load_dwordx4 v[164:167], v30, {WS}, s70 offen sc1\nbuffer_load_dwordx4 v[168:171], v30, {WS}, s70 offen offset:16 sc1", chk, "-1")
    stamp("S")
    srd(R1, P_BSP, 4096)
    a("s_lshr_b32 s3, s55, 9\nv_lshlrev_b32 v4, 1, v1")
    vm.op(f"buffer_load_ushort v16, v4, {R1}, s3 offen", "bsp")
    a(f"""
s_lshl_b32 s70, {sCB}, 6
s_lshl_b32 s3, {sRB}, 1
s_add_u32 s70, s70, s3
s_lshr_b32 s3, {sW}, 1
s_add_u32 s70, s70, s3
s_mul_i32 s70, s70, 7168
s_and_b32 s3, {sW}, 1
s_lshl_b32 s3, s3, 9
s_add_u32 s70, s70, s3
s_add_u32 s70, s70, {WS_Z2}
s_add_u32 s71, s70, 4096
v_and_b32 v4, 1, v2
v_lshlrev_b32 v4, 10, v4
v_lshrrev_b32 v5, 1, v2
v_lshl_add_u32 v4, v5, 8, v4
v_lshl_add_u32 v6, v1, 4, v4
""")
    dppsum(range(164, 172), (4, 2, 1))
    finish_stats([(164+i, 168+i, 156+i, 160+i, None) for i in range(4)], 896)
    for h in range(2): a(f"v_pk_mul_f32 {vr(156+2*h,2)}, {vr(156+2*h,2)}, {vr(160+2*h,2)}")
    for i in range(14): a(f"v_pk_fma_f32 {vr(128+2*i,2)}, {vr(128+2*i,2)}, {vr(160+2*(i & 1),2)}, {vr(156+2*(i & 1),2)}")
    for i in range(14): a(f"v_cvt_pk_bf16_f32 v{232+i}, v{128+2*i}, v{129+2*i}")
    a("v_mov_b32 v246, v244\nv_mov_b32 v247, v245")
    for p in range(4): a(f"v_permlane16_swap_b32 v{232+4*p}, v{234+4*p}\nv_permlane16_swap_b32 v{233+4*p}, v{235+4*p}")
    vm.op(f"buffer_store_dwordx4 v[232:235], v6, {WS}, s70 offen sc1")
    vm.op(f"buffer_store_dwordx4 v[236:239], v6, {WS}, s70 offen offset:2048 sc1")
    vm.op(f"buffer_store_dwordx4 v[240:243], v6, {WS}, s71 offen sc1")
    a("s_mov_b32 exec_lo, 0x0000ffff\ns_mov_b32 exec_hi, 0x0000ffff")
    vm.op(f"buffer_store_dwordx4 v[244:247], v6, {WS}, s71 offen offset:2048 sc1", "zst")
    a(f"""
s_mov_b64 exec, -1
s_lshl_b32 s70, {sRB}, 3
s_add_u32 s70, s70, {sCB}
s_lshl_b32 s70, s70, 9
s_lshl_b32 s3, {sW}, 7
s_add_u32 s70, s70, s3
s_add_u32 s70, s70, {F_E}
""")
    stamp("zst")
def bef(T):
    if T == TS: z2_publish()
    if T == 3:
        if TS > 3: vm.wait("z1g3")
        a("s_barrier")
    if T == 4: a("s_waitcnt lgkmcnt(0)\ns_barrier"); wout_setup(0)
    if T == TE:
        vm.wait("zst"); vm.op(f"buffer_store_dword v17, v63, {WS}, s70 offen sc1")
        stamp("zpub")
    if T == TA:
        a(f"s_lshl_b32 s70, {sW}, 15\ns_lshl_b32 s3, {sCB}, 9\ns_add_u32 s70, s70, s3\ns_add_u32 s70, s70, {F_E}\nv_lshrrev_b32 v21, 2, v0\nv_lshlrev_b32 v21, 12, v21\nv_and_b32 v5, 3, v0\nv_lshl_add_u32 v21, v5, 7, v21")
        a("s_mov_b32 exec_hi, 0"); vm.op(f"buffer_load_dword v22, v21, {WS}, s70 offen sc1", "echk"); a("s_mov_b64 exec, -1")
def aft(T, j):
    if T >= max(4, TE) and j in (1, 4) and nwo[0] < 16: wout_one("wout0")
TA = int(([x[3:] for x in XP if x.startswith('ta:')] or ['14'])[0])
TS, TE, TZ = (int(x) for x in ([x[3:] for x in XP if x.startswith("ts:")] or ["2,5,0"])[0].split(","))
a(f"v_mov_b32 v17, 1\nv_mov_b32 v63, {OOB}\nv_cmp_eq_u32 vcc, 0, v0\nv_cndmask_b32 v63, v63, v0, vcc")
fragloop(16, 7, lambda T, j: rdl(WB[T & 1] + 4*j, slot_z1(T) + j*1024),
         lambda T, j: a(f"v_mfma_f32_16x16x32_bf16 {vr(176+4*j,4)}, {vr(WB[T & 1]+4*j,4)}, {vr(64+4*T,4)}, {'0' if T == 0 else vr(176+4*j,4)}"), before=bef, after=aft)
for j in range(7): a(f"ds_read_b128 {vr(204+4*j,4)}, v29 offset:{j*64}\nds_read_b128 {vr(128+4*j,4)}, v29 offset:{448 + j*64}")
a("s_barrier")
stamp("z1mm")
a(f"s_lshl_b32 s72, {sCB}, 2\ns_add_u32 s72, s72, {sW}\ns_mul_i32 s72, s72, {16*7168}\ns_add_u32 s72, s72, {WS_Z2}\ns_add_u32 s73, s72, 4096")
ZSEQ = [(T, j) for T in range(16) for j in range(4)] + [(T, j) for T in range(16) for j in range(4, 7)]
ZR = lambda n: (64, 92, 32)[(n % 21) // 7] + 4*(n % 7)
def ldz(n):
    T, j = ZSEQ[n]
    vm.op(f"buffer_load_dwordx4 {vr(ZR(n),4)}, v3, {WS}, s{72 + (j >> 2)} offen offset:{(j & 3)*1024}{'' if 'zpl' in XP else ' sc1'}", f"z{n}")
    if j in (3, 6): a(f"s_add_u32 s{72 + (j >> 2)}, s{72 + (j >> 2)}, 7168")
for s_ in range(1, 4):
    a(f"s_add_u32 s3, {sW}, {s_}\ns_and_b32 s3, s3, 3\ns_mul_i32 s3, s3, {12*1024}\ns_add_u32 s3, s3, {L_RED + (s_-1)*4096}\nv_add_u32 v{16+s_}, s3, v3")
a(f"s_mul_i32 s3, {sW}, {12*1024}\ns_add_u32 s3, s3, {L_RED}\nv_add_u32 v20, s3, v3\nv_lshlrev_b32 v16, 16, v16")
WPRE = int(([x[3:] for x in XP if x.startswith('wp:')] or ['22'])[0])
while nwo[0] < WPRE: wout_one("wout0")
vm.wait("echk")
a("v_cmp_gt_u32 vcc, 1, v22\ns_nop 1\ns_cmp_eq_u32 vcc_lo, 0\ns_cbranch_scc1 L_eok")
poll(f"buffer_load_dword v4, v21, {WS}, s70 offen sc1", "v_cmp_gt_u32 vcc, 1, v4", "0xffffffff")
a("L_eok:")
stamp("E")
for n in range(7): ldz(n)
a("s_waitcnt lgkmcnt(0)")
for i in range(14): a(f"v_pk_fma_f32 {vr(128+2*i,2)}, {vr(204+2*i,2)}, v[62:63], {vr(128+2*i,2)} op_sel_hi:[1,0,1]")
for i in range(14): a(f"v_pk_fma_f32 {vr(176+2*i,2)}, {vr(176+2*i,2)}, v[28:29], {vr(128+2*i,2)} op_sel_hi:[1,0,1]")
gelu(176, 204, mid=lambda: [ldz(n) for n in range(7, 14)])
for i in range(14): a(f"v_cvt_pk_bf16_f32 v{240+i}, v{176+2*i}, v{177+2*i}")
Z1P = list(range(240, 254))
stamp("gelu1")
ACC = lambda s_, j: 128 + (s_*7 + j)*4
def p5(n, s_):
    T, j = ZSEQ[n]
    d = vr(ACC(s_, j), 4)
    if "halfmm" in XP and s_ >= 2: return
    a(f"v_mfma_f32_16x16x32_bf16 {d}, {vr(ZR(n),4)}, {ar((T*4+s_)*4,4)}, {'0' if T == 0 else d}")
red_w = lambda s_, j: a(f"ds_write_b128 v{16+s_}, {vr(ACC(s_, j),4)} offset:{(j & 3)*1024}")
red_r = lambda s_, j: a(f"ds_read_b128 {vr(ACC(s_, j),4)}, v20 offset:{(s_-1)*4096 + (j & 3)*1024}")
UP = lambda j: (120, 122, 124, 126, 60, 62, 24)[j]
def u_frag(j):
    A0, A1, A2, A3 = (ACC(s_, j) for s_ in range(4))
    for h in (0, 2): a(f"v_pk_add_f32 {vr(A1+h,2)}, {vr(A1+h,2)}, {vr(A2+h,2)}\nv_pk_add_f32 {vr(A0+h,2)}, {vr(A0+h,2)}, {vr(A3+h,2)}")
    for h in (0, 1): a(f"v_lshlrev_b32 v{A2+2*h}, 16, v{Z1P[2*j+h]}\nv_and_b32 v{A2+2*h+1}, 0xffff0000, v{Z1P[2*j+h]}")
    for h in (0, 2): a(f"v_pk_add_f32 {vr(A1+h,2)}, {vr(A1+h,2)}, v[16:17] op_sel_hi:[1,0]")
    for h in (0, 2): a(f"v_pk_add_f32 {vr(A0+h,2)}, {vr(A0+h,2)}, {vr(A1+h,2)}")
    for h in (0, 2): a(f"v_pk_mul_f32 {vr(A0+h,2)}, {vr(A0+h,2)}, {vr(A2+h,2)}")
    for h in (0, 1): a(f"v_cvt_pk_bf16_f32 v{UP(j)+h}, v{A0+2*h}, v{A0+2*h+1}")
a(f"""
s_lshl_b32 s68, s55, 1
s_add_u32 s68, s68, {WS_X + (0x800000 if "usep" in XP else 0)}
s_mul_i32 s64, {sCB}, 3072
s_add_u32 s64, s64, s68
s_lshl_b32 s65, {sCB}, 9
s_add_u32 s65, s65, s68
s_add_u32 s65, s65, {24*1024}
v_lshrrev_b32 v6, 5, v0
v_lshlrev_b32 v6, 8, v6
v_lshl_add_u32 v6, v1, 4, v6
""")
side = capture(lambda: [u_frag(j) for j in range(4)])
ust = both if 'upl' in XP else (lambda f: f(' sc1'))
NDEF = 103
ZD = int(([x[3:] for x in XP if x.startswith('zd:')] or ['14'])[0]); nld = [14]
for n in range(112):
    m = n - 64
    if m in (14, 28) and "nobar" in XP: a("s_waitcnt lgkmcnt(0)")
    elif m == 14: a("s_waitcnt lgkmcnt(0)\ns_barrier")
    elif m == 28: a("s_waitcnt lgkmcnt(0)\ns_barrier")
    if n in (32, 64, 80, 96) and "p5s" in XP: stamp(f"n{n}")
    vm.wait(f"z{n}")
    for s_ in ((0, 1, 2, 3) if n < NDEF else (1, 2, 3)):
        p5(n, s_)
        if s_ == 0 and nld[0] < 112 and nld[0] <= n + ZD: ldz(nld[0]); nld[0] += 1
        if s_ == 3 and nld[0] < 112 and nld[0] <= n + ZD: ldz(nld[0]); nld[0] += 1
        if s_ == 2 and n % 4 == 1 and nwo[0] < 28: wout_one("wout0")
        if s_ == 1 and 1 <= m < 13: red_w(1 + (m - 1) // 4, (m - 1) % 4)
        if s_ == 1 and 14 <= m < 26: red_r(1 + (m - 14) % 3, (m - 14) // 3)
        if s_ >= 1 and m >= 28:
            for _ in range(2):
                if side: a.items.append(side.pop(0))
    if m == 40:
        assert not side
        ust(lambda sc: [vm.op(f"buffer_store_dwordx4 {vr(120+4*p,4)}, v3, {WS}, s64 offen offset:{p*1024}{sc}") for p in range(2)])
stamp("p5mm")
for k in range(9):
    red_w(1 + k // 3, 4 + k % 3)
    p5(NDEF + k, 0)
a("s_waitcnt lgkmcnt(0)\ns_barrier")
stamp("red")
for j in range(4, 7):
    for s_ in range(1, 4): red_r(s_, j)
for j in range(4, 7):
    a(f"s_waitcnt lgkmcnt({18 - 3*j})")
    u_frag(j)
    if j == 5: ust(lambda sc: vm.op(f"buffer_store_dwordx4 v[60:63], v3, {WS}, s64 offen offset:2048{sc}"))
a("v_mov_b32 v26, v24\nv_mov_b32 v27, v25\nv_permlane16_swap_b32 v24, v26\nv_permlane16_swap_b32 v25, v27\ns_mov_b32 exec_lo, 0x0000ffff\ns_mov_b32 exec_hi, 0x0000ffff")
ust(lambda sc: vm.op(f"buffer_store_dwordx4 v[24:27], v6, {WS}, s65 offen{sc}"))
a("s_mov_b64 exec, -1")
hop_signal(3)
a("v_add_u32 v25, 0xe000, v3\nv_add_u32 v26, 0xe000, v25")
stamp("upub")
a("s_barrier")
B6 = lambda n, j: (160, 176, 232)[n % 3] + 4*j
rd6 = lambda n, j: rdl(B6(n, j), L_WOUT + n*4096 + j*1024)
for n in range(8): rd6(n >> 2, n & 3)
AU = int(([x[3:] for x in XP if x.startswith('au:')] or ['8'])[0])
UR = lambda n: (120, 124, 60)[n] if n < 3 else 32 + 4*n
def uload(n):
    so, off = (f"s{SL[n//3 - 1]}", n % 3) if n < 24 else ("s64", n - 24)
    vm.op(f"buffer_load_dwordx4 {vr(UR(n),4)}, v3, {WS}, {so} offen offset:{off*1024} sc1", f"u{n}")
def bef(n):
    if n == 3:
        for i in range(8): a(f"v_lshlrev_b32 v{192+2*i}, 16, v{8+i}\nv_and_b32 v{193+2*i}, 0xffff0000, v{8+i}")
        srd(R1, P_OUT, 2048 * 1024, "s55")
        a(f"v_lshlrev_b32 v7, 10, v1\nv_and_b32 v5, 1, v2\nv_lshl_add_u32 v7, v5, 5, v7\nv_lshrrev_b32 v5, 1, v2\nv_lshl_add_u32 v7, v5, 4, v7\ns_lshl_b32 s75, {sCB}, 7")
        block_offsets("s68", 3072)
        a(f"s_add_u32 s64, s68, {24*1024}\ns_lshl_b32 s74, {sCB}, 8\ns_add_u32 s74, s74, {WS_G2 + 3*2048}")
        hop_wait(3)
        stamp("F")
        for n_ in range(3, 3 + AU): uload(n_)
def aft6(n, j):
    if j == 0 and n >= 3 and n + AU < 28: uload(n + AU)
    if j == 0 and 28 <= n + AU < 32: vm.op(f"buffer_load_dwordx4 {vr(216+4*(n+AU-28),4)}, v31, {WS}, s74 offen offset:{(n+AU-28)*64} sc1", "gb")
deeploop(28, 4, rd6,
         lambda n, j: a(f"v_mfma_f32_16x16x32_bf16 {vr(144+4*j,4)}, {vr(B6(n, j),4)}, {vr(UR(n),4)}, {'0' if n == 0 else vr(144+4*j,4)}"),
         lambda n: f"u{n}" if n >= 3 else None, before=bef, after=aft6)
stamp("p6mm")
vm.wait("gb")
for i in range(8): a(f"v_pk_fma_f32 {vr(192+2*i,2)}, {vr(144+2*i,2)}, {vr(216+2*i,2)}, {vr(192+2*i,2)}")
for i in range(8): a(f"v_cvt_pk_bf16_f32 v{48+i}, v{192+2*i}, v{193+2*i}")
for p in range(2): a(f"v_permlane16_swap_b32 v{48+4*p}, v{50+4*p}\nv_permlane16_swap_b32 v{49+4*p}, v{51+4*p}")
if "dirty" in XP:
    a(f"s_lshl_b32 s3, s55, 1\ns_lshl_b32 s64, {sCB}, 12\ns_add_u32 s3, s3, s64\ns_add_u32 s3, s3, {WS_X}")
    for p in range(4): a(f"buffer_store_dwordx4 v[48:51], v3, {WS}, s3 offen offset:{p*1024}")
for p in range(2): a(f"buffer_store_dwordx4 {vr(48+4*p,4)}, v7, {R1}, s75 offen offset:{p*64} {'sc1' if 'osc1' in XP else '' if 'opl' in XP else 'nt'}")
if AMP:
    a("s_waitcnt vmcnt(0)")
    stamp("end")
    assert AMP[0] != "start"
    a(f"s_sub_u32 s91, s93, s90\ns_mul_i32 s91, s91, {1 if 'x1' in XP else 3}\ns_min_u32 s91, s91, 20000\ns_memrealtime s[78:79]\ns_waitcnt lgkmcnt(0)\ns_mov_b32 s92, s78\nL_amp:\ns_sleep 1\ns_memrealtime s[78:79]\ns_waitcnt lgkmcnt(0)\ns_sub_u32 s78, s78, s92\ns_cmp_lt_u32 s78, s91\ns_cbranch_scc1 L_amp")
elif "dbg" in XP:
    a("s_waitcnt vmcnt(0)")
    stamp("end")
    sel = ["xin", "barP", "barB", "kv0", "attn", "C", "D", "z2mm", "zpub", "E", "p5mm", "upub", "F", "p6mm", "end"]
    a("s_not_b32 s3, s80\nv_mov_b32 v32, s3")
    for n, nm in enumerate(sel):
        i = stamp_names.index(nm)
        a(f"s_bfe_u32 s3, s{81 + (i-1)//2}, {hex((16 << 16) | (16*((i-1) & 1)))}\ns_add_u32 s3, s3, s80\nv_writelane_b32 v32, s3, {n+1}")
    a("s_load_dwordx2 s[64:65], s[96:97], 104\ns_waitcnt lgkmcnt(0)")
    srd(R1, 64, 256)
    a(f"v_lshlrev_b32 v4, 2, v0\ns_mov_b64 exec, 0xffff\nbuffer_atomic_umax v32, v4, {R1}, 0 offen sc1\ns_waitcnt vmcnt(0)")
elif STAMPS:
    a("s_waitcnt vmcnt(0)")
    stamp("end")
    for i in range(22): a(f"v_writelane_b32 v32, s{80+i}, {i}")
    a(f"s_lshl_b32 s3, s2, 2\ns_add_u32 s3, s3, {sW}\ns_lshl_b32 s3, s3, 7\ns_add_u32 s3, s3, {WS_STAMP}\nv_lshlrev_b32 v4, 2, v0\ns_mov_b64 exec, 0xffffffff\nbuffer_store_dword v32, v4, {WS}, s3 offen")
a("s_endpgm")
a("L_qwait:")
poll(f"buffer_load_dword v252, v29, {WS}, s27 offen sc1", "v_cmp_gt_u32 vcc, 32, v252", "3", 4)
a("s_branch L_qok\nL_pwait:")
poll(f"buffer_load_dword v201, v174, {WS}, s27 offen sc1", "v_cmp_gt_u32 vcc, 32, v201", "15", 8)
a("s_branch L_pok\nL_gwait:")
poll(f"buffer_load_dword v201, v196, {WS}, s38 offen sc1", "v_cmp_gt_u32 vcc, 32, v201", "0xffffffff", 8)
a("s_branch L_gok")
a(f"{Lfb}:")
a(f"""
v_lshrrev_b32 v4, 5, v0
v_mul_u32_u24 v4, 272, v4
v_and_b32 v5, 31, v0
v_lshl_add_u32 v27, v5, 4, v4
v_mov_b32 v4, 0xff800000
v_mov_b32 v5, 0xff800000
s_mov_b32 s64, {WS_KV}
L_fb1:
buffer_load_dwordx4 {Kb(0)}, v3, {WS}, s64 offen offset:1088 sc1
s_waitcnt vmcnt(0)
""")
for e in range(2): a(f"v_mfma_f32_32x32x16_bf16 {vr(32+16*e,16)}, {Kb(0)}, {Q(e)}, 0")
rowmax(False)
a(f"s_add_u32 s64, s64, {REC}\ns_cmp_lt_u32 s64, {WS_KV + 64*REC}\ns_cbranch_scc1 L_fb1")
negbcast()
for i in range(32): a(f"v_mov_b32 v{80+i}, 0")
a(f"""
s_mov_b32 s64, {WS_KV}
L_fb2:
buffer_load_dwordx4 {Kb(0)}, v3, {WS}, s64 offen offset:1088 sc1
buffer_load_dwordx4 {Vb(0,0)}, v27, {WS}, s64 offen sc1
buffer_load_dwordx4 {Vb(0,1)}, v27, {WS}, s64 offen offset:544 sc1
s_waitcnt vmcnt(0)
""")
for e in range(2): a(f"v_mfma_f32_32x32x16_bf16 {vr(32+16*e,16)}, {Kb(0)}, {Q(e)}, {vr(C(e),16)}")
for i in range(32): a(f"v_exp_f32 v{32+i}, v{32+i}")
for e in range(2):
    for m in range(2): a(f"v_smfmac_f32_32x32x32_bf16 {vr(O(e),16)}, {Vb(0,m)}, {vr(32+16*e+8*m,8)}, v30")
a(f"s_add_u32 s64, s64, {REC}\ns_cmp_lt_u32 s64, {WS_KV + 64*REC}\ns_cbranch_scc1 L_fb2")
getl()
a(f"s_branch {Lok}\nL_end:\ns_endpgm")

body = a.finish()
head = open("cdna_kernels/" + NAME + ".s.ref").read().split("; Override launch")[0]
src = head + f"""; One persistent launch: 256 workgroups (32 row blocks of 64 rows x 8 column blocks), 4 waves of 16 rows each; written by gen/gen.py.
; Phases: mod (sa, ca) -> LN1, K/V, q -> attention (weights are re-laid out and staged underneath) -> wo + residual ->
; w_in + gelu, LN of z2 -> w_sp GEMM * z1 -> w_out + residual. Workgroups hand data over through d_ws with flags they clear themselves;
; the word at WS_EPOCH only tags this launch's first hand-offs. Every spin is bounded.
; @launch grid=(256,1,1) block=(256,1,1) lds={LDS_BYTES}
.amdgcn_target "amdgcn-amd-amdhsa--gfx950"
.text
.globl {NAME}_kernel
.p2align 8
.type {NAME}_kernel,@function
{NAME}_kernel:
{body}.section .rodata,"a"
.p2align 6
.amdhsa_kernel {NAME}_kernel
  .amdhsa_next_free_vgpr 512
  .amdhsa_next_free_sgpr 102
  .amdhsa_accum_offset 256
  .amdhsa_group_segment_fixed_size 0
  .amdhsa_kernarg_size 120
  .amdhsa_user_sgpr_count 2
  .amdhsa_user_sgpr_kernarg_segment_ptr 1
  .amdhsa_system_sgpr_workgroup_id_x 1
.end_amdhsa_kernel
"""
out = [x for x in sys.argv[1:] if not x.startswith("--")]
open(out[0] if out else "cdna_kernels/" + NAME + ".s", "w").write(src)
if STAMPS:
    open("stamps.txt", "w").write("\n".join(stamp_names)); open(out[0] + ".st", "w").write("\n".join(stamp_names))
print("instructions:", sum(1 for k, _ in a.items if k == "ins"), "hazard nops:", a.nops, file=sys.stderr)
```

```python
import sys, struct, math
from asmlib import Asm

NAME = "adaLN_cond__grouped_kv_mqa__mixer_gmlp__prompt"
STAMPS = "--stamps" in sys.argv or "--cyc" in sys.argv
CYC = "--cyc" in sys.argv
FORCE_SLOW = "--slow" in sys.argv
PADZERO = "--nopadzero" not in sys.argv
XP = [x[5:] for x in sys.argv if x.startswith("--xp=")]
FORCE_FB = "--fallback" in sys.argv

def fbits(x): return "0x%08x" % struct.unpack("<I", struct.pack("<f", x))[0]

F_B, F_HOP, F_P, WS_G2, F_E, WS_C12, F_Q = 0, 32768, 49152, 53248, 61440, 192512, 207872
WS_MOD, WS_MODT, WS_EPOCH, WS_KV = 0x38000, 0x3B000, 0x3E000, 0x40000
WS_ST1, WS_ST2 = 0x70000, 0x90000
WS_X, WS_Z2, WS_STAMP, WS_SIZE = 0x100000, 0x500000, 0xD00000, 0x1200000
WS_WOF, WS_WOUTF, WS_DUMMY, WS_WINF = 0xD80000, 0xE00000, 0xF00000, 0x1000000
REC = 2112
L_G2 = 16384
L_KV = 28672
L_WQ, L_WKV, L_G0, L_SILU, L_PAR = 28672, 94208, 110592, 126976, 0
L_RING, L_SM = 0, 158720
L_WO = 0
SLOT = 7168
def slotA(i): return 65536 + SLOT * i
def slotB(i): return SLOT * i
def slot_z2(T): return slotA(T) if T < 13 else slotB(T - 13)
def slot_z1(T): return slotB(3 + T) if T < 4 else slotA(T - 4)
L_WOUT, L_RED = 0, 114688
LDS_BYTES = 163840
R0, WS, R1, R2, R3 = "s[4:7]", "s[8:11]", "s[12:15]", "s[56:59]", "s[60:63]"
P_X, P_WQ, P_WK, P_WV, P_WO, P_WIN, P_WSP, P_BSP, P_WOUT, P_C, P_WMOD, P_OUT, P_DBG, P_WS = 16, 18, 20, 22, 24, 28, 30, 32, 34, 36, 38, 40, 42, 44
sRB, sCB, sW, sXCC, sFAST, sIDX, sXCD, sKVW, sGRP = "s46", "s47", "s48", "s49", "s50", "s51", "s52", "s53", "s54"
sEP, sTAG = "s42", "s43"
SPIN = 1 << 17
OOB = 0x7fff0000

a = Asm()
def vr(b, n): return f"v[{b}:{b+n-1}]"
def ar(b, n): return f"a[{b}:{b+n-1}]"

class VM:
    def __init__(s): s.n = 0; s.tags = {}
    def op(s, text, tag=None):
        a(text); s.n += 1
        if tag: s.tags[tag] = s.n
    def tag(s, t): s.tags[t] = s.n
    def wait(s, t):
        k = s.n - s.tags[t]
        if k < 63: a(f"s_waitcnt vmcnt({k})")
    def drain(s): a("s_waitcnt vmcnt(0)")
vm = VM()

def srd(q, ptr, size, off=None):
    b = int(q[2:q.index(":")])
    if off is None:
        a(f"s_mov_b32 s{b}, s{ptr}\ns_mov_b32 s{b+1}, s{ptr+1}\ns_mov_b32 s{b+2}, {size}")
    else:
        a(f"s_add_u32 s{b}, s{ptr}, {off}\ns_addc_u32 s{b+1}, s{ptr+1}, 0\ns_sub_u32 s{b+2}, {size}, {off}")
    a(f"s_mov_b32 s{b+3}, 0x20000")

nstamp = [0]
stamp_names = []
AMP = [x[4:] for x in XP if x.startswith("amp:")]
def stamp(name):
    if AMP and name == AMP[0]: a(f"s_memrealtime s[78:79]\ns_waitcnt lgkmcnt(0)\ns_mov_b32 s93, s78")
    if not STAMPS: return
    if "dbg" in XP and name not in ("start", "xin", "barP", "barB", "kv0", "attn", "C", "D", "z2mm", "zpub", "E", "p5mm", "upub", "F", "p6mm", "end"): return
    if "tst" in XP and name in ("xin", "ln1", "h", "kv", "q", "p3mm", "p3ep", "y_iss", "st1", "init", "u_iss", "S", "opub", "ypub", "spub"): return
    if name in ("karg", "iss0"): return
    i = nstamp[0]; nstamp[0] += 1; stamp_names.append(name)
    if i == 0:
        if CYC: a("s_lshr_b32 s80, s80, 2")
        return
    if "clk" in XP and i >= 30: return
    assert i < 43
    a("s_memrealtime s[78:79]\ns_waitcnt lgkmcnt(0)" if not CYC else "s_memtime s[78:79]\ns_waitcnt lgkmcnt(0)\ns_lshr_b32 s78, s78, 2")
    if i == 0: a("s_mov_b32 s80, s78" if "ms" not in XP else "s_nop 0")
    elif i & 1: a(f"s_sub_u32 s{81 + i//2}, s78, s80")
    else: a(f"s_sub_u32 s78, s78, s80\ns_pack_ll_b32_b16 s{80 + i//2}, s{80 + i//2}, s78")

def poll(load, cond, mask, backoff=0, pre=None):
    L, X = a.label("poll"), a.label("pollx")
    if pre: a(pre)
    a(f"s_mov_b64 exec, {mask}\ns_mov_b32 s3, 0\n{L}:\ns_add_u32 s3, s3, 1\ns_cmp_gt_u32 s3, {SPIN}\ns_cbranch_scc1 {X}")
    if backoff: a(f"s_sleep {backoff}")
    a(load); a("s_waitcnt vmcnt(0)"); a(cond)
    a(f"s_cbranch_vccnz {L}\n{X}:\ns_mov_b64 exec, -1")

PLAIN = "plain" in XP
def both_data(fn): both(fn) if PLAIN else fn(" sc1")
def both(fn):
    S, E = a.label("slow"), a.label("pub")
    n0 = vm.n
    a(f"s_cmp_eq_u32 {sFAST}, 0\ns_cbranch_scc1 {S}")
    fn(""); n1 = vm.n
    a(f"s_branch {E}\n{S}:"); vm.n = n0
    fn(" sc1"); assert vm.n == n1
    a(f"{E}:")

def hop_signal(phase, tag=None):
    a(f"v_mov_b32 v4, {phase}")
    if tag: vm.wait(tag)
    else: a("s_waitcnt vmcnt(0)")
    both(lambda sc: vm.op(f"buffer_store_dword v4, v254, {WS}, {sGRP} offen{sc}"))

def hop_wait(phase):
    poll(f"buffer_load_dword v4, v255, {WS}, {sGRP} offen sc1", f"v_cmp_gt_u32 vcc, {phase}, v4", "0xff")

def xgroup_sum(v, t):
    a(f"v_mov_b32 v{t}, v{v}\nv_permlane32_swap_b32 v{v}, v{t}\nv_add_f32 v{v}, v{v}, v{t}")
    a(f"v_mov_b32 v{t}, v{v}\nv_permlane16_swap_b32 v{v}, v{t}\nv_add_f32 v{v}, v{v}, v{t}")

def xgroup_sum2(v, t, v2, t2):
    for op in ("v_permlane32_swap_b32", "v_permlane16_swap_b32"):
        a(f"v_mov_b32 v{t}, v{v}\nv_mov_b32 v{t2}, v{v2}\n{op} v{v}, v{t}\n{op} v{v2}, v{t2}\nv_add_f32 v{v}, v{v}, v{t}\nv_add_f32 v{v2}, v{v2}, v{t2}")

def capture(fn):
    n = len(a.items); fn(); out = a.items[n:]; del a.items[n:]
    return out

def pipeline(nsteps, reads, compute, nreads, pre=1):
    for T in range(min(pre, nsteps)): reads(T)
    for T in range(nsteps):
        if T + pre < nsteps: reads(T + pre)
        left = min(pre, nsteps - 1 - T) * nreads
        a(f"s_waitcnt lgkmcnt({min(left, 15)})")
        compute(T)

def fragloop(nsteps, nf, read, mfma, before=None, after=None, nper=1, preissued=False):
    if not preissued:
        for j in range(nf): read(0, j)
    for T in range(nsteps):
        if before: before(T)
        for j in range(nf):
            left = (nf - 1 if T + 1 < nsteps else nf - 1 - j) * nper
            a(f"s_waitcnt lgkmcnt({min(left, 15)})")
            mfma(T, j)
            if T + 1 < nsteps: read(T + 1, j)
            if after: after(T, j)

def deeploop(nsteps, nf, read, mfma, vmtag, before=None, after=None, nper=1):
    for T in range(nsteps):
        if before: before(T)
        w = f"lgkmcnt({nf*nper if T + 1 < nsteps else 0})"
        if vmtag(T) and vm.n - vm.tags[vmtag(T)] < 63: w = f"vmcnt({vm.n - vm.tags[vmtag(T)]}) " + w
        a("s_waitcnt " + w)
        for j in range(nf):
            mfma(T, j)
            if after: after(T, j)
            if T + 2 < nsteps: read(T + 2, j)

def dppsum(regs, steps):
    for s in steps:
        for r in regs: a(f"v_add_f32_dpp v{r}, v{r}, v{r} row_ror:{s} row_mask:0xf bank_mask:0xf")
def finish_stats(rows, n):
    for s1, s2, mu, r, sd in rows: a(f"v_mul_f32 v{mu}, {fbits(-1.0/n)}, v{s1}\nv_mul_f32 v{s2}, {fbits(1.0/n)}, v{s2}")
    for s1, s2, mu, r, sd in rows: a(f"v_fma_f32 v{s2}, -v{mu}, v{mu}, v{s2}")
    for s1, s2, mu, r, sd in rows: a(f"v_max_f32 v{s2}, 0, v{s2}")
    for s1, s2, mu, r, sd in rows: a(f"v_add_f32 v{s2}, {fbits(1e-5)}, v{s2}")
    for s1, s2, mu, r, sd in rows: a(f"v_rsq_f32 v{r}, v{s2}")
    for s1, s2, mu, r, sd in rows:
        if sd is not None: a(f"v_mul_f32 v{sd}, v{s2}, v{r}")

a(f"""
{("s_memrealtime s[80:81]" if not CYC else "s_memtime s[80:81]") if STAMPS else ""}{"s_memrealtime s[90:91]" if AMP else ""}
s_cmp_ge_u32 s2, 256
s_cbranch_scc1 L_end
{"s_lshr_b32 s3, s2, 3" + chr(10) + "s_and_b32 s3, s3, 7" + chr(10) + "s_xor_b32 s2, s2, s3" if "perm" in XP else ""}
{"s_mul_i32 s2, s2, 37" + chr(10) + "s_and_b32 s2, s2, 255" if "perm2" in XP else ""}
s_getpc_b64 s[64:65]
L_pc:
s_load_dwordx16 s[16:31], s[0:1], 0
v_and_b32 v4, 0xfc, v0
v_lshlrev_b32 v4, 5, v4
v_mov_b32 v7, s65
v_add_co_u32 v6, vcc, s64, v4
s_load_dwordx8 s[32:39], s[0:1], 64
s_load_dwordx4 s[40:43], s[0:1], 96
v_addc_co_u32 v7, vcc, 0, v7, vcc
global_load_dword v26, v[6:7], off
s_load_dwordx2 s[44:45], s[0:1], 112
v_lshrrev_b32 v4, 6, v0
v_and_b32 v0, 63, v0
v_readfirstlane_b32 {sW}, v4
s_and_b32 {sXCD}, s2, 7
s_lshr_b32 {sIDX}, s2, 3
s_mov_b32 s75, 0x20000
v_lshlrev_b32 v29, 7, v0
s_cmp_eq_u32 {sW}, 0
s_cbranch_scc0 L_t1
""")
a(f"""
v_bfe_u32 v4, v0, 1, 4
v_mul_u32_u24 v4, 6144, v4
v_and_b32 v5, 0x80, v29
v_add_u32 v4, v4, v5
s_mul_i32 s70, {sIDX}, {16*6144}
s_lshl_b32 s3, {sXCD}, 8
s_add_u32 s70, s70, s3
s_mov_b32 s74, {512*6144}
s_waitcnt lgkmcnt(0)
s_mov_b64 s[72:73], s[{P_WMOD}:{P_WMOD+1}]
s_mov_b32 exec_hi, 0
buffer_load_dword v24, v4, s[72:75], s70 offen
s_mov_b64 exec, -1
s_branch L_t9
L_t1:
s_cmp_eq_u32 {sW}, 1
s_cbranch_scc0 L_t2
s_lshl_b32 s70, {sXCD}, 18
s_lshl_b32 s3, {sIDX}, 13
s_add_u32 s70, s70, s3
s_mov_b32 s74, {2048*1024}
s_waitcnt lgkmcnt(0)
s_mov_b64 s[72:73], s[{P_X}:{P_X+1}]
buffer_load_dword v24, v29, s[72:75], s70 offen
s_branch L_t9
L_t2:
s_cmp_eq_u32 {sW}, 2
s_cbranch_scc0 L_t3
s_lshr_b32 s70, {sIDX}, 1
s_lshl_b32 s70, s70, 10
v_and_b32 v4, 0x380, v29
s_movk_i32 s74, 16384
s_bitcmp1_b32 {sIDX}, 0
s_waitcnt lgkmcnt(0)
s_cselect_b64 s[72:73], s[{P_WV}:{P_WV+1}], s[{P_WK}:{P_WK+1}]
buffer_load_dword v24, v4, s[72:75], s70 offen
s_branch L_t9
L_t3:
s_lshl_b32 s3, {sIDX}, 11
s_add_u32 s3, s3, 8192
v_and_b32 v6, 0x780, v29
v_add_u32 v6, s3, v6
v_min_u32 v6, L_end-L_pc-4, v6
v_mov_b32 v7, s65
v_add_co_u32 v6, vcc, s64, v6
v_addc_co_u32 v7, vcc, 0, v7, vcc
s_mov_b64 exec, 0xffff
global_load_dword v24, v[6:7], off
s_mov_b64 exec, -1
L_t9:
v_and_b32 v1, 15, v0
v_lshrrev_b32 v2, 4, v0
v_lshlrev_b32 v3, 4, v0
s_and_b32 {sCB}, {sIDX}, 7
s_lshr_b32 s3, {sIDX}, 3
s_lshl_b32 {sRB}, {sXCD}, 2
s_add_u32 {sRB}, {sRB}, s3
s_lshr_b32 {sKVW}, {sCB}, 1
s_getreg_b32 {sXCC}, hwreg(HW_REG_XCC_ID, 0, 4)
s_and_b32 {sXCC}, {sXCC}, 7
s_lshl_b32 {sGRP}, {sRB}, 2
s_add_u32 {sGRP}, {sGRP}, {sW}
s_lshl_b32 s55, {sGRP}, 14
s_lshl_b32 {sGRP}, {sGRP}, 7
s_add_u32 {sGRP}, {sGRP}, {F_HOP}
""")
def img32_regs(row, trb):
    a(f"""
v_lshrrev_b32 v4, 1, v0
v_and_b32 v5, 19, v4
v_bfe_u32 v6, v4, 2, 1
v_lshl_or_b32 v5, v6, 3, v5
v_bfe_u32 v6, v4, 3, 1
v_lshl_or_b32 v{row}, v6, 2, v5
v_lshrrev_b32 v4, 2, v1
v_and_b32 v5, 1, v2
v_lshl_add_u32 v4, v5, 2, v4
v_lshrrev_b32 v5, 1, v2
v_lshl_add_u32 v4, v5, 4, v4
v_lshlrev_b32 v4, 5, v4
v_and_b32 v5, 3, v1
v_lshl_add_u32 v{trb}, v5, 3, v4
""")
img32_regs(16, 17)
a(f"""
v_and_b32 v18, 1, v0
v_lshlrev_b32 v18, 4, v18
{"s_mov_b64 s[96:97], s[0:1]" if "dbg" in XP else ""}
s_sub_u32 s0, {sW}, {sKVW}
s_and_b32 s0, s0, 3
v_mov_b64 v[36:37], 0
v_mov_b64 v[38:39], 0
s_and_b32 s69, s2, 15
s_lshl_b32 s69, s69, 6
v_lshlrev_b32 v25, 4, v2
v_lshrrev_b32 v4, 3, v0
v_and_b32 v5, 7, v0
v_xor_b32 v5, v5, v2
v_lshlrev_b32 v5, 4, v5
v_lshl_add_u32 v22, v4, 10, v5
v_xor_b32 v23, 64, v22
v_add_u32 v23, {8192 - 1024}, v23
s_lshl_b32 s67, {sW}, 14
s_add_u32 s67, s67, {L_WQ}
s_movk_i32 s3, 6144
v_mad_u32_u24 v28, v16, s3, v18
s_lshl_b32 s68, {sXCD}, 3
s_add_u32 s68, s68, {sIDX}
s_lshl_b32 s66, s68, 5
s_mov_b32 s6, 1024
s_mov_b32 s7, 0x20000
s_mov_b32 s10, {hex(WS_SIZE)}
s_mov_b32 s11, 0x20000
s_sub_u32 s14, {2048*1024}, s55
s_mov_b32 s15, 0x20000
s_mov_b32 s58, {512*6144}
s_mov_b32 s59, 0x20000
s_mov_b32 s62, 16384
s_mov_b32 s63, 0x20000
s_waitcnt lgkmcnt(0)
s_mov_b64 s[56:57], s[{P_WMOD}:{P_WMOD+1}]
s_mov_b64 s[4:5], s[{P_C}:{P_C+1}]
s_mov_b64 s[8:9], s[{P_WS}:{P_WS+1}]
s_load_dword {sEP}, s[{P_WS}:{P_WS+1}], {WS_EPOCH}
s_add_u32 s12, s{P_X}, s55
s_addc_u32 s13, s{P_X+1}, 0
s_bitcmp1_b32 {sCB}, 0
s_cselect_b64 s[60:61], s[{P_WV}:{P_WV+1}], s[{P_WK}:{P_WK+1}]
""")
stamp("start")
if "ms" in XP: stamp("karg")


def round_bf16(regs):
    for i in range(0, len(regs), 2):
        x, y = regs[i], regs[i+1]
        a(f"v_cvt_pk_bf16_f32 v{y}, v{x}, v{y}\nv_lshlrev_b32 v{x}, 16, v{y}\nv_and_b32 v{y}, 0xffff0000, v{y}")

def silu8(src, dst):
    for i in range(4): a(f"v_lshlrev_b32 v{40+2*i}, 16, v{src+i}\nv_and_b32 v{41+2*i}, 0xffff0000, v{src+i}")
    for i in range(8): a(f"v_mul_f32 v{48+i}, {fbits(-math.log2(math.e))}, v{40+i}")
    for i in range(8): a(f"v_exp_f32 v{48+i}, v{48+i}")
    for i in range(8): a(f"v_add_f32 v{48+i}, 1.0, v{48+i}")
    for i in range(8): a(f"v_rcp_f32 v{48+i}, v{48+i}")
    for i in range(8): a(f"v_mul_f32 v{40+i}, v{40+i}, v{48+i}")
    for i in range(4): a(f"v_cvt_pk_bf16_f32 v{dst+i}, v{40+2*i}, v{41+2*i}")

Lr0, Lr2, Lr3, Lxi, Lxw, Lnz, Lsl = (a.label(x) for x in ("r0", "r2", "r3", "xi", "xw", "noz", "sl"))
def xstage():
    for T2 in range(8):
        a(f"s_add_u32 m0, s67, {T2*2048}\ns_movk_i32 s3, {T2*128}\nbuffer_load_dwordx4 v22, {R1}, s3 offen lds\nbuffer_load_dwordx4 v23, {R1}, s3 offen offset:1024 lds")
if "ms" in XP: stamp("iss0")
a(f"s_cmp_eq_u32 s0, 1\ns_cbranch_scc0 {Lr2}")
a(f"s_cmp_lt_u32 {sIDX}, 8\ns_cbranch_scc0 {Lxi}\nbuffer_load_dwordx4 v[32:35], v3, {R0}, 0 offen")
for n in range(16):
    a(f"s_mov_b32 m0, {L_G0 + n*1024}\nbuffer_load_dwordx4 v28, {R2}, s66 offen lds")
    if n < 15: a("s_add_u32 s66, s66, 196608")
a(f"""
s_lshl_b32 s3, s68, 9
s_mov_b64 exec, 0xffffffff
buffer_store_dwordx4 v[36:39], v3, {WS}, s3 offen sc1
s_mov_b64 exec, -1
""")
a("s_barrier\ns_waitcnt vmcnt(17)")
if "ms" in XP: stamp("m_c")
silu8(32, 32)
a(f"v_add_u32 v6, {L_SILU}, v3\nds_write_b128 v6, v[32:35]\nv_lshlrev_b32 v5, 4, v2\nv_add_u32 v6, {L_SILU}, v5")
a(f"v_add_u32 v7, {L_G0}, v17\ns_waitcnt lgkmcnt(0)")
for T in range(16): a(f"ds_read_b128 {vr(160+4*T,4)}, v6 offset:{T*64}")
a("s_waitcnt vmcnt(0)")
if "ms" in XP: stamp("m_dma")
pipeline(16, lambda T: a(f"ds_read_b64_tr_b16 {vr(128+(T%8)*4,2)}, v7 offset:{T*1024}\nds_read_b64_tr_b16 {vr(130+(T%8)*4,2)}, v7 offset:{T*1024+256}"),
         lambda T: a(f"v_mfma_f32_16x16x32_bf16 v[32:35], {vr(128+(T%8)*4,4)}, {vr(160+4*T,4)}, {'0' if T == 0 else 'v[32:35]'}"), 2, pre=6)
round_bf16([32, 33, 34, 35])
Lno1 = a.label("no1")
a(f"s_bitcmp1_b32 s68, 5\ns_cbranch_scc0 {Lno1}")
for i in range(4): a(f"v_add_f32 v{32+i}, 1.0, v{32+i}")
round_bf16([32, 33, 34, 35])
a(f"""
{Lno1}:
s_lshl_b32 s3, s68, 6
s_add_u32 s3, s3, {WS_MODT}
s_mov_b32 exec_lo, 0x00010001
s_mov_b32 exec_hi, 0x00010001
s_add_u32 s65, {sEP}, 1
s_and_b32 s65, s65, 0xffff
v_or_b32 v36, s65, v32
v_or_b32 v37, s65, v33
v_or_b32 v38, s65, v34
v_or_b32 v39, s65, v35
buffer_store_dwordx4 v[36:39], v5, {WS}, s3 offen sc1
s_mov_b64 exec, -1
""")
if "ms" in XP: stamp("m_pub")
a(f"""
v_add_u32 v6, s69, v6
ds_read_b128 v[8:11], v6
""")
xstage()
a(f"""
s_waitcnt vmcnt(0)
s_branch {Lxw}
{Lr2}:
s_cmp_eq_u32 s0, 0
s_cbranch_scc1 {Lr0}
{Lxi}:
buffer_load_dwordx4 v[8:11], v25, {R0}, s69 offen
s_barrier
""")
xstage()
a(f"s_lshl_b32 s66, {sCB}, 7")
srd(R0, P_WQ, 512 * 1024, "s66")
Lnw = a.label("nw")
a(f"""
s_cmp_lt_u32 s0, 2
s_cbranch_scc1 {Lnw}
s_and_b32 s3, {sRB}, 3
s_lshl_b32 s3, s3, 1
s_add_u32 s3, s3, s0
s_sub_u32 s3, s3, 2
s_lshl_b32 s3, s3, 16
v_lshlrev_b32 v4, 10, v0
buffer_load_dword v26, v4, {R0}, s3 offen
s_waitcnt vmcnt(17)
""")
silu8(8, 8)
a(f"s_waitcnt vmcnt(1)\ns_branch {Lxw}\n{Lnw}:\ns_waitcnt vmcnt(16)")
silu8(8, 8)
a(f"s_waitcnt vmcnt(0)\ns_branch {Lxw}\n{Lr0}:\nbuffer_load_dwordx4 v[8:11], v25, {R0}, s69 offen\ns_barrier")
xstage()
a("v_lshl_add_u32 v21, v16, 5, v18")
for n in range(16): a(f"s_mov_b32 m0, {L_WKV + n*1024}\ns_movk_i32 s3, {n*1024}\nbuffer_load_dwordx4 v21, {R3}, s3 offen lds")
a(f"s_mul_i32 s3, s2, 768\ns_add_u32 s3, s3, {F_HOP}\ns_mov_b32 exec_hi, 0xffff\nbuffer_store_dwordx4 v[36:39], v3, {WS}, s3 offen sc1\ns_mov_b64 exec, -1\ns_waitcnt vmcnt(33)")
silu8(8, 8)
a(f"s_waitcnt vmcnt(17)\n{Lxw}:")
stamp("xin")
a(f"""
v_lshrrev_b32 v4, 1, v1
v_xor_b32 v4, v4, v2
v_lshlrev_b32 v4, 4, v4
v_lshl_add_u32 v4, v1, 7, v4
v_add_u32 v4, s67, v4
v_xor_b32 v5, 64, v4
s_waitcnt lgkmcnt(0)
s_add_u32 {sEP}, {sEP}, 1
s_and_b32 {sTAG}, {sEP}, 0xffff
""")
for T in range(16): a(f"ds_read_b128 {vr(64+4*T,4)}, v{4 + (T & 1)} offset:{(T >> 1)*2048}")
a(f"s_lshl_b32 s66, {sCB}, 7")
srd(R0, P_WQ, 512 * 1024, "s66")
a(f"""
v_lshrrev_b32 v4, 3, v0
v_bfe_u32 v5, v0, 1, 2
v_bfe_u32 v6, v4, 1, 1
v_xor_b32 v5, v5, v6
v_lshlrev_b32 v5, 5, v5
v_lshl_add_u32 v5, v4, 10, v5
v_add_u32 v19, v5, v18
v_xor_b32 v20, 64, v19
""")
a(f"s_lshl_b32 s66, {sW}, 17")
nst = [0]
def stage():
    n = nst[0]; nst[0] += 1
    a(f"s_mov_b32 m0, s67\ns_add_u32 s67, s67, 1024\nbuffer_load_dwordx4 v{19 + (n & 1)}, {R0}, s66 offen lds\ns_add_u32 s66, s66, 8192")
for i in range(64):
    if i % 4 == 0: a(f"s_waitcnt lgkmcnt({15 - i // 4})")
    a(f"v_lshlrev_b32 v{128+2*i}, 16, v{64+i}\nv_and_b32 v{129+2*i}, 0xffff0000, v{64+i}")
for k in range(4): a(f"v_pk_add_f32 {vr(32+2*k,2)}, {vr(128+4*k,2)}, {vr(130+4*k,2)}")
for k in range(4): a(f"v_pk_mul_f32 {vr(40+2*k,2)}, {vr(128+2*k,2)}, {vr(128+2*k,2)}")
for i in range(4, 64):
    if i >= 8: a(f"v_pk_add_f32 {vr(32+2*(i%4),2)}, {vr(32+2*(i%4),2)}, {vr(128+2*i,2)}")
    a(f"v_pk_fma_f32 {vr(40+2*(i%4),2)}, {vr(128+2*i,2)}, {vr(128+2*i,2)}, {vr(40+2*(i%4),2)}")
    if i % 4 == 3 and nst[0] < 16: stage()
for b in (32, 40):
    a(f"v_pk_add_f32 {vr(b,2)}, {vr(b,2)}, {vr(b+2,2)}\nv_pk_add_f32 {vr(b+4,2)}, {vr(b+4,2)}, {vr(b+6,2)}\nv_pk_add_f32 {vr(b,2)}, {vr(b,2)}, {vr(b+4,2)}\nv_add_f32 v{b}, v{b}, v{b+1}")
xgroup_sum2(32, 33, 40, 41)
finish_stats([(32, 40, 34, 36, None)], 512)
a("v_mul_f32 v34, v34, v36")
PE = int(([x[3:] for x in XP if x.startswith('pe:')] or ['32'])[0])
a(f"s_mov_b32 s23, {WS_MODT}")
for i in range(65):
    if i == PE:
        while nst[0] < 16: stage()
        for k in range(4): a(f"buffer_load_dwordx4 {vr(40+4*k,4)}, v3, {WS}, s23 offen offset:{k*1024} sc1")
    if i == 64: break
    a(f"v_pk_fma_f32 {vr(128+2*i,2)}, {vr(128+2*i,2)}, v[36:37], v[34:35] op_sel_hi:[1,0,0]")
    if i % 8 == 0 and nst[0] < 16: stage()
Lna = a.label("nkvf")
a(f"s_cmp_eq_u32 s0, 0\ns_cbranch_scc0 {Lna}\nv_add_u32 v7, {L_WKV}, v17\ns_waitcnt vmcnt(21)")
for T in range(16): a(f"ds_read_b64_tr_b16 {ar(4*T,2)}, v7 offset:{T*1024}\nds_read_b64_tr_b16 {ar(4*T+2,2)}, v7 offset:{T*1024+256}")
a(f"{Lna}:")
stamp("ln1")
def tagcheck(regs):
    out = [f"v_xor_b32 v{r}, {sTAG}, v{r}" for r in regs]
    out.append(f"v_or3_b32 v4, v{regs[0]}, v{regs[1]}, v{regs[2]}")
    for i in range(3, len(regs) - 1, 2): out.append(f"v_or3_b32 v4, v4, v{regs[i]}, v{regs[i+1]}")
    out.append(f"v_or_b32 v4, v4, v{regs[-1]}\nv_and_b32 v4, 0xffff, v4\nv_cmp_ne_u32 vcc, 0, v4")
    return "\n".join(out)
BKA = int(([x[4:] for x in XP if x.startswith("bka:")] or ["5"])[0])
def setup_scalars():
    Lr2, Lr3, Lre = (a.label(x) for x in ("r2", "r3", "re"))
    a(f"""
s_mul_i32 s77, {sW}, 12288
s_lshl_b32 s68, {sW}, 12
s_movk_i32 s74, 1024
s_movk_i32 s75, 4
s_movk_i32 s76, 8
s_movk_i32 s1, 2048
s_movk_i32 s20, 8192
s_cmp_eq_u32 {sW}, 2
s_cbranch_scc1 {Lr2}
s_cmp_eq_u32 {sW}, 3
s_cbranch_scc1 {Lr3}
s_and_b32 s64, {sRB}, 15
s_mul_i32 s64, s64, 114688
s_lshr_b32 s3, {sRB}, 4
s_mul_i32 s3, s3, 1792
s_add_u32 s64, s64, s3
s_mul_i32 s3, {sCB}, 224
s_add_u32 s64, s64, s3
s_lshl_b32 s3, {sW}, 7
s_add_u32 s64, s64, s3
""")
    srd(R2, P_WIN, 512 * 3584, "s64")
    a(f"""
s_movk_i32 s74, 3584
s_movk_i32 s20, {8*3584}
s_mov_b32 s21, {16*3584}
s_mov_b32 s22, {24*3584}
s_lshl_b32 s36, {sCB}, 5
s_add_u32 s36, s36, {sRB}
s_mul_i32 s36, s36, {SLOT}
s_add_u32 s36, s36, s68
s_add_u32 s36, s36, {WS_WINF}
s_mov_b32 s24, s36
s_cmp_eq_u32 {sW}, 0
s_cselect_b32 s37, s36, {WS_SIZE}
s_branch {Lre}
{Lr2}:
s_min_u32 s67, {sRB}, 27
s_mul_i32 s64, s67, 37
s_lshr_b32 s64, s64, 8
s_mul_i32 s3, s64, 7
s_sub_u32 s65, s67, s3
s_mul_i32 s64, s64, 224
s_lshl_b32 s3, s65, 5
s_add_u32 s66, s3, 16
s_cmp_lt_u32 s65, 3
s_cselect_b32 s3, s3, s66
s_cmp_eq_u32 s65, 6
s_cselect_b32 s3, 96, s3
s_cselect_b32 s21, 112, 16
s_cselect_b32 s75, 8, 4
s_cselect_b32 s76, 16, 8
s_cselect_b32 s1, 512, s1
s_lshl_b32 s21, s21, 10
s_add_u32 s22, s21, 8192
s_add_u32 s64, s64, s3
s_lshl_b32 s64, s64, 10
s_lshl_b32 s3, {sCB}, 7
s_add_u32 s64, s64, s3
""")
    srd(R2, P_WOUT, 896 * 1024, "s64")
    a(f"""
s_mul_i32 s3, s67, 37
s_lshr_b32 s3, s3, 8
s_sub_u32 s36, s67, s3
s_add_u32 s3, s3, 24
s_cmp_eq_u32 s65, 6
s_cselect_b32 s3, s3, s36
s_mul_i32 s36, {sCB}, 28
s_add_u32 s36, s36, s3
s_lshl_b32 s36, s36, 12
s_add_u32 s36, s36, {WS_WOUTF}
s_cmp_lt_u32 {sRB}, 28
s_cselect_b32 s36, s36, {WS_SIZE}
s_mov_b32 s37, s36
s_mov_b32 s24, s36
s_branch {Lre}
{Lr3}:
s_lshr_b32 s67, {sRB}, 1
s_lshl_b32 s64, s67, 15
s_lshl_b32 s3, {sCB}, 7
s_add_u32 s64, s64, s3
""")
    srd(R2, P_WO, 512 * 1024, "s64")
    a(f"""
s_movk_i32 s21, 16384
s_movk_i32 s22, 24576
s_movk_i32 s75, 16
s_movk_i32 s76, 4
s_movk_i32 s1, 1024
s_lshl_b32 s36, {sCB}, 4
s_add_u32 s36, s36, s67
s_lshl_b32 s36, s36, 12
s_add_u32 s36, s36, {WS_WOF}
s_bitcmp1_b32 {sRB}, 0
s_cselect_b32 s37, s36, {WS_SIZE}
s_cselect_b32 s36, {WS_SIZE}, s36
s_mov_b32 s24, s37
{Lre}:
s_and_b32 s64, s2, 15
s_mul_i32 s64, s64, {32*6144}
s_lshr_b32 s65, s2, 4
s_lshl_b32 s3, s65, 8
s_add_u32 s64, s64, s3
s_lshl_b32 s3, {sW}, 6
s_add_u32 s64, s64, s3
s_add_u32 s64, s64, 2048
""")
    srd(R3, P_WMOD, 512 * 6144, "s64")
    a(f"""
s_lshl_b32 s35, {sW}, 11
s_add_u32 s35, s35, {L_G2}
s_lshl_b32 s64, {sW}, 11
s_add_u32 s65, s64, {L_KV}
s_add_u32 s64, s64, {WS_KV}
s_mul_i32 s66, {sIDX}, {33*128}
s_add_u32 s66, s66, {WS_KV}
s_lshl_b32 s67, {sRB}, 10
""")
def late_scalars():
    a(f"s_lshl_b32 s23, {sRB}, 18\ns_lshl_b32 s19, {sW}, 10\ns_add_u32 s23, s23, s19")
    srd(R0, P_WSP, 2048 * 4096, "s23")
    a(f"""
s_lshl_b32 s19, {sCB}, 15
s_lshl_b32 s30, {sCB}, 7
s_lshr_b32 s31, s55, 4
s_add_u32 s31, s31, s30
s_add_u32 s31, s31, {WS_ST1}
s_add_u32 s23, s30, s55
""")
    srd(R1, P_X, 2048 * 1024, "s23")
    a(f"""
s_lshr_b32 s34, s2, 4
s_lshl_b32 s34, s34, 9
s_lshl_b32 s23, {sW}, 7
s_add_u32 s34, s34, s23
s_add_u32 s34, s34, {WS_G2}
s_lshl_b32 s39, {sCB}, 9
s_mov_b32 s38, {F_P}
s_add_u32 s27, s39, s38
s_add_u32 s39, s27, s23
s_lshr_b32 s23, {sRB}, 4
s_mul_i32 s23, s23, 3584
s_mul_i32 s28, {sCB}, 448
s_add_u32 s28, s28, s23
s_lshl_b32 s23, {sW}, 8
s_add_u32 s28, s28, s23
s_add_u32 s28, s28, {WS_C12}
s_lshr_b32 s23, {sW}, 1
s_mul_i32 s23, s23, {WS_SIZE}
s_add_u32 s28, s28, s23
s_add_u32 s29, s28, 7168
s_and_b32 s25, {sRB}, 15
s_lshl_b32 s25, s25, 7
s_add_u32 s25, s25, {WS_G2 + 2048}
s_and_b32 s23, {sRB}, 3
s_lshl_b32 s23, s23, 2
s_add_u32 s23, s23, {sW}
s_mul_i32 s26, s23, {SLOT}
s_mul_i32 s23, {sCB}, {28*4096}
s_add_u32 s26, s26, s23
s_add_u32 s26, s26, {WS_WOUTF}
s_lshl_b32 s69, {sCB}, 16
s_add_u32 s69, s69, {WS_WOF}
s_lshl_b32 s16, s55, 1
s_lshl_b32 s23, {sCB}, 11
s_add_u32 s16, s16, s23
s_add_u32 s16, s16, {WS_X}
s_add_u32 s17, s16, 16384
s_lshl_b32 s23, {sCB}, 8
s_add_u32 s18, s23, {WS_G2}
s_add_u32 s30, s23, {WS_G2 + 2*2048}
""")
    for s_ in range(4): a(f"s_add_u32 s23, {sW}, {s_}\ns_and_b32 s23, s23, 3\ns_lshl_b32 s{70+s_}, s23, 16")
assert F_B == 0

STAG = "stag" in XP
if STAG: a("s_cmp_eq_u32 s0, 0\ns_cbranch_scc0 L_ns1")
setup_scalars()
a("L_ns1:")
PARLD = "\n".join(f"buffer_load_dwordx4 {vr(40+4*i,4)}, v3, {WS}, s23 offen offset:{i*1024} sc1" for i in range(4))
a("s_waitcnt vmcnt(0)")
a(tagcheck(list(range(40, 56))))
a("s_cbranch_vccz L_parok")
poll(PARLD, tagcheck(list(range(40, 56))), "-1", BKA)
a(f"L_parok:\ns_lshl_b32 s3, {sW}, 12\nv_add_u32 v5, s3, v3")
for i in range(4): a(f"ds_write_b128 v5, {vr(40+4*i,4)} offset:{L_PAR + i*1024}")
stamp("barP")
if STAG:
    a("s_cmp_eq_u32 s0, 0\ns_cbranch_scc1 L_ns2")
    setup_scalars()
    a(f"s_lshl_b32 s3, {sW}, 12\nL_ns2:")
LV, Lh, Lnkv, LV2, Lst, Lkve = (a.label(x) for x in ("isV", "hdone", "nokv", "isV2", "kvst", "kve"))
a(f"v_lshlrev_b32 v19, 5, v2\nv_add_u32 v19, s3, v19\ns_waitcnt lgkmcnt(0)\ns_bitcmp1_b32 {sCB}, 0\ns_cbranch_scc1 {LV}")
def hpass(isV):
    OFF = (2048, 0, 2064, 16)
    rd = lambda T, k: a(f"ds_read_b128 {vr(32 + (T & 1)*16 + 4*k, 4)}, v19 offset:{OFF[k] + T*128}")
    def kv(T):
        A, B = (vr(64+4*T,4), ar(4*T,4)) if isV else (ar(4*T,4), vr(64+4*T,4))
        a(f"v_mfma_f32_16x16x32_bf16 v[12:15], {A}, {B}, {'0' if T == 0 else 'v[12:15]'}")
    for T in range(2):
        for k in range(4): rd(T, k)
    for T in range(16):
        b = 32 + (T & 1) * 16
        for hf in range(2):
            a(f"s_waitcnt lgkmcnt({(6 if T < 15 else 2 - 2*hf) if T < 14 or hf == 0 and T == 14 else (4 if T == 14 else 2 - 2*hf)})")
            for k in range(2):
                x = 128 + 8*T + 4*hf + 2*k
                a(f"v_pk_fma_f32 {vr(x,2)}, {vr(x,2)}, {vr(b+8*hf+2*k,2)}, {vr(b+8*hf+4+2*k,2)}")
            if hf == 0 and T: kv(T - 1)
            if T + 2 < 16: rd(T + 2, 2*hf); rd(T + 2, 2*hf + 1)
            for k in range(2):
                x = 128 + 8*T + 4*hf + 2*k
                a(f"v_cvt_pk_bf16_f32 v{64+4*T+2*hf+k}, v{x}, v{x+1}")
    kv(15)
hpass(False)
a(f"s_branch {Lh}\n{LV}:")
hpass(True)
a(f"{Lh}:")
if "ms" in XP: stamp("h")
a(f"""
s_cmp_eq_u32 s0, 0
s_cbranch_scc0 {Lnkv}
s_lshl_b32 s23, {sRB}, 1
s_lshr_b32 s3, {sW}, 1
s_add_u32 s23, s23, s3
s_mul_i32 s23, s23, {REC}
s_add_u32 s23, s23, {WS_KV}
s_and_b32 s27, {sW}, 1
v_lshrrev_b32 v20, 5, v0
v_cvt_pk_bf16_f32 v36, v12, v13
v_cvt_pk_bf16_f32 v37, v14, v15
v_mov_b32 v38, v36
v_mov_b32 v39, v37
v_permlane16_swap_b32 v36, v38
v_permlane16_swap_b32 v37, v39
s_bitcmp1_b32 {sCB}, 0
s_cbranch_scc1 {LV2}
v_lshlrev_b32 v20, 9, v20
v_lshl_add_u32 v20, v1, 4, v20
s_lshl_b32 s27, s27, 8
s_add_u32 s23, s23, s27
s_add_u32 s23, s23, 1088
s_mov_b32 exec_lo, 0x0000ffff
s_mov_b32 exec_hi, 0x0000ffff
s_branch {Lst}
{LV2}:
v_mul_u32_u24 v20, 272, v20
v_and_b32 v4, 31, v0
v_lshl_add_u32 v20, v4, 4, v20
s_mul_i32 s27, s27, 544
s_add_u32 s23, s23, s27
s_mov_b32 exec_lo, 0xffff0000
s_mov_b32 exec_hi, 0xffff0000
v_mov_b32 v36, 0x3f803f80
v_mov_b32 v37, 0x3f803f80
v_mov_b32 v38, 0x3f803f80
v_mov_b32 v39, 0x3f803f80
s_mov_b32 exec_lo, 0x0001ffff
s_mov_b32 exec_hi, 0x0001ffff
{Lst}:
buffer_store_dwordx4 v[36:39], v20, {WS}, s23 offen sc1
s_mov_b64 exec, 1
s_add_u32 s3, {sXCC}, 1
v_mov_b32 v20, s3
s_lshl_b32 s23, {sCB}, 7
s_add_u32 s23, s23, s67
s_waitcnt vmcnt(0)
buffer_store_dword v20, v0, {WS}, s23 offen sc1
s_mov_b64 exec, -1
""")
if "ms" in XP: stamp("arr")
a(f"{Lnkv}:")
def trbase128(dst, rowexpr_v, fexpr_v, lbase):
    a(f"v_and_b32 v6, 3, v1\nv_lshlrev_b32 v6, 3, v6\nv_lshl_add_u32 v6, v{rowexpr_v}, 7, v6\nv_lshl_add_u32 v6, v{fexpr_v}, 5, v6\nv_add_u32 v{dst}, {lbase}, v6")
    for j in range(1, 4): a(f"v_xor_b32 v{dst+j}, {j*32}, v{dst}")
a("v_lshrrev_b32 v4, 2, v1\nv_bfe_u32 v5, v1, 3, 1\nv_and_b32 v7, 1, v2\nv_lshl_or_b32 v5, v7, 1, v5\nv_lshl_add_u32 v4, v2, 3, v4")
trbase128(24, 4, 5, L_WQ)
a("s_barrier")
BQ = lambda T, j: (32, 48, 144)[T % 3] + 4*j
rdq = lambda T, j: a(f"ds_read_b64_tr_b16 {vr(BQ(T, j),2)}, v{24+j} offset:{T*4096}\nds_read_b64_tr_b16 {vr(BQ(T, j)+2,2)}, v{24+j} offset:{T*4096+512}")
for n in range(8): rdq(n >> 2, n & 3)
deeploop(16, 4, rdq, lambda T, j: a(f"v_mfma_f32_16x16x32_bf16 {vr(128+4*j,4)}, {vr(BQ(T, j),4)}, {vr(64+4*T,4)}, {'0' if T == 0 else vr(128+4*j,4)}"),
         lambda T: None, nper=2)
for i in range(16): a(f"v_mul_f32 v{128+i}, {fbits(0.25*math.log2(math.e))}, v{128+i}")
for i in range(8): a(f"v_cvt_pk_bf16_f32 v{16+i}, v{128+2*i}, v{129+2*i}")
for e in range(2): a(f"v_permlane16_swap_b32 v{16+4*e}, v{18+4*e}\nv_permlane16_swap_b32 v{17+4*e}, v{19+4*e}")
stamp("q")
a(f"""
v_add_u32 v24, {L_KV + 1088}, v3
v_add_u32 v25, {31*REC}, v24
v_add_u32 v26, {31*REC}, v25
v_lshrrev_b32 v4, 5, v0
v_mul_u32_u24 v4, 272, v4
v_and_b32 v5, 31, v0
v_lshl_add_u32 v4, v5, 4, v4
v_add_u32 v27, {L_KV}, v4
v_mov_b32 v4, 0x40000
v_cmp_lt_u32 vcc, {16 if PADZERO else 99}, v5
v_mov_b32 v31, {OOB}
v_mov_b32 v30, 0xdddd
v_cndmask_b32 v27, v27, v4, vcc
v_add_u32 v28, {31*REC}, v27
v_add_u32 v29, {31*REC}, v28
v_lshrrev_b32 v7, 3, v0
v_and_b32 v6, 7, v0
v_xor_b32 v5, v6, v2
v_lshlrev_b32 v5, 4, v5
v_lshl_add_u32 v168, v7, 12, v5
v_xor_b32 v169, 64, v168
v_add_u32 v169, {0x8000 - 1024}, v169
v_lshrrev_b32 v4, 1, v1
v_xor_b32 v4, v4, v2
v_lshlrev_b32 v4, 4, v4
v_lshl_add_u32 v4, v1, 7, v4
v_add_u32 v170, s77, v4
v_xor_b32 v171, 64, v170
v_lshlrev_b32 v4, 10, v1
v_lshl_add_u32 v172, v2, 3, v4
v_lshrrev_b32 v4, 2, v0
v_lshlrev_b32 v4, 12, v4
v_and_b32 v5, 3, v0
v_lshl_add_u32 v4, v5, 7, v4
v_cmp_gt_u32 vcc, 32, v0
v_lshlrev_b32 v5, 7, v6
v_lshl_add_u32 v5, v7, 12, v5
v_cndmask_b32 v173, {"v31, v4" if "half" in XP else "v5, v5"}, vcc
v_lshlrev_b32 v6, 4, v6
v_mad_u32_u24 v176, v7, s74, v6
v_lshrrev_b32 v4, 2, v1
v_and_b32 v5, 1, v2
v_mad_u32_u24 v4, v5, s75, v4
v_lshrrev_b32 v5, 1, v2
v_mad_u32_u24 v4, v5, s76, v4
v_and_b32 v5, 3, v1
v_lshlrev_b32 v5, 3, v5
v_lshl_add_u32 v4, v4, 7, v5
v_add_u32 v177, s68, v4
v_add_u32 v178, s1, v177
v_lshlrev_b32 v4, 7, v0
v_cmp_gt_u32 vcc, 32, v0
v_cmp_gt_u32 s[74:75], 33, v0
v_mov_b32 v199, 1
v_lshlrev_b32 v218, 4, v2
v_cndmask_b32 v196, v31, v4, vcc
v_cndmask_b32 v197, v31, v4, s[74:75]
v_cmp_gt_u32 vcc, 14, v0
v_cmp_gt_u32 s[74:75], 4, v0
s_nop 0
v_cndmask_b32 v175, v31, v4, vcc
v_cndmask_b32 v174, v31, v4, s[74:75]
v_cmp_eq_u32 vcc, 0, v0
v_and_b32 v7, 1, v0
v_lshlrev_b32 v5, 4, v7
v_cndmask_b32 v198, v31, v4, vcc
v_lshrrev_b32 v4, 2, v0
v_mul_u32_u24 v4, 6144, v4
v_and_b32 v5, 3, v0
v_lshl_add_u32 v212, v5, 4, v4
v_lshrrev_b32 v4, 2, v1
v_lshl_add_u32 v4, v2, 3, v4
v_lshlrev_b32 v4, 6, v4
v_lshl_add_u32 v4, v5, 3, v4
v_add_u32 v213, s35, v4
v_cvt_f32_u32 v219, v7
v_sub_f32 v219, 1.0, v219
v_lshlrev_b32 v4, 2, v0
v_cmp_gt_u32 vcc, 32, v0
s_cmp_eq_u32 {sW}, 0
s_cselect_b32 s3, 64, 48
v_cmp_gt_u32 s[74:75], s3, v0
v_lshlrev_b32 v5, 11, v7
v_cndmask_b32 v214, v31, v4, vcc
v_cndmask_b32 v215, v31, v4, s[74:75]
v_sub_u32 v4, 2048, v5
v_add_u32 v4, v218, v4
v_and_b32 v5, 2, v0
v_cmp_eq_u32 vcc, 0, v5
v_mul_u32_u24 v5, {WS_ST2 - WS_ST1}, v7
v_cndmask_b32 v216, v31, v4, vcc
v_lshlrev_b32 v4, 7, v1
v_lshl_add_u32 v4, v2, 14, v4
v_cmp_gt_u32 vcc, 32, v0
v_cmp_gt_u32 s[74:75], 2, v0
v_mov_b64 v[80:81], 0
v_mov_b64 v[82:83], 0
v_cndmask_b32 v202, v31, v4, vcc
v_cndmask_b32 v217, v31, v5, s[74:75]
""")
for i in range(2, 16): a(f"v_mov_b64 {vr(80+2*i,2)}, 0")
if "ms" in XP: stamp("setup")
BKB = int(([x[3:] for x in XP if x.startswith("bk:")] or ["6"])[0])
a(f"v_lshlrev_b32 v5, 7, v0\ns_lshl_b32 s23, {sW}, 13")
a(f"buffer_load_dword v4, v5, {WS}, s23 offen sc1")
a("s_waitcnt vmcnt(0)\nv_cmp_eq_u32 vcc, 0, v4\ns_cbranch_vccz L_bok")
poll(f"buffer_load_dword v4, v5, {WS}, s23 offen sc1", "v_cmp_eq_u32 vcc, 0, v4", "-1", BKB)
a("L_bok:")
a("s_waitcnt lgkmcnt(0)\ns_barrier")
stamp("barB")
Lne = a.label("noep")
a(f"s_or_b32 s3, s2, {sW}\ns_cbranch_scc1 {Lne}\nv_mov_b32 v4, {sEP}\ns_mov_b32 s3, {WS_EPOCH}\nbuffer_store_dword v4, v198, {WS}, s3 offen sc1\n{Lne}:")
a(f"s_cmp_eq_u32 {sW}, 3\ns_cbranch_scc0 L_nkt\nbuffer_load_dword v200, v197, {WS}, s66 offen sc1\nL_nkt:")
vm.n = 0
def kv_group(i):
    if i < 16:
        return (["s_mov_b32 m0, s65"], [f"buffer_load_dwordx4 v3, {WS}, s64 offen sc1 lds", f"buffer_load_dwordx4 v3, {WS}, s64 offen offset:1024 sc1 lds"],
                f"kvg{i}", ["s_add_u32 s64, s64, 8192", "s_add_u32 s65, s65, 8192"])
    return ([f"s_lshl_b32 s3, {sW}, 10", "s_sub_u32 s64, s64, s3", "s_sub_u32 m0, s65, s3"], [f"buffer_load_dwordx4 v3, {WS}, s64 offen sc1 lds"], "kvg16", [])
def emit_item(x):
    pre, ins, tag, post = x
    for p in pre: a(p)
    for q_ in ins: vm.op(q_, tag)
    for p in post: a(p)
for i in range(2): emit_item(kv_group(i))

def win_items(half, grp, slot0, tag):
    ld = lambda i: f"buffer_load_dwordx4 v3, {WS}, s74 offen offset:{(i & 3)*1024} sc1 lds"
    first = [f"s_add_u32 s74, s21, {4*grp}", "s_and_b32 s74, s74, 15", "s_add_u32 s74, s74, s22", f"s_mul_i32 s74, s74, {SLOT}", f"s_add_u32 s74, s74, {WS_WINF + half*16*SLOT}"] + slot0
    return [(first + ["s_mov_b32 m0, s75"], [ld(0), ld(1)], tag, []), (["s_mov_b32 m0, s75"], [ld(2), ld(3)], tag, ["s_add_u32 s74, s74, 4096", "s_add_u32 s75, s75, 4096"]),
            (["s_mov_b32 m0, s75"], [ld(4), ld(5)], tag, []), (["s_mov_b32 m0, s75"], [ld(6)], tag, [])]
def lin_slot(base): return [f"s_mul_i32 s75, {sW}, {SLOT}", f"s_add_u32 s75, s75, {base}"]

def kaddr(t): return f"v{24 + t//31} offset:{(t % 31)*REC}"
def vaddr(t, m): return f"v{27 + t//31} offset:{(t % 31)*REC + m*544}"
Kb = lambda t: vr(144 + 4*(t & 1), 4)
Vb = lambda t, m: vr(152 + 8*(t & 1) + 4*m, 4)
Sb = lambda u: 32 + 16*(u % 3)
Q = lambda e: vr(16 + 4*e, 4)
O = lambda e: 80 + 16*e
C = lambda e: 112 + 16*e
vm.wait("kvg0"); a("s_barrier")
stamp("kv0")
if "clk" in XP: a("s_memtime s[96:97]\ns_memrealtime s[98:99]\ns_waitcnt lgkmcnt(0)")
a(f"ds_read_b128 {Kb(0)}, {kaddr(0)}\nds_read_b128 {Kb(1)}, {kaddr(1)}\ns_waitcnt lgkmcnt(1)")
for e in range(2): a(f"v_mfma_f32_32x32x16_bf16 {vr(32+16*e,16)}, {Kb(0)}, {Q(e)}, 0")
def rowmax(first):
    for i in range(0, 16, 2):
        for e in range(2):
            if first and i == 0: a(f"v_max_f32 v{4+e}, v{32+16*e}, v{33+16*e}")
            else: a(f"v_max3_f32 v{4+e}, v{32+16*e+i}, v{33+16*e+i}, v{4+e}")
def negbcast():
    a("v_mov_b32 v6, v4\nv_mov_b32 v7, v5\nv_permlane32_swap_b32 v4, v6\nv_permlane32_swap_b32 v5, v7")
    for e in range(2): a(f"v_max_f32 v{4+e}, v{4+e}, v{6+e}")
    for e in range(2): a(f"v_sub_f32 v{C(e)}, 0, v{4+e}\nv_sub_f32 v{C(e)+1}, 0, v{4+e}")
    for e in range(2):
        for i in range(2, 16, 2): a(f"v_mov_b64 {vr(C(e)+i,2)}, {vr(C(e),2)}")
a.note("""Softmax shift: each query's max over the first 32 keys is subtracted through the MFMA C operand (scores are in log2 units).
After the last key the row sums are checked; if any is not < 2^40 the two query tiles are redone with the true row max (L path at the end).
P goes to the sparse MFMA as raw f32: the index 0xdddd picks the high (bf16) half of every register; row 16 of V^T is ones and yields the row sum.""")
rowmax(True); negbcast()
a(f"v_mfma_f32_32x32x16_bf16 {vr(Sb(0),16)}, {Kb(0)}, {Q(0)}, {vr(C(0),16)}")

plan = {}
TW, TARR, TK, TW2 = (int(x) for x in ([x[3:] for x in XP if x.startswith('tw:')] or ['6,28,8,13'])[0].split(','))
SH = int(([x[3:] for x in XP if x.startswith('sh:')] or ['0'])[0])
TP, TR = 19, 28 + SH
def put(t, slot, x): plan.setdefault((t, slot), []).append(x)
PREV = {"e1x": ("e0", 0), "o0": ("e1", 0), "e1": ("e0", 0), "eq": ("o1", -1), "oq": ("e1", 0), "e0": ("o1", -1)}
assert True
def vitem(t, slot, x):
    pre, ins, tag, post = x
    ps, dt = PREV[slot]
    pre = [p + " " for p in pre]
    m0 = [p for p in pre if " m0," in p]; rest = [p for p in pre if " m0," not in p]
    if t + dt < 0 or len(pre) > 2:
        pp, dd = PREV[ps] if ps in PREV else ("o0", 0)
        if t + dt + dd < 0: put(t, slot, ("salu", pre))
        else: put(t + dt + dd, pp + "a", ("salu", rest)); put(t + dt, ps + "a", ("salu", m0))
    else: put(t + dt, ps + "a", ("salu", pre))
    put(t, slot, ("vm", ins, tag, m0[0] if m0 else None))
    if post: put(t, slot, ("salu", post))
for i in range(2, 8): vitem((i - 2) // 2, ("e1", "o0")[i & 1], kv_group(i))
KVE = False
TK = int(([x[3:] for x in XP if x.startswith('tk:')] or ['24'])[0])
for i in range(8, 16): vitem(TK + (i - 8) // 2, ("e1", "o0")[i & 1], kv_group(i))
vitem(TK + 4, "eq", kv_group(16))
late = [x.text for _, x in capture(late_scalars)]
free = [(t, k) for t in range(0, 3) for k in ("o1a",)] + [(3, "o1a"), (4, "o1a"), (3, "e0b"), (4, "e0b"), (5, "e0b")] + [(t, k) for t in range(6, 19) for k in ("e0a", "e1a", "o1a")]
free.sort(key=lambda x: (x[0], ("e0b", "e0a", "e1a", "o1a").index(x[1])))
n_ = 0
for t, k in free:
    cnt = 3 if t < 5 else 2
    while n_ + cnt < len(late) and late[n_ + cnt].startswith("s_addc"): cnt += 1
    if n_ < len(late): put(t, k, ("salu", late[n_:n_ + cnt]))
    n_ += cnt
assert n_ >= len(late)
for n, so in enumerate(("0", "s20", "s21", "s22")):
    vitem((8 if KVE else 3) + (n >> 1), ("e1", "o0")[n & 1], ([f"s_add_u32 m0, s68, {n*1024}"], [f"buffer_load_dwordx4 v176, {R2}, {so} offen lds"], "praw", []))
put(1, "eq", ("vm", [f"buffer_load_dword v253, v196, {WS}, s67 offen sc1"], None))
if PLAIN:
    for n in range(2):
        put(44 + SH + n, "e1", ("vm", [f"buffer_store_dwordx4 v[16:19], v3, {WS}, s{16+n} offen offset:{i*1024} sc1" for i in range(2)], None))
    put(53, "e1", ("vm", [f"buffer_load_dword v200, v202, {WS}, s16 offen"], None))
for j in range(8): put((51, 58, 52, 53, 54, 55, 56, 57)[j], "oq", ("vm", [f"buffer_load_dwordx4 {vr(220+4*j,4)}, v218, {WS}, s{18 if j < 4 else 30} offen offset:{(j & 3)*64} sc1"], None))
put(TW, "o0", ("vm", [f"buffer_load_dword v200, v173, {R0}, s19 offen"], None))
if "half" in XP: put(TW2, "o0", ("vm", [f"buffer_load_dword v200, v173, {R0}, s19 offen offset:512"], None))
put(3, "eq", ("vm", [f"buffer_load_dword v200, v198, {WS}, {sGRP} offen sc1"], None))
put(5, "oq", ("vm", [f"buffer_load_dword v200, v217, {WS}, s31 offen sc1"], None))
vitem(5, "e1", (["s_mov_b32 m0, s35"], [f"buffer_load_dwordx4 v212, {R3}, 0 offen lds"], None, []))
vitem(5, "o0", ([f"s_mov_b32 s3, {16*6144}", "s_add_u32 m0, s35, 1024"], [f"buffer_load_dwordx4 v212, {R3}, s3 offen lds"], "praw", []))
put(12, "e0a", ("salu", [f"s_lshl_b32 s21, {sCB}, 1", f"s_add_u32 s21, s21, {sW}"]))
put(12, "e1a", ("salu", [f"s_lshl_b32 s22, {sCB}, 5", "s_lshl_b32 s1, s21, 12"]))
put(TP - 1, "o1b", ("wait", "praw"))
put(TP - 1, "o1x", ("ds", ["ds_read_b64_tr_b16 v[220:221], v213", "ds_read_b64_tr_b16 v[222:223], v213 offset:256"]))
put(TP, "e0", ("ds", ["ds_read_b64_tr_b16 v[224:225], v213 offset:32", "ds_read_b64_tr_b16 v[226:227], v213 offset:288"]))
put(TP, "o0", ("salu", ["v_mfma_f32_16x16x32_bf16 v[228:231], v[8:11], v[220:223], 0", "v_mfma_f32_16x16x32_bf16 v[232:235], v[8:11], v[224:227], 0"]))
put(TP + 1, "e0", ("salu", ["s_mov_b32 exec_lo, 0xffff0000", "v_mov_b32 v228, v232", "s_mov_b32 exec_lo, -1"]))
put(TP + 1, "e1", ("vm", [f"buffer_atomic_add_f32 v228, v214, {WS}, s34 offen"], None))
put(50, "eq", ("vm", [f"buffer_load_dwordx4 v[204:207], v216, {WS}, s25 offen sc1"], None))
put(50, "oq", ("vm", [f"buffer_load_dwordx4 v[208:211], v216, {WS}, s25 offen offset:64 sc1"], "xop"))
put(53, "e0b", ("wait", "xop"))
put(53, "e0", ("salu", [x.text for _, x in capture(lambda: round_bf16(list(range(204, 212))))]))
put(53, "o0x", ("salu", [f"v_add_f32 v{204+i}, v219, v{204+i}" for i in range(8)] + [f"v_cvt_pk_bf16_f32 v{204+i}, v{204+2*i}, v{205+2*i}" for i in range(4)]))
DJ = (168, 208, 176, 224)
put(54, "e0", ("salu", [f"v_mfma_f32_16x16x32_bf16 {vr(DJ[j],4)}, v[204:207], {vr(180+4*j,4)}, 0" for j in range(4)]))
put(55, "e0", ("salu", ["s_mov_b32 exec_lo, 0xffff0000", "s_mov_b32 exec_hi, 0", "v_mov_b64 v[168:169], v[208:209]",
                        "s_mov_b32 exec_lo, 0", "s_mov_b32 exec_hi, 0x0000ffff", "v_mov_b64 v[168:169], v[176:177]",
                        "s_mov_b32 exec_hi, 0xffff0000", "v_mov_b64 v[168:169], v[224:225]", "s_mov_b64 exec, -1"]))
put(55, "e1", ("vm", [f"buffer_atomic_add_f32 v168, v215, {WS}, s28 offen", f"buffer_atomic_add_f32 v169, v215, {WS}, s29 offen"], "cat"))
put(57, "e0a", ("salu", [f"s_lshl_b32 s27, {sCB}, 8", f"s_add_u32 s27, s27, {F_Q}"]))
put(57, "o1a", ("salu", [f"s_lshl_b32 s28, {sW}, 7", "s_add_u32 s28, s28, s27"]))
put(58, "e0a", ("salu", [f"s_cmp_lt_u32 {sW}, 2", f"s_cselect_b32 s28, s28, {WS_SIZE}"]))
put(59, "e1b", ("wait", "cat"))
put(59, "e1", ("vm", [f"buffer_atomic_add v199, v198, {WS}, s28 offen sc1"], None))
for j in range(4):
    put(TP + (j >> 1), ("eq", "oq")[j & 1], ("ds", [f"ds_read_b64_tr_b16 {vr(180+4*j,2)}, v177 offset:{j*32}", f"ds_read_b64_tr_b16 {vr(182+4*j,2)}, v178 offset:{j*32}"]))
put(20, "o0", ("vm", [f"buffer_store_dwordx4 {vr(180+4*j,4)}, v3, {WS}, s36 offen offset:{j*1024} sc1" for j in (0, 1)], None))
put(21, "o0", ("vm", [f"buffer_store_dwordx4 {vr(188,4)}, v3, {WS}, s24 offen offset:2048 sc1", f"buffer_store_dwordx4 {vr(192,4)}, v3, {WS}, s37 offen offset:3072 sc1"], "pat"))
put(TARR, "o1b", ("wait", "pat"))
put(TARR + 1, "eq", ("vm", [f"buffer_atomic_add v199, v198, {WS}, s39 offen sc1"], None))
put(41, "oq", ("vm", [f"buffer_load_dword v201, v174, {WS}, s27 offen sc1"], "pchk"))
put(47, "oq", ("vm", [f"buffer_load_dword v201, v196, {WS}, s38 offen sc1"], "gchk"))
for k in range(36):
    t, hf = TR + (k >> 1), k & 1
    if k < 32:
        T2, s_ = k >> 2, k & 3
        if s_ == 0: pass
        vitem(t, ("e1", "o0")[hf], ([f"s_add_u32 s75, s{70+s_}, {T2*128}", f"s_add_u32 m0, s77, {(k % 6)*2048}"],
                                    [f"buffer_load_dwordx4 v168, {R0}, s75 offen lds", f"buffer_load_dwordx4 v169, {R0}, s75 offen offset:1024 lds"], f"ring{k}", []))
    if k >= 4:
        T2, s_ = (k - 4) >> 2, (k - 4) & 3
        if hf == 0: put(t - 1, "o1b", ("wait", f"ring{k-3}"))
        for e_ in range(2): put(t, (("eq", "e0"), ("oq", "o1x"))[hf][e_], ("ds", [f"ds_read_b128 {ar(((2*T2+e_)*4+s_)*4,4)}, v{170+e_} offset:{((k-4) % 6)*2048}"]))
for grp, t0 in ((0, 44 + SH), (1, 56 + SH)):
    for n, x in enumerate(win_items(1, grp, lin_slot(slotA(4*grp)), f"z2g{grp}")): vitem(t0 + n, "o0", x)
if True:
    for n, x in enumerate(win_items(1, 2, lin_slot(slotA(8)), "z2g2")): vitem(60 + SH + (n >> 1), ("e1", "o0")[n & 1], x)
for n in range(8):
    pre = ([f"s_lshl_b32 s76, {sW}, 12"] if n == 0 else []) + (["s_and_b32 s74, s1, 0xffff", "s_add_u32 s74, s74, s69"] if n & 1 == 0 else [])
    post = ["s_add_u32 s1, s1, 16384", "s_add_u32 s76, s76, 16384"] if n & 1 else []
    vitem(48 + SH + n, "o0", (pre + ["s_mov_b32 m0, s76"], [f"buffer_load_dwordx4 v3, {WS}, s74 offen offset:{(2*(n & 1) + i)*1024} sc1 lds" for i in range(2)], "wo", post))
for n in range(2): put(58 + n, "eq", ("vm", [f"buffer_load_dwordx2 {vr(8+2*j,2)}, v172, {R1}, 0 offen offset:{j*32}" for j in (2*n, 2*n + 1)], None))
if "noz1t" not in XP:
    for n in range(4):
        put(48 + 3*n + (n > 1), "e1", ("vm", [f"buffer_load_dword v200, v175, {WS}, s23 offen sc1"], None))
        put(48 + 3*n + (n > 1), "o1a", ("salu", ["s_add_u32 s23, s23, 1792"]))
    put(46, "o1a", ("salu", [f"s_and_b32 s23, {sRB}, 3", "s_lshl_b32 s23, s23, 2"]))
    put(47, "e0a", ("salu", [f"s_add_u32 s23, s23, {sW}", f"s_lshl_b32 s3, {sCB}, 5"]))
    put(47, "e1a", ("salu", ["s_add_u32 s23, s23, s3", f"s_mul_i32 s23, s23, {SLOT}"]))
    put(47, "o1a", ("salu", [f"s_add_u32 s23, s23, {WS_WINF}"]))
if "noextra" in XP: raise SystemExit("noextra unsupported")
syncs = {3: "kvg1", 7: "kvg7", 27: None, 31: "kvg16", 35: None, 48 + SH: None, 60: "wo"}
last_m0 = [None]
def slot(t, k):
    for x in plan.pop((t, k), []):
        if x[0] == "salu":
            for p in x[1]:
                a(p)
                if " m0," in p: last_m0[0] = p
        elif x[0] == "vm":
            if len(x) > 3 and x[3] is not None and x[3] is not last_m0[0]:
                a(x[3]); last_m0[0] = x[3]
            for q_ in x[1]: vm.op(q_, x[2])
        elif x[0] == "ds":
            for q_ in x[1]: a(q_)
        else: vm.wait(x[1])
for u in range(128):
    t, e = u >> 1, u & 1
    S = Sb(u)
    ex = [f"v_exp_f32 v{S+i}, v{S+i}" for i in range(16)]
    pf = "eo"[e]
    if u + 1 < 128:
        t1, e1 = (u + 1) >> 1, (u + 1) & 1
        a(f"v_mfma_f32_32x32x16_bf16 {vr(Sb(u+1),16)}, {Kb(t1)}, {Q(e1)}, {vr(C(e1),16)}")
    a("s_waitcnt lgkmcnt(0)")
    if e == 1 and t + 2 in syncs:
        if syncs[t + 2]: vm.wait(syncs[t + 2])
        a("s_barrier")
    if "tst" in XP and e == 0 and t in (2, 4, 8, 11, 14, 17, 20, 23, 26, 28, 30, 34, 38, 42, 46, 50, 54, 58, 61): stamp(f"t{t}")
    if u == 86:
        vm.wait("pchk")
        a("v_cmp_gt_u32 vcc, 32, v201\ns_nop 1\ns_and_b32 s3, vcc_lo, 15\ns_cbranch_scc1 L_pwait\nL_pok:")
    if u == 100:
        vm.wait("gchk")
        a("v_cmp_gt_u32 vcc, 32, v201\ns_nop 1\ns_cmp_lg_u32 vcc_lo, 0\ns_cbranch_scc1 L_gwait\nL_gok:")
    slot(t, pf + "q")
    for x in ex[0:3]: a(x)
    Sp, tp, ep = Sb(u - 1), (u - 1) >> 1, (u - 1) & 1
    if u > 0: a(f"v_smfmac_f32_32x32x32_bf16 {vr(O(ep),16)}, {Vb(tp,0)}, {vr(Sp,8)}, v30")
    slot(t, pf + "0b")
    if e == 0:
        slot(t, "e0a"); a(f"ds_read_b128 {Vb(t,0)}, {vaddr(t,0)}"); slot(t, "e0")
    else:
        slot(t, "o0"); slot(t, "o0a"); slot(t, "o0x")
    for x in ex[3:7]: a(x)
    if u > 0: a(f"v_smfmac_f32_32x32x32_bf16 {vr(O(ep),16)}, {Vb(tp,1)}, {vr(Sp+8,8)}, v30")
    slot(t, pf + "1b")
    if e == 0:
        slot(t, "e1"); slot(t, "e1x"); slot(t, "e1a"); a(f"ds_read_b128 {Vb(t,1)}, {vaddr(t,1)}")
    else:
        slot(t, "o1a")
        if t + 2 < 64: a(f"ds_read_b128 {Kb(t+2)}, {kaddr(t+2)}")
        slot(t, "o1x")
    for x in ex[7:16]: a(x)
assert not plan, plan.keys()
for m in range(2): a(f"v_smfmac_f32_32x32x32_bf16 {vr(O(1),16)}, {Vb(63,m)}, {vr(Sb(127)+8*m,8)}, v30")
if "clk" in XP: a("s_memtime s[100:101]\ns_memrealtime s[78:79]\ns_waitcnt lgkmcnt(0)\ns_sub_u32 s100, s100, s96\ns_sub_u32 s101, s78, s98")
stamp("attn")
Lfb, Lok = a.label("fb"), a.label("ok")
def getl():
    for e in range(2): a(f"v_mov_b32 v{4+2*e}, v{O(e)+8}\nv_mov_b32 v{5+2*e}, v{O(e)+8}")
    for e in range(2): a(f"v_permlane32_swap_b32 v{4+2*e}, v{5+2*e}")
a(f"""
s_add_u32 s3, {sXCC}, 1
v_cmp_ne_u32 vcc, s3, v253
s_lshl_b32 s65, {sCB}, 2
v_add_u32 v254, s65, v198
v_lshlrev_b32 v255, 2, v0
v_mov_b32 v29, v174
s_and_b32 s3, vcc_lo, 0xff
s_cselect_b32 {sFAST}, 0, {0 if FORCE_SLOW else 1}
v_mov_b32 v32, {fbits(2.0**40 if not FORCE_FB else -1.0)}
""")
if "probe" in XP:
    a(f"s_cmp_eq_u32 {sFAST}, 0\ns_cbranch_scc0 L_pr\ns_mov_b32 s3, 12\nL_pr0:\ns_sleep 127\ns_sub_u32 s3, s3, 1\ns_cmp_lg_u32 s3, 0\ns_cbranch_scc1 L_pr0\nL_pr:")
getl()
a(f"v_add_f32 v5, v4, v6\nv_cmp_nlt_f32 vcc, v5, v32\ns_cbranch_vccnz {Lfb}\n{Lok}:")
for e in range(2): a(f"v_rcp_f32 v{4+2*e}, v{4+2*e}")
for e in range(2):
    for i in range(4): a(f"v_pk_mul_f32 {vr(O(e)+2*i,2)}, {vr(O(e)+2*i,2)}, {vr(4+2*e,2)} op_sel_hi:[1,0]")
for e in range(2):
    for i in range(4): a(f"v_cvt_pk_bf16_f32 v{64+4*e+i}, v{O(e)+2*i}, v{O(e)+2*i+1}")
both_data(lambda sc: [vm.op(f"buffer_store_dwordx4 {vr(64+4*e,4)}, v3, {WS}, s16 offen offset:{e*1024}{sc}") for e in range(2)])
B3 = lambda T, j: 144 + (T % 3)*16 + 4*j
rd3 = lambda T, j: a(f"ds_read_b128 {vr(B3(T, j),4)}, v3 offset:{L_WO + T*4096 + j*1024}")
for n in range(8): rd3(n >> 2, n & 3)
hop_signal(1)
stamp("opub")
SL = (70, 71, 72, 73, 76, 0, 1)
def block_offsets(base, size):
    for b in range(7): a(f"s_add_u32 s3, {sCB}, {1 + b}\ns_and_b32 s3, s3, 7\ns_mul_i32 s3, s3, {size}\ns_add_u32 s{SL[b]}, s3, {base}")
def frag_load(T, tag):
    vm.op(f"buffer_load_dwordx4 {vr(64+4*T,4)}, v3, {WS}, s{SL[T//2 - 1]} offen offset:{(T & 1)*1024} sc1", f"{tag}{T}")
AH = 8
def bef3(T):
    if T == 2:
        round_bf16(list(range(220, 252)))
        for i in range(16): a(f"v_add_f32 v{236+i}, 1.0, v{236+i}")
        round_bf16(list(range(236, 252)))
        for i in range(8): a(f"v_lshlrev_b32 v{32+2*i}, 16, v{8+i}\nv_and_b32 v{33+2*i}, 0xffff0000, v{8+i}")
        a(f"""
v_mov_b32 v31, v218
s_lshl_b32 s77, s55, 1
s_add_u32 s77, s77, {WS_X}
s_lshr_b32 s68, s55, 4
s_lshl_b32 s3, {sCB}, 7
s_add_u32 s69, s68, s3
s_add_u32 s67, s69, {WS_ST1}
v_lshlrev_b32 v6, 3, v1
""")
        block_offsets("s77", 2048)
        hop_wait(1)
        stamp("C")
        for t_ in range(2, 2 + AH): frag_load(t_, "o")
def aft3(T, j):
    if j == 0 and T >= 2 and T + AH < 16: frag_load(T + AH, "o")
    if j == 0 and T == 12: vm.op(f"buffer_load_dword v252, v29, {WS}, s27 offen sc1")
deeploop(16, 4, rd3,
         lambda T, j: a(f"v_mfma_f32_16x16x32_bf16 {vr(128+4*j,4)}, {vr(B3(T, j),4)}, {vr(64+4*T,4)}, {'0' if T == 0 else vr(128+4*j,4)}"),
         lambda T: f"o{T}" if T >= 2 else None, before=bef3, after=aft3)
stamp("p3mm")
for i in range(8): a(f"v_pk_fma_f32 {vr(32+2*i,2)}, {vr(128+2*i,2)}, {vr(220+2*i,2)}, {vr(32+2*i,2)}")
for i in range(8): a(f"v_cvt_pk_bf16_f32 v{8+i}, v{32+2*i}, v{33+2*i}")
for i in range(8): a(f"v_lshlrev_b32 v{32+2*i}, 16, v{8+i}\nv_and_b32 v{33+2*i}, 0xffff0000, v{8+i}")
for i in range(8): a(f"v_pk_mul_f32 {vr(236+2*i,2)}, {vr(236+2*i,2)}, {vr(32+2*i,2)}")
for i in range(8): a(f"v_cvt_pk_bf16_f32 v{64+i}, v{236+2*i}, v{237+2*i}")
both_data(lambda sc: [vm.op(f"buffer_store_dwordx4 {vr(64+4*p,4)}, v3, {WS}, s17 offen offset:{p*1024}{sc}") for p in range(2)])
a("v_pk_mul_f32 v[88:89], v[32:33], v[32:33]\nv_pk_add_f32 v[90:91], v[32:33], v[34:35]\nv_pk_mul_f32 v[94:95], v[34:35], v[34:35]\nv_pk_add_f32 v[96:97], v[36:37], v[38:39]")
for i in range(2, 8): a(f"v_pk_fma_f32 {vr(88 + 6*(i & 1),2)}, {vr(32+2*i,2)}, {vr(32+2*i,2)}, {vr(88 + 6*(i & 1),2)}")
for i in range(4, 8): a(f"v_pk_add_f32 {vr(90 + 6*(i & 1),2)}, {vr(90 + 6*(i & 1),2)}, {vr(32+2*i,2)}")
a("v_pk_add_f32 v[88:89], v[88:89], v[94:95]\nv_pk_add_f32 v[90:91], v[90:91], v[96:97]\nv_add_f32 v93, v88, v89\nv_add_f32 v92, v90, v91")
xgroup_sum2(92, 94, 93, 95)
a("s_mov_b64 exec, 0xffff")
both_data(lambda sc: vm.op(f"buffer_store_dwordx2 v[92:93], v6, {WS}, s67 offen{sc}"))
a(f"""
s_mov_b64 exec, -1
v_add_u32 v25, 0xe000, v3
v_add_u32 v26, 0xe000, v25
v_and_b32 v4, 7, v1
v_lshlrev_b32 v4, 7, v4
v_lshl_add_u32 v30, v2, 5, v4
v_lshlrev_b32 v4, 8, v2
v_lshl_add_u32 v27, v1, 3, v4
""")
stamp("p3ep")
hop_signal(2)
stamp("ypub")
WB = (32, 204)
def rdl(dst, addr):
    w_, off = divmod(addr, 0xe000)
    a(f"ds_read_b128 {vr(dst,4)}, v{(3, 25, 26)[w_]} offset:{off}")
a(f"""
s_barrier
s_and_b32 s3, {sW}, 1
s_mul_i32 s66, s3, 3584
s_lshl_b32 s3, s3, 10
s_add_u32 m0, s3, {L_SM}
s_mul_i32 s3, {sCB}, 448
s_add_u32 s66, s66, s3
s_add_u32 s66, s66, {WS_C12}
v_add_u32 v6, {7168 - 448}, v3
v_cmp_gt_u32 vcc, 28, v0
v_cndmask_b32 v6, v6, v3, vcc
v_cmp_gt_u32 vcc, 32, v252
s_nop 1
s_and_b32 s3, vcc_lo, 3
s_cbranch_scc1 L_qwait
L_qok:
""")
vm.op(f"buffer_load_dwordx4 v6, {WS}, s66 offen sc1 lds")
for x in win_items(1, 3, [f"s_mul_i32 s75, {sW}, {SLOT}", f"s_sub_u32 s75, s75, {SLOT}", f"s_cmp_eq_u32 {sW}, 0", f"s_cselect_b32 s75, {slotA(12)}, s75"], "z2g3"): emit_item(x)
for j in range(7): rdl(WB[0] + 4*j, slot_z2(0) + j*1024)
a(f"v_add_u32 v29, {L_SM}, v31\nv_lshlrev_b32 v24, 2, v1\nv_add_u32 v24, {L_SM + 1024}, v24\ns_add_u32 s66, s68, {WS_ST1}")
def d_wait():
    for b in SL: a(f"s_add_u32 s{b}, s{b}, 16384")
    hop_wait(2)
    stamp("D")
    vm.op(f"buffer_load_dwordx2 v[172:173], v27, {WS}, s66 offen sc1")
    vm.op(f"buffer_load_dwordx2 v[174:175], v27, {WS}, s66 offen offset:128 sc1", "st1")
    for t_ in range(2, 2 + AH): frag_load(t_, "y")
    a(f"v_lshlrev_b32 v4, 7, v0\nv_mov_b32 v27, {OOB}\nv_cmp_gt_u32 vcc, 14, v0\nv_cndmask_b32 v27, v27, v4, vcc")
    vm.wait("st1")
    a("v_pk_add_f32 v[172:173], v[172:173], v[174:175]")
    xgroup_sum2(172, 174, 173, 175)
    finish_stats([(172, 173, 62, 28, None)], 512)
    a(f"v_mul_f32 v62, v62, v28\nv_mov_b32 v60, {fbits(-2*math.log2(math.e)*math.sqrt(2/math.pi))}\nv_mov_b32 v61, v60")
    for i in range(4): a(f"ds_bpermute_b32 v{20+i}, v31, v28 offset:{4*i}\nds_bpermute_b32 v{16+i}, v31, v62 offset:{4*i}")
CP = [232, 234, 236, 238, 240, 242, 244]
z1items = {g_: win_items(0, g_, lin_slot(slotB(3) if g_ == 0 else slotA(4*(g_ - 1))), f"z1g{g_}") for g_ in range(4)}
def bef(T):
    if T == 2: d_wait()
    if T == 11: a("s_waitcnt lgkmcnt(0)\ns_barrier")
    if T >= 2: vm.wait(f"y{T}")
def aft(T, j):
    if j == 0 and T >= 2 and T + AH < 16: frag_load(T + AH, "y")
    if j == 3 and T in (8, 10, 12, 14): emit_item(z1items[0][(T - 8) // 2])
    if j == 3 and T in (9, 11, 13, 15):
        vm.op(f"buffer_load_dword v252, v27, {WS}, s26 offen sc1"); a("s_add_u32 s26, s26, 1792")
fragloop(16, 7, lambda T, j: rdl(WB[T & 1] + 4*j, slot_z2(T) + j*1024),
         lambda T, j: a(f"v_mfma_f32_16x16x32_bf16 {vr(128+4*j,4)}, {vr(64+4*T,4)}, {vr(WB[T & 1]+4*j,4)}, {'0' if T == 0 else vr(128+4*j,4)}"),
         before=bef, after=aft, preissued=True)
for j in range(7): a(f"ds_read2_b32 {vr(CP[j],2)}, v24 offset0:{j*16} offset1:{j*16 + 112}")
stamp("z2mm")
a(f"s_mov_b32 s64, {fbits(-2*math.log2(math.e)*math.sqrt(2/math.pi)*0.044715)}\ns_mov_b32 s65, s64\ns_mov_b32 s66, 1.0\ns_mov_b32 s67, 1.0\ns_waitcnt lgkmcnt(0)")
def gelu(acc, tmp, mid=None, mid2=None, mid0=None):
    P = range(14)
    for i in P: a(f"v_pk_mul_f32 {vr(tmp+2*i,2)}, {vr(acc+2*i,2)}, {vr(acc+2*i,2)}")
    for i in P: a(f"v_pk_fma_f32 {vr(tmp+2*i,2)}, {vr(tmp+2*i,2)}, s[64:65], v[60:61]")
    for i in P: a(f"v_pk_mul_f32 {vr(tmp+2*i,2)}, {vr(tmp+2*i,2)}, {vr(acc+2*i,2)}")
    if mid0: mid0()
    for i in range(28): a(f"v_exp_f32 v{tmp+i}, v{tmp+i}")
    if mid: mid()
    for i in P: a(f"v_pk_add_f32 {vr(tmp+2*i,2)}, {vr(tmp+2*i,2)}, s[66:67]")
    for i in range(28): a(f"v_rcp_f32 v{tmp+i}, v{tmp+i}")
    if mid2: mid2()
    for i in P: a(f"v_pk_mul_f32 {vr(acc+2*i,2)}, {vr(acc+2*i,2)}, {vr(tmp+2*i,2)}")
for i in range(14): a(f"v_pk_fma_f32 {vr(32+2*i,2)}, {vr(16+2*(i & 1),2)}, {vr(CP[i >> 1],2)}, {vr(CP[i >> 1],2)} op_sel:[0,0,1] op_sel_hi:[1,0,1]")
for i in range(14): a(f"v_pk_fma_f32 {vr(128+2*i,2)}, {vr(128+2*i,2)}, {vr(20+2*(i & 1),2)}, {vr(32+2*i,2)}")
zq = z1items[1] + z1items[2] + z1items[3]
body = capture(lambda: gelu(128, 32))
step = len(body) // 12
for i, x in enumerate(body):
    if i % step == 0 and zq: emit_item(zq.pop(0))
    a.items.append(x)
assert not zq
for j in range(7): rdl(WB[0] + 4*j, slot_z1(0) + j*1024) if False else None
for h in range(2):
    a(f"v_pk_add_f32 {vr(156+2*h,2)}, {vr(128+2*h,2)}, {vr(132+2*h,2)}\nv_pk_mul_f32 {vr(160+2*h,2)}, {vr(128+2*h,2)}, {vr(128+2*h,2)}")
for j in range(1, 7):
    for h in range(2):
        if j > 1: a(f"v_pk_add_f32 {vr(156+2*h,2)}, {vr(156+2*h,2)}, {vr(128+4*j+2*h,2)}")
        a(f"v_pk_fma_f32 {vr(160+2*h,2)}, {vr(128+4*j+2*h,2)}, {vr(128+4*j+2*h,2)}, {vr(160+2*h,2)}")
dppsum(range(156, 164), (8, 4, 2, 1))
a(f"s_and_b32 s71, {sEP}, 0xff\ns_movk_i32 s3, 0xff\nv_mov_b32 v4, s71")
for i in range(8): a(f"v_bfi_b32 v{156+i}, s3, v4, v{156+i}")
a(f"s_add_u32 s70, s69, {WS_ST2}\nv_lshlrev_b32 v6, 5, v2\ns_mov_b32 exec_lo, 0x00010001\ns_mov_b32 exec_hi, 0x00010001")
both(lambda sc: (vm.op(f"buffer_store_dwordx4 v[156:159], v6, {WS}, s70 offen{sc}"), vm.op(f"buffer_store_dwordx4 v[160:163], v6, {WS}, s70 offen offset:16{sc}", "sst")))
a("s_mov_b64 exec, -1")
vm.wait("z1g0")
a("s_barrier")
stamp("spub")
nwo = [0]
def wout_setup(n0):
    a(f"s_mul_i32 s3, {sCB}, {28*4096}\ns_lshl_b32 s76, {sW}, 10\ns_add_u32 s77, s3, s76\ns_add_u32 s77, s77, {WS_WOUTF}\ns_mul_i32 s75, {sCB}, {3*4096}")
def wout_one(tag):
    n = nwo[0]; nwo[0] += 1
    a("s_mov_b32 m0, s76\ns_add_u32 s74, s75, s77" if n < 24 else f"s_mov_b32 m0, s76\ns_add_u32 s74, s77, {n*4096}")
    vm.op(f"buffer_load_dwordx4 v3, {WS}, s74 offen sc1 lds", tag)
    a("s_add_u32 s76, s76, 4096")
    if n < 23: a(f"s_add_u32 s75, s75, 4096\ns_cmp_eq_u32 s75, {24*4096}\ns_cselect_b32 s75, 0, s75")
def z2_publish():
    a(f"s_add_u32 s70, s68, {WS_ST2}")
    chk = "\n".join(f"v_xor_b32 v{164+i}, s71, v{164+i}" for i in range(8))
    chk += "\nv_or3_b32 v4, v164, v165, v166\nv_or3_b32 v5, v167, v168, v169\nv_or3_b32 v4, v4, v170, v171\nv_or_b32 v4, v4, v5\nv_and_b32 v4, 0xff, v4\nv_cmp_ne_u32 vcc, 0, v4"
    poll(f"buffer_load_dwordx4 v[164:167], v30, {WS}, s70 offen sc1\nbuffer_load_dwordx4 v[168:171], v30, {WS}, s70 offen offset:16 sc1", chk, "-1")
    stamp("S")
    srd(R1, P_BSP, 4096)
    a("s_lshr_b32 s3, s55, 9\nv_lshlrev_b32 v4, 1, v1")
    vm.op(f"buffer_load_ushort v16, v4, {R1}, s3 offen", "bsp")
    a(f"""
s_lshl_b32 s70, {sCB}, 6
s_lshl_b32 s3, {sRB}, 1
s_add_u32 s70, s70, s3
s_lshr_b32 s3, {sW}, 1
s_add_u32 s70, s70, s3
s_mul_i32 s70, s70, 7168
s_and_b32 s3, {sW}, 1
s_lshl_b32 s3, s3, 9
s_add_u32 s70, s70, s3
s_add_u32 s70, s70, {WS_Z2}
s_add_u32 s71, s70, 4096
v_and_b32 v4, 1, v2
v_lshlrev_b32 v4, 10, v4
v_lshrrev_b32 v5, 1, v2
v_lshl_add_u32 v4, v5, 8, v4
v_lshl_add_u32 v6, v1, 4, v4
""")
    dppsum(range(164, 172), (4, 2, 1))
    finish_stats([(164+i, 168+i, 156+i, 160+i, None) for i in range(4)], 896)
    for h in range(2): a(f"v_pk_mul_f32 {vr(156+2*h,2)}, {vr(156+2*h,2)}, {vr(160+2*h,2)}")
    for i in range(14): a(f"v_pk_fma_f32 {vr(128+2*i,2)}, {vr(128+2*i,2)}, {vr(160+2*(i & 1),2)}, {vr(156+2*(i & 1),2)}")
    for i in range(14): a(f"v_cvt_pk_bf16_f32 v{232+i}, v{128+2*i}, v{129+2*i}")
    a("v_mov_b32 v246, v244\nv_mov_b32 v247, v245")
    for p in range(4): a(f"v_permlane16_swap_b32 v{232+4*p}, v{234+4*p}\nv_permlane16_swap_b32 v{233+4*p}, v{235+4*p}")
    vm.op(f"buffer_store_dwordx4 v[232:235], v6, {WS}, s70 offen sc1")
    vm.op(f"buffer_store_dwordx4 v[236:239], v6, {WS}, s70 offen offset:2048 sc1")
    vm.op(f"buffer_store_dwordx4 v[240:243], v6, {WS}, s71 offen sc1")
    a("s_mov_b32 exec_lo, 0x0000ffff\ns_mov_b32 exec_hi, 0x0000ffff")
    vm.op(f"buffer_store_dwordx4 v[244:247], v6, {WS}, s71 offen offset:2048 sc1", "zst")
    a(f"""
s_mov_b64 exec, -1
s_lshl_b32 s70, {sRB}, 3
s_add_u32 s70, s70, {sCB}
s_lshl_b32 s70, s70, 9
s_lshl_b32 s3, {sW}, 7
s_add_u32 s70, s70, s3
s_add_u32 s70, s70, {F_E}
""")
    stamp("zst")
def bef(T):
    if T == TS: z2_publish()
    if T == 3:
        if TS > 3: vm.wait("z1g3")
        a("s_barrier")
    if T == 4: a("s_waitcnt lgkmcnt(0)\ns_barrier"); wout_setup(0)
    if T == TE:
        vm.wait("zst"); vm.op(f"buffer_store_dword v17, v63, {WS}, s70 offen sc1")
        stamp("zpub")
    if T == TA:
        a(f"s_lshl_b32 s70, {sW}, 15\ns_lshl_b32 s3, {sCB}, 9\ns_add_u32 s70, s70, s3\ns_add_u32 s70, s70, {F_E}\nv_lshrrev_b32 v21, 2, v0\nv_lshlrev_b32 v21, 12, v21\nv_and_b32 v5, 3, v0\nv_lshl_add_u32 v21, v5, 7, v21")
        a("s_mov_b32 exec_hi, 0"); vm.op(f"buffer_load_dword v22, v21, {WS}, s70 offen sc1", "echk"); a("s_mov_b64 exec, -1")
def aft(T, j):
    if T >= max(4, TE) and j in (1, 4) and nwo[0] < 16: wout_one("wout0")
TA = int(([x[3:] for x in XP if x.startswith('ta:')] or ['14'])[0])
TS, TE, TZ = (int(x) for x in ([x[3:] for x in XP if x.startswith("ts:")] or ["2,5,0"])[0].split(","))
a(f"v_mov_b32 v17, 1\nv_mov_b32 v63, {OOB}\nv_cmp_eq_u32 vcc, 0, v0\nv_cndmask_b32 v63, v63, v0, vcc")
fragloop(16, 7, lambda T, j: rdl(WB[T & 1] + 4*j, slot_z1(T) + j*1024),
         lambda T, j: a(f"v_mfma_f32_16x16x32_bf16 {vr(176+4*j,4)}, {vr(WB[T & 1]+4*j,4)}, {vr(64+4*T,4)}, {'0' if T == 0 else vr(176+4*j,4)}"), before=bef, after=aft)
for j in range(7): a(f"ds_read_b128 {vr(204+4*j,4)}, v29 offset:{j*64}\nds_read_b128 {vr(128+4*j,4)}, v29 offset:{448 + j*64}")
a("s_barrier")
stamp("z1mm")
a(f"s_lshl_b32 s72, {sCB}, 2\ns_add_u32 s72, s72, {sW}\ns_mul_i32 s72, s72, {16*7168}\ns_add_u32 s72, s72, {WS_Z2}\ns_add_u32 s73, s72, 4096")
ZSEQ = [(T, j) for T in range(16) for j in range(4)] + [(T, j) for T in range(16) for j in range(4, 7)]
ZR = lambda n: (64, 92, 32)[(n % 21) // 7] + 4*(n % 7)
def ldz(n):
    T, j = ZSEQ[n]
    vm.op(f"buffer_load_dwordx4 {vr(ZR(n),4)}, v3, {WS}, s{72 + (j >> 2)} offen offset:{(j & 3)*1024}{'' if 'zpl' in XP else ' sc1'}", f"z{n}")
    if j in (3, 6): a(f"s_add_u32 s{72 + (j >> 2)}, s{72 + (j >> 2)}, 7168")
for s_ in range(1, 4):
    a(f"s_add_u32 s3, {sW}, {s_}\ns_and_b32 s3, s3, 3\ns_mul_i32 s3, s3, {12*1024}\ns_add_u32 s3, s3, {L_RED + (s_-1)*4096}\nv_add_u32 v{16+s_}, s3, v3")
a(f"s_mul_i32 s3, {sW}, {12*1024}\ns_add_u32 s3, s3, {L_RED}\nv_add_u32 v20, s3, v3\nv_lshlrev_b32 v16, 16, v16")
WPRE = int(([x[3:] for x in XP if x.startswith('wp:')] or ['22'])[0])
while nwo[0] < WPRE: wout_one("wout0")
vm.wait("echk")
a("v_cmp_gt_u32 vcc, 1, v22\ns_nop 1\ns_cmp_eq_u32 vcc_lo, 0\ns_cbranch_scc1 L_eok")
poll(f"buffer_load_dword v4, v21, {WS}, s70 offen sc1", "v_cmp_gt_u32 vcc, 1, v4", "0xffffffff")
a("L_eok:")
stamp("E")
for n in range(7): ldz(n)
a("s_waitcnt lgkmcnt(0)")
for i in range(14): a(f"v_pk_fma_f32 {vr(128+2*i,2)}, {vr(204+2*i,2)}, v[62:63], {vr(128+2*i,2)} op_sel_hi:[1,0,1]")
for i in range(14): a(f"v_pk_fma_f32 {vr(176+2*i,2)}, {vr(176+2*i,2)}, v[28:29], {vr(128+2*i,2)} op_sel_hi:[1,0,1]")
gelu(176, 204, mid=lambda: [ldz(n) for n in range(7, 14)])
for i in range(14): a(f"v_cvt_pk_bf16_f32 v{240+i}, v{176+2*i}, v{177+2*i}")
Z1P = list(range(240, 254))
stamp("gelu1")
ACC = lambda s_, j: 128 + (s_*7 + j)*4
def p5(n, s_):
    T, j = ZSEQ[n]
    d = vr(ACC(s_, j), 4)
    if "halfmm" in XP and s_ >= 2: return
    a(f"v_mfma_f32_16x16x32_bf16 {d}, {vr(ZR(n),4)}, {ar((T*4+s_)*4,4)}, {'0' if T == 0 else d}")
red_w = lambda s_, j: a(f"ds_write_b128 v{16+s_}, {vr(ACC(s_, j),4)} offset:{(j & 3)*1024}")
red_r = lambda s_, j: a(f"ds_read_b128 {vr(ACC(s_, j),4)}, v20 offset:{(s_-1)*4096 + (j & 3)*1024}")
UP = lambda j: (120, 122, 124, 126, 60, 62, 24)[j]
def u_frag(j):
    A0, A1, A2, A3 = (ACC(s_, j) for s_ in range(4))
    for h in (0, 2): a(f"v_pk_add_f32 {vr(A1+h,2)}, {vr(A1+h,2)}, {vr(A2+h,2)}\nv_pk_add_f32 {vr(A0+h,2)}, {vr(A0+h,2)}, {vr(A3+h,2)}")
    for h in (0, 1): a(f"v_lshlrev_b32 v{A2+2*h}, 16, v{Z1P[2*j+h]}\nv_and_b32 v{A2+2*h+1}, 0xffff0000, v{Z1P[2*j+h]}")
    for h in (0, 2): a(f"v_pk_add_f32 {vr(A1+h,2)}, {vr(A1+h,2)}, v[16:17] op_sel_hi:[1,0]")
    for h in (0, 2): a(f"v_pk_add_f32 {vr(A0+h,2)}, {vr(A0+h,2)}, {vr(A1+h,2)}")
    for h in (0, 2): a(f"v_pk_mul_f32 {vr(A0+h,2)}, {vr(A0+h,2)}, {vr(A2+h,2)}")
    for h in (0, 1): a(f"v_cvt_pk_bf16_f32 v{UP(j)+h}, v{A0+2*h}, v{A0+2*h+1}")
a(f"""
s_lshl_b32 s68, s55, 1
s_add_u32 s68, s68, {WS_X + (0x800000 if "usep" in XP else 0)}
s_mul_i32 s64, {sCB}, 3072
s_add_u32 s64, s64, s68
s_lshl_b32 s65, {sCB}, 9
s_add_u32 s65, s65, s68
s_add_u32 s65, s65, {24*1024}
v_lshrrev_b32 v6, 5, v0
v_lshlrev_b32 v6, 8, v6
v_lshl_add_u32 v6, v1, 4, v6
""")
side = capture(lambda: [u_frag(j) for j in range(4)])
ust = both if 'upl' in XP else (lambda f: f(' sc1'))
NDEF = 103
ZD = int(([x[3:] for x in XP if x.startswith('zd:')] or ['14'])[0]); nld = [14]
for n in range(112):
    m = n - 64
    if m in (14, 28) and "nobar" in XP: a("s_waitcnt lgkmcnt(0)")
    elif m == 14: a("s_waitcnt lgkmcnt(0)\ns_barrier")
    elif m == 28: a("s_waitcnt lgkmcnt(0)\ns_barrier")
    if n in (32, 64, 80, 96) and "p5s" in XP: stamp(f"n{n}")
    vm.wait(f"z{n}")
    for s_ in ((0, 1, 2, 3) if n < NDEF else (1, 2, 3)):
        p5(n, s_)
        if s_ == 0 and nld[0] < 112 and nld[0] <= n + ZD: ldz(nld[0]); nld[0] += 1
        if s_ == 3 and nld[0] < 112 and nld[0] <= n + ZD: ldz(nld[0]); nld[0] += 1
        if s_ == 2 and n % 4 == 1 and nwo[0] < 28: wout_one("wout0")
        if s_ == 1 and 1 <= m < 13: red_w(1 + (m - 1) // 4, (m - 1) % 4)
        if s_ == 1 and 14 <= m < 26: red_r(1 + (m - 14) % 3, (m - 14) // 3)
        if s_ >= 1 and m >= 28:
            for _ in range(2):
                if side: a.items.append(side.pop(0))
    if m == 40:
        assert not side
        ust(lambda sc: [vm.op(f"buffer_store_dwordx4 {vr(120+4*p,4)}, v3, {WS}, s64 offen offset:{p*1024}{sc}") for p in range(2)])
stamp("p5mm")
for k in range(9):
    red_w(1 + k // 3, 4 + k % 3)
    p5(NDEF + k, 0)
a("s_waitcnt lgkmcnt(0)\ns_barrier")
stamp("red")
for j in range(4, 7):
    for s_ in range(1, 4): red_r(s_, j)
for j in range(4, 7):
    a(f"s_waitcnt lgkmcnt({18 - 3*j})")
    u_frag(j)
    if j == 5: ust(lambda sc: vm.op(f"buffer_store_dwordx4 v[60:63], v3, {WS}, s64 offen offset:2048{sc}"))
a("v_mov_b32 v26, v24\nv_mov_b32 v27, v25\nv_permlane16_swap_b32 v24, v26\nv_permlane16_swap_b32 v25, v27\ns_mov_b32 exec_lo, 0x0000ffff\ns_mov_b32 exec_hi, 0x0000ffff")
ust(lambda sc: vm.op(f"buffer_store_dwordx4 v[24:27], v6, {WS}, s65 offen{sc}"))
a("s_mov_b64 exec, -1")
hop_signal(3)
a("v_add_u32 v25, 0xe000, v3\nv_add_u32 v26, 0xe000, v25")
stamp("upub")
a("s_barrier")
B6 = lambda n, j: (160, 176, 232)[n % 3] + 4*j
rd6 = lambda n, j: rdl(B6(n, j), L_WOUT + n*4096 + j*1024)
for n in range(8): rd6(n >> 2, n & 3)
AU = int(([x[3:] for x in XP if x.startswith('au:')] or ['8'])[0])
UR = lambda n: (120, 124, 60)[n] if n < 3 else 32 + 4*n
def uload(n):
    so, off = (f"s{SL[n//3 - 1]}", n % 3) if n < 24 else ("s64", n - 24)
    vm.op(f"buffer_load_dwordx4 {vr(UR(n),4)}, v3, {WS}, {so} offen offset:{off*1024} sc1", f"u{n}")
def bef(n):
    if n == 3:
        for i in range(8): a(f"v_lshlrev_b32 v{192+2*i}, 16, v{8+i}\nv_and_b32 v{193+2*i}, 0xffff0000, v{8+i}")
        srd(R1, P_OUT, 2048 * 1024, "s55")
        a(f"v_lshlrev_b32 v7, 10, v1\nv_and_b32 v5, 1, v2\nv_lshl_add_u32 v7, v5, 5, v7\nv_lshrrev_b32 v5, 1, v2\nv_lshl_add_u32 v7, v5, 4, v7\ns_lshl_b32 s75, {sCB}, 7")
        block_offsets("s68", 3072)
        a(f"s_add_u32 s64, s68, {24*1024}\ns_lshl_b32 s74, {sCB}, 8\ns_add_u32 s74, s74, {WS_G2 + 3*2048}")
        hop_wait(3)
        stamp("F")
        for n_ in range(3, 3 + AU): uload(n_)
def aft6(n, j):
    if j == 0 and n >= 3 and n + AU < 28: uload(n + AU)
    if j == 0 and 28 <= n + AU < 32: vm.op(f"buffer_load_dwordx4 {vr(216+4*(n+AU-28),4)}, v31, {WS}, s74 offen offset:{(n+AU-28)*64} sc1", "gb")
deeploop(28, 4, rd6,
         lambda n, j: a(f"v_mfma_f32_16x16x32_bf16 {vr(144+4*j,4)}, {vr(B6(n, j),4)}, {vr(UR(n),4)}, {'0' if n == 0 else vr(144+4*j,4)}"),
         lambda n: f"u{n}" if n >= 3 else None, before=bef, after=aft6)
stamp("p6mm")
vm.wait("gb")
for i in range(8): a(f"v_pk_fma_f32 {vr(192+2*i,2)}, {vr(144+2*i,2)}, {vr(216+2*i,2)}, {vr(192+2*i,2)}")
for i in range(8): a(f"v_cvt_pk_bf16_f32 v{48+i}, v{192+2*i}, v{193+2*i}")
for p in range(2): a(f"v_permlane16_swap_b32 v{48+4*p}, v{50+4*p}\nv_permlane16_swap_b32 v{49+4*p}, v{51+4*p}")
for p in range(2): a(f"buffer_store_dwordx4 {vr(48+4*p,4)}, v7, {R1}, s75 offen offset:{p*64} {'nt' if 'ont' in XP else 'sc1'}")
if AMP:
    a("s_waitcnt vmcnt(0)")
    stamp("end")
    assert AMP[0] != "start"
    a(f"s_sub_u32 s91, s93, s90\ns_mul_i32 s91, s91, {1 if 'x1' in XP else 3}\ns_min_u32 s91, s91, 20000\ns_memrealtime s[78:79]\ns_waitcnt lgkmcnt(0)\ns_mov_b32 s92, s78\nL_amp:\ns_sleep 1\ns_memrealtime s[78:79]\ns_waitcnt lgkmcnt(0)\ns_sub_u32 s78, s78, s92\ns_cmp_lt_u32 s78, s91\ns_cbranch_scc1 L_amp")
elif "dbg" in XP:
    a("s_waitcnt vmcnt(0)")
    stamp("end")
    sel = ["xin", "barP", "barB", "kv0", "attn", "C", "D", "z2mm", "zpub", "E", "p5mm", "upub", "F", "p6mm", "end"]
    a("s_not_b32 s3, s80\nv_mov_b32 v32, s3")
    for n, nm in enumerate(sel):
        i = stamp_names.index(nm)
        a(f"s_bfe_u32 s3, s{81 + (i-1)//2}, {hex((16 << 16) | (16*((i-1) & 1)))}\ns_add_u32 s3, s3, s80\nv_writelane_b32 v32, s3, {n+1}")
    a("s_load_dwordx2 s[64:65], s[96:97], 104\ns_waitcnt lgkmcnt(0)")
    srd(R1, 64, 256)
    a(f"v_lshlrev_b32 v4, 2, v0\ns_mov_b64 exec, 0xffff\nbuffer_atomic_umax v32, v4, {R1}, 0 offen sc1\ns_waitcnt vmcnt(0)")
elif STAMPS:
    a("s_waitcnt vmcnt(0)")
    stamp("end")
    for i in range(22): a(f"v_writelane_b32 v32, s{80+i}, {i}")
    a(f"s_lshl_b32 s3, s2, 2\ns_add_u32 s3, s3, {sW}\ns_lshl_b32 s3, s3, 7\ns_add_u32 s3, s3, {WS_STAMP}\nv_lshlrev_b32 v4, 2, v0\ns_mov_b64 exec, 0xffffffff\nbuffer_store_dword v32, v4, {WS}, s3 offen")
a("s_endpgm")
a("L_qwait:")
poll(f"buffer_load_dword v252, v29, {WS}, s27 offen sc1", "v_cmp_gt_u32 vcc, 32, v252", "3", 4)
a("s_branch L_qok\nL_pwait:")
poll(f"buffer_load_dword v201, v174, {WS}, s27 offen sc1", "v_cmp_gt_u32 vcc, 32, v201", "15", 8)
a("s_branch L_pok\nL_gwait:")
poll(f"buffer_load_dword v201, v196, {WS}, s38 offen sc1", "v_cmp_gt_u32 vcc, 32, v201", "0xffffffff", 8)
a("s_branch L_gok")
a(f"{Lfb}:")
a(f"""
v_lshrrev_b32 v4, 5, v0
v_mul_u32_u24 v4, 272, v4
v_and_b32 v5, 31, v0
v_lshl_add_u32 v27, v5, 4, v4
v_mov_b32 v4, 0xff800000
v_mov_b32 v5, 0xff800000
s_mov_b32 s64, {WS_KV}
L_fb1:
buffer_load_dwordx4 {Kb(0)}, v3, {WS}, s64 offen offset:1088 sc1
s_waitcnt vmcnt(0)
""")
for e in range(2): a(f"v_mfma_f32_32x32x16_bf16 {vr(32+16*e,16)}, {Kb(0)}, {Q(e)}, 0")
rowmax(False)
a(f"s_add_u32 s64, s64, {REC}\ns_cmp_lt_u32 s64, {WS_KV + 64*REC}\ns_cbranch_scc1 L_fb1")
negbcast()
for i in range(32): a(f"v_mov_b32 v{80+i}, 0")
a(f"""
s_mov_b32 s64, {WS_KV}
L_fb2:
buffer_load_dwordx4 {Kb(0)}, v3, {WS}, s64 offen offset:1088 sc1
buffer_load_dwordx4 {Vb(0,0)}, v27, {WS}, s64 offen sc1
buffer_load_dwordx4 {Vb(0,1)}, v27, {WS}, s64 offen offset:544 sc1
s_waitcnt vmcnt(0)
""")
for e in range(2): a(f"v_mfma_f32_32x32x16_bf16 {vr(32+16*e,16)}, {Kb(0)}, {Q(e)}, {vr(C(e),16)}")
for i in range(32): a(f"v_exp_f32 v{32+i}, v{32+i}")
for e in range(2):
    for m in range(2): a(f"v_smfmac_f32_32x32x32_bf16 {vr(O(e),16)}, {Vb(0,m)}, {vr(32+16*e+8*m,8)}, v30")
a(f"s_add_u32 s64, s64, {REC}\ns_cmp_lt_u32 s64, {WS_KV + 64*REC}\ns_cbranch_scc1 L_fb2")
getl()
a(f"s_branch {Lok}\nL_end:\ns_endpgm")

body = a.finish()
head = open("cdna_kernels/" + NAME + ".s.ref").read().split("; Override launch")[0]
src = head + f"""; One persistent launch: 256 workgroups (32 row blocks of 64 rows x 8 column blocks), 4 waves of 16 rows each; written by gen/gen.py.
; Phases: mod (sa, ca) -> LN1, K/V, q -> attention (weights are re-laid out and staged underneath) -> wo + residual ->
; w_in + gelu, LN of z2 -> w_sp GEMM * z1 -> w_out + residual. Workgroups hand data over through d_ws with flags they clear themselves;
; the word at WS_EPOCH only tags this launch's first hand-offs. Every spin is bounded.
; @launch grid=(256,1,1) block=(256,1,1) lds={LDS_BYTES}
.amdgcn_target "amdgcn-amd-amdhsa--gfx950"
.text
.globl {NAME}_kernel
.p2align 8
.type {NAME}_kernel,@function
{NAME}_kernel:
{body}.section .rodata,"a"
.p2align 6
.amdhsa_kernel {NAME}_kernel
  .amdhsa_next_free_vgpr 512
  .amdhsa_next_free_sgpr 102
  .amdhsa_accum_offset 256
  .amdhsa_group_segment_fixed_size 0
  .amdhsa_kernarg_size 120
  .amdhsa_user_sgpr_count 2
  .amdhsa_user_sgpr_kernarg_segment_ptr 1
  .amdhsa_system_sgpr_workgroup_id_x 1
.end_amdhsa_kernel
"""
out = [x for x in sys.argv[1:] if not x.startswith("--")]
open(out[0] if out else "cdna_kernels/" + NAME + ".s", "w").write(src)
if STAMPS:
    open("stamps.txt", "w").write("\n".join(stamp_names)); open(out[0] + ".st", "w").write("\n".join(stamp_names))
print("instructions:", sum(1 for k, _ in a.items if k == "ins"), "hazard nops:", a.nops, file=sys.stderr)
```
